```python
import torch

def _softmax(x, axis=-1):
    return torch.softmax(x, dim=axis)
def _gelu(x):
    return torch.nn.functional.gelu(x, approximate="tanh")
def _silu(x):
    return torch.nn.functional.silu(x)
def _sigmoid(x):
    return torch.sigmoid(x)
def _layernorm(x, axis=-1, eps=1e-5):
    m = x.mean(dim=axis, keepdim=True)
    v = x.var(dim=axis, keepdim=True, unbiased=False)
    return (x - m) / torch.sqrt(v + eps)
def _scatter_add(tgt, idx, src, axis=0):
    return tgt.clone().index_add_(axis, idx, src)
def _segment_sum(src, seg, n):
    out = torch.zeros((n,) + src.shape[1:], dtype=src.dtype)
    return out.index_add_(0, seg, src)
def _pad(x, pw):
    flat = tuple(v for pair in reversed(pw) for v in pair)
    return torch.nn.functional.pad(x, flat)

kernel_name = 'recurrent_scan__gqa_block_cached__mixer_token_mlp__prompt'

def setup_inputs():

    _w = (lambda a: (lambda t: t.to(torch.bfloat16) if t.is_floating_point() else t)(torch.as_tensor(a)))
    def _A_setup():
        B, Sq, D = 1, 2048, 512
        Hq, Hkv, Sk, Dh = 32, 8, 2048, 128
        assert Hq % Hkv == 0, (Hq, Hkv)
        return {
            "x": _w((lambda *s: torch.randn(*s, dtype=torch.bfloat16) * 0.05)(B, Sq, D)),
            "k_cache": _w((lambda *s: torch.randn(*s, dtype=torch.bfloat16) * 3.2)(B, Hkv, Sk, Dh)),
            "v_cache": _w((lambda *s: torch.randn(*s, dtype=torch.bfloat16) * 3.2)(B, Hkv, Sk, Dh)),
            "wq": _w((lambda *s: torch.randn(*s, dtype=torch.bfloat16) * 3.2)(D, Hq * Dh) * (D ** -0.5)),
            "wo": _w((lambda *s: torch.randn(*s, dtype=torch.bfloat16) * 3.2)(Hq * Dh, D) * ((Hq * Dh) ** -0.5)),
        }
    _A_in = _A_setup()

    def _B_setup():
        B, S, D, F = 1, 2048, 512, 1792
        return {
            "x": _w((lambda *s: torch.randn(*s, dtype=torch.bfloat16) * 0.05)(B, S, D)),
            "w1": _w((lambda *s: torch.randn(*s, dtype=torch.bfloat16) * 3.2)(S, F) * (S ** -0.5)),
            "b1": _w((lambda *s: torch.randn(*s, dtype=torch.bfloat16) * 3.2)(F) * 0.02),
            "w2": _w((lambda *s: torch.randn(*s, dtype=torch.bfloat16) * 0.4)(F, S) * (F ** -0.5)),
            "b2": _w((lambda *s: torch.randn(*s, dtype=torch.bfloat16) * 0.4)(S) * 0.02),
        }
    _B_in = _B_setup()

    return {
        "A_x": _A_in["x"],
        "A_k_cache": _A_in["k_cache"],
        "A_v_cache": _A_in["v_cache"],
        "A_wq": _A_in["wq"],
        "A_wo": _A_in["wo"],
        "B_x": _B_in["x"],
        "B_w1": _B_in["w1"],
        "B_b1": _B_in["b1"],
        "B_w2": _B_in["w2"],
        "B_b2": _B_in["b2"],
    }

def reference(A_x, A_k_cache, A_v_cache, A_wq, A_wo, B_x, B_w1, B_b1, B_w2, B_b2):
    def _A_ref(x, k_cache, v_cache, wq, wo):
        B, Sq, D = x.shape
        Hq, Dh = 32, 128
        Hkv = k_cache.shape[1]
        rep = Hq // Hkv
        q = (lambda x, *d: x.permute(*d))((x @ wq).reshape(B, Sq, Hq, Dh), 0, 2, 1, 3)
        k = (lambda x, n, axis: torch.repeat_interleave(x, n, dim=axis))(k_cache, rep, axis=1)
        v = (lambda x, n, axis: torch.repeat_interleave(x, n, dim=axis))(v_cache, rep, axis=1)
        scores = torch.einsum("bhqd,bhkd->bhqk", q, k) * (Dh ** -0.5)
        p = _softmax(scores, axis=-1)
        o = torch.einsum("bhqk,bhkd->bhqd", p, v)
        return (lambda x, *d: x.permute(*d))(o, 0, 2, 1, 3).reshape(B, Sq, Hq * Dh) @ wo

    def _B_ref(x, w1, b1, w2, b2):
        B, S, D = x.shape
        h = _layernorm(x, axis=-1)
        u = torch.einsum("bsd,sf->bdf", h, w1) + b1
        u = _gelu(u)
        y = torch.einsum("bdf,fs->bds", u, w2) + b2
        return (lambda x, *d: x.permute(*d))(y, 0, 2, 1)

    x = A_x
    xn = _layernorm(x, axis=-1)
    s = _A_ref(xn, A_k_cache, A_v_cache, A_wq, A_wo)
    g = _silu(_B_ref(xn, B_w1, B_b1, B_w2, B_b2))
    return x + s * g
```

```python
import re

def R(prefix, lo, n=1):
    return [f"{prefix}{i}" for i in range(lo, lo + n)]

def rng(prefix, lo, n):
    return f"{prefix}{lo}" if n == 1 else f"{prefix}[{lo}:{lo+n-1}]"

class Reg:
    def __init__(self, kind, lo, n=1):
        self.kind, self.lo, self.n = kind, lo, n
    def __str__(self): return rng(self.kind, self.lo, self.n)
    def regs(self): return R(self.kind, self.lo, self.n)
    def __getitem__(self, i):
        if isinstance(i, slice):
            start = i.start or 0; stop = self.n if i.stop is None else i.stop
            assert 0 <= start < stop <= self.n, (start, stop, self.n)
            return Reg(self.kind, self.lo + start, stop - start)
        assert 0 <= i < self.n, (i, self.n)
        return Reg(self.kind, self.lo + i, 1)
def V(lo, n=1): return Reg('v', lo, n)
def A(lo, n=1): return Reg('a', lo, n)
def S(lo, n=1): return Reg('s', lo, n)

def regs_of(x):
    if isinstance(x, Reg): return x.regs()
    if isinstance(x, str) and x in ('vcc', 'm0', 'exec', 'scc'): return [x]
    return []

class I:
    def __init__(self, text, kind, reads=(), writes=(), **kw):
        self.text, self.kind = text, kind
        self.reads = set(); self.writes = set()
        for r in reads: self.reads.update(regs_of(r))
        for w in writes: self.writes.update(regs_of(w))
        self.__dict__.update(kw)
    def __repr__(self): return self.text

def fmt(x):
    if isinstance(x, float):
        import struct
        inl = {0.5:'0.5',-0.5:'-0.5',1.0:'1.0',-1.0:'-1.0',2.0:'2.0',-2.0:'-2.0',4.0:'4.0',-4.0:'-4.0',0.0:'0'}
        if x in inl: return inl[x]
        return hex(struct.unpack('<I', struct.pack('<f', x))[0])
    return str(x)

def mfma32(d, a, b, c):
    return I(f"v_mfma_f32_32x32x16_bf16 {d}, {a}, {b}, {fmt(c)}", 'mfma', reads=[a, b, c], writes=[d], passes=8, A=a, B=b, C=c, D=d)
def mfma16(d, a, b, c):
    return I(f"v_mfma_f32_16x16x32_bf16 {d}, {a}, {b}, {fmt(c)}", 'mfma', reads=[a, b, c], writes=[d], passes=4, A=a, B=b, C=c, D=d)
def valu(op, d, *src, mods="", extra_reads=(), extra_writes=(), dst_read=False):
    kind = 'valu'
    if op in ('v_exp_f32','v_rcp_f32','v_rsq_f32','v_log_f32','v_sqrt_f32','v_sin_f32','v_cos_f32'): kind = 'trans'
    rd = list(src) + list(extra_reads) + ([d] if dst_read else [])
    t = f"{op} {d}, " + ", ".join(fmt(s) for s in src) + (" " + mods if mods else "")
    rd2 = []
    for s in rd:
        if isinstance(s, str):
            m = re.fullmatch(r'-?\|?([vas])(\d+)\|?', s)
            if m: rd2.append(Reg(m.group(1), int(m.group(2))))
            else: rd2.append(s)
        else: rd2.append(s)
    return I(t, kind, reads=rd2, writes=[d] + list(extra_writes), op=op)
def salu(op, d, *src, writes_scc=True):
    t = f"{op} {d}, " + ", ".join(fmt(s) for s in src) if src else f"{op} {d}"
    return I(t, 'salu', reads=list(src), writes=[d] + (['scc'] if writes_scc else []), op=op)
def scmp(op, a, b): return I(f"{op} {fmt(a)}, {fmt(b)}", 'salu', reads=[a, b], writes=['scc'], op=op)
def ds_read_b128(d, addr, off=0):
    return I(f"ds_read_b128 {d}, {addr}" + (f" offset:{off}" if off else ""), 'ds_read', reads=[addr], writes=[d])
def ds_read_b64(d, addr, off=0):
    return I(f"ds_read_b64 {d}, {addr}" + (f" offset:{off}" if off else ""), 'ds_read', reads=[addr], writes=[d])
def ds_read_b32(d, addr, off=0):
    return I(f"ds_read_b32 {d}, {addr}" + (f" offset:{off}" if off else ""), 'ds_read', reads=[addr], writes=[d])
def ds_read_tr(d, addr, off=0):
    return I(f"ds_read_b64_tr_b16 {d}, {addr}" + (f" offset:{off}" if off else ""), 'ds_read', reads=[addr], writes=[d])
def ds_write(n, addr, src, off=0):
    op = {1:'ds_write_b32', 2:'ds_write_b64', 4:'ds_write_b128'}[n]
    return I(f"{op} {addr}, {src}" + (f" offset:{off}" if off else ""), 'ds_write', reads=[addr, src], writes=[])
def dma(voff, srd, soff, off=0, mods=""):
    return I(f"buffer_load_dwordx4 {voff}, {srd}, {fmt(soff)} offen" + (f" offset:{off}" if off else "") + (" " + mods if mods else "") + " lds", 'dma', reads=[voff, srd, soff, 'm0'], writes=[])
def bload(n, d, voff, srd, soff=0, off=0, mods=""):
    op = {1:'buffer_load_dword', 2:'buffer_load_dwordx2', 4:'buffer_load_dwordx4'}[n]
    return I(f"{op} {d}, {voff}, {srd}, {fmt(soff)} offen" + (f" offset:{off}" if off else "") + (" " + mods if mods else ""), 'vload', reads=[voff, srd, soff], writes=[d])
def bload_ushort(d, voff, srd, soff=0, off=0):
    return I(f"buffer_load_ushort {d}, {voff}, {srd}, {fmt(soff)} offen" + (f" offset:{off}" if off else ""), 'vload', reads=[voff, srd, soff], writes=[d])
def bstore(n, src, voff, srd, soff=0, off=0, mods=""):
    op = {1:'buffer_store_dword', 2:'buffer_store_dwordx2', 4:'buffer_store_dwordx4'}[n]
    return I(f"{op} {src}, {voff}, {srd}, {fmt(soff)} offen" + (f" offset:{off}" if off else "") + (" " + mods if mods else ""), 'vstore', reads=[src, voff, srd, soff], writes=[], width=n, data=src)
def waitcnt(vm=None, lgkm=None):
    p = []
    if vm is not None: p.append(f"vmcnt({vm})")
    if lgkm is not None: p.append(f"lgkmcnt({lgkm})")
    return I("s_waitcnt " + " ".join(p), 'wait', vm=vm, lgkm=lgkm)
def barrier(): return I("s_barrier", 'barrier')
def nop(n=0): return I(f"s_nop {n}", 'nop', states=n + 1)
def raw(text, kind='salu', reads=(), writes=(), **kw): return I(text, kind, reads=reads, writes=writes, **kw)
def label(name): return I(f"{name}:", 'label')
def comment(t): return I(f"; {t}", 'label')
def permlane32_swap(a, b): return I(f"v_permlane32_swap_b32 {a}, {b}", 'valu', reads=[a, b], writes=[a, b], op='permlane')
def permlane16_swap(a, b): return I(f"v_permlane16_swap_b32 {a}, {b}", 'valu', reads=[a, b], writes=[a, b], op='permlane')

VALU_KINDS = ('valu', 'trans')

def insert_waits(seq, lgkm_pending=None, vm_pending=None, handle_vm=True):
    out = []
    lq = list(lgkm_pending or [])
    vq = list(vm_pending or [])
    for ins in seq:
        if ins.kind == 'wait':
            if ins.lgkm is not None: lq = lq[len(lq) - ins.lgkm:] if ins.lgkm < len(lq) else lq
            if ins.lgkm == 0: lq = []
            if ins.vm is not None: vq = vq[len(vq) - ins.vm:] if ins.vm < len(vq) else vq
            if ins.vm == 0: vq = []
            out.append(ins); continue
        touched = ins.reads | ins.writes
        need_l = None
        for k, dst in enumerate(lq):
            if dst & touched: need_l = len(lq) - 1 - k
        need_v = None
        if handle_vm:
            for k, dst in enumerate(vq):
                if dst & touched: need_v = len(vq) - 1 - k
        if need_l is not None or need_v is not None:
            if need_l is not None:
                n = min(need_l, 15);
                lq = lq[len(lq) - n:] if n > 0 else []
            if need_v is not None:
                m = min(need_v, 63)
                vq = vq[len(vq) - m:] if m > 0 else []
            out.append(waitcnt(vm=(m if need_v is not None else None), lgkm=(n if need_l is not None else None)))
        out.append(ins)
        if ins.kind == 'ds_read': lq.append(set(ins.writes))
        elif ins.kind == 'ds_write': lq.append(set())
        elif ins.kind == 'smem': lq.append(set(ins.writes))
        elif ins.kind == 'vload': vq.append(set(ins.writes))
        elif ins.kind in ('dma', 'vstore', 'vatomic'): vq.append(set(ins.writes))
    return out, lq, vq

def states(ins):
    if ins.kind == 'label': return 0
    if ins.kind == 'nop': return ins.states
    return 1

def check_hazards(seq, loop=False, name=""):
    s = [i for i in seq if i.kind != 'label']
    if loop: s = s + s
    errs = []
    W = 24
    for j, c in enumerate(s):
        dist = 0
        for k in range(j - 1, max(-1, j - W - 1), -1):
            p = s[k]
            need = 0; why = ""
            cr, cw = c.reads, c.writes
            if p.kind in VALU_KINDS:
                vw = {r for r in p.writes if r[0] in 'va' and r not in ('vcc',)}
                if c.kind == 'mfma' and (vw & cr): need, why = 2, "VALU->MFMA operand"
                if getattr(c, 'op', '') == 'permlane' and (vw & cr): need, why = max(need, 2), "VALU->permlane"
                if 'dpp' in c.text or 'row_' in c.text or 'quad_perm' in c.text:
                    if vw & cr: need, why = max(need, 2), "VALU->DPP"
                if getattr(c, 'op', '').startswith('v_read') and (vw & cr): need, why = max(need, 1), "VALU->readlane"
                if p.kind == 'trans' and c.kind == 'valu' and (p.writes & cr): need, why = max(need, 1), "trans->VALU"
                sw = {r for r in p.writes if r[0] == 's' or r == 'vcc'}
                if sw:
                    if c.kind in ('dma', 'vload', 'vstore', 'vatomic') and (sw & cr): need, why = max(need, 5), "VALU sgpr->VMEM"
                    if c.kind in VALU_KINDS and (sw & cr): need, why = max(need, 2), "VALU sgpr->VALU"
                    if c.kind == 'salu' and (sw & cr): need, why = max(need, 1), "VALU sgpr -> SALU (pad)"
                if 'exec' in p.writes and c.kind == 'mfma': need, why = max(need, 4), "VALU exec->MFMA"
            if p.kind == 'salu' and 'm0' in p.writes and c.kind == 'dma': need, why = max(need, 1), "M0->DMA"
            if p.kind == 'mfma':
                ps = p.passes
                dw = p.writes
                if c.kind == 'mfma':
                    ab = set(regs_of(c.A)) | set(regs_of(c.B)); cc = set(regs_of(c.C))
                    if dw & ab: need, why = max(need, {4: 8, 8: 12}[ps]), "MFMA D->A/B"
                    if dw & cc:
                        if set(regs_of(c.C)) == dw and c.passes == ps: pass
                        else: need, why = max(need, {4: 6, 8: 10}[ps]), "MFMA D->C overlap"
                    elif dw & c.writes and not (dw & cc):
                        need, why = max(need, {4: 6, 8: 10}[ps]), "MFMA D WAW"
                elif c.kind in VALU_KINDS or c.kind in ('ds_read', 'ds_write', 'vload', 'vstore', 'dma', 'vatomic'):
                    if dw & (cr | cw): need, why = max(need, {4: 8, 8: 12}[ps]), "MFMA D->VALU/mem"
                    if c.kind in VALU_KINDS and (set(regs_of(p.C)) & cw): need, why = max(need, {4: 3, 8: 7}[ps]), "MFMA C WAR"
            if p.kind == 'vstore' and p.width >= 3:
                if set(regs_of(p.data)) & cw: need, why = max(need, 2), "store data WAR"
            if need > dist:
                errs.append(f"{name}: need {need} got {dist} [{why}]: '{p.text}' -> '{c.text}'")
            dist += states(p)
            if dist > 20: break
    return errs

def emit(seq, indent="  "):
    return "\n".join((i.text if i.kind == 'label' else indent + i.text) for i in seq) + "\n"

def fix_hazards(seq, name="", verbose=False):
    out = []
    n_ins = 0
    for ins in seq:
        if ins.kind == 'label':
            out.append(ins); continue
        while True:
            tail = [i for i in out[-40:]] + [ins]
            errs = check_hazards_last(tail)
            if errs == 0: break
            k = min(errs, 16)
            out.append(nop(k - 1)); n_ins += k
        out.append(ins)
    if verbose and n_ins: print(f"; {name}: inserted {n_ins} wait states")
    return out

def check_hazards_last(s):
    s = [i for i in s if i.kind != 'label']
    errs = check_hazards_range(s, len(s) - 1)
    return errs

def check_hazards_range(s, j):
    c = s[j]
    worst = 0
    dist = 0
    for k in range(j - 1, -1, -1):
        p = s[k]
        need = pair_need(p, c)[0]
        if need > dist: worst = max(worst, need - dist)
        dist += states(p)
        if dist > 20: break
    return worst

def pair_need(p, c):
    need = 0; why = ""
    cr, cw = c.reads, c.writes
    if p.kind in VALU_KINDS:
        vw = {r for r in p.writes if r[0] in 'va' and r not in ('vcc',)}
        if c.kind == 'mfma' and (vw & cr): need, why = 2, "VALU->MFMA operand"
        if getattr(c, 'op', '') == 'permlane' and (vw & cr): need, why = max(need, 2), "VALU->permlane"
        if 'dpp' in c.text or 'row_' in c.text or 'quad_perm' in c.text:
            if vw & cr: need, why = max(need, 2), "VALU->DPP"
        if getattr(c, 'op', '').startswith('v_read') and (vw & cr): need, why = max(need, 1), "VALU->readlane"
        if p.kind == 'trans' and c.kind == 'valu' and (p.writes & cr): need, why = max(need, 1), "trans->VALU"
        sw = {r for r in p.writes if r[0] == 's' or r == 'vcc'}
        if sw:
            if c.kind in ('dma', 'vload', 'vstore', 'vatomic') and (sw & cr): need, why = max(need, 5), "VALU sgpr->VMEM"
            if c.kind in VALU_KINDS and (sw & cr): need, why = max(need, 2), "VALU sgpr->VALU"
            if c.kind == 'salu' and (sw & cr): need, why = max(need, 4), "VALU sgpr -> SALU (pad)"
        if 'exec' in p.writes and c.kind == 'mfma': need, why = max(need, 4), "VALU exec->MFMA"
    if p.kind == 'salu' and 'm0' in p.writes and c.kind == 'dma': need, why = max(need, 1), "M0->DMA"
    if p.kind == 'mfma':
        ps = p.passes
        dw = p.writes
        if c.kind == 'mfma':
            ab = set(regs_of(c.A)) | set(regs_of(c.B)); cc = set(regs_of(c.C))
            if dw & ab: need, why = max(need, {4: 8, 8: 12}[ps]), "MFMA D->A/B"
            if dw & cc:
                if cc == dw and c.passes == ps: pass
                else: need, why = max(need, {4: 6, 8: 10}[ps]), "MFMA D->C overlap"
            elif dw & c.writes:
                need, why = max(need, {4: 6, 8: 10}[ps]), "MFMA D WAW"
        elif c.kind in VALU_KINDS or c.kind in ('ds_read', 'ds_write', 'vload', 'vstore', 'dma', 'vatomic'):
            if dw & (cr | cw): need, why = max(need, {4: 8, 8: 12}[ps]), "MFMA D->VALU/mem"
            if c.kind in VALU_KINDS and (set(regs_of(p.C)) & cw): need, why = max(need, {4: 3, 8: 7}[ps]), "MFMA C WAR"
    if p.kind == 'vstore' and p.width >= 3:
        if set(regs_of(p.data)) & cw: need, why = max(need, 2), "store data WAR"
    return need, why

def cost(ins):
    k = ins.kind
    if k == 'trans': return 8
    if k == 'valu': return 4
    if k in ('ds_read', 'ds_write'): return 4
    if k == 'dma': return 20
    if k in ('vload', 'vstore'): return 12
    if k in ('salu', 'wait', 'nop', 'barrier'): return 0
    return 0
def cls(ins):
    k = ins.kind
    if k in ('salu', 'wait', 'nop'): return 0
    if k in ('ds_read', 'ds_write', 'dma', 'vload', 'vstore'): return 1
    return 2

def schedule_gaps(mf, ops, budget=None, slack=1.0, start_credit=0.0):
    T = len(mf)
    ops = sorted(ops, key=lambda x: x[0])
    if budget is None:
        budget = sum(cost(o[1]) for o in ops) / max(1, sum(1 for m in mf if m is not None))
    seq = []
    oi = 0
    credit = start_credit
    pre = []
    while oi < len(ops) and ops[oi][0] < 0:
        pre.append(ops[oi][1]); oi += 1
    seq += sorted(pre, key=cls)
    for k in range(T):
        if mf[k] is not None: seq.append(mf[k])
        credit += budget
        gap = []
        while oi < len(ops):
            t, ins = ops[oi][0], ops[oi][1]
            c = cost(ins)
            if t >= k + 1 + slack: break
            forced = t < k + 1 - slack or k == T - 1
            if forced or credit >= c - 0.01 * 0 - (c * 0.5):
                gap.append(ins); credit -= c; oi += 1
            else: break
        gap.sort(key=cls)
        seq += gap
        credit = min(credit, budget)
    assert oi == len(ops), ops[oi:]
    return seq

def insert_waits2(seq, lgkm_pending=None):
    out = []
    lq = list(lgkm_pending or [])
    for ins in seq:
        if ins.kind == 'wait':
            if ins.lgkm is not None:
                lq = lq[len(lq) - ins.lgkm:] if 0 < ins.lgkm < len(lq) else ([] if ins.lgkm == 0 else lq)
            out.append(ins); continue
        touched = ins.reads | ins.writes
        need = None
        for k, (dst, _) in enumerate(lq):
            if dst & touched: need = k
        if need is not None:
            pos = len(out)
            lm = max((i for i, o in enumerate(out) if o.kind == 'mfma'), default=-1)
            if lm >= 0 and lq[need][1] < lm:
                pos = lm + 1
            later = sum(1 for (_, idx) in lq[need+1:] if idx < pos)
            n = min(later, 15)
            out.insert(pos, waitcnt(lgkm=n))
            lq = [(d, idx + 1 if idx >= pos else idx) for (d, idx) in lq]
            before = [e for e in lq if e[1] < pos]; after = [e for e in lq if e[1] > pos]
            before = before[len(before) - n:] if n > 0 else []
            lq = before + after
        out.append(ins)
        if ins.kind in ('ds_read', 'ds_write', 'smem'):
            lq.append((set(ins.writes) if ins.kind != 'ds_write' else set(), len(out) - 1))
    return out, lq

def validate_tags(seq, init=None):
    cur = dict(init or {})
    errs = []
    for ins in seq:
        rt = getattr(ins, 'rt', None)
        if rt:
            for reg, tag in rt.items():
                if cur.get(reg) != tag:
                    errs.append(f"{ins.text}: {reg} has {cur.get(reg)} expected {tag}")
        wt = getattr(ins, 'wt', None)
        if wt is not None:
            for w in ins.writes:
                if w[0] in 'va': cur[w] = wt
    return errs
def tag(ins, wt=None, rt=None):
    if wt is not None: ins.wt = wt
    if rt:
        d = {}
        for regs, t in rt:
            for r in regs_of(regs): d[r] = t
        ins.rt = d
    return ins

def schedule_gaps2(mf, ops, minfill, maxfill, early=2.0, late=0.0):
    T = len(mf)
    ops = sorted(ops, key=lambda x: x[0])
    seq = []; oi = 0
    pre = []
    while oi < len(ops) and ops[oi][0] < 0:
        pre.append(ops[oi][1]); oi += 1
    seq += sorted(pre, key=cls)
    for k in range(T):
        if mf[k] is not None: seq.append(mf[k])
        gap = []; f = 0
        while oi < len(ops):
            t, ins = ops[oi][0], ops[oi][1]
            c = cost(ins)
            take = False
            if k == T - 1: take = True
            elif t < k - 1: take = True
            elif c == 0 and t < k + 1 + early: take = True
            elif f < minfill and t < k + 1 + early and f + c <= max(maxfill, c): take = True
            elif t < k + 1 - late and f + c <= maxfill: take = True
            if not take: break
            gap.append(ins); f += c; oi += 1
        gap.sort(key=cls)
        seq += gap
    assert oi == len(ops), ops[oi:]
    return seq

class Op:
    def __init__(self, ins, target, release=-1e9, deadline=1e9, stream=0):
        self.ins, self.t, self.r, self.dl, self.s = ins, target, release, deadline, stream

def list_schedule(mf, ops, minfill, maxfill, ahead=3.0):
    T = len(mf)
    streams = {}
    for o in ops: streams.setdefault(o.s, []).append(o)
    heads = {s: 0 for s in streams}
    seq = []
    def cands(k):
        c = []
        for s, lst in streams.items():
            if heads[s] < len(lst) and lst[heads[s]].r <= k: c.append(lst[heads[s]])
        return c
    pre = []
    while True:
        c = [o for o in cands(-1) if o.t < 0]
        if not c: break
        o = min(c, key=lambda x: x.t); pre.append(o.ins); heads[o.s] += 1
    seq += sort_gap(pre)
    fills = []
    for k in range(T):
        if mf[k] is not None: seq.append(mf[k])
        gap = []; f = 0
        last = (k == T - 1)
        while True:
            c = cands(k)
            if not c: break
            pick = None
            forced = [o for o in c if o.dl <= k or last or any(x.dl <= k for x in streams[o.s][heads[o.s]:heads[o.s]+6])]
            free = [o for o in c if cost(o.ins) == 0 and o.t < k + 1 + ahead]
            if forced: pick = min(forced, key=lambda x: x.t)
            elif free: pick = min(free, key=lambda x: x.t)
            else:
                near = [o for o in c if o.t < k + 1 + ahead]
                if f < minfill:
                    fit = [o for o in near if f + cost(o.ins) <= max(maxfill, minfill)]
                    exact = [o for o in fit if f + cost(o.ins) <= minfill]
                    if exact: pick = min(exact, key=lambda x: x.t)
                    elif fit: pick = min(fit, key=lambda x: x.t)
                    elif f == 0 and near: pick = min(near, key=lambda x: x.t)
                else:
                    due = [o for o in c if o.t < k + 1 and f + cost(o.ins) <= maxfill]
                    if due: pick = min(due, key=lambda x: x.t)
            if pick is None: break
            gap.append(pick.ins); f += cost(pick.ins); heads[pick.s] += 1
        gap = sort_gap(gap)
        seq += gap; fills.append(f)
    for s, lst in streams.items(): assert heads[s] == len(lst), (s, lst[heads[s]].ins.text)
    return seq, fills


def dep(a, b):
    return bool((a.writes & (b.reads | b.writes)) or (a.reads & b.writes))
def sort_gap(gap):
    out = []
    for ins in gap:
        pos = len(out)
        while pos > 0 and cls(out[pos-1]) > cls(ins) and not dep(out[pos-1], ins):
            pos -= 1
        out.insert(pos, ins)
    return out

def lds_dep(ins, need=(), mark=()):
    ins.need = set(need); ins.mark = set(mark)
    return ins

def auto_waits(seq, lq=None, vq=None, shadow=True):
    out = []
    lq = [list(e) for e in (lq or [])]; vq = [list(e) for e in (vq or [])]
    def trim(q, n, pos):
        before = [e for e in q if e[1] < pos]; after = [e for e in q if e[1] >= pos]
        return (before[len(before) - n:] if n > 0 else []) + after
    for ins in seq:
        if ins.kind == 'wait':
            if ins.lgkm is not None: lq = trim(lq, ins.lgkm, 1 << 60) if ins.lgkm < len(lq) else lq
            if ins.vm is not None: vq = trim(vq, ins.vm, 1 << 60) if ins.vm < len(vq) else vq
            out.append(ins); continue
        if ins.kind == 'label':
            out.append(ins); continue
        touched = ins.reads | ins.writes | getattr(ins, 'need', set())
        nl = nv = None
        for k, e in enumerate(lq):
            if e[0] & touched: nl = k
        for k, e in enumerate(vq):
            if e[0] & touched: nv = k
        if nl is not None or nv is not None:
            pos = len(out)
            if shadow:
                lm = -1
                for i in range(len(out) - 1, -1, -1):
                    if out[i].kind == 'mfma': lm = i; break
                    if out[i].kind in ('barrier', 'label', 'branch'): break
                if lm >= 0 and (nl is None or lq[nl][1] < lm) and (nv is None or vq[nv][1] < lm):
                    pos = lm + 1
            n = m = None
            if nl is not None:
                smem = any(e[2] for e in lq)
                n = 0 if smem else min(15, sum(1 for e in lq[nl+1:] if e[1] < pos))
            if nv is not None:
                m = min(63, sum(1 for e in vq[nv+1:] if e[1] < pos))
            out.insert(pos, waitcnt(vm=m, lgkm=n))
            for e in lq + vq:
                if e[1] >= pos: e[1] += 1
            if n is not None: lq = trim(lq, n, pos)
            if m is not None: vq = trim(vq, m, pos)
        out.append(ins)
        tags = set(ins.writes) | getattr(ins, 'mark', set())
        if ins.kind in ('ds_read', 'smem'): lq.append([tags, len(out) - 1, ins.kind == 'smem'])
        elif ins.kind == 'ds_write': lq.append([set(getattr(ins, 'mark', set())), len(out) - 1, False])
        elif ins.kind in ('vload', 'dma', 'vatomic'): vq.append([tags, len(out) - 1, False])
        elif ins.kind == 'vstore': vq.append([set(getattr(ins, 'mark', set())), len(out) - 1, False])
    return out, lq, vq
```

```python
from k_common import *
def build():
    s = []; a = s.append
    a(raw("s_cmp_ge_u32 s2, 512")); a(raw("s_cbranch_scc1 L_k1_end"))
    a(sload(S(4, 2), ARG_X)); a(sload(S(6, 2), ARG_WS))
    a(valu('v_lshrrev_b32', V(1), 6, V(0)))
    a(valu('v_and_b32', V(2), 63, V(0)))
    a(raw("s_lshl_b32 s3, s2, 2", writes=[S(3)]))
    a(valu('v_add_u32', V(1), S(3), V(1)))
    a(valu('v_lshlrev_b32', V(1), 10, V(1)))
    a(valu('v_lshl_add_u32', V(1), V(2), 4, V(1)))
    a(waitcnt(lgkm=0))
    s += make_srd(S(8, 4), S(4, 2), 2 << 20)
    s += make_srd(S(12, 4), S(6, 2), 4 << 20)
    a(bload(4, V(4, 4), V(1), S(8, 4)))
    X = [V(8 + i) for i in range(8)]
    def unpack(src):
        o = []
        for i in range(4):
            o.append(valu('v_lshlrev_b32', X[2*i], 16, src[i]))
            o.append(valu('v_and_b32', X[2*i+1], 0xffff0000, src[i]))
        return o
    def norm(dst):
        o = []
        sm = V(16); t = V(17)
        o.append(valu('v_add_f32', sm, X[0], X[1]))
        o.append(valu('v_add_f32', t, X[2], X[3]))
        o.append(valu('v_add_f32', V(18), X[4], X[5]))
        o.append(valu('v_add_f32', V(19), X[6], X[7]))
        o.append(valu('v_add_f32', sm, sm, t)); o.append(valu('v_add_f32', V(18), V(18), V(19)))
        o.append(valu('v_add_f32', sm, sm, V(18)))
        o += wave_sum(sm, t)
        o.append(valu('v_mul_f32', sm, 1.0/512, sm))
        for i in range(8): o.append(valu('v_sub_f32', X[i], X[i], sm))
        q = V(18)
        o.append(valu('v_mul_f32', q, X[0], X[0]))
        for i in range(1, 8): o.append(valu('v_fmac_f32', q, X[i], X[i], dst_read=True))
        o += wave_sum(q, t)
        o.append(valu('v_mov_b32', t, 1e-5))
        o.append(valu('v_fmac_f32', t, 1.0/512, q, dst_read=True))
        o.append(valu('v_rsq_f32', t, t))
        for i in range(8): o.append(valu('v_mul_f32', X[i], X[i], t))
        for i in range(4): o.append(valu('v_cvt_pk_bf16_f32', dst[i], X[2*i], X[2*i+1]))
        return o
    s += unpack(V(4, 4))
    s += norm(V(20, 4))
    a(bstore(4, V(20, 4), V(1), S(12, 4), 0, mods=""))
    s += unpack(V(20, 4))
    s += norm(V(24, 4))
    a(smov(S(16), WS_H))
    a(bstore(4, V(24, 4), V(1), S(12, 4), S(16)))
    a(waitcnt(vm=0))
    s = finish(s, "k1")
    s.append(label("L_k1_end"))
    return emit(s)
```

```python
from k_common import *
LOG2E = 1.4426950408889634

def tr_addr_128(a, l, dst4, base_v, t0=V(4), t1=V(5), t2=V(6), t3=V(7)):
    a(valu('v_lshrrev_b32', t0, 4, l))
    a(valu('v_bfe_u32', t1, l, 2, 2))
    a(valu('v_lshl_add_u32', t0, t0, 2, t1))
    a(valu('v_bfe_u32', t1, t0, 1, 2))
    a(valu('v_lshlrev_b32', t1, 1, t1))
    a(valu('v_lshlrev_b32', t0, 7, t0))
    a(valu('v_and_b32', t2, 1, l))
    a(valu('v_lshl_add_u32', t0, t2, 3, t0))
    a(valu('v_add_u32', t0, base_v, t0))
    a(valu('v_bfe_u32', t2, l, 1, 1))
    for t in range(4):
        a(valu('v_add_u32', t3, 2*t, t2))
        a(valu('v_xor_b32', t3, t3, t1))
        a(valu('v_lshl_add_u32', dst4[t], t3, 4, t0))
def dma_off_128(a, l, dst4, stride, t0=V(4), t1=V(5), t2=V(6), s_tmp=None):
    a(valu('v_lshrrev_b32', t0, 3, l))
    a(valu('v_bfe_u32', t1, t0, 1, 2))
    a(valu('v_lshlrev_b32', t1, 1, t1))
    a(valu('v_and_b32', t2, 7, l))
    a(valu('v_xor_b32', t2, t2, t1))
    a(valu('v_lshlrev_b32', t2, 4, t2))
    a(smov(s_tmp, stride))
    a(valu('v_mul_lo_u32', t0, t0, s_tmp))
    a(valu('v_add_u32', dst4[0], t0, t2))
    for i in range(1, 4):
        a(valu('v_add_u32', dst4[i], 8*stride - 1024, dst4[i-1]))
def gelu(a, x, t1, t2, s_c1, s_c2):
    a(valu('v_mul_f32', t1, x, x))
    a(valu('v_fma_f32', t1, t1, s_c1, 1.0))
    a(valu('v_mul_f32', t1, t1, x))
    a(valu('v_mul_f32', t1, s_c2, t1))
    a(valu('v_exp_f32', t1, t1))
    a(valu('v_add_f32', t1, 1.0, t1))
    a(valu('v_rcp_f32', t1, t1))
    a(valu('v_mul_f32', x, x, t1))

def build():
    s = []; a = s.append
    NS = 4
    a(sload(S(4, 2), ARG_W1)); a(sload(S(6, 2), ARG_WS)); a(sload(S(24, 2), ARG_B1))
    a(raw("s_cmp_ge_u32 s2, 256")); a(raw("s_cbranch_scc1 L_k2_end", 'branch'))
    a(raw("s_and_b32 s20, s2, 7", writes=[S(20)])); a(raw("s_lshr_b32 s21, s2, 3", writes=[S(21)]))
    a(raw("s_lshr_b32 s22, s21, 3", writes=[S(22)])); a(raw("s_lshl_b32 s22, s22, 3", writes=[S(22)]))
    a(raw("s_add_u32 s22, s22, s20", writes=[S(22)]))
    a(raw("s_and_b32 s21, s21, 7", writes=[S(21)]))
    a(raw("s_cmp_ge_u32 s22, 28")); a(raw("s_cbranch_scc1 L_k2_end", 'branch'))
    a(valu('v_lshrrev_b32', V(1), 6, V(0)))
    a(readfirstlane(S(23), V(1)))
    l = V(0)
    a(valu('v_and_b32', l, 63, l))
    a(waitcnt(lgkm=0))
    s.extend(make_srd(S(8, 4), S(4, 2), 2048*1792*2))
    s.extend(make_srd(S(12, 4), S(6, 2), WS_END))
    s.extend(make_srd(S(16, 4), S(24, 2), 1792*2))
    TA = [V(8 + t) for t in range(4)]
    DW = [V(12 + t) for t in range(4)]; DH = [V(16 + t) for t in range(4)]
    a(raw("s_lshl_b32 s26, s23, 15", writes=[S(26)]))
    a(valu('v_mov_b32', V(20), S(26)))
    tr_addr_128(a, l, TA, V(20))
    dma_off_128(a, l, DW, 3584, s_tmp=S(27))
    dma_off_128(a, l, DH, 1024, s_tmp=S(27))
    a(raw("s_lshl_b32 s28, s23, 9", writes=[S(28)]))
    a(raw("s_mul_i32 s29, s28, 3584", writes=[S(29)]))
    a(raw("s_lshl_b32 s30, s22, 7", writes=[S(30)]))
    a(raw("s_add_u32 s29, s29, s30", writes=[S(29)]))
    a(raw("s_lshl_b32 s30, s28, 10", writes=[S(30)]))
    a(raw("s_lshl_b32 s31, s21, 7", writes=[S(31)]))
    a(raw("s_add_u32 s30, s30, s31", writes=[S(30)]))
    a(raw(f"s_add_u32 s30, s30, {WS_H}", writes=[S(30)]))
    SW, SH = S(29), S(30)
    a(valu('v_lshrrev_b32', V(4), 4, l)); a(valu('v_lshlrev_b32', V(4), 3, V(4)))
    a(raw("s_lshl_b32 s31, s22, 7", writes=[S(31)]))
    BI = V(24, 8)
    for ft in range(4): a(bload(2, BI[2*ft:2*ft+2], V(4), S(16, 4), S(31), off=32*ft))
    def acc(ft, dt): return V(64 + (ft*4+dt)*4, 4)
    def fa(p, t): return V(128 + 32*p + 4*t, 4)
    def fb(p, t): return V(128 + 32*p + 16 + 4*t, 4)
    def dma_step(n):
        o = []
        st = n % NS
        o.append(sop('s_add_u32', 'm0', S(26), st*8192))
        o.append(nop(0))
        for i in range(4): o.append(lds_dep(dma(DW[i], S(8, 4), SW, off=i*1024), need={f'R{st}'}, mark={f'L{st}'}))
        o.append(sop('s_add_u32', 'm0', S(26), st*8192 + 4096))
        o.append(sop('s_add_u32', SW, SW, 32*3584))
        for i in range(4): o.append(lds_dep(dma(DH[i], S(12, 4), SH, off=i*1024), need={f'R{st}'}, mark={f'L{st}'}))
        o.append(sop('s_add_u32', SH, SH, 32*1024))
        return o
    def reads(n):
        o = []
        st = n % NS; p = n & 1
        for t in range(4):
            for u in range(2): o.append(lds_dep(ds_read_tr(fa(p, t)[2*u:2*u+2], TA[t], st*8192 + u*2048), need={f'L{st}'}, mark={f'R{st}'}))
        for t in range(4):
            for u in range(2): o.append(lds_dep(ds_read_tr(fb(p, t)[2*u:2*u+2], TA[t], st*8192 + 4096 + u*2048), need={f'L{st}'}, mark={f'R{st}'}))
        return o
    for r in range(64): a(valu('v_mov_b32', V(64 + r), 0))
    NK = 16
    for n in range(3): s.extend(dma_step(n))
    s.extend(reads(0))
    for n in range(NK):
        rd = []
        if n + 1 < NK:
            rd = reads(n + 1)
        dm = dma_step(n + 3) if n + 3 < NK else []
        mf = [mfma16(acc(ft, dt), fa(n & 1, ft), fb(n & 1, dt), acc(ft, dt)) for ft in range(4) for dt in range(4)]
        fill = rd + dm
        per = (len(fill) + 15) // 16
        for k, m in enumerate(mf):
            a(m)
            s.extend(fill[k*per:(k+1)*per])
    a(valu('v_lshlrev_b32', V(4), 4, l)); a(valu('v_add_u32', V(5), S(26), V(4)))
    for ft in range(4):
        for dt in range(4):
            a(ds_write(4, V(5), acc(ft, dt), off=(ft*4+dt)*1024))
    a(waitcnt(lgkm=0, vm=0)); a(barrier())
    a(raw("s_lshl_b32 s27, s23, 10", writes=[S(27)]))
    a(valu('v_add_u32', V(5), S(27), V(4)))
    a(valu('v_add_u32', V(6), 65536, V(5)))
    for ft in range(4):
        for w in range(4):
            addr = V(5) if w < 2 else V(6)
            a(ds_read_b128(V(128 + (ft*4+w)*4, 4), addr, (w & 1)*32768 + ft*4096))
    a(smov(S(40), 0.044715)); a(smov(S(41), -2.0*0.7978845608028654*LOG2E))
    OUT = V(32, 8)
    for ft in range(4):
        for r in range(4):
            x = V(64 + ft*4 + r)
            a(valu('v_add_f32', x, V(128 + (ft*4+0)*4 + r), V(128 + (ft*4+1)*4 + r)))
            a(valu('v_add_f32', V(40), V(128 + (ft*4+2)*4 + r), V(128 + (ft*4+3)*4 + r)))
            a(valu('v_add_f32', x, x, V(40)))
            b = BI[2*ft + (r >> 1)]
            if r & 1: a(valu('v_and_b32', V(41), 0xffff0000, b))
            else: a(valu('v_lshlrev_b32', V(41), 16, b))
            a(valu('v_add_f32', x, x, V(41)))
            gelu(a, x, V(42), V(43), S(40), S(41))
        a(valu('v_cvt_pk_bf16_f32', OUT[2*ft], V(64 + ft*4), V(64 + ft*4 + 1)))
        a(valu('v_cvt_pk_bf16_f32', OUT[2*ft+1], V(64 + ft*4 + 2), V(64 + ft*4 + 3)))
    a(raw("s_lshl_b32 s27, s21, 2", writes=[S(27)])); a(raw("s_add_u32 s27, s27, s23", writes=[S(27)]))
    a(raw("s_mul_i32 s27, s27, 56", writes=[S(27)])); a(raw("s_lshl_b32 s28, s22, 1", writes=[S(28)]))
    a(raw("s_add_u32 s27, s27, s28", writes=[S(27)])); a(raw("s_lshl_b32 s27, s27, 10", writes=[S(27)]))
    a(raw(f"s_add_u32 s27, s27, {WS_U}", writes=[S(27)]))
    a(bstore(4, OUT[0:4], V(4), S(12, 4), S(27)))
    a(bstore(4, OUT[4:8], V(4), S(12, 4), S(27), off=1024))
    a(waitcnt(vm=0))
    s, _, _ = auto_waits(s)
    s = fix_hazards(s, "k2")
    s.append(label("L_k2_end"))
    return emit(s)
if __name__ == "__main__":
    t = build(); print(len(t.splitlines()))
```

```python
from k_common import *

NST = 3
KBASE = 0; VBASE = NST * 16384; XBASE = 98304
SRD_K = S(8, 4); SRD_V = S(12, 4); SRD_W = S(16, 4); SRD_WQ = S(28, 4); SRD_WO = S(32, 4)
S_TILE = S(20); S_WOFF = S(21); S_WAVE = S(24); S_G = S(25); S_QB = S(26)
QSCALE = 1.4426950408889634 * 128 ** -0.5

class Opt:
    dma = True; barrier = True
    dma_pos = [20, 25, 30, 34, 88, 93, 98, 102]
    minfill = 8; maxfill = 8; early = 1.5
    sm_span = 34.0; sm_rel = 4; p_lead = 2; k_span = 1.0; k_lead = 6; bar_lead = 5; v_even = 0
    timing = False
    def __init__(self, **kw): self.__dict__.update(kw)

def O(dt, qt): return V(128 + (dt*4+qt)*4, 4)
def Q(i, qt): return A((i*4+qt)*4, 4)
def Kf(n): return A(64 + 4*n, 4)
def Vf(dt): return A(96 + 4*dt, 4)
Sb = [V(32, 16), V(48, 16)]
def Sx(c, t, q2): return Sb[c][(q2*2+t)*4:(q2*2+t)*4+4]
NM = [V(64 + 4*i, 4) for i in range(4)]
LA = [V(80 + 4*i, 4) for i in range(4)]
Pb = [V(96, 8), V(104, 8)]
ONES = V(112, 4)
KA = [V(116 + i) for i in range(4)]
VA = [V(120 + i) for i in range(8)]
DK = [V(8 + i) for i in range(4)]
DV = [V(12), V(13)]

class Attn:
    def __init__(self, opt): self.o = opt
    def qk_slot(self, j, kh, c):
        out = []
        for q2 in range(2):
            for t in range(2):
                for i in range(4):
                    qt = 2*c + q2; sx = Sx(c, t, q2)
                    m = mfma16(sx, Kf(t*4+i), Q(i, qt), NM[qt] if i == 0 else sx)
                    tag(m, wt=('S', j, kh, c), rt=[(Kf(t*4+i), ('K', j, kh))] + ([(sx, ('S', j, kh, c))] if i else []))
                    out.append(m)
        return out
    def pv_slot(self, j, kh, c):
        out = []
        for q2 in range(2):
            p = Pb[c][4*q2:4*q2+4]; qt = 2*c + q2
            for dt in range(8):
                m = mfma16(O(dt, qt), Vf(dt), p, O(dt, qt))
                tag(m, rt=[(Vf(dt), ('V', j, kh)), (p, ('P', j, kh, c))]); out.append(m)
            m = mfma16(LA[qt], ONES, p, LA[qt]); tag(m, rt=[(p, ('P', j, kh, c))]); out.append(m)
        return out
    def sm_list(self, j, kh, c):
        regs = []
        for q2 in range(2):
            for t in range(2):
                for r in range(4): regs.append((Sx(c, t, q2)[r], Pb[c][4*q2 + 2*t + (r >> 1)]))
        ops = []
        for n, (s, p) in enumerate(regs):
            ops.append((n, tag(valu('v_exp_f32', s, s), wt=('E', j, kh, c), rt=[(s, ('S', j, kh, c))])))
            if n & 1:
                sp = regs[n-1][0]
                ops.append((n + 1.04, tag(valu('v_cvt_pk_bf16_f32', p, sp, s), wt=('P', j, kh, c), rt=[(s, ('E', j, kh, c)), (sp, ('E', j, kh, c))])))
        return [i for (t, i) in sorted(ops, key=lambda x: x[0])]
    def k_reads(self, j, kh):
        st = j % NST
        return [tag(ds_read_b128(Kf(n), KA[n & 3], KBASE + st*16384 + kh*8192 + (n >> 2)*4096), wt=('K', j, kh)) for n in range(8)]
    def v_reads(self, j, kh):
        st = j % NST
        return [tag(ds_read_tr(Vf(dt)[2*u:2*u+2], VA[dt], st*16384 + kh*8192 + u*4096), wt=('V', j, kh)) for dt in range(8) for u in range(2)]
    def dma_ops(self, st, pos):
        ops = []
        for n in range(8):
            t = pos[n]
            if n == 0: ops.append((t - 1.0, sop('s_add_u32', 'm0', S_WOFF, KBASE + st*16384)))
            if n == 4: ops.append((t - 1.0, sop('s_add_u32', 'm0', S_WOFF, VBASE + st*16384)))
            if n < 4: ops.append((t, dma(DK[n], SRD_K, S_TILE, off=n*1024)))
            else: ops.append((t, dma(DV[n & 1], SRD_V, S_TILE, off=(n-4)*1024)))
        ops.append((pos[7] + 0.3, sop('s_add_u32', S_TILE, S_TILE, 16384)))
        return ops
    def period(self, j, first=False, last_drain=False, dma=True, vm_end=8):
        o = self.o
        hp, hc = not first, not last_drain
        slots = [self.pv_slot(j-1, 1, 0) if hp else None, self.qk_slot(j, 0, 0) if hc else None,
                 self.pv_slot(j-1, 1, 1) if hp else None, self.qk_slot(j, 0, 1) if hc else None,
                 self.pv_slot(j, 0, 0) if hc else None, self.qk_slot(j, 1, 0) if hc else None,
                 self.pv_slot(j, 0, 1) if hc else None, self.qk_slot(j, 1, 1) if hc else None]
        pvlen = 18; qklen = 16
        lens = [pvlen, qklen]*4
        starts = [sum(lens[:s]) for s in range(9)]
        T = starts[8]
        mf = []
        for s in range(8): mf += slots[s] if slots[s] is not None else [None]*lens[s]
        ops = []
        def sm_stream(jj, kh, c, tq, tpv):
            raw_ops = self.sm_list(jj, kh, c); n = len(raw_ops); res = []
            pv = self.pv_slot(jj, kh, c)
            for idx, ins in enumerate(raw_ops):
                t = tq + o.sm_span * idx / n; dl = 1e9
                if ins.op == 'v_cvt_pk_bf16_f32':
                    preg = list(ins.writes)[0]
                    dl = tpv + min(q for q, m in enumerate(pv) if preg in m.reads) - o.p_lead
                res.append([t, dl, ins])
            for idx in range(n - 2, -1, -1): res[idx][1] = min(res[idx][1], res[idx+1][1])
            return [(t, tq, dl, ins) for (t, dl, ins) in res]
        allsm = []; rel = o.sm_rel
        if hp:
            allsm += sm_stream(j-1, 1, 0, starts[6] + rel - T, starts[8] - T)
            allsm += sm_stream(j-1, 1, 1, starts[8] + rel - T, starts[2])
        if hc:
            allsm += sm_stream(j, 0, 0, starts[2] + rel, starts[4])
            allsm += sm_stream(j, 0, 1, starts[4] + rel, starts[6])
            allsm += sm_stream(j, 1, 0, starts[6] + rel, starts[8])
            allsm += sm_stream(j, 1, 1, starts[8] + rel, T + starts[2])
        for (t, r, dl, ins) in allsm:
            if 0 <= t < T: ops.append(Op(ins, t, release=r, deadline=min(dl, T - 1), stream='sm'))
        if hc:
            for (kh, ks_slot, vs_slot) in ((0, 0, 2), (1, 4, 6)):
                qk = self.qk_slot(j, kh, 0)
                for n, ins in enumerate(self.k_reads(j, kh)):
                    fu = min(q for q, m in enumerate(qk) if ins.writes & m.reads)
                    t = starts[ks_slot] + n * pvlen * o.k_span / 8
                    ops.append(Op(ins, t, release=starts[ks_slot] - 1, deadline=starts[ks_slot+1] + fu - o.k_lead, stream='k'))
                pv = self.pv_slot(j, kh, 0); pvo = self.pv_slot(j, kh, 1)
                info = []
                for ins in self.v_reads(j, kh):
                    lu = max(q for q, m in enumerate(pvo) if ins.writes & m.reads)
                    fu = min(q for q, m in enumerate(pv) if ins.writes & m.reads)
                    dl = starts[vs_slot+2] + fu - o.k_lead
                    if kh == 1: dl = min(dl, T - 1 - o.bar_lead)
                    info.append((starts[vs_slot] + lu + 1, dl, ins))
                info.sort(key=lambda x: x[0])
                w0 = info[0][0]; w1 = min(x[1] for x in info)
                for n, (r, dl, ins) in enumerate(info):
                    ops.append(Op(ins, max(r, w0 + (w1 - w0) * n / len(info)), release=r, deadline=dl, stream='v'))
        if dma and hc:
            for (t, ins) in self.dma_ops((j + 2) % NST, o.dma_pos): ops.append(Op(ins, t, release=0, stream='dma'))
        seq, fills = list_schedule(mf, ops, o.minfill, o.maxfill, ahead=o.early)
        self.fills = fills
        if hc:
            seq.append(waitcnt(vm=vm_end, lgkm=0))
            if o.barrier: seq.append(barrier())
        return seq

def addr_tr256(a, l, dst8, base, gmul, t=(V(1), V(2), V(3), V(4), V(5))):
    G, r, f, rowb, c = t
    a(valu('v_lshrrev_b32', G, 4, l)); a(valu('v_bfe_u32', r, l, 2, 2))
    a(valu('v_and_b32', f, 1, G)); a(valu('v_lshl_add_u32', f, f, 2, r)); a(valu('v_lshlrev_b32', f, 1, f))
    a(valu('v_mul_u32_u24', rowb, gmul, G)); a(valu('v_add_u32', rowb, rowb, r)); a(valu('v_lshlrev_b32', rowb, 8, rowb))
    a(valu('v_and_b32', c, 1, l)); a(valu('v_lshl_add_u32', rowb, c, 3, rowb))
    a(valu('v_add_u32', rowb, base, rowb))
    a(valu('v_bfe_u32', c, l, 1, 1))
    for mt in range(8):
        a(valu('v_add_u32', G, 2*mt, c)); a(valu('v_xor_b32', G, G, f)); a(valu('v_lshl_add_u32', dst8[mt], G, 4, rowb))

def dma_off_256(a, l, dst4, stride, mode, s_tmp, t=(V(1), V(2), V(3))):
    ri, ph, x = t
    a(valu('v_lshrrev_b32', ri, 4, l)); a(valu('v_and_b32', ph, 15, l))
    a(smov(s_tmp, stride))
    for n in range(4):
        hi = ((n >> 1) & 1) if mode == 'q' else (n & 1)
        a(valu('v_add_u32', x, 4*hi, ri)); a(valu('v_lshlrev_b32', x, 1, x)); a(valu('v_xor_b32', x, x, ph))
        a(valu('v_lshlrev_b32', x, 4, x))
        a(valu('v_mul_lo_u32', dst4[n], ri, s_tmp)); a(valu('v_add_u32', dst4[n], dst4[n], x))
        if n: a(valu('v_add_u32', dst4[n], n*(4*stride - 1024), dst4[n]))

def proj_gemm(a, s, TA, DW, srd, SOFF, stride, S_RING, bread, uoff, name, pre_issued=0, after_last_reads=None):
    NS = 3; NK = 16
    def fa(p, mt): return A(64 + 32*p + 4*mt, 4)
    def fb(p, qt): return A(16*p + 4*qt, 4)
    def dma_step(n):
        o = []; st = n % NS
        for h in range(2):
            o.append(sop('s_add_u32', 'm0', S_RING, st*8192 + h*4096)); o.append(nop(0))
            for i in range(4):
                o.append(lds_dep(dma(DW[i], srd, SOFF, off=i*1024), need={f'{name}R{st}'}, mark={f'{name}L{st}'}))
            o.append(sop('s_add_u32', SOFF, SOFF, 16*stride))
        return o
    def reads(n):
        o = []; st = n % NS; p = n & 1
        for qt in range(4): o.append(bread(n, qt, fb(p, qt)))
        for mt in range(8):
            for u in range(2):
                o.append(lds_dep(ds_read_tr(fa(p, mt)[2*u:2*u+2], TA[mt], st*8192 + u*uoff), need={f'{name}L{st}'}, mark={f'{name}R{st}'}))
        return o
    for n in range(pre_issued, 3): s.extend(dma_step(n))
    s.extend(reads(0))
    for n in range(NK):
        rd = reads(n + 1) if n + 1 < NK else []
        dm = dma_step(n + 3) if n + 3 < NK else []
        mf = [mfma16(O(mt, qt), fa(n & 1, mt), fb(n & 1, qt), O(mt, qt) if n else 0) for mt in range(8) for qt in range(4)]
        if n == NK - 1 and after_last_reads is not None: s.extend(after_last_reads)
        gaps = [[] for _ in range(32)]
        for k, ins in enumerate(rd): gaps[k // 2].append(ins)
        g = 12
        for ins in dm:
            gaps[g].append(ins)
            if ins.kind == 'dma': g = min(31, g + 2)
        for k, m in enumerate(mf):
            a(m); s.extend(gaps[k])
    return dma_step

def build(opt=None):
    o = opt or Opt()
    at = Attn(o)
    s = []; a = s.append
    l = V(0)
    a(sload(S(4, 2), ARG_K)); a(sload(S(6, 2), ARG_V)); a(sload(S(22, 2), ARG_WS))
    a(sload(S(36, 2), ARG_WQ)); a(sload(S(38, 2), ARG_WO))
    a(raw("s_cmp_ge_u32 s2, 256")); a(raw("s_cbranch_scc1 L_k3_end", 'branch'))
    a(valu('v_lshrrev_b32', V(1), 6, V(0)))
    a(readfirstlane(S_WAVE, V(1)))
    a(valu('v_and_b32', l, 63, l))
    a(waitcnt(lgkm=0))
    a(raw("s_and_b32 s25, s2, 7", writes=[S_G])); a(raw("s_lshr_b32 s26, s2, 3", writes=[S_QB]))
    a(raw("s_lshl_b32 s27, s25, 19", writes=[S(27)]))
    a(raw("s_sub_u32 s40, 0x400000, s27", writes=[S(40)]))
    s.extend(make_srd(SRD_K, S(4, 2), S(40), add=S(27))); s.extend(make_srd(SRD_V, S(6, 2), S(40), add=S(27)))
    s.extend(make_srd(SRD_W, S(22, 2), WS_END))
    s.extend(make_srd(SRD_WQ, S(36, 2), 512*4096*2)); s.extend(make_srd(SRD_WO, S(38, 2), 4096*512*2))
    a(raw("s_lshl_b32 s21, s24, 12", writes=[S_WOFF]))
    S_RING = S(41); S_SO = S(42); S_T = S(43)
    a(raw("s_mul_i32 s41, s24, 24576", writes=[S_RING]))
    a(valu('v_lshlrev_b32', V(7), 4, l))
    a(raw("s_lshl_b32 s42, s26, 6", writes=[S_SO])); a(raw("s_lshl_b32 s43, s24, 4", writes=[S_T]))
    a(raw("s_add_u32 s42, s42, s43", writes=[S_SO])); a(raw("s_lshl_b32 s42, s42, 10", writes=[S_SO]))
    a(raw("s_lshl_b32 s43, s24, 14", writes=[S_T])); a(raw(f"s_add_u32 s43, s43, {XBASE}", writes=[S_T]))
    for n in range(16):
        if n % 4 == 0:
            a(smov('m0', S_T))
        a(valu('v_xor_b32', V(14 + (n & 3)), n << 4, V(7)))
        a(lds_dep(dma(V(14 + (n & 3)), SRD_W, S_SO, off=(n & 3)*1024), mark={'XN'}))
        if n % 4 == 3:
            a(sop('s_add_u32', S_SO, S_SO, 4096)); a(sop('s_add_u32', S_T, S_T, 4096))
    DW = [V(14 + i) for i in range(4)]; TA = [V(32 + i) for i in range(8)]; XA = [V(40 + i) for i in range(4)]
    dma_off_256(a, l, [V(18 + i) for i in range(4)], 8192, 'q', S_T)
    DW = [V(18 + i) for i in range(4)]
    a(raw("s_lshl_b32 s42, s25, 2", writes=[S_SO])); a(raw("s_add_u32 s42, s42, s24", writes=[S_SO]))
    a(raw("s_lshl_b32 s42, s42, 8", writes=[S_SO]))
    a(valu('v_mov_b32', V(6), S_RING))
    addr_tr256(a, l, TA, V(6), 8)
    a(valu('v_and_b32', V(1), 15, l)); a(valu('v_lshrrev_b32', V(2), 4, l))
    a(valu('v_lshlrev_b32', V(3), 10, V(1))); a(valu('v_add_u32', V(3), XBASE, V(3)))
    for k in range(4):
        a(valu('v_add_u32', V(4), 4*k, V(2))); a(valu('v_xor_b32', V(4), V(4), V(1)))
        a(valu('v_lshl_add_u32', XA[k], V(4), 4, V(3)))
    a(valu('v_lshrrev_b32', V(2), 4, l)); a(valu('v_and_b32', V(3), 15, l))
    for i in range(4):
        a(valu('v_add_u32', V(4), 4*i, V(2))); a(valu('v_xor_b32', V(4), V(4), V(3)))
        a(valu('v_lshlrev_b32', V(4), 4, V(4))); a(valu('v_lshl_add_u32', KA[i], V(3), 8, V(4)))
    a(valu('v_lshrrev_b32', V(4), 2, V(3))); a(valu('v_and_b32', V(5), 3, l))
    a(valu('v_lshl_add_u32', V(7), V(2), 2, V(4)))
    a(valu('v_and_b32', V(1), 7, V(7))); a(valu('v_lshlrev_b32', V(1), 1, V(1)))
    a(valu('v_lshlrev_b32', V(7), 8, V(7)))
    a(valu('v_and_b32', V(6), 1, V(5))); a(valu('v_lshl_add_u32', V(7), V(6), 3, V(7)))
    a(valu('v_add_u32', V(7), VBASE, V(7)))
    a(valu('v_lshrrev_b32', V(6), 1, V(5)))
    for dt in range(8):
        a(valu('v_add_u32', V(5), 2*dt, V(6))); a(valu('v_xor_b32', V(5), V(5), V(1)))
        a(valu('v_lshl_add_u32', VA[dt], V(5), 4, V(7)))
    a(valu('v_lshlrev_b32', V(5), 8, V(2))); a(valu('v_add_u32', V(5), S_WOFF, V(5)))
    for n in range(4):
        a(valu('v_add_u32', V(6), 4*n, V(2))); a(valu('v_xor_b32', V(6), V(6), V(3)))
        a(valu('v_lshl_add_u32', DK[n], V(6), 4, V(5)))
    for n in range(2):
        a(valu('v_add_u32', V(6), 4*n, V(2))); a(valu('v_lshlrev_b32', V(6), 1, V(6)))
        a(valu('v_xor_b32', V(6), V(6), V(3))); a(valu('v_lshl_add_u32', DV[n], V(6), 4, V(5)))
    def xread(n, qt, dst):
        return ds_read_b128(dst, XA[n & 3], (n >> 2)*256 + qt*16384)
    pre = []
    kv_issue = [barrier(), smov(S_TILE, 0)]
    for t in range(2): kv_issue += [ins for (tt, ins) in at.dma_ops(t, list(range(8)))]
    tmp = []
    class _A: pass
    def emit_pre():
        NS = 3
        for n in range(3):
            st = n % NS
            for h in range(2):
                a(sop('s_add_u32', 'm0', S_RING, st*8192 + h*4096)); a(nop(0))
                for i in range(4):
                    a(lds_dep(dma(DW[i], SRD_WQ, S_SO, off=i*1024), need={f'qR{st}'}, mark={f'qL{st}'}))
                a(sop('s_add_u32', S_SO, S_SO, 16*8192))
    emit_pre()
    a(waitcnt(vm=24)); a(barrier())
    proj_gemm(a, s, TA, DW, SRD_WQ, S_SO, 8192, S_RING, xread, 1024, 'q', pre_issued=3,
              after_last_reads=[waitcnt(lgkm=0)] + kv_issue)
    a(smov(S(44), QSCALE))
    for i in range(4):
        for qt in range(4):
            x, y = O(2*i, qt), O(2*i+1, qt)
            for r in range(4):
                a(valu('v_mul_f32', x[r], S(44), x[r])); a(valu('v_mul_f32', y[r], S(44), y[r]))
            X0, X1, Y0, Y1 = V(48), V(49), V(50), V(51)
            a(valu('v_cvt_pk_bf16_f32', X0, x[0], x[1])); a(valu('v_cvt_pk_bf16_f32', X1, x[2], x[3]))
            a(valu('v_cvt_pk_bf16_f32', Y0, y[0], y[1])); a(valu('v_cvt_pk_bf16_f32', Y1, y[2], y[3]))
            a(permlane32_swap(X0, Y0)); a(permlane32_swap(X1, Y1))
            a(permlane16_swap(X0, Y0)); a(permlane16_swap(X1, Y1))
            q = Q(i, qt)
            a(valu('v_accvgpr_write_b32', q[0], X0)); a(valu('v_accvgpr_write_b32', q[1], X1))
            a(valu('v_accvgpr_write_b32', q[2], Y0)); a(valu('v_accvgpr_write_b32', q[3], Y1))
    for r in range(128): a(valu('v_mov_b32', V(128 + r), 0))
    for qt in range(4):
        for r in range(4): a(valu('v_mov_b32', LA[qt][r], 0))
    for r in range(4): a(valu('v_mov_b32', ONES[r], 0x3F803F80))
    a(waitcnt(vm=8)); a(barrier())
    s.extend(at.k_reads(0, 0))
    for c in range(2):
        for q2 in range(2):
            for t in range(2):
                for i in range(4):
                    a(mfma16(Sx(c, t, q2), Kf(t*4+i), Q(i, 2*c+q2), 0 if i == 0 else Sx(c, t, q2)))
    for qt in range(4):
        c, q2 = qt >> 1, qt & 1
        s0, s1 = Sx(c, 0, q2), Sx(c, 1, q2)
        m = V(4); t = V(5)
        a(valu('v_max3_f32', m, s0[0], s0[1], s0[2])); a(valu('v_max3_f32', m, m, s0[3], s1[0]))
        a(valu('v_max3_f32', m, m, s1[1], s1[2])); a(valu('v_max_f32', m, m, s1[3]))
        a(valu('v_mov_b32', t, m)); a(permlane16_swap(m, t)); a(valu('v_max_f32', m, m, t))
        a(valu('v_mov_b32', t, m)); a(permlane32_swap(m, t)); a(valu('v_max_f32', m, m, t))
        for r in range(4): a(valu('v_sub_f32', NM[qt][r], 0, m))
    pro, _, _ = auto_waits(s)
    pro = fix_hazards(pro, "k3pro")
    out = list(pro)
    pers = {}
    for j in range(33):
        dm = j <= 29
        vm_end = 8 if j <= 29 else 0
        if j == 30: vm_end = 0
        p = at.period(j, first=(j == 0), last_drain=(j == 32), dma=dm, vm_end=vm_end)
        p, _, _ = auto_waits(p)
        pers[j] = p
    errs = validate_tags([i for j in range(33) for i in pers[j]])
    for e in errs[:10]: print("DATAFLOW", e, file=sys.stderr)
    for j in range(1, 25): assert [i.text for i in pers[j]] == [i.text for i in pers[j+3]], j
    if o.timing:
        out += [raw("s_memtime s[50:51]", 'smem', writes=[S(50, 2)]), raw("s_memrealtime s[54:55]", 'smem', writes=[S(54, 2)]), waitcnt(lgkm=0)]
    out += [comment("period 0")] + fix_hazards(pers[0], "p0")
    out += [smov(S(45), 9), label("L_k3_loop")]
    body = []
    for j in (1, 2, 3): body += [comment(f"period stage {j % NST}")] + pers[j]
    body += [raw("s_sub_u32 s45, s45, 1", writes=[S(45)]), raw("s_cmp_lg_u32 s45, 0"), raw("s_cbranch_scc1 L_k3_loop", 'branch')]
    errs = check_hazards(body, loop=True, name="loop")
    for e in errs[:20]: print("HAZARD", e, file=sys.stderr)
    out += body
    tail = []
    for j in range(28, 32): tail += [comment(f"period {j}")] + pers[j]
    s = []; a = s.append
    DO = [V(14 + i) for i in range(4)]
    TO = [V(116 + 0), V(117), V(118), V(119), V(120), V(121), V(122), V(123)]
    dma_off_256(a, l, DO, 1024, 'o', S_T)
    a(raw("s_lshl_b32 s42, s25, 19", writes=[S_SO])); a(raw("s_lshl_b32 s43, s24, 8", writes=[S_T]))
    a(raw("s_add_u32 s42, s42, s43", writes=[S_SO]))
    for n in range(3):
        st = n
        for h in range(2):
            a(sop('s_add_u32', 'm0', S_RING, st*8192 + h*4096)); a(nop(0))
            for i in range(4):
                a(lds_dep(dma(DO[i], SRD_WO, S_SO, off=i*1024), need={f'oR{st}'}, mark={f'oL{st}'}))
            a(sop('s_add_u32', S_SO, S_SO, 16*1024))
    pre_epi = s
    drain = pers[32]
    s = []; a = s.append
    a(valu('v_mov_b32', V(6), S_RING))
    addr_tr256(a, l, TO, V(6), 4)
    LI = [V(4 + 0), V(5), V(6), V(7)]
    LI = [V(24 + i) for i in range(4)]
    for qt in range(4): a(valu('v_rcp_f32', LI[qt], LA[qt][0]))
    a(valu('v_lshlrev_b32', V(7), 4, l))
    a(raw("s_lshl_b32 s43, s24, 14", writes=[S_T])); a(raw(f"s_add_u32 s43, s43, {XBASE}", writes=[S_T]))
    a(valu('v_add_u32', V(22), S_T, V(7)))
    a(valu('v_add_u32', V(23), XBASE, V(7)))
    for kk in range(4):
        for qt in range(4):
            x, y = O(2*kk, qt), O(2*kk+1, qt)
            for r in range(4):
                a(valu('v_mul_f32', x[r], x[r], LI[qt])); a(valu('v_mul_f32', y[r], y[r], LI[qt]))
            F = V(48 + 4*((kk*4+qt) & 3), 4)
            a(valu('v_cvt_pk_bf16_f32', F[0], x[0], x[1])); a(valu('v_cvt_pk_bf16_f32', F[1], x[2], x[3]))
            a(valu('v_cvt_pk_bf16_f32', F[2], y[0], y[1])); a(valu('v_cvt_pk_bf16_f32', F[3], y[2], y[3]))
            a(ds_write(4, V(22), F, off=(kk*4+qt)*1024))
    a(waitcnt(lgkm=0)); a(barrier())
    def oread(n, qt, dst): return ds_read_b128(dst, V(23), (n*4+qt)*1024)
    proj_gemm(a, s, TO, DO, SRD_WO, S_SO, 1024, S_RING, oread, 4096, 'o', pre_issued=3)
    a(raw("s_lshl_b32 s42, s25, 5", writes=[S_SO])); a(raw("s_add_u32 s42, s42, s26", writes=[S_SO]))
    a(raw("s_lshl_b32 s42, s42, 2", writes=[S_SO])); a(raw("s_add_u32 s42, s42, s24", writes=[S_SO]))
    a(raw("s_lshl_b32 s42, s42, 14", writes=[S_SO])); a(raw(f"s_add_u32 s42, s42, {WS_PART}", writes=[S_SO]))
    for p in range(4):
        for qt in range(4):
            x, y = O(2*p, qt), O(2*p+1, qt)
            F = V(48 + 4*((p*4+qt) & 3), 4)
            a(valu('v_cvt_pk_bf16_f32', F[0], x[0], x[1])); a(valu('v_cvt_pk_bf16_f32', F[1], x[2], x[3]))
            a(valu('v_cvt_pk_bf16_f32', F[2], y[0], y[1])); a(valu('v_cvt_pk_bf16_f32', F[3], y[2], y[3]))
            a(bstore(4, F, V(7), SRD_W, S_SO, off=qt*1024))
        a(sop('s_add_u32', S_SO, S_SO, 4096))
    a(waitcnt(vm=0))
    epi = tail + pre_epi + drain
    tm = []
    if o.timing:
        tm = [raw("s_memtime s[52:53]", 'smem', writes=[S(52, 2)]), raw("s_memrealtime s[56:57]", 'smem', writes=[S(56, 2)]), waitcnt(lgkm=0),
              raw("s_sub_u32 s50, s52, s50"), raw("s_sub_u32 s51, s56, s54"),
              valu('v_mov_b32', V(2), S(50)), valu('v_mov_b32', V(3), S(51)),
              raw("s_lshl_b32 s46, s2, 2"), raw("s_add_u32 s46, s46, s24"), raw("s_lshl_b32 s46, s46, 3"),
              raw(f"s_add_u32 s46, s46, {6 << 20}", writes=[S(46)]), valu('v_mov_b32', V(1), 0), nop(3),
              I("buffer_store_dwordx2 v[2:3], v1, s[16:19], s46 offen", 'vstore', reads=[V(2,2), V(1), SRD_W, S(46)], width=2, data=V(2,2))]
    rest, _, _ = auto_waits(pre_epi + drain + tm + [nop(15)] + s)
    out += fix_hazards(tail + rest, "tail")
    out.append(label("L_k3_end"))
    return emit(out)
if __name__ == "__main__":
    t = build(); print(len(t.splitlines()))
```

```python
from k_common import *
from k2_gemm1 import tr_addr_128, dma_off_128, LOG2E

def build():
    s = []; a = s.append
    NS = 4; NK = 14
    a(sload(S(4, 2), ARG_W2)); a(sload(S(6, 2), ARG_WS)); a(sload(S(24, 2), ARG_B2))
    a(sload(S(32, 2), ARG_X)); a(sload(S(34, 2), ARG_OUT))
    a(raw("s_cmp_ge_u32 s2, 256")); a(raw("s_cbranch_scc1 L_k4_end", 'branch'))
    a(raw("s_and_b32 s20, s2, 7", writes=[S(20)])); a(raw("s_lshr_b32 s21, s2, 3", writes=[S(21)]))
    a(raw("s_lshr_b32 s22, s21, 3", writes=[S(22)])); a(raw("s_lshl_b32 s22, s22, 3", writes=[S(22)]))
    a(raw("s_add_u32 s22, s22, s20", writes=[S(22)]))
    a(raw("s_and_b32 s21, s21, 7", writes=[S(21)]))
    a(valu('v_lshrrev_b32', V(1), 6, V(0)))
    a(readfirstlane(S(23), V(1)))
    l = V(0)
    a(valu('v_and_b32', l, 63, l))
    a(waitcnt(lgkm=0))
    s.extend(make_srd(S(8, 4), S(4, 2), 1792*2048*2))
    s.extend(make_srd(S(12, 4), S(6, 2), WS_END))
    s.extend(make_srd(S(16, 4), S(24, 2), 2048*2))
    s.extend(make_srd(S(36, 4), S(32, 2), 2 << 20))
    s.extend(make_srd(S(40, 4), S(34, 2), 2 << 20))
    TA = [V(8 + t) for t in range(4)]
    DW = [V(12 + t) for t in range(4)]
    a(raw("s_lshl_b32 s26, s23, 14", writes=[S(26)]))
    a(valu('v_mov_b32', V(20), S(26)))
    tr_addr_128(a, l, TA, V(20))
    dma_off_128(a, l, DW, 4096, s_tmp=S(27))
    a(raw("s_mul_i32 s29, s23, 448*4096", writes=[S(29)]))
    a(raw("s_lshl_b32 s30, s22, 7", writes=[S(30)]))
    a(raw("s_add_u32 s29, s29, s30", writes=[S(29)]))
    a(raw("s_mul_i32 s30, s21, 4*56", writes=[S(30)])); a(raw("s_mul_i32 s31, s23, 14", writes=[S(31)]))
    a(raw("s_add_u32 s30, s30, s31", writes=[S(30)])); a(raw("s_lshl_b32 s30, s30, 10", writes=[S(30)]))
    a(raw(f"s_add_u32 s30, s30, {WS_U}", writes=[S(30)]))
    SW, SU = S(29), S(30)
    UL = [V(16 + t) for t in range(4)]
    a(valu('v_lshlrev_b32', UL[0], 4, l))
    for t in range(1, 4): a(valu('v_add_u32', UL[t], 56*1024, UL[t-1]))
    def acc(mt, st): return V(64 + (mt*4+st)*4, 4)
    def fa(n, t): return V(128 + 16*(n % 4) + 4*t, 4)
    def fb(p, t): return V(192 + 16*p + 4*t, 4)
    def dma_step(n):
        o = []
        st = n % NS
        o.append(sop('s_add_u32', 'm0', S(26), st*4096))
        o.append(nop(0))
        for i in range(4): o.append(lds_dep(dma(DW[i], S(8, 4), SW, off=i*1024), need={f'R{st}'}, mark={f'L{st}'}))
        o.append(sop('s_add_u32', SW, SW, 32*4096))
        for t in range(4): o.append(bload(4, fa(n, t), UL[t], S(12, 4), SU))
        o.append(sop('s_add_u32', SU, SU, 1024))
        return o
    def reads(n):
        o = []
        st = n % NS; p = n & 1
        for t in range(4):
            for u in range(2): o.append(lds_dep(ds_read_tr(fb(p, t)[2*u:2*u+2], TA[t], st*4096 + u*2048), need={f'L{st}'}, mark={f'R{st}'}))
        return o
    for n in range(3): s.extend(dma_step(n))
    a(raw("s_lshr_b32 s44, s21, 1", writes=[S(44)])); a(raw("s_lshl_b32 s45, s22, 2", writes=[S(45)]))
    a(raw("s_add_u32 s44, s44, s45", writes=[S(44)]))
    a(raw("s_lshl_b32 s44, s44, 2", writes=[S(44)]))
    a(raw("s_and_b32 s45, s21, 1", writes=[S(45)])); a(raw("s_lshl_b32 s45, s45, 1", writes=[S(45)]))
    a(raw("s_add_u32 s44, s44, s45", writes=[S(44)]))
    a(raw("s_lshl_b32 s44, s44, 2", writes=[S(44)])); a(raw("s_add_u32 s44, s44, s23", writes=[S(44)]))
    a(raw("s_lshl_b32 s44, s44, 10", writes=[S(44)])); a(raw(f"s_add_u32 s44, s44, {WS_PART}", writes=[S(44)]))
    PP = lambda g, j: A((g*2 + j)*4, 4)
    a(valu('v_and_b32', V(4), 15, l)); a(raw("s_lshl_b32 s45, s22, 6", writes=[S(45)]))
    a(raw("s_lshl_b32 s46, s23, 4", writes=[S(46)])); a(raw("s_add_u32 s45, s45, s46", writes=[S(45)]))
    a(valu('v_add_u32', V(5), S(45), V(4)))
    a(valu('v_lshlrev_b32', V(21), 10, V(5)))
    a(valu('v_lshrrev_b32', V(6), 4, l)); a(valu('v_lshl_add_u32', V(21), V(6), 3, V(21)))
    a(raw("s_lshl_b32 s46, s21, 7", writes=[S(46)]))
    a(valu('v_add_u32', V(21), S(46), V(21)))
    a(valu('v_lshlrev_b32', V(5), 1, V(5)))
    XR = V(24, 8)
    late = []
    for g in range(8):
        for j in range(2):
            late.append(bload(4, PP(g, j), UL[0], S(12, 4), S(44)))
            late.append(sop('s_add_u32', S(44), S(44), 4096 if j == 0 else (32*64*1024 - 4096)))
    for mt in range(4): late.append(bload(2, XR[2*mt:2*mt+2], V(21), S(36, 4), 0, off=32*mt))
    late.append(bload_ushort(V(22), V(5), S(16, 4)))
    for r in range(64): a(valu('v_mov_b32', V(64 + r), 0))
    s.extend(reads(0))
    for n in range(NK):
        rd = reads(n + 1) if n + 1 < NK else []
        dm = dma_step(n + 3) if n + 3 < NK else []
        if n == NK - 3: dm = late
        mf = [mfma16(acc(mt, st), fa(n, mt), fb(n & 1, st), acc(mt, st)) for mt in range(4) for st in range(4)]
        fill = rd + dm
        per = (len(fill) + 15) // 16
        for k, m in enumerate(mf):
            a(m)
            s.extend(fill[k*per:(k+1)*per])
    a(valu('v_lshlrev_b32', V(4), 4, l))
    a(raw("s_lshl_b32 s27, s23, 14", writes=[S(27)])); a(raw("s_add_u32 s27, s27, 65536", writes=[S(27)]))
    a(valu('v_add_u32', V(5), S(27), V(4)))
    for mt in range(4):
        for st in range(4):
            a(ds_write(4, V(5), acc(mt, st), off=(st*4+mt)*1024))
    a(waitcnt(lgkm=0)); a(barrier())
    a(raw("s_lshl_b32 s27, s23, 12", writes=[S(27)])); a(raw("s_add_u32 s27, s27, 65536", writes=[S(27)]))
    a(valu('v_add_u32', V(5), S(27), V(4)))
    for mt in range(4):
        for w in range(4):
            a(ds_read_b128(V(128 + (mt*4+w)*4, 4), V(5), w*16384 + mt*1024))
    a(valu('v_lshlrev_b32', V(22), 16, V(22)))
    a(smov(S(48), -LOG2E))
    for mt in range(4):
        j = mt >> 1; q = (mt & 1)*2
        for r in range(4):
            y = V(64 + mt*4 + r)
            a(valu('v_add_f32', y, V(128 + (mt*4+0)*4 + r), V(128 + (mt*4+1)*4 + r)))
            a(valu('v_add_f32', V(40), V(128 + (mt*4+2)*4 + r), V(128 + (mt*4+3)*4 + r)))
            a(valu('v_add_f32', y, y, V(40)))
            a(valu('v_add_f32', y, y, V(22)))
            a(valu('v_mul_f32', V(41), S(48), y))
            a(valu('v_exp_f32', V(41), V(41)))
            a(valu('v_add_f32', V(41), 1.0, V(41)))
            a(valu('v_rcp_f32', V(41), V(41)))
            a(valu('v_mul_f32', y, y, V(41)))
            sm = V(42)
            for g in range(8):
                src = PP(g, j)[q + (r >> 1)]
                a(valu('v_accvgpr_read_b32', V(43), src))
                if r & 1: a(valu('v_and_b32', V(43), 0xffff0000, V(43)))
                else: a(valu('v_lshlrev_b32', V(43), 16, V(43)))
                if g == 0: a(valu('v_mov_b32', sm, V(43)))
                else: a(valu('v_add_f32', sm, sm, V(43)))
            xs = XR[2*mt + (r >> 1)]
            if r & 1: a(valu('v_and_b32', V(43), 0xffff0000, xs))
            else: a(valu('v_lshlrev_b32', V(43), 16, xs))
            a(valu('v_fma_f32', y, sm, y, V(43)))
        o2 = V(44 + 2*(mt & 1), 2)
        a(valu('v_cvt_pk_bf16_f32', o2[0], V(64 + mt*4), V(64 + mt*4 + 1)))
        a(valu('v_cvt_pk_bf16_f32', o2[1], V(64 + mt*4 + 2), V(64 + mt*4 + 3)))
        a(bstore(2, o2, V(21), S(40, 4), 0, off=32*mt))
    a(waitcnt(vm=0))
    s, _, _ = auto_waits(s)
    s = fix_hazards(s, "k4")
    s.append(label("L_k4_end"))
    return emit(s)
if __name__ == "__main__":
    t = build(); print(len(t.splitlines()))
```

```python
import sys; sys.path.insert(0, 'work')
from asmgen import *

ARG_X, ARG_K, ARG_V, ARG_WQ, ARG_WO, ARG_BX, ARG_W1, ARG_B1, ARG_W2, ARG_B2, ARG_OUT, ARG_DBG, ARG_WS = [8*i for i in range(13)]
WS_XN = 0
WS_H = 2 << 20
WS_U = 4 << 20
WS_PART = 8 << 20
WS_END = 24 << 20

def sload(dst, off):
    return raw(f"s_load_dwordx2 {dst}, s[0:1], {off}", 'smem', writes=[dst])
def smov(d, x): return raw(f"s_mov_b32 {d}, {fmt(x)}", 'salu', reads=[x], writes=[d])
def sop(op, d, a, b):
    return I(f"{op} {d}, {fmt(a)}, {fmt(b)}", 'salu', reads=[a, b], writes=[d, 'scc'], op=op)
def make_srd(srd, ptr, nbytes, add=None):
    o = []
    if add is None:
        o += [smov(srd[0], ptr[0]), smov(srd[1], ptr[1])]
    else:
        o += [sop('s_add_u32', srd[0], ptr[0], add), I(f"s_addc_u32 {srd[1]}, {ptr[1]}, 0", 'salu', reads=[ptr[1], 'scc'], writes=[srd[1], 'scc'])]
    o += [smov(srd[2], nbytes), smov(srd[3], 0x20000)]
    return o
def readfirstlane(s, v):
    return I(f"v_readfirstlane_b32 {s}, {v}", 'valu', reads=[v], writes=[s], op='v_readfirstlane')
def dpp_add(d, a, ctrl):
    return I(f"v_add_f32_dpp {d}, {a}, {a} {ctrl} row_mask:0xf bank_mask:0xf", 'valu', reads=[a], writes=[d], op='v_add_f32_dpp')
def dpp_mov(d, a, ctrl):
    return I(f"v_mov_b32_dpp {d}, {a} {ctrl} row_mask:0xf bank_mask:0xf", 'valu', reads=[a], writes=[d], op='v_mov_b32_dpp')
def wave_sum(v, t):
    o = []
    for ctrl in ("quad_perm:[1,0,3,2]", "quad_perm:[2,3,0,1]", "row_half_mirror", "row_mirror"):
        o.append(dpp_add(v, v, ctrl))
    o += [valu('v_mov_b32', t, v), permlane16_swap(v, t), valu('v_add_f32', v, v, t)]
    o += [valu('v_mov_b32', t, v), permlane32_swap(v, t), valu('v_add_f32', v, v, t)]
    return o
def finish(seq, name):
    seq, _, _ = insert_waits(seq)
    return fix_hazards(seq, name)

def kernel_text(name, body_text, vgpr, accum, sgpr=96):
    return f""".globl {name}
.p2align 8
.type {name},@function
{name}:
{body_text}  s_endpgm
"""
def kernel_desc(name, vgpr, accum, sgpr=96):
    return f""".amdhsa_kernel {name}
  .amdhsa_next_free_vgpr {vgpr}
  .amdhsa_next_free_sgpr {sgpr}
  .amdhsa_accum_offset {accum}
  .amdhsa_group_segment_fixed_size 0
  .amdhsa_kernarg_size 104
  .amdhsa_user_sgpr_count 2
  .amdhsa_user_sgpr_kernarg_segment_ptr 1
  .amdhsa_system_sgpr_workgroup_id_x 1
.end_amdhsa_kernel
"""
```

```python
import sys; sys.path.insert(0, 'work')
from k_common import *
import k1_ln, k2_gemm1, k3_attn, k4_comb

HDR = open('recurrent_scan__gqa_block_cached__mixer_token_mlp__prompt.s.ref').read().split('; Override launch')[0]

def build(opt=None, which=(1, 2, 3, 4)):
    ks = {1: ('ln_kernel', k1_ln.build, (512, 256, 0), 32, 32),
          2: ('gemm1_kernel', k2_gemm1.build, (256, 256, 131072), 192, 192),
          3: ('attn_kernel', lambda: k3_attn.build(opt), (256, 256, 163840), 384, 256),
          4: ('comb_kernel', k4_comb.build, (256, 256, 131072), 288, 224)}
    txt = HDR
    for k in which:
        n, f, (g, b, lds), vg, ac = ks[k]
        txt += f"; @launch kernel={n} grid=({g},1,1) block=({b},1,1) lds={lds}\n"
    txt += '.amdgcn_target "amdgcn-amd-amdhsa--gfx950"\n.text\n'
    for k in which:
        n, f, _, vg, ac = ks[k]
        txt += kernel_text(n, f(), vg, ac)
    txt += '.section .rodata,"a"\n.p2align 6\n'
    for k in which:
        n, f, _, vg, ac = ks[k]
        txt += ".p2align 6\n" + kernel_desc(n, vg, ac)
    return txt
if __name__ == "__main__":
    out = sys.argv[1]
    opt = k3_attn.Opt()
    for kv in sys.argv[2:]:
        k, v = kv.split("="); setattr(opt, k, eval(v))
    open(out, "w").write(build(opt))
```

```python
import re

def R(prefix, lo, n=1):
    return [f"{prefix}{i}" for i in range(lo, lo + n)]

def rng(prefix, lo, n):
    return f"{prefix}{lo}" if n == 1 else f"{prefix}[{lo}:{lo+n-1}]"

class Reg:
    def __init__(self, kind, lo, n=1):
        self.kind, self.lo, self.n = kind, lo, n
    def __str__(self): return rng(self.kind, self.lo, self.n)
    def regs(self): return R(self.kind, self.lo, self.n)
    def __getitem__(self, i):
        if isinstance(i, slice):
            start = i.start or 0; stop = self.n if i.stop is None else i.stop
            assert 0 <= start < stop <= self.n, (start, stop, self.n)
            return Reg(self.kind, self.lo + start, stop - start)
        assert 0 <= i < self.n, (i, self.n)
        return Reg(self.kind, self.lo + i, 1)
def V(lo, n=1): return Reg('v', lo, n)
def A(lo, n=1): return Reg('a', lo, n)
def S(lo, n=1): return Reg('s', lo, n)

def regs_of(x):
    if isinstance(x, Reg): return x.regs()
    if isinstance(x, str) and x in ('vcc', 'm0', 'exec', 'scc'): return [x]
    return []

class I:
    def __init__(self, text, kind, reads=(), writes=(), **kw):
        self.text, self.kind = text, kind
        self.reads = set(); self.writes = set()
        for r in reads: self.reads.update(regs_of(r))
        for w in writes: self.writes.update(regs_of(w))
        self.__dict__.update(kw)
    def __repr__(self): return self.text

def fmt(x):
    if isinstance(x, float):
        import struct
        inl = {0.5:'0.5',-0.5:'-0.5',1.0:'1.0',-1.0:'-1.0',2.0:'2.0',-2.0:'-2.0',4.0:'4.0',-4.0:'-4.0',0.0:'0'}
        if x in inl: return inl[x]
        return hex(struct.unpack('<I', struct.pack('<f', x))[0])
    return str(x)

def mfma32(d, a, b, c):
    return I(f"v_mfma_f32_32x32x16_bf16 {d}, {a}, {b}, {fmt(c)}", 'mfma', reads=[a, b, c], writes=[d], passes=8, A=a, B=b, C=c, D=d)
def mfma16(d, a, b, c):
    return I(f"v_mfma_f32_16x16x32_bf16 {d}, {a}, {b}, {fmt(c)}", 'mfma', reads=[a, b, c], writes=[d], passes=4, A=a, B=b, C=c, D=d)
def valu(op, d, *src, mods="", extra_reads=(), extra_writes=(), dst_read=False):
    kind = 'valu'
    if op in ('v_exp_f32','v_rcp_f32','v_rsq_f32','v_log_f32','v_sqrt_f32','v_sin_f32','v_cos_f32'): kind = 'trans'
    rd = list(src) + list(extra_reads) + ([d] if dst_read else [])
    t = f"{op} {d}, " + ", ".join(fmt(s) for s in src) + (" " + mods if mods else "")
    rd2 = []
    for s in rd:
        if isinstance(s, str):
            m = re.fullmatch(r'-?\|?([vas])(\d+)\|?', s)
            if m: rd2.append(Reg(m.group(1), int(m.group(2))))
            else: rd2.append(s)
        else: rd2.append(s)
    return I(t, kind, reads=rd2, writes=[d] + list(extra_writes), op=op)
def salu(op, d, *src, writes_scc=True):
    t = f"{op} {d}, " + ", ".join(fmt(s) for s in src) if src else f"{op} {d}"
    return I(t, 'salu', reads=list(src), writes=[d] + (['scc'] if writes_scc else []), op=op)
def scmp(op, a, b): return I(f"{op} {fmt(a)}, {fmt(b)}", 'salu', reads=[a, b], writes=['scc'], op=op)
def ds_read_b128(d, addr, off=0):
    assert 0 <= off < 65536, off
    return I(f"ds_read_b128 {d}, {addr}" + (f" offset:{off}" if off else ""), 'ds_read', reads=[addr], writes=[d])
def ds_read_b64(d, addr, off=0):
    assert 0 <= off < 65536, off
    return I(f"ds_read_b64 {d}, {addr}" + (f" offset:{off}" if off else ""), 'ds_read', reads=[addr], writes=[d])
def ds_read_b32(d, addr, off=0):
    assert 0 <= off < 65536, off
    return I(f"ds_read_b32 {d}, {addr}" + (f" offset:{off}" if off else ""), 'ds_read', reads=[addr], writes=[d])
def ds_read_tr(d, addr, off=0):
    assert 0 <= off < 65536, off
    return I(f"ds_read_b64_tr_b16 {d}, {addr}" + (f" offset:{off}" if off else ""), 'ds_read', reads=[addr], writes=[d])
def ds_write(n, addr, src, off=0):
    assert 0 <= off < 65536, off
    op = {1:'ds_write_b32', 2:'ds_write_b64', 4:'ds_write_b128'}[n]
    return I(f"{op} {addr}, {src}" + (f" offset:{off}" if off else ""), 'ds_write', reads=[addr, src], writes=[])
def dma(voff, srd, soff, off=0, mods=""):
    assert 0 <= off < 4096, off
    return I(f"buffer_load_dwordx4 {voff}, {srd}, {fmt(soff)} offen" + (f" offset:{off}" if off else "") + (" " + mods if mods else "") + " lds", 'dma', reads=[voff, srd, soff, 'm0'], writes=[])
def bload(n, d, voff, srd, soff=0, off=0, mods=""):
    assert 0 <= off < 4096, off
    op = {1:'buffer_load_dword', 2:'buffer_load_dwordx2', 4:'buffer_load_dwordx4'}[n]
    return I(f"{op} {d}, {voff}, {srd}, {fmt(soff)} offen" + (f" offset:{off}" if off else "") + (" " + mods if mods else ""), 'vload', reads=[voff, srd, soff], writes=[d])
def bload_ushort(d, voff, srd, soff=0, off=0):
    assert 0 <= off < 4096, off
    return I(f"buffer_load_ushort {d}, {voff}, {srd}, {fmt(soff)} offen" + (f" offset:{off}" if off else ""), 'vload', reads=[voff, srd, soff], writes=[d])
def bstore(n, src, voff, srd, soff=0, off=0, mods=""):
    assert 0 <= off < 4096, off
    op = {1:'buffer_store_dword', 2:'buffer_store_dwordx2', 4:'buffer_store_dwordx4'}[n]
    return I(f"{op} {src}, {voff}, {srd}, {fmt(soff)} offen" + (f" offset:{off}" if off else "") + (" " + mods if mods else ""), 'vstore', reads=[src, voff, srd, soff], writes=[], width=n, data=src)
def waitcnt(vm=None, lgkm=None):
    p = []
    if vm is not None: p.append(f"vmcnt({vm})")
    if lgkm is not None: p.append(f"lgkmcnt({lgkm})")
    return I("s_waitcnt " + " ".join(p), 'wait', vm=vm, lgkm=lgkm)
def barrier(): return I("s_barrier", 'barrier')
def nop(n=0): return I(f"s_nop {n}", 'nop', states=n + 1)
def raw(text, kind='salu', reads=(), writes=(), **kw): return I(text, kind, reads=reads, writes=writes, **kw)
def label(name): return I(f"{name}:", 'label')
def comment(t): return I(f"; {t}", 'label')
def permlane32_swap(a, b): return I(f"v_permlane32_swap_b32 {a}, {b}", 'valu', reads=[a, b], writes=[a, b], op='permlane')
def permlane16_swap(a, b): return I(f"v_permlane16_swap_b32 {a}, {b}", 'valu', reads=[a, b], writes=[a, b], op='permlane')

VALU_KINDS = ('valu', 'trans')

def insert_waits(seq, lgkm_pending=None, vm_pending=None, handle_vm=True):
    out = []
    lq = list(lgkm_pending or [])
    vq = list(vm_pending or [])
    for ins in seq:
        if ins.kind == 'wait':
            if ins.lgkm is not None: lq = lq[len(lq) - ins.lgkm:] if ins.lgkm < len(lq) else lq
            if ins.lgkm == 0: lq = []
            if ins.vm is not None: vq = vq[len(vq) - ins.vm:] if ins.vm < len(vq) else vq
            if ins.vm == 0: vq = []
            out.append(ins); continue
        touched = ins.reads | ins.writes
        need_l = None
        for k, dst in enumerate(lq):
            if dst & touched: need_l = len(lq) - 1 - k
        need_v = None
        if handle_vm:
            for k, dst in enumerate(vq):
                if dst & touched: need_v = len(vq) - 1 - k
        if need_l is not None or need_v is not None:
            if need_l is not None:
                n = min(need_l, 15);
                lq = lq[len(lq) - n:] if n > 0 else []
            if need_v is not None:
                m = min(need_v, 63)
                vq = vq[len(vq) - m:] if m > 0 else []
            out.append(waitcnt(vm=(m if need_v is not None else None), lgkm=(n if need_l is not None else None)))
        out.append(ins)
        if ins.kind == 'ds_read': lq.append(set(ins.writes))
        elif ins.kind == 'ds_write': lq.append(set())
        elif ins.kind == 'smem': lq.append(set(ins.writes))
        elif ins.kind == 'vload': vq.append(set(ins.writes))
        elif ins.kind in ('dma', 'vstore', 'vatomic'): vq.append(set(ins.writes))
    return out, lq, vq

def states(ins):
    if ins.kind == 'label': return 0
    if ins.kind == 'nop': return ins.states
    return 1

def check_hazards(seq, loop=False, name=""):
    s = [i for i in seq if i.kind != 'label']
    if loop: s = s + s
    errs = []
    W = 24
    for j, c in enumerate(s):
        dist = 0
        for k in range(j - 1, max(-1, j - W - 1), -1):
            p = s[k]
            need = 0; why = ""
            cr, cw = c.reads, c.writes
            if p.kind in VALU_KINDS:
                vw = {r for r in p.writes if r[0] in 'va' and r not in ('vcc',)}
                if c.kind == 'mfma' and (vw & cr): need, why = 2, "VALU->MFMA operand"
                if getattr(c, 'op', '') == 'permlane' and (vw & cr): need, why = max(need, 2), "VALU->permlane"
                if 'dpp' in c.text or 'row_' in c.text or 'quad_perm' in c.text:
                    if vw & cr: need, why = max(need, 2), "VALU->DPP"
                if getattr(c, 'op', '').startswith('v_read') and (vw & cr): need, why = max(need, 1), "VALU->readlane"
                if p.kind == 'trans' and c.kind == 'valu' and (p.writes & cr): need, why = max(need, 1), "trans->VALU"
                sw = {r for r in p.writes if r[0] == 's' or r == 'vcc'}
                if sw:
                    if c.kind in ('dma', 'vload', 'vstore', 'vatomic') and (sw & cr): need, why = max(need, 5), "VALU sgpr->VMEM"
                    if c.kind in VALU_KINDS and (sw & cr): need, why = max(need, 2), "VALU sgpr->VALU"
                    if c.kind == 'salu' and (sw & cr): need, why = max(need, 1), "VALU sgpr -> SALU (pad)"
                if 'exec' in p.writes and c.kind == 'mfma': need, why = max(need, 4), "VALU exec->MFMA"
            if p.kind == 'salu' and 'm0' in p.writes and c.kind == 'dma': need, why = max(need, 1), "M0->DMA"
            if p.kind == 'mfma':
                ps = p.passes
                dw = p.writes
                if c.kind == 'mfma':
                    ab = set(regs_of(c.A)) | set(regs_of(c.B)); cc = set(regs_of(c.C))
                    if dw & ab: need, why = max(need, {4: 8, 8: 12}[ps]), "MFMA D->A/B"
                    if dw & cc:
                        if set(regs_of(c.C)) == dw and c.passes == ps: pass
                        else: need, why = max(need, {4: 6, 8: 10}[ps]), "MFMA D->C overlap"
                    elif dw & c.writes and not (dw & cc):
                        need, why = max(need, {4: 6, 8: 10}[ps]), "MFMA D WAW"
                elif c.kind in VALU_KINDS or c.kind in ('ds_read', 'ds_write', 'vload', 'vstore', 'dma', 'vatomic'):
                    if dw & (cr | cw): need, why = max(need, {4: 8, 8: 12}[ps]), "MFMA D->VALU/mem"
                    if c.kind in VALU_KINDS and (set(regs_of(p.C)) & cw): need, why = max(need, {4: 3, 8: 7}[ps]), "MFMA C WAR"
            if p.kind == 'vstore' and p.width >= 3:
                if set(regs_of(p.data)) & cw: need, why = max(need, 2), "store data WAR"
            if need > dist:
                errs.append(f"{name}: need {need} got {dist} [{why}]: '{p.text}' -> '{c.text}'")
            dist += states(p)
            if dist > 20: break
    return errs

def emit(seq, indent="  "):
    return "\n".join((i.text if i.kind == 'label' else indent + i.text) for i in seq) + "\n"

def fix_hazards(seq, name="", verbose=False):
    out = []
    n_ins = 0
    for ins in seq:
        if ins.kind == 'label':
            out.append(ins); continue
        while True:
            tail = [i for i in out[-40:]] + [ins]
            errs = check_hazards_last(tail)
            if errs == 0: break
            k = min(errs, 16)
            out.append(nop(k - 1)); n_ins += k
        out.append(ins)
    if verbose and n_ins: print(f"; {name}: inserted {n_ins} wait states")
    return out

def check_hazards_last(s):
    s = [i for i in s if i.kind != 'label']
    errs = check_hazards_range(s, len(s) - 1)
    return errs

def check_hazards_range(s, j):
    c = s[j]
    worst = 0
    dist = 0
    for k in range(j - 1, -1, -1):
        p = s[k]
        need = pair_need(p, c)[0]
        if need > dist: worst = max(worst, need - dist)
        dist += states(p)
        if dist > 20: break
    return worst

def pair_need(p, c):
    need = 0; why = ""
    cr, cw = c.reads, c.writes
    if p.kind in VALU_KINDS:
        vw = {r for r in p.writes if r[0] in 'va' and r not in ('vcc',)}
        if c.kind == 'mfma' and (vw & cr): need, why = 2, "VALU->MFMA operand"
        if getattr(c, 'op', '') == 'permlane' and (vw & cr): need, why = max(need, 2), "VALU->permlane"
        if 'dpp' in c.text or 'row_' in c.text or 'quad_perm' in c.text:
            if vw & cr: need, why = max(need, 2), "VALU->DPP"
        if getattr(c, 'op', '').startswith('v_read') and (vw & cr): need, why = max(need, 1), "VALU->readlane"
        if p.kind == 'trans' and c.kind == 'valu' and (p.writes & cr): need, why = max(need, 1), "trans->VALU"
        sw = {r for r in p.writes if r[0] == 's' or r == 'vcc'}
        if sw:
            if c.kind in ('dma', 'vload', 'vstore', 'vatomic') and (sw & cr): need, why = max(need, 5), "VALU sgpr->VMEM"
            if c.kind in VALU_KINDS and (sw & cr): need, why = max(need, 2), "VALU sgpr->VALU"
            if c.kind == 'salu' and (sw & cr): need, why = max(need, 4), "VALU sgpr -> SALU (pad)"
        if 'exec' in p.writes and c.kind == 'mfma': need, why = max(need, 4), "VALU exec->MFMA"
    if p.kind == 'salu' and 'm0' in p.writes and c.kind == 'dma': need, why = max(need, 1), "M0->DMA"
    if p.kind == 'mfma':
        ps = p.passes
        dw = p.writes
        if c.kind == 'mfma':
            ab = set(regs_of(c.A)) | set(regs_of(c.B)); cc = set(regs_of(c.C))
            if dw & ab: need, why = max(need, {4: 8, 8: 12}[ps]), "MFMA D->A/B"
            if dw & cc:
                if cc == dw and c.passes == ps: pass
                else: need, why = max(need, {4: 6, 8: 10}[ps]), "MFMA D->C overlap"
            elif dw & c.writes:
                need, why = max(need, {4: 6, 8: 10}[ps]), "MFMA D WAW"
        elif c.kind in VALU_KINDS or c.kind in ('ds_read', 'ds_write', 'vload', 'vstore', 'dma', 'vatomic'):
            if dw & (cr | cw): need, why = max(need, {4: 8, 8: 12}[ps]), "MFMA D->VALU/mem"
            if c.kind in VALU_KINDS and (set(regs_of(p.C)) & cw): need, why = max(need, {4: 3, 8: 7}[ps]), "MFMA C WAR"
    if p.kind == 'vstore' and p.width >= 3:
        if set(regs_of(p.data)) & cw: need, why = max(need, 2), "store data WAR"
    return need, why

def cost(ins):
    k = ins.kind
    if k == 'trans': return 8
    if k == 'valu': return 4
    if k in ('ds_read', 'ds_write'): return 4
    if k == 'dma': return 20
    if k in ('vload', 'vstore'): return 12
    if k in ('salu', 'wait', 'nop', 'barrier'): return 0
    return 0
def cls(ins):
    k = ins.kind
    if k in ('salu', 'wait', 'nop'): return 0
    if k in ('ds_read', 'ds_write', 'dma', 'vload', 'vstore'): return 1
    return 2

def schedule_gaps(mf, ops, budget=None, slack=1.0, start_credit=0.0):
    T = len(mf)
    ops = sorted(ops, key=lambda x: x[0])
    if budget is None:
        budget = sum(cost(o[1]) for o in ops) / max(1, sum(1 for m in mf if m is not None))
    seq = []
    oi = 0
    credit = start_credit
    pre = []
    while oi < len(ops) and ops[oi][0] < 0:
        pre.append(ops[oi][1]); oi += 1
    seq += sorted(pre, key=cls)
    for k in range(T):
        if mf[k] is not None: seq.append(mf[k])
        credit += budget
        gap = []
        while oi < len(ops):
            t, ins = ops[oi][0], ops[oi][1]
            c = cost(ins)
            if t >= k + 1 + slack: break
            forced = t < k + 1 - slack or k == T - 1
            if forced or credit >= c - 0.01 * 0 - (c * 0.5):
                gap.append(ins); credit -= c; oi += 1
            else: break
        gap.sort(key=cls)
        seq += gap
        credit = min(credit, budget)
    assert oi == len(ops), ops[oi:]
    return seq

def insert_waits2(seq, lgkm_pending=None):
    out = []
    lq = list(lgkm_pending or [])
    for ins in seq:
        if ins.kind == 'wait':
            if ins.lgkm is not None:
                lq = lq[len(lq) - ins.lgkm:] if 0 < ins.lgkm < len(lq) else ([] if ins.lgkm == 0 else lq)
            out.append(ins); continue
        touched = ins.reads | ins.writes
        need = None
        for k, (dst, _) in enumerate(lq):
            if dst & touched: need = k
        if need is not None:
            pos = len(out)
            lm = max((i for i, o in enumerate(out) if o.kind == 'mfma'), default=-1)
            if lm >= 0 and lq[need][1] < lm:
                pos = lm + 1
            later = sum(1 for (_, idx) in lq[need+1:] if idx < pos)
            n = min(later, 15)
            out.insert(pos, waitcnt(lgkm=n))
            lq = [(d, idx + 1 if idx >= pos else idx) for (d, idx) in lq]
            before = [e for e in lq if e[1] < pos]; after = [e for e in lq if e[1] > pos]
            before = before[len(before) - n:] if n > 0 else []
            lq = before + after
        out.append(ins)
        if ins.kind in ('ds_read', 'ds_write', 'smem'):
            lq.append((set(ins.writes) if ins.kind != 'ds_write' else set(), len(out) - 1))
    return out, lq

def validate_tags(seq, init=None):
    cur = dict(init or {})
    errs = []
    for ins in seq:
        rt = getattr(ins, 'rt', None)
        if rt:
            for reg, tag in rt.items():
                if cur.get(reg) != tag:
                    errs.append(f"{ins.text}: {reg} has {cur.get(reg)} expected {tag}")
        wt = getattr(ins, 'wt', None)
        if wt is not None:
            for w in ins.writes:
                if w[0] in 'va': cur[w] = wt
    return errs
def tag(ins, wt=None, rt=None):
    if wt is not None: ins.wt = wt
    if rt:
        d = {}
        for regs, t in rt:
            for r in regs_of(regs): d[r] = t
        ins.rt = d
    return ins

def schedule_gaps2(mf, ops, minfill, maxfill, early=2.0, late=0.0):
    T = len(mf)
    ops = sorted(ops, key=lambda x: x[0])
    seq = []; oi = 0
    pre = []
    while oi < len(ops) and ops[oi][0] < 0:
        pre.append(ops[oi][1]); oi += 1
    seq += sorted(pre, key=cls)
    for k in range(T):
        if mf[k] is not None: seq.append(mf[k])
        gap = []; f = 0
        while oi < len(ops):
            t, ins = ops[oi][0], ops[oi][1]
            c = cost(ins)
            take = False
            if k == T - 1: take = True
            elif t < k - 1: take = True
            elif c == 0 and t < k + 1 + early: take = True
            elif f < minfill and t < k + 1 + early and f + c <= max(maxfill, c): take = True
            elif t < k + 1 - late and f + c <= maxfill: take = True
            if not take: break
            gap.append(ins); f += c; oi += 1
        gap.sort(key=cls)
        seq += gap
    assert oi == len(ops), ops[oi:]
    return seq

class Op:
    def __init__(self, ins, target, release=-1e9, deadline=1e9, stream=0):
        self.ins, self.t, self.r, self.dl, self.s = ins, target, release, deadline, stream

def list_schedule(mf, ops, minfill, maxfill, ahead=3.0):
    T = len(mf)
    streams = {}
    for o in ops: streams.setdefault(o.s, []).append(o)
    heads = {s: 0 for s in streams}
    seq = []
    def cands(k):
        c = []
        for s, lst in streams.items():
            if heads[s] < len(lst) and lst[heads[s]].r <= k: c.append(lst[heads[s]])
        return c
    pre = []
    while True:
        c = [o for o in cands(-1) if o.t < 0]
        if not c: break
        o = min(c, key=lambda x: x.t); pre.append(o.ins); heads[o.s] += 1
    seq += sort_gap(pre)
    fills = []
    for k in range(T):
        if mf[k] is not None: seq.append(mf[k])
        gap = []; f = 0
        last = (k == T - 1)
        while True:
            c = cands(k)
            if not c: break
            pick = None
            forced = [o for o in c if o.dl <= k or last or any(x.dl <= k for x in streams[o.s][heads[o.s]:heads[o.s]+6])]
            free = [o for o in c if cost(o.ins) == 0 and o.t < k + 1 + ahead]
            if forced: pick = min(forced, key=lambda x: x.t)
            elif free: pick = min(free, key=lambda x: x.t)
            else:
                near = [o for o in c if o.t < k + 1 + ahead]
                if f < minfill:
                    fit = [o for o in near if f + cost(o.ins) <= max(maxfill, minfill)]
                    exact = [o for o in fit if f + cost(o.ins) <= minfill]
                    if exact: pick = min(exact, key=lambda x: x.t)
                    elif fit: pick = min(fit, key=lambda x: x.t)
                    elif f == 0 and near: pick = min(near, key=lambda x: x.t)
                else:
                    due = [o for o in c if o.t < k + 1 and f + cost(o.ins) <= maxfill]
                    if due: pick = min(due, key=lambda x: x.t)
            if pick is None: break
            gap.append(pick.ins); f += cost(pick.ins); heads[pick.s] += 1
        gap = sort_gap(gap)
        seq += gap; fills.append(f)
    for s, lst in streams.items(): assert heads[s] == len(lst), (s, lst[heads[s]].ins.text)
    return seq, fills


def dep(a, b):
    return bool((a.writes & (b.reads | b.writes)) or (a.reads & b.writes))
def sort_gap(gap):
    out = []
    for ins in gap:
        pos = len(out)
        while pos > 0 and cls(out[pos-1]) > cls(ins) and not dep(out[pos-1], ins):
            pos -= 1
        out.insert(pos, ins)
    return out

def lds_dep(ins, need=(), mark=()):
    ins.need = set(need); ins.mark = set(mark)
    return ins

def auto_waits(seq, lq=None, vq=None, shadow=True):
    out = []
    lq = [list(e) for e in (lq or [])]; vq = [list(e) for e in (vq or [])]
    def trim(q, n, pos):
        before = [e for e in q if e[1] < pos]; after = [e for e in q if e[1] >= pos]
        return (before[len(before) - n:] if n > 0 else []) + after
    for ins in seq:
        if ins.kind == 'wait':
            if ins.lgkm is not None: lq = trim(lq, ins.lgkm, 1 << 60) if ins.lgkm < len(lq) else lq
            if ins.vm is not None: vq = trim(vq, ins.vm, 1 << 60) if ins.vm < len(vq) else vq
            out.append(ins); continue
        if ins.kind == 'label':
            out.append(ins); continue
        touched = ins.reads | ins.writes | getattr(ins, 'need', set())
        nl = nv = None
        for k, e in enumerate(lq):
            if e[0] & touched: nl = k
        for k, e in enumerate(vq):
            if e[0] & touched: nv = k
        if nl is not None or nv is not None:
            pos = len(out)
            if shadow:
                lm = -1
                for i in range(len(out) - 1, -1, -1):
                    if out[i].kind == 'mfma': lm = i; break
                    if out[i].kind in ('barrier', 'label', 'branch'): break
                if lm >= 0 and (nl is None or lq[nl][1] < lm) and (nv is None or vq[nv][1] < lm):
                    pos = lm + 1
            n = m = None
            if nl is not None:
                smem = any(e[2] for e in lq)
                n = 0 if smem else min(15, sum(1 for e in lq[nl+1:] if e[1] < pos))
            if nv is not None:
                m = min(63, sum(1 for e in vq[nv+1:] if e[1] < pos))
            out.insert(pos, waitcnt(vm=m, lgkm=n))
            for e in lq + vq:
                if e[1] >= pos: e[1] += 1
            if n is not None: lq = trim(lq, n, pos)
            if m is not None: vq = trim(vq, m, pos)
        out.append(ins)
        tags = set(ins.writes) | getattr(ins, 'mark', set())
        if ins.kind in ('ds_read', 'smem'): lq.append([tags, len(out) - 1, ins.kind == 'smem'])
        elif ins.kind == 'ds_write': lq.append([set(getattr(ins, 'mark', set())), len(out) - 1, False])
        elif ins.kind in ('vload', 'dma', 'vatomic'): vq.append([tags, len(out) - 1, False])
        elif ins.kind == 'vstore': vq.append([set(getattr(ins, 'mark', set())), len(out) - 1, False])
    return out, lq, vq

class Grp(I):
    def __init__(self, items):
        self.items = items
        last = items[-1]
        self.kind = last.kind; self.text = last.text
        self.reads = set(); self.writes = set()
        for i in items: self.reads |= i.reads; self.writes |= i.writes
def expand(seq):
    out = []
    for i in seq:
        if isinstance(i, Grp): out += i.items
        else: out.append(i)
    return out
def group_dma(lst):
    out = []; setup = []
    fresh = False
    for ins in lst:
        if 'm0' in ins.writes:
            if not fresh: setup = []
            setup.append(ins); fresh = True
        elif ins.kind == 'nop' and fresh:
            continue
        elif ins.kind == 'dma':
            fresh = False
            out.append(Grp(list(setup) + [nop(0), ins]))
        else:
            fresh = False
            out.append(ins)
    return out
```

```python
from k_common import *
LOG2E = 1.4426950408889634

def tr_addr_128(a, l, dst4, base_v, t0=V(4), t1=V(5), t2=V(6), t3=V(7)):
    a(valu('v_lshrrev_b32', t0, 4, l))
    a(valu('v_bfe_u32', t1, l, 2, 2))
    a(valu('v_lshl_add_u32', t0, t0, 2, t1))
    a(valu('v_bfe_u32', t1, t0, 1, 2))
    a(valu('v_lshlrev_b32', t1, 1, t1))
    a(valu('v_lshlrev_b32', t0, 7, t0))
    a(valu('v_and_b32', t2, 1, l))
    a(valu('v_lshl_add_u32', t0, t2, 3, t0))
    a(valu('v_add_u32', t0, base_v, t0))
    a(valu('v_bfe_u32', t2, l, 1, 1))
    for t in range(4):
        a(valu('v_add_u32', t3, 2*t, t2))
        a(valu('v_xor_b32', t3, t3, t1))
        a(valu('v_lshl_add_u32', dst4[t], t3, 4, t0))
def dma_off_128(a, l, dst4, stride, t0=V(4), t1=V(5), t2=V(6), s_tmp=None):
    a(valu('v_lshrrev_b32', t0, 3, l))
    a(valu('v_bfe_u32', t1, t0, 1, 2))
    a(valu('v_lshlrev_b32', t1, 1, t1))
    a(valu('v_and_b32', t2, 7, l))
    a(valu('v_xor_b32', t2, t2, t1))
    a(valu('v_lshlrev_b32', t2, 4, t2))
    a(smov(s_tmp, stride))
    a(valu('v_mul_lo_u32', t0, t0, s_tmp))
    a(valu('v_add_u32', dst4[0], t0, t2))
    for i in range(1, 4):
        a(valu('v_add_u32', dst4[i], 8*stride - 1024, dst4[i-1]))
def gelu(a, x, t1, t2, s_c1, s_c2):
    a(valu('v_mul_f32', t1, x, x))
    a(valu('v_fma_f32', t1, t1, s_c1, 1.0))
    a(valu('v_mul_f32', t1, t1, x))
    a(valu('v_mul_f32', t1, s_c2, t1))
    a(valu('v_exp_f32', t1, t1))
    a(valu('v_add_f32', t1, 1.0, t1))
    a(valu('v_rcp_f32', t1, t1))
    a(valu('v_mul_f32', x, x, t1))

def build(timing=False):
    s = []; a = s.append
    NS = 4
    STP = Stamps(timing, 2)
    s.extend(STP())
    a(sload(S(4, 2), ARG_W1)); a(sload(S(6, 2), ARG_WS)); a(sload(S(24, 2), ARG_B1))
    a(raw("s_cmp_ge_u32 s2, 256")); a(raw("s_cbranch_scc1 L_k2_end", 'branch'))
    a(raw("s_and_b32 s20, s2, 7", writes=[S(20)])); a(raw("s_lshr_b32 s21, s2, 3", writes=[S(21)]))
    a(raw("s_lshr_b32 s22, s21, 3", writes=[S(22)])); a(raw("s_lshl_b32 s22, s22, 3", writes=[S(22)]))
    a(raw("s_add_u32 s22, s22, s20", writes=[S(22)]))
    a(raw("s_and_b32 s21, s21, 7", writes=[S(21)]))
    a(raw("s_cmp_ge_u32 s22, 28")); a(raw("s_cbranch_scc1 L_k2_end", 'branch'))
    a(valu('v_lshrrev_b32', V(1), 6, V(0)))
    a(readfirstlane(S(23), V(1)))
    l = V(0)
    a(valu('v_and_b32', l, 63, l))
    a(waitcnt(lgkm=0))
    s.extend(make_srd(S(8, 4), S(4, 2), 2048*1792*2))
    s.extend(make_srd(S(12, 4), S(6, 2), WS_END))
    s.extend(make_srd(S(16, 4), S(24, 2), 1792*2))
    TA = [V(8 + t) for t in range(4)]
    DW = [V(12 + t) for t in range(4)]; DH = [V(16 + t) for t in range(4)]
    a(raw("s_lshl_b32 s26, s23, 15", writes=[S(26)]))
    a(valu('v_mov_b32', V(20), S(26)))
    tr_addr_128(a, l, TA, V(20))
    dma_off_128(a, l, DW, 3584, s_tmp=S(27))
    dma_off_128(a, l, DH, 1024, s_tmp=S(27))
    a(raw("s_lshl_b32 s28, s23, 9", writes=[S(28)]))
    a(raw("s_mul_i32 s29, s28, 3584", writes=[S(29)]))
    a(raw("s_lshl_b32 s30, s22, 7", writes=[S(30)]))
    a(raw("s_add_u32 s29, s29, s30", writes=[S(29)]))
    a(raw("s_lshl_b32 s30, s28, 10", writes=[S(30)]))
    a(raw("s_lshl_b32 s31, s21, 7", writes=[S(31)]))
    a(raw("s_add_u32 s30, s30, s31", writes=[S(30)]))
    a(raw(f"s_add_u32 s30, s30, {WS_H}", writes=[S(30)]))
    SW, SH = S(29), S(30)
    a(valu('v_lshrrev_b32', V(4), 4, l)); a(valu('v_lshlrev_b32', V(4), 3, V(4)))
    a(raw("s_lshl_b32 s31, s22, 7", writes=[S(31)]))
    BI = V(24, 8)
    for ft in range(4): a(bload(2, BI[2*ft:2*ft+2], V(4), S(16, 4), S(31), off=32*ft))
    def acc(ft, dt): return V(64 + (ft*4+dt)*4, 4)
    def fa(p, t): return V(128 + 32*p + 4*t, 4)
    def fb(p, t): return V(128 + 32*p + 16 + 4*t, 4)
    def dma_step(n):
        o = []
        st = n % NS
        o.append(sop('s_add_u32', 'm0', S(26), st*8192))
        o.append(nop(0))
        for i in range(4): o.append(lds_dep(dma(DW[i], S(8, 4), SW, off=i*1024), need={f'R{st}'}, mark={f'L{st}'}))
        o.append(sop('s_add_u32', 'm0', S(26), st*8192 + 4096))
        o.append(sop('s_add_u32', SW, SW, 32*3584))
        for i in range(4): o.append(lds_dep(dma(DH[i], S(12, 4), SH, off=i*1024), need={f'R{st}'}, mark={f'L{st}'}))
        o.append(sop('s_add_u32', SH, SH, 32*1024))
        return o
    def reads(n):
        o = []
        st = n % NS; p = n & 1
        for t in range(4):
            for u in range(2): o.append(lds_dep(ds_read_tr(fa(p, t)[2*u:2*u+2], TA[t], st*8192 + u*2048), need={f'L{st}'}, mark={f'R{st}'}))
        for t in range(4):
            for u in range(2): o.append(lds_dep(ds_read_tr(fb(p, t)[2*u:2*u+2], TA[t], st*8192 + 4096 + u*2048), need={f'L{st}'}, mark={f'R{st}'}))
        return o
    for r in range(64): a(valu('v_mov_b32', V(64 + r), 0))
    NK = 16
    for n in range(3): s.extend(dma_step(n))
    s.extend(STP())
    s.extend(reads(0))
    for n in range(NK):
        rd = []
        if n + 1 < NK:
            rd = reads(n + 1)
        dm = dma_step(n + 3) if n + 3 < NK else []
        mf = [mfma16(acc(ft, dt), fa(n & 1, ft), fb(n & 1, dt), acc(ft, dt)) for ft in range(4) for dt in range(4)]
        if n == 1: s.extend(STP())
        fill = rd + dm
        per = (len(fill) + 15) // 16
        for k, m in enumerate(mf):
            a(m)
            s.extend(fill[k*per:(k+1)*per])
    s.extend(STP())
    a(valu('v_lshlrev_b32', V(4), 4, l)); a(valu('v_add_u32', V(5), S(26), V(4)))
    for ft in range(4):
        for dt in range(4):
            a(ds_write(4, V(5), acc(ft, dt), off=(ft*4+dt)*1024))
    a(waitcnt(lgkm=0, vm=0)); a(barrier())
    a(raw("s_lshl_b32 s27, s23, 10", writes=[S(27)]))
    a(valu('v_add_u32', V(5), S(27), V(4)))
    a(valu('v_add_u32', V(6), 65536, V(5)))
    for ft in range(4):
        for w in range(4):
            addr = V(5) if w < 2 else V(6)
            a(ds_read_b128(V(128 + (ft*4+w)*4, 4), addr, (w & 1)*32768 + ft*4096))
    a(smov(S(40), 0.044715)); a(smov(S(41), -2.0*0.7978845608028654*LOG2E))
    OUT = V(32, 8)
    for ft in range(4):
        for r in range(4):
            x = V(64 + ft*4 + r)
            a(valu('v_add_f32', x, V(128 + (ft*4+0)*4 + r), V(128 + (ft*4+1)*4 + r)))
            a(valu('v_add_f32', V(40), V(128 + (ft*4+2)*4 + r), V(128 + (ft*4+3)*4 + r)))
            a(valu('v_add_f32', x, x, V(40)))
            b = BI[2*ft + (r >> 1)]
            if r & 1: a(valu('v_and_b32', V(41), 0xffff0000, b))
            else: a(valu('v_lshlrev_b32', V(41), 16, b))
            a(valu('v_add_f32', x, x, V(41)))
            gelu(a, x, V(42), V(43), S(40), S(41))
        a(valu('v_cvt_pk_bf16_f32', OUT[2*ft], V(64 + ft*4), V(64 + ft*4 + 1)))
        a(valu('v_cvt_pk_bf16_f32', OUT[2*ft+1], V(64 + ft*4 + 2), V(64 + ft*4 + 3)))
    a(raw("s_lshl_b32 s27, s21, 2", writes=[S(27)])); a(raw("s_add_u32 s27, s27, s23", writes=[S(27)]))
    a(raw("s_mul_i32 s27, s27, 56", writes=[S(27)])); a(raw("s_lshl_b32 s28, s22, 1", writes=[S(28)]))
    a(raw("s_add_u32 s27, s27, s28", writes=[S(27)])); a(raw("s_lshl_b32 s27, s27, 10", writes=[S(27)]))
    a(raw(f"s_add_u32 s27, s27, {WS_U}", writes=[S(27)]))
    a(bstore(4, OUT[0:4], V(4), S(12, 4), S(27)))
    a(bstore(4, OUT[4:8], V(4), S(12, 4), S(27), off=1024))
    a(waitcnt(vm=0))
    s.extend(STP())
    s.extend(STP.flush(S(23)))
    s, _, _ = auto_waits(s)
    s = fix_hazards(s, "k2")
    s.append(label("L_k2_end"))
    return emit(s)
if __name__ == "__main__":
    t = build(); print(len(t.splitlines()))
```

```python
from k_common import *

NST = 3
KBASE = 0; VBASE = NST * 16384; XBASE = 98304
SRD_K = S(8, 4); SRD_V = S(12, 4); SRD_W = S(16, 4); SRD_WQ = S(28, 4); SRD_WO = S(32, 4)
S_TILE = S(20); S_WOFF = S(21); S_WAVE = S(24); S_G = S(25); S_QB = S(26)
QSCALE = 1.4426950408889634 * 128 ** -0.5

class Opt:
    dma = True; barrier = True
    dma_pos = [20, 25, 30, 34, 88, 93, 98, 102]
    minfill = 8; maxfill = 8; early = 1.5
    sm_span = 34.0; sm_rel = 4; p_lead = 2; k_span = 1.0; k_lead = 6; bar_lead = 5; v_even = 0
    timing = False; fine = False; prefetch = True; pstamps = False
    def __init__(self, **kw): self.__dict__.update(kw)

def O(dt, qt): return V(128 + (dt*4+qt)*4, 4)
def Q(i, qt): return A((i*4+qt)*4, 4)
def Kf(n): return A(64 + 4*n, 4)
def Vf(dt): return A(96 + 4*dt, 4)
Sb = [V(32, 16), V(48, 16)]
def Sx(c, t, q2): return Sb[c][(q2*2+t)*4:(q2*2+t)*4+4]
NM = [V(64 + 4*i, 4) for i in range(4)]
LA = [V(80 + 4*i, 4) for i in range(4)]
Pb = [V(96, 8), V(104, 8)]
ONES = V(112, 4)
KA = [V(116 + i) for i in range(4)]
VA = [V(120 + i) for i in range(8)]
DK = [V(8 + i) for i in range(4)]
DV = [V(12), V(13)]

class Attn:
    def __init__(self, opt): self.o = opt
    def qk_slot(self, j, kh, c):
        out = []
        for q2 in range(2):
            for t in range(2):
                for i in range(4):
                    qt = 2*c + q2; sx = Sx(c, t, q2)
                    m = mfma16(sx, Kf(t*4+i), Q(i, qt), NM[qt] if i == 0 else sx)
                    tag(m, wt=('S', j, kh, c), rt=[(Kf(t*4+i), ('K', j, kh))] + ([(sx, ('S', j, kh, c))] if i else []))
                    out.append(m)
        return out
    def pv_slot(self, j, kh, c):
        out = []
        for q2 in range(2):
            p = Pb[c][4*q2:4*q2+4]; qt = 2*c + q2
            for dt in range(8):
                m = mfma16(O(dt, qt), Vf(dt), p, O(dt, qt))
                tag(m, rt=[(Vf(dt), ('V', j, kh)), (p, ('P', j, kh, c))]); out.append(m)
            m = mfma16(LA[qt], ONES, p, LA[qt]); tag(m, rt=[(p, ('P', j, kh, c))]); out.append(m)
        return out
    def sm_list(self, j, kh, c):
        regs = []
        for q2 in range(2):
            for t in range(2):
                for r in range(4): regs.append((Sx(c, t, q2)[r], Pb[c][4*q2 + 2*t + (r >> 1)]))
        ops = []
        for n, (s, p) in enumerate(regs):
            ops.append((n, tag(valu('v_exp_f32', s, s), wt=('E', j, kh, c), rt=[(s, ('S', j, kh, c))])))
            if n & 1:
                sp = regs[n-1][0]
                ops.append((n + 1.04, tag(valu('v_cvt_pk_bf16_f32', p, sp, s), wt=('P', j, kh, c), rt=[(s, ('E', j, kh, c)), (sp, ('E', j, kh, c))])))
        return [i for (t, i) in sorted(ops, key=lambda x: x[0])]
    def k_reads(self, j, kh):
        st = j % NST
        return [tag(ds_read_b128(Kf(n), KA[n & 3], KBASE + st*16384 + kh*8192 + (n >> 2)*4096), wt=('K', j, kh)) for n in range(8)]
    def v_reads(self, j, kh):
        st = j % NST
        return [tag(ds_read_tr(Vf(dt)[2*u:2*u+2], VA[dt], st*16384 + kh*8192 + u*4096), wt=('V', j, kh)) for dt in range(8) for u in range(2)]
    def dma_ops(self, st, pos):
        ops = []
        for n in range(8):
            t = pos[n]
            if n == 0: ops.append((t - 1.0, sop('s_add_u32', 'm0', S_WOFF, KBASE + st*16384)))
            if n == 4: ops.append((t - 1.0, sop('s_add_u32', 'm0', S_WOFF, VBASE + st*16384)))
            if n < 4: ops.append((t, dma(DK[n], SRD_K, S_TILE, off=n*1024)))
            else: ops.append((t, dma(DV[n & 1], SRD_V, S_TILE, off=(n-4)*1024)))
        ops.append((pos[7] + 0.3, sop('s_add_u32', S_TILE, S_TILE, 16384)))
        return ops
    def period(self, j, first=False, last_drain=False, dma=True, vm_end=8):
        o = self.o
        hp, hc = not first, not last_drain
        slots = [self.pv_slot(j-1, 1, 0) if hp else None, self.qk_slot(j, 0, 0) if hc else None,
                 self.pv_slot(j-1, 1, 1) if hp else None, self.qk_slot(j, 0, 1) if hc else None,
                 self.pv_slot(j, 0, 0) if hc else None, self.qk_slot(j, 1, 0) if hc else None,
                 self.pv_slot(j, 0, 1) if hc else None, self.qk_slot(j, 1, 1) if hc else None]
        pvlen = 18; qklen = 16
        lens = [pvlen, qklen]*4
        starts = [sum(lens[:s]) for s in range(9)]
        T = starts[8]
        mf = []
        for s in range(8): mf += slots[s] if slots[s] is not None else [None]*lens[s]
        ops = []
        def sm_stream(jj, kh, c, tq, tpv):
            raw_ops = self.sm_list(jj, kh, c); n = len(raw_ops); res = []
            pv = self.pv_slot(jj, kh, c)
            for idx, ins in enumerate(raw_ops):
                t = tq + o.sm_span * idx / n; dl = 1e9
                if ins.op == 'v_cvt_pk_bf16_f32':
                    preg = list(ins.writes)[0]
                    dl = tpv + min(q for q, m in enumerate(pv) if preg in m.reads) - o.p_lead
                res.append([t, dl, ins])
            for idx in range(n - 2, -1, -1): res[idx][1] = min(res[idx][1], res[idx+1][1])
            return [(t, tq, dl, ins) for (t, dl, ins) in res]
        allsm = []; rel = o.sm_rel
        if hp:
            allsm += sm_stream(j-1, 1, 0, starts[6] + rel - T, starts[8] - T)
            allsm += sm_stream(j-1, 1, 1, starts[8] + rel - T, starts[2])
        if hc:
            allsm += sm_stream(j, 0, 0, starts[2] + rel, starts[4])
            allsm += sm_stream(j, 0, 1, starts[4] + rel, starts[6])
            allsm += sm_stream(j, 1, 0, starts[6] + rel, starts[8])
            allsm += sm_stream(j, 1, 1, starts[8] + rel, T + starts[2])
        for (t, r, dl, ins) in allsm:
            if 0 <= t < T: ops.append(Op(ins, t, release=r, deadline=min(dl, T - 1), stream='sm'))
        if hc:
            for (kh, ks_slot, vs_slot) in ((0, 0, 2), (1, 4, 6)):
                qk = self.qk_slot(j, kh, 0)
                for n, ins in enumerate(self.k_reads(j, kh)):
                    fu = min(q for q, m in enumerate(qk) if ins.writes & m.reads)
                    t = starts[ks_slot] + n * pvlen * o.k_span / 8
                    ops.append(Op(ins, t, release=starts[ks_slot] - 1, deadline=starts[ks_slot+1] + fu - o.k_lead, stream='k'))
                pv = self.pv_slot(j, kh, 0); pvo = self.pv_slot(j, kh, 1)
                info = []
                for ins in self.v_reads(j, kh):
                    lu = max(q for q, m in enumerate(pvo) if ins.writes & m.reads)
                    fu = min(q for q, m in enumerate(pv) if ins.writes & m.reads)
                    dl = starts[vs_slot+2] + fu - o.k_lead
                    if kh == 1: dl = min(dl, T - 1 - o.bar_lead)
                    info.append((starts[vs_slot] + lu + 1, dl, ins))
                info.sort(key=lambda x: x[0])
                w0 = info[0][0]; w1 = min(x[1] for x in info)
                for n, (r, dl, ins) in enumerate(info):
                    ops.append(Op(ins, max(r, w0 + (w1 - w0) * n / len(info)), release=r, deadline=dl, stream='v'))
        if dma and hc:
            for (t, ins) in self.dma_ops((j + 2) % NST, o.dma_pos): ops.append(Op(ins, t, release=0, stream='dma'))
        seq, fills = list_schedule(mf, ops, o.minfill, o.maxfill, ahead=o.early)
        self.fills = fills
        if hc:
            seq.append(waitcnt(vm=vm_end, lgkm=0))
            if o.barrier: seq.append(barrier())
        return seq

def addr_tr256(a, l, dst8, base, gmul, t=(V(1), V(2), V(3), V(4), V(5))):
    G, r, f, rowb, c = t
    a(valu('v_lshrrev_b32', G, 4, l)); a(valu('v_bfe_u32', r, l, 2, 2))
    a(valu('v_and_b32', f, 1, G)); a(valu('v_lshl_add_u32', f, f, 2, r)); a(valu('v_lshlrev_b32', f, 1, f))
    a(valu('v_mul_u32_u24', rowb, gmul, G)); a(valu('v_add_u32', rowb, rowb, r)); a(valu('v_lshlrev_b32', rowb, 8, rowb))
    a(valu('v_and_b32', c, 1, l)); a(valu('v_lshl_add_u32', rowb, c, 3, rowb))
    a(valu('v_add_u32', rowb, base, rowb))
    a(valu('v_bfe_u32', c, l, 1, 1))
    for mt in range(8):
        a(valu('v_add_u32', G, 2*mt, c)); a(valu('v_xor_b32', G, G, f)); a(valu('v_lshl_add_u32', dst8[mt], G, 4, rowb))

def dma_off_256(a, l, dst4, stride, mode, s_tmp, t=(V(1), V(2), V(3))):
    ri, ph, x = t
    a(valu('v_lshrrev_b32', ri, 4, l)); a(valu('v_and_b32', ph, 15, l))
    a(smov(s_tmp, stride))
    for n in range(4):
        hi = ((n >> 1) & 1) if mode == 'q' else (n & 1)
        a(valu('v_add_u32', x, 4*hi, ri)); a(valu('v_lshlrev_b32', x, 1, x)); a(valu('v_xor_b32', x, x, ph))
        a(valu('v_lshlrev_b32', x, 4, x))
        a(valu('v_mul_lo_u32', dst4[n], ri, s_tmp)); a(valu('v_add_u32', dst4[n], dst4[n], x))
        if n: a(valu('v_add_u32', dst4[n], n*(4*stride - 1024), dst4[n]))

def proj_gemm(a, s, TA, DW, srd, SOFF, stride, S_RING, bread, uoff, name, pre_issued=0, after_last_reads=None):
    NS = 3; NK = 16
    def fa(p, mt): return A(64 + 32*p + 4*mt, 4)
    def fb(p, qt): return A(16*p + 4*qt, 4)
    def dma_step(n):
        o = []; st = n % NS
        for h in range(2):
            o.append(sop('s_add_u32', 'm0', S_RING, st*8192 + h*4096)); o.append(nop(0))
            for i in range(4):
                o.append(lds_dep(dma(DW[i], srd, SOFF, off=i*1024), need={f'{name}R{st}'}, mark={f'{name}L{st}'}))
            o.append(sop('s_add_u32', SOFF, SOFF, 16*stride))
        return o
    def reads(n):
        o = []; st = n % NS; p = n & 1
        for qt in range(4): o.append(bread(n, qt, fb(p, qt)))
        for mt in range(8):
            for u in range(2):
                o.append(lds_dep(ds_read_tr(fa(p, mt)[2*u:2*u+2], TA[mt], st*8192 + u*uoff), need={f'{name}L{st}'}, mark={f'{name}R{st}'}))
        return o
    for n in range(pre_issued, 3): s.extend(dma_step(n))
    s.extend(reads(0))
    for n in range(NK):
        rd = reads(n + 1) if n + 1 < NK else []
        dm = dma_step(n + 3) if n + 3 < NK else []
        mf = [mfma16(O(mt, qt), fa(n & 1, mt), fb(n & 1, qt), O(mt, qt) if n else 0) for mt in range(8) for qt in range(4)]
        if n == NK - 1 and after_last_reads is not None: s.extend(after_last_reads)
        gaps = [[] for _ in range(32)]
        for k, ins in enumerate(rd): gaps[k // 2].append(ins)
        g = 12
        for ins in dm:
            gaps[g].append(ins)
            if ins.kind == 'dma': g = min(31, g + 2)
        for k, m in enumerate(mf):
            a(m); s.extend(gaps[k])
    return dma_step

def build(opt=None):
    o = opt or Opt()
    at = Attn(o)
    s = []; a = s.append
    l = V(0)
    STP = Stamps(o.timing, 3)
    s.extend(STP())
    a(sload(S(4, 2), ARG_K)); a(sload(S(6, 2), ARG_V)); a(sload(S(22, 2), ARG_WS))
    a(sload(S(36, 2), ARG_WQ)); a(sload(S(38, 2), ARG_WO))
    a(raw("s_cmp_ge_u32 s2, 256")); a(raw("s_cbranch_scc1 L_k3_end", 'branch'))
    a(valu('v_lshrrev_b32', V(1), 6, V(0)))
    a(readfirstlane(S_WAVE, V(1)))
    a(valu('v_and_b32', l, 63, l))
    a(waitcnt(lgkm=0))
    if o.fine: s.extend(STP())
    a(raw("s_and_b32 s25, s2, 7", writes=[S_G])); a(raw("s_lshr_b32 s26, s2, 3", writes=[S_QB]))
    a(raw("s_lshl_b32 s27, s25, 19", writes=[S(27)]))
    a(raw("s_sub_u32 s40, 0x400000, s27", writes=[S(40)]))
    s.extend(make_srd(SRD_K, S(4, 2), S(40), add=S(27))); s.extend(make_srd(SRD_V, S(6, 2), S(40), add=S(27)))
    s.extend(make_srd(SRD_W, S(22, 2), WS_END))
    s.extend(make_srd(SRD_WQ, S(36, 2), 512*4096*2)); s.extend(make_srd(SRD_WO, S(38, 2), 4096*512*2))
    a(raw("s_lshl_b32 s21, s24, 12", writes=[S_WOFF]))
    S_RING = S(41); S_SO = S(42); S_T = S(43)
    a(raw("s_mul_i32 s41, s24, 24576", writes=[S_RING]))
    a(valu('v_lshlrev_b32', V(7), 4, l))
    if o.prefetch:
        a(raw("s_lshl_b32 s42, s26, 4", writes=[S_SO])); a(raw("s_lshl_b32 s43, s24, 2", writes=[S_T]))
        a(raw("s_add_u32 s42, s42, s43", writes=[S_SO])); a(raw("s_lshl_b32 s42, s42, 13", writes=[S_SO]))
        a(raw("s_lshl_b32 s43, s25, 10", writes=[S_T])); a(raw("s_add_u32 s42, s42, s43", writes=[S_SO]))
        for n in range(4):
            a(bload(4, V(128 + 4*n, 4), V(7), SRD_WQ, S_SO)); a(sop('s_add_u32', S_SO, S_SO, 8192))
    a(valu('v_lshlrev_b32', V(7), 4, l))
    a(raw("s_lshl_b32 s42, s26, 6", writes=[S_SO])); a(raw("s_lshl_b32 s43, s24, 4", writes=[S_T]))
    a(raw("s_add_u32 s42, s42, s43", writes=[S_SO])); a(raw("s_lshl_b32 s42, s42, 10", writes=[S_SO]))
    a(raw("s_lshl_b32 s43, s24, 14", writes=[S_T])); a(raw(f"s_add_u32 s43, s43, {XBASE}", writes=[S_T]))
    for n in range(16):
        if n % 4 == 0:
            a(smov('m0', S_T))
        a(valu('v_xor_b32', V(14 + (n & 3)), n << 4, V(7)))
        a(lds_dep(dma(V(14 + (n & 3)), SRD_W, S_SO, off=(n & 3)*1024), mark={'XN'}))
        if n % 4 == 3:
            a(sop('s_add_u32', S_SO, S_SO, 4096)); a(sop('s_add_u32', S_T, S_T, 4096))
    if o.fine: s.extend(STP())
    DW = [V(14 + i) for i in range(4)]; TA = [V(32 + i) for i in range(8)]; XA = [V(40 + i) for i in range(4)]
    dma_off_256(a, l, [V(18 + i) for i in range(4)], 8192, 'q', S_T)
    DW = [V(18 + i) for i in range(4)]
    a(raw("s_lshl_b32 s42, s25, 2", writes=[S_SO])); a(raw("s_add_u32 s42, s42, s24", writes=[S_SO]))
    a(raw("s_lshl_b32 s42, s42, 8", writes=[S_SO]))
    a(valu('v_mov_b32', V(6), S_RING))
    addr_tr256(a, l, TA, V(6), 8)
    a(valu('v_and_b32', V(1), 15, l)); a(valu('v_lshrrev_b32', V(2), 4, l))
    a(valu('v_lshlrev_b32', V(3), 10, V(1))); a(valu('v_add_u32', V(3), XBASE, V(3)))
    for k in range(4):
        a(valu('v_add_u32', V(4), 4*k, V(2))); a(valu('v_xor_b32', V(4), V(4), V(1)))
        a(valu('v_lshl_add_u32', XA[k], V(4), 4, V(3)))
    a(valu('v_lshrrev_b32', V(2), 4, l)); a(valu('v_and_b32', V(3), 15, l))
    for i in range(4):
        a(valu('v_add_u32', V(4), 4*i, V(2))); a(valu('v_xor_b32', V(4), V(4), V(3)))
        a(valu('v_lshlrev_b32', V(4), 4, V(4))); a(valu('v_lshl_add_u32', KA[i], V(3), 8, V(4)))
    a(valu('v_lshrrev_b32', V(4), 2, V(3))); a(valu('v_and_b32', V(5), 3, l))
    a(valu('v_lshl_add_u32', V(7), V(2), 2, V(4)))
    a(valu('v_and_b32', V(1), 7, V(7))); a(valu('v_lshlrev_b32', V(1), 1, V(1)))
    a(valu('v_lshlrev_b32', V(7), 8, V(7)))
    a(valu('v_and_b32', V(6), 1, V(5))); a(valu('v_lshl_add_u32', V(7), V(6), 3, V(7)))
    a(valu('v_add_u32', V(7), VBASE, V(7)))
    a(valu('v_lshrrev_b32', V(6), 1, V(5)))
    for dt in range(8):
        a(valu('v_add_u32', V(5), 2*dt, V(6))); a(valu('v_xor_b32', V(5), V(5), V(1)))
        a(valu('v_lshl_add_u32', VA[dt], V(5), 4, V(7)))
    a(valu('v_lshlrev_b32', V(5), 8, V(2))); a(valu('v_add_u32', V(5), S_WOFF, V(5)))
    for n in range(4):
        a(valu('v_add_u32', V(6), 4*n, V(2))); a(valu('v_xor_b32', V(6), V(6), V(3)))
        a(valu('v_lshl_add_u32', DK[n], V(6), 4, V(5)))
    for n in range(2):
        a(valu('v_add_u32', V(6), 4*n, V(2))); a(valu('v_lshlrev_b32', V(6), 1, V(6)))
        a(valu('v_xor_b32', V(6), V(6), V(3))); a(valu('v_lshl_add_u32', DV[n], V(6), 4, V(5)))
    if o.fine: s.extend(STP())
    def xread(n, qt, dst):
        return ds_read_b128(dst, XA[n & 3], (n >> 2)*256 + qt*16384)
    pre = []
    kv_issue = [barrier(), smov(S_TILE, 0)]
    for t in range(2): kv_issue += [ins for (tt, ins) in at.dma_ops(t, list(range(8)))]
    tmp = []
    class _A: pass
    def emit_pre():
        NS = 3
        for n in range(3):
            st = n % NS
            for h in range(2):
                a(sop('s_add_u32', 'm0', S_RING, st*8192 + h*4096)); a(nop(0))
                for i in range(4):
                    a(lds_dep(dma(DW[i], SRD_WQ, S_SO, off=i*1024), need={f'qR{st}'}, mark={f'qL{st}'}))
                a(sop('s_add_u32', S_SO, S_SO, 16*8192))
    emit_pre()
    if o.fine: s.extend(STP())
    a(waitcnt(vm=24))
    if o.fine: s.extend(STP())
    a(waitcnt(vm=24)); a(barrier())
    s.extend(STP())
    proj_gemm(a, s, TA, DW, SRD_WQ, S_SO, 8192, S_RING, xread, 1024, 'q', pre_issued=3,
              after_last_reads=[waitcnt(lgkm=0)] + kv_issue)
    s.extend(STP())
    a(smov(S(44), QSCALE))
    for i in range(4):
        for qt in range(4):
            x, y = O(2*i, qt), O(2*i+1, qt)
            for r in range(4):
                a(valu('v_mul_f32', x[r], S(44), x[r])); a(valu('v_mul_f32', y[r], S(44), y[r]))
            X0, X1, Y0, Y1 = V(48), V(49), V(50), V(51)
            a(valu('v_cvt_pk_bf16_f32', X0, x[0], x[1])); a(valu('v_cvt_pk_bf16_f32', X1, x[2], x[3]))
            a(valu('v_cvt_pk_bf16_f32', Y0, y[0], y[1])); a(valu('v_cvt_pk_bf16_f32', Y1, y[2], y[3]))
            a(permlane32_swap(X0, Y0)); a(permlane32_swap(X1, Y1))
            a(permlane16_swap(X0, Y0)); a(permlane16_swap(X1, Y1))
            q = Q(i, qt)
            a(valu('v_accvgpr_write_b32', q[0], X0)); a(valu('v_accvgpr_write_b32', q[1], X1))
            a(valu('v_accvgpr_write_b32', q[2], Y0)); a(valu('v_accvgpr_write_b32', q[3], Y1))
    for r in range(128): a(valu('v_mov_b32', V(128 + r), 0))
    for qt in range(4):
        for r in range(4): a(valu('v_mov_b32', LA[qt][r], 0))
    for r in range(4): a(valu('v_mov_b32', ONES[r], 0x3F803F80))
    s.extend(STP())
    a(waitcnt(vm=8)); a(barrier())
    s.extend(STP())
    s.extend(at.k_reads(0, 0))
    for c in range(2):
        for q2 in range(2):
            for t in range(2):
                for i in range(4):
                    a(mfma16(Sx(c, t, q2), Kf(t*4+i), Q(i, 2*c+q2), 0 if i == 0 else Sx(c, t, q2)))
    for qt in range(4):
        c, q2 = qt >> 1, qt & 1
        s0, s1 = Sx(c, 0, q2), Sx(c, 1, q2)
        m = V(4); t = V(5)
        a(valu('v_max3_f32', m, s0[0], s0[1], s0[2])); a(valu('v_max3_f32', m, m, s0[3], s1[0]))
        a(valu('v_max3_f32', m, m, s1[1], s1[2])); a(valu('v_max_f32', m, m, s1[3]))
        a(valu('v_mov_b32', t, m)); a(permlane16_swap(m, t)); a(valu('v_max_f32', m, m, t))
        a(valu('v_mov_b32', t, m)); a(permlane32_swap(m, t)); a(valu('v_max_f32', m, m, t))
        for r in range(4): a(valu('v_sub_f32', NM[qt][r], 0, m))
    pro, _, _ = auto_waits(s)
    pro = fix_hazards(pro, "k3pro")
    out = list(pro)
    pers = {}
    for j in range(33):
        dm = j <= 29
        vm_end = 8 if j <= 29 else 0
        if j == 30: vm_end = 0
        p = at.period(j, first=(j == 0), last_drain=(j == 32), dma=dm, vm_end=vm_end)
        p, _, _ = auto_waits(p)
        pers[j] = p
    errs = validate_tags([i for j in range(33) for i in pers[j]])
    for e in errs[:10]: print("DATAFLOW", e, file=sys.stderr)
    for j in range(1, 25): assert [i.text for i in pers[j]] == [i.text for i in pers[j+3]], j
    out += STP()
    out += [comment("period 0")] + fix_hazards(pers[0], "p0")
    if o.pstamps: out += STP()
    out += [smov(S(45), 9), label("L_k3_loop")]
    body = []
    for j in (1, 2, 3): body += [comment(f"period stage {j % NST}")] + pers[j]
    body += [raw("s_sub_u32 s45, s45, 1", writes=[S(45)]), raw("s_cmp_lg_u32 s45, 0"), raw("s_cbranch_scc1 L_k3_loop", 'branch')]
    errs = check_hazards(body, loop=True, name="loop")
    for e in errs[:20]: print("HAZARD", e, file=sys.stderr)
    out += body
    tail = []
    if o.pstamps: tail += STP()
    if o.prefetch:
        tail += [raw("s_lshl_b32 s46, s25, 5", writes=[S(46)]), raw("s_add_u32 s46, s46, s26", writes=[S(46)]), raw("s_lshl_b32 s46, s46, 2", writes=[S(46)]),
                 raw("s_add_u32 s46, s46, s24", writes=[S(46)]), raw("s_lshl_b32 s46, s46, 12", writes=[S(46)]),
                 valu('v_lshlrev_b32', V(7), 4, l)]
        for n in range(4): tail += [bload(4, V(24, 4), V(7), SRD_WO, S(46), off=n*1024)]
    for j in range(28, 32):
        tail += [comment(f"period {j}")] + pers[j]
        if o.pstamps: tail += STP()
    tm = STP()
    s = []; a = s.append
    DO = [V(14 + i) for i in range(4)]
    TO = [V(116 + 0), V(117), V(118), V(119), V(120), V(121), V(122), V(123)]
    dma_off_256(a, l, DO, 1024, 'o', S_T)
    a(raw("s_lshl_b32 s42, s25, 19", writes=[S_SO])); a(raw("s_lshl_b32 s43, s24, 8", writes=[S_T]))
    a(raw("s_add_u32 s42, s42, s43", writes=[S_SO]))
    for n in range(3):
        st = n
        for h in range(2):
            a(sop('s_add_u32', 'm0', S_RING, st*8192 + h*4096)); a(nop(0))
            for i in range(4):
                a(lds_dep(dma(DO[i], SRD_WO, S_SO, off=i*1024), need={f'oR{st}'}, mark={f'oL{st}'}))
            a(sop('s_add_u32', S_SO, S_SO, 16*1024))
    pre_epi = s
    drain = pers[32]
    s = []; a = s.append
    a(valu('v_mov_b32', V(6), S_RING))
    addr_tr256(a, l, TO, V(6), 4)
    LI = [V(4 + 0), V(5), V(6), V(7)]
    LI = [V(24 + i) for i in range(4)]
    for qt in range(4): a(valu('v_rcp_f32', LI[qt], LA[qt][0]))
    a(valu('v_lshlrev_b32', V(7), 4, l))
    a(raw("s_lshl_b32 s43, s24, 14", writes=[S_T])); a(raw(f"s_add_u32 s43, s43, {XBASE}", writes=[S_T]))
    a(valu('v_add_u32', V(22), S_T, V(7)))
    a(valu('v_add_u32', V(23), XBASE, V(7)))
    for kk in range(4):
        for qt in range(4):
            x, y = O(2*kk, qt), O(2*kk+1, qt)
            for r in range(4):
                a(valu('v_mul_f32', x[r], x[r], LI[qt])); a(valu('v_mul_f32', y[r], y[r], LI[qt]))
            F = V(48 + 4*((kk*4+qt) & 3), 4)
            a(valu('v_cvt_pk_bf16_f32', F[0], x[0], x[1])); a(valu('v_cvt_pk_bf16_f32', F[1], x[2], x[3]))
            a(valu('v_cvt_pk_bf16_f32', F[2], y[0], y[1])); a(valu('v_cvt_pk_bf16_f32', F[3], y[2], y[3]))
            a(ds_write(4, V(22), F, off=(kk*4+qt)*1024))
    a(waitcnt(lgkm=0)); a(barrier())
    s.extend(STP())
    def oread(n, qt, dst): return ds_read_b128(dst, V(23), (n*4+qt)*1024)
    proj_gemm(a, s, TO, DO, SRD_WO, S_SO, 1024, S_RING, oread, 4096, 'o', pre_issued=3)
    s.extend(STP())
    a(raw("s_lshl_b32 s42, s25, 5", writes=[S_SO])); a(raw("s_add_u32 s42, s42, s26", writes=[S_SO]))
    a(raw("s_lshl_b32 s42, s42, 2", writes=[S_SO])); a(raw("s_add_u32 s42, s42, s24", writes=[S_SO]))
    a(raw("s_lshl_b32 s42, s42, 14", writes=[S_SO])); a(raw(f"s_add_u32 s42, s42, {WS_PART}", writes=[S_SO]))
    for p in range(4):
        for qt in range(4):
            x, y = O(2*p, qt), O(2*p+1, qt)
            F = V(48 + 4*((p*4+qt) & 3), 4)
            a(valu('v_cvt_pk_bf16_f32', F[0], x[0], x[1])); a(valu('v_cvt_pk_bf16_f32', F[1], x[2], x[3]))
            a(valu('v_cvt_pk_bf16_f32', F[2], y[0], y[1])); a(valu('v_cvt_pk_bf16_f32', F[3], y[2], y[3]))
            a(bstore(4, F, V(7), SRD_W, S_SO, off=qt*1024))
        a(sop('s_add_u32', S_SO, S_SO, 4096))
    a(waitcnt(vm=0))
    s.extend(STP())
    s.extend(STP.flush(S_WAVE))
    epi = tail + pre_epi + drain
    rest, _, _ = auto_waits(pre_epi + drain + tm + [nop(15)] + s)
    out += fix_hazards(tail + rest, "tail")
    out.append(label("L_k3_end"))
    return emit(out)
if __name__ == "__main__":
    t = build(); print(len(t.splitlines()))
```

```python
from k_common import *
from k3_attn import (NST, KBASE, VBASE, XBASE, SRD_K, SRD_V, SRD_W, SRD_WQ, SRD_WO, S_TILE, S_WOFF, S_WAVE, S_G, S_QB, QSCALE,
                     O, Q, Kf, Vf, Sb, Sx, NM, LA, Pb, ONES, KA, VA, DK, DV, addr_tr256, dma_off_256, proj_gemm)
from k2_gemm1 import tr_addr_128, dma_off_128, gelu, LOG2E
WS_GATE = 6 << 20

class Opt:
    barrier = True
    minfill = 8; maxfill = 8; early = 1.5
    sm_rel = 4; p_lead = 2; k_span = 1.0; k_lead = 6; bar_lead = 5
    timing = False; prefetch = True; side = True
    def __init__(self, **kw): self.__dict__.update(kw)

SRD_W1 = S(48, 4); SRD_W2 = S(52, 4); SRD_DBG = S(56, 4); SRD_US = S(60, 4)
S_T64 = S(46); S_DT = S(47); S_SR = S(40); S_SKIP = S(37); S_N = S(38); S_SA = S(39); S_SB = S(36); S_XB = S(27); S_KVSKIP = S(23); S_TMP = S(43)
TA = [V(14 + i) for i in range(4)]; DA = [V(18 + i) for i in range(4)]; DB = [V(22 + i) for i in range(4)]
def sacc(i, j): return A(128 + (i*4+j)*4, 4)
def sfa(h, t): return A(192 + 16*h + 4*t, 4)
def sfb(h, t): return A(224 + 16*h + 4*t, 4) if h else A(208 + 4*t, 4)
def g2a(h, t): return A(192 + 16*h + 4*t, 4)
def g2b(h, t): return A(224 + 16*h + 4*t, 4)

class Attn:
    def __init__(self, opt): self.o = opt
    def qk_slot(self, j, kh, c):
        out = []
        for q2 in range(2):
            for t in range(2):
                for i in range(4):
                    qt = 2*c + q2; sx = Sx(c, t, q2)
                    m = mfma16(sx, Kf(t*4+i), Q(i, qt), NM[qt] if i == 0 else sx)
                    tag(m, wt=('S', j, kh, c), rt=[(Kf(t*4+i), ('K', j, kh))] + ([(sx, ('S', j, kh, c))] if i else []))
                    out.append(m)
        return out
    def pv_slot(self, j, kh, c):
        out = []
        for q2 in range(2):
            p = Pb[c][4*q2:4*q2+4]; qt = 2*c + q2
            for dt in range(8):
                m = mfma16(O(dt, qt), Vf(dt), p, O(dt, qt))
                tag(m, rt=[(Vf(dt), ('V', j, kh)), (p, ('P', j, kh, c))]); out.append(m)
            m = mfma16(LA[qt], ONES, p, LA[qt]); tag(m, rt=[(p, ('P', j, kh, c))]); out.append(m)
        return out
    def sm_list(self, j, kh, c):
        regs = []
        for q2 in range(2):
            for t in range(2):
                for r in range(4): regs.append((Sx(c, t, q2)[r], Pb[c][4*q2 + 2*t + (r >> 1)]))
        ops = []
        for n, (s, p) in enumerate(regs):
            ops.append((n, tag(valu('v_exp_f32', s, s), wt=('E', j, kh, c), rt=[(s, ('S', j, kh, c))])))
            if n & 1:
                sp = regs[n-1][0]
                ops.append((n + 1.04, tag(valu('v_cvt_pk_bf16_f32', p, sp, s), wt=('P', j, kh, c), rt=[(s, ('E', j, kh, c)), (sp, ('E', j, kh, c))])))
        return [i for (t, i) in sorted(ops, key=lambda x: x[0])]
    def k_reads(self, j, kh):
        st = j % NST
        return [tag(ds_read_b128(Kf(n), KA[n & 3], KBASE + st*16384 + kh*8192 + (n >> 2)*4096), wt=('K', j, kh)) for n in range(8)]
    def v_reads(self, j, kh):
        st = j % NST
        return [tag(ds_read_tr(Vf(dt)[2*u:2*u+2], VA[dt], st*16384 + kh*8192 + u*4096), wt=('V', j, kh)) for dt in range(8) for u in range(2)]
    def kv_dma(self, st, skip=False):
        ops = []
        for n in range(8):
            if n in (0, 4):
                base = (KBASE if n == 0 else VBASE) + st*16384
                ops.append(sop('s_add_u32', 'm0', S_WOFF, base))
                if skip: ops.append(sop('s_max_u32', 'm0', 'm0', S_KVSKIP))
                ops.append(nop(0))
            if n < 4: ops.append(dma(DK[n], SRD_K, S_TILE, off=n*1024))
            else: ops.append(dma(DV[n & 1], SRD_V, S_TILE, off=(n-4)*1024))
        ops.append(sop('s_add_u32', S_TILE, S_TILE, 16384))
        return ops

    def period(self, j, first=False, last_drain=False, kv=True, kvskip=False, side_groups=(), streams=(), pre=(), post=(), vm_end=None):
        o = self.o
        hp, hc = not first, not last_drain
        base = [self.pv_slot(j-1, 1, 0) if hp else None, self.qk_slot(j, 0, 0) if hc else None,
                self.pv_slot(j-1, 1, 1) if hp else None, self.qk_slot(j, 0, 1) if hc else None,
                self.pv_slot(j, 0, 0) if hc else None, self.qk_slot(j, 1, 0) if hc else None,
                self.pv_slot(j, 0, 1) if hc else None, self.qk_slot(j, 1, 1) if hc else None]
        lens = [18, 16]*4
        mf = []; starts = []; ends = []; side_pos = []
        for s in range(8):
            starts.append(len(mf))
            mf += base[s] if base[s] is not None else [None]*lens[s]
            ends.append(len(mf))
            for (aft, g) in side_groups:
                if aft == s:
                    side_pos.append(len(mf)); mf += g
        T = len(mf)
        self.T = T
        ops = []
        CUT0 = o.cut0; CUT1 = o.cut1
        def sm_stream(jj, kh, c, t_lo, t_hi, tpv, i0=0, i1=None, release=None):
            raw_ops = self.sm_list(jj, kh, c); n = len(raw_ops); i1 = n if i1 is None else i1
            pv = self.pv_slot(jj, kh, c); res = []
            for idx in range(i0, i1):
                ins = raw_ops[idx]
                t = t_lo + (t_hi - t_lo) * (idx - i0) / max(1, (i1 - i0)); dl = 1e9
                if ins.op == 'v_cvt_pk_bf16_f32' and tpv is not None:
                    preg = list(ins.writes)[0]
                    dl = tpv + min(q for q, m in enumerate(pv) if preg in m.reads) - o.p_lead
                res.append([t, dl, ins])
            for idx in range(len(res) - 2, -1, -1): res[idx][1] = min(res[idx][1], res[idx+1][1])
            return [Op(ins, t, release=(t_lo if release is None else release), deadline=min(dl, T - 1), stream='sm') for (t, dl, ins) in res]
        rel = o.sm_rel
        if hp:
            ops += sm_stream(j-1, 1, 0, 0, rel, starts[0], i0=CUT0, release=0)
            ops += sm_stream(j-1, 1, 1, rel, ends[1] + rel, starts[2], i0=CUT1)
        if hc:
            ops += sm_stream(j, 0, 0, ends[1] + rel, ends[3] + rel, starts[4])
            ops += sm_stream(j, 0, 1, ends[3] + rel, ends[5] + rel, starts[6])
            ops += sm_stream(j, 1, 0, ends[5] + rel, T, None, i1=CUT0)
            if CUT1: ops += sm_stream(j, 1, 1, T - 1, T, None, i1=CUT1)
        if hc:
            for (kh, ks_slot, vs_slot) in ((0, 0, 2), (1, 4, 6)):
                qk = self.qk_slot(j, kh, 0)
                for n, ins in enumerate(self.k_reads(j, kh)):
                    fu = min(q for q, m in enumerate(qk) if ins.writes & m.reads)
                    t = starts[ks_slot] + n * 18 * o.k_span / 8
                    rl = (ends[ks_slot-1] if ks_slot else -1)
                    ops.append(Op(ins, max(t, rl), release=rl - 1 if ks_slot else -1, deadline=starts[ks_slot+1] + fu - o.k_lead, stream='k'))
                pv = self.pv_slot(j, kh, 0); pvo = self.pv_slot(j, kh, 1); info = []
                for ins in self.v_reads(j, kh):
                    lu = max(q for q, m in enumerate(pvo) if ins.writes & m.reads)
                    fu = min(q for q, m in enumerate(pv) if ins.writes & m.reads)
                    nxt = starts[vs_slot+2] if vs_slot + 2 < 8 else T + 18
                    dl = nxt + fu - o.k_lead
                    if kh == 1: dl = min(dl, T - 1 - o.bar_lead)
                    info.append((starts[vs_slot] + lu + 1, dl, ins))
                info.sort(key=lambda x: x[0])
                w0 = info[0][0]; w1 = min(x[1] for x in info)
                for n, (r, dl, ins) in enumerate(info):
                    ops.append(Op(ins, max(r, w0 + (w1 - w0) * n / len(info)), release=r, deadline=dl, stream='v'))
        if kv and hc:
            lst = group_dma(self.kv_dma((j + 2) % NST, skip=kvskip))
            pos = o.kv_pos; n = 0
            for ins in lst:
                if ins.kind == 'dma':
                    t = pos[n] * T; n += 1
                else: t = (pos[min(n, 7)] * T - 1.0) if n < 8 else pos[7]*T + 0.3
                ops.append(Op(ins, t, release=0, stream='dma'))
        for (name, lst) in streams:
            for (ft, fr, ins) in lst:
                ops.append(Op(ins, ft * T, release=fr * T, stream=name))
        seq, fills = list_schedule(mf, ops, o.minfill, o.maxfill, ahead=o.early)
        self.fills = fills
        seq = list(pre) + expand(seq) + list(post)
        if hc:
            nvm = sum(1 for i in seq if i.kind in ('dma', 'vload', 'vstore', 'vatomic')) if vm_end is None else vm_end
            seq.append(waitcnt(vm=nvm, lgkm=0))
            if o.barrier: seq.append(barrier())
        return seq
Opt.cut0 = 21; Opt.cut1 = 0
Opt.kv_pos = [0.147, 0.184, 0.22, 0.25, 0.647, 0.684, 0.72, 0.75]

def side_dma(srdA, soA, strideA, srdB, soB, strideB, offsA, offsB, stage_tag, skip):
    o = []
    o.append(smov('m0', S_SR))
    if skip: o.append(sop('s_max_u32', 'm0', 'm0', S_SKIP))
    o.append(nop(0))
    for i in range(4): o.append(lds_dep(dma(offsA[i], srdA, soA, off=i*1024), need={f'sR{stage_tag}'}, mark={f'sL{stage_tag}'}))
    o.append(sop('s_add_u32', soA, soA, strideA))
    o.append(sop('s_add_u32', 'm0', S_SR, 4096))
    if skip: o.append(sop('s_max_u32', 'm0', 'm0', S_SKIP))
    o.append(nop(0))
    for i in range(4): o.append(lds_dep(dma(offsB[i], srdB, soB, off=i*1024), need={f'sR{stage_tag}'}, mark={f'sL{stage_tag}'}))
    o.append(sop('s_add_u32', soB, soB, strideB))
    return o
def spread(lst, f0, f1, rel=None):
    n = sum(1 for i in lst if cost(i) > 0) or 1
    out = []; k = 0
    for ins in lst:
        t = f0 + (f1 - f0) * k / n
        out.append((t, f0 if rel is None else rel, ins))
        if cost(ins) > 0: k += 1
    return out
def toggle_side():
    return [valu('v_xor_b32', TA[t], 8192, TA[t]) for t in range(4)] + [sop('s_xor_b32', S_SR, S_SR, 8192)]

def g1_parts(n, in_loop):
    st = n & 1
    rd = []
    for t in range(4):
        for u in range(2): rd.append(lds_dep(ds_read_tr(sfa(0, t)[2*u:2*u+2], TA[t], u*2048), need={f'sL{st}'}, mark={f'sR{st}'}))
    for t in range(4):
        for u in range(2): rd.append(lds_dep(ds_read_tr(sfb(0, t)[2*u:2*u+2], TA[t], 4096 + u*2048), need={f'sL{st}'}, mark={f'sR{st}'}))
    mf = [mfma16(sacc(ft, dt), sfa(0, ft), sfb(0, dt), sacc(ft, dt) if n else 0) for ft in range(4) for dt in range(4)]
    dm = []
    if in_loop:
        dm = [scmp('s_cmp_gt_u32', S_N, 13), I(f"s_cselect_b32 {S_SKIP}, 0x30000, 0", 'salu', reads=['scc'], writes=[S_SKIP]), sop('s_add_u32', S_N, S_N, 1)]
        dm += side_dma(SRD_W1, S_SA, 32*3584, SRD_W, S_SB, 32*1024, DA, DB, st, True)
    elif n + 2 <= 15:
        dm = [sop('s_add_u32', S_N, S_N, 1)] + side_dma(SRD_W1, S_SA, 32*3584, SRD_W, S_SB, 32*1024, DA, DB, st, False)
    return rd, mf, dm
def g2_parts(i):
    st = i & 1
    rd = []
    for h in range(2):
        for t in range(4):
            for u in range(2): rd.append(lds_dep(ds_read_tr(g2b(h, t)[2*u:2*u+2], TA[t], h*4096 + u*2048), need={f'sL{st}'}, mark={f'sR{st}'}))
    mfs = [[mfma16(sacc(mt, s_), g2a(h, mt), g2b(h, s_), sacc(mt, s_) if (i or h) else 0) for mt in range(4) for s_ in range(4)] for h in range(2)]
    return rd, mfs
def g2_dma(st, skip):
    return side_dma(SRD_W2, S_SA, 32*4096, SRD_W2, S_SA, 32*4096, DA, DA, st, skip)
def g2_uloads():
    o = []
    for h in range(2):
        for t in range(4): o.append(bload(4, g2a(h, t), DB[t], SRD_W, S_SB, mods="sc1"))
        o.append(sop('s_add_u32', S_SB, S_SB, 1024))
    return o

def build(opt=None):
    o = opt or Opt()
    at = Attn(o)
    STP = Stamps(o.timing, 3)
    s = []; a = s.append
    l = V(0)
    s.extend(STP())
    a(sload(S(4, 2), ARG_K)); a(sload(S(6, 2), ARG_V)); a(sload(S(22, 2), ARG_WS))
    a(sload(S(36, 2), ARG_WQ)); a(sload(S(38, 2), ARG_WO))
    a(sload(S(62, 2), ARG_W1)); a(sload(S(60, 2), ARG_W2)); a(sload(S(58, 2), ARG_DBG))
    a(raw("s_cmp_ge_u32 s2, 256")); a(raw("s_cbranch_scc1 L_k3_end", 'branch'))
    a(valu('v_lshrrev_b32', V(1), 6, V(0)))
    a(readfirstlane(S_WAVE, V(1)))
    a(valu('v_and_b32', l, 63, l))
    a(waitcnt(lgkm=0))
    a(raw("s_and_b32 s25, s2, 7", writes=[S_G])); a(raw("s_lshr_b32 s26, s2, 3", writes=[S_QB]))
    a(raw("s_lshl_b32 s27, s25, 19", writes=[S(27)]))
    a(raw("s_sub_u32 s40, 0x400000, s27", writes=[S(40)]))
    s.extend(make_srd(SRD_K, S(4, 2), S(40), add=S(27))); s.extend(make_srd(SRD_V, S(6, 2), S(40), add=S(27)))
    s.extend(make_srd(SRD_W, S(22, 2), WS_END))
    s.extend(make_srd(SRD_WQ, S(36, 2), 512*4096*2)); s.extend(make_srd(SRD_WO, S(38, 2), 4096*512*2))
    a(raw("s_lshr_b32 s46, s26, 3", writes=[S_T64])); a(raw("s_lshl_b32 s46, s46, 3", writes=[S_T64])); a(raw("s_add_u32 s46, s46, s25", writes=[S_T64]))
    a(raw("s_and_b32 s47, s26, 7", writes=[S_DT]))
    a(raw("s_cmp_lt_u32 s46, 28"))
    a(raw(f"s_cselect_b32 s44, {2048*1792*2}, 0", writes=[S(44)]))
    a(raw(f"s_cselect_b32 s45, {WS_END}, 0", writes=[S(45)]))
    s.extend(make_srd(SRD_W1, S(62, 2), S(44)))
    s.extend(make_srd(SRD_W2, S(60, 2), 1792*2048*2))
    s.extend(make_srd(SRD_DBG, S(58, 2), 256))
    s.extend(make_srd(SRD_US, S(22, 2), S(45)))
    a(raw("s_lshl_b32 s21, s24, 12", writes=[S_WOFF]))
    S_RING = S(41); S_SO = S(42); S_T = S(43)
    a(raw("s_mul_i32 s41, s24, 24576", writes=[S_RING]))
    a(valu('v_lshlrev_b32', V(7), 4, l))
    if o.prefetch:
        a(raw("s_lshl_b32 s42, s26, 4", writes=[S_SO])); a(raw("s_lshl_b32 s43, s24, 2", writes=[S_T]))
        a(raw("s_add_u32 s42, s42, s43", writes=[S_SO])); a(raw("s_lshl_b32 s42, s42, 13", writes=[S_SO]))
        a(raw("s_lshl_b32 s43, s25, 10", writes=[S_T])); a(raw("s_add_u32 s42, s42, s43", writes=[S_SO]))
        for n in range(4):
            a(bload(4, V(128 + 4*n, 4), V(7), SRD_WQ, S_SO)); a(sop('s_add_u32', S_SO, S_SO, 8192))
    a(raw("s_lshl_b32 s42, s26, 6", writes=[S_SO])); a(raw("s_lshl_b32 s43, s24, 4", writes=[S_T]))
    a(raw("s_add_u32 s42, s42, s43", writes=[S_SO])); a(raw("s_lshl_b32 s42, s42, 10", writes=[S_SO]))
    a(raw("s_lshl_b32 s43, s24, 14", writes=[S_T])); a(raw(f"s_add_u32 s43, s43, {XBASE}", writes=[S_T]))
    for n in range(16):
        if n % 4 == 0: a(smov('m0', S_T))
        a(valu('v_xor_b32', V(14 + (n & 3)), n << 4, V(7)))
        a(lds_dep(dma(V(14 + (n & 3)), SRD_W, S_SO, off=(n & 3)*1024), mark={'XN'}))
        if n % 4 == 3:
            a(sop('s_add_u32', S_SO, S_SO, 4096)); a(sop('s_add_u32', S_T, S_T, 4096))
    PTA = [V(32 + i) for i in range(8)]; XA = [V(40 + i) for i in range(4)]; DW = [V(44 + i) for i in range(4)]
    dma_off_256(a, l, DW, 8192, 'q', S_T)
    a(raw("s_lshl_b32 s42, s25, 2", writes=[S_SO])); a(raw("s_add_u32 s42, s42, s24", writes=[S_SO]))
    a(raw("s_lshl_b32 s42, s42, 8", writes=[S_SO]))
    for n in range(3):
        for h in range(2):
            a(sop('s_add_u32', 'm0', S_RING, n*8192 + h*4096)); a(nop(0))
            for i in range(4): a(lds_dep(dma(DW[i], SRD_WQ, S_SO, off=i*1024), need={f'qR{n}'}, mark={f'qL{n}'}))
            a(sop('s_add_u32', S_SO, S_SO, 16*8192))
    a(valu('v_mov_b32', V(6), S_RING))
    addr_tr256(a, l, PTA, V(6), 8)
    a(valu('v_and_b32', V(1), 15, l)); a(valu('v_lshrrev_b32', V(2), 4, l))
    a(valu('v_lshlrev_b32', V(3), 10, V(1))); a(valu('v_add_u32', V(3), XBASE, V(3)))
    for k in range(4):
        a(valu('v_add_u32', V(4), 4*k, V(2))); a(valu('v_xor_b32', V(4), V(4), V(1)))
        a(valu('v_lshl_add_u32', XA[k], V(4), 4, V(3)))
    a(valu('v_lshrrev_b32', V(2), 4, l)); a(valu('v_and_b32', V(3), 15, l))
    for i in range(4):
        a(valu('v_add_u32', V(4), 4*i, V(2))); a(valu('v_xor_b32', V(4), V(4), V(3)))
        a(valu('v_lshlrev_b32', V(4), 4, V(4))); a(valu('v_lshl_add_u32', KA[i], V(3), 8, V(4)))
    a(valu('v_lshrrev_b32', V(4), 2, V(3))); a(valu('v_and_b32', V(5), 3, l))
    a(valu('v_lshl_add_u32', V(7), V(2), 2, V(4)))
    a(valu('v_and_b32', V(1), 7, V(7))); a(valu('v_lshlrev_b32', V(1), 1, V(1)))
    a(valu('v_lshlrev_b32', V(7), 8, V(7)))
    a(valu('v_and_b32', V(6), 1, V(5))); a(valu('v_lshl_add_u32', V(7), V(6), 3, V(7)))
    a(valu('v_add_u32', V(7), VBASE, V(7)))
    a(valu('v_lshrrev_b32', V(6), 1, V(5)))
    for dt in range(8):
        a(valu('v_add_u32', V(5), 2*dt, V(6))); a(valu('v_xor_b32', V(5), V(5), V(1)))
        a(valu('v_lshl_add_u32', VA[dt], V(5), 4, V(7)))
    a(valu('v_lshlrev_b32', V(5), 8, V(2))); a(valu('v_add_u32', V(5), S_WOFF, V(5)))
    for n in range(4):
        a(valu('v_add_u32', V(6), 4*n, V(2))); a(valu('v_xor_b32', V(6), V(6), V(3)))
        a(valu('v_lshl_add_u32', DK[n], V(6), 4, V(5)))
    for n in range(2):
        a(valu('v_add_u32', V(6), 4*n, V(2))); a(valu('v_lshlrev_b32', V(6), 1, V(6)))
        a(valu('v_xor_b32', V(6), V(6), V(3))); a(valu('v_lshl_add_u32', DV[n], V(6), 4, V(5)))
    a(raw("s_lshl_b32 s27, s24, 14", writes=[S_XB])); a(raw(f"s_add_u32 s27, s27, {XBASE}", writes=[S_XB]))
    a(smov(S_SR, S_XB))
    a(valu('v_mov_b32', V(26), S_XB))
    tr_addr_128(a, l, TA, V(26), V(1), V(2), V(3), V(4))
    dma_off_128(a, l, DA, 3584, V(1), V(2), V(3), s_tmp=S_T)
    dma_off_128(a, l, DB, 1024, V(1), V(2), V(3), s_tmp=S_T)
    a(raw("s_lshl_b32 s44, s24, 9", writes=[S(44)]))
    a(raw("s_mul_i32 s39, s44, 3584", writes=[S_SA])); a(raw("s_lshl_b32 s45, s46, 7", writes=[S(45)])); a(raw("s_add_u32 s39, s39, s45", writes=[S_SA]))
    a(raw("s_lshl_b32 s36, s44, 10", writes=[S_SB])); a(raw("s_lshl_b32 s45, s47, 7", writes=[S(45)])); a(raw("s_add_u32 s36, s36, s45", writes=[S_SB]))
    a(raw(f"s_add_u32 s36, s36, {WS_H}", writes=[S_SB]))
    a(smov(S_N, 0)); a(smov(S_SKIP, 0))
    a(waitcnt(vm=24)); a(barrier())
    s.extend(STP())
    def xread(n, qt, dst): return ds_read_b128(dst, XA[n & 3], (n >> 2)*256 + qt*16384)
    kv_issue = [barrier(), smov(S_TILE, 0)]
    kv_issue += at.kv_dma(0)
    if o.side: kv_issue += side_dma(SRD_W1, S_SA, 32*3584, SRD_W, S_SB, 32*1024, DA, DB, 0, False) + [sop('s_xor_b32', S_SR, S_SR, 8192)]
    kv_issue += at.kv_dma(1)
    if o.side: kv_issue += side_dma(SRD_W1, S_SA, 32*3584, SRD_W, S_SB, 32*1024, DA, DB, 1, False) + [sop('s_xor_b32', S_SR, S_SR, 8192)]
    proj_gemm(a, s, PTA, DW, SRD_WQ, S_SO, 8192, S_RING, xread, 1024, 'q', pre_issued=3, after_last_reads=[waitcnt(lgkm=0)] + kv_issue)
    s.extend(STP())
    a(smov(S(44), QSCALE))
    for i in range(4):
        for qt in range(4):
            x, y = O(2*i, qt), O(2*i+1, qt)
            for r in range(4):
                a(valu('v_mul_f32', x[r], S(44), x[r])); a(valu('v_mul_f32', y[r], S(44), y[r]))
            X0, X1, Y0, Y1 = V(48), V(49), V(50), V(51)
            a(valu('v_cvt_pk_bf16_f32', X0, x[0], x[1])); a(valu('v_cvt_pk_bf16_f32', X1, x[2], x[3]))
            a(valu('v_cvt_pk_bf16_f32', Y0, y[0], y[1])); a(valu('v_cvt_pk_bf16_f32', Y1, y[2], y[3]))
            a(permlane32_swap(X0, Y0)); a(permlane32_swap(X1, Y1))
            a(permlane16_swap(X0, Y0)); a(permlane16_swap(X1, Y1))
            q = Q(i, qt)
            a(valu('v_accvgpr_write_b32', q[0], X0)); a(valu('v_accvgpr_write_b32', q[1], X1))
            a(valu('v_accvgpr_write_b32', q[2], Y0)); a(valu('v_accvgpr_write_b32', q[3], Y1))
    for r in range(128): a(valu('v_mov_b32', V(128 + r), 0))
    for qt in range(4):
        for r in range(4): a(valu('v_mov_b32', LA[qt][r], 0))
    for r in range(4): a(valu('v_mov_b32', ONES[r], 0x3F803F80))
    s.extend(STP())
    a(waitcnt(vm=(24 if o.side else 8))); a(barrier())
    s.extend(at.k_reads(0, 0))
    for c in range(2):
        for q2 in range(2):
            for t in range(2):
                for i in range(4): a(mfma16(Sx(c, t, q2), Kf(t*4+i), Q(i, 2*c+q2), 0 if i == 0 else Sx(c, t, q2)))
    for qt in range(4):
        c, q2 = qt >> 1, qt & 1
        s0, s1 = Sx(c, 0, q2), Sx(c, 1, q2); m = V(4); t = V(5)
        a(valu('v_max3_f32', m, s0[0], s0[1], s0[2])); a(valu('v_max3_f32', m, m, s0[3], s1[0]))
        a(valu('v_max3_f32', m, m, s1[1], s1[2])); a(valu('v_max_f32', m, m, s1[3]))
        a(valu('v_mov_b32', t, m)); a(permlane16_swap(m, t)); a(valu('v_max_f32', m, m, t))
        a(valu('v_mov_b32', t, m)); a(permlane32_swap(m, t)); a(valu('v_max_f32', m, m, t))
        for r in range(4): a(valu('v_sub_f32', NM[qt][r], 0, m))
    s.extend(STP())
    pro = s
    B1 = S(28, 4); B2 = S(32 - 4, 4)
    def scratch_write():
        o_ = [valu('v_lshlrev_b32', V(27), 4, l), valu('v_add_u32', V(26), S_XB, V(27))]
        for i in range(4):
            for j in range(4): o_.append(ds_write(4, V(26), sacc(i, j), off=(i*4+j)*1024))
        o_ += [raw("s_lshl_b32 s43, s24, 10", writes=[S_TMP]), raw(f"s_add_u32 s43, s43, {XBASE}", writes=[S_TMP]), valu('v_add_u32', V(27), S_TMP, V(27))]
        return o_
    def scratch_reads():
        return [ds_read_b128(A(192 + (i*4+w)*4, 4), V(27), w*16384 + i*4096) for i in range(4) for w in range(4)]
    def sum4(i, r, x, t):
        return [valu('v_accvgpr_read_b32', x, A(192 + (i*4+0)*4 + r)), valu('v_accvgpr_read_b32', t, A(192 + (i*4+1)*4 + r)),
                valu('v_add_f32', x, x, t), valu('v_accvgpr_read_b32', t, A(192 + (i*4+2)*4 + r)),
                valu('v_add_f32', x, x, t), valu('v_accvgpr_read_b32', t, A(192 + (i*4+3)*4 + r)), valu('v_add_f32', x, x, t)]
    per = {}
    def side_spec(j):
        kw = dict(first=(j == 0), last_drain=(j == 32), kv=(j <= 29))
        if not o.side: return kw
        if j <= 15:
            rd, mf, dm = g1_parts(j, in_loop=(j >= 1))
            kw['side_groups'] = [(5, mf)]
            kw['streams'] = [('srd', spread(rd, 0.05, 0.45)), ('sdm', spread(dm, 0.50, 0.62) if False else spread(group_dma(dm), 0.80, 0.97, rel=0.5))]
            kw['post'] = toggle_side()
        elif j == 16:
            pre = [sload(S(44, 2), ARG_B1), waitcnt(lgkm=0)] + make_srd(B1, S(44, 2), 1792*2)
            bl = [valu('v_lshrrev_b32', V(1), 4, l), valu('v_lshlrev_b32', V(1), 3, V(1)), raw("s_lshl_b32 s44, s46, 7", writes=[S(44)])]
            bl += [bload(2, V(18 + 2*ft, 2), V(1), B1, S(44), off=32*ft) for ft in range(4)]
            kw['pre'] = pre
            kw['streams'] = [('sw', spread(scratch_write(), 0.1, 0.7)), ('sb', spread(bl, 0.05, 0.1))]
        elif j == 17:
            c = scratch_reads()
            comp = [smov(S(44), 0.044715), smov(S(45), -2.0*0.7978845608028654*LOG2E)]
            comp += [raw("s_lshl_b32 s43, s47, 2", writes=[S_TMP]), raw("s_add_u32 s43, s43, s24", writes=[S_TMP]), raw("s_mul_i32 s43, s43, 56", writes=[S_TMP]),
                     raw("s_lshl_b32 s39, s46, 1", writes=[S_SA]), raw("s_add_u32 s43, s43, s39", writes=[S_TMP]), raw("s_lshl_b32 s43, s43, 10", writes=[S_TMP]),
                     raw(f"s_add_u32 s43, s43, {WS_U}", writes=[S_TMP]), valu('v_lshlrev_b32', V(26), 4, l)]
            for ft in range(4):
                for r in range(4):
                    x = V(2 + r)
                    comp += sum4(ft, r, x, V(6))
                    b = V(18 + 2*ft + (r >> 1))
                    comp.append(valu('v_and_b32', V(6), 0xffff0000, b) if r & 1 else valu('v_lshlrev_b32', V(6), 16, b))
                    comp.append(valu('v_add_f32', x, x, V(6)))
                    g = []; gelu(g.append, x, V(7), V(1), S(44), S(45)); comp += g
                q = V(28 + 2*(ft & 1), 2)
                comp += [valu('v_cvt_pk_bf16_f32', q[0], V(2), V(3)), valu('v_cvt_pk_bf16_f32', q[1], V(4), V(5))]
                if ft & 1: comp.append(bstore(4, V(28, 4), V(26), SRD_US, S_TMP, off=(ft >> 1)*1024, mods="sc1"))
            kw['streams'] = [('srd', spread(c, 0.0, 0.15)), ('scomp', spread(comp, 0.15, 0.98))]
        elif j == 18:
            su = []
            dma_off_128(su.append, l, DA, 4096, V(1), V(2), V(3), s_tmp=S_TMP)
            su += [valu('v_lshlrev_b32', DB[0], 4, l)] + [valu('v_add_u32', DB[t], 56*1024, DB[t-1]) for t in range(1, 4)]
            su += [raw("s_mul_i32 s39, s24, 448*4096", writes=[S_SA]), raw("s_lshl_b32 s43, s46, 7", writes=[S_TMP]), raw("s_add_u32 s39, s39, s43", writes=[S_SA]),
                   raw("s_mul_i32 s36, s47, 4*56", writes=[S_SB]), raw("s_mul_i32 s43, s24, 14", writes=[S_TMP]), raw("s_add_u32 s36, s36, s43", writes=[S_SB]),
                   raw("s_lshl_b32 s36, s36, 10", writes=[S_SB]), raw(f"s_add_u32 s36, s36, {WS_U}", writes=[S_SB]), smov(S_N, 0), smov(S_SKIP, 0)]
            kw['streams'] = [('ssu', spread(su, 0.1, 0.9))]
        elif j == 19:
            sig = [valu('v_mov_b32', V(2), 1), valu('v_lshlrev_b32', V(1), 8, l),
                   raw("s_lshl_b32 s43, s47, 2", writes=[S_TMP]), raw("s_cmp_eq_u32 s24, 0"), raw("s_cselect_b32 s44, s43, 0x1000", reads=['scc'], writes=[S(44)]),
                   raw("s_cmp_lt_u32 s46, 28"), raw("s_cselect_b32 s44, s44, 0x1000", reads=['scc'], writes=[S(44)]),
                   I(f"buffer_atomic_add v2, v1, {SRD_DBG}, s44 offen sc1", 'vatomic', reads=[V(2), V(1), SRD_DBG, S(44)], writes=[])]
            kw['pre'] = sig
            st = g2_dma(0, False) + [sop('s_xor_b32', S_SR, S_SR, 8192)]
            extra = []
            if o.prefetch:
                extra = [raw("s_lshl_b32 s44, s25, 5", writes=[S(44)]), raw("s_add_u32 s44, s44, s26", writes=[S(44)]), raw("s_lshl_b32 s44, s44, 2", writes=[S(44)]),
                         raw("s_add_u32 s44, s44, s24", writes=[S(44)]), raw("s_lshl_b32 s44, s44, 12", writes=[S(44)])]
                extra += [bload(4, A(240, 4), DB[0], SRD_WO, S(44), off=n*1024) for n in range(4)]
            kw['streams'] = [('sdm', spread(group_dma(st), 0.3, 0.6)), ('spf', spread(extra, 0.8, 0.95))]
        elif j == 20:
            kw['pre'] = [valu('v_mov_b32', V(1), 0), raw("s_lshl_b32 s43, s47, 2", writes=[S_TMP]), bload(1, V(6), V(1), SRD_DBG, S_TMP, mods="sc1")]
            st = g2_dma(1, False) + [sop('s_xor_b32', S_SR, S_SR, 8192)]
            kw['streams'] = [('sdm', spread(group_dma(st), 0.3, 0.6))]
            kw['post'] = [readfirstlane(S(44), V(6)), smov(S(45), 0), label("L_k3_poll"), scmp('s_cmp_ge_u32', S(44), 28), raw("s_cbranch_scc1 L_k3_pollok", 'branch'),
                          raw("s_sleep 8"), bload(1, V(6), V(1), SRD_DBG, S_TMP, mods="sc1"), waitcnt(vm=0), readfirstlane(S(44), V(6)),
                          sop('s_add_u32', S(45), S(45), 1), scmp('s_cmp_lt_u32', S(45), 0x40000), raw("s_cbranch_scc1 L_k3_poll", 'branch'), label("L_k3_pollok")]
            kw['vm_end'] = 16
        elif j == 21:
            z = [valu('v_accvgpr_write_b32', A(128 + r), 0) for r in range(64)]
            kw['streams'] = [('sul', spread(g2_uloads(), 0.05, 0.3)), ('sz', spread(z, 0.1, 0.95))]
        elif 22 <= j <= 28:
            i = j - 22
            rd, mfs = g2_parts(i if i else 1)
            rd, _ = g2_parts(i)
            kw['side_groups'] = [(3, mfs[0]), (5, mfs[1])]
            stl = [('srd', spread(rd, 0.02, 0.36))]
            if j <= 27:
                dm = [scmp('s_cmp_gt_u32', S_N, 4), I(f"s_cselect_b32 {S_SKIP}, 0x30000, 0", 'salu', reads=['scc'], writes=[S_SKIP]), sop('s_add_u32', S_N, S_N, 1)]
                dm += g2_dma(i & 1, True)
                stl += [('sdm', spread(group_dma(dm), 0.55, 0.8, rel=0.45)), ('sul', spread(g2_uloads(), 0.84, 0.98, rel=0.82))]
            kw['streams'] = stl
            kw['post'] = toggle_side()
        elif j == 29:
            pre = [sload(S(44, 2), ARG_B2), waitcnt(lgkm=0)] + make_srd(B1, S(44, 2), 2048*2)
            bl = [valu('v_and_b32', V(1), 15, l), raw("s_lshl_b32 s44, s46, 6", writes=[S(44)]), raw("s_lshl_b32 s45, s24, 4", writes=[S(45)]),
                  raw("s_add_u32 s44, s44, s45", writes=[S(44)]), valu('v_add_u32', V(1), S(44), V(1)), valu('v_lshlrev_b32', V(1), 1, V(1)), bload_ushort(V(18), V(1), B1)]
            kw['pre'] = pre
            kw['streams'] = [('sw', spread(scratch_write(), 0.1, 0.7)), ('sb', spread(bl, 0.05, 0.1))]
        elif j == 30:
            c = scratch_reads()
            comp = [smov(S(44), -LOG2E), valu('v_lshlrev_b32', V(18), 16, V(18))]
            comp += [raw("s_lshr_b32 s43, s47, 1", writes=[S_TMP]), raw("s_lshl_b32 s45, s46, 2", writes=[S(45)]), raw("s_add_u32 s43, s43, s45", writes=[S_TMP]),
                     raw("s_lshl_b32 s43, s43, 2", writes=[S_TMP]), raw("s_and_b32 s45, s47, 1", writes=[S(45)]), raw("s_lshl_b32 s45, s45, 1", writes=[S(45)]),
                     raw("s_add_u32 s43, s43, s45", writes=[S_TMP]), raw("s_lshl_b32 s43, s43, 2", writes=[S_TMP]), raw("s_add_u32 s43, s43, s24", writes=[S_TMP]),
                     raw("s_lshl_b32 s43, s43, 10", writes=[S_TMP]), raw(f"s_add_u32 s43, s43, {WS_GATE}", writes=[S_TMP]), valu('v_lshlrev_b32', V(26), 4, l)]
            for mt in range(4):
                for r in range(4):
                    y = V(2 + r)
                    comp += sum4(mt, r, y, V(6))
                    comp += [valu('v_add_f32', y, y, V(18)), valu('v_mul_f32', V(7), S(44), y), valu('v_exp_f32', V(7), V(7)), valu('v_add_f32', V(7), 1.0, V(7)),
                             valu('v_rcp_f32', V(7), V(7)), valu('v_mul_f32', y, y, V(7))]
                q = V(28 + 2*(mt & 1), 2)
                comp += [valu('v_cvt_pk_bf16_f32', q[0], V(2), V(3)), valu('v_cvt_pk_bf16_f32', q[1], V(4), V(5))]
                if mt & 1:
                    comp.append(bstore(4, V(28, 4), V(26), SRD_W, S_TMP))
                    comp.append(sop('s_add_u32', S_TMP, S_TMP, 4096))
            kw['streams'] = [('srd', spread(c, 0.0, 0.15)), ('scomp', spread(comp, 0.15, 0.98))]
        return kw
    seqs = [('pro', pro)]
    for j in range(33):
        p = at.period(j, **side_spec(j))
        seqs.append((j, [label(f"@@P{j}")] + p))
    s = []; a = s.append
    DO = [V(14 + i) for i in range(4)]
    TO = [V(116 + i) for i in range(8)]
    dma_off_256(a, l, DO, 1024, 'o', S_T)
    a(raw("s_lshl_b32 s42, s25, 19", writes=[S_SO])); a(raw("s_lshl_b32 s43, s24, 8", writes=[S_T]))
    a(raw("s_add_u32 s42, s42, s43", writes=[S_SO]))
    for n in range(3):
        for h in range(2):
            a(sop('s_add_u32', 'm0', S_RING, n*8192 + h*4096)); a(nop(0))
            for i in range(4): a(lds_dep(dma(DO[i], SRD_WO, S_SO, off=i*1024), need={f'oR{n}'}, mark={f'oL{n}'}))
            a(sop('s_add_u32', S_SO, S_SO, 16*1024))
    pre_epi = s
    s = []; a = s.append
    a(label("@@EPI"))
    a(nop(7))
    a(valu('v_mov_b32', V(6), S_RING))
    addr_tr256(a, l, TO, V(6), 4)
    LI = [V(24 + i) for i in range(4)]
    for qt in range(4): a(valu('v_rcp_f32', LI[qt], LA[qt][0]))
    a(valu('v_lshlrev_b32', V(7), 4, l))
    a(raw("s_lshl_b32 s43, s24, 14", writes=[S_T])); a(raw(f"s_add_u32 s43, s43, {XBASE}", writes=[S_T]))
    a(valu('v_add_u32', V(22), S_T, V(7))); a(valu('v_add_u32', V(23), XBASE, V(7)))
    for kk in range(4):
        for qt in range(4):
            x, y = O(2*kk, qt), O(2*kk+1, qt)
            for r in range(4):
                a(valu('v_mul_f32', x[r], x[r], LI[qt])); a(valu('v_mul_f32', y[r], y[r], LI[qt]))
            F = V(48 + 4*((kk*4+qt) & 3), 4)
            a(valu('v_cvt_pk_bf16_f32', F[0], x[0], x[1])); a(valu('v_cvt_pk_bf16_f32', F[1], x[2], x[3]))
            a(valu('v_cvt_pk_bf16_f32', F[2], y[0], y[1])); a(valu('v_cvt_pk_bf16_f32', F[3], y[2], y[3]))
            a(ds_write(4, V(22), F, off=(kk*4+qt)*1024))
    a(waitcnt(lgkm=0)); a(barrier())
    s.extend(STP())
    def oread(n, qt, dst): return ds_read_b128(dst, V(23), (n*4+qt)*1024)
    proj_gemm(a, s, TO, DO, SRD_WO, S_SO, 1024, S_RING, oread, 4096, 'o', pre_issued=3)
    s.extend(STP())
    a(raw("s_lshl_b32 s42, s25, 5", writes=[S_SO])); a(raw("s_add_u32 s42, s42, s26", writes=[S_SO]))
    a(raw("s_lshl_b32 s42, s42, 2", writes=[S_SO])); a(raw("s_add_u32 s42, s42, s24", writes=[S_SO]))
    a(raw("s_lshl_b32 s42, s42, 14", writes=[S_SO])); a(raw(f"s_add_u32 s42, s42, {WS_PART}", writes=[S_SO]))
    for p in range(4):
        for qt in range(4):
            x, y = O(2*p, qt), O(2*p+1, qt)
            F = V(48 + 4*((p*4+qt) & 3), 4)
            a(valu('v_cvt_pk_bf16_f32', F[0], x[0], x[1])); a(valu('v_cvt_pk_bf16_f32', F[1], x[2], x[3]))
            a(valu('v_cvt_pk_bf16_f32', F[2], y[0], y[1])); a(valu('v_cvt_pk_bf16_f32', F[3], y[2], y[3]))
            a(bstore(4, F, V(7), SRD_W, S_SO, off=qt*1024))
        a(sop('s_add_u32', S_SO, S_SO, 4096))
    a(waitcnt(vm=0))
    s.extend(STP())
    s.extend(STP.flush(S_WAVE))
    epi = s
    full = []
    for (name, seq) in seqs:
        if name == 32: full += pre_epi
        full += seq
    full += epi
    full, _, _ = auto_waits(full)
    errs = validate_tags(full)
    for e in errs[:10]: print("DATAFLOW", e, file=sys.stderr)
    parts = {}; cur = 'pro'; parts[cur] = []
    for ins in full:
        if ins.kind == 'label' and ins.text.startswith('@@'):
            cur = ins.text[2:-1]; parts[cur] = []
        else: parts[cur].append(ins)
    P = lambda j: parts[f'P{j}']
    txt = lambda j: [i.text for i in P(j)]
    def loop(first_j, n_iter, lbl, cnt):
        body = []
        for k in range(3):
            base = list(P(first_j + k))
            for it in range(1, n_iter):
                other = P(first_j + 3*it + k)
                assert len(other) == len(base), f"loop {lbl}: period {first_j+k} vs {first_j+3*it+k} length {len(base)} {len(other)}"
                for idx, (x, y) in enumerate(zip(base, other)):
                    if x.text != y.text:
                        assert x.kind == 'wait' and y.kind == 'wait' and (x.vm is None) == (y.vm is None) and (x.lgkm is None) == (y.lgkm is None), (lbl, x.text, y.text)
                        base[idx] = waitcnt(vm=None if x.vm is None else min(x.vm, y.vm), lgkm=None if x.lgkm is None else min(x.lgkm, y.lgkm))
            body += [comment(f"period {first_j+k} (+3n)")] + base
        body += [sop('s_sub_u32', cnt, cnt, 1), scmp('s_cmp_lg_u32', cnt, 0), raw(f"s_cbranch_scc1 {lbl}", 'branch')]
        errs = check_hazards(body, loop=True, name=lbl)
        for e in errs[:20]: print("HAZARD", e, file=sys.stderr)
        return [smov(cnt, n_iter), label(lbl)] + body
    out = fix_hazards(parts['pro'] + [comment("period 0")] + P(0), "pro")
    S_CNT = S(4)
    if o.side:
        out += loop(1, 5, "L_k3_loopA", S_CNT)
        mid = []
        for j in range(16, 22): mid += [comment(f"period {j}")] + P(j)
        out += fix_hazards(P(15)[-30:] + mid, "mid")[len(P(15)[-30:]):] if False else fix_hazards(mid, "mid")
        out += loop(22, 2, "L_k3_loopB", S_CNT)
        tail = []
        for j in range(28, 33): tail += [comment(f"period {j}")] + P(j)
    else:
        out += loop(1, 9, "L_k3_loopA", S_CNT)
        tail = []
        for j in range(28, 33): tail += [comment(f"period {j}")] + P(j)
    tm = []
    out += fix_hazards(tail + parts['EPI'], "tail")
    out.append(label("L_k3_end"))
    if getattr(o, 'verbose', False):
        for j in (2, 16, 17, 18, 21, 23, 29, 30):
            tot = 0; gap = None
            for i in P(j):
                if i.kind == 'mfma':
                    if gap is not None: tot += max(16, gap)
                    gap = 8
                elif gap is not None: gap += cost(i)
            print(f"; period {j}: est {tot + max(16, gap or 0)} cycles, {len(P(j))} instrs", file=sys.stderr)
    return emit(out)
if __name__ == "__main__":
    o = Opt(); o.verbose = True
    for kv in sys.argv[1:]:
        k, v = kv.split("="); setattr(o, k, eval(v))
    t = build(o); print(len(t.splitlines()))
```

```python
from k_common import *
WS_GATE = 6 << 20
def build(timing=False):
    s = []; a = s.append
    a(raw("s_cmp_ge_u32 s2, 512")); a(raw("s_cbranch_scc1 L_k4_end", 'branch'))
    a(sload(S(4, 2), ARG_WS)); a(sload(S(6, 2), ARG_X)); a(sload(S(8, 2), ARG_OUT))
    a(valu('v_lshrrev_b32', V(1), 6, V(0)))
    a(readfirstlane(S(23), V(1)))
    l = V(0)
    a(valu('v_and_b32', l, 63, l))
    a(raw("s_lshl_b32 s20, s2, 2", writes=[S(20)]))
    a(waitcnt(lgkm=0))
    a(raw("s_add_u32 s20, s20, s23", writes=[S(20)]))
    s.extend(make_srd(S(12, 4), S(4, 2), WS_END)); s.extend(make_srd(S(16, 4), S(6, 2), 2 << 20)); s.extend(make_srd(S(24, 4), S(8, 2), 2 << 20))
    a(valu('v_lshlrev_b32', V(2), 4, l))
    a(raw("s_lshl_b32 s21, s20, 10", writes=[S(21)]))
    a(raw(f"s_add_u32 s22, s21, {WS_GATE}", writes=[S(22)]))
    a(raw(f"s_add_u32 s21, s21, {WS_PART}", writes=[S(21)]))
    PP = lambda g: V(16 + 4*g, 4)
    for g in range(8):
        a(bload(4, PP(g), V(2), S(12, 4), S(21)))
        if g < 7: a(sop('s_add_u32', S(21), S(21), 32*64*1024))
    G = V(48, 4)
    a(bload(4, G, V(2), S(12, 4), S(22)))
    a(raw("s_lshr_b32 s28, s20, 6", writes=[S(28)])); a(raw("s_and_b32 s29, s20, 3", writes=[S(29)]))
    a(raw("s_lshl_b32 s28, s28, 6", writes=[S(28)])); a(raw("s_lshl_b32 s29, s29, 4", writes=[S(29)])); a(raw("s_add_u32 s28, s28, s29", writes=[S(28)]))
    a(raw("s_bfe_u32 s29, s20, 0x40002", writes=[S(29)]))
    a(raw("s_lshl_b32 s29, s29, 6", writes=[S(29)]))
    a(valu('v_and_b32', V(3), 15, l)); a(valu('v_add_u32', V(3), S(28), V(3))); a(valu('v_lshlrev_b32', V(3), 10, V(3)))
    a(valu('v_lshrrev_b32', V(4), 4, l)); a(valu('v_lshl_add_u32', V(3), V(4), 3, V(3))); a(valu('v_add_u32', V(3), S(29), V(3)))
    X = V(52, 4)
    a(bload(2, X[0:2], V(3), S(16, 4))); a(bload(2, X[2:4], V(3), S(16, 4), 0, off=32))
    R = [V(56 + i) for i in range(8)]
    for k in range(8):
        q = k >> 1; hi = k & 1
        def unp(dst, src): return valu('v_and_b32', dst, 0xffff0000, src) if hi else valu('v_lshlrev_b32', dst, 16, src)
        a(unp(R[k], PP(0)[q]))
        for g in range(1, 8):
            a(unp(V(5), PP(g)[q])); a(valu('v_add_f32', R[k], R[k], V(5)))
        a(unp(V(5), G[q])); a(unp(V(6), X[q]))
        a(valu('v_fma_f32', R[k], R[k], V(5), V(6)))
    OUT = V(64, 4)
    for q in range(4): a(valu('v_cvt_pk_bf16_f32', OUT[q], R[2*q], R[2*q+1]))
    a(bstore(2, OUT[0:2], V(3), S(24, 4))); a(bstore(2, OUT[2:4], V(3), S(24, 4), 0, off=32))
    a(waitcnt(vm=0))
    s, _, _ = auto_waits(s)
    s = fix_hazards(s, "k4b")
    s.append(label("L_k4_end"))
    return emit(s)
```

```python
import sys; sys.path.insert(0, 'work')
from asmgen import *

ARG_X, ARG_K, ARG_V, ARG_WQ, ARG_WO, ARG_BX, ARG_W1, ARG_B1, ARG_W2, ARG_B2, ARG_OUT, ARG_DBG, ARG_WS = [8*i for i in range(13)]
WS_XN = 0
WS_H = 2 << 20
WS_U = 4 << 20
WS_PART = 8 << 20
WS_END = 24 << 20

def sload(dst, off):
    return raw(f"s_load_dwordx2 {dst}, s[0:1], {off}", 'smem', writes=[dst])
def smov(d, x): return raw(f"s_mov_b32 {d}, {fmt(x)}", 'salu', reads=[x], writes=[d])
def sop(op, d, a, b):
    return I(f"{op} {d}, {fmt(a)}, {fmt(b)}", 'salu', reads=[a, b], writes=[d, 'scc'], op=op)
def make_srd(srd, ptr, nbytes, add=None):
    o = []
    if add is None:
        o += [smov(srd[0], ptr[0]), smov(srd[1], ptr[1])]
    else:
        o += [sop('s_add_u32', srd[0], ptr[0], add), I(f"s_addc_u32 {srd[1]}, {ptr[1]}, 0", 'salu', reads=[ptr[1], 'scc'], writes=[srd[1], 'scc'])]
    o += [smov(srd[2], nbytes), smov(srd[3], 0x20000)]
    return o
def readfirstlane(s, v):
    return I(f"v_readfirstlane_b32 {s}, {v}", 'valu', reads=[v], writes=[s], op='v_readfirstlane')
def dpp_add(d, a, ctrl):
    return I(f"v_add_f32_dpp {d}, {a}, {a} {ctrl} row_mask:0xf bank_mask:0xf", 'valu', reads=[a], writes=[d], op='v_add_f32_dpp')
def dpp_mov(d, a, ctrl):
    return I(f"v_mov_b32_dpp {d}, {a} {ctrl} row_mask:0xf bank_mask:0xf", 'valu', reads=[a], writes=[d], op='v_mov_b32_dpp')
def wave_sum(v, t):
    o = []
    for ctrl in ("quad_perm:[1,0,3,2]", "quad_perm:[2,3,0,1]", "row_half_mirror", "row_mirror"):
        o.append(dpp_add(v, v, ctrl))
    o += [valu('v_mov_b32', t, v), permlane16_swap(v, t), valu('v_add_f32', v, v, t)]
    o += [valu('v_mov_b32', t, v), permlane32_swap(v, t), valu('v_add_f32', v, v, t)]
    return o
def finish(seq, name):
    seq, _, _ = insert_waits(seq)
    return fix_hazards(seq, name)

def kernel_text(name, body_text, vgpr, accum, sgpr=96):
    return f""".globl {name}
.p2align 8
.type {name},@function
{name}:
{body_text}  s_endpgm
"""
def kernel_desc(name, vgpr, accum, sgpr=96):
    return f""".amdhsa_kernel {name}
  .amdhsa_next_free_vgpr {vgpr}
  .amdhsa_next_free_sgpr {sgpr}
  .amdhsa_accum_offset {accum}
  .amdhsa_group_segment_fixed_size 0
  .amdhsa_kernarg_size 104
  .amdhsa_user_sgpr_count 2
  .amdhsa_user_sgpr_kernarg_segment_ptr 1
  .amdhsa_system_sgpr_workgroup_id_x 1
.end_amdhsa_kernel
"""

WS_STAMP = 32 << 20
class Stamps:
    def __init__(self, enable, kid, base=64):
        self.en, self.kid, self.base, self.n = enable, kid, base, 0
    def __call__(self):
        if not self.en: return []
        r = S(self.base + 2*self.n, 2); self.n += 1
        return [raw(f"s_memrealtime {r}", 'smem', writes=[r]), waitcnt(lgkm=0)]
    def flush(self, wave_s, vt=(V(1), V(2))):
        if not self.en: return []
        o = [sload(S(60, 2), ARG_WS), waitcnt(lgkm=0)]
        o += make_srd(S(56, 4), S(60, 2), 64 << 20)
        o += [raw(f"s_lshl_b32 s62, s2, 2", writes=[S(62)]), sop('s_add_u32', S(62), S(62), wave_s), raw("s_lshl_b32 s62, s62, 6", writes=[S(62)]),
              sop('s_add_u32', S(62), S(62), WS_STAMP + (self.kid << 20))]
        o += [valu('v_mov_b32', vt[1], 0)]
        for i in range(self.n):
            o += [valu('v_mov_b32', vt[0], S(self.base + 2*i)), nop(1), bstore(1, vt[0], vt[1], S(56, 4), S(62), off=4*i), nop(1)]
        o += [waitcnt(vm=0)]
        return o
```

```python
import sys; sys.path.insert(0, 'work')
from k_common import *
import k1_ln, k3b, k4b
HDR = open('recurrent_scan__gqa_block_cached__mixer_token_mlp__prompt.s.ref').read().split('; Override launch')[0]
def build(opt):
    ks = [('ln_kernel', k1_ln.build, (512, 256, 0), 32, 32),
          ('attn_kernel', lambda: k3b.build(opt), (256, 256, 163840), 512, 256),
          ('comb_kernel', lambda: k4b.build(), (512, 256, 0), 72, 72)]
    txt = HDR
    for (n, f, (g, b, lds), vg, ac) in ks: txt += f"; @launch kernel={n} grid=({g},1,1) block=({b},1,1) lds={lds}\n"
    txt += '.amdgcn_target "amdgcn-amd-amdhsa--gfx950"\n.text\n'
    for (n, f, _, vg, ac) in ks: txt += kernel_text(n, f(), vg, ac)
    txt += '.section .rodata,"a"\n'
    for (n, f, _, vg, ac) in ks: txt += ".p2align 6\n" + kernel_desc(n, vg, ac)
    return txt
if __name__ == "__main__":
    opt = k3b.Opt()
    for kv in sys.argv[2:]:
        k, v = kv.split("="); setattr(opt, k, eval(v))
    opt.diag_marks = []; opt.diag_base = 64
    open(sys.argv[1], "w").write(build(opt))
    if opt.diag_marks: print('marks', opt.diag_marks)
```

```python
import re

def R(prefix, lo, n=1):
    return [f"{prefix}{i}" for i in range(lo, lo + n)]

def rng(prefix, lo, n):
    return f"{prefix}{lo}" if n == 1 else f"{prefix}[{lo}:{lo+n-1}]"

class Reg:
    def __init__(self, kind, lo, n=1):
        self.kind, self.lo, self.n = kind, lo, n
    def __str__(self): return rng(self.kind, self.lo, self.n)
    def regs(self): return R(self.kind, self.lo, self.n)
    def __getitem__(self, i):
        if isinstance(i, slice):
            start = i.start or 0; stop = self.n if i.stop is None else i.stop
            assert 0 <= start < stop <= self.n, (start, stop, self.n)
            return Reg(self.kind, self.lo + start, stop - start)
        assert 0 <= i < self.n, (i, self.n)
        return Reg(self.kind, self.lo + i, 1)
def V(lo, n=1): return Reg('v', lo, n)
def A(lo, n=1): return Reg('a', lo, n)
def S(lo, n=1): return Reg('s', lo, n)

def regs_of(x):
    if isinstance(x, Reg): return x.regs()
    if isinstance(x, str) and x in ('vcc', 'm0', 'exec', 'scc'): return [x]
    return []

class I:
    def __init__(self, text, kind, reads=(), writes=(), **kw):
        self.text, self.kind = text, kind
        self.reads = set(); self.writes = set()
        for r in reads: self.reads.update(regs_of(r))
        for w in writes: self.writes.update(regs_of(w))
        self.__dict__.update(kw)
    def __repr__(self): return self.text

def fmt(x):
    if isinstance(x, float):
        import struct
        inl = {0.5:'0.5',-0.5:'-0.5',1.0:'1.0',-1.0:'-1.0',2.0:'2.0',-2.0:'-2.0',4.0:'4.0',-4.0:'-4.0',0.0:'0'}
        if x in inl: return inl[x]
        return hex(struct.unpack('<I', struct.pack('<f', x))[0])
    return str(x)

def mfma32(d, a, b, c):
    return I(f"v_mfma_f32_32x32x16_bf16 {d}, {a}, {b}, {fmt(c)}", 'mfma', reads=[a, b, c], writes=[d], passes=8, A=a, B=b, C=c, D=d)
def mfma16(d, a, b, c):
    return I(f"v_mfma_f32_16x16x32_bf16 {d}, {a}, {b}, {fmt(c)}", 'mfma', reads=[a, b, c], writes=[d], passes=4, A=a, B=b, C=c, D=d)
def valu(op, d, *src, mods="", extra_reads=(), extra_writes=(), dst_read=False):
    kind = 'valu'
    if op in ('v_exp_f32','v_rcp_f32','v_rsq_f32','v_log_f32','v_sqrt_f32','v_sin_f32','v_cos_f32'): kind = 'trans'
    rd = list(src) + list(extra_reads) + ([d] if dst_read else [])
    t = f"{op} {d}, " + ", ".join(fmt(s) for s in src) + (" " + mods if mods else "")
    rd2 = []
    for s in rd:
        if isinstance(s, str):
            m = re.fullmatch(r'-?\|?([vas])(\d+)\|?', s)
            if m: rd2.append(Reg(m.group(1), int(m.group(2))))
            else: rd2.append(s)
        else: rd2.append(s)
    return I(t, kind, reads=rd2, writes=[d] + list(extra_writes), op=op)
def salu(op, d, *src, writes_scc=True):
    t = f"{op} {d}, " + ", ".join(fmt(s) for s in src) if src else f"{op} {d}"
    return I(t, 'salu', reads=list(src), writes=[d] + (['scc'] if writes_scc else []), op=op)
def scmp(op, a, b): return I(f"{op} {fmt(a)}, {fmt(b)}", 'salu', reads=[a, b], writes=['scc'], op=op)
def ds_read_b128(d, addr, off=0):
    assert 0 <= off < 65536, off
    return I(f"ds_read_b128 {d}, {addr}" + (f" offset:{off}" if off else ""), 'ds_read', reads=[addr], writes=[d])
def ds_read_b64(d, addr, off=0):
    assert 0 <= off < 65536, off
    return I(f"ds_read_b64 {d}, {addr}" + (f" offset:{off}" if off else ""), 'ds_read', reads=[addr], writes=[d])
def ds_read_b32(d, addr, off=0):
    assert 0 <= off < 65536, off
    return I(f"ds_read_b32 {d}, {addr}" + (f" offset:{off}" if off else ""), 'ds_read', reads=[addr], writes=[d])
def ds_read_tr(d, addr, off=0):
    assert 0 <= off < 65536, off
    return I(f"ds_read_b64_tr_b16 {d}, {addr}" + (f" offset:{off}" if off else ""), 'ds_read', reads=[addr], writes=[d])
def ds_write(n, addr, src, off=0):
    assert 0 <= off < 65536, off
    op = {1:'ds_write_b32', 2:'ds_write_b64', 4:'ds_write_b128'}[n]
    return I(f"{op} {addr}, {src}" + (f" offset:{off}" if off else ""), 'ds_write', reads=[addr, src], writes=[])
def dma(voff, srd, soff, off=0, mods=""):
    assert 0 <= off < 4096, off
    return I(f"buffer_load_dwordx4 {voff}, {srd}, {fmt(soff)} offen" + (f" offset:{off}" if off else "") + (" " + mods if mods else "") + " lds", 'dma', reads=[voff, srd, soff, 'm0'], writes=[])
def bload(n, d, voff, srd, soff=0, off=0, mods=""):
    assert 0 <= off < 4096, off
    op = {1:'buffer_load_dword', 2:'buffer_load_dwordx2', 4:'buffer_load_dwordx4'}[n]
    return I(f"{op} {d}, {voff}, {srd}, {fmt(soff)} offen" + (f" offset:{off}" if off else "") + (" " + mods if mods else ""), 'vload', reads=[voff, srd, soff], writes=[d])
def bload_ushort(d, voff, srd, soff=0, off=0):
    assert 0 <= off < 4096, off
    return I(f"buffer_load_ushort {d}, {voff}, {srd}, {fmt(soff)} offen" + (f" offset:{off}" if off else ""), 'vload', reads=[voff, srd, soff], writes=[d])
def bstore(n, src, voff, srd, soff=0, off=0, mods=""):
    assert 0 <= off < 4096, off
    op = {1:'buffer_store_dword', 2:'buffer_store_dwordx2', 4:'buffer_store_dwordx4'}[n]
    return I(f"{op} {src}, {voff}, {srd}, {fmt(soff)} offen" + (f" offset:{off}" if off else "") + (" " + mods if mods else ""), 'vstore', reads=[src, voff, srd, soff], writes=[], width=n, data=src)
def waitcnt(vm=None, lgkm=None):
    p = []
    if vm is not None: p.append(f"vmcnt({vm})")
    if lgkm is not None: p.append(f"lgkmcnt({lgkm})")
    return I("s_waitcnt " + " ".join(p), 'wait', vm=vm, lgkm=lgkm)
def barrier(): return I("s_barrier", 'barrier')
def nop(n=0): return I(f"s_nop {n}", 'nop', states=n + 1)
def raw(text, kind='salu', reads=(), writes=(), **kw): return I(text, kind, reads=reads, writes=writes, **kw)
def label(name): return I(f"{name}:", 'label')
def comment(t): return I(f"; {t}", 'label')
def permlane32_swap(a, b): return I(f"v_permlane32_swap_b32 {a}, {b}", 'valu', reads=[a, b], writes=[a, b], op='permlane')
def permlane16_swap(a, b): return I(f"v_permlane16_swap_b32 {a}, {b}", 'valu', reads=[a, b], writes=[a, b], op='permlane')

VALU_KINDS = ('valu', 'trans')

def insert_waits(seq, lgkm_pending=None, vm_pending=None, handle_vm=True):
    out = []
    lq = list(lgkm_pending or [])
    vq = list(vm_pending or [])
    for ins in seq:
        if ins.kind == 'wait':
            if ins.lgkm is not None: lq = lq[len(lq) - ins.lgkm:] if ins.lgkm < len(lq) else lq
            if ins.lgkm == 0: lq = []
            if ins.vm is not None: vq = vq[len(vq) - ins.vm:] if ins.vm < len(vq) else vq
            if ins.vm == 0: vq = []
            out.append(ins); continue
        touched = ins.reads | ins.writes
        need_l = None
        for k, dst in enumerate(lq):
            if dst & touched: need_l = len(lq) - 1 - k
        need_v = None
        if handle_vm:
            for k, dst in enumerate(vq):
                if dst & touched: need_v = len(vq) - 1 - k
        if need_l is not None or need_v is not None:
            if need_l is not None:
                n = min(need_l, 15);
                lq = lq[len(lq) - n:] if n > 0 else []
            if need_v is not None:
                m = min(need_v, 63)
                vq = vq[len(vq) - m:] if m > 0 else []
            out.append(waitcnt(vm=(m if need_v is not None else None), lgkm=(n if need_l is not None else None)))
        out.append(ins)
        if ins.kind == 'ds_read': lq.append(set(ins.writes))
        elif ins.kind == 'ds_write': lq.append(set())
        elif ins.kind == 'smem': lq.append(set(ins.writes))
        elif ins.kind == 'vload': vq.append(set(ins.writes))
        elif ins.kind in ('dma', 'vstore', 'vatomic'): vq.append(set(ins.writes))
    return out, lq, vq

def states(ins):
    if ins.kind == 'label': return 0
    if ins.kind == 'nop': return ins.states
    return 1

def check_hazards(seq, loop=False, name=""):
    s = [i for i in seq if i.kind != 'label']
    if loop: s = s + s
    errs = []
    W = 24
    for j, c in enumerate(s):
        dist = 0
        for k in range(j - 1, max(-1, j - W - 1), -1):
            p = s[k]
            need = 0; why = ""
            cr, cw = c.reads, c.writes
            if p.kind in VALU_KINDS:
                vw = {r for r in p.writes if r[0] in 'va' and r not in ('vcc',)}
                if c.kind == 'mfma' and (vw & cr): need, why = 2, "VALU->MFMA operand"
                if getattr(c, 'op', '') == 'permlane' and (vw & cr): need, why = max(need, 2), "VALU->permlane"
                if 'dpp' in c.text or 'row_' in c.text or 'quad_perm' in c.text:
                    if vw & cr: need, why = max(need, 2), "VALU->DPP"
                if getattr(c, 'op', '').startswith('v_read') and (vw & cr): need, why = max(need, 1), "VALU->readlane"
                if p.kind == 'trans' and c.kind == 'valu' and (p.writes & cr): need, why = max(need, 1), "trans->VALU"
                sw = {r for r in p.writes if r[0] == 's' or r == 'vcc'}
                if sw:
                    if c.kind in ('dma', 'vload', 'vstore', 'vatomic') and (sw & cr): need, why = max(need, 5), "VALU sgpr->VMEM"
                    if c.kind in VALU_KINDS and (sw & cr): need, why = max(need, 2), "VALU sgpr->VALU"
                    if c.kind == 'salu' and (sw & cr): need, why = max(need, 1), "VALU sgpr -> SALU (pad)"
                if 'exec' in p.writes and c.kind == 'mfma': need, why = max(need, 4), "VALU exec->MFMA"
            if p.kind == 'salu' and 'm0' in p.writes and c.kind == 'dma': need, why = max(need, 1), "M0->DMA"
            if p.kind == 'mfma':
                ps = p.passes
                dw = p.writes
                if c.kind == 'mfma':
                    ab = set(regs_of(c.A)) | set(regs_of(c.B)); cc = set(regs_of(c.C))
                    if dw & ab: need, why = max(need, {4: 8, 8: 12}[ps]), "MFMA D->A/B"
                    if dw & cc:
                        if set(regs_of(c.C)) == dw and c.passes == ps: pass
                        else: need, why = max(need, {4: 6, 8: 10}[ps]), "MFMA D->C overlap"
                    elif dw & c.writes and not (dw & cc):
                        need, why = max(need, {4: 6, 8: 10}[ps]), "MFMA D WAW"
                elif c.kind in VALU_KINDS or c.kind in ('ds_read', 'ds_write', 'vload', 'vstore', 'dma', 'vatomic'):
                    if dw & (cr | cw): need, why = max(need, {4: 8, 8: 12}[ps]), "MFMA D->VALU/mem"
                    if c.kind in VALU_KINDS and (set(regs_of(p.C)) & cw): need, why = max(need, {4: 3, 8: 7}[ps]), "MFMA C WAR"
            if p.kind == 'vstore' and p.width >= 3:
                if set(regs_of(p.data)) & cw: need, why = max(need, 2), "store data WAR"
            if need > dist:
                errs.append(f"{name}: need {need} got {dist} [{why}]: '{p.text}' -> '{c.text}'")
            dist += states(p)
            if dist > 20: break
    return errs

def emit(seq, indent="  "):
    return "\n".join((i.text if i.kind == 'label' else indent + i.text) for i in seq) + "\n"

def fix_hazards(seq, name="", verbose=False):
    out = []
    n_ins = 0
    for ins in seq:
        if ins.kind == 'label':
            out.append(ins); continue
        while True:
            tail = [i for i in out[-40:]] + [ins]
            errs = check_hazards_last(tail)
            if errs == 0: break
            k = min(errs, 16)
            out.append(nop(k - 1)); n_ins += k
        out.append(ins)
    if verbose and n_ins: print(f"; {name}: inserted {n_ins} wait states")
    return out

def check_hazards_last(s):
    s = [i for i in s if i.kind != 'label']
    errs = check_hazards_range(s, len(s) - 1)
    return errs

def check_hazards_range(s, j):
    c = s[j]
    worst = 0
    dist = 0
    for k in range(j - 1, -1, -1):
        p = s[k]
        need = pair_need(p, c)[0]
        if need > dist: worst = max(worst, need - dist)
        dist += states(p)
        if dist > 20: break
    return worst

def pair_need(p, c):
    need = 0; why = ""
    cr, cw = c.reads, c.writes
    if p.kind in VALU_KINDS:
        vw = {r for r in p.writes if r[0] in 'va' and r not in ('vcc',)}
        if c.kind == 'mfma' and (vw & cr): need, why = 2, "VALU->MFMA operand"
        if getattr(c, 'op', '') == 'permlane' and (vw & cr): need, why = max(need, 2), "VALU->permlane"
        if 'dpp' in c.text or 'row_' in c.text or 'quad_perm' in c.text:
            if vw & cr: need, why = max(need, 2), "VALU->DPP"
        if getattr(c, 'op', '').startswith('v_read') and (vw & cr): need, why = max(need, 1), "VALU->readlane"
        if p.kind == 'trans' and c.kind == 'valu' and (p.writes & cr): need, why = max(need, 1), "trans->VALU"
        sw = {r for r in p.writes if r[0] == 's' or r == 'vcc'}
        if sw:
            if c.kind in ('dma', 'vload', 'vstore', 'vatomic') and (sw & cr): need, why = max(need, 5), "VALU sgpr->VMEM"
            if c.kind in VALU_KINDS and (sw & cr): need, why = max(need, 2), "VALU sgpr->VALU"
            if c.kind == 'salu' and (sw & cr): need, why = max(need, 4), "VALU sgpr -> SALU (pad)"
        if 'exec' in p.writes and c.kind == 'mfma': need, why = max(need, 4), "VALU exec->MFMA"
    if p.kind == 'salu' and 'm0' in p.writes and c.kind == 'dma': need, why = max(need, 1), "M0->DMA"
    if p.kind == 'mfma':
        ps = p.passes
        dw = p.writes
        if c.kind == 'mfma':
            ab = set(regs_of(c.A)) | set(regs_of(c.B)); cc = set(regs_of(c.C))
            if dw & ab: need, why = max(need, {4: 8, 8: 12}[ps]), "MFMA D->A/B"
            if dw & cc:
                if cc == dw and c.passes == ps: pass
                else: need, why = max(need, {4: 6, 8: 10}[ps]), "MFMA D->C overlap"
            elif dw & c.writes:
                need, why = max(need, {4: 6, 8: 10}[ps]), "MFMA D WAW"
        elif c.kind in VALU_KINDS or c.kind in ('ds_read', 'ds_write', 'vload', 'vstore', 'dma', 'vatomic'):
            if dw & (cr | cw): need, why = max(need, {4: 8, 8: 12}[ps]), "MFMA D->VALU/mem"
            if c.kind in VALU_KINDS and (set(regs_of(p.C)) & cw): need, why = max(need, {4: 3, 8: 7}[ps]), "MFMA C WAR"
    if p.kind == 'vstore' and p.width >= 3:
        if set(regs_of(p.data)) & cw: need, why = max(need, 2), "store data WAR"
    return need, why

def cost(ins):
    k = ins.kind
    if k == 'trans': return 8
    if k == 'valu': return 4
    if k in ('ds_read', 'ds_write'): return 4
    if k == 'dma': return 20
    if k in ('vload', 'vstore'): return 12
    if k in ('salu', 'wait', 'nop', 'barrier'): return 0
    return 0
def cls(ins):
    k = ins.kind
    if k in ('salu', 'wait', 'nop'): return 0
    if k in ('ds_read', 'ds_write', 'dma', 'vload', 'vstore'): return 1
    return 2

def schedule_gaps(mf, ops, budget=None, slack=1.0, start_credit=0.0):
    T = len(mf)
    ops = sorted(ops, key=lambda x: x[0])
    if budget is None:
        budget = sum(cost(o[1]) for o in ops) / max(1, sum(1 for m in mf if m is not None))
    seq = []
    oi = 0
    credit = start_credit
    pre = []
    while oi < len(ops) and ops[oi][0] < 0:
        pre.append(ops[oi][1]); oi += 1
    seq += sorted(pre, key=cls)
    for k in range(T):
        if mf[k] is not None: seq.append(mf[k])
        credit += budget
        gap = []
        while oi < len(ops):
            t, ins = ops[oi][0], ops[oi][1]
            c = cost(ins)
            if t >= k + 1 + slack: break
            forced = t < k + 1 - slack or k == T - 1
            if forced or credit >= c - 0.01 * 0 - (c * 0.5):
                gap.append(ins); credit -= c; oi += 1
            else: break
        gap.sort(key=cls)
        seq += gap
        credit = min(credit, budget)
    assert oi == len(ops), ops[oi:]
    return seq

def insert_waits2(seq, lgkm_pending=None):
    out = []
    lq = list(lgkm_pending or [])
    for ins in seq:
        if ins.kind == 'wait':
            if ins.lgkm is not None:
                lq = lq[len(lq) - ins.lgkm:] if 0 < ins.lgkm < len(lq) else ([] if ins.lgkm == 0 else lq)
            out.append(ins); continue
        touched = ins.reads | ins.writes
        need = None
        for k, (dst, _) in enumerate(lq):
            if dst & touched: need = k
        if need is not None:
            pos = len(out)
            lm = max((i for i, o in enumerate(out) if o.kind == 'mfma'), default=-1)
            if lm >= 0 and lq[need][1] < lm:
                pos = lm + 1
            later = sum(1 for (_, idx) in lq[need+1:] if idx < pos)
            n = min(later, 15)
            out.insert(pos, waitcnt(lgkm=n))
            lq = [(d, idx + 1 if idx >= pos else idx) for (d, idx) in lq]
            before = [e for e in lq if e[1] < pos]; after = [e for e in lq if e[1] > pos]
            before = before[len(before) - n:] if n > 0 else []
            lq = before + after
        out.append(ins)
        if ins.kind in ('ds_read', 'ds_write', 'smem'):
            lq.append((set(ins.writes) if ins.kind != 'ds_write' else set(), len(out) - 1))
    return out, lq

def validate_tags(seq, init=None):
    cur = dict(init or {})
    errs = []
    for ins in seq:
        rt = getattr(ins, 'rt', None)
        if rt:
            for reg, tag in rt.items():
                if cur.get(reg) != tag:
                    errs.append(f"{ins.text}: {reg} has {cur.get(reg)} expected {tag}")
        wt = getattr(ins, 'wt', None)
        if wt is not None:
            for w in ins.writes:
                if w[0] in 'va': cur[w] = wt
    return errs
def tag(ins, wt=None, rt=None):
    if wt is not None: ins.wt = wt
    if rt:
        d = {}
        for regs, t in rt:
            for r in regs_of(regs): d[r] = t
        ins.rt = d
    return ins

def schedule_gaps2(mf, ops, minfill, maxfill, early=2.0, late=0.0):
    T = len(mf)
    ops = sorted(ops, key=lambda x: x[0])
    seq = []; oi = 0
    pre = []
    while oi < len(ops) and ops[oi][0] < 0:
        pre.append(ops[oi][1]); oi += 1
    seq += sorted(pre, key=cls)
    for k in range(T):
        if mf[k] is not None: seq.append(mf[k])
        gap = []; f = 0
        while oi < len(ops):
            t, ins = ops[oi][0], ops[oi][1]
            c = cost(ins)
            take = False
            if k == T - 1: take = True
            elif t < k - 1: take = True
            elif c == 0 and t < k + 1 + early: take = True
            elif f < minfill and t < k + 1 + early and f + c <= max(maxfill, c): take = True
            elif t < k + 1 - late and f + c <= maxfill: take = True
            if not take: break
            gap.append(ins); f += c; oi += 1
        gap.sort(key=cls)
        seq += gap
    assert oi == len(ops), ops[oi:]
    return seq

class Op:
    def __init__(self, ins, target, release=-1e9, deadline=1e9, stream=0):
        self.ins, self.t, self.r, self.dl, self.s = ins, target, release, deadline, stream

def list_schedule(mf, ops, minfill, maxfill, ahead=3.0):
    T = len(mf)
    streams = {}
    for o in ops: streams.setdefault(o.s, []).append(o)
    heads = {s: 0 for s in streams}
    seq = []
    def cands(k):
        c = []
        for s, lst in streams.items():
            if heads[s] < len(lst) and lst[heads[s]].r <= k: c.append(lst[heads[s]])
        return c
    pre = []
    while True:
        c = [o for o in cands(-1) if o.t < 0]
        if not c: break
        o = min(c, key=lambda x: x.t); pre.append(o.ins); heads[o.s] += 1
    seq += sort_gap(pre)
    fills = []
    for k in range(T):
        if mf[k] is not None: seq.append(mf[k])
        gap = []; f = 0
        last = (k == T - 1)
        while True:
            c = cands(k)
            if not c: break
            pick = None
            forced = [o for o in c if o.dl <= k or last or any(x.dl <= k for x in streams[o.s][heads[o.s]:heads[o.s]+6])]
            free = [o for o in c if cost(o.ins) == 0 and o.t < k + 1 + ahead]
            if forced: pick = min(forced, key=lambda x: x.t)
            elif free: pick = min(free, key=lambda x: x.t)
            else:
                near = [o for o in c if o.t < k + 1 + ahead]
                if f < minfill:
                    fit = [o for o in near if f + cost(o.ins) <= max(maxfill, minfill)]
                    exact = [o for o in fit if f + cost(o.ins) <= minfill]
                    if exact: pick = min(exact, key=lambda x: x.t)
                    elif fit: pick = min(fit, key=lambda x: x.t)
                    elif f == 0 and near: pick = min(near, key=lambda x: x.t)
                else:
                    due = [o for o in c if o.t < k + 1 and f + cost(o.ins) <= maxfill]
                    if due: pick = min(due, key=lambda x: x.t)
            if pick is None: break
            gap.append(pick.ins); f += cost(pick.ins); heads[pick.s] += 1
        gap = sort_gap(gap)
        seq += gap; fills.append(f)
    for s, lst in streams.items(): assert heads[s] == len(lst), (s, lst[heads[s]].ins.text)
    return seq, fills


def dep(a, b):
    return bool((a.writes & (b.reads | b.writes)) or (a.reads & b.writes))
def sort_gap(gap):
    out = []
    for ins in gap:
        pos = len(out)
        while pos > 0 and cls(out[pos-1]) > cls(ins) and not dep(out[pos-1], ins):
            pos -= 1
        out.insert(pos, ins)
    return out

def lds_dep(ins, need=(), mark=()):
    ins.need = set(need); ins.mark = set(mark)
    return ins

def auto_waits(seq, lq=None, vq=None, shadow=True):
    out = []
    lq = [list(e) for e in (lq or [])]; vq = [list(e) for e in (vq or [])]
    def trim(q, n, pos):
        before = [e for e in q if e[1] < pos]; after = [e for e in q if e[1] >= pos]
        return (before[len(before) - n:] if n > 0 else []) + after
    for ins in seq:
        if ins.kind == 'wait':
            if ins.lgkm is not None: lq = trim(lq, ins.lgkm, 1 << 60) if ins.lgkm < len(lq) else lq
            if ins.vm is not None: vq = trim(vq, ins.vm, 1 << 60) if ins.vm < len(vq) else vq
            out.append(ins); continue
        if ins.kind == 'label':
            out.append(ins); continue
        touched = ins.reads | ins.writes | getattr(ins, 'need', set())
        nl = nv = None
        for k, e in enumerate(lq):
            if e[0] & touched: nl = k
        for k, e in enumerate(vq):
            if e[0] & touched: nv = k
        if nl is not None or nv is not None:
            pos = len(out)
            if shadow:
                lm = -1
                for i in range(len(out) - 1, -1, -1):
                    if out[i].kind == 'mfma': lm = i; break
                    if out[i].kind in ('barrier', 'label', 'branch'): break
                if lm >= 0 and (nl is None or lq[nl][1] < lm) and (nv is None or vq[nv][1] < lm):
                    pos = lm + 1
            n = m = None
            if nl is not None:
                smem = any(e[2] for e in lq)
                n = 0 if smem else min(15, sum(1 for e in lq[nl+1:] if e[1] < pos))
            if nv is not None:
                m = min(63, sum(1 for e in vq[nv+1:] if e[1] < pos))
            out.insert(pos, waitcnt(vm=m, lgkm=n))
            for e in lq + vq:
                if e[1] >= pos: e[1] += 1
            if n is not None: lq = trim(lq, n, pos)
            if m is not None: vq = trim(vq, m, pos)
        out.append(ins)
        tags = set(ins.writes) | getattr(ins, 'mark', set())
        if ins.kind in ('ds_read', 'smem'): lq.append([tags, len(out) - 1, ins.kind == 'smem'])
        elif ins.kind == 'ds_write': lq.append([set(getattr(ins, 'mark', set())), len(out) - 1, False])
        elif ins.kind in ('vload', 'dma', 'vatomic'): vq.append([tags, len(out) - 1, False])
        elif ins.kind == 'vstore': vq.append([set(getattr(ins, 'mark', set())), len(out) - 1, False])
    return out, lq, vq

class Grp(I):
    def __init__(self, items):
        self.items = items
        last = items[-1]
        self.kind = last.kind; self.text = last.text
        self.reads = set(); self.writes = set()
        for i in items: self.reads |= i.reads; self.writes |= i.writes
def expand(seq):
    out = []
    for i in seq:
        if isinstance(i, Grp): out += i.items
        else: out.append(i)
    return out
def group_dma(lst):
    out = []; setup = []
    fresh = False
    for ins in lst:
        if 'm0' in ins.writes:
            if not fresh: setup = []
            setup.append(ins); fresh = True
        elif ins.kind == 'nop' and fresh:
            continue
        elif ins.kind == 'dma':
            fresh = False
            out.append(Grp(list(setup) + [nop(0), ins]))
        else:
            fresh = False
            out.append(ins)
    return out

VM_KINDS = ('dma', 'vload', 'vstore', 'vatomic')
def list_schedule2(mf, ops, minfill, maxfill, ahead=3.0, vm_space=2):
    T = len(mf)
    streams = {}
    for o in ops: streams.setdefault(o.s, []).append(o)
    heads = {s: 0 for s in streams}
    def cands(k):
        return [lst[heads[s]] for s, lst in streams.items() if heads[s] < len(lst) and lst[heads[s]].r <= k]
    pre = []
    while True:
        c = [o for o in cands(-1) if o.t < 0]
        if not c: break
        o = min(c, key=lambda x: x.t); pre += getattr(o, 'setup', []) + [o.ins]; heads[o.s] += 1
    gaps = [[] for _ in range(T)]
    fills = []
    last_vm = -10
    for k in range(T):
        f = 0; last = (k == T - 1)
        gap = gaps[k]
        while True:
            c = cands(k)
            if not c: break
            pick = None
            isvm = lambda o: o.ins.kind in VM_KINDS
            forced = [o for o in c if o.dl <= k or last or any(x.dl <= k for x in streams[o.s][heads[o.s]:heads[o.s]+6])]
            free = [o for o in c if cost(o.ins) == 0 and o.t < k + 1 + ahead]
            vmdue = [o for o in c if isvm(o) and o.t < k + 1 and k >= last_vm + vm_space and f == 0]
            if free: pick = min(free, key=lambda x: x.t)
            elif vmdue: pick = min(vmdue, key=lambda x: x.t)
            elif forced: pick = min(forced, key=lambda x: x.t)
            else:
                near = [o for o in c if o.t < k + 1 + ahead and not isvm(o)]
                if f < minfill:
                    fit = [o for o in near if f + cost(o.ins) <= max(maxfill, minfill)]
                    exact = [o for o in fit if f + cost(o.ins) <= minfill]
                    if exact: pick = min(exact, key=lambda x: x.t)
                    elif fit: pick = min(fit, key=lambda x: x.t)
                else:
                    due = [o for o in c if o.t < k + 1 - getattr(o, 'lag', 0) and f + cost(o.ins) <= maxfill and not isvm(o)]
                    if due: pick = min(due, key=lambda x: x.t)
                if pick is None:
                    late = [o for o in c if o.t < k - 2.0 and not isvm(o) and f < 16]
                    if late: pick = min(late, key=lambda x: x.t)
            if pick is None: break
            st = getattr(pick, 'setup', [])
            if st:
                if k >= 1 and mf[k] is not None: gaps[k-1] += st
                else: gap += st + [nop(0)]
            gap.append(pick.ins); f += cost(pick.ins); heads[pick.s] += 1
            if isvm(pick): last_vm = k
        fills.append(f)
    seq = sort_gap(pre)
    for k in range(T):
        if mf[k] is not None: seq.append(mf[k])
        seq += sort_gap(gaps[k])
    for s, lst in streams.items(): assert heads[s] == len(lst), (s, lst[heads[s]].ins.text)
    return seq, fills

def dma_ops_with_setup(lst):
    out = []; setup = []
    for ins in lst:
        if 'm0' in ins.writes: setup.append(ins)
        elif ins.kind == 'nop': continue
        elif ins.kind == 'dma':
            out.append((ins, setup)); setup = []
        else: out.append((ins, []))
    return out
```

```python
from k_common import *
def build():
    s = []; a = s.append
    a(raw("s_cmp_ge_u32 s2, 512")); a(raw("s_cbranch_scc1 L_k1_end"))
    a(sload(S(4, 2), ARG_X)); a(sload(S(6, 2), ARG_WS))
    a(valu('v_lshrrev_b32', V(1), 6, V(0)))
    a(valu('v_and_b32', V(2), 63, V(0)))
    a(raw("s_lshl_b32 s3, s2, 2", writes=[S(3)]))
    a(valu('v_add_u32', V(1), S(3), V(1)))
    a(valu('v_lshlrev_b32', V(1), 10, V(1)))
    a(valu('v_lshl_add_u32', V(1), V(2), 4, V(1)))
    a(waitcnt(lgkm=0))
    s += make_srd(S(8, 4), S(4, 2), 2 << 20)
    s += make_srd(S(12, 4), S(6, 2), 4 << 20)
    a(bload(4, V(4, 4), V(1), S(8, 4)))
    s.extend(make_srd(S(20, 4), S(6, 2), WS_CNT + 8192))
    a(raw("s_lshl_b32 s17, s2, 10", writes=[S(17)])); a(raw(f"s_add_u32 s17, s17, {WS_CNT}", writes=[S(17)]))
    a(valu('v_lshlrev_b32', V(30), 2, V(0))); a(valu('v_mov_b32', V(31), 0))
    a(bstore(1, V(31), V(30), S(20, 4), S(17)))
    X = [V(8 + i) for i in range(8)]
    def unpack(src):
        o = []
        for i in range(4):
            o.append(valu('v_lshlrev_b32', X[2*i], 16, src[i]))
            o.append(valu('v_and_b32', X[2*i+1], 0xffff0000, src[i]))
        return o
    def norm(dst):
        o = []
        sm = V(16); t = V(17)
        o.append(valu('v_add_f32', sm, X[0], X[1]))
        o.append(valu('v_add_f32', t, X[2], X[3]))
        o.append(valu('v_add_f32', V(18), X[4], X[5]))
        o.append(valu('v_add_f32', V(19), X[6], X[7]))
        o.append(valu('v_add_f32', sm, sm, t)); o.append(valu('v_add_f32', V(18), V(18), V(19)))
        o.append(valu('v_add_f32', sm, sm, V(18)))
        o += wave_sum(sm, t)
        o.append(valu('v_mul_f32', sm, 1.0/512, sm))
        for i in range(8): o.append(valu('v_sub_f32', X[i], X[i], sm))
        q = V(18)
        o.append(valu('v_mul_f32', q, X[0], X[0]))
        for i in range(1, 8): o.append(valu('v_fmac_f32', q, X[i], X[i], dst_read=True))
        o += wave_sum(q, t)
        o.append(valu('v_mov_b32', t, 1e-5))
        o.append(valu('v_fmac_f32', t, 1.0/512, q, dst_read=True))
        o.append(valu('v_rsq_f32', t, t))
        for i in range(8): o.append(valu('v_mul_f32', X[i], X[i], t))
        for i in range(4): o.append(valu('v_cvt_pk_bf16_f32', dst[i], X[2*i], X[2*i+1]))
        return o
    s += unpack(V(4, 4))
    s += norm(V(20, 4))
    a(bstore(4, V(20, 4), V(1), S(12, 4), 0, mods=""))
    s += unpack(V(20, 4))
    s += norm(V(24, 4))
    a(smov(S(16), WS_H))
    a(bstore(4, V(24, 4), V(1), S(12, 4), S(16)))
    a(waitcnt(vm=0))
    s = finish(s, "k1")
    s.append(label("L_k1_end"))
    return emit(s)
```

```python
from k_common import *
from k3_attn import (NST, KBASE, VBASE, XBASE, SRD_K, SRD_V, SRD_W, SRD_WQ, SRD_WO, S_TILE, S_WOFF, S_WAVE, S_G, S_QB, QSCALE,
                     O, Q, Kf, Vf, Sb, Sx, NM, LA, Pb, ONES, KA, VA, DK, DV, addr_tr256, dma_off_256, proj_gemm)
from k2_gemm1 import tr_addr_128, dma_off_128, gelu, LOG2E
WS_GATE = 6 << 20

class Opt:
    barrier = True
    minfill = 8; maxfill = 8; early = 1.5
    sm_rel = 4; p_lead = 2; k_span = 1.0; k_lead = 6; bar_lead = 5
    timing = False; prefetch = True; side = True
    stamp_after = (0, 16, 17, 21, 28, 30, 32)
    def __init__(self, **kw): self.__dict__.update(kw)

SRD_W1 = S(48, 4); SRD_W2 = S(52, 4); SRD_DBG = S(56, 4); SRD_US = S(60, 4)
S_T64 = S(46); S_DT = S(47); S_SR = S(40); S_SKIP = S(37); S_N = S(38); S_SA = S(39); S_SB = S(36); S_XB = S(27); S_KVSKIP = S(23); S_TMP = S(43)
TA = [V(14 + i) for i in range(4)]; DA = [V(18 + i) for i in range(4)]; DB = [V(22 + i) for i in range(4)]
def sacc(i, j): return A(128 + (i*4+j)*4, 4)
def sfa(h, t): return A(192 + 16*h + 4*t, 4)
def sfb(h, t): return A(224 + 16*h + 4*t, 4) if h else A(208 + 4*t, 4)
def g2a(h, t): return A(192 + 16*h + 4*t, 4)
def g2b(h, t): return A(224 + 16*h + 4*t, 4)

class Attn:
    def __init__(self, opt): self.o = opt
    def qk_slot(self, j, kh, c):
        out = []
        for q2 in range(2):
            for t in range(2):
                for i in range(4):
                    qt = 2*c + q2; sx = Sx(c, t, q2)
                    m = mfma16(sx, Kf(t*4+i), Q(i, qt), NM[qt] if i == 0 else sx)
                    tag(m, wt=('S', j, kh, c), rt=[(Kf(t*4+i), ('K', j, kh))] + ([(sx, ('S', j, kh, c))] if i else []))
                    out.append(m)
        return out
    def pv_slot(self, j, kh, c):
        out = []
        for q2 in range(2):
            p = Pb[c][4*q2:4*q2+4]; qt = 2*c + q2
            for dt in range(8):
                m = mfma16(O(dt, qt), Vf(dt), p, O(dt, qt))
                tag(m, rt=[(Vf(dt), ('V', j, kh)), (p, ('P', j, kh, c))]); out.append(m)
            m = mfma16(LA[qt], ONES, p, LA[qt]); tag(m, rt=[(p, ('P', j, kh, c))]); out.append(m)
        return out
    def sm_list(self, j, kh, c):
        regs = []
        for q2 in range(2):
            for t in range(2):
                for r in range(4): regs.append((Sx(c, t, q2)[r], Pb[c][4*q2 + 2*t + (r >> 1)]))
        ops = []
        for n, (s, p) in enumerate(regs):
            ops.append((n, tag(valu('v_exp_f32', s, s), wt=('E', j, kh, c), rt=[(s, ('S', j, kh, c))])))
            if n & 1:
                sp = regs[n-1][0]
                ops.append((n + 1.04, tag(valu('v_cvt_pk_bf16_f32', p, sp, s), wt=('P', j, kh, c), rt=[(s, ('E', j, kh, c)), (sp, ('E', j, kh, c))])))
        return [i for (t, i) in sorted(ops, key=lambda x: x[0])]
    def k_reads(self, j, kh):
        st = j % NST
        return [tag(ds_read_b128(Kf(n), KA[n & 3], KBASE + st*16384 + kh*8192 + (n >> 2)*4096), wt=('K', j, kh)) for n in range(8)]
    def v_reads(self, j, kh):
        st = j % NST
        return [tag(ds_read_tr(Vf(dt)[2*u:2*u+2], VA[dt], st*16384 + kh*8192 + u*4096), wt=('V', j, kh)) for dt in range(8) for u in range(2)]
    def kv_dma(self, st, skip=False):
        ops = []
        for n in range(8):
            if n in (0, 4):
                base = (KBASE if n == 0 else VBASE) + st*16384
                ops.append(sop('s_add_u32', 'm0', S_WOFF, base))
                if skip: ops.append(sop('s_max_u32', 'm0', 'm0', S_KVSKIP))
                ops.append(nop(0))
            if n < 4: ops.append(dma(DK[n], SRD_K, S_TILE, off=n*1024))
            else: ops.append(dma(DV[n & 1], SRD_V, S_TILE, off=(n-4)*1024))
        ops.append(sop('s_add_u32', S_TILE, S_TILE, 16384))
        return ops

    def period(self, j, first=False, last_drain=False, kv=True, kvskip=False, side_groups=(), streams=(), pre=(), post=(), vm_end=None, side_dma_list=None):
        o = self.o
        hp, hc = not first, not last_drain
        base = [self.pv_slot(j-1, 1, 0) if hp else None, self.qk_slot(j, 0, 0) if hc else None,
                self.pv_slot(j-1, 1, 1) if hp else None, self.qk_slot(j, 0, 1) if hc else None,
                self.pv_slot(j, 0, 0) if hc else None, self.qk_slot(j, 1, 0) if hc else None,
                self.pv_slot(j, 0, 1) if hc else None, self.qk_slot(j, 1, 1) if hc else None]
        lens = [18, 16]*4
        mf = []; starts = []; ends = []; side_pos = []
        for s in range(8):
            starts.append(len(mf))
            mf += base[s] if base[s] is not None else [None]*lens[s]
            ends.append(len(mf))
            for (aft, g) in side_groups:
                if aft == s:
                    side_pos.append(len(mf)); mf += g
        T = len(mf)
        self.T = T
        ops = []
        CUT0 = o.cut0; CUT1 = o.cut1
        def sm_stream(jj, kh, c, t_lo, t_hi, tpv, i0=0, i1=None, release=None):
            raw_ops = self.sm_list(jj, kh, c); n = len(raw_ops); i1 = n if i1 is None else i1
            pv = self.pv_slot(jj, kh, c); res = []
            for idx in range(i0, i1):
                ins = raw_ops[idx]
                t = t_lo + (t_hi - t_lo) * (idx - i0) / max(1, (i1 - i0)); dl = 1e9
                if ins.op == 'v_cvt_pk_bf16_f32' and tpv is not None:
                    preg = list(ins.writes)[0]
                    dl = tpv + min(q for q, m in enumerate(pv) if preg in m.reads) - o.p_lead
                res.append([t, dl, ins])
            for idx in range(len(res) - 2, -1, -1): res[idx][1] = min(res[idx][1], res[idx+1][1])
            return [Op(ins, t, release=(t_lo if release is None else release), deadline=min(dl, T - 1), stream='sm') for (t, dl, ins) in res]
        rel = o.sm_rel
        if hp:
            ops += sm_stream(j-1, 1, 0, 0, rel, starts[0], i0=CUT0, release=0)
            ops += sm_stream(j-1, 1, 1, rel, ends[1] + rel, starts[2], i0=CUT1)
        if hc:
            ops += sm_stream(j, 0, 0, ends[1] + rel, ends[3] + rel, starts[4])
            ops += sm_stream(j, 0, 1, ends[3] + rel, ends[5] + rel, starts[6])
            ops += sm_stream(j, 1, 0, ends[5] + rel, T, None, i1=CUT0)
            if CUT1: ops += sm_stream(j, 1, 1, T - 1, T, None, i1=CUT1)
        if hc:
            for (kh, ks_slot, vs_slot) in ((0, 0, 2), (1, 4, 6)):
                qk = self.qk_slot(j, kh, 0)
                for n, ins in enumerate(self.k_reads(j, kh)):
                    fu = min(q for q, m in enumerate(qk) if ins.writes & m.reads)
                    t = starts[ks_slot] + n * 18 * o.k_span / 8
                    rl = (ends[ks_slot-1] if ks_slot else -1)
                    ops.append(Op(ins, max(t, rl), release=rl - 1 if ks_slot else -1, deadline=starts[ks_slot+1] + fu - o.k_lead, stream='k'))
                pv = self.pv_slot(j, kh, 0); pvo = self.pv_slot(j, kh, 1); info = []
                for ins in self.v_reads(j, kh):
                    lu = max(q for q, m in enumerate(pvo) if ins.writes & m.reads)
                    fu = min(q for q, m in enumerate(pv) if ins.writes & m.reads)
                    nxt = starts[vs_slot+2] if vs_slot + 2 < 8 else T + 18
                    dl = nxt + fu - o.k_lead
                    if kh == 1: dl = min(dl, T - 1 - o.bar_lead)
                    info.append((starts[vs_slot] + lu + 1, dl, ins))
                info.sort(key=lambda x: x[0])
                w0 = info[0][0]; w1 = min(x[1] for x in info)
                for n, (r, dl, ins) in enumerate(info):
                    ops.append(Op(ins, max(r, w0 + (w1 - w0) * n / len(info)), release=r, deadline=dl, stream='v'))
        dstream = []
        if kv and hc:
            lst = dma_ops_with_setup(self.kv_dma((j + 2) % NST, skip=kvskip))
            pos = o.kv_pos if not side_dma_list else o.kv_pos2; n = 0
            for (ins, st) in lst:
                if ins.kind == 'dma':
                    t = pos[n]; n += 1
                else: t = pos[min(n, 7)] if n < 8 else pos[7]
                dstream.append((t, 0.0, ins, st))
        if side_dma_list:
            (lst, f0, f1, fr) = side_dma_list
            lst = dma_ops_with_setup(lst)
            nd = sum(1 for (i, _) in lst if i.kind == 'dma'); n = 0
            for (ins, st) in lst:
                dstream.append((f0 + (f1 - f0) * n / max(1, nd), fr, ins, st))
                if ins.kind == 'dma': n += 1
        for (t, fr, ins, st) in dstream:
            op = Op(ins, t * T, release=fr * T, stream='dma'); op.setup = st
            ops.append(op)
        for (name, lst) in streams:
            for (ft, fr, ins) in lst:
                ops.append(Op(ins, ft * T, release=fr * T, stream=name))
        seq, fills = list_schedule2(mf, ops, o.minfill, o.maxfill, ahead=o.early)
        self.fills = fills
        seq = list(pre) + expand(seq) + list(post)
        if getattr(o, 'diag_period', None) == j:
            marks = sorted(set(starts + side_pos + [e for e in ends] + [T - 1]))
            marks = [m for m in marks if m < T]
            new = []; k = 0
            for ins in seq:
                if ins.kind == 'mfma':
                    kk = mf.index(ins)
                    if kk in marks:
                        r = S(o.diag_base + 2*len(o.diag_marks), 2); o.diag_marks.append(kk)
                        new.append(raw(f"s_memtime {r}", 'salu', writes=[r]))
                new.append(ins)
            seq = new
        if hc:
            nvm = sum(1 for i in seq if i.kind in ('dma', 'vload', 'vstore', 'vatomic')) if vm_end is None else vm_end
            seq.append(waitcnt(vm=nvm, lgkm=0))
            if o.barrier: seq.append(barrier())
        return seq
Opt.g1_rd = (0.05, 0.45); Opt.g1_dm = (0.62, 0.95)
Opt.cut0 = 21; Opt.cut1 = 0
Opt.kv_pos = [0.147, 0.184, 0.22, 0.25, 0.647, 0.684, 0.72, 0.75]
Opt.kv_pos2 = [0.08, 0.12, 0.16, 0.20, 0.26, 0.30, 0.34, 0.38]

def side_dma(srdA, soA, strideA, srdB, soB, strideB, offsA, offsB, stage_tag, skip):
    o = []
    src = S_SR
    if skip:
        o.append(sop('s_max_u32', S(5), S_SR, S_SKIP)); src = S(5)
    o.append(smov('m0', src)); o.append(nop(0))
    for i in range(4): o.append(lds_dep(dma(offsA[i], srdA, soA, off=i*1024), need={f'sR{stage_tag}'}, mark={f'sL{stage_tag}'}))
    o.append(sop('s_add_u32', soA, soA, strideA))
    o.append(sop('s_add_u32', 'm0', src, 4096)); o.append(nop(0))
    for i in range(4): o.append(lds_dep(dma(offsB[i], srdB, soB, off=i*1024), need={f'sR{stage_tag}'}, mark={f'sL{stage_tag}'}))
    o.append(sop('s_add_u32', soB, soB, strideB))
    return o
def spread(lst, f0, f1, rel=None):
    n = sum(1 for i in lst if cost(i) > 0) or 1
    out = []; k = 0
    for ins in lst:
        t = f0 + (f1 - f0) * k / n
        out.append((t, f0 if rel is None else rel, ins))
        if cost(ins) > 0: k += 1
    return out
def toggle_side():
    return [valu('v_xor_b32', TA[t], 8192, TA[t]) for t in range(4)] + [sop('s_xor_b32', S_SR, S_SR, 8192)]

def g1_parts(n, in_loop):
    st = n & 1
    rd = []
    for t in range(4):
        for u in range(2): rd.append(lds_dep(ds_read_tr(sfa(0, t)[2*u:2*u+2], TA[t], u*2048), need={f'sL{st}'}, mark={f'sR{st}'}))
    for t in range(4):
        for u in range(2): rd.append(lds_dep(ds_read_tr(sfb(0, t)[2*u:2*u+2], TA[t], 4096 + u*2048), need={f'sL{st}'}, mark={f'sR{st}'}))
    mf = [mfma16(sacc(ft, dt), sfa(0, ft), sfb(0, dt), sacc(ft, dt) if n else 0) for ft in range(4) for dt in range(4)]
    dm = []
    if in_loop:
        dm = [scmp('s_cmp_gt_u32', S_N, 13), I(f"s_cselect_b32 {S_SKIP}, 0x30000, 0", 'salu', reads=['scc'], writes=[S_SKIP]), sop('s_add_u32', S_N, S_N, 1)]
        dm += side_dma(SRD_W1, S_SA, 32*3584, SRD_W, S_SB, 32*1024, DA, DB, st, True)
    elif n + 2 <= 15:
        dm = [sop('s_add_u32', S_N, S_N, 1)] + side_dma(SRD_W1, S_SA, 32*3584, SRD_W, S_SB, 32*1024, DA, DB, st, False)
    return rd, mf, dm
def g2_parts(i):
    st = i & 1
    rd = []
    for h in range(2):
        for t in range(4):
            for u in range(2): rd.append(lds_dep(ds_read_tr(g2b(h, t)[2*u:2*u+2], TA[t], h*4096 + u*2048), need={f'sL{st}'}, mark={f'sR{st}'}))
    mfs = [[mfma16(sacc(mt, s_), g2a(h, mt), g2b(h, s_), sacc(mt, s_) if (i or h) else 0) for mt in range(4) for s_ in range(4)] for h in range(2)]
    return rd, mfs
def g2_dma(st, skip):
    return side_dma(SRD_W2, S_SA, 32*4096, SRD_W2, S_SA, 32*4096, DA, DA, st, skip)
def g2_uloads():
    o = []
    for h in range(2):
        for t in range(4): o.append(bload(4, g2a(h, t), DB[t], SRD_W, S_SB, mods="sc1"))
        o.append(sop('s_add_u32', S_SB, S_SB, 1024))
    return o

def proj_gemm2(a, s, TA_, DW, srd, SOFF, stride, S_RING, bread, uoff, name, last_pre=None, last_fill=None, dma_gap0=3):
    NS = 3; NK = 16
    def fa(p, mt): return A(64 + 32*p + 4*mt, 4)
    def fb(p, qt): return A(16*p + 4*qt, 4)
    def dma_step(n):
        o = []; st = n % NS
        for h in range(2):
            o.append(sop('s_add_u32', 'm0', S_RING, st*8192 + h*4096))
            for i in range(4):
                o.append(lds_dep(dma(DW[i], srd, SOFF, off=i*1024), need={f'{name}R{st}'}, mark={f'{name}L{st}'}))
            o.append(sop('s_add_u32', SOFF, SOFF, 16*stride))
        return o
    def reads(n):
        o = []; st = n % NS; p = n & 1
        for qt in range(4): o.append(bread(n, qt, fb(p, qt)))
        for mt in range(8):
            for u in range(2):
                o.append(lds_dep(ds_read_tr(fa(p, mt)[2*u:2*u+2], TA_[mt], st*8192 + u*uoff), need={f'{name}L{st}'}, mark={f'{name}R{st}'}))
        return o
    s.extend(reads(0))
    for n in range(NK):
        rd = reads(n + 1) if n + 1 < NK else []
        dm = dma_step(n + 3) if n + 3 < NK else []
        if n == NK - 1:
            if last_pre: s.extend(last_pre)
            dm = list(last_fill or [])
        mf = [mfma16(O(mt, qt), fa(n & 1, mt), fb(n & 1, qt), O(mt, qt) if n else 0) for mt in range(8) for qt in range(4)]
        gaps = [[] for _ in range(32)]
        g = dma_gap0
        for (ins, st_) in dma_ops_with_setup(dm):
            if ins.kind == 'dma':
                gaps[g - 1] += st_; gaps[g].append(ins); g = min(31, g + 2) if g + 2 <= 31 else 31
            else: gaps[min(31, g - 1)].append(ins) if g > dma_gap0 else gaps[0].append(ins)
        ev = [k for k in range(32) if not any(i.kind == 'dma' for i in gaps[k])]
        for k, ins in enumerate(rd): gaps[ev[min(len(ev) - 1, k // 2)]].append(ins)
        for k, m in enumerate(mf):
            a(m); s.extend(sort_gap(gaps[k]))

def build(opt=None):
    o = opt or Opt()
    at = Attn(o)
    STP = Stamps(o.timing, 3); STP.cyc = getattr(o, 'cyc', False)
    s = []; a = s.append
    l = V(0)
    s.extend(STP())
    a(sload(S(4, 2), ARG_K)); a(sload(S(6, 2), ARG_V)); a(sload(S(22, 2), ARG_WS))
    a(sload(S(36, 2), ARG_WQ)); a(sload(S(38, 2), ARG_WO))
    a(sload(S(62, 2), ARG_W1)); a(sload(S(60, 2), ARG_W2)); a(sload(S(58, 2), ARG_DBG))
    a(raw("s_cmp_ge_u32 s2, 256")); a(raw("s_cbranch_scc1 L_k3_end", 'branch'))
    a(valu('v_lshrrev_b32', V(1), 6, V(0)))
    a(readfirstlane(S_WAVE, V(1)))
    a(valu('v_and_b32', l, 63, l))
    a(waitcnt(lgkm=0))
    a(raw("s_and_b32 s25, s2, 7", writes=[S_G])); a(raw("s_lshr_b32 s26, s2, 3", writes=[S_QB]))
    a(raw("s_lshl_b32 s27, s25, 19", writes=[S(27)]))
    a(raw("s_sub_u32 s40, 0x400000, s27", writes=[S(40)]))
    s.extend(make_srd(SRD_K, S(4, 2), S(40), add=S(27))); s.extend(make_srd(SRD_V, S(6, 2), S(40), add=S(27)))
    s.extend(make_srd(SRD_W, S(22, 2), WS_END))
    s.extend(make_srd(SRD_WQ, S(36, 2), 512*4096*2)); s.extend(make_srd(SRD_WO, S(38, 2), 4096*512*2))
    a(raw("s_lshr_b32 s46, s26, 3", writes=[S_T64])); a(raw("s_lshl_b32 s46, s46, 3", writes=[S_T64])); a(raw("s_add_u32 s46, s46, s25", writes=[S_T64]))
    a(raw("s_and_b32 s47, s26, 7", writes=[S_DT]))
    a(raw("s_cmp_lt_u32 s46, 28"))
    a(raw(f"s_cselect_b32 s44, {2048*1792*2}, 0", writes=[S(44)]))
    a(raw(f"s_cselect_b32 s45, {WS_END}, 0", writes=[S(45)]))
    s.extend(make_srd(SRD_W1, S(62, 2), S(44)))
    s.extend(make_srd(SRD_W2, S(60, 2), 1792*2048*2))
    s.extend(make_srd(SRD_DBG, S(58, 2), 256))
    s.extend(make_srd(SRD_US, S(22, 2), S(45)))
    a(raw("s_lshl_b32 s21, s24, 12", writes=[S_WOFF]))
    S_RING = S(41); S_SO = S(42); S_T = S(43)
    a(raw("s_mul_i32 s41, s24, 24576", writes=[S_RING]))
    a(valu('v_lshlrev_b32', V(7), 4, l))
    if o.prefetch:
        a(raw("s_lshl_b32 s42, s26, 4", writes=[S_SO])); a(raw("s_lshl_b32 s43, s24, 2", writes=[S_T]))
        a(raw("s_add_u32 s42, s42, s43", writes=[S_SO])); a(raw("s_lshl_b32 s42, s42, 13", writes=[S_SO]))
        a(raw("s_lshl_b32 s43, s25, 10", writes=[S_T])); a(raw("s_add_u32 s42, s42, s43", writes=[S_SO]))
        for n in range(4):
            a(bload(4, V(128 + 4*n, 4), V(7), SRD_WQ, S_SO)); a(sop('s_add_u32', S_SO, S_SO, 8192))
    a(raw("s_lshl_b32 s42, s26, 6", writes=[S_SO])); a(raw("s_lshl_b32 s43, s24, 4", writes=[S_T]))
    a(raw("s_add_u32 s42, s42, s43", writes=[S_SO])); a(raw("s_lshl_b32 s42, s42, 10", writes=[S_SO]))
    a(raw("s_lshl_b32 s43, s24, 14", writes=[S_T])); a(raw(f"s_add_u32 s43, s43, {XBASE}", writes=[S_T]))
    for n in range(16):
        if n % 4 == 0: a(smov('m0', S_T))
        a(valu('v_xor_b32', V(14 + (n & 3)), n << 4, V(7)))
        a(lds_dep(dma(V(14 + (n & 3)), SRD_W, S_SO, off=(n & 3)*1024), mark={'XN'}))
        if n % 4 == 3:
            a(sop('s_add_u32', S_SO, S_SO, 4096)); a(sop('s_add_u32', S_T, S_T, 4096))
    PTA = [V(32 + i) for i in range(8)]; XA = [V(40 + i) for i in range(4)]; DW = [V(44 + i) for i in range(4)]
    dma_off_256(a, l, DW, 8192, 'q', S_T)
    a(raw("s_lshl_b32 s42, s25, 2", writes=[S_SO])); a(raw("s_add_u32 s42, s42, s24", writes=[S_SO]))
    a(raw("s_lshl_b32 s42, s42, 8", writes=[S_SO]))
    def wq_stage(n):
        o_ = []
        for h in range(2):
            o_ += [sop('s_add_u32', 'm0', S_RING, n*8192 + h*4096), nop(0)]
            for i in range(4): o_.append(lds_dep(dma(DW[i], SRD_WQ, S_SO, off=i*1024), need={f'qR{n}'}, mark={f'qL{n}'}))
            o_.append(sop('s_add_u32', S_SO, S_SO, 16*8192))
        return o_
    a(valu('v_mov_b32', V(6), S_RING))
    addr_tr256(a, l, PTA, V(6), 8)
    a(valu('v_and_b32', V(1), 15, l)); a(valu('v_lshrrev_b32', V(2), 4, l))
    a(valu('v_lshlrev_b32', V(3), 10, V(1))); a(valu('v_add_u32', V(3), XBASE, V(3)))
    for k in range(4):
        a(valu('v_add_u32', V(4), 4*k, V(2))); a(valu('v_xor_b32', V(4), V(4), V(1)))
        a(valu('v_lshl_add_u32', XA[k], V(4), 4, V(3)))
    a(valu('v_lshrrev_b32', V(2), 4, l)); a(valu('v_and_b32', V(3), 15, l))
    for i in range(4):
        a(valu('v_add_u32', V(4), 4*i, V(2))); a(valu('v_xor_b32', V(4), V(4), V(3)))
        a(valu('v_lshlrev_b32', V(4), 4, V(4))); a(valu('v_lshl_add_u32', KA[i], V(3), 8, V(4)))
    a(valu('v_lshrrev_b32', V(4), 2, V(3))); a(valu('v_and_b32', V(5), 3, l))
    a(valu('v_lshl_add_u32', V(7), V(2), 2, V(4)))
    a(valu('v_and_b32', V(1), 7, V(7))); a(valu('v_lshlrev_b32', V(1), 1, V(1)))
    a(valu('v_lshlrev_b32', V(7), 8, V(7)))
    a(valu('v_and_b32', V(6), 1, V(5))); a(valu('v_lshl_add_u32', V(7), V(6), 3, V(7)))
    a(valu('v_add_u32', V(7), VBASE, V(7)))
    a(valu('v_lshrrev_b32', V(6), 1, V(5)))
    for dt in range(8):
        a(valu('v_add_u32', V(5), 2*dt, V(6))); a(valu('v_xor_b32', V(5), V(5), V(1)))
        a(valu('v_lshl_add_u32', VA[dt], V(5), 4, V(7)))
    a(valu('v_lshlrev_b32', V(5), 8, V(2))); a(valu('v_add_u32', V(5), S_WOFF, V(5)))
    for n in range(4):
        a(valu('v_add_u32', V(6), 4*n, V(2))); a(valu('v_xor_b32', V(6), V(6), V(3)))
        a(valu('v_lshl_add_u32', DK[n], V(6), 4, V(5)))
    for n in range(2):
        a(valu('v_add_u32', V(6), 4*n, V(2))); a(valu('v_lshlrev_b32', V(6), 1, V(6)))
        a(valu('v_xor_b32', V(6), V(6), V(3))); a(valu('v_lshl_add_u32', DV[n], V(6), 4, V(5)))
    a(raw("s_lshl_b32 s27, s24, 14", writes=[S_XB])); a(raw(f"s_add_u32 s27, s27, {XBASE}", writes=[S_XB]))
    a(smov(S_SR, S_XB))
    a(valu('v_mov_b32', V(26), S_XB))
    tr_addr_128(a, l, TA, V(26), V(1), V(2), V(3), V(4))
    dma_off_128(a, l, DA, 3584, V(1), V(2), V(3), s_tmp=S_T)
    dma_off_128(a, l, DB, 1024, V(1), V(2), V(3), s_tmp=S_T)
    a(raw("s_lshl_b32 s44, s24, 9", writes=[S(44)]))
    a(raw("s_mul_i32 s39, s44, 3584", writes=[S_SA])); a(raw("s_lshl_b32 s45, s46, 7", writes=[S(45)])); a(raw("s_add_u32 s39, s39, s45", writes=[S_SA]))
    a(raw("s_lshl_b32 s36, s44, 10", writes=[S_SB])); a(raw("s_lshl_b32 s45, s47, 7", writes=[S(45)])); a(raw("s_add_u32 s36, s36, s45", writes=[S_SB]))
    a(raw(f"s_add_u32 s36, s36, {WS_H}", writes=[S_SB]))
    a(smov(S_N, 0)); a(smov(S_SKIP, 0))
    s.extend(wq_stage(0))
    a(waitcnt(vm=8)); a(barrier())
    s.extend(wq_stage(1)); s.extend(wq_stage(2))
    s.extend(STP())
    def xread(n, qt, dst): return ds_read_b128(dst, XA[n & 3], (n >> 2)*256 + qt*16384)
    kv0 = [smov(S_TILE, 0)] + at.kv_dma(0)
    later = []
    if o.side: later += side_dma(SRD_W1, S_SA, 32*3584, SRD_W, S_SB, 32*1024, DA, DB, 0, False) + [sop('s_xor_b32', S_SR, S_SR, 8192)]
    later += at.kv_dma(1)
    if o.side: later += side_dma(SRD_W1, S_SA, 32*3584, SRD_W, S_SB, 32*1024, DA, DB, 1, False) + [sop('s_xor_b32', S_SR, S_SR, 8192)]
    proj_gemm2(a, s, PTA, DW, SRD_WQ, S_SO, 8192, S_RING, xread, 1024, 'q', last_pre=[waitcnt(lgkm=0), barrier()], last_fill=kv0)
    s.extend(STP())
    a(smov(S(44), QSCALE))
    qpost = []
    for i in range(4):
        for qt in range(4):
            x, y = O(2*i, qt), O(2*i+1, qt)
            b_ = qpost.append
            for r in range(4):
                b_(valu('v_mul_f32', x[r], S(44), x[r])); b_(valu('v_mul_f32', y[r], S(44), y[r]))
            T4 = V(48 + 4*((i*4+qt) & 1), 4)
            X0, X1, Y0, Y1 = T4[0], T4[1], T4[2], T4[3]
            b_(valu('v_cvt_pk_bf16_f32', X0, x[0], x[1])); b_(valu('v_cvt_pk_bf16_f32', X1, x[2], x[3]))
            b_(valu('v_cvt_pk_bf16_f32', Y0, y[0], y[1])); b_(valu('v_cvt_pk_bf16_f32', Y1, y[2], y[3]))
            b_(permlane32_swap(X0, Y0)); b_(permlane32_swap(X1, Y1))
            b_(permlane16_swap(X0, Y0)); b_(permlane16_swap(X1, Y1))
            q = Q(i, qt)
            b_(valu('v_accvgpr_write_b32', q[0], X0)); b_(valu('v_accvgpr_write_b32', q[1], X1))
            b_(valu('v_accvgpr_write_b32', q[2], Y0)); b_(valu('v_accvgpr_write_b32', q[3], Y1))
    grp = group_dma(later)
    step = max(1, len(qpost) // (len(grp) + 1)); gi = 0
    for k, ins in enumerate(qpost):
        a(ins)
        if k % step == step - 1 and gi < len(grp):
            s.extend(expand([grp[gi]])); gi += 1
            while gi < len(grp) and not isinstance(grp[gi], Grp):
                a(grp[gi]); gi += 1
    for g_ in grp[gi:]: s.extend(expand([g_]))
    for r in range(128): a(valu('v_mov_b32', V(128 + r), 0))
    for qt in range(4):
        for r in range(4): a(valu('v_mov_b32', LA[qt][r], 0))
    for r in range(4): a(valu('v_mov_b32', ONES[r], 0x3F803F80))
    s.extend(STP())
    a(waitcnt(vm=(24 if o.side else 8))); a(barrier())
    s.extend(at.k_reads(0, 0))
    for c in range(2):
        for q2 in range(2):
            for t in range(2):
                for i in range(4): a(mfma16(Sx(c, t, q2), Kf(t*4+i), Q(i, 2*c+q2), 0 if i == 0 else Sx(c, t, q2)))
    for qt in range(4):
        c, q2 = qt >> 1, qt & 1
        s0, s1 = Sx(c, 0, q2), Sx(c, 1, q2); m = V(4); t = V(5)
        a(valu('v_max3_f32', m, s0[0], s0[1], s0[2])); a(valu('v_max3_f32', m, m, s0[3], s1[0]))
        a(valu('v_max3_f32', m, m, s1[1], s1[2])); a(valu('v_max_f32', m, m, s1[3]))
        a(valu('v_mov_b32', t, m)); a(permlane16_swap(m, t)); a(valu('v_max_f32', m, m, t))
        a(valu('v_mov_b32', t, m)); a(permlane32_swap(m, t)); a(valu('v_max_f32', m, m, t))
        for r in range(4): a(valu('v_sub_f32', NM[qt][r], 0, m))
    s.extend(STP())
    pro = s
    B1 = S(28, 4); B2 = S(32 - 4, 4)
    def scratch_write():
        o_ = [valu('v_lshlrev_b32', V(27), 4, l), valu('v_add_u32', V(26), S_XB, V(27))]
        for i in range(4):
            for j in range(4): o_.append(ds_write(4, V(26), sacc(i, j), off=(i*4+j)*1024))
        o_ += [raw("s_lshl_b32 s43, s24, 10", writes=[S_TMP]), raw(f"s_add_u32 s43, s43, {XBASE}", writes=[S_TMP]), valu('v_add_u32', V(27), S_TMP, V(27))]
        return o_
    def scratch_reads():
        return [ds_read_b128(A(192 + (i*4+w)*4, 4), V(27), w*16384 + i*4096) for i in range(4) for w in range(4)]
    def sum4(i, r, x, t):
        return [valu('v_accvgpr_read_b32', x, A(192 + (i*4+0)*4 + r)), valu('v_accvgpr_read_b32', t, A(192 + (i*4+1)*4 + r)),
                valu('v_add_f32', x, x, t), valu('v_accvgpr_read_b32', t, A(192 + (i*4+2)*4 + r)),
                valu('v_add_f32', x, x, t), valu('v_accvgpr_read_b32', t, A(192 + (i*4+3)*4 + r)), valu('v_add_f32', x, x, t)]
    per = {}
    def side_spec(j):
        kw = dict(first=(j == 0), last_drain=(j == 32), kv=(j <= 29))
        if not o.side: return kw
        if j <= 15:
            rd, mf, dm = g1_parts(j, in_loop=(j >= 1))
            kw['side_groups'] = [(5, mf)]
            if getattr(o, 'x_noread', False): rd = []
            if getattr(o, 'x_nodma', False): dm = [i for i in dm if i.kind != 'dma' and 'm0' not in i.writes]
            kw['streams'] = [('srd', spread(rd, o.g1_rd[0], o.g1_rd[1]))]
            if dm: kw['side_dma_list'] = (dm, o.g1_dm[0], o.g1_dm[1], 0.5)
            kw['post'] = toggle_side()
        elif j == 16:
            pre = [sload(S(44, 2), ARG_B1), waitcnt(lgkm=0)] + make_srd(B1, S(44, 2), 1792*2)
            bl = [valu('v_lshrrev_b32', V(1), 4, l), valu('v_lshlrev_b32', V(1), 3, V(1)), raw("s_lshl_b32 s44, s46, 7", writes=[S(44)])]
            bl += [bload(2, V(18 + 2*ft, 2), V(1), B1, S(44), off=32*ft) for ft in range(4)]
            kw['pre'] = pre
            kw['streams'] = [('sw', spread(scratch_write(), 0.1, 0.7)), ('sb', spread(bl, 0.05, 0.1))]
        elif j == 17:
            c = scratch_reads()
            comp = [smov(S(45), -2.0*0.7978845608028654*LOG2E*0.044715), valu('v_mov_b32', V(1), -2.0*0.7978845608028654*LOG2E)]
            comp += [raw("s_lshl_b32 s43, s47, 2", writes=[S_TMP]), raw("s_add_u32 s43, s43, s24", writes=[S_TMP]), raw("s_mul_i32 s43, s43, 56", writes=[S_TMP]),
                     raw("s_lshl_b32 s39, s46, 1", writes=[S_SA]), raw("s_add_u32 s43, s43, s39", writes=[S_TMP]), raw("s_lshl_b32 s43, s43, 10", writes=[S_TMP]),
                     raw(f"s_add_u32 s43, s43, {WS_U}", writes=[S_TMP]), valu('v_lshlrev_b32', V(26), 4, l)]
            for ft in range(4):
                for r in range(4):
                    x = V(2 + r)
                    comp += sum4(ft, r, x, V(6))
                    b = V(18 + 2*ft + (r >> 1))
                    comp.append(valu('v_and_b32', V(6), 0xffff0000, b) if r & 1 else valu('v_lshlrev_b32', V(6), 16, b))
                    comp.append(valu('v_add_f32', x, x, V(6)))
                    comp += [valu('v_mul_f32', V(7), x, x), valu('v_fma_f32', V(7), V(7), S(45), V(1)), valu('v_mul_f32', V(7), V(7), x), valu('v_exp_f32', V(7), V(7)), valu('v_add_f32', V(7), 1.0, V(7)), valu('v_rcp_f32', V(7), V(7)), valu('v_mul_f32', x, x, V(7))]
                q = V(28 + 2*(ft & 1), 2)
                comp += [valu('v_cvt_pk_bf16_f32', q[0], V(2), V(3)), valu('v_cvt_pk_bf16_f32', q[1], V(4), V(5))]
                if ft & 1: comp.append(lds_dep(bstore(4, V(28, 4), V(26), SRD_US, S_TMP, off=(ft >> 1)*1024, mods="sc1"), mark={'US'}))
            kw['streams'] = [('srd', spread(c, 0.0, 0.15)), ('scomp', spread(comp, 0.15, 0.98))]
        elif j == 18:
            su = []
            dma_off_128(su.append, l, DA, 4096, V(1), V(2), V(3), s_tmp=S_TMP)
            su += [valu('v_lshlrev_b32', DB[0], 4, l)] + [valu('v_add_u32', DB[t], 56*1024, DB[t-1]) for t in range(1, 4)]
            su += [raw("s_mul_i32 s39, s24, 448*4096", writes=[S_SA]), raw("s_lshl_b32 s43, s46, 7", writes=[S_TMP]), raw("s_add_u32 s39, s39, s43", writes=[S_SA]),
                   raw("s_mul_i32 s36, s47, 4*56", writes=[S_SB]), raw("s_mul_i32 s43, s24, 14", writes=[S_TMP]), raw("s_add_u32 s36, s36, s43", writes=[S_SB]),
                   raw("s_lshl_b32 s36, s36, 10", writes=[S_SB]), raw(f"s_add_u32 s36, s36, {WS_U}", writes=[S_SB]), smov(S_N, 0), smov(S_SKIP, 0)]
            sig = [valu('v_mov_b32', V(4), 1), valu('v_lshlrev_b32', V(5), 25, l),
                   raw("s_lshl_b32 s44, s47, 2", writes=[S(44)]), raw("s_add_u32 s44, s44, s24", writes=[S(44)]), raw("s_lshl_b32 s44, s44, 8", writes=[S(44)]),
                   raw(f"s_add_u32 s44, s44, {WS_CNT}", writes=[S(44)]),
                   lds_dep(I(f"buffer_atomic_add v4, v5, {SRD_US}, s44 offen sc1", 'vatomic', reads=[V(4), V(5), SRD_US, S(44)], writes=[]), need={'US'})]
            kw['streams'] = [('ssu', spread(su, 0.05, 0.55)), ('ssig', [(0.6, 0.5, i) for i in sig])]
        elif j == 19:
            st = g2_dma(0, False) + [sop('s_xor_b32', S_SR, S_SR, 8192)] + g2_dma(1, False) + [sop('s_xor_b32', S_SR, S_SR, 8192)]
            kw['side_dma_list'] = (st, 0.42, 0.95, 0.0)
        elif j == 20:
            pl = [valu('v_and_b32', V(1), 3, l), valu('v_lshlrev_b32', V(1), 8, V(1)), raw("s_lshl_b32 s43, s47, 10", writes=[S_TMP]),
                  raw(f"s_add_u32 s43, s43, {WS_CNT}", writes=[S_TMP]), bload(1, V(6), V(1), SRD_W, S_TMP, mods="sc1")]
            kw['streams'] = [('spoll', [(0.80, 0.7, i) for i in pl])]
            if o.prefetch:
                extra = [raw("s_lshl_b32 s44, s25, 5", writes=[S(44)]), raw("s_add_u32 s44, s44, s26", writes=[S(44)]), raw("s_lshl_b32 s44, s44, 2", writes=[S(44)]),
                         raw("s_add_u32 s44, s44, s24", writes=[S(44)]), raw("s_lshl_b32 s44, s44, 12", writes=[S(44)])]
                extra += [bload(4, A(240 + 4*n, 4), DB[0], SRD_WO, S(44), off=n*1024) for n in range(4)]
                kw['streams'].append(('spf', spread(extra, 0.42, 0.55)))
            chk = lambda: [I("v_cmp_eq_u32 vcc, 28, v6", 'valu', reads=[V(6)], writes=['vcc']), nop(3), raw("s_cmp_eq_u64 vcc, -1", reads=['vcc'])]
            dg = (STP() if getattr(o, 'polldiag', False) else [])
            kw['post'] = dg + [smov(S(45), 0), label("L_k3_poll")] + chk() + [raw("s_cbranch_scc1 L_k3_pollok", 'branch'),
                          raw("s_sleep 4"), bload(1, V(6), V(1), SRD_W, S_TMP, mods="sc1"), waitcnt(vm=0),
                          sop('s_add_u32', S(45), S(45), 1), scmp('s_cmp_lt_u32', S(45), 0x40000), raw("s_cbranch_scc1 L_k3_poll", 'branch'), label("L_k3_pollok")] + ([smov(S(94), S(45))] if getattr(o, 'polldiag', False) else [])
            kw['vm_end'] = 0
        elif j == 21:
            z = [valu('v_accvgpr_write_b32', A(128 + r), 0) for r in range(64)]
            kw['streams'] = [('sul', spread(g2_uloads(), 0.05, 0.3)), ('sz', spread(z, 0.1, 0.95))]
        elif 22 <= j <= 28:
            i = j - 22
            rd, mfs = g2_parts(i if i else 1)
            rd, _ = g2_parts(i)
            kw['side_groups'] = [(3, mfs[0]), (5, mfs[1])]
            stl = [('srd', spread(rd, 0.02, 0.36))]
            if j <= 27:
                dm = [scmp('s_cmp_gt_u32', S_N, 4), I(f"s_cselect_b32 {S_SKIP}, 0x30000, 0", 'salu', reads=['scc'], writes=[S_SKIP]), sop('s_add_u32', S_N, S_N, 1)]
                dm += g2_dma(i & 1, True)
                kw['side_dma_list'] = (dm, 0.45, 0.78, 0.42)
                stl += [('sul', spread(g2_uloads(), 0.82, 0.98, rel=0.80))]
            kw['streams'] = stl
            kw['post'] = toggle_side()
        elif j == 29:
            pre = [sload(S(44, 2), ARG_B2), waitcnt(lgkm=0)] + make_srd(B1, S(44, 2), 2048*2)
            bl = [valu('v_and_b32', V(1), 15, l), raw("s_lshl_b32 s44, s46, 6", writes=[S(44)]), raw("s_lshl_b32 s45, s24, 4", writes=[S(45)]),
                  raw("s_add_u32 s44, s44, s45", writes=[S(44)]), valu('v_add_u32', V(1), S(44), V(1)), valu('v_lshlrev_b32', V(1), 1, V(1)), bload_ushort(V(18), V(1), B1)]
            kw['pre'] = pre
            kw['streams'] = [('sw', spread(scratch_write(), 0.1, 0.7)), ('sb', spread(bl, 0.05, 0.1))]
        elif j == 30:
            c = scratch_reads()
            comp = [smov(S(44), -LOG2E), valu('v_lshlrev_b32', V(18), 16, V(18))]
            comp += [raw("s_lshr_b32 s43, s47, 1", writes=[S_TMP]), raw("s_lshl_b32 s45, s46, 2", writes=[S(45)]), raw("s_add_u32 s43, s43, s45", writes=[S_TMP]),
                     raw("s_lshl_b32 s43, s43, 2", writes=[S_TMP]), raw("s_and_b32 s45, s47, 1", writes=[S(45)]), raw("s_lshl_b32 s45, s45, 1", writes=[S(45)]),
                     raw("s_add_u32 s43, s43, s45", writes=[S_TMP]), raw("s_lshl_b32 s43, s43, 2", writes=[S_TMP]), raw("s_add_u32 s43, s43, s24", writes=[S_TMP]),
                     raw("s_lshl_b32 s43, s43, 10", writes=[S_TMP]), raw(f"s_add_u32 s43, s43, {WS_GATE}", writes=[S_TMP]), valu('v_lshlrev_b32', V(26), 4, l)]
            for mt in range(4):
                for r in range(4):
                    y = V(2 + r)
                    comp += sum4(mt, r, y, V(6))
                    comp += [valu('v_add_f32', y, y, V(18)), valu('v_mul_f32', V(7), S(44), y), valu('v_exp_f32', V(7), V(7)), valu('v_add_f32', V(7), 1.0, V(7)),
                             valu('v_rcp_f32', V(7), V(7)), valu('v_mul_f32', y, y, V(7))]
                q = V(28 + 2*(mt & 1), 2)
                comp += [valu('v_cvt_pk_bf16_f32', q[0], V(2), V(3)), valu('v_cvt_pk_bf16_f32', q[1], V(4), V(5))]
                if mt & 1:
                    comp.append(bstore(4, V(28, 4), V(26), SRD_W, S_TMP))
                    comp.append(sop('s_add_u32', S_TMP, S_TMP, 4096))
            kw['streams'] = [('srd', spread(c, 0.0, 0.15)), ('scomp', spread(comp, 0.15, 0.98))]
        return kw
    seqs = [('pro', pro)]
    for j in range(33):
        p = at.period(j, **side_spec(j))
        if o.timing and j in o.stamp_after: p = p + STP()
        seqs.append((j, [label(f"@@P{j}")] + p))
    s = []; a = s.append
    DO = [V(14 + i) for i in range(4)]
    TO = [V(116 + i) for i in range(8)]
    dma_off_256(a, l, DO, 1024, 'o', S_T)
    a(raw("s_lshl_b32 s42, s25, 19", writes=[S_SO])); a(raw("s_lshl_b32 s43, s24, 8", writes=[S_T]))
    a(raw("s_add_u32 s42, s42, s43", writes=[S_SO]))
    for n in range(3):
        for h in range(2):
            a(sop('s_add_u32', 'm0', S_RING, n*8192 + h*4096)); a(nop(0))
            for i in range(4): a(lds_dep(dma(DO[i], SRD_WO, S_SO, off=i*1024), need={f'oR{n}'}, mark={f'oL{n}'}))
            a(sop('s_add_u32', S_SO, S_SO, 16*1024))
    pre_epi = s
    s = []; a = s.append
    a(label("@@EPI"))
    a(nop(7))
    a(valu('v_mov_b32', V(6), S_RING))
    addr_tr256(a, l, TO, V(6), 4)
    LI = [V(24 + i) for i in range(4)]
    for qt in range(4): a(valu('v_rcp_f32', LI[qt], LA[qt][0]))
    a(valu('v_lshlrev_b32', V(7), 4, l))
    a(raw("s_lshl_b32 s43, s24, 14", writes=[S_T])); a(raw(f"s_add_u32 s43, s43, {XBASE}", writes=[S_T]))
    a(valu('v_add_u32', V(22), S_T, V(7))); a(valu('v_add_u32', V(23), XBASE, V(7)))
    for kk in range(4):
        for qt in range(4):
            x, y = O(2*kk, qt), O(2*kk+1, qt)
            for r in range(4):
                a(valu('v_mul_f32', x[r], x[r], LI[qt])); a(valu('v_mul_f32', y[r], y[r], LI[qt]))
            F = V(48 + 4*((kk*4+qt) & 3), 4)
            a(valu('v_cvt_pk_bf16_f32', F[0], x[0], x[1])); a(valu('v_cvt_pk_bf16_f32', F[1], x[2], x[3]))
            a(valu('v_cvt_pk_bf16_f32', F[2], y[0], y[1])); a(valu('v_cvt_pk_bf16_f32', F[3], y[2], y[3]))
            a(ds_write(4, V(22), F, off=(kk*4+qt)*1024))
    a(waitcnt(lgkm=0)); a(barrier())
    s.extend(STP())
    def oread(n, qt, dst): return ds_read_b128(dst, V(23), (n*4+qt)*1024)
    proj_gemm2(a, s, TO, DO, SRD_WO, S_SO, 1024, S_RING, oread, 4096, 'o')
    s.extend(STP())
    a(raw("s_lshl_b32 s42, s25, 5", writes=[S_SO])); a(raw("s_add_u32 s42, s42, s26", writes=[S_SO]))
    a(raw("s_lshl_b32 s42, s42, 2", writes=[S_SO])); a(raw("s_add_u32 s42, s42, s24", writes=[S_SO]))
    a(raw("s_lshl_b32 s42, s42, 14", writes=[S_SO])); a(raw(f"s_add_u32 s42, s42, {WS_PART}", writes=[S_SO]))
    for p in range(4):
        for qt in range(4):
            x, y = O(2*p, qt), O(2*p+1, qt)
            F = V(48 + 4*((p*4+qt) & 3), 4)
            a(valu('v_cvt_pk_bf16_f32', F[0], x[0], x[1])); a(valu('v_cvt_pk_bf16_f32', F[1], x[2], x[3]))
            a(valu('v_cvt_pk_bf16_f32', F[2], y[0], y[1])); a(valu('v_cvt_pk_bf16_f32', F[3], y[2], y[3]))
            a(bstore(4, F, V(7), SRD_W, S_SO, off=qt*1024))
        a(sop('s_add_u32', S_SO, S_SO, 4096))
    a(waitcnt(vm=0))
    s.extend(STP())
    if getattr(o, 'diag_period', None) is not None: STP.force(len(o.diag_marks))
    if getattr(o, 'polldiag', False): STP.n = 16
    s.extend(STP.flush(S_WAVE))
    epi = s
    full = []
    for (name, seq) in seqs:
        if name == 32: full += pre_epi
        full += seq
    full += epi
    full, _, _ = auto_waits(full)
    errs = validate_tags(full)
    for e in errs[:10]: print("DATAFLOW", e, file=sys.stderr)
    parts = {}; cur = 'pro'; parts[cur] = []
    for ins in full:
        if ins.kind == 'label' and ins.text.startswith('@@'):
            cur = ins.text[2:-1]; parts[cur] = []
        else: parts[cur].append(ins)
    P = lambda j: parts[f'P{j}']
    txt = lambda j: [i.text for i in P(j)]
    def loop(first_j, n_iter, lbl, cnt):
        body = []
        for k in range(3):
            base = list(P(first_j + k))
            for it in range(1, n_iter):
                other = P(first_j + 3*it + k)
                assert len(other) == len(base), f"loop {lbl}: period {first_j+k} vs {first_j+3*it+k} length {len(base)} {len(other)}"
                for idx, (x, y) in enumerate(zip(base, other)):
                    if x.text != y.text:
                        assert x.kind == 'wait' and y.kind == 'wait' and (x.vm is None) == (y.vm is None) and (x.lgkm is None) == (y.lgkm is None), (lbl, x.text, y.text)
                        base[idx] = waitcnt(vm=None if x.vm is None else min(x.vm, y.vm), lgkm=None if x.lgkm is None else min(x.lgkm, y.lgkm))
            body += [comment(f"period {first_j+k} (+3n)")] + base
        body += [sop('s_sub_u32', cnt, cnt, 1), scmp('s_cmp_lg_u32', cnt, 0), raw(f"s_cbranch_scc1 {lbl}", 'branch')]
        errs = check_hazards(body, loop=True, name=lbl)
        for e in errs[:20]: print("HAZARD", e, file=sys.stderr)
        return [smov(cnt, n_iter), label(lbl)] + body
    out = fix_hazards(parts['pro'] + [comment("period 0")] + P(0), "pro")
    S_CNT = S(4)
    if getattr(o, 'noloop', False):
        allp = []
        for j in range(1, 33): allp += [comment(f"period {j}")] + P(j)
        out += fix_hazards(allp + parts['EPI'], "all")
        out.append(label("L_k3_end"))
        return emit(out)
    if o.side:
        out += loop(1, 5, "L_k3_loopA", S_CNT)
        mid = []
        for j in range(16, 22): mid += [comment(f"period {j}")] + P(j)
        out += fix_hazards(P(15)[-30:] + mid, "mid")[len(P(15)[-30:]):] if False else fix_hazards(mid, "mid")
        out += loop(22, 2, "L_k3_loopB", S_CNT)
        tail = []
        for j in range(28, 33): tail += [comment(f"period {j}")] + P(j)
    else:
        out += loop(1, 9, "L_k3_loopA", S_CNT)
        tail = []
        for j in range(28, 33): tail += [comment(f"period {j}")] + P(j)
    tm = []
    out += fix_hazards(tail + parts['EPI'], "tail")
    out.append(label("L_k3_end"))
    if getattr(o, 'verbose', False):
        for j in (2, 16, 17, 18, 21, 23, 29, 30):
            tot = 0; gap = None
            for i in P(j):
                if i.kind == 'mfma':
                    if gap is not None: tot += max(16, gap)
                    gap = 8
                elif gap is not None: gap += cost(i)
            print(f"; period {j}: est {tot + max(16, gap or 0)} cycles, {len(P(j))} instrs", file=sys.stderr)
    return emit(out)
if __name__ == "__main__":
    o = Opt(); o.verbose = True
    for kv in sys.argv[1:]:
        k, v = kv.split("="); setattr(o, k, eval(v))
    t = build(o); print(len(t.splitlines()))
```

```python
import sys; sys.path.insert(0, 'work')
from asmgen import *

ARG_X, ARG_K, ARG_V, ARG_WQ, ARG_WO, ARG_BX, ARG_W1, ARG_B1, ARG_W2, ARG_B2, ARG_OUT, ARG_DBG, ARG_WS = [8*i for i in range(13)]
WS_XN = 0
WS_H = 2 << 20
WS_U = 4 << 20
WS_PART = 8 << 20
WS_CNT = (7 << 20)
WS_WOT = 24 << 20
WS_WQT = 28 << 20
WS_END = 32 << 20

def sload(dst, off):
    return raw(f"s_load_dwordx2 {dst}, s[0:1], {off}", 'smem', writes=[dst])
def smov(d, x): return raw(f"s_mov_b32 {d}, {fmt(x)}", 'salu', reads=[x], writes=[d])
def sop(op, d, a, b):
    return I(f"{op} {d}, {fmt(a)}, {fmt(b)}", 'salu', reads=[a, b], writes=[d, 'scc'], op=op)
def make_srd(srd, ptr, nbytes, add=None):
    o = []
    if add is None:
        o += [smov(srd[0], ptr[0]), smov(srd[1], ptr[1])]
    else:
        o += [sop('s_add_u32', srd[0], ptr[0], add), I(f"s_addc_u32 {srd[1]}, {ptr[1]}, 0", 'salu', reads=[ptr[1], 'scc'], writes=[srd[1], 'scc'])]
    o += [smov(srd[2], nbytes), smov(srd[3], 0x20000)]
    return o
def readfirstlane(s, v):
    return I(f"v_readfirstlane_b32 {s}, {v}", 'valu', reads=[v], writes=[s], op='v_readfirstlane')
def dpp_add(d, a, ctrl):
    return I(f"v_add_f32_dpp {d}, {a}, {a} {ctrl} row_mask:0xf bank_mask:0xf", 'valu', reads=[a], writes=[d], op='v_add_f32_dpp')
def dpp_mov(d, a, ctrl):
    return I(f"v_mov_b32_dpp {d}, {a} {ctrl} row_mask:0xf bank_mask:0xf", 'valu', reads=[a], writes=[d], op='v_mov_b32_dpp')
def wave_sum(v, t):
    o = []
    for ctrl in ("quad_perm:[1,0,3,2]", "quad_perm:[2,3,0,1]", "row_half_mirror", "row_mirror"):
        o.append(dpp_add(v, v, ctrl))
    o += [valu('v_mov_b32', t, v), permlane16_swap(v, t), valu('v_add_f32', v, v, t)]
    o += [valu('v_mov_b32', t, v), permlane32_swap(v, t), valu('v_add_f32', v, v, t)]
    return o
def finish(seq, name):
    seq, _, _ = insert_waits(seq)
    return fix_hazards(seq, name)

def kernel_text(name, body_text, vgpr, accum, sgpr=96):
    return f""".globl {name}
.p2align 8
.type {name},@function
{name}:
{body_text}  s_endpgm
"""
def kernel_desc(name, vgpr, accum, sgpr=96):
    return f""".amdhsa_kernel {name}
  .amdhsa_next_free_vgpr {vgpr}
  .amdhsa_next_free_sgpr {sgpr}
  .amdhsa_accum_offset {accum}
  .amdhsa_group_segment_fixed_size 0
  .amdhsa_kernarg_size 104
  .amdhsa_user_sgpr_count 2
  .amdhsa_user_sgpr_kernarg_segment_ptr 1
  .amdhsa_system_sgpr_workgroup_id_x 1
.end_amdhsa_kernel
"""

WS_STAMP = 32 << 20
class Stamps:
    def __init__(self, enable, kid, base=64):
        self.en, self.kid, self.base, self.n = enable, kid, base, 0
    def __call__(self):
        if not self.en: return []
        r = S(self.base + 2*self.n, 2); self.n += 1
        op = 's_memtime' if getattr(self, 'cyc', False) else 's_memrealtime'
        return [raw(f"{op} {r}", 'smem', writes=[r]), waitcnt(lgkm=0)]
    def force(self, n):
        self.en = True; self.n = n
    def flush(self, wave_s, vt=(V(1), V(2))):
        if not self.en: return []
        o = [sload(S(60, 2), ARG_WS), waitcnt(lgkm=0)]
        o += make_srd(S(56, 4), S(60, 2), 64 << 20)
        o += [raw(f"s_lshl_b32 s62, s2, 2", writes=[S(62)]), sop('s_add_u32', S(62), S(62), wave_s), raw("s_lshl_b32 s62, s62, 6", writes=[S(62)]),
              sop('s_add_u32', S(62), S(62), WS_STAMP + (self.kid << 20))]
        o += [valu('v_mov_b32', vt[1], 0)]
        for i in range(self.n):
            o += [valu('v_mov_b32', vt[0], S(self.base + 2*i)), nop(1), bstore(1, vt[0], vt[1], S(56, 4), S(62), off=4*i), nop(1)]
        o += [waitcnt(vm=0)]
        return o
```

```python
from k_common import *
def build(code_prefetch=0, timing=False):
    s = []; a = s.append
    STP = Stamps(timing, 1)
    s.extend(STP())
    a(raw("s_cmp_ge_u32 s2, 512")); a(raw("s_cbranch_scc1 L_k1_end"))
    a(sload(S(4, 2), ARG_X)); a(sload(S(6, 2), ARG_WS))
    a(valu('v_lshrrev_b32', V(1), 6, V(0)))
    a(valu('v_and_b32', V(2), 63, V(0)))
    a(raw("s_lshl_b32 s3, s2, 2", writes=[S(3)]))
    a(valu('v_add_u32', V(1), S(3), V(1)))
    a(valu('v_lshlrev_b32', V(1), 10, V(1)))
    a(valu('v_lshl_add_u32', V(1), V(2), 4, V(1)))
    a(waitcnt(lgkm=0))
    s += make_srd(S(8, 4), S(4, 2), 2 << 20)
    s += make_srd(S(12, 4), S(6, 2), 4 << 20)
    a(bload(4, V(4, 4), V(1), S(8, 4)))
    s.extend(make_srd(S(20, 4), S(6, 2), WS_CNT + 8192))
    a(raw("s_lshl_b32 s17, s2, 10", writes=[S(17)])); a(raw(f"s_add_u32 s17, s17, {WS_CNT}", writes=[S(17)]))
    a(valu('v_lshlrev_b32', V(30), 2, V(0))); a(valu('v_mov_b32', V(31), 0))
    a(bstore(1, V(31), V(30), S(20, 4), S(17)))
    if code_prefetch:
        per = (code_prefetch + 63) // 64
        per = (per + 1023) // 1024 * 1024
        a(raw("s_getpc_b64 s[24:25]", writes=[S(24, 2)]))
        a(label("L_k1_pc"))
        a(raw("s_add_u32 s24, s24, attn_kernel-L_k1_pc", writes=[S(24)])); a(raw("s_addc_u32 s25, s25, 0", writes=[S(25)]))
        a(raw("s_lshr_b32 s26, s2, 3", writes=[S(26)])); a(raw(f"s_mul_i32 s26, s26, {per}", writes=[S(26)]))
        a(valu('v_lshlrev_b32', V(28), 2, V(0)))
        a(valu('v_add_u32', V(28), S(26), V(28)))
        a(valu('v_min_u32', V(28), code_prefetch - 4, V(28)))
        for k in range(per // 1024):
            a(I(f"global_load_dword v29, v28, s[24:25]", 'vload', reads=[V(28), S(24, 2)], writes=[]))
            if k + 1 < per // 1024:
                a(valu('v_add_u32', V(28), 1024, V(28))); a(valu('v_min_u32', V(28), code_prefetch - 4, V(28)))
    X = [V(8 + i) for i in range(8)]
    def unpack(src):
        o = []
        for i in range(4):
            o.append(valu('v_lshlrev_b32', X[2*i], 16, src[i]))
            o.append(valu('v_and_b32', X[2*i+1], 0xffff0000, src[i]))
        return o
    def norm(dst):
        o = []
        sm = V(16); t = V(17)
        o.append(valu('v_add_f32', sm, X[0], X[1]))
        o.append(valu('v_add_f32', t, X[2], X[3]))
        o.append(valu('v_add_f32', V(18), X[4], X[5]))
        o.append(valu('v_add_f32', V(19), X[6], X[7]))
        o.append(valu('v_add_f32', sm, sm, t)); o.append(valu('v_add_f32', V(18), V(18), V(19)))
        o.append(valu('v_add_f32', sm, sm, V(18)))
        o += wave_sum(sm, t)
        o.append(valu('v_mul_f32', sm, 1.0/512, sm))
        for i in range(8): o.append(valu('v_sub_f32', X[i], X[i], sm))
        q = V(18)
        o.append(valu('v_mul_f32', q, X[0], X[0]))
        for i in range(1, 8): o.append(valu('v_fmac_f32', q, X[i], X[i], dst_read=True))
        o += wave_sum(q, t)
        o.append(valu('v_mov_b32', t, 1e-5))
        o.append(valu('v_fmac_f32', t, 1.0/512, q, dst_read=True))
        o.append(valu('v_rsq_f32', t, t))
        for i in range(8): o.append(valu('v_mul_f32', X[i], X[i], t))
        for i in range(4): o.append(valu('v_cvt_pk_bf16_f32', dst[i], X[2*i], X[2*i+1]))
        return o
    s += unpack(V(4, 4))
    s += norm(V(20, 4))
    a(bstore(4, V(20, 4), V(1), S(12, 4), 0, mods=""))
    s += unpack(V(20, 4))
    s += norm(V(24, 4))
    a(smov(S(16), WS_H))
    a(bstore(4, V(24, 4), V(1), S(12, 4), S(16)))
    a(waitcnt(vm=0))
    s.extend(STP())
    if timing:
        a(valu('v_lshrrev_b32', V(3), 6, V(0))); a(nop(1)); a(readfirstlane(S(30), V(3))); a(nop(4))
        s.extend(STP.flush(S(30)))
    s = finish(s, "k1")
    s.append(label("L_k1_end"))
    return emit(s)
```

```python
from k_common import *
from k3_attn import (NST, KBASE, VBASE, XBASE, SRD_K, SRD_V, SRD_W, SRD_WQ, SRD_WO, S_TILE, S_WOFF, S_WAVE, S_G, S_QB, QSCALE,
                     O, Q, Kf, Vf, Sb, Sx, NM, LA, Pb, ONES, KA, VA, DK, DV, addr_tr256, dma_off_256, proj_gemm)
from k2_gemm1 import tr_addr_128, dma_off_128, gelu, LOG2E
WS_GATE = 6 << 20
HMOD = 'sc1'

class Opt:
    barrier = True
    minfill = 8; maxfill = 8; early = 1.5
    sm_rel = 4; p_lead = 2; k_span = 1.0; k_lead = 6; bar_lead = 5
    timing = False; prefetch = True; side = True; fuse_ln = True
    stamp_after = (0, 16, 17, 21, 28, 30, 32)
    def __init__(self, **kw): self.__dict__.update(kw)

SRD_W1 = S(48, 4); SRD_W2 = S(52, 4); SRD_DBG = S(56, 4); SRD_US = S(60, 4)
S_T64 = S(46); S_DT = S(47); S_SR = S(40); S_SKIP = S(37); S_N = S(38); S_SA = S(39); S_SB = S(36); S_XB = S(27); S_KVSKIP = S(23); S_TMP = S(43)
TA = [V(14 + i) for i in range(4)]; DA = [V(18 + i) for i in range(4)]; DB = [V(22 + i) for i in range(4)]
def sacc(i, j): return A(128 + (i*4+j)*4, 4)
def sfa(h, t): return A(192 + 16*h + 4*t, 4)
def sfb(h, t): return A(224 + 16*h + 4*t, 4) if h else A(208 + 4*t, 4)
def g2a(h, t): return A(192 + 16*h + 4*t, 4)
def g2b(h, t): return A(224 + 16*h + 4*t, 4)

class Attn:
    def __init__(self, opt): self.o = opt
    def qk_slot(self, j, kh, c):
        out = []
        for q2 in range(2):
            for t in range(2):
                for i in range(4):
                    qt = 2*c + q2; sx = Sx(c, t, q2)
                    m = mfma16(sx, Kf(t*4+i), Q(i, qt), NM[qt] if i == 0 else sx)
                    tag(m, wt=('S', j, kh, c), rt=[(Kf(t*4+i), ('K', j, kh))] + ([(sx, ('S', j, kh, c))] if i else []))
                    out.append(m)
        return out
    def pv_slot(self, j, kh, c):
        out = []
        z = (j == 0 and kh == 0 and not getattr(self, 'nozero', False))
        for q2 in range(2):
            p = Pb[c][4*q2:4*q2+4]; qt = 2*c + q2
            for dt in range(8):
                m = mfma16(O(dt, qt), Vf(dt), p, 0 if z else O(dt, qt))
                tag(m, rt=[(Vf(dt), ('V', j, kh)), (p, ('P', j, kh, c))]); out.append(m)
            m = mfma16(LA[qt], ONES, p, 0 if z else LA[qt]); tag(m, rt=[(p, ('P', j, kh, c))]); out.append(m)
        return out
    def sm_list(self, j, kh, c):
        regs = []
        for q2 in range(2):
            for t in range(2):
                for r in range(4): regs.append((Sx(c, t, q2)[r], Pb[c][4*q2 + 2*t + (r >> 1)]))
        ops = []
        for n, (s, p) in enumerate(regs):
            ops.append((n, tag(valu('v_exp_f32', s, s), wt=('E', j, kh, c), rt=[(s, ('S', j, kh, c))])))
            if n & 1:
                sp = regs[n-1][0]
                ops.append((n + 1.04, tag(valu('v_cvt_pk_bf16_f32', p, sp, s), wt=('P', j, kh, c), rt=[(s, ('E', j, kh, c)), (sp, ('E', j, kh, c))])))
        return [i for (t, i) in sorted(ops, key=lambda x: x[0])]
    def k_reads(self, j, kh):
        st = j % NST
        return [tag(ds_read_b128(Kf(n), KA[n & 3], KBASE + st*16384 + kh*8192 + (n >> 2)*4096), wt=('K', j, kh)) for n in range(8)]
    def v_reads(self, j, kh):
        st = j % NST
        return [tag(ds_read_tr(Vf(dt)[2*u:2*u+2], VA[dt], st*16384 + kh*8192 + u*4096), wt=('V', j, kh)) for dt in range(8) for u in range(2)]
    def kv_dma(self, st, skip=False):
        ops = []
        for n in range(8):
            if n in (0, 4):
                base = (KBASE if n == 0 else VBASE) + st*16384
                ops.append(sop('s_add_u32', 'm0', S_WOFF, base))
                if skip: ops.append(sop('s_max_u32', 'm0', 'm0', S_KVSKIP))
                ops.append(nop(0))
            if n < 4: ops.append(dma(DK[n], SRD_K, S_TILE, off=n*1024))
            else: ops.append(dma(DV[n & 1], SRD_V, S_TILE, off=(n-4)*1024))
        ops.append(sop('s_add_u32', S_TILE, S_TILE, 16384))
        return ops

    def period(self, j, first=False, last_drain=False, kv=True, kvskip=False, side_groups=(), streams=(), pre=(), post=(), vm_end=None, side_dma_list=None):
        o = self.o
        hp, hc = not first, not last_drain
        base = [self.pv_slot(j-1, 1, 0) if hp else None, self.qk_slot(j, 0, 0) if hc else None,
                self.pv_slot(j-1, 1, 1) if hp else None, self.qk_slot(j, 0, 1) if hc else None,
                self.pv_slot(j, 0, 0) if hc else None, self.qk_slot(j, 1, 0) if hc else None,
                self.pv_slot(j, 0, 1) if hc else None, self.qk_slot(j, 1, 1) if hc else None]
        lens = [18, 16]*4
        mf = []; starts = []; ends = []; side_pos = []
        for s in range(8):
            starts.append(len(mf))
            mf += base[s] if base[s] is not None else [None]*lens[s]
            ends.append(len(mf))
            for (aft, g) in side_groups:
                if aft == s:
                    side_pos.append(len(mf)); mf += g
        T = len(mf)
        self.T = T
        ops = []
        CUT0 = o.cut0; CUT1 = o.cut1
        def sm_stream(jj, kh, c, t_lo, t_hi, tpv, i0=0, i1=None, release=None):
            raw_ops = self.sm_list(jj, kh, c); n = len(raw_ops); i1 = n if i1 is None else i1
            pv = self.pv_slot(jj, kh, c); res = []
            for idx in range(i0, i1):
                ins = raw_ops[idx]
                t = t_lo + (t_hi - t_lo) * (idx - i0) / max(1, (i1 - i0)); dl = 1e9
                if ins.op == 'v_cvt_pk_bf16_f32' and tpv is not None:
                    preg = list(ins.writes)[0]
                    dl = tpv + min(q for q, m in enumerate(pv) if preg in m.reads) - o.p_lead
                res.append([t, dl, ins])
            for idx in range(len(res) - 2, -1, -1): res[idx][1] = min(res[idx][1], res[idx+1][1])
            return [Op(ins, t, release=(t_lo if release is None else release), deadline=min(dl, T - 1), stream='sm') for (t, dl, ins) in res]
        rel = o.sm_rel
        if hp:
            ops += sm_stream(j-1, 1, 0, 0, rel, starts[0], i0=CUT0, release=0)
            ops += sm_stream(j-1, 1, 1, rel, ends[1] + rel, starts[2], i0=CUT1)
        if hc:
            ops += sm_stream(j, 0, 0, ends[1] + rel, ends[3] + rel, starts[4])
            ops += sm_stream(j, 0, 1, ends[3] + rel, ends[5] + rel, starts[6])
            ops += sm_stream(j, 1, 0, ends[5] + rel, T, None, i1=CUT0)
            if CUT1: ops += sm_stream(j, 1, 1, T - 1, T, None, i1=CUT1)
        if hc:
            for (kh, ks_slot, vs_slot) in ((0, 0, 2), (1, 4, 6)):
                qk = self.qk_slot(j, kh, 0)
                for n, ins in enumerate(self.k_reads(j, kh)):
                    fu = min(q for q, m in enumerate(qk) if ins.writes & m.reads)
                    t = starts[ks_slot] + n * 18 * o.k_span / 8
                    rl = (ends[ks_slot-1] if ks_slot else -1)
                    ops.append(Op(ins, max(t, rl), release=rl - 1 if ks_slot else -1, deadline=starts[ks_slot+1] + fu - o.k_lead, stream='k'))
                pv = self.pv_slot(j, kh, 0); pvo = self.pv_slot(j, kh, 1); info = []
                for ins in self.v_reads(j, kh):
                    lu = max(q for q, m in enumerate(pvo) if ins.writes & m.reads)
                    fu = min(q for q, m in enumerate(pv) if ins.writes & m.reads)
                    nxt = starts[vs_slot+2] if vs_slot + 2 < 8 else T + 18
                    dl = nxt + fu - o.k_lead
                    if kh == 1: dl = min(dl, T - 1 - o.bar_lead)
                    info.append((starts[vs_slot] + lu + 1, dl, ins))
                info.sort(key=lambda x: x[0])
                w0 = info[0][0]; w1 = min(x[1] for x in info)
                for n, (r, dl, ins) in enumerate(info):
                    ops.append(Op(ins, max(r, w0 + (w1 - w0) * n / len(info)), release=r, deadline=dl, stream='v'))
        dstream = []
        if kv and hc:
            lst = dma_ops_with_setup(self.kv_dma((j + 2) % NST, skip=kvskip))
            pos = o.kv_pos if not side_dma_list else o.kv_pos2; n = 0
            for (ins, st) in lst:
                if ins.kind == 'dma':
                    t = pos[n]; n += 1
                else: t = pos[min(n, 7)] if n < 8 else pos[7]
                dstream.append((t, 0.0, ins, st))
        if side_dma_list:
            (lst, f0, f1, fr) = side_dma_list
            lst = dma_ops_with_setup(lst)
            nd = sum(1 for (i, _) in lst if i.kind == 'dma'); n = 0
            for (ins, st) in lst:
                dstream.append((f0 + (f1 - f0) * n / max(1, nd), fr, ins, st))
                if ins.kind == 'dma': n += 1
        for (t, fr, ins, st) in dstream:
            op = Op(ins, t * T, release=fr * T, stream='dma'); op.setup = st
            ops.append(op)
        for (name, lst) in streams:
            for (ft, fr, ins) in lst:
                ops.append(Op(ins, ft * T, release=fr * T, stream=name))
        seq, fills = list_schedule2(mf, ops, o.minfill, o.maxfill, ahead=o.early)
        self.fills = fills
        seq = list(pre) + expand(seq) + list(post)
        if getattr(o, 'diag_period', None) == j:
            marks = sorted(set(starts + side_pos + [e for e in ends] + [T - 1]))
            marks = [m for m in marks if m < T]
            new = []; k = 0
            for ins in seq:
                if ins.kind == 'mfma':
                    kk = mf.index(ins)
                    if kk in marks:
                        r = S(o.diag_base + 2*len(o.diag_marks), 2); o.diag_marks.append(kk)
                        new.append(raw(f"s_memtime {r}", 'salu', writes=[r]))
                new.append(ins)
            seq = new
        if hc:
            nvm = sum(1 for i in seq if i.kind in ('dma', 'vload', 'vstore', 'vatomic')) if vm_end is None else vm_end
            seq.append(waitcnt(vm=nvm, lgkm=0))
            if o.barrier: seq.append(barrier())
        return seq
Opt.g1_rd = (0.05, 0.45); Opt.g1_dm = (0.62, 0.95)
Opt.cut0 = 21; Opt.cut1 = 0
Opt.kv_pos = [0.147, 0.184, 0.22, 0.25, 0.647, 0.684, 0.72, 0.75]
Opt.kv_pos2 = [0.08, 0.12, 0.16, 0.20, 0.26, 0.30, 0.34, 0.38]

def side_dma(srdA, soA, strideA, srdB, soB, strideB, offsA, offsB, stage_tag, skip, modsB=""):
    o = []
    src = S_SR
    if skip:
        o.append(sop('s_max_u32', S(5), S_SR, S_SKIP)); src = S(5)
    o.append(smov('m0', src)); o.append(nop(0))
    for i in range(4): o.append(lds_dep(dma(offsA[i], srdA, soA, off=i*1024), need={f'sR{stage_tag}'}, mark={f'sL{stage_tag}'}))
    o.append(sop('s_add_u32', soA, soA, strideA))
    o.append(sop('s_add_u32', 'm0', src, 4096)); o.append(nop(0))
    for i in range(4): o.append(lds_dep(dma(offsB[i], srdB, soB, off=i*1024, mods=modsB), need={f'sR{stage_tag}'}, mark={f'sL{stage_tag}'}))
    o.append(sop('s_add_u32', soB, soB, strideB))
    return o
def spread(lst, f0, f1, rel=None):
    n = sum(1 for i in lst if cost(i) > 0) or 1
    out = []; k = 0
    for ins in lst:
        t = f0 + (f1 - f0) * k / n
        out.append((t, f0 if rel is None else rel, ins))
        if cost(ins) > 0: k += 1
    return out
def toggle_side():
    return [valu('v_xor_b32', TA[t], 8192, TA[t]) for t in range(4)] + [sop('s_xor_b32', S_SR, S_SR, 8192)]

def g1_parts(n, in_loop):
    st = n & 1
    rd = []
    for t in range(4):
        for u in range(2): rd.append(lds_dep(ds_read_tr(sfa(0, t)[2*u:2*u+2], TA[t], u*2048), need={f'sL{st}'}, mark={f'sR{st}'}))
    for t in range(4):
        for u in range(2): rd.append(lds_dep(ds_read_tr(sfb(0, t)[2*u:2*u+2], TA[t], 4096 + u*2048), need={f'sL{st}'}, mark={f'sR{st}'}))
    mf = [mfma16(sacc(ft, dt), sfa(0, ft), sfb(0, dt), sacc(ft, dt) if n else 0) for ft in range(4) for dt in range(4)]
    dm = []
    if in_loop:
        dm = [scmp('s_cmp_gt_u32', S_N, 13), I(f"s_cselect_b32 {S_SKIP}, 0x30000, 0", 'salu', reads=['scc'], writes=[S_SKIP]), sop('s_add_u32', S_N, S_N, 1)]
        dm += side_dma(SRD_W1, S_SA, 32*3584, SRD_W, S_SB, 32*1024, DA, DB, st, True, modsB=HMOD)
    elif n + 2 <= 15:
        dm = [sop('s_add_u32', S_N, S_N, 1)] + side_dma(SRD_W1, S_SA, 32*3584, SRD_W, S_SB, 32*1024, DA, DB, st, False, modsB=HMOD)
    return rd, mf, dm
def g2_parts(i):
    st = i & 1
    rd = []
    for h in range(2):
        for t in range(4):
            for u in range(2): rd.append(lds_dep(ds_read_tr(g2b(h, t)[2*u:2*u+2], TA[t], h*4096 + u*2048), need={f'sL{st}'}, mark={f'sR{st}'}))
    mfs = [[mfma16(sacc(mt, s_), g2a(h, mt), g2b(h, s_), sacc(mt, s_) if (i or h) else 0) for mt in range(4) for s_ in range(4)] for h in range(2)]
    return rd, mfs
def g2_dma(st, skip):
    return side_dma(SRD_W2, S_SA, 32*4096, SRD_W2, S_SA, 32*4096, DA, DA, st, skip)
def g2_uloads():
    o = []
    for h in range(2):
        for t in range(4): o.append(bload(4, g2a(h, t), DB[t], SRD_W, S_SB, mods="sc1"))
        o.append(sop('s_add_u32', S_SB, S_SB, 1024))
    return o

def proj_gemm2(a, s, TA_, DW, srd, SOFF, stride, S_RING, bread, uoff, name, last_pre=None, last_fill=None, dma_gap0=3, fb_base=0, hooks=None, fill=None):
    NS = 3; NK = 16
    def fa(p, mt): return A(64 + 32*p + 4*mt, 4)
    def fb(p, qt): return A(fb_base + 16*p + 4*qt, 4)
    def dma_step(n):
        o = []; st = n % NS
        for h in range(2):
            o.append(sop('s_add_u32', 'm0', S_RING, st*8192 + h*4096))
            for i in range(4):
                o.append(lds_dep(dma(DW[i], srd, SOFF, off=i*1024), need={f'{name}R{st}'}, mark={f'{name}L{st}'}))
            o.append(sop('s_add_u32', SOFF, SOFF, 16*stride))
        return o
    def reads(n):
        o = []; st = n % NS; p = n & 1
        for qt in range(4): o.append(bread(n, qt, fb(p, qt)))
        for mt in range(8):
            for u in range(2):
                o.append(lds_dep(ds_read_tr(fa(p, mt)[2*u:2*u+2], TA_[mt], st*8192 + u*uoff), need={f'{name}L{st}'}, mark={f'{name}R{st}'}))
        return o
    s.extend(reads(0))
    for n in range(NK):
        rd = reads(n + 1) if n + 1 < NK else []
        dm = dma_step(n + 3) if n + 3 < NK else []
        if n == NK - 1:
            if last_pre: s.extend(last_pre)
            dm = list(last_fill or [])
        if hooks and n in hooks: s.extend(hooks[n])
        mf = [mfma16(O(mt, qt), fa(n & 1, mt), fb(n & 1, qt), O(mt, qt) if n else 0) for mt in range(8) for qt in range(4)]
        gaps = [[] for _ in range(32)]
        g = dma_gap0
        for (ins, st_) in dma_ops_with_setup(dm):
            if ins.kind == 'dma':
                gaps[g - 1] += st_; gaps[g].append(ins); g = min(31, g + 2) if g + 2 <= 31 else 31
            else: gaps[min(31, g - 1)].append(ins) if g > dma_gap0 else gaps[0].append(ins)
        ev = [k for k in range(32) if not any(i.kind == 'dma' for i in gaps[k])]
        for k, ins in enumerate(rd): gaps[ev[min(len(ev) - 1, k // 2)]].append(ins)
        for k, m in enumerate(mf):
            a(m); s.extend(sort_gap(gaps[k]))
            if fill:
                take = 0
                while fill and take < 2:
                    ins = fill.pop(0); a(ins)
                    if cost(ins) > 0: take += 1
    assert not fill

def build(opt=None):
    o = opt or Opt()
    at = Attn(o)
    STP = Stamps(o.timing, 3); STP.cyc = getattr(o, 'cyc', False)
    s = []; a = s.append
    l = V(0)
    s.extend(STP())
    a(sload(S(4, 2), ARG_K)); a(sload(S(6, 2), ARG_V)); a(sload(S(22, 2), ARG_WS))
    a(sload(S(36, 2), ARG_WQ)); a(sload(S(38, 2), ARG_WO))
    a(sload(S(62, 2), ARG_W1)); a(sload(S(60, 2), ARG_W2)); a(sload(S(58, 2), ARG_DBG))
    if o.fuse_ln: a(sload(S(100, 2), ARG_X))
    a(raw("s_cmp_ge_u32 s2, 256")); a(raw("s_cbranch_scc1 L_k3_end", 'branch'))
    a(valu('v_lshrrev_b32', V(1), 6, V(0)))
    a(readfirstlane(S_WAVE, V(1)))
    a(valu('v_and_b32', l, 63, l))
    a(waitcnt(lgkm=0))
    a(raw("s_and_b32 s25, s2, 7", writes=[S_G])); a(raw("s_lshr_b32 s26, s2, 3", writes=[S_QB]))
    S_RING = S(41); S_SO = S(42); S_T = S(43)
    SRD_X = S(96, 4)
    XP = V(48, 64)
    if o.fuse_ln:
        s.extend(make_srd(SRD_X, S(100, 2), 2 << 20))
        a(valu('v_and_b32', V(1), 15, l)); a(valu('v_lshlrev_b32', V(1), 10, V(1)))
        a(valu('v_lshrrev_b32', V(2), 4, l)); a(valu('v_lshl_add_u32', V(1), V(2), 4, V(1)))
        a(raw("s_lshl_b32 s42, s26, 6", writes=[S_SO])); a(raw("s_lshl_b32 s43, s24, 4", writes=[S_T]))
        a(raw("s_add_u32 s42, s42, s43", writes=[S_SO])); a(raw("s_lshl_b32 s42, s42, 10", writes=[S_SO]))
        for i in range(16): a(bload(4, XP[4*i:4*i+4], V(1), SRD_X, S_SO, off=64*i))
    s.extend(make_srd(SRD_WQ, S(36, 2), 512*4096*2))
    a(valu('v_lshlrev_b32', V(7), 4, l))
    if o.prefetch:
        a(raw("s_lshl_b32 s42, s26, 4", writes=[S_SO])); a(raw("s_lshl_b32 s43, s24, 2", writes=[S_T]))
        a(raw("s_add_u32 s42, s42, s43", writes=[S_SO])); a(raw("s_lshl_b32 s42, s42, 13", writes=[S_SO]))
        a(raw("s_lshl_b32 s43, s25, 10", writes=[S_T])); a(raw("s_add_u32 s42, s42, s43", writes=[S_SO]))
        for n in range(4):
            a(bload(4, A(192 + 4*n, 4), V(7), SRD_WQ, S_SO)); a(sop('s_add_u32', S_SO, S_SO, 8192))
    a(raw("s_lshl_b32 s27, s25, 19", writes=[S(27)]))
    a(raw("s_sub_u32 s40, 0x400000, s27", writes=[S(40)]))
    s.extend(make_srd(SRD_K, S(4, 2), S(40), add=S(27))); s.extend(make_srd(SRD_V, S(6, 2), S(40), add=S(27)))
    s.extend(make_srd(SRD_W, S(22, 2), WS_END))
    s.extend(make_srd(SRD_WO, S(38, 2), 4096*512*2))
    a(raw("s_lshr_b32 s46, s26, 3", writes=[S_T64])); a(raw("s_lshl_b32 s46, s46, 3", writes=[S_T64])); a(raw("s_add_u32 s46, s46, s25", writes=[S_T64]))
    a(raw("s_and_b32 s47, s26, 7", writes=[S_DT]))
    a(raw("s_cmp_lt_u32 s46, 28"))
    a(raw(f"s_cselect_b32 s44, {2048*1792*2}, 0", writes=[S(44)]))
    a(raw(f"s_cselect_b32 s45, {WS_END}, 0", writes=[S(45)]))
    s.extend(make_srd(SRD_W1, S(62, 2), S(44)))
    s.extend(make_srd(SRD_W2, S(60, 2), 1792*2048*2))
    s.extend(make_srd(SRD_DBG, S(58, 2), 256))
    s.extend(make_srd(SRD_US, S(22, 2), S(45)))
    a(raw("s_lshl_b32 s21, s24, 12", writes=[S_WOFF]))
    a(raw("s_mul_i32 s41, s24, 24576", writes=[S_RING]))
    for r in range(4): a(valu('v_mov_b32', ONES[r], 0x3F803F80))
    if not o.fuse_ln:
        a(raw("s_lshl_b32 s42, s26, 6", writes=[S_SO])); a(raw("s_lshl_b32 s43, s24, 4", writes=[S_T]))
        a(raw("s_add_u32 s42, s42, s43", writes=[S_SO])); a(raw("s_lshl_b32 s42, s42, 10", writes=[S_SO]))
        a(raw("s_lshl_b32 s43, s24, 14", writes=[S_T])); a(raw(f"s_add_u32 s43, s43, {XBASE}", writes=[S_T]))
        for n in range(16):
            if n % 4 == 0: a(smov('m0', S_T))
            a(valu('v_xor_b32', V(14 + (n & 3)), n << 4, V(7)))
            a(lds_dep(dma(V(14 + (n & 3)), SRD_W, S_SO, off=(n & 3)*1024), mark={'XN'}))
            if n % 4 == 3:
                a(sop('s_add_u32', S_SO, S_SO, 4096)); a(sop('s_add_u32', S_T, S_T, 4096))
    PTA = [V(32 + i) for i in range(8)]; XA = [V(40 + i) for i in range(4)]; DW = [V(44 + i) for i in range(4)]
    dma_off_256(a, l, DW, 8192, 'q', S_T)
    a(raw("s_lshl_b32 s42, s25, 2", writes=[S_SO])); a(raw("s_add_u32 s42, s42, s24", writes=[S_SO]))
    a(raw("s_lshl_b32 s42, s42, 8", writes=[S_SO]))
    def wq_stage(n):
        o_ = []
        for h in range(2):
            o_ += [sop('s_add_u32', 'm0', S_RING, n*8192 + h*4096), nop(0)]
            for i in range(4): o_.append(lds_dep(dma(DW[i], SRD_WQ, S_SO, off=i*1024), need={f'qR{n}'}, mark={f'qL{n}'}))
            o_.append(sop('s_add_u32', S_SO, S_SO, 16*8192))
        return o_
    a(valu('v_mov_b32', V(6), S_RING))
    addr_tr256(a, l, PTA, V(6), 8)
    a(valu('v_and_b32', V(1), 15, l)); a(valu('v_lshrrev_b32', V(2), 4, l))
    a(valu('v_lshlrev_b32', V(3), 10, V(1))); a(valu('v_add_u32', V(3), XBASE, V(3)))
    for k in range(4):
        a(valu('v_add_u32', V(4), 4*k, V(2))); a(valu('v_xor_b32', V(4), V(4), V(1)))
        a(valu('v_lshl_add_u32', XA[k], V(4), 4, V(3)))
    a(valu('v_lshrrev_b32', V(2), 4, l)); a(valu('v_and_b32', V(3), 15, l))
    for i in range(4):
        a(valu('v_add_u32', V(4), 4*i, V(2))); a(valu('v_xor_b32', V(4), V(4), V(3)))
        a(valu('v_lshlrev_b32', V(4), 4, V(4))); a(valu('v_lshl_add_u32', KA[i], V(3), 8, V(4)))
    a(valu('v_lshrrev_b32', V(4), 2, V(3))); a(valu('v_and_b32', V(5), 3, l))
    a(valu('v_lshl_add_u32', V(7), V(2), 2, V(4)))
    a(valu('v_and_b32', V(1), 7, V(7))); a(valu('v_lshlrev_b32', V(1), 1, V(1)))
    a(valu('v_lshlrev_b32', V(7), 8, V(7)))
    a(valu('v_and_b32', V(6), 1, V(5))); a(valu('v_lshl_add_u32', V(7), V(6), 3, V(7)))
    a(valu('v_add_u32', V(7), VBASE, V(7)))
    a(valu('v_lshrrev_b32', V(6), 1, V(5)))
    for dt in range(8):
        a(valu('v_add_u32', V(5), 2*dt, V(6))); a(valu('v_xor_b32', V(5), V(5), V(1)))
        a(valu('v_lshl_add_u32', VA[dt], V(5), 4, V(7)))
    a(valu('v_lshlrev_b32', V(5), 8, V(2))); a(valu('v_add_u32', V(5), S_WOFF, V(5)))
    for n in range(4):
        a(valu('v_add_u32', V(6), 4*n, V(2))); a(valu('v_xor_b32', V(6), V(6), V(3)))
        a(valu('v_lshl_add_u32', DK[n], V(6), 4, V(5)))
    for n in range(2):
        a(valu('v_add_u32', V(6), 4*n, V(2))); a(valu('v_lshlrev_b32', V(6), 1, V(6)))
        a(valu('v_xor_b32', V(6), V(6), V(3))); a(valu('v_lshl_add_u32', DV[n], V(6), 4, V(5)))
    a(raw("s_lshl_b32 s27, s24, 14", writes=[S_XB])); a(raw(f"s_add_u32 s27, s27, {XBASE}", writes=[S_XB]))
    a(smov(S_SR, S_XB))
    a(valu('v_mov_b32', V(26), S_XB))
    tr_addr_128(a, l, TA, V(26), V(1), V(2), V(3), V(4))
    dma_off_128(a, l, DA, 3584, V(1), V(2), V(3), s_tmp=S_T)
    dma_off_128(a, l, DB, 1024, V(1), V(2), V(3), s_tmp=S_T)
    a(raw("s_lshl_b32 s44, s24, 9", writes=[S(44)]))
    a(raw("s_mul_i32 s39, s44, 3584", writes=[S_SA])); a(raw("s_lshl_b32 s45, s46, 7", writes=[S(45)])); a(raw("s_add_u32 s39, s39, s45", writes=[S_SA]))
    a(raw("s_lshl_b32 s36, s44, 10", writes=[S_SB])); a(raw("s_lshl_b32 s45, s47, 7", writes=[S(45)])); a(raw("s_add_u32 s36, s36, s45", writes=[S_SB]))
    a(raw(f"s_add_u32 s36, s36, {WS_H}", writes=[S_SB]))
    a(smov(S_N, 0)); a(smov(S_SKIP, 0))
    if getattr(o, 'fine', False): s.extend(STP())
    s.extend(wq_stage(0))
    if getattr(o, 'fine', False):
        a(lds_dep(nop(0), need=set(XP.regs()))); s.extend(STP())
    def pk(op, d, x, y, z=None, mods=""):
        srcs = [x, y] + ([z] if z is not None else [])
        return I(f"{op} {d}, " + ", ".join(str(t) for t in srcs) + (" " + mods if mods else ""), 'valu', reads=srcs, writes=[d], op=op)
    if o.fuse_ln:
        F = lambda i, e: V(128 + 8*i + e)
        D1 = V(28, 4); D2 = V(4, 4)
        for i in range(16):
            a(mfma16(D1, ONES, XP[4*i:4*i+4], D1 if i else 0)); a(mfma16(D2, XP[4*i:4*i+4], XP[4*i:4*i+4], D2 if i else 0))
            for q in range(4):
                a(valu('v_lshlrev_b32', F(i, 2*q), 16, XP[4*i+q])); a(valu('v_and_b32', F(i, 2*q+1), 0xffff0000, XP[4*i+q]))
        a(valu('v_and_b32', V(1), 3, l))
        for r in (2, 1, 0):
            a(I(f"v_cmp_eq_u32 vcc, {r}, v1", 'valu', reads=[V(1)], writes=['vcc']))
            a(I(f"v_cndmask_b32 v7, v7, {D2[r]}, vcc", 'valu', reads=[V(7), D2[r], 'vcc'], writes=[V(7)]))
        a(valu('v_and_b32', V(1), 15, l)); a(valu('v_lshrrev_b32', V(2), 2, V(1)))
        a(valu('v_lshl_add_u32', V(2), V(2), 4, V(1))); a(valu('v_lshlrev_b32', V(2), 2, V(2)))
        a(I("ds_bpermute_b32 v3, v2, v7", 'ds_read', reads=[V(2), V(7)], writes=[V(3)]))
        MEAN = V(28); RS = V(2); NB = V(3)
        a(valu('v_mul_f32', MEAN, 1.0/512, MEAN))
        a(valu('v_mul_f32', V(3), 1.0/512, V(3)))
        a(valu('v_fma_f32', V(3), '-v28', MEAN, V(3)))
        a(valu('v_max_f32', V(3), 0, V(3)))
        a(valu('v_add_f32', V(3), 1e-5, V(3)))
        a(valu('v_rsq_f32', RS, V(3)))
        a(valu('v_mul_f32', NB, MEAN, RS)); a(valu('v_sub_f32', NB, 0, NB))
        for i in range(16):
            for e in range(8): a(valu('v_fma_f32', F(i, e), F(i, e), RS, NB))
        a(valu('v_and_b32', V(4), 15, l)); a(valu('v_lshrrev_b32', V(5), 4, l))
        a(raw("s_lshl_b32 s43, s24, 14", writes=[S_T])); a(raw(f"s_add_u32 s43, s43, {XBASE}", writes=[S_T]))
        a(valu('v_lshlrev_b32', V(6), 10, V(4))); a(valu('v_add_u32', V(6), S_T, V(6)))
        WA = [V(28 + k) for k in range(4)]
        for k in range(4):
            a(valu('v_add_u32', V(7), 4*k, V(5))); a(valu('v_xor_b32', V(7), V(7), V(4))); a(valu('v_lshl_add_u32', WA[k], V(7), 4, V(6)))
        for i in range(16):
            for q in range(4): a(valu('v_cvt_pk_bf16_f32', XP[4*i+q], F(i, 2*q), F(i, 2*q+1)))
            a(ds_write(4, WA[i & 3], XP[4*i:4*i+4], off=(i >> 2)*256))
        if getattr(o, 'fine', False): s.extend(STP())
        a(waitcnt(lgkm=0)); a(barrier())
        if getattr(o, 'fine', False): s.extend(STP())
    else:
        a(waitcnt(vm=8)); a(barrier())
    s.extend(wq_stage(1)); s.extend(wq_stage(2))
    if o.fuse_ln:
        s_main, a_main = s, a
        ln2 = []; s = ln2; a = ln2.append
        R0 = [V(64 + i) for i in range(8)]; R1 = [V(72 + i) for i in range(8)]
        PK = [V(80, 4), V(84, 4)]
        a(raw("s_lshl_b32 s44, s25, 3", writes=[S(44)])); a(raw("s_lshl_b32 s45, s24, 1", writes=[S(45)])); a(raw("s_add_u32 s44, s44, s45", writes=[S(44)]))
        for k in range(2):
            a(sop('s_add_u32', S(45), S(44), k)); a(sop('s_and_b32', S(5), S(45), 15)); a(raw("s_lshl_b32 s5, s5, 4", writes=[S(5)]))
            a(raw("s_lshl_b32 s45, s45, 10", writes=[S(45)])); a(raw(f"s_add_u32 s45, s45, {XBASE}", writes=[S(45)]))
            a(valu('v_lshlrev_b32', V(94), 4, l)); a(valu('v_xor_b32', V(94), S(5), V(94))); a(valu('v_add_u32', V(94), S(45), V(94)))
            a(ds_read_b128(PK[k], V(94)))
        RR = [R0, R1]; SM = [V(88), V(90)]; TT = [V(89), V(91)]; QQ = [V(92), V(93)]
        for k in range(2):
            for q in range(4):
                a(valu('v_lshlrev_b32', RR[k][2*q], 16, PK[k][q])); a(valu('v_and_b32', RR[k][2*q+1], 0xffff0000, PK[k][q]))
        def both(f):
            x0, x1 = f(0), f(1)
            for u, v_ in zip(x0, x1): a(u); a(v_)
        both(lambda k: [valu('v_add_f32', SM[k], RR[k][0], RR[k][1])] + [valu('v_add_f32', SM[k], SM[k], RR[k][e]) for e in range(2, 8)])
        both(lambda k: wave_sum(SM[k], TT[k]))
        both(lambda k: [valu('v_mul_f32', SM[k], 1.0/512, SM[k])] + [valu('v_sub_f32', RR[k][e], RR[k][e], SM[k]) for e in range(8)])
        both(lambda k: [valu('v_mul_f32', QQ[k], RR[k][0], RR[k][0])] + [valu('v_fmac_f32', QQ[k], RR[k][e], RR[k][e], dst_read=True) for e in range(1, 8)])
        both(lambda k: wave_sum(QQ[k], TT[k]))
        both(lambda k: [valu('v_mov_b32', TT[k], 1e-5), valu('v_fmac_f32', TT[k], 1.0/512, QQ[k], dst_read=True), valu('v_rsq_f32', TT[k], TT[k])] +
                       [valu('v_mul_f32', RR[k][e], RR[k][e], TT[k]) for e in range(8)] + [valu('v_cvt_pk_bf16_f32', PK[k][q], RR[k][2*q], RR[k][2*q+1]) for q in range(4)])
        a(raw("s_lshl_b32 s45, s26, 6", writes=[S(45)])); a(raw("s_add_u32 s45, s45, s44", writes=[S(45)])); a(raw("s_lshl_b32 s45, s45, 10", writes=[S(45)]))
        a(raw(f"s_add_u32 s45, s45, {WS_H}", writes=[S(45)]))
        a(valu('v_lshlrev_b32', V(94), 4, l))
        a(lds_dep(bstore(4, PK[0], V(94), SRD_W, S(45), mods="sc1"), mark={'HS'}))
        a(lds_dep(bstore(4, PK[1], V(94), SRD_W, S(45), off=1024, mods="sc1"), mark={'HS'}))
        a(valu('v_lshlrev_b32', V(95), 25, l)); a(valu('v_mov_b32', V(96), 0))
        a(raw("s_and_b32 s45, s2, 31", writes=[S(45)])); a(raw("s_lshl_b32 s45, s45, 8", writes=[S(45)])); a(raw(f"s_add_u32 s45, s45, {WS_CNT}", writes=[S(45)]))
        a(lds_dep(bstore(1, V(96), V(95), SRD_W, S(45), mods="sc1"), mark={'HS'}))
        s, a = s_main, a_main
    s.extend(STP())
    def xread(n, qt, dst): return ds_read_b128(dst, XA[n & 3], (n >> 2)*256 + qt*16384)
    kv0 = [smov(S_TILE, 0)] + at.kv_dma(0)
    later = []
    if o.side: later += side_dma(SRD_W1, S_SA, 32*3584, SRD_W, S_SB, 32*1024, DA, DB, 0, False, modsB=HMOD) + [sop('s_xor_b32', S_SR, S_SR, 8192)]
    later += at.kv_dma(1)
    if o.side: later += side_dma(SRD_W1, S_SA, 32*3584, SRD_W, S_SB, 32*1024, DA, DB, 1, False, modsB=HMOD) + [sop('s_xor_b32', S_SR, S_SR, 8192)]
    hooks = {}
    last_pre = [waitcnt(lgkm=0)]
    if o.fuse_ln:
        arrive = [lds_dep(nop(0), need={'HS'}), barrier(),
                  valu('v_mov_b32', V(4), 1), valu('v_lshlrev_b32', V(5), 25, l),
                  raw("s_and_b32 s44, s2, 3", writes=[S(44)]), raw("s_lshl_b32 s44, s44, 6", writes=[S(44)]),
                  raw("s_cmp_eq_u32 s24, 0"), raw("s_cselect_b32 s44, s44, 0x1000", reads=['scc'], writes=[S(44)]),
                  I(f"buffer_atomic_add v4, v5, {SRD_DBG}, s44 offen sc1", 'vatomic', reads=[V(4), V(5), SRD_DBG, S(44)], writes=[])]
        hooks[6] = arrive
        hooks[12] = [valu('v_and_b32', V(1), 3, l), valu('v_lshlrev_b32', V(1), 6, V(1)), bload(1, V(6), V(1), SRD_DBG, 0, mods="sc1")]
        chk = lambda: [I("v_cmp_eq_u32 vcc, 64, v6", 'valu', reads=[V(6)], writes=['vcc']), nop(3), raw("s_cmp_eq_u64 vcc, -1", reads=['vcc'])]
        last_pre += [smov(S(45), 0), label("L_k3_hpoll")] + chk() + [raw("s_cbranch_scc1 L_k3_hpollok", 'branch'),
                     raw("s_sleep 4"), bload(1, V(6), V(1), SRD_DBG, 0, mods="sc1"), waitcnt(vm=0),
                     sop('s_add_u32', S(45), S(45), 1), scmp('s_cmp_lt_u32', S(45), 0x40000), raw("s_cbranch_scc1 L_k3_hpoll", 'branch'), label("L_k3_hpollok")]
    last_pre += [barrier()]
    proj_gemm2(a, s, PTA, DW, SRD_WQ, S_SO, 8192, S_RING, xread, 1024, 'q', last_pre=last_pre, last_fill=kv0, hooks=hooks, fill=(ln2 if o.fuse_ln else None))
    s.extend(STP())
    a(smov(S(44), QSCALE))
    qpost = []
    for i in range(4):
        for qt in range(4):
            x, y = O(2*i, qt), O(2*i+1, qt)
            b_ = qpost.append
            for r in range(4):
                b_(valu('v_mul_f32', x[r], S(44), x[r])); b_(valu('v_mul_f32', y[r], S(44), y[r]))
            T4 = V(48 + 4*((i*4+qt) & 1), 4)
            X0, X1, Y0, Y1 = T4[0], T4[1], T4[2], T4[3]
            b_(valu('v_cvt_pk_bf16_f32', X0, x[0], x[1])); b_(valu('v_cvt_pk_bf16_f32', X1, x[2], x[3]))
            b_(valu('v_cvt_pk_bf16_f32', Y0, y[0], y[1])); b_(valu('v_cvt_pk_bf16_f32', Y1, y[2], y[3]))
            b_(permlane32_swap(X0, Y0)); b_(permlane32_swap(X1, Y1))
            b_(permlane16_swap(X0, Y0)); b_(permlane16_swap(X1, Y1))
            q = Q(i, qt)
            b_(valu('v_accvgpr_write_b32', q[0], X0)); b_(valu('v_accvgpr_write_b32', q[1], X1))
            b_(valu('v_accvgpr_write_b32', q[2], Y0)); b_(valu('v_accvgpr_write_b32', q[3], Y1))
    grp = group_dma(later)
    step = max(1, len(qpost) // (len(grp) + 1)); gi = 0
    for k, ins in enumerate(qpost):
        a(ins)
        if k % step == step - 1 and gi < len(grp):
            s.extend(expand([grp[gi]])); gi += 1
            while gi < len(grp) and not isinstance(grp[gi], Grp):
                a(grp[gi]); gi += 1
    for g_ in grp[gi:]: s.extend(expand([g_]))
    s.extend(STP())
    a(waitcnt(vm=(24 if o.side else 8))); a(barrier())
    s.extend(at.k_reads(0, 0))
    for c in range(2):
        for q2 in range(2):
            for t in range(2):
                for i in range(4): a(mfma16(Sx(c, t, q2), Kf(t*4+i), Q(i, 2*c+q2), 0 if i == 0 else Sx(c, t, q2)))
    for qt in range(4):
        c, q2 = qt >> 1, qt & 1
        s0, s1 = Sx(c, 0, q2), Sx(c, 1, q2); m = V(4); t = V(5)
        a(valu('v_max3_f32', m, s0[0], s0[1], s0[2])); a(valu('v_max3_f32', m, m, s0[3], s1[0]))
        a(valu('v_max3_f32', m, m, s1[1], s1[2])); a(valu('v_max_f32', m, m, s1[3]))
        a(valu('v_mov_b32', t, m)); a(permlane16_swap(m, t)); a(valu('v_max_f32', m, m, t))
        a(valu('v_mov_b32', t, m)); a(permlane32_swap(m, t)); a(valu('v_max_f32', m, m, t))
        for r in range(4): a(valu('v_sub_f32', NM[qt][r], 0, m))
    s.extend(STP())
    pro = s
    B1 = S(28, 4); B2 = S(32 - 4, 4)
    def scratch_write():
        o_ = [valu('v_lshlrev_b32', V(27), 4, l), valu('v_add_u32', V(26), S_XB, V(27))]
        for i in range(4):
            for j in range(4): o_.append(ds_write(4, V(26), sacc(i, j), off=(i*4+j)*1024))
        o_ += [raw("s_lshl_b32 s43, s24, 10", writes=[S_TMP]), raw(f"s_add_u32 s43, s43, {XBASE}", writes=[S_TMP]), valu('v_add_u32', V(27), S_TMP, V(27))]
        return o_
    def scratch_reads():
        return [ds_read_b128(A(192 + (i*4+w)*4, 4), V(27), w*16384 + i*4096) for i in range(4) for w in range(4)]
    def sum4(i, r, x, t):
        return [valu('v_accvgpr_read_b32', x, A(192 + (i*4+0)*4 + r)), valu('v_accvgpr_read_b32', t, A(192 + (i*4+1)*4 + r)),
                valu('v_add_f32', x, x, t), valu('v_accvgpr_read_b32', t, A(192 + (i*4+2)*4 + r)),
                valu('v_add_f32', x, x, t), valu('v_accvgpr_read_b32', t, A(192 + (i*4+3)*4 + r)), valu('v_add_f32', x, x, t)]
    per = {}
    def side_spec(j):
        kw = dict(first=(j == 0), last_drain=(j == 32), kv=(j <= 29))
        if not o.side: return kw
        if j <= 15:
            rd, mf, dm = g1_parts(j, in_loop=(j >= 1))
            kw['side_groups'] = [(5, mf)]
            if getattr(o, 'x_noread', False): rd = []
            if getattr(o, 'x_nodma', False): dm = [i for i in dm if i.kind != 'dma' and 'm0' not in i.writes]
            kw['streams'] = [('srd', spread(rd, o.g1_rd[0], o.g1_rd[1]))]
            if dm: kw['side_dma_list'] = (dm, o.g1_dm[0], o.g1_dm[1], 0.5)
            kw['post'] = toggle_side()
        elif j == 16:
            pre = [sload(S(44, 2), ARG_B1), waitcnt(lgkm=0)] + make_srd(B1, S(44, 2), 1792*2)
            bl = [valu('v_lshrrev_b32', V(1), 4, l), valu('v_lshlrev_b32', V(1), 3, V(1)), raw("s_lshl_b32 s44, s46, 7", writes=[S(44)])]
            bl += [bload(2, V(18 + 2*ft, 2), V(1), B1, S(44), off=32*ft) for ft in range(4)]
            kw['pre'] = pre
            kw['streams'] = [('sw', spread(scratch_write(), 0.1, 0.7)), ('sb', spread(bl, 0.05, 0.1))]
        elif j == 17:
            c = scratch_reads()
            comp = [smov(S(45), -2.0*0.7978845608028654*LOG2E*0.044715), valu('v_mov_b32', V(1), -2.0*0.7978845608028654*LOG2E)]
            comp += [raw("s_lshl_b32 s43, s47, 2", writes=[S_TMP]), raw("s_add_u32 s43, s43, s24", writes=[S_TMP]), raw("s_mul_i32 s43, s43, 56", writes=[S_TMP]),
                     raw("s_lshl_b32 s39, s46, 1", writes=[S_SA]), raw("s_add_u32 s43, s43, s39", writes=[S_TMP]), raw("s_lshl_b32 s43, s43, 10", writes=[S_TMP]),
                     raw(f"s_add_u32 s43, s43, {WS_U}", writes=[S_TMP]), valu('v_lshlrev_b32', V(26), 4, l)]
            for ft in range(4):
                for r in range(4):
                    x = V(2 + r)
                    comp += sum4(ft, r, x, V(6))
                    b = V(18 + 2*ft + (r >> 1))
                    comp.append(valu('v_and_b32', V(6), 0xffff0000, b) if r & 1 else valu('v_lshlrev_b32', V(6), 16, b))
                    comp.append(valu('v_add_f32', x, x, V(6)))
                    comp += [valu('v_mul_f32', V(7), x, x), valu('v_fma_f32', V(7), V(7), S(45), V(1)), valu('v_mul_f32', V(7), V(7), x), valu('v_exp_f32', V(7), V(7)), valu('v_add_f32', V(7), 1.0, V(7)), valu('v_rcp_f32', V(7), V(7)), valu('v_mul_f32', x, x, V(7))]
                q = V(28 + 2*(ft & 1), 2)
                comp += [valu('v_cvt_pk_bf16_f32', q[0], V(2), V(3)), valu('v_cvt_pk_bf16_f32', q[1], V(4), V(5))]
                if ft & 1: comp.append(lds_dep(bstore(4, V(28, 4), V(26), SRD_US, S_TMP, off=(ft >> 1)*1024, mods="sc1"), mark={'US'}))
            kw['streams'] = [('srd', spread(c, 0.0, 0.15)), ('scomp', spread(comp, 0.15, 0.98))]
        elif j == 18:
            su = []
            dma_off_128(su.append, l, DA, 4096, V(1), V(2), V(3), s_tmp=S_TMP)
            su += [valu('v_lshlrev_b32', DB[0], 4, l)] + [valu('v_add_u32', DB[t], 56*1024, DB[t-1]) for t in range(1, 4)]
            su += [raw("s_mul_i32 s39, s24, 448*4096", writes=[S_SA]), raw("s_lshl_b32 s43, s46, 7", writes=[S_TMP]), raw("s_add_u32 s39, s39, s43", writes=[S_SA]),
                   raw("s_mul_i32 s36, s47, 4*56", writes=[S_SB]), raw("s_mul_i32 s43, s24, 14", writes=[S_TMP]), raw("s_add_u32 s36, s36, s43", writes=[S_SB]),
                   raw("s_lshl_b32 s36, s36, 10", writes=[S_SB]), raw(f"s_add_u32 s36, s36, {WS_U}", writes=[S_SB]), smov(S_N, 0), smov(S_SKIP, 0)]
            sig = [valu('v_mov_b32', V(4), 1), valu('v_lshlrev_b32', V(5), 25, l),
                   raw("s_lshl_b32 s44, s47, 2", writes=[S(44)]), raw("s_add_u32 s44, s44, s24", writes=[S(44)]), raw("s_lshl_b32 s44, s44, 8", writes=[S(44)]),
                   raw(f"s_add_u32 s44, s44, {WS_CNT}", writes=[S(44)]),
                   lds_dep(I(f"buffer_atomic_add v4, v5, {SRD_US}, s44 offen sc1", 'vatomic', reads=[V(4), V(5), SRD_US, S(44)], writes=[]), need={'US'})]
            kw['streams'] = [('ssu', spread(su, 0.05, 0.55)), ('ssig', [(0.6, 0.5, i) for i in sig])]
        elif j == 19:
            st = g2_dma(0, False) + [sop('s_xor_b32', S_SR, S_SR, 8192)] + g2_dma(1, False) + [sop('s_xor_b32', S_SR, S_SR, 8192)]
            kw['side_dma_list'] = (st, 0.42, 0.95, 0.0)
        elif j == 20:
            pl = [valu('v_and_b32', V(1), 3, l), valu('v_lshlrev_b32', V(1), 8, V(1)), raw("s_lshl_b32 s43, s47, 10", writes=[S_TMP]),
                  raw(f"s_add_u32 s43, s43, {WS_CNT}", writes=[S_TMP]), bload(1, V(6), V(1), SRD_W, S_TMP, mods="sc1")]
            kw['streams'] = [('spoll', [(0.80, 0.7, i) for i in pl])]
            if o.prefetch:
                extra = [raw("s_lshl_b32 s44, s25, 5", writes=[S(44)]), raw("s_add_u32 s44, s44, s26", writes=[S(44)]), raw("s_lshl_b32 s44, s44, 2", writes=[S(44)]),
                         raw("s_add_u32 s44, s44, s24", writes=[S(44)]), raw("s_lshl_b32 s44, s44, 12", writes=[S(44)])]
                extra += [bload(4, A(240 + 4*n, 4), DB[0], SRD_WO, S(44), off=n*1024) for n in range(4)]
                kw['streams'].append(('spf', spread(extra, 0.42, 0.55)))
            chk = lambda: [I("v_cmp_eq_u32 vcc, 28, v6", 'valu', reads=[V(6)], writes=['vcc']), nop(3), raw("s_cmp_eq_u64 vcc, -1", reads=['vcc'])]
            dg = (STP() if getattr(o, 'polldiag', False) else [])
            kw['post'] = dg + [smov(S(45), 0), label("L_k3_poll")] + chk() + [raw("s_cbranch_scc1 L_k3_pollok", 'branch'),
                          raw("s_sleep 4"), bload(1, V(6), V(1), SRD_W, S_TMP, mods="sc1"), waitcnt(vm=0),
                          sop('s_add_u32', S(45), S(45), 1), scmp('s_cmp_lt_u32', S(45), 0x40000), raw("s_cbranch_scc1 L_k3_poll", 'branch'), label("L_k3_pollok")] + ([smov(S(94), S(45))] if getattr(o, 'polldiag', False) else [])
            kw['vm_end'] = 0
        elif j == 21:
            z = [valu('v_accvgpr_write_b32', A(128 + r), 0) for r in range(64)]
            kw['streams'] = [('sul', spread(g2_uloads(), 0.05, 0.3)), ('sz', spread(z, 0.1, 0.95))]
        elif 22 <= j <= 28:
            i = j - 22
            rd, mfs = g2_parts(i if i else 1)
            rd, _ = g2_parts(i)
            kw['side_groups'] = [(3, mfs[0]), (5, mfs[1])]
            stl = [('srd', spread(rd, 0.02, 0.36))]
            if j <= 27:
                dm = [scmp('s_cmp_gt_u32', S_N, 4), I(f"s_cselect_b32 {S_SKIP}, 0x30000, 0", 'salu', reads=['scc'], writes=[S_SKIP]), sop('s_add_u32', S_N, S_N, 1)]
                dm += g2_dma(i & 1, True)
                kw['side_dma_list'] = (dm, 0.45, 0.78, 0.42)
                stl += [('sul', spread(g2_uloads(), 0.82, 0.98, rel=0.80))]
            kw['streams'] = stl
            kw['post'] = toggle_side()
        elif j == 29:
            pre = [sload(S(44, 2), ARG_B2), waitcnt(lgkm=0)] + make_srd(B1, S(44, 2), 2048*2)
            bl = [valu('v_and_b32', V(1), 15, l), raw("s_lshl_b32 s44, s46, 6", writes=[S(44)]), raw("s_lshl_b32 s45, s24, 4", writes=[S(45)]),
                  raw("s_add_u32 s44, s44, s45", writes=[S(44)]), valu('v_add_u32', V(1), S(44), V(1)), valu('v_lshlrev_b32', V(1), 1, V(1)), bload_ushort(V(18), V(1), B1)]
            kw['pre'] = pre
            kw['streams'] = [('sw', spread(scratch_write(), 0.1, 0.7)), ('sb', spread(bl, 0.05, 0.1))]
        elif j == 30:
            c = scratch_reads()
            comp = [smov(S(44), -LOG2E), valu('v_lshlrev_b32', V(18), 16, V(18))]
            comp += [raw("s_lshr_b32 s43, s47, 1", writes=[S_TMP]), raw("s_lshl_b32 s45, s46, 2", writes=[S(45)]), raw("s_add_u32 s43, s43, s45", writes=[S_TMP]),
                     raw("s_lshl_b32 s43, s43, 2", writes=[S_TMP]), raw("s_and_b32 s45, s47, 1", writes=[S(45)]), raw("s_lshl_b32 s45, s45, 1", writes=[S(45)]),
                     raw("s_add_u32 s43, s43, s45", writes=[S_TMP]), raw("s_lshl_b32 s43, s43, 2", writes=[S_TMP]), raw("s_add_u32 s43, s43, s24", writes=[S_TMP]),
                     raw("s_lshl_b32 s43, s43, 10", writes=[S_TMP]), raw(f"s_add_u32 s43, s43, {WS_GATE}", writes=[S_TMP]), valu('v_lshlrev_b32', V(26), 4, l)]
            for mt in range(4):
                for r in range(4):
                    y = V(2 + r)
                    comp += sum4(mt, r, y, V(6))
                    comp += [valu('v_add_f32', y, y, V(18)), valu('v_mul_f32', V(7), S(44), y), valu('v_exp_f32', V(7), V(7)), valu('v_add_f32', V(7), 1.0, V(7)),
                             valu('v_rcp_f32', V(7), V(7)), valu('v_mul_f32', y, y, V(7))]
                q = V(28 + 2*(mt & 1), 2)
                comp += [valu('v_cvt_pk_bf16_f32', q[0], V(2), V(3)), valu('v_cvt_pk_bf16_f32', q[1], V(4), V(5))]
                if mt & 1:
                    comp.append(bstore(4, V(28, 4), V(26), SRD_W, S_TMP))
                    comp.append(sop('s_add_u32', S_TMP, S_TMP, 4096))
            kw['streams'] = [('srd', spread(c, 0.0, 0.15)), ('scomp', spread(comp, 0.15, 0.98))]
        return kw
    seqs = [('pro', pro)]
    for j in range(33):
        p = at.period(j, **side_spec(j))
        if o.timing and j in o.stamp_after: p = p + STP()
        seqs.append((j, [label(f"@@P{j}")] + p))
    DO = [V(14 + i) for i in range(4)]
    TO = [V(64 + i) for i in range(8)]
    S_SLOW = S(6)
    def wo_first():
        s_ = []; a_ = s_.append
        dma_off_256(a_, l, DO, 1024, 'o', S_T)
        a_(raw("s_lshl_b32 s42, s25, 19", writes=[S_SO])); a_(raw("s_lshl_b32 s43, s24, 8", writes=[S_T]))
        a_(raw("s_add_u32 s42, s42, s43", writes=[S_SO]))
        for n in range(3):
            for h in range(2):
                a_(sop('s_add_u32', 'm0', S_RING, n*8192 + h*4096)); a_(nop(0))
                for i in range(4): a_(lds_dep(dma(DO[i], SRD_WO, S_SO, off=i*1024), need={f'oR{n}'}, mark={f'oL{n}'}))
                a_(sop('s_add_u32', S_SO, S_SO, 16*1024))
        return s_
    pre_epi = [smov(S_SLOW, 0)] + wo_first()
    s = []; a = s.append
    a(label("@@EPI"))
    a(label("L_k3_norm"))
    a(nop(7))
    a(valu('v_mov_b32', V(6), S_RING))
    addr_tr256(a, l, TO, V(6), 4)
    LI = [V(24 + i) for i in range(4)]
    for qt in range(4): a(valu('v_rcp_f32', LI[qt], LA[qt][0]))
    a(valu('v_lshlrev_b32', V(7), 4, l))
    a(raw("s_lshl_b32 s43, s24, 14", writes=[S_T])); a(raw(f"s_add_u32 s43, s43, {XBASE}", writes=[S_T]))
    a(valu('v_add_u32', V(22), S_T, V(7))); a(valu('v_add_u32', V(23), XBASE, V(7)))
    for kk in range(4):
        for qt in range(4):
            x, y = O(2*kk, qt), O(2*kk+1, qt)
            for r in range(4):
                a(valu('v_mul_f32', x[r], x[r], LI[qt])); a(valu('v_mul_f32', y[r], y[r], LI[qt]))
            F = V(48 + 4*((kk*4+qt) & 3), 4)
            a(valu('v_cvt_pk_bf16_f32', F[0], x[0], x[1])); a(valu('v_cvt_pk_bf16_f32', F[1], x[2], x[3]))
            a(valu('v_cvt_pk_bf16_f32', F[2], y[0], y[1])); a(valu('v_cvt_pk_bf16_f32', F[3], y[2], y[3]))
            a(ds_write(4, V(22), F, off=(kk*4+qt)*1024))
    a(waitcnt(lgkm=0)); a(barrier())
    s.extend(STP())
    def oread(n, qt, dst): return ds_read_b128(dst, V(23), (n*4+qt)*1024)
    proj_gemm2(a, s, TO, DO, SRD_WO, S_SO, 1024, S_RING, oread, 4096, 'o', fb_base=128)
    a(smov(S(44), float(2.0**100)))
    for qt in range(4):
        a(I(f"v_cmp_gt_f32 vcc, s44, {LA[qt][0]}", 'valu', reads=[S(44), LA[qt][0]], writes=['vcc']))
        a(nop(3))
        a(I("s_mov_b64 s[38:39], vcc" if qt == 0 else "s_and_b64 s[38:39], s[38:39], vcc", 'salu', reads=['vcc'], writes=[S(38, 2), 'scc']))
    a(nop(7))
    a(valu('v_mov_b32', V(1), 0x1F8))
    for qt in range(4):
        a(I(f"v_cmp_class_f32 vcc, {O(0, qt)[0]}, v1", 'valu', reads=[O(0, qt)[0], V(1)], writes=['vcc']))
        a(nop(3))
        a(I("s_and_b64 s[38:39], s[38:39], vcc", 'salu', reads=['vcc'], writes=[S(38, 2), 'scc']))
    a(raw("s_cmp_eq_u64 s[38:39], -1"))
    a(raw("s_cselect_b32 s44, 0, 1", reads=['scc'], writes=[S(44)]))
    a(valu('v_mov_b32', V(2), S(44))); a(valu('v_mov_b32', V(1), S_RING))
    a(ds_write(1, V(1), V(2)))
    a(waitcnt(lgkm=0)); a(barrier())
    a(valu('v_mov_b32', V(1), 0)); a(valu('v_mov_b32', V(6), 49152))
    a(ds_read_b32(V(2), V(1))); a(ds_read_b32(V(3), V(1), 24576)); a(ds_read_b32(V(4), V(6))); a(ds_read_b32(V(5), V(6), 24576))
    a(valu('v_or_b32', V(2), V(2), V(3))); a(valu('v_or_b32', V(4), V(4), V(5))); a(valu('v_or_b32', V(2), V(2), V(4)))
    a(readfirstlane(S(44), V(2)))
    a(nop(3))
    a(I("s_andn2_b32 s44, s44, s6", 'salu', reads=[S(44), S_SLOW], writes=[S(44), 'scc']))
    a(raw("s_cbranch_scc1 L_k3_slow", 'branch'))
    a(label("L_k3_store"))
    s.extend(STP())
    a(raw("s_lshl_b32 s42, s25, 5", writes=[S_SO])); a(raw("s_add_u32 s42, s42, s26", writes=[S_SO]))
    a(raw("s_lshl_b32 s42, s42, 2", writes=[S_SO])); a(raw("s_add_u32 s42, s42, s24", writes=[S_SO]))
    a(raw("s_lshl_b32 s42, s42, 14", writes=[S_SO])); a(raw(f"s_add_u32 s42, s42, {WS_PART}", writes=[S_SO]))
    for p in range(4):
        for qt in range(4):
            x, y = O(2*p, qt), O(2*p+1, qt)
            F = V(48 + 4*((p*4+qt) & 3), 4)
            a(valu('v_cvt_pk_bf16_f32', F[0], x[0], x[1])); a(valu('v_cvt_pk_bf16_f32', F[1], x[2], x[3]))
            a(valu('v_cvt_pk_bf16_f32', F[2], y[0], y[1])); a(valu('v_cvt_pk_bf16_f32', F[3], y[2], y[3]))
            a(bstore(4, F, V(7), SRD_W, S_SO, off=qt*1024))
        a(sop('s_add_u32', S_SO, S_SO, 4096))
    a(waitcnt(vm=0))
    s.extend(STP())
    if getattr(o, 'diag_period', None) is not None: STP.force(len(o.diag_marks))
    if getattr(o, 'polldiag', False): STP.n = 16
    s.extend(STP.flush(S_WAVE))
    epi = s
    s = []; a = s.append
    M = [V(72 + i) for i in range(4)]
    a(label("L_k3_slow"))
    at.nozero = True
    a(smov(S_SLOW, 1))
    for r in range(128): a(valu('v_mov_b32', V(128 + r), 0))
    for qt in range(4):
        for r in range(4): a(valu('v_mov_b32', LA[qt][r], 0))
        a(valu('v_mov_b32', M[qt], 0xff800000))
    a(smov(S_TILE, 0)); a(smov(S(45), 32))
    a(label("L_k3_slowloop"))
    a(barrier())
    s.extend(at.kv_dma(0))
    a(waitcnt(vm=0)); a(barrier())
    for kh in range(2):
        s.extend(at.k_reads(0, kh)); s.extend(at.v_reads(0, kh))
        for c in range(2):
            for q2 in range(2):
                for t in range(2):
                    for i in range(4): a(mfma16(Sx(c, t, q2), Kf(t*4+i), Q(i, 2*c+q2), 0 if i == 0 else Sx(c, t, q2)))
            for q2 in range(2):
                qt = 2*c + q2; s0, s1 = Sx(c, 0, q2), Sx(c, 1, q2); m = V(4); t_ = V(5)
                a(valu('v_max3_f32', m, s0[0], s0[1], s0[2])); a(valu('v_max3_f32', m, m, s0[3], s1[0]))
                a(valu('v_max3_f32', m, m, s1[1], s1[2])); a(valu('v_max3_f32', m, m, s1[3], M[qt]))
                a(valu('v_mov_b32', t_, m)); a(permlane16_swap(m, t_)); a(valu('v_max_f32', m, m, t_))
                a(valu('v_mov_b32', t_, m)); a(permlane32_swap(m, t_)); a(valu('v_max_f32', m, m, t_))
                a(valu('v_sub_f32', t_, M[qt], m)); a(valu('v_exp_f32', t_, t_)); a(valu('v_mov_b32', M[qt], m))
                for dt in range(8):
                    for r in range(4): a(valu('v_mul_f32', O(dt, qt)[r], O(dt, qt)[r], t_))
                for r in range(4): a(valu('v_mul_f32', LA[qt][r], LA[qt][r], t_))
                for t in range(2):
                    sx = Sx(c, t, q2)
                    for r in range(4):
                        a(valu('v_sub_f32', sx[r], sx[r], m)); a(valu('v_exp_f32', sx[r], sx[r]))
                    a(valu('v_cvt_pk_bf16_f32', Pb[c][4*q2 + 2*t], sx[0], sx[1])); a(valu('v_cvt_pk_bf16_f32', Pb[c][4*q2 + 2*t + 1], sx[2], sx[3]))
            for m_ in at.pv_slot(0, kh, c):
                m_.rt = {}; a(m_)
    a(waitcnt(lgkm=0))
    a(sop('s_sub_u32', S(45), S(45), 1)); a(scmp('s_cmp_lg_u32', S(45), 0)); a(raw("s_cbranch_scc1 L_k3_slowloop", 'branch'))
    a(nop(15)); a(barrier())
    s.extend(wo_first())
    a(raw("s_branch L_k3_norm", 'branch'))
    for i_ in s:
        if hasattr(i_, 'rt'): i_.rt = {}
    slow, _, _ = auto_waits(s)
    slow = fix_hazards(slow, "slow")
    full = []
    for (name, seq) in seqs:
        if name == 32: full += pre_epi
        full += seq
    full += epi
    full, _, _ = auto_waits(full)
    errs = validate_tags(full)
    for e in errs[:10]: print("DATAFLOW", e, file=sys.stderr)
    parts = {}; cur = 'pro'; parts[cur] = []
    for ins in full:
        if ins.kind == 'label' and ins.text.startswith('@@'):
            cur = ins.text[2:-1]; parts[cur] = []
        else: parts[cur].append(ins)
    P = lambda j: parts[f'P{j}']
    txt = lambda j: [i.text for i in P(j)]
    def loop(first_j, n_iter, lbl, cnt):
        body = []
        for k in range(3):
            base = list(P(first_j + k))
            for it in range(1, n_iter):
                other = P(first_j + 3*it + k)
                assert len(other) == len(base), f"loop {lbl}: period {first_j+k} vs {first_j+3*it+k} length {len(base)} {len(other)}"
                for idx, (x, y) in enumerate(zip(base, other)):
                    if x.text != y.text:
                        assert x.kind == 'wait' and y.kind == 'wait' and (x.vm is None) == (y.vm is None) and (x.lgkm is None) == (y.lgkm is None), (lbl, x.text, y.text)
                        base[idx] = waitcnt(vm=None if x.vm is None else min(x.vm, y.vm), lgkm=None if x.lgkm is None else min(x.lgkm, y.lgkm))
            body += [comment(f"period {first_j+k} (+3n)")] + base
        body += [sop('s_sub_u32', cnt, cnt, 1), scmp('s_cmp_lg_u32', cnt, 0), raw(f"s_cbranch_scc1 {lbl}", 'branch')]
        errs = check_hazards(body, loop=True, name=lbl)
        for e in errs[:20]: print("HAZARD", e, file=sys.stderr)
        return [smov(cnt, n_iter), label(lbl)] + body
    out = fix_hazards(parts['pro'] + [comment("period 0")] + P(0), "pro")
    S_CNT = S(4)
    if getattr(o, 'noloop', False):
        allp = []
        for j in range(1, 33): allp += [comment(f"period {j}")] + P(j)
        out += fix_hazards(allp + parts['EPI'], "all")
        out += [raw("s_branch L_k3_end", 'branch')] + slow
        out.append(label("L_k3_end"))
        return emit(out)
    if o.side:
        out += loop(1, 5, "L_k3_loopA", S_CNT)
        mid = []
        for j in range(16, 22): mid += [comment(f"period {j}")] + P(j)
        out += fix_hazards(P(15)[-30:] + mid, "mid")[len(P(15)[-30:]):] if False else fix_hazards(mid, "mid")
        out += loop(22, 2, "L_k3_loopB", S_CNT)
        tail = []
        for j in range(28, 33): tail += [comment(f"period {j}")] + P(j)
    else:
        out += loop(1, 9, "L_k3_loopA", S_CNT)
        tail = []
        for j in range(28, 33): tail += [comment(f"period {j}")] + P(j)
    tm = []
    out += fix_hazards(tail + parts['EPI'], "tail")
    out += [raw("s_branch L_k3_end", 'branch')] + slow
    out.append(label("L_k3_end"))
    if getattr(o, 'verbose', False):
        for j in (2, 16, 17, 18, 21, 23, 29, 30):
            tot = 0; gap = None
            for i in P(j):
                if i.kind == 'mfma':
                    if gap is not None: tot += max(16, gap)
                    gap = 8
                elif gap is not None: gap += cost(i)
            print(f"; period {j}: est {tot + max(16, gap or 0)} cycles, {len(P(j))} instrs", file=sys.stderr)
    return emit(out)
if __name__ == "__main__":
    o = Opt(); o.verbose = True
    for kv in sys.argv[1:]:
        k, v = kv.split("="); setattr(o, k, eval(v))
    t = build(o); print(len(t.splitlines()))
```

```python
from k_common import *
WS_GATE = 6 << 20
def build(timing=False):
    s = []; a = s.append
    STP = Stamps(timing, 4)
    s.extend(STP())
    a(raw("s_cmp_ge_u32 s2, 512")); a(raw("s_cbranch_scc1 L_k4_end", 'branch'))
    a(sload(S(4, 2), ARG_WS)); a(sload(S(6, 2), ARG_X)); a(sload(S(8, 2), ARG_OUT))
    a(valu('v_lshrrev_b32', V(1), 6, V(0)))
    a(readfirstlane(S(23), V(1)))
    l = V(0)
    a(valu('v_and_b32', l, 63, l))
    a(raw("s_lshl_b32 s20, s2, 2", writes=[S(20)]))
    a(waitcnt(lgkm=0))
    a(raw("s_add_u32 s20, s20, s23", writes=[S(20)]))
    s.extend(make_srd(S(12, 4), S(4, 2), WS_END)); s.extend(make_srd(S(16, 4), S(6, 2), 2 << 20)); s.extend(make_srd(S(24, 4), S(8, 2), 2 << 20))
    a(valu('v_lshlrev_b32', V(2), 4, l))
    a(raw("s_lshl_b32 s21, s20, 10", writes=[S(21)]))
    a(raw(f"s_add_u32 s22, s21, {WS_GATE}", writes=[S(22)]))
    a(raw(f"s_add_u32 s21, s21, {WS_PART}", writes=[S(21)]))
    PP = lambda g: V(16 + 4*g, 4)
    for g in range(8):
        a(bload(4, PP(g), V(2), S(12, 4), S(21)))
        if g < 7: a(sop('s_add_u32', S(21), S(21), 32*64*1024))
    G = V(48, 4)
    a(bload(4, G, V(2), S(12, 4), S(22)))
    a(raw("s_lshr_b32 s28, s20, 6", writes=[S(28)])); a(raw("s_and_b32 s29, s20, 3", writes=[S(29)]))
    a(raw("s_lshl_b32 s28, s28, 6", writes=[S(28)])); a(raw("s_lshl_b32 s29, s29, 4", writes=[S(29)])); a(raw("s_add_u32 s28, s28, s29", writes=[S(28)]))
    a(raw("s_bfe_u32 s29, s20, 0x40002", writes=[S(29)]))
    a(raw("s_lshl_b32 s29, s29, 6", writes=[S(29)]))
    a(valu('v_and_b32', V(3), 15, l)); a(valu('v_add_u32', V(3), S(28), V(3))); a(valu('v_lshlrev_b32', V(3), 10, V(3)))
    a(valu('v_lshrrev_b32', V(4), 4, l)); a(valu('v_lshl_add_u32', V(3), V(4), 3, V(3))); a(valu('v_add_u32', V(3), S(29), V(3)))
    X = V(52, 4)
    a(bload(2, X[0:2], V(3), S(16, 4))); a(bload(2, X[2:4], V(3), S(16, 4), 0, off=32))
    R = [V(56 + i) for i in range(8)]
    for k in range(8):
        q = k >> 1; hi = k & 1
        def unp(dst, src): return valu('v_and_b32', dst, 0xffff0000, src) if hi else valu('v_lshlrev_b32', dst, 16, src)
        a(unp(R[k], PP(0)[q]))
        for g in range(1, 8):
            a(unp(V(5), PP(g)[q])); a(valu('v_add_f32', R[k], R[k], V(5)))
        a(unp(V(5), G[q])); a(unp(V(6), X[q]))
        a(valu('v_fma_f32', R[k], R[k], V(5), V(6)))
    OUT = V(64, 4)
    for q in range(4): a(valu('v_cvt_pk_bf16_f32', OUT[q], R[2*q], R[2*q+1]))
    a(bstore(2, OUT[0:2], V(3), S(24, 4))); a(bstore(2, OUT[2:4], V(3), S(24, 4), 0, off=32))
    a(waitcnt(vm=0))
    s.extend(STP())
    s.extend(STP.flush(S(23)))
    s, _, _ = auto_waits(s)
    s = fix_hazards(s, "k4b")
    s.append(label("L_k4_end"))
    return emit(s)
```

```python
import sys; sys.path.insert(0, 'work')
from k_common import *
import k1_ln, k3b, k4b
HDR = open('recurrent_scan__gqa_block_cached__mixer_token_mlp__prompt.s.ref').read().split('; Override launch')[0]
def build(opt):
    k3txt = k3b.build(opt)
    cp = getattr(opt, 'code_prefetch', 0)
    ks = ([] if opt.fuse_ln else [('ln_kernel', lambda: k1_ln.build(cp, opt.timing), (512, 256, 0), 32, 32)]) + [
          ('attn_kernel', lambda: k3txt, (256, 256, 163840), 512, 256),
          ] + ([] if opt.fuse_comb else [('comb_kernel', lambda: k4b.build(opt.timing), (512, 256, 0), 72, 72)])
    txt = HDR
    for (n, f, (g, b, lds), vg, ac) in ks: txt += f"; @launch kernel={n} grid=({g},1,1) block=({b},1,1) lds={lds}\n"
    txt += '.amdgcn_target "amdgcn-amd-amdhsa--gfx950"\n.text\n'
    for (n, f, _, vg, ac) in ks: txt += kernel_text(n, f(), vg, ac)
    txt += '.section .rodata,"a"\n'
    for (n, f, _, vg, ac) in ks: txt += ".p2align 6\n" + kernel_desc(n, vg, ac, sgpr=102)
    return txt
if __name__ == "__main__":
    opt = k3b.Opt()
    for kv in sys.argv[2:]:
        k, v = kv.split("="); setattr(opt, k, eval(v))
    opt.diag_marks = []; opt.diag_base = 64
    open(sys.argv[1], "w").write(build(opt))
    if opt.diag_marks: print('marks', opt.diag_marks)
```

```python
from k_common import *
from k3_attn import (NST, KBASE, VBASE, XBASE, SRD_K, SRD_V, SRD_W, SRD_WQ, SRD_WO, S_TILE, S_WOFF, S_WAVE, S_G, S_QB, QSCALE,
                     O, Q, Kf, Vf, Sb, Sx, NM, LA, Pb, ONES, KA, VA, DK, DV, addr_tr256, dma_off_256, proj_gemm)
from k2_gemm1 import tr_addr_128, dma_off_128, gelu, LOG2E
WS_GATE = 6 << 20
HMOD = 'sc1'

class Opt:
    barrier = True
    minfill = 8; maxfill = 8; early = 1.5
    sm_rel = 4; p_lead = 2; k_span = 1.0; k_lead = 6; bar_lead = 5
    timing = False; prefetch = True; side = True; fuse_ln = True; fuse_comb = True
    stamp_after = (0, 16, 17, 21, 28, 30, 32)
    def __init__(self, **kw): self.__dict__.update(kw)

SRD_W1 = S(48, 4); SRD_W2 = S(52, 4); SRD_DBG = S(56, 4); SRD_US = S(60, 4)
S_T64 = S(46); S_DT = S(47); S_SR = S(40); S_SKIP = S(37); S_N = S(38); S_SA = S(39); S_SB = S(36); S_XB = S(27); S_KVSKIP = S(23); S_TMP = S(43)
TA = [V(14 + i) for i in range(4)]; DA = [V(18 + i) for i in range(4)]; DB = [V(22 + i) for i in range(4)]
def sacc(i, j): return A(128 + (i*4+j)*4, 4)
def sfa(h, t): return A(192 + 16*h + 4*t, 4)
def sfb(h, t): return A(224 + 16*h + 4*t, 4) if h else A(208 + 4*t, 4)
def g2a(h, t): return A(192 + 16*h + 4*t, 4)
def g2b(h, t): return A(224 + 16*h + 4*t, 4)

class Attn:
    def __init__(self, opt): self.o = opt
    def qk_slot(self, j, kh, c):
        out = []
        for q2 in range(2):
            for t in range(2):
                for i in range(4):
                    qt = 2*c + q2; sx = Sx(c, t, q2)
                    m = mfma16(sx, Kf(t*4+i), Q(i, qt), NM[qt] if i == 0 else sx)
                    tag(m, wt=('S', j, kh, c), rt=[(Kf(t*4+i), ('K', j, kh))] + ([(sx, ('S', j, kh, c))] if i else []))
                    out.append(m)
        return out
    def pv_slot(self, j, kh, c):
        out = []
        z = (j == 0 and kh == 0 and not getattr(self, 'nozero', False))
        for q2 in range(2):
            p = Pb[c][4*q2:4*q2+4]; qt = 2*c + q2
            for dt in range(8):
                m = mfma16(O(dt, qt), Vf(dt), p, 0 if z else O(dt, qt))
                tag(m, rt=[(Vf(dt), ('V', j, kh)), (p, ('P', j, kh, c))]); out.append(m)
            m = mfma16(LA[qt], ONES, p, 0 if z else LA[qt]); tag(m, rt=[(p, ('P', j, kh, c))]); out.append(m)
        return out
    def sm_list(self, j, kh, c):
        regs = []
        for q2 in range(2):
            for t in range(2):
                for r in range(4): regs.append((Sx(c, t, q2)[r], Pb[c][4*q2 + 2*t + (r >> 1)]))
        ops = []
        for n, (s, p) in enumerate(regs):
            ops.append((n, tag(valu('v_exp_f32', s, s), wt=('E', j, kh, c), rt=[(s, ('S', j, kh, c))])))
            if n & 1:
                sp = regs[n-1][0]
                ops.append((n + 1.04, tag(valu('v_cvt_pk_bf16_f32', p, sp, s), wt=('P', j, kh, c), rt=[(s, ('E', j, kh, c)), (sp, ('E', j, kh, c))])))
        return [i for (t, i) in sorted(ops, key=lambda x: x[0])]
    def k_reads(self, j, kh):
        st = j % NST
        return [tag(ds_read_b128(Kf(n), KA[n & 3], KBASE + st*16384 + kh*8192 + (n >> 2)*4096), wt=('K', j, kh)) for n in range(8)]
    def v_reads(self, j, kh):
        st = j % NST
        return [tag(ds_read_tr(Vf(dt)[2*u:2*u+2], VA[dt], st*16384 + kh*8192 + u*4096), wt=('V', j, kh)) for dt in range(8) for u in range(2)]
    def kv_dma(self, st, skip=False):
        ops = []
        for n in range(8):
            if n in (0, 4):
                base = (KBASE if n == 0 else VBASE) + st*16384
                ops.append(sop('s_add_u32', 'm0', S_WOFF, base))
                if skip: ops.append(sop('s_max_u32', 'm0', 'm0', S_KVSKIP))
                ops.append(nop(0))
            if n < 4: ops.append(dma(DK[n], SRD_K, S_TILE, off=n*1024))
            else: ops.append(dma(DV[n & 1], SRD_V, S_TILE, off=(n-4)*1024))
        ops.append(sop('s_add_u32', S_TILE, S_TILE, 16384))
        return ops

    def period(self, j, first=False, last_drain=False, kv=True, kvskip=False, side_groups=(), streams=(), pre=(), post=(), vm_end=None, side_dma_list=None):
        o = self.o
        hp, hc = not first, not last_drain
        base = [self.pv_slot(j-1, 1, 0) if hp else None, self.qk_slot(j, 0, 0) if hc else None,
                self.pv_slot(j-1, 1, 1) if hp else None, self.qk_slot(j, 0, 1) if hc else None,
                self.pv_slot(j, 0, 0) if hc else None, self.qk_slot(j, 1, 0) if hc else None,
                self.pv_slot(j, 0, 1) if hc else None, self.qk_slot(j, 1, 1) if hc else None]
        lens = [18, 16]*4
        mf = []; starts = []; ends = []; side_pos = []
        for s in range(8):
            starts.append(len(mf))
            mf += base[s] if base[s] is not None else [None]*lens[s]
            ends.append(len(mf))
            for (aft, g) in side_groups:
                if aft == s:
                    side_pos.append(len(mf)); mf += g
        T = len(mf)
        self.T = T
        ops = []
        CUT0 = o.cut0; CUT1 = o.cut1
        def sm_stream(jj, kh, c, t_lo, t_hi, tpv, i0=0, i1=None, release=None):
            raw_ops = self.sm_list(jj, kh, c); n = len(raw_ops); i1 = n if i1 is None else i1
            pv = self.pv_slot(jj, kh, c); res = []
            for idx in range(i0, i1):
                ins = raw_ops[idx]
                t = t_lo + (t_hi - t_lo) * (idx - i0) / max(1, (i1 - i0)); dl = 1e9
                if ins.op == 'v_cvt_pk_bf16_f32' and tpv is not None:
                    preg = list(ins.writes)[0]
                    dl = tpv + min(q for q, m in enumerate(pv) if preg in m.reads) - o.p_lead
                res.append([t, dl, ins])
            for idx in range(len(res) - 2, -1, -1): res[idx][1] = min(res[idx][1], res[idx+1][1])
            return [Op(ins, t, release=(t_lo if release is None else release), deadline=min(dl, T - 1), stream='sm') for (t, dl, ins) in res]
        rel = o.sm_rel
        if hp:
            ops += sm_stream(j-1, 1, 0, 0, rel, starts[0], i0=CUT0, release=0)
            ops += sm_stream(j-1, 1, 1, rel, ends[1] + rel, starts[2], i0=CUT1)
        if hc:
            ops += sm_stream(j, 0, 0, ends[1] + rel, ends[3] + rel, starts[4])
            ops += sm_stream(j, 0, 1, ends[3] + rel, ends[5] + rel, starts[6])
            ops += sm_stream(j, 1, 0, ends[5] + rel, T, None, i1=CUT0)
            if CUT1: ops += sm_stream(j, 1, 1, T - 1, T, None, i1=CUT1)
        if hc:
            for (kh, ks_slot, vs_slot) in ((0, 0, 2), (1, 4, 6)):
                qk = self.qk_slot(j, kh, 0)
                for n, ins in enumerate(self.k_reads(j, kh)):
                    fu = min(q for q, m in enumerate(qk) if ins.writes & m.reads)
                    t = starts[ks_slot] + n * 18 * o.k_span / 8
                    rl = (ends[ks_slot-1] if ks_slot else -1)
                    ops.append(Op(ins, max(t, rl), release=rl - 1 if ks_slot else -1, deadline=starts[ks_slot+1] + fu - o.k_lead, stream='k'))
                pv = self.pv_slot(j, kh, 0); pvo = self.pv_slot(j, kh, 1); info = []
                for ins in self.v_reads(j, kh):
                    lu = max(q for q, m in enumerate(pvo) if ins.writes & m.reads)
                    fu = min(q for q, m in enumerate(pv) if ins.writes & m.reads)
                    nxt = starts[vs_slot+2] if vs_slot + 2 < 8 else T + 18
                    dl = nxt + fu - o.k_lead
                    if kh == 1: dl = min(dl, T - 1 - o.bar_lead)
                    info.append((starts[vs_slot] + lu + 1, dl, ins))
                info.sort(key=lambda x: x[0])
                w0 = info[0][0]; w1 = min(x[1] for x in info)
                for n, (r, dl, ins) in enumerate(info):
                    ops.append(Op(ins, max(r, w0 + (w1 - w0) * n / len(info)), release=r, deadline=dl, stream='v'))
        dstream = []
        if kv and hc:
            lst = dma_ops_with_setup(self.kv_dma((j + 2) % NST, skip=kvskip))
            pos = o.kv_pos if not side_dma_list else o.kv_pos2; n = 0
            for (ins, st) in lst:
                if ins.kind == 'dma':
                    t = pos[n]; n += 1
                else: t = pos[min(n, 7)] if n < 8 else pos[7]
                dstream.append((t, 0.0, ins, st))
        if side_dma_list:
            (lst, f0, f1, fr) = side_dma_list
            lst = dma_ops_with_setup(lst)
            nd = sum(1 for (i, _) in lst if i.kind == 'dma'); n = 0
            for (ins, st) in lst:
                dstream.append((f0 + (f1 - f0) * n / max(1, nd), fr, ins, st))
                if ins.kind == 'dma': n += 1
        for (t, fr, ins, st) in dstream:
            op = Op(ins, t * T, release=fr * T, stream='dma'); op.setup = st
            ops.append(op)
        for (name, lst) in streams:
            for (ft, fr, ins) in lst:
                ops.append(Op(ins, ft * T, release=fr * T, stream=name))
        seq, fills = list_schedule2(mf, ops, o.minfill, o.maxfill, ahead=o.early)
        self.fills = fills
        seq = list(pre) + expand(seq) + list(post)
        if getattr(o, 'diag_period', None) == j:
            marks = sorted(set(starts + side_pos + [e for e in ends] + [T - 1]))
            marks = [m for m in marks if m < T]
            new = []; k = 0
            for ins in seq:
                if ins.kind == 'mfma':
                    kk = mf.index(ins)
                    if kk in marks:
                        r = S(o.diag_base + 2*len(o.diag_marks), 2); o.diag_marks.append(kk)
                        new.append(raw(f"s_memtime {r}", 'salu', writes=[r]))
                new.append(ins)
            seq = new
        if hc:
            nvm = sum(1 for i in seq if i.kind in ('dma', 'vload', 'vstore', 'vatomic')) if vm_end is None else vm_end
            seq.append(waitcnt(vm=nvm, lgkm=0))
            if o.barrier: seq.append(barrier())
        return seq
Opt.g1_rd = (0.05, 0.45); Opt.g1_dm = (0.62, 0.95)
Opt.pf_w1_at = 8; Opt.pf_w1 = False; Opt.pf_w2 = True
Opt.g1_pos = 0
Opt.cut0 = 21; Opt.cut1 = 0
Opt.kv_pos = [0.147, 0.184, 0.22, 0.25, 0.647, 0.684, 0.72, 0.75]
Opt.kv_pos2 = [0.08, 0.12, 0.16, 0.20, 0.26, 0.30, 0.34, 0.38]

def side_dma(srdA, soA, strideA, srdB, soB, strideB, offsA, offsB, stage_tag, skip, modsB=""):
    o = []
    src = S_SR
    if skip:
        o.append(sop('s_max_u32', S(5), S_SR, S_SKIP)); src = S(5)
    o.append(smov('m0', src)); o.append(nop(0))
    for i in range(4): o.append(lds_dep(dma(offsA[i], srdA, soA, off=i*1024), need={f'sR{stage_tag}'}, mark={f'sL{stage_tag}'}))
    o.append(sop('s_add_u32', soA, soA, strideA))
    o.append(sop('s_add_u32', 'm0', src, 4096)); o.append(nop(0))
    for i in range(4): o.append(lds_dep(dma(offsB[i], srdB, soB, off=i*1024, mods=modsB), need={f'sR{stage_tag}'}, mark={f'sL{stage_tag}'}))
    o.append(sop('s_add_u32', soB, soB, strideB))
    return o
def spread(lst, f0, f1, rel=None):
    n = sum(1 for i in lst if cost(i) > 0) or 1
    out = []; k = 0
    for ins in lst:
        t = f0 + (f1 - f0) * k / n
        out.append((t, f0 if rel is None else rel, ins))
        if cost(ins) > 0: k += 1
    return out
def toggle_side():
    return [valu('v_xor_b32', TA[t], 8192, TA[t]) for t in range(4)] + [sop('s_xor_b32', S_SR, S_SR, 8192)]

def g1_parts(n, in_loop):
    st = n & 1
    rd = []
    for t in range(4):
        for u in range(2): rd.append(lds_dep(ds_read_tr(sfa(0, t)[2*u:2*u+2], TA[t], u*2048), need={f'sL{st}'}, mark={f'sR{st}'}))
    for t in range(4):
        for u in range(2): rd.append(lds_dep(ds_read_tr(sfb(0, t)[2*u:2*u+2], TA[t], 4096 + u*2048), need={f'sL{st}'}, mark={f'sR{st}'}))
    mf = [mfma16(sacc(ft, dt), sfa(0, ft), sfb(0, dt), sacc(ft, dt) if n else 0) for ft in range(4) for dt in range(4)]
    dm = []
    if in_loop:
        dm = [scmp('s_cmp_gt_u32', S_N, 13), I(f"s_cselect_b32 {S_SKIP}, 0x30000, 0", 'salu', reads=['scc'], writes=[S_SKIP]), sop('s_add_u32', S_N, S_N, 1)]
        dm += side_dma(SRD_W1, S_SA, 32*3584, SRD_W, S_SB, 32*1024, DA, DB, st, True, modsB=HMOD)
    elif n + 2 <= 15:
        dm = [sop('s_add_u32', S_N, S_N, 1)] + side_dma(SRD_W1, S_SA, 32*3584, SRD_W, S_SB, 32*1024, DA, DB, st, False, modsB=HMOD)
    return rd, mf, dm
def g2_parts(i):
    st = i & 1
    rd = []
    for h in range(2):
        for t in range(4):
            for u in range(2): rd.append(lds_dep(ds_read_tr(g2b(h, t)[2*u:2*u+2], TA[t], h*4096 + u*2048), need={f'sL{st}'}, mark={f'sR{st}'}))
    mfs = [[mfma16(sacc(mt, s_), g2a(h, mt), g2b(h, s_), sacc(mt, s_) if (i or h) else 0) for mt in range(4) for s_ in range(4)] for h in range(2)]
    return rd, mfs
def g2_dma(st, skip):
    return side_dma(SRD_W2, S_SA, 32*4096, SRD_W2, S_SA, 32*4096, DA, DA, st, skip)
def g2_uloads():
    o = []
    for h in range(2):
        for t in range(4): o.append(bload(4, g2a(h, t), DB[t], SRD_W, S_SB, mods="sc1"))
        o.append(sop('s_add_u32', S_SB, S_SB, 1024))
    return o

def proj_gemm2(a, s, TA_, DW, srd, SOFF, stride, S_RING, bread, uoff, name, last_pre=None, last_fill=None, dma_gap0=3, fb_base=0, hooks=None, fill=None):
    NS = 3; NK = 16
    def fa(p, mt): return A(64 + 32*p + 4*mt, 4)
    def fb(p, qt): return A(fb_base + 16*p + 4*qt, 4)
    def dma_step(n):
        o = []; st = n % NS
        for h in range(2):
            o.append(sop('s_add_u32', 'm0', S_RING, st*8192 + h*4096))
            for i in range(4):
                o.append(lds_dep(dma(DW[i], srd, SOFF, off=i*1024), need={f'{name}R{st}'}, mark={f'{name}L{st}'}))
            o.append(sop('s_add_u32', SOFF, SOFF, 16*stride))
        return o
    def reads(n):
        o = []; st = n % NS; p = n & 1
        for qt in range(4): o.append(bread(n, qt, fb(p, qt)))
        for mt in range(8):
            for u in range(2):
                o.append(lds_dep(ds_read_tr(fa(p, mt)[2*u:2*u+2], TA_[mt], st*8192 + u*uoff), need={f'{name}L{st}'}, mark={f'{name}R{st}'}))
        return o
    s.extend(reads(0))
    for n in range(NK):
        rd = reads(n + 1) if n + 1 < NK else []
        dm = dma_step(n + 3) if n + 3 < NK else []
        if n == NK - 1:
            if last_pre: s.extend(last_pre)
            dm = list(last_fill or [])
        if hooks and n in hooks: s.extend(hooks[n])
        mf = [mfma16(O(mt, qt), fa(n & 1, mt), fb(n & 1, qt), O(mt, qt) if n else 0) for mt in range(8) for qt in range(4)]
        gaps = [[] for _ in range(32)]
        g = dma_gap0
        for (ins, st_) in dma_ops_with_setup(dm):
            if ins.kind == 'dma':
                gaps[g - 1] += st_; gaps[g].append(ins); g = min(31, g + 2) if g + 2 <= 31 else 31
            else: gaps[min(31, g - 1)].append(ins) if g > dma_gap0 else gaps[0].append(ins)
        ev = [k for k in range(32) if not any(i.kind == 'dma' for i in gaps[k])]
        for k, ins in enumerate(rd): gaps[ev[min(len(ev) - 1, k // 2)]].append(ins)
        for k, m in enumerate(mf):
            a(m); s.extend(sort_gap(gaps[k]))
            if fill:
                take = 0
                while fill and take < 2:
                    ins = fill.pop(0); a(ins)
                    if cost(ins) > 0: take += 1
    assert not fill

def build(opt=None):
    o = opt or Opt()
    at = Attn(o)
    STP = Stamps(o.timing, 3); STP.cyc = getattr(o, 'cyc', False)
    s = []; a = s.append
    l = V(0)
    s.extend(STP())
    a(sload(S(4, 2), ARG_K)); a(sload(S(6, 2), ARG_V)); a(sload(S(22, 2), ARG_WS))
    a(sload(S(36, 2), ARG_WQ)); a(sload(S(38, 2), ARG_WO))
    a(sload(S(62, 2), ARG_W1)); a(sload(S(60, 2), ARG_W2)); a(sload(S(58, 2), ARG_DBG))
    if o.fuse_ln: a(sload(S(100, 2), ARG_X))
    a(raw("s_cmp_ge_u32 s2, 256")); a(raw("s_cbranch_scc1 L_k3_end", 'branch'))
    a(valu('v_lshrrev_b32', V(1), 6, V(0)))
    a(readfirstlane(S_WAVE, V(1)))
    a(valu('v_and_b32', l, 63, l))
    a(waitcnt(lgkm=0))
    a(raw("s_and_b32 s25, s2, 7", writes=[S_G])); a(raw("s_lshr_b32 s26, s2, 3", writes=[S_QB]))
    S_RING = S(41); S_SO = S(42); S_T = S(43)
    SRD_X = S(96, 4)
    XP = V(48, 64)
    if o.fuse_ln:
        s.extend(make_srd(SRD_X, S(100, 2), 2 << 20))
        a(valu('v_and_b32', V(1), 15, l)); a(valu('v_lshlrev_b32', V(1), 10, V(1)))
        a(valu('v_lshrrev_b32', V(2), 4, l)); a(valu('v_lshl_add_u32', V(1), V(2), 4, V(1)))
        a(raw("s_lshl_b32 s42, s26, 6", writes=[S_SO])); a(raw("s_lshl_b32 s43, s24, 4", writes=[S_T]))
        a(raw("s_add_u32 s42, s42, s43", writes=[S_SO])); a(raw("s_lshl_b32 s42, s42, 10", writes=[S_SO]))
        for i in range(16): a(bload(4, XP[4*i:4*i+4], V(1), SRD_X, S_SO, off=64*i))
    s.extend(make_srd(SRD_WQ, S(36, 2), 512*4096*2))
    a(valu('v_lshlrev_b32', V(7), 4, l))
    if o.prefetch:
        a(raw("s_lshl_b32 s42, s26, 4", writes=[S_SO])); a(raw("s_lshl_b32 s43, s24, 2", writes=[S_T]))
        a(raw("s_add_u32 s42, s42, s43", writes=[S_SO])); a(raw("s_lshl_b32 s42, s42, 13", writes=[S_SO]))
        a(raw("s_lshl_b32 s43, s25, 10", writes=[S_T])); a(raw("s_add_u32 s42, s42, s43", writes=[S_SO]))
        for n in range(4):
            a(bload(4, A(192 + 4*n, 4), V(7), SRD_WQ, S_SO)); a(sop('s_add_u32', S_SO, S_SO, 8192))
    a(raw("s_lshl_b32 s27, s25, 19", writes=[S(27)]))
    a(raw("s_sub_u32 s40, 0x400000, s27", writes=[S(40)]))
    s.extend(make_srd(SRD_K, S(4, 2), S(40), add=S(27))); s.extend(make_srd(SRD_V, S(6, 2), S(40), add=S(27)))
    s.extend(make_srd(SRD_W, S(22, 2), WS_END))
    s.extend(make_srd(SRD_WO, S(38, 2), 4096*512*2))
    a(raw("s_lshr_b32 s46, s26, 3", writes=[S_T64])); a(raw("s_lshl_b32 s46, s46, 3", writes=[S_T64])); a(raw("s_add_u32 s46, s46, s25", writes=[S_T64]))
    a(raw("s_and_b32 s47, s26, 7", writes=[S_DT]))
    a(raw("s_cmp_lt_u32 s46, 28"))
    a(raw(f"s_cselect_b32 s44, {2048*1792*2}, 0", writes=[S(44)]))
    a(raw(f"s_cselect_b32 s45, {WS_END}, 0", writes=[S(45)]))
    s.extend(make_srd(SRD_W1, S(62, 2), S(44)))
    s.extend(make_srd(SRD_W2, S(60, 2), 1792*2048*2))
    s.extend(make_srd(SRD_DBG, S(58, 2), 256))
    s.extend(make_srd(SRD_US, S(22, 2), S(45)))
    a(raw("s_lshl_b32 s21, s24, 12", writes=[S_WOFF]))
    a(raw("s_mul_i32 s41, s24, 24576", writes=[S_RING]))
    for r in range(4): a(valu('v_mov_b32', ONES[r], 0x3F803F80))
    if not o.fuse_ln:
        a(raw("s_lshl_b32 s42, s26, 6", writes=[S_SO])); a(raw("s_lshl_b32 s43, s24, 4", writes=[S_T]))
        a(raw("s_add_u32 s42, s42, s43", writes=[S_SO])); a(raw("s_lshl_b32 s42, s42, 10", writes=[S_SO]))
        a(raw("s_lshl_b32 s43, s24, 14", writes=[S_T])); a(raw(f"s_add_u32 s43, s43, {XBASE}", writes=[S_T]))
        for n in range(16):
            if n % 4 == 0: a(smov('m0', S_T))
            a(valu('v_xor_b32', V(14 + (n & 3)), n << 4, V(7)))
            a(lds_dep(dma(V(14 + (n & 3)), SRD_W, S_SO, off=(n & 3)*1024), mark={'XN'}))
            if n % 4 == 3:
                a(sop('s_add_u32', S_SO, S_SO, 4096)); a(sop('s_add_u32', S_T, S_T, 4096))
    PTA = [V(32 + i) for i in range(8)]; XA = [V(40 + i) for i in range(4)]; DW = [V(44 + i) for i in range(4)]
    dma_off_256(a, l, DW, 8192, 'q', S_T)
    a(raw("s_lshl_b32 s42, s25, 2", writes=[S_SO])); a(raw("s_add_u32 s42, s42, s24", writes=[S_SO]))
    a(raw("s_lshl_b32 s42, s42, 8", writes=[S_SO]))
    def wq_stage(n):
        o_ = []
        for h in range(2):
            o_ += [sop('s_add_u32', 'm0', S_RING, n*8192 + h*4096), nop(0)]
            for i in range(4): o_.append(lds_dep(dma(DW[i], SRD_WQ, S_SO, off=i*1024), need={f'qR{n}'}, mark={f'qL{n}'}))
            o_.append(sop('s_add_u32', S_SO, S_SO, 16*8192))
        return o_
    a(valu('v_mov_b32', V(6), S_RING))
    addr_tr256(a, l, PTA, V(6), 8)
    a(valu('v_and_b32', V(1), 15, l)); a(valu('v_lshrrev_b32', V(2), 4, l))
    a(valu('v_lshlrev_b32', V(3), 10, V(1))); a(valu('v_add_u32', V(3), XBASE, V(3)))
    for k in range(4):
        a(valu('v_add_u32', V(4), 4*k, V(2))); a(valu('v_xor_b32', V(4), V(4), V(1)))
        a(valu('v_lshl_add_u32', XA[k], V(4), 4, V(3)))
    a(valu('v_lshrrev_b32', V(2), 4, l)); a(valu('v_and_b32', V(3), 15, l))
    for i in range(4):
        a(valu('v_add_u32', V(4), 4*i, V(2))); a(valu('v_xor_b32', V(4), V(4), V(3)))
        a(valu('v_lshlrev_b32', V(4), 4, V(4))); a(valu('v_lshl_add_u32', KA[i], V(3), 8, V(4)))
    a(valu('v_lshrrev_b32', V(4), 2, V(3))); a(valu('v_and_b32', V(5), 3, l))
    a(valu('v_lshl_add_u32', V(7), V(2), 2, V(4)))
    a(valu('v_and_b32', V(1), 7, V(7))); a(valu('v_lshlrev_b32', V(1), 1, V(1)))
    a(valu('v_lshlrev_b32', V(7), 8, V(7)))
    a(valu('v_and_b32', V(6), 1, V(5))); a(valu('v_lshl_add_u32', V(7), V(6), 3, V(7)))
    a(valu('v_add_u32', V(7), VBASE, V(7)))
    a(valu('v_lshrrev_b32', V(6), 1, V(5)))
    for dt in range(8):
        a(valu('v_add_u32', V(5), 2*dt, V(6))); a(valu('v_xor_b32', V(5), V(5), V(1)))
        a(valu('v_lshl_add_u32', VA[dt], V(5), 4, V(7)))
    a(valu('v_lshlrev_b32', V(5), 8, V(2))); a(valu('v_add_u32', V(5), S_WOFF, V(5)))
    for n in range(4):
        a(valu('v_add_u32', V(6), 4*n, V(2))); a(valu('v_xor_b32', V(6), V(6), V(3)))
        a(valu('v_lshl_add_u32', DK[n], V(6), 4, V(5)))
    for n in range(2):
        a(valu('v_add_u32', V(6), 4*n, V(2))); a(valu('v_lshlrev_b32', V(6), 1, V(6)))
        a(valu('v_xor_b32', V(6), V(6), V(3))); a(valu('v_lshl_add_u32', DV[n], V(6), 4, V(5)))
    a(raw("s_lshl_b32 s27, s24, 14", writes=[S_XB])); a(raw(f"s_add_u32 s27, s27, {XBASE}", writes=[S_XB]))
    a(smov(S_SR, S_XB))
    a(valu('v_mov_b32', V(26), S_XB))
    tr_addr_128(a, l, TA, V(26), V(1), V(2), V(3), V(4))
    dma_off_128(a, l, DA, 3584, V(1), V(2), V(3), s_tmp=S_T)
    dma_off_128(a, l, DB, 1024, V(1), V(2), V(3), s_tmp=S_T)
    a(raw("s_lshl_b32 s44, s24, 9", writes=[S(44)]))
    a(raw("s_mul_i32 s39, s44, 3584", writes=[S_SA])); a(raw("s_lshl_b32 s45, s46, 7", writes=[S(45)])); a(raw("s_add_u32 s39, s39, s45", writes=[S_SA]))
    a(raw("s_lshl_b32 s36, s44, 10", writes=[S_SB])); a(raw("s_lshl_b32 s45, s47, 7", writes=[S(45)])); a(raw("s_add_u32 s36, s36, s45", writes=[S_SB]))
    a(raw(f"s_add_u32 s36, s36, {WS_H}", writes=[S_SB]))
    a(smov(S_N, 0)); a(smov(S_SKIP, 0))
    if getattr(o, 'fine', False): s.extend(STP())
    s.extend(wq_stage(0))
    if getattr(o, 'fine', False):
        a(lds_dep(nop(0), need=set(XP.regs()))); s.extend(STP())
    def pk(op, d, x, y, z=None, mods=""):
        srcs = [x, y] + ([z] if z is not None else [])
        return I(f"{op} {d}, " + ", ".join(str(t) for t in srcs) + (" " + mods if mods else ""), 'valu', reads=srcs, writes=[d], op=op)
    if o.fuse_ln:
        F = lambda i, e: V(128 + 8*i + e)
        D1 = V(28, 4); D2 = V(4, 4)
        for i in range(16):
            a(mfma16(D1, ONES, XP[4*i:4*i+4], D1 if i else 0)); a(mfma16(D2, XP[4*i:4*i+4], XP[4*i:4*i+4], D2 if i else 0))
            for q in range(4):
                a(valu('v_lshlrev_b32', F(i, 2*q), 16, XP[4*i+q])); a(valu('v_and_b32', F(i, 2*q+1), 0xffff0000, XP[4*i+q]))
        a(valu('v_and_b32', V(1), 3, l))
        for r in (2, 1, 0):
            a(I(f"v_cmp_eq_u32 vcc, {r}, v1", 'valu', reads=[V(1)], writes=['vcc']))
            a(I(f"v_cndmask_b32 v7, v7, {D2[r]}, vcc", 'valu', reads=[V(7), D2[r], 'vcc'], writes=[V(7)]))
        a(valu('v_and_b32', V(1), 15, l)); a(valu('v_lshrrev_b32', V(2), 2, V(1)))
        a(valu('v_lshl_add_u32', V(2), V(2), 4, V(1))); a(valu('v_lshlrev_b32', V(2), 2, V(2)))
        a(I("ds_bpermute_b32 v3, v2, v7", 'ds_read', reads=[V(2), V(7)], writes=[V(3)]))
        MEAN = V(28); RS = V(2); NB = V(3)
        a(valu('v_mul_f32', MEAN, 1.0/512, MEAN))
        a(valu('v_mul_f32', V(3), 1.0/512, V(3)))
        a(valu('v_fma_f32', V(3), '-v28', MEAN, V(3)))
        a(valu('v_max_f32', V(3), 0, V(3)))
        a(valu('v_add_f32', V(3), 1e-5, V(3)))
        a(valu('v_rsq_f32', RS, V(3)))
        a(valu('v_mul_f32', NB, MEAN, RS)); a(valu('v_sub_f32', NB, 0, NB))
        for i in range(16):
            for e in range(8): a(valu('v_fma_f32', F(i, e), F(i, e), RS, NB))
        a(valu('v_and_b32', V(4), 15, l)); a(valu('v_lshrrev_b32', V(5), 4, l))
        a(raw("s_lshl_b32 s43, s24, 14", writes=[S_T])); a(raw(f"s_add_u32 s43, s43, {XBASE}", writes=[S_T]))
        a(valu('v_lshlrev_b32', V(6), 10, V(4))); a(valu('v_add_u32', V(6), S_T, V(6)))
        WA = [V(28 + k) for k in range(4)]
        for k in range(4):
            a(valu('v_add_u32', V(7), 4*k, V(5))); a(valu('v_xor_b32', V(7), V(7), V(4))); a(valu('v_lshl_add_u32', WA[k], V(7), 4, V(6)))
        for i in range(16):
            for q in range(4): a(valu('v_cvt_pk_bf16_f32', XP[4*i+q], F(i, 2*q), F(i, 2*q+1)))
            a(ds_write(4, WA[i & 3], XP[4*i:4*i+4], off=(i >> 2)*256))
        if getattr(o, 'fine', False): s.extend(STP())
        a(waitcnt(lgkm=0)); a(barrier())
        if getattr(o, 'fine', False): s.extend(STP())
    else:
        a(waitcnt(vm=8)); a(barrier())
    s.extend(wq_stage(1)); s.extend(wq_stage(2))
    if o.fuse_ln:
        s_main, a_main = s, a
        ln2 = []; s = ln2; a = ln2.append
        R0 = [V(64 + i) for i in range(8)]; R1 = [V(72 + i) for i in range(8)]
        PK = [V(80, 4), V(84, 4)]
        a(raw("s_lshl_b32 s44, s25, 3", writes=[S(44)])); a(raw("s_lshl_b32 s45, s24, 1", writes=[S(45)])); a(raw("s_add_u32 s44, s44, s45", writes=[S(44)]))
        for k in range(2):
            a(sop('s_add_u32', S(45), S(44), k)); a(sop('s_and_b32', S(5), S(45), 15)); a(raw("s_lshl_b32 s5, s5, 4", writes=[S(5)]))
            a(raw("s_lshl_b32 s45, s45, 10", writes=[S(45)])); a(raw(f"s_add_u32 s45, s45, {XBASE}", writes=[S(45)]))
            a(valu('v_lshlrev_b32', V(94), 4, l)); a(valu('v_xor_b32', V(94), S(5), V(94))); a(valu('v_add_u32', V(94), S(45), V(94)))
            a(ds_read_b128(PK[k], V(94)))
        RR = [R0, R1]; SM = [V(88), V(90)]; TT = [V(89), V(91)]; QQ = [V(92), V(93)]
        for k in range(2):
            for q in range(4):
                a(valu('v_lshlrev_b32', RR[k][2*q], 16, PK[k][q])); a(valu('v_and_b32', RR[k][2*q+1], 0xffff0000, PK[k][q]))
        def both(f):
            x0, x1 = f(0), f(1)
            for u, v_ in zip(x0, x1): a(u); a(v_)
        both(lambda k: [valu('v_add_f32', SM[k], RR[k][0], RR[k][1])] + [valu('v_add_f32', SM[k], SM[k], RR[k][e]) for e in range(2, 8)])
        both(lambda k: wave_sum(SM[k], TT[k]))
        both(lambda k: [valu('v_mul_f32', SM[k], 1.0/512, SM[k])] + [valu('v_sub_f32', RR[k][e], RR[k][e], SM[k]) for e in range(8)])
        both(lambda k: [valu('v_mul_f32', QQ[k], RR[k][0], RR[k][0])] + [valu('v_fmac_f32', QQ[k], RR[k][e], RR[k][e], dst_read=True) for e in range(1, 8)])
        both(lambda k: wave_sum(QQ[k], TT[k]))
        both(lambda k: [valu('v_mov_b32', TT[k], 1e-5), valu('v_fmac_f32', TT[k], 1.0/512, QQ[k], dst_read=True), valu('v_rsq_f32', TT[k], TT[k])] +
                       [valu('v_mul_f32', RR[k][e], RR[k][e], TT[k]) for e in range(8)] + [valu('v_cvt_pk_bf16_f32', PK[k][q], RR[k][2*q], RR[k][2*q+1]) for q in range(4)])
        a(raw("s_lshl_b32 s45, s26, 6", writes=[S(45)])); a(raw("s_add_u32 s45, s45, s44", writes=[S(45)])); a(raw("s_lshl_b32 s45, s45, 10", writes=[S(45)]))
        a(raw(f"s_add_u32 s45, s45, {WS_H}", writes=[S(45)]))
        a(valu('v_lshlrev_b32', V(94), 4, l))
        a(lds_dep(bstore(4, PK[0], V(94), SRD_W, S(45), mods="sc1"), mark={'HS'}))
        a(lds_dep(bstore(4, PK[1], V(94), SRD_W, S(45), off=1024, mods="sc1"), mark={'HS'}))
        a(valu('v_lshlrev_b32', V(95), 25, l)); a(valu('v_mov_b32', V(96), 0))
        a(raw("s_and_b32 s45, s2, 63", writes=[S(45)])); a(raw("s_lshl_b32 s45, s45, 8", writes=[S(45)])); a(raw(f"s_add_u32 s45, s45, {WS_CNT}", writes=[S(45)]))
        a(lds_dep(bstore(1, V(96), V(95), SRD_W, S(45), mods="sc1"), mark={'HS'}))
        s, a = s_main, a_main
    s.extend(STP())
    def xread(n, qt, dst): return ds_read_b128(dst, XA[n & 3], (n >> 2)*256 + qt*16384)
    kv0 = [smov(S_TILE, 0)] + at.kv_dma(0)
    later = []
    if o.side: later += side_dma(SRD_W1, S_SA, 32*3584, SRD_W, S_SB, 32*1024, DA, DB, 0, False, modsB=HMOD) + [sop('s_xor_b32', S_SR, S_SR, 8192)]
    later += at.kv_dma(1)
    if o.side: later += side_dma(SRD_W1, S_SA, 32*3584, SRD_W, S_SB, 32*1024, DA, DB, 1, False, modsB=HMOD) + [sop('s_xor_b32', S_SR, S_SR, 8192)]
    hooks = {}
    last_pre = [waitcnt(lgkm=0)]
    if o.fuse_ln:
        arrive = [lds_dep(nop(0), need={'HS'}), barrier(),
                  valu('v_mov_b32', V(4), 1), valu('v_lshlrev_b32', V(5), 25, l),
                  raw("s_and_b32 s44, s2, 3", writes=[S(44)]), raw("s_lshl_b32 s44, s44, 6", writes=[S(44)]),
                  raw("s_cmp_eq_u32 s24, 0"), raw("s_cselect_b32 s44, s44, 0x1000", reads=['scc'], writes=[S(44)]),
                  I(f"buffer_atomic_add v4, v5, {SRD_DBG}, s44 offen sc1", 'vatomic', reads=[V(4), V(5), SRD_DBG, S(44)], writes=[])]
        hooks[6] = arrive
        if o.prefetch and o.side and o.pf_w1:
            hooks[o.pf_w1_at] = [raw("s_lshl_b32 s44, s47, 2", writes=[S(44)]), raw("s_add_u32 s44, s44, s24", writes=[S(44)]), raw("s_lshl_b32 s44, s44, 6", writes=[S(44)]),
                        valu('v_add_u32', V(2), S(44), l), smov(S(44), 3584), valu('v_mul_lo_u32', V(2), V(2), S(44)),
                        raw("s_lshl_b32 s44, s46, 7", writes=[S(44)]), bload(1, A(208), V(2), SRD_W1, S(44))]
        hooks[12] = [valu('v_and_b32', V(1), 3, l), valu('v_lshlrev_b32', V(1), 6, V(1)), bload(1, V(6), V(1), SRD_DBG, 0, mods="sc1")]
        chk = lambda: [I("v_cmp_eq_u32 vcc, 64, v6", 'valu', reads=[V(6)], writes=['vcc']), nop(3), raw("s_cmp_eq_u64 vcc, -1", reads=['vcc'])]
        last_pre += [smov(S(45), 0), label("L_k3_hpoll")] + chk() + [raw("s_cbranch_scc1 L_k3_hpollok", 'branch'),
                     raw("s_sleep 4"), bload(1, V(6), V(1), SRD_DBG, 0, mods="sc1"), waitcnt(vm=0),
                     sop('s_add_u32', S(45), S(45), 1), scmp('s_cmp_lt_u32', S(45), 0x40000), raw("s_cbranch_scc1 L_k3_hpoll", 'branch'), label("L_k3_hpollok")]
    last_pre += [barrier()]
    proj_gemm2(a, s, PTA, DW, SRD_WQ, S_SO, 8192, S_RING, xread, 1024, 'q', last_pre=last_pre, last_fill=kv0, hooks=hooks, fill=(ln2 if o.fuse_ln else None))
    s.extend(STP())
    a(sload(S(96, 2), ARG_B1)); a(sload(S(98, 2), ARG_B2))
    a(smov(S(44), QSCALE))
    qpost = []
    for i in range(4):
        for qt in range(4):
            x, y = O(2*i, qt), O(2*i+1, qt)
            b_ = qpost.append
            for r in range(4):
                b_(valu('v_mul_f32', x[r], S(44), x[r])); b_(valu('v_mul_f32', y[r], S(44), y[r]))
            T4 = V(48 + 4*((i*4+qt) & 1), 4)
            X0, X1, Y0, Y1 = T4[0], T4[1], T4[2], T4[3]
            b_(valu('v_cvt_pk_bf16_f32', X0, x[0], x[1])); b_(valu('v_cvt_pk_bf16_f32', X1, x[2], x[3]))
            b_(valu('v_cvt_pk_bf16_f32', Y0, y[0], y[1])); b_(valu('v_cvt_pk_bf16_f32', Y1, y[2], y[3]))
            b_(permlane32_swap(X0, Y0)); b_(permlane32_swap(X1, Y1))
            b_(permlane16_swap(X0, Y0)); b_(permlane16_swap(X1, Y1))
            q = Q(i, qt)
            b_(valu('v_accvgpr_write_b32', q[0], X0)); b_(valu('v_accvgpr_write_b32', q[1], X1))
            b_(valu('v_accvgpr_write_b32', q[2], Y0)); b_(valu('v_accvgpr_write_b32', q[3], Y1))
    grp = group_dma(later)
    step = max(1, len(qpost) // (len(grp) + 1)); gi = 0
    for k, ins in enumerate(qpost):
        a(ins)
        if k % step == step - 1 and gi < len(grp):
            s.extend(expand([grp[gi]])); gi += 1
            while gi < len(grp) and not isinstance(grp[gi], Grp):
                a(grp[gi]); gi += 1
    for g_ in grp[gi:]: s.extend(expand([g_]))
    s.extend(STP())
    a(waitcnt(vm=(24 if o.side else 8))); a(barrier())
    s.extend(at.k_reads(0, 0))
    for c in range(2):
        for q2 in range(2):
            for t in range(2):
                for i in range(4): a(mfma16(Sx(c, t, q2), Kf(t*4+i), Q(i, 2*c+q2), 0 if i == 0 else Sx(c, t, q2)))
    for qt in range(4):
        c, q2 = qt >> 1, qt & 1
        s0, s1 = Sx(c, 0, q2), Sx(c, 1, q2); m = V(4); t = V(5)
        a(valu('v_max3_f32', m, s0[0], s0[1], s0[2])); a(valu('v_max3_f32', m, m, s0[3], s1[0]))
        a(valu('v_max3_f32', m, m, s1[1], s1[2])); a(valu('v_max_f32', m, m, s1[3]))
        a(valu('v_mov_b32', t, m)); a(permlane16_swap(m, t)); a(valu('v_max_f32', m, m, t))
        a(valu('v_mov_b32', t, m)); a(permlane32_swap(m, t)); a(valu('v_max_f32', m, m, t))
        for r in range(4): a(valu('v_sub_f32', NM[qt][r], 0, m))
    s.extend(STP())
    pro = s
    B1 = S(28, 4); B2 = S(32 - 4, 4)
    def scratch_write():
        o_ = [valu('v_lshlrev_b32', V(27), 4, l), valu('v_add_u32', V(26), S_XB, V(27))]
        for i in range(4):
            for j in range(4): o_.append(ds_write(4, V(26), sacc(i, j), off=(i*4+j)*1024))
        o_ += [raw("s_lshl_b32 s43, s24, 10", writes=[S_TMP]), raw(f"s_add_u32 s43, s43, {XBASE}", writes=[S_TMP]), valu('v_add_u32', V(27), S_TMP, V(27))]
        return o_
    PS = [[V(18, 2), V(20, 2), V(22, 2), V(24, 2)], [V(28, 2), V(30, 2), V(2, 2), V(4, 2)]]
    def unit_reads(u):
        i, h = u >> 1, u & 1
        return [ds_read_b64(PS[u & 1][w], V(27), w*16384 + i*4096 + 8*h) for w in range(4)]
    def unit_sum(u, e):
        P_ = PS[u & 1]; x = P_[3][e]
        return [valu('v_add_f32', P_[0][e], P_[0][e], P_[1][e]), valu('v_add_f32', x, x, P_[2][e]), valu('v_add_f32', x, x, P_[0][e])], x
    per = {}
    def side_spec(j):
        kw = dict(first=(j == 0), last_drain=(j == 32), kv=(j <= 29))
        if not o.side: return kw
        if j <= 15:
            rd, mf, dm = g1_parts(j, in_loop=(j >= 1))
            kw['side_groups'] = [(5, mf)] if o.g1_pos == 0 else ([(3, mf[:8]), (5, mf[8:])] if o.g1_pos == 1 else [(7, mf)] if o.g1_pos == 2 else [(1, mf[:4]), (3, mf[4:8]), (5, mf[8:12]), (6, mf[12:])])
            if getattr(o, 'x_noread', False): rd = []
            if getattr(o, 'x_nodma', False): dm = [i for i in dm if i.kind != 'dma' and 'm0' not in i.writes]
            kw['streams'] = [('srd', spread(rd, o.g1_rd[0], o.g1_rd[1]))]
            if dm: kw['side_dma_list'] = (dm, o.g1_dm[0], o.g1_dm[1], 0.5)
            kw['post'] = toggle_side()
        elif j == 16:
            pre = make_srd(B1, S(96, 2), 1792*2)
            bl = [valu('v_lshrrev_b32', V(1), 4, l), valu('v_lshlrev_b32', V(1), 3, V(1)), raw("s_lshl_b32 s44, s46, 7", writes=[S(44)])]
            bl += [bload(2, A(192 + 2*ft, 2), V(1), B1, S(44), off=32*ft) for ft in range(4)]
            kw['pre'] = pre
            pf = []
            if o.prefetch and o.pf_w2:
                pf = [raw("s_mul_i32 s44, s47, 224", writes=[S(44)]), raw("s_mul_i32 s45, s24, 56", writes=[S(45)]), raw("s_add_u32 s44, s44, s45", writes=[S(44)]),
                      valu('v_add_u32', V(2), S(44), l), valu('v_lshlrev_b32', V(2), 12, V(2)), raw("s_lshl_b32 s45, s46, 7", writes=[S(45)]),
                      bload(1, A(200), V(2), SRD_W2, S(45))]
            kw['streams'] = [('sw', spread(scratch_write(), 0.1, 0.7)), ('sb', spread(bl, 0.05, 0.1)), ('spf', [(0.15, 0.12, i) for i in pf])]
        elif j == 17:
            comp = [smov(S(45), -2.0*0.7978845608028654*LOG2E*0.044715), valu('v_mov_b32', V(1), -2.0*0.7978845608028654*LOG2E)]
            comp += [raw("s_lshl_b32 s43, s47, 2", writes=[S_TMP]), raw("s_add_u32 s43, s43, s24", writes=[S_TMP]), raw("s_mul_i32 s43, s43, 56", writes=[S_TMP]),
                     raw("s_lshl_b32 s39, s46, 1", writes=[S_SA]), raw("s_add_u32 s43, s43, s39", writes=[S_TMP]), raw("s_lshl_b32 s43, s43, 10", writes=[S_TMP]),
                     raw(f"s_add_u32 s43, s43, {WS_U}", writes=[S_TMP]), valu('v_lshlrev_b32', V(26), 4, l)]
            OUTA = A(240, 8)
            comp += unit_reads(0)
            for u in range(8):
                ft, h = u >> 1, u & 1
                if u + 1 < 8: comp += unit_reads(u + 1)
                comp.append(valu('v_accvgpr_read_b32', V(6), A(192 + 2*ft + h)))
                xs = []
                for e in range(2):
                    sm_, x = unit_sum(u, e); comp += sm_; xs.append(x)
                    comp.append(valu('v_and_b32', V(7), 0xffff0000, V(6)) if e else valu('v_lshlrev_b32', V(7), 16, V(6)))
                    comp.append(valu('v_add_f32', x, x, V(7)))
                    comp += [valu('v_mul_f32', V(7), x, x), valu('v_fma_f32', V(7), V(7), S(45), V(1)), valu('v_mul_f32', V(7), V(7), x), valu('v_exp_f32', V(7), V(7)),
                             valu('v_add_f32', V(7), 1.0, V(7)), valu('v_rcp_f32', V(7), V(7)), valu('v_mul_f32', x, x, V(7))]
                comp += [valu('v_cvt_pk_bf16_f32', V(6), xs[0], xs[1]), valu('v_accvgpr_write_b32', OUTA[u], V(6))]
                if u in (3, 7): comp.append(lds_dep(bstore(4, OUTA[u-3:u+1], V(26), SRD_US, S_TMP, off=(u >> 2)*1024, mods="sc1"), mark={'US'}))
            kw['streams'] = [('scomp', spread(comp, 0.0, 0.98))]
        elif j == 18:
            su = []
            dma_off_128(su.append, l, DA, 4096, V(1), V(2), V(3), s_tmp=S_TMP)
            su += [valu('v_lshlrev_b32', DB[0], 4, l)] + [valu('v_add_u32', DB[t], 56*1024, DB[t-1]) for t in range(1, 4)]
            su += [raw("s_mul_i32 s39, s24, 448*4096", writes=[S_SA]), raw("s_lshl_b32 s43, s46, 7", writes=[S_TMP]), raw("s_add_u32 s39, s39, s43", writes=[S_SA]),
                   raw("s_mul_i32 s36, s47, 4*56", writes=[S_SB]), raw("s_mul_i32 s43, s24, 14", writes=[S_TMP]), raw("s_add_u32 s36, s36, s43", writes=[S_SB]),
                   raw("s_lshl_b32 s36, s36, 10", writes=[S_SB]), raw(f"s_add_u32 s36, s36, {WS_U}", writes=[S_SB]), smov(S_N, 0), smov(S_SKIP, 0)]
            sig = [valu('v_mov_b32', V(4), 1), valu('v_lshlrev_b32', V(5), 25, l),
                   raw("s_lshl_b32 s44, s47, 2", writes=[S(44)]), raw("s_add_u32 s44, s44, s24", writes=[S(44)]), raw("s_lshl_b32 s44, s44, 8", writes=[S(44)]),
                   raw(f"s_add_u32 s44, s44, {WS_CNT}", writes=[S(44)]),
                   lds_dep(I(f"buffer_atomic_add v4, v5, {SRD_US}, s44 offen sc1", 'vatomic', reads=[V(4), V(5), SRD_US, S(44)], writes=[]), need={'US'})]
            kw['streams'] = [('ssu', spread(su, 0.05, 0.55)), ('ssig', [(0.6, 0.5, i) for i in sig])]
        elif j == 19:
            st = g2_dma(0, False) + [sop('s_xor_b32', S_SR, S_SR, 8192)] + g2_dma(1, False) + [sop('s_xor_b32', S_SR, S_SR, 8192)]
            kw['side_dma_list'] = (st, 0.42, 0.95, 0.0)
        elif j == 20:
            pl = [valu('v_and_b32', V(1), 3, l), valu('v_lshlrev_b32', V(1), 8, V(1)), raw("s_lshl_b32 s43, s47, 10", writes=[S_TMP]),
                  raw(f"s_add_u32 s43, s43, {WS_CNT}", writes=[S_TMP]), bload(1, V(6), V(1), SRD_W, S_TMP, mods="sc1")]
            kw['streams'] = [('spoll', [(0.80, 0.7, i) for i in pl])]
            if o.prefetch:
                extra = [raw("s_lshl_b32 s44, s25, 5", writes=[S(44)]), raw("s_add_u32 s44, s44, s26", writes=[S(44)]), raw("s_lshl_b32 s44, s44, 2", writes=[S(44)]),
                         raw("s_add_u32 s44, s44, s24", writes=[S(44)]), raw("s_lshl_b32 s44, s44, 12", writes=[S(44)])]
                extra += [bload(4, A(240 + 4*n, 4), DB[0], SRD_WO, S(44), off=n*1024) for n in range(4)]
                kw['streams'].append(('spf', spread(extra, 0.42, 0.55)))
            chk = lambda: [I("v_cmp_eq_u32 vcc, 28, v6", 'valu', reads=[V(6)], writes=['vcc']), nop(3), raw("s_cmp_eq_u64 vcc, -1", reads=['vcc'])]
            dg = (STP() if getattr(o, 'polldiag', False) else [])
            kw['post'] = dg + [smov(S(45), 0), label("L_k3_poll")] + chk() + [raw("s_cbranch_scc1 L_k3_pollok", 'branch'),
                          raw("s_sleep 4"), bload(1, V(6), V(1), SRD_W, S_TMP, mods="sc1"), waitcnt(vm=0),
                          sop('s_add_u32', S(45), S(45), 1), scmp('s_cmp_lt_u32', S(45), 0x40000), raw("s_cbranch_scc1 L_k3_poll", 'branch'), label("L_k3_pollok")] + ([smov(S(94), S(45))] if getattr(o, 'polldiag', False) else [])
            kw['vm_end'] = 0
        elif j == 21:
            z = [valu('v_accvgpr_write_b32', A(128 + r), 0) for r in range(64)]
            kw['streams'] = [('sul', spread(g2_uloads(), 0.05, 0.3)), ('sz', spread(z, 0.1, 0.95))]
        elif 22 <= j <= 28:
            i = j - 22
            rd, mfs = g2_parts(i if i else 1)
            rd, _ = g2_parts(i)
            kw['side_groups'] = [(3, mfs[0]), (5, mfs[1])]
            stl = [('srd', spread(rd, 0.02, 0.36))]
            if j <= 27:
                dm = [scmp('s_cmp_gt_u32', S_N, 4), I(f"s_cselect_b32 {S_SKIP}, 0x30000, 0", 'salu', reads=['scc'], writes=[S_SKIP]), sop('s_add_u32', S_N, S_N, 1)]
                dm += g2_dma(i & 1, True)
                kw['side_dma_list'] = (dm, 0.45, 0.78, 0.42)
                stl += [('sul', spread(g2_uloads(), 0.82, 0.98, rel=0.80))]
            kw['streams'] = stl
            kw['post'] = toggle_side()
        elif j == 29:
            pre = make_srd(B1, S(98, 2), 2048*2)
            bl = [valu('v_and_b32', V(1), 15, l), raw("s_lshl_b32 s44, s46, 6", writes=[S(44)]), raw("s_lshl_b32 s45, s24, 4", writes=[S(45)]),
                  raw("s_add_u32 s44, s44, s45", writes=[S(44)]), valu('v_add_u32', V(1), S(44), V(1)), valu('v_lshlrev_b32', V(1), 1, V(1)), bload_ushort(V(1), V(1), B1)]
            kw['pre'] = pre
            kw['streams'] = [('sw', spread(scratch_write(), 0.1, 0.7)), ('sb', spread(bl, 0.05, 0.1))]
        elif j == 30:
            comp = [smov(S(44), -LOG2E), valu('v_lshlrev_b32', V(1), 16, V(1))]
            comp += [raw("s_lshr_b32 s43, s47, 1", writes=[S_TMP]), raw("s_lshl_b32 s45, s46, 2", writes=[S(45)]), raw("s_add_u32 s43, s43, s45", writes=[S_TMP]),
                     raw("s_lshl_b32 s43, s43, 2", writes=[S_TMP]), raw("s_and_b32 s45, s47, 1", writes=[S(45)]), raw("s_lshl_b32 s45, s45, 1", writes=[S(45)]),
                     raw("s_add_u32 s43, s43, s45", writes=[S_TMP]), raw("s_lshl_b32 s43, s43, 2", writes=[S_TMP]), raw("s_add_u32 s43, s43, s24", writes=[S_TMP]),
                     raw("s_lshl_b32 s43, s43, 10", writes=[S_TMP]), raw(f"s_add_u32 s43, s43, {WS_GATE}", writes=[S_TMP]), valu('v_lshlrev_b32', V(26), 4, l)]
            OUTA = A(240, 8)
            comp += unit_reads(0)
            for u in range(8):
                if u + 1 < 8: comp += unit_reads(u + 1)
                xs = []
                for e in range(2):
                    sm_, y = unit_sum(u, e); comp += sm_; xs.append(y)
                    comp += [valu('v_add_f32', y, y, V(1)), valu('v_mul_f32', V(7), S(44), y), valu('v_exp_f32', V(7), V(7)), valu('v_add_f32', V(7), 1.0, V(7)),
                             valu('v_rcp_f32', V(7), V(7)), valu('v_mul_f32', y, y, V(7))]
                comp += [valu('v_cvt_pk_bf16_f32', V(6), xs[0], xs[1]), valu('v_accvgpr_write_b32', OUTA[u], V(6))]
                if u in (3, 7):
                    comp.append(bstore(4, OUTA[u-3:u+1], V(26), SRD_W, S_TMP, mods=("sc1" if o.fuse_comb else "")))
                    comp.append(sop('s_add_u32', S_TMP, S_TMP, 4096))
            kw['streams'] = [('scomp', spread(comp, 0.0, 0.98))]
        return kw
    seqs = [('pro', pro)]
    for j in range(33):
        p = at.period(j, **side_spec(j))
        if o.timing and j in o.stamp_after: p = p + STP()
        seqs.append((j, [label(f"@@P{j}")] + p))
    DO = [V(14 + i) for i in range(4)]
    TO = [V(64 + i) for i in range(8)]
    S_SLOW = S(6)
    def wo_first():
        s_ = []; a_ = s_.append
        dma_off_256(a_, l, DO, 1024, 'o', S_T)
        a_(raw("s_lshl_b32 s42, s25, 19", writes=[S_SO])); a_(raw("s_lshl_b32 s43, s24, 8", writes=[S_T]))
        a_(raw("s_add_u32 s42, s42, s43", writes=[S_SO]))
        for n in range(3):
            for h in range(2):
                a_(sop('s_add_u32', 'm0', S_RING, n*8192 + h*4096)); a_(nop(0))
                for i in range(4): a_(lds_dep(dma(DO[i], SRD_WO, S_SO, off=i*1024), need={f'oR{n}'}, mark={f'oL{n}'}))
                a_(sop('s_add_u32', S_SO, S_SO, 16*1024))
        return s_
    def arrive2(idx_s):
        return [valu('v_mov_b32', V(4), 1), valu('v_lshlrev_b32', V(5), 25, l),
                sop('s_add_u32', S(44), idx_s, 32), raw("s_lshl_b32 s44, s44, 8", writes=[S(44)]), raw(f"s_add_u32 s44, s44, {WS_CNT}", writes=[S(44)]),
                raw("s_cmp_eq_u32 s24, 0"), raw(f"s_cselect_b32 s44, s44, {WS_END}", reads=['scc'], writes=[S(44)]),
                I(f"buffer_atomic_add v4, v5, {SRD_W}, s44 offen sc1", 'vatomic', reads=[V(4), V(5), SRD_W, S(44)], writes=[])]
    pre_epi = [smov(S_SLOW, 0)]
    if o.fuse_comb: pre_epi += arrive2(S_T64) + [sload(S(96, 2), ARG_X), sload(S(98, 2), ARG_OUT)]
    pre_epi += wo_first()
    s = []; a = s.append
    a(label("@@EPI"))
    a(label("L_k3_norm"))
    a(nop(7))
    a(valu('v_mov_b32', V(6), S_RING))
    addr_tr256(a, l, TO, V(6), 4)
    LI = [V(24 + i) for i in range(4)]
    for qt in range(4): a(valu('v_rcp_f32', LI[qt], LA[qt][0]))
    a(valu('v_lshlrev_b32', V(7), 4, l))
    a(raw("s_lshl_b32 s43, s24, 14", writes=[S_T])); a(raw(f"s_add_u32 s43, s43, {XBASE}", writes=[S_T]))
    a(valu('v_add_u32', V(22), S_T, V(7))); a(valu('v_add_u32', V(23), XBASE, V(7)))
    for kk in range(4):
        for qt in range(4):
            x, y = O(2*kk, qt), O(2*kk+1, qt)
            for r in range(4):
                a(valu('v_mul_f32', x[r], x[r], LI[qt])); a(valu('v_mul_f32', y[r], y[r], LI[qt]))
            F = V(48 + 4*((kk*4+qt) & 3), 4)
            a(valu('v_cvt_pk_bf16_f32', F[0], x[0], x[1])); a(valu('v_cvt_pk_bf16_f32', F[1], x[2], x[3]))
            a(valu('v_cvt_pk_bf16_f32', F[2], y[0], y[1])); a(valu('v_cvt_pk_bf16_f32', F[3], y[2], y[3]))
            a(ds_write(4, V(22), F, off=(kk*4+qt)*1024))
    a(waitcnt(lgkm=0)); a(barrier())
    s.extend(STP())
    def oread(n, qt, dst): return ds_read_b128(dst, V(23), (n*4+qt)*1024)
    proj_gemm2(a, s, TO, DO, SRD_WO, S_SO, 1024, S_RING, oread, 4096, 'o', fb_base=128)
    a(smov(S(44), float(2.0**100)))
    for qt in range(4):
        a(I(f"v_cmp_gt_f32 vcc, s44, {LA[qt][0]}", 'valu', reads=[S(44), LA[qt][0]], writes=['vcc']))
        a(nop(3))
        a(I("s_mov_b64 s[38:39], vcc" if qt == 0 else "s_and_b64 s[38:39], s[38:39], vcc", 'salu', reads=['vcc'], writes=[S(38, 2), 'scc']))
    a(nop(7))
    a(valu('v_mov_b32', V(1), 0x1F8))
    for qt in range(4):
        a(I(f"v_cmp_class_f32 vcc, {O(0, qt)[0]}, v1", 'valu', reads=[O(0, qt)[0], V(1)], writes=['vcc']))
        a(nop(3))
        a(I("s_and_b64 s[38:39], s[38:39], vcc", 'salu', reads=['vcc'], writes=[S(38, 2), 'scc']))
    a(raw("s_cmp_eq_u64 s[38:39], -1"))
    a(raw("s_cselect_b32 s44, 0, 1", reads=['scc'], writes=[S(44)]))
    a(valu('v_mov_b32', V(2), S(44))); a(valu('v_mov_b32', V(1), S_RING))
    a(ds_write(1, V(1), V(2)))
    a(waitcnt(lgkm=0)); a(barrier())
    a(valu('v_mov_b32', V(1), 0)); a(valu('v_mov_b32', V(6), 49152))
    a(ds_read_b32(V(2), V(1))); a(ds_read_b32(V(3), V(1), 24576)); a(ds_read_b32(V(4), V(6))); a(ds_read_b32(V(5), V(6), 24576))
    a(valu('v_or_b32', V(2), V(2), V(3))); a(valu('v_or_b32', V(4), V(4), V(5))); a(valu('v_or_b32', V(2), V(2), V(4)))
    a(readfirstlane(S(44), V(2)))
    a(nop(3))
    a(I("s_andn2_b32 s44, s44, s6", 'salu', reads=[S(44), S_SLOW], writes=[S(44), 'scc']))
    a(raw("s_cbranch_scc1 L_k3_slow", 'branch'))
    a(label("L_k3_store"))
    s.extend(STP())
    a(raw("s_lshl_b32 s42, s25, 5", writes=[S_SO])); a(raw("s_add_u32 s42, s42, s26", writes=[S_SO]))
    a(raw("s_lshl_b32 s42, s42, 2", writes=[S_SO])); a(raw("s_add_u32 s42, s42, s24", writes=[S_SO]))
    a(raw("s_lshl_b32 s42, s42, 14", writes=[S_SO])); a(raw(f"s_add_u32 s42, s42, {WS_PART}", writes=[S_SO]))
    for p in range(4):
        for qt in range(4):
            x, y = O(2*p, qt), O(2*p+1, qt)
            F = V(48 + 4*((p*4+qt) & 3), 4)
            a(valu('v_cvt_pk_bf16_f32', F[0], x[0], x[1])); a(valu('v_cvt_pk_bf16_f32', F[1], x[2], x[3]))
            a(valu('v_cvt_pk_bf16_f32', F[2], y[0], y[1])); a(valu('v_cvt_pk_bf16_f32', F[3], y[2], y[3]))
            a(bstore(4, F, V(7), SRD_W, S_SO, off=qt*1024, mods=("sc1" if o.fuse_comb else "")))
        a(sop('s_add_u32', S_SO, S_SO, 4096))
    if o.fuse_comb:
        SRD_X2 = S(28, 4); SRD_O = S(48, 4)
        s.extend(make_srd(SRD_X2, S(96, 2), 2 << 20)); s.extend(make_srd(SRD_O, S(98, 2), 2 << 20))
        a(valu('v_and_b32', V(1), 15, l)); a(raw("s_lshl_b32 s44, s26, 6", writes=[S(44)])); a(raw("s_lshl_b32 s45, s24, 4", writes=[S(45)]))
        a(raw("s_add_u32 s44, s44, s45", writes=[S(44)])); a(valu('v_add_u32', V(1), S(44), V(1))); a(valu('v_lshlrev_b32', V(1), 10, V(1)))
        a(valu('v_lshrrev_b32', V(2), 4, l)); a(valu('v_lshl_add_u32', V(1), V(2), 3, V(1)))
        a(raw("s_lshl_b32 s44, s25, 7", writes=[S(44)])); a(valu('v_add_u32', V(22), S(44), V(1)))
        XR = V(32, 8)
        for j in range(2):
            for t in range(2): a(bload(2, XR[4*j+2*t:4*j+2*t+2], V(22), SRD_X2, 0, off=64*j + 32*t))
        a(waitcnt(vm=4))
        a(barrier())
        s.extend(arrive2(S_QB))
        s.extend(STP())
        a(sop('s_add_u32', S(44), S_QB, 32)); a(raw("s_lshl_b32 s44, s44, 8", writes=[S(44)])); a(raw(f"s_add_u32 s44, s44, {WS_CNT}", writes=[S(44)]))
        a(valu('v_mov_b32', V(1), 0)); a(smov(S(45), 0))
        a(label("L_k3_cpoll"))
        a(bload(1, V(6), V(1), SRD_W, S(44), mods="sc1")); a(waitcnt(vm=0))
        a(readfirstlane(S(43), V(6))); a(nop(3))
        a(scmp('s_cmp_ge_u32', S(43), 16)); a(raw("s_cbranch_scc1 L_k3_cpollok", 'branch'))
        a(raw("s_sleep 2")); a(sop('s_add_u32', S(45), S(45), 1)); a(scmp('s_cmp_lt_u32', S(45), 0x80000)); a(raw("s_cbranch_scc1 L_k3_cpoll", 'branch'))
        a(label("L_k3_cpollok"))
        a(raw("s_lshl_b32 s42, s26, 2", writes=[S_SO])); a(raw("s_lshr_b32 s43, s25, 1", writes=[S_T])); a(raw("s_add_u32 s42, s42, s43", writes=[S_SO]))
        a(raw("s_lshl_b32 s42, s42, 2", writes=[S_SO])); a(raw("s_and_b32 s43, s25, 1", writes=[S_T])); a(raw("s_lshl_b32 s43, s43, 1", writes=[S_T]))
        a(raw("s_add_u32 s42, s42, s43", writes=[S_SO])); a(raw("s_lshl_b32 s42, s42, 2", writes=[S_SO])); a(raw("s_add_u32 s42, s42, s24", writes=[S_SO]))
        a(raw("s_lshl_b32 s42, s42, 10", writes=[S_SO]))
        a(raw(f"s_add_u32 s43, s42, {WS_GATE}", writes=[S_T])); a(raw(f"s_add_u32 s42, s42, {WS_PART}", writes=[S_SO]))
        PPj = lambda j, g: V(128 + (j*8 + g)*4, 4)
        GG = [V(192, 4), V(196, 4)]
        for j in range(2):
            a(bload(4, GG[j], V(7), SRD_W, S_T, mods="sc1")); a(sop('s_add_u32', S_T, S_T, 4096))
        for g in range(8):
            a(bload(4, PPj(0, g), V(7), SRD_W, S_SO, mods="sc1"))
            a(sop('s_add_u32', S(44), S_SO, 4096))
            a(bload(4, PPj(1, g), V(7), SRD_W, S(44), mods="sc1"))
            if g < 7: a(sop('s_add_u32', S_SO, S_SO, 32*64*1024))
        for j in range(2):
            R = [V(200 + 8*j + i) for i in range(8)]
            for k in range(8):
                q = k >> 1; hi = k & 1
                unp = lambda dst, src: valu('v_and_b32', dst, 0xffff0000, src) if hi else valu('v_lshlrev_b32', dst, 16, src)
                a(unp(R[k], PPj(j, 0)[q]))
                for g in range(1, 8):
                    tt = V(2 + (g & 1))
                    a(unp(tt, PPj(j, g)[q])); a(valu('v_add_f32', R[k], R[k], tt))
                a(unp(V(4), GG[j][q])); a(unp(V(5), XR[4*j+q]))
                a(valu('v_fma_f32', R[k], R[k], V(4), V(5)))
            OUTR = V(216 + 4*j, 4)
            for q in range(4): a(valu('v_cvt_pk_bf16_f32', OUTR[q], R[2*q], R[2*q+1]))
            a(bstore(2, OUTR[0:2], V(22), SRD_O, 0, off=64*j)); a(bstore(2, OUTR[2:4], V(22), SRD_O, 0, off=64*j + 32))
    a(waitcnt(vm=0))
    s.extend(STP())
    if getattr(o, 'diag_period', None) is not None: STP.force(len(o.diag_marks))
    if getattr(o, 'polldiag', False): STP.n = 16
    s.extend(STP.flush(S_WAVE))
    epi = s
    s = []; a = s.append
    M = [V(72 + i) for i in range(4)]
    a(label("L_k3_slow"))
    at.nozero = True
    a(smov(S_SLOW, 1))
    for r in range(128): a(valu('v_mov_b32', V(128 + r), 0))
    for qt in range(4):
        for r in range(4): a(valu('v_mov_b32', LA[qt][r], 0))
        a(valu('v_mov_b32', M[qt], 0xff800000))
    a(smov(S_TILE, 0)); a(smov(S(45), 32))
    a(label("L_k3_slowloop"))
    a(barrier())
    s.extend(at.kv_dma(0))
    a(waitcnt(vm=0)); a(barrier())
    for kh in range(2):
        s.extend(at.k_reads(0, kh)); s.extend(at.v_reads(0, kh))
        for c in range(2):
            for q2 in range(2):
                for t in range(2):
                    for i in range(4): a(mfma16(Sx(c, t, q2), Kf(t*4+i), Q(i, 2*c+q2), 0 if i == 0 else Sx(c, t, q2)))
            for q2 in range(2):
                qt = 2*c + q2; s0, s1 = Sx(c, 0, q2), Sx(c, 1, q2); m = V(4); t_ = V(5)
                a(valu('v_max3_f32', m, s0[0], s0[1], s0[2])); a(valu('v_max3_f32', m, m, s0[3], s1[0]))
                a(valu('v_max3_f32', m, m, s1[1], s1[2])); a(valu('v_max3_f32', m, m, s1[3], M[qt]))
                a(valu('v_mov_b32', t_, m)); a(permlane16_swap(m, t_)); a(valu('v_max_f32', m, m, t_))
                a(valu('v_mov_b32', t_, m)); a(permlane32_swap(m, t_)); a(valu('v_max_f32', m, m, t_))
                a(valu('v_sub_f32', t_, M[qt], m)); a(valu('v_exp_f32', t_, t_)); a(valu('v_mov_b32', M[qt], m))
                for dt in range(8):
                    for r in range(4): a(valu('v_mul_f32', O(dt, qt)[r], O(dt, qt)[r], t_))
                for r in range(4): a(valu('v_mul_f32', LA[qt][r], LA[qt][r], t_))
                for t in range(2):
                    sx = Sx(c, t, q2)
                    for r in range(4):
                        a(valu('v_sub_f32', sx[r], sx[r], m)); a(valu('v_exp_f32', sx[r], sx[r]))
                    a(valu('v_cvt_pk_bf16_f32', Pb[c][4*q2 + 2*t], sx[0], sx[1])); a(valu('v_cvt_pk_bf16_f32', Pb[c][4*q2 + 2*t + 1], sx[2], sx[3]))
            for m_ in at.pv_slot(0, kh, c):
                m_.rt = {}; a(m_)
    a(waitcnt(lgkm=0))
    a(sop('s_sub_u32', S(45), S(45), 1)); a(scmp('s_cmp_lg_u32', S(45), 0)); a(raw("s_cbranch_scc1 L_k3_slowloop", 'branch'))
    a(nop(15)); a(barrier())
    s.extend(wo_first())
    a(raw("s_branch L_k3_norm", 'branch'))
    for i_ in s:
        if hasattr(i_, 'rt'): i_.rt = {}
    slow, _, _ = auto_waits(s)
    slow = fix_hazards(slow, "slow")
    full = []
    for (name, seq) in seqs:
        if name == 32: full += pre_epi
        full += seq
    full += epi
    full, _, _ = auto_waits(full)
    errs = validate_tags(full)
    for e in errs[:10]: print("DATAFLOW", e, file=sys.stderr)
    parts = {}; cur = 'pro'; parts[cur] = []
    for ins in full:
        if ins.kind == 'label' and ins.text.startswith('@@'):
            cur = ins.text[2:-1]; parts[cur] = []
        else: parts[cur].append(ins)
    P = lambda j: parts[f'P{j}']
    txt = lambda j: [i.text for i in P(j)]
    def loop(first_j, n_iter, lbl, cnt):
        body = []
        for k in range(3):
            base = list(P(first_j + k))
            for it in range(1, n_iter):
                other = P(first_j + 3*it + k)
                assert len(other) == len(base), f"loop {lbl}: period {first_j+k} vs {first_j+3*it+k} length {len(base)} {len(other)}"
                for idx, (x, y) in enumerate(zip(base, other)):
                    if x.text != y.text:
                        assert x.kind == 'wait' and y.kind == 'wait' and (x.vm is None) == (y.vm is None) and (x.lgkm is None) == (y.lgkm is None), (lbl, x.text, y.text)
                        base[idx] = waitcnt(vm=None if x.vm is None else min(x.vm, y.vm), lgkm=None if x.lgkm is None else min(x.lgkm, y.lgkm))
            body += [comment(f"period {first_j+k} (+3n)")] + base
        body += [sop('s_sub_u32', cnt, cnt, 1), scmp('s_cmp_lg_u32', cnt, 0), raw(f"s_cbranch_scc1 {lbl}", 'branch')]
        errs = check_hazards(body, loop=True, name=lbl)
        for e in errs[:20]: print("HAZARD", e, file=sys.stderr)
        return [smov(cnt, n_iter), label(lbl)] + body
    out = fix_hazards(parts['pro'] + [comment("period 0")] + P(0), "pro")
    S_CNT = S(4)
    if getattr(o, 'noloop', False):
        allp = []
        for j in range(1, 33): allp += [comment(f"period {j}")] + P(j)
        out += fix_hazards(allp + parts['EPI'], "all")
        out += [raw("s_branch L_k3_end", 'branch')] + slow
        out.append(label("L_k3_end"))
        return emit(out)
    if o.side:
        out += loop(1, 5, "L_k3_loopA", S_CNT)
        mid = []
        for j in range(16, 22): mid += [comment(f"period {j}")] + P(j)
        out += fix_hazards(P(15)[-30:] + mid, "mid")[len(P(15)[-30:]):] if False else fix_hazards(mid, "mid")
        out += loop(22, 2, "L_k3_loopB", S_CNT)
        tail = []
        for j in range(28, 33): tail += [comment(f"period {j}")] + P(j)
    else:
        out += loop(1, 9, "L_k3_loopA", S_CNT)
        tail = []
        for j in range(28, 33): tail += [comment(f"period {j}")] + P(j)
    tm = []
    out += fix_hazards(tail + parts['EPI'], "tail")
    out += [raw("s_branch L_k3_end", 'branch')] + slow
    out.append(label("L_k3_end"))
    if getattr(o, 'verbose', False):
        for j in (2, 16, 17, 18, 21, 23, 29, 30):
            tot = 0; gap = None
            for i in P(j):
                if i.kind == 'mfma':
                    if gap is not None: tot += max(16, gap)
                    gap = 8
                elif gap is not None: gap += cost(i)
            print(f"; period {j}: est {tot + max(16, gap or 0)} cycles, {len(P(j))} instrs", file=sys.stderr)
    return emit(out)
if __name__ == "__main__":
    o = Opt(); o.verbose = True
    for kv in sys.argv[1:]:
        k, v = kv.split("="); setattr(o, k, eval(v))
    t = build(o); print(len(t.splitlines()))
```

```python
import sys; sys.path.insert(0, 'work')
from k_common import *
import k1_ln, k3b, k4b
HDR = open('recurrent_scan__gqa_block_cached__mixer_token_mlp__prompt.s.ref').read().split('; Override launch')[0]
DOC = """;
"""
def build(opt):
    k3txt = k3b.build(opt)
    cp = getattr(opt, 'code_prefetch', 0)
    ks = ([] if opt.fuse_ln else [('ln_kernel', lambda: k1_ln.build(cp, opt.timing), (512, 256, 0), 32, 32)]) + [
          ('attn_kernel', lambda: k3txt, (256, 256, 163840), 512, 256),
          ] + ([] if opt.fuse_comb else [('comb_kernel', lambda: k4b.build(opt.timing), (512, 256, 0), 72, 72)])
    txt = HDR
    if len(ks) == 1:
        KN = "recurrent_scan__gqa_block_cached__mixer_token_mlp__prompt_kernel"
        (n, f, (g, b, lds), vg, ac) = ks[0]
        ks = [(KN, f, (g, b, lds), vg, ac)]
        txt += f"; @launch grid=({g},1,1) block=({b},1,1) lds={lds}\n" + DOC
    else:
        for (n, f, (g, b, lds), vg, ac) in ks: txt += f"; @launch kernel={n} grid=({g},1,1) block=({b},1,1) lds={lds}\n"
    txt += '.amdgcn_target "amdgcn-amd-amdhsa--gfx950"\n.text\n'
    for (n, f, _, vg, ac) in ks: txt += kernel_text(n, f(), vg, ac)
    txt += '.section .rodata,"a"\n'
    for (n, f, _, vg, ac) in ks: txt += ".p2align 6\n" + kernel_desc(n, vg, ac, sgpr=102)
    return txt
if __name__ == "__main__":
    opt = k3b.Opt()
    for kv in sys.argv[2:]:
        k, v = kv.split("="); setattr(opt, k, eval(v))
    opt.diag_marks = []; opt.diag_base = 64
    open(sys.argv[1], "w").write(build(opt))
    if opt.diag_marks: print('marks', opt.diag_marks)
```

```python
from k_common import *
from k3_attn import (NST, KBASE, VBASE, XBASE, SRD_K, SRD_V, SRD_W, SRD_WQ, SRD_WO, S_TILE, S_WOFF, S_WAVE, S_G, S_QB, QSCALE,
                     O, Q, Kf, Vf, Sb, Sx, NM, LA, Pb, ONES, KA, VA, DK, DV, addr_tr256, dma_off_256, proj_gemm)
from k2_gemm1 import tr_addr_128, dma_off_128, gelu, LOG2E
WS_GATE = 6 << 20
HMOD = 'sc1'

class Opt:
    barrier = True
    minfill = 8; maxfill = 8; early = 1.5
    sm_rel = 4; p_lead = 2; k_span = 1.0; k_lead = 6; bar_lead = 5
    timing = False; prefetch = True; side = True; fuse_ln = True; fuse_comb = True
    stamp_after = (0, 16, 17, 21, 28, 30, 32)
    def __init__(self, **kw): self.__dict__.update(kw)

SRD_W1 = S(48, 4); SRD_W2 = S(52, 4); SRD_DBG = S(56, 4); SRD_US = S(60, 4)
S_T64 = S(46); S_DT = S(47); S_SR = S(40); S_SKIP = S(37); S_N = S(38); S_SA = S(39); S_SB = S(36); S_XB = S(27); S_KVSKIP = S(23); S_TMP = S(43)
TA = [V(14 + i) for i in range(4)]; DA = [V(18 + i) for i in range(4)]; DB = [V(22 + i) for i in range(4)]
def sacc(i, j): return A(128 + (i*4+j)*4, 4)
def sfa(h, t): return A(192 + 16*h + 4*t, 4)
def sfb(h, t): return A(224 + 16*h + 4*t, 4) if h else A(208 + 4*t, 4)
def g2a(h, t): return A(192 + 16*h + 4*t, 4)
def g2b(h, t): return A(224 + 16*h + 4*t, 4)

class Attn:
    def __init__(self, opt): self.o = opt
    def qk_slot(self, j, kh, c):
        out = []
        for q2 in range(2):
            for t in range(2):
                for i in range(4):
                    qt = 2*c + q2; sx = Sx(c, t, q2)
                    m = mfma16(sx, Kf(t*4+i), Q(i, qt), NM[qt] if i == 0 else sx)
                    tag(m, wt=('S', j, kh, c), rt=[(Kf(t*4+i), ('K', j, kh))] + ([(sx, ('S', j, kh, c))] if i else []))
                    out.append(m)
        return out
    def pv_slot(self, j, kh, c):
        out = []
        z = (j == 0 and kh == 0 and not getattr(self, 'nozero', False))
        for q2 in range(2):
            p = Pb[c][4*q2:4*q2+4]; qt = 2*c + q2
            for dt in range(8):
                m = mfma16(O(dt, qt), Vf(dt), p, 0 if z else O(dt, qt))
                tag(m, rt=[(Vf(dt), ('V', j, kh)), (p, ('P', j, kh, c))]); out.append(m)
            m = mfma16(LA[qt], ONES, p, 0 if z else LA[qt]); tag(m, rt=[(p, ('P', j, kh, c))]); out.append(m)
        return out
    def sm_list(self, j, kh, c):
        regs = []
        for q2 in range(2):
            for t in range(2):
                for r in range(4): regs.append((Sx(c, t, q2)[r], Pb[c][4*q2 + 2*t + (r >> 1)]))
        ops = []
        for n, (s, p) in enumerate(regs):
            ops.append((n, tag(valu('v_exp_f32', s, s), wt=('E', j, kh, c), rt=[(s, ('S', j, kh, c))])))
            if n & 1:
                sp = regs[n-1][0]
                ops.append((n + 1.04, tag(valu('v_cvt_pk_bf16_f32', p, sp, s), wt=('P', j, kh, c), rt=[(s, ('E', j, kh, c)), (sp, ('E', j, kh, c))])))
        return [i for (t, i) in sorted(ops, key=lambda x: x[0])]
    def k_reads(self, j, kh):
        st = j % NST
        return [tag(ds_read_b128(Kf(n), KA[n & 3], KBASE + st*16384 + kh*8192 + (n >> 2)*4096), wt=('K', j, kh)) for n in range(8)]
    def v_reads(self, j, kh):
        st = j % NST
        return [tag(ds_read_tr(Vf(dt)[2*u:2*u+2], VA[dt], st*16384 + kh*8192 + u*4096), wt=('V', j, kh)) for dt in range(8) for u in range(2)]
    def kv_dma(self, st, skip=False):
        ops = []
        for n in range(8):
            if n in (0, 4):
                base = (KBASE if n == 0 else VBASE) + st*16384
                ops.append(sop('s_add_u32', 'm0', S_WOFF, base))
                if skip: ops.append(sop('s_max_u32', 'm0', 'm0', S_KVSKIP))
                ops.append(nop(0))
            if n < 4: ops.append(dma(DK[n], SRD_K, S_TILE, off=n*1024))
            else: ops.append(dma(DV[n & 1], SRD_V, S_TILE, off=(n-4)*1024))
        ops.append(sop('s_add_u32', S_TILE, S_TILE, 16384))
        return ops

    def period(self, j, first=False, last_drain=False, kv=True, kvskip=False, side_groups=(), streams=(), pre=(), post=(), vm_end=None, side_dma_list=None):
        o = self.o
        hp, hc = not first, not last_drain
        base = [self.pv_slot(j-1, 1, 0) if hp else None, self.qk_slot(j, 0, 0) if hc else None,
                self.pv_slot(j-1, 1, 1) if hp else None, self.qk_slot(j, 0, 1) if hc else None,
                self.pv_slot(j, 0, 0) if hc else None, self.qk_slot(j, 1, 0) if hc else None,
                self.pv_slot(j, 0, 1) if hc else None, self.qk_slot(j, 1, 1) if hc else None]
        lens = [18, 16]*4
        mf = []; starts = []; ends = []; side_pos = []
        for s in range(8):
            starts.append(len(mf))
            mf += base[s] if base[s] is not None else [None]*lens[s]
            ends.append(len(mf))
            for (aft, g) in side_groups:
                if aft == s:
                    side_pos.append(len(mf)); mf += g
        T = len(mf)
        self.T = T
        ops = []
        CUT0 = o.cut0; CUT1 = o.cut1
        def sm_stream(jj, kh, c, t_lo, t_hi, tpv, i0=0, i1=None, release=None):
            raw_ops = self.sm_list(jj, kh, c); n = len(raw_ops); i1 = n if i1 is None else i1
            pv = self.pv_slot(jj, kh, c); res = []
            for idx in range(i0, i1):
                ins = raw_ops[idx]
                t = t_lo + (t_hi - t_lo) * (idx - i0) / max(1, (i1 - i0)); dl = 1e9
                if ins.op == 'v_cvt_pk_bf16_f32' and tpv is not None:
                    preg = list(ins.writes)[0]
                    dl = tpv + min(q for q, m in enumerate(pv) if preg in m.reads) - o.p_lead
                res.append([t, dl, ins])
            for idx in range(len(res) - 2, -1, -1): res[idx][1] = min(res[idx][1], res[idx+1][1])
            return [Op(ins, t, release=(t_lo if release is None else release), deadline=min(dl, T - 1), stream='sm') for (t, dl, ins) in res]
        rel = o.sm_rel
        if hp:
            ops += sm_stream(j-1, 1, 0, 0, rel, starts[0], i0=CUT0, release=0)
            ops += sm_stream(j-1, 1, 1, rel, ends[1] + rel, starts[2], i0=CUT1)
        if hc:
            ops += sm_stream(j, 0, 0, ends[1] + rel, ends[3] + rel, starts[4])
            ops += sm_stream(j, 0, 1, ends[3] + rel, ends[5] + rel, starts[6])
            ops += sm_stream(j, 1, 0, ends[5] + rel, T, None, i1=CUT0)
            if CUT1: ops += sm_stream(j, 1, 1, T - 1, T, None, i1=CUT1)
        if hc:
            for (kh, ks_slot, vs_slot) in ((0, 0, 2), (1, 4, 6)):
                qk = self.qk_slot(j, kh, 0)
                for n, ins in enumerate(self.k_reads(j, kh)):
                    fu = min(q for q, m in enumerate(qk) if ins.writes & m.reads)
                    t = starts[ks_slot] + n * 18 * o.k_span / 8
                    rl = (ends[ks_slot-1] if ks_slot else -1)
                    ops.append(Op(ins, max(t, rl), release=rl - 1 if ks_slot else -1, deadline=starts[ks_slot+1] + fu - o.k_lead, stream='k'))
                pv = self.pv_slot(j, kh, 0); pvo = self.pv_slot(j, kh, 1); info = []
                for ins in self.v_reads(j, kh):
                    lu = max(q for q, m in enumerate(pvo) if ins.writes & m.reads)
                    fu = min(q for q, m in enumerate(pv) if ins.writes & m.reads)
                    nxt = starts[vs_slot+2] if vs_slot + 2 < 8 else T + 18
                    dl = nxt + fu - o.k_lead
                    if kh == 1: dl = min(dl, T - 1 - o.bar_lead)
                    info.append((starts[vs_slot] + lu + 1, dl, ins))
                info.sort(key=lambda x: x[0])
                w0 = info[0][0]; w1 = min(x[1] for x in info)
                for n, (r, dl, ins) in enumerate(info):
                    ops.append(Op(ins, max(r, w0 + (w1 - w0) * n / len(info)), release=r, deadline=dl, stream='v'))
        dstream = []
        if kv and hc:
            lst = dma_ops_with_setup(self.kv_dma((j + 2) % NST, skip=kvskip))
            pos = o.kv_pos if not side_dma_list else o.kv_pos2; n = 0
            for (ins, st) in lst:
                if ins.kind == 'dma':
                    t = pos[n]; n += 1
                else: t = pos[min(n, 7)] if n < 8 else pos[7]
                dstream.append((t, 0.0, ins, st))
        if side_dma_list:
            (lst, f0, f1, fr) = side_dma_list
            lst = dma_ops_with_setup(lst)
            nd = sum(1 for (i, _) in lst if i.kind == 'dma'); n = 0
            for (ins, st) in lst:
                dstream.append((f0 + (f1 - f0) * n / max(1, nd), fr, ins, st))
                if ins.kind == 'dma': n += 1
        for (t, fr, ins, st) in dstream:
            op = Op(ins, t * T, release=fr * T, stream='dma'); op.setup = st
            ops.append(op)
        for (name, lst) in streams:
            for (ft, fr, ins) in lst:
                ops.append(Op(ins, ft * T, release=fr * T, stream=name))
        seq, fills = list_schedule2(mf, ops, o.minfill, o.maxfill, ahead=o.early)
        self.fills = fills
        seq = list(pre) + expand(seq) + list(post)
        if getattr(o, 'diag_period', None) == j:
            marks = sorted(set(starts + side_pos + [e for e in ends] + [T - 1]))
            marks = [m for m in marks if m < T]
            new = []; k = 0
            for ins in seq:
                if ins.kind == 'mfma':
                    kk = mf.index(ins)
                    if kk in marks:
                        r = S(o.diag_base + 2*len(o.diag_marks), 2); o.diag_marks.append(kk)
                        new.append(raw(f"s_memtime {r}", 'salu', writes=[r]))
                new.append(ins)
            seq = new
        if hc:
            nvm = sum(1 for i in seq if i.kind in ('dma', 'vload', 'vstore', 'vatomic')) if vm_end is None else vm_end
            seq.append(waitcnt(vm=nvm, lgkm=0))
            if o.barrier: seq.append(barrier())
        return seq
Opt.g1_rd = (0.03, 0.3); Opt.g1_dm = (0.62, 0.95)
Opt.pf_w1_at = 8; Opt.pf_w1 = False; Opt.pf_w2 = True
Opt.prescale = False; Opt.pf_kv = False; Opt.ps_from = 10; Opt.g2_tail = False; Opt.wot = False; Opt.wo_early = True; Opt.fm64 = False; Opt.g1_pos = 1; Opt.moff = 100
Opt.cut0 = 21; Opt.cut1 = 0
Opt.kv_pos = [0.147, 0.184, 0.22, 0.25, 0.647, 0.684, 0.72, 0.75]
Opt.kv_pos2 = [0.08, 0.12, 0.16, 0.20, 0.26, 0.30, 0.34, 0.38]

def side_dma(srdA, soA, strideA, srdB, soB, strideB, offsA, offsB, stage_tag, skip, modsB=""):
    o = []
    src = S_SR
    if skip:
        o.append(sop('s_max_u32', S(5), S_SR, S_SKIP)); src = S(5)
    o.append(smov('m0', src)); o.append(nop(0))
    for i in range(4): o.append(lds_dep(dma(offsA[i], srdA, soA, off=i*1024), need={f'sR{stage_tag}'}, mark={f'sL{stage_tag}'}))
    o.append(sop('s_add_u32', soA, soA, strideA))
    o.append(sop('s_add_u32', 'm0', src, 4096)); o.append(nop(0))
    for i in range(4): o.append(lds_dep(dma(offsB[i], srdB, soB, off=i*1024, mods=modsB), need={f'sR{stage_tag}'}, mark={f'sL{stage_tag}'}))
    o.append(sop('s_add_u32', soB, soB, strideB))
    return o
def spread(lst, f0, f1, rel=None):
    n = sum(1 for i in lst if cost(i) > 0) or 1
    out = []; k = 0
    for ins in lst:
        t = f0 + (f1 - f0) * k / n
        out.append((t, f0 if rel is None else rel, ins))
        if cost(ins) > 0: k += 1
    return out
def toggle_side():
    return [valu('v_xor_b32', TA[t], 8192, TA[t]) for t in range(4)] + [sop('s_xor_b32', S_SR, S_SR, 8192)]

def g1_parts(n, in_loop):
    st = n & 1
    rd = []
    for t in range(4):
        for u in range(2): rd.append(lds_dep(ds_read_tr(sfa(0, t)[2*u:2*u+2], TA[t], u*2048), need={f'sL{st}'}, mark={f'sR{st}'}))
    for t in range(4):
        for u in range(2): rd.append(lds_dep(ds_read_tr(sfb(0, t)[2*u:2*u+2], TA[t], 4096 + u*2048), need={f'sL{st}'}, mark={f'sR{st}'}))
    mf = [mfma16(sacc(ft, dt), sfa(0, ft), sfb(0, dt), sacc(ft, dt) if n else 0) for ft in range(4) for dt in range(4)]
    dm = []
    if in_loop:
        dm = [scmp('s_cmp_gt_u32', S_N, 13), I(f"s_cselect_b32 {S_SKIP}, 0x30000, 0", 'salu', reads=['scc'], writes=[S_SKIP]), sop('s_add_u32', S_N, S_N, 1)]
        dm += side_dma(SRD_W1, S_SA, 32*3584, SRD_W, S_SB, 32*1024, DA, DB, st, True, modsB=HMOD)
    elif n + 2 <= 15:
        dm = [sop('s_add_u32', S_N, S_N, 1)] + side_dma(SRD_W1, S_SA, 32*3584, SRD_W, S_SB, 32*1024, DA, DB, st, False, modsB=HMOD)
    return rd, mf, dm
def g2_parts(i):
    st = i & 1
    rd = []
    for h in range(2):
        for t in range(4):
            for u in range(2): rd.append(lds_dep(ds_read_tr(g2b(h, t)[2*u:2*u+2], TA[t], h*4096 + u*2048), need={f'sL{st}'}, mark={f'sR{st}'}))
    mfs = [[mfma16(sacc(mt, s_), g2a(h, mt), g2b(h, s_), sacc(mt, s_) if (i or h) else 0) for mt in range(4) for s_ in range(4)] for h in range(2)]
    return rd, mfs
def g2_dma(st, skip):
    return side_dma(SRD_W2, S_SA, 32*4096, SRD_W2, S_SA, 32*4096, DA, DA, st, skip)
def g2_uloads():
    o = []
    for h in range(2):
        for t in range(4): o.append(bload(4, g2a(h, t), DB[t], SRD_W, S_SB, mods="sc1"))
        o.append(sop('s_add_u32', S_SB, S_SB, 1024))
    return o

def proj_gemm2(a, s, TA_, DW, srd, SOFF, stride, S_RING, bread, uoff, name, last_pre=None, last_fill=None, dma_gap0=3, fb_base=0, hooks=None, fill=None, stage_map=None, extra_vm=None):
    NS = 3; NK = 16
    def fa(p, mt): return A(64 + 32*p + 4*mt, 4)
    def fb(p, qt): return A(fb_base + 16*p + 4*qt, 4)
    if stage_map is None: stage_map = [(TA_, st*8192, S_RING, st*8192) for st in range(NS)]
    def dma_step(n):
        o = []; st = n % NS
        (_, _, sb, madd) = stage_map[st]
        for h in range(2):
            o.append(sop('s_add_u32', 'm0', sb, madd + h*4096))
            for i in range(4):
                o.append(lds_dep(dma(DW[i], srd, SOFF, off=i*1024), need={f'{name}R{st}'}, mark={f'{name}L{st}'}))
            o.append(sop('s_add_u32', SOFF, SOFF, 16*stride))
        return o
    def reads(n):
        o = []; st = n % NS; p = n & 1
        (ta, imm, _, _) = stage_map[st]
        for qt in range(4): o.append(bread(n, qt, fb(p, qt)))
        for mt in range(8):
            for u in range(2):
                o.append(lds_dep(ds_read_tr(fa(p, mt)[2*u:2*u+2], ta[mt], imm + u*uoff), need={f'{name}L{st}'}, mark={f'{name}R{st}'}))
        return o
    s.extend(reads(0))
    for n in range(NK):
        rd = reads(n + 1) if n + 1 < NK else []
        dm = dma_step(n + 3) if n + 3 < NK else []
        if n == NK - 1:
            if last_pre: s.extend(last_pre)
            dm = list(last_fill or [])
        if extra_vm and n in extra_vm: dm = dm + extra_vm[n]
        if hooks and n in hooks: s.extend(hooks[n])
        mf = [mfma16(O(mt, qt), fa(n & 1, mt), fb(n & 1, qt), O(mt, qt) if n else 0) for mt in range(8) for qt in range(4)]
        gaps = [[] for _ in range(32)]
        g = dma_gap0
        for (ins, st_) in dma_ops_with_setup(dm):
            if ins.kind in ('dma', 'vload'):
                gaps[g - 1] += st_; gaps[g].append(ins); g = min(31, g + 2) if g + 2 <= 31 else 31
            else: gaps[min(31, g - 1)].append(ins) if g > dma_gap0 else gaps[0].append(ins)
        ev = [k for k in range(32) if not any(i.kind in ('dma', 'vload') for i in gaps[k])]
        for k, ins in enumerate(rd): gaps[ev[min(len(ev) - 1, k // 2)]].append(ins)
        for k, m in enumerate(mf):
            a(m); s.extend(sort_gap(gaps[k]))
            if fill:
                take = 0
                while fill and take < 2:
                    ins = fill.pop(0); a(ins)
                    if cost(ins) > 0: take += 1
    assert not fill

def proj_gemm3(a, s, srd, SOFF, VL, bread, abase, bbase, mid_fill=None, mods="sc1"):
    NK = 16; NT = 2*NK
    def fa(t, m): return A(abase + 16*(t % P3_SETS) + 4*m, 4)
    def fb(p, qt): return A(bbase + 16*p + 4*qt, 4)
    rdB = lambda t: [bread(t % NK, qt, fb(t & 1, qt)) for qt in range(4)]
    s.extend(rdB(0))
    fill = list(mid_fill or [])
    for t in range(NT):
        h, n = t // NK, t % NK
        rd = rdB(t + 1) if t + 1 < NT else []
        ld = proj3_loads(srd, SOFF, VL, t + P3_DEPTH, abase, mods) if t + P3_DEPTH < NT else []
        mf = [mfma16(O(4*h + m, qt), fa(t, m), fb(t & 1, qt), O(4*h + m, qt) if n else 0) for m in range(4) for qt in range(4)]
        gaps = [[] for _ in range(16)]
        g = 3
        for ins in ld:
            if ins.kind == 'vload':
                gaps[min(15, g)].append(ins); g += 3
            else: gaps[min(15, max(0, g - 1))].append(ins)
        for k, ins in enumerate(rd): gaps[1 + 3*k].append(ins)
        for k, m in enumerate(mf):
            a(m); s.extend(sort_gap(gaps[k]))
            if t >= NT - P3_DEPTH and fill:
                for _ in range(1 if gaps[k] else 2):
                    if fill: a(fill.pop(0))
                while fill and cost(fill[0]) == 0: a(fill.pop(0))
    s.extend(fill)
P3_SETS = 8; P3_DEPTH = 7
def proj3_loads(srd, SOFF, VL, t, abase, mods="sc1"):
    o = []
    for m in range(4): o.append(bload(4, A(abase + 16*(t % P3_SETS) + 4*m, 4), VL, srd, SOFF, off=m*1024, mods=mods))
    o.append(sop('s_add_u32', SOFF, SOFF, 32768) if (t % 16) != 15 else sop('s_sub_u32', SOFF, SOFF, 15*32768 - 4096))
    return o

def build(opt=None):
    o = opt or Opt()
    at = Attn(o)
    STP = Stamps(o.timing, 3); STP.cyc = getattr(o, 'cyc', False)
    s = []; a = s.append
    l = V(0)
    s.extend(STP())
    a(sload(S(4, 2), ARG_K)); a(sload(S(6, 2), ARG_V)); a(sload(S(22, 2), ARG_WS))
    a(sload(S(36, 2), ARG_WQ)); a(sload(S(56, 2), ARG_WO))
    a(sload(S(62, 2), ARG_W1)); a(sload(S(60, 2), ARG_W2)); a(sload(S(58, 2), ARG_DBG))
    if o.fuse_ln: a(sload(S(100, 2), ARG_X))
    a(raw("s_cmp_ge_u32 s2, 256")); a(raw("s_cbranch_scc1 L_k3_end", 'branch'))
    a(valu('v_lshrrev_b32', V(1), 6, V(0)))
    a(readfirstlane(S_WAVE, V(1)))
    a(valu('v_and_b32', l, 63, l))
    a(waitcnt(lgkm=0))
    a(raw("s_and_b32 s25, s2, 7", writes=[S_G])); a(raw("s_lshr_b32 s26, s2, 3", writes=[S_QB]))
    S_RING = S(41); S_SO = S(42); S_T = S(43)
    SRD_X = S(96, 4)
    XP = V(48, 64)
    if o.fuse_ln:
        s.extend(make_srd(SRD_X, S(100, 2), 2 << 20))
        a(valu('v_and_b32', V(1), 15, l)); a(valu('v_lshlrev_b32', V(1), 10, V(1)))
        a(valu('v_lshrrev_b32', V(2), 4, l)); a(valu('v_lshl_add_u32', V(1), V(2), 4, V(1)))
        a(raw("s_lshl_b32 s42, s26, 6", writes=[S_SO])); a(raw("s_lshl_b32 s43, s24, 4", writes=[S_T]))
        a(raw("s_add_u32 s42, s42, s43", writes=[S_SO])); a(raw("s_lshl_b32 s42, s42, 10", writes=[S_SO]))
        for i in range(16): a(bload(4, XP[4*i:4*i+4], V(1), SRD_X, S_SO, off=64*i))
    s.extend(make_srd(SRD_WQ, S(36, 2), 512*4096*2))
    a(valu('v_lshlrev_b32', V(7), 4, l))
    if o.prefetch:
        a(raw("s_lshl_b32 s42, s26, 4", writes=[S_SO])); a(raw("s_lshl_b32 s43, s24, 2", writes=[S_T]))
        a(raw("s_add_u32 s42, s42, s43", writes=[S_SO])); a(raw("s_lshl_b32 s42, s42, 13", writes=[S_SO]))
        a(raw("s_lshl_b32 s43, s25, 10", writes=[S_T])); a(raw("s_add_u32 s42, s42, s43", writes=[S_SO]))
        for n in range(4):
            a(bload(4, A(192 + 4*n, 4), V(7), SRD_WQ, S_SO)); a(sop('s_add_u32', S_SO, S_SO, 8192))
    a(raw("s_lshl_b32 s27, s25, 19", writes=[S(27)]))
    a(raw("s_sub_u32 s40, 0x400000, s27", writes=[S(40)]))
    s.extend(make_srd(SRD_K, S(4, 2), S(40), add=S(27))); s.extend(make_srd(SRD_V, S(6, 2), S(40), add=S(27)))
    s.extend(make_srd(SRD_W, S(22, 2), WS_END))
    s.extend(make_srd(SRD_WO, S(56, 2), 4096*512*2))
    a(raw("s_lshr_b32 s46, s26, 3", writes=[S_T64])); a(raw("s_lshl_b32 s46, s46, 3", writes=[S_T64])); a(raw("s_add_u32 s46, s46, s25", writes=[S_T64]))
    a(raw("s_and_b32 s47, s26, 7", writes=[S_DT]))
    a(raw("s_cmp_lt_u32 s46, 28"))
    a(raw(f"s_cselect_b32 s44, {2048*1792*2}, 0", writes=[S(44)]))
    a(raw(f"s_cselect_b32 s45, {WS_END}, 0", writes=[S(45)]))
    s.extend(make_srd(SRD_W1, S(62, 2), S(44)))
    s.extend(make_srd(SRD_W2, S(60, 2), 1792*2048*2))
    s.extend(make_srd(SRD_DBG, S(58, 2), 256))
    s.extend(make_srd(SRD_US, S(22, 2), S(45)))
    if o.pf_kv:
        a(valu('v_and_b32', V(2), 15, l)); a(raw("s_lshl_b32 s44, s26, 4", writes=[S(44)])); a(valu('v_add_u32', V(2), S(44), V(2))); a(valu('v_lshlrev_b32', V(2), 7, V(2)))
        a(I("v_cmp_gt_u32 vcc, 16, v0", 'valu', reads=[V(0)], writes=['vcc'])); a(nop(1))
        a(I(f"v_cndmask_b32 v2, -1, v2, vcc", 'valu', reads=[V(2), 'vcc'], writes=[V(2)]))
        a(bload(1, A(209), V(2), SRD_K, 0)); a(bload(1, A(210), V(2), SRD_V, 0))
    a(raw("s_lshl_b32 s21, s24, 12", writes=[S_WOFF]))
    a(raw("s_mul_i32 s41, s24, 24576", writes=[S_RING]))
    for r in range(4): a(valu('v_mov_b32', ONES[r], 0x3F803F80))
    if not o.fuse_ln:
        a(raw("s_lshl_b32 s42, s26, 6", writes=[S_SO])); a(raw("s_lshl_b32 s43, s24, 4", writes=[S_T]))
        a(raw("s_add_u32 s42, s42, s43", writes=[S_SO])); a(raw("s_lshl_b32 s42, s42, 10", writes=[S_SO]))
        a(raw("s_lshl_b32 s43, s24, 14", writes=[S_T])); a(raw(f"s_add_u32 s43, s43, {XBASE}", writes=[S_T]))
        for n in range(16):
            if n % 4 == 0: a(smov('m0', S_T))
            a(valu('v_xor_b32', V(14 + (n & 3)), n << 4, V(7)))
            a(lds_dep(dma(V(14 + (n & 3)), SRD_W, S_SO, off=(n & 3)*1024), mark={'XN'}))
            if n % 4 == 3:
                a(sop('s_add_u32', S_SO, S_SO, 4096)); a(sop('s_add_u32', S_T, S_T, 4096))
    PTA = [V(32 + i) for i in range(8)]; XA = [V(40 + i) for i in range(4)]; DW = [V(44 + i) for i in range(4)]
    dma_off_256(a, l, DW, 8192, 'q', S_T)
    a(raw("s_lshl_b32 s42, s25, 2", writes=[S_SO])); a(raw("s_add_u32 s42, s42, s24", writes=[S_SO]))
    a(raw("s_lshl_b32 s42, s42, 8", writes=[S_SO]))
    def wq_stage(n):
        o_ = []
        for h in range(2):
            o_ += [sop('s_add_u32', 'm0', S_RING, n*8192 + h*4096), nop(0)]
            for i in range(4): o_.append(lds_dep(dma(DW[i], SRD_WQ, S_SO, off=i*1024), need={f'qR{n}'}, mark={f'qL{n}'}))
            o_.append(sop('s_add_u32', S_SO, S_SO, 16*8192))
        return o_
    a(valu('v_mov_b32', V(6), S_RING))
    addr_tr256(a, l, PTA, V(6), 8)
    a(valu('v_and_b32', V(1), 15, l)); a(valu('v_lshrrev_b32', V(2), 4, l))
    a(valu('v_lshlrev_b32', V(3), 10, V(1))); a(valu('v_add_u32', V(3), XBASE, V(3)))
    for k in range(4):
        a(valu('v_add_u32', V(4), 4*k, V(2))); a(valu('v_xor_b32', V(4), V(4), V(1)))
        a(valu('v_lshl_add_u32', XA[k], V(4), 4, V(3)))
    a(valu('v_lshrrev_b32', V(2), 4, l)); a(valu('v_and_b32', V(3), 15, l))
    for i in range(4):
        a(valu('v_add_u32', V(4), 4*i, V(2))); a(valu('v_xor_b32', V(4), V(4), V(3)))
        a(valu('v_lshlrev_b32', V(4), 4, V(4))); a(valu('v_lshl_add_u32', KA[i], V(3), 8, V(4)))
    a(valu('v_lshrrev_b32', V(4), 2, V(3))); a(valu('v_and_b32', V(5), 3, l))
    a(valu('v_lshl_add_u32', V(7), V(2), 2, V(4)))
    a(valu('v_and_b32', V(1), 7, V(7))); a(valu('v_lshlrev_b32', V(1), 1, V(1)))
    a(valu('v_lshlrev_b32', V(7), 8, V(7)))
    a(valu('v_and_b32', V(6), 1, V(5))); a(valu('v_lshl_add_u32', V(7), V(6), 3, V(7)))
    a(valu('v_add_u32', V(7), VBASE, V(7)))
    a(valu('v_lshrrev_b32', V(6), 1, V(5)))
    for dt in range(8):
        a(valu('v_add_u32', V(5), 2*dt, V(6))); a(valu('v_xor_b32', V(5), V(5), V(1)))
        a(valu('v_lshl_add_u32', VA[dt], V(5), 4, V(7)))
    a(valu('v_lshlrev_b32', V(5), 8, V(2))); a(valu('v_add_u32', V(5), S_WOFF, V(5)))
    for n in range(4):
        a(valu('v_add_u32', V(6), 4*n, V(2))); a(valu('v_xor_b32', V(6), V(6), V(3)))
        a(valu('v_lshl_add_u32', DK[n], V(6), 4, V(5)))
    for n in range(2):
        a(valu('v_add_u32', V(6), 4*n, V(2))); a(valu('v_lshlrev_b32', V(6), 1, V(6)))
        a(valu('v_xor_b32', V(6), V(6), V(3))); a(valu('v_lshl_add_u32', DV[n], V(6), 4, V(5)))
    a(raw("s_lshl_b32 s27, s24, 14", writes=[S_XB])); a(raw(f"s_add_u32 s27, s27, {XBASE}", writes=[S_XB]))
    a(smov(S_SR, S_XB))
    a(valu('v_mov_b32', V(26), S_XB))
    tr_addr_128(a, l, TA, V(26), V(1), V(2), V(3), V(4))
    dma_off_128(a, l, DA, 3584, V(1), V(2), V(3), s_tmp=S_T)
    dma_off_128(a, l, DB, 1024, V(1), V(2), V(3), s_tmp=S_T)
    a(raw("s_lshl_b32 s44, s24, 9", writes=[S(44)]))
    a(raw("s_mul_i32 s39, s44, 3584", writes=[S_SA])); a(raw("s_lshl_b32 s45, s46, 7", writes=[S(45)])); a(raw("s_add_u32 s39, s39, s45", writes=[S_SA]))
    a(raw("s_lshl_b32 s36, s44, 10", writes=[S_SB])); a(raw("s_lshl_b32 s45, s47, 7", writes=[S(45)])); a(raw("s_add_u32 s36, s36, s45", writes=[S_SB]))
    a(raw(f"s_add_u32 s36, s36, {WS_H}", writes=[S_SB]))
    a(smov(S_N, 0)); a(smov(S_SKIP, 0))
    if getattr(o, 'fine', False): s.extend(STP())
    s.extend(wq_stage(0))
    if getattr(o, 'fine', False):
        a(lds_dep(nop(0), need=set(XP.regs()))); s.extend(STP())
    def pk(op, d, x, y, z=None, mods=""):
        srcs = [x, y] + ([z] if z is not None else [])
        return I(f"{op} {d}, " + ", ".join(str(t) for t in srcs) + (" " + mods if mods else ""), 'valu', reads=srcs, writes=[d], op=op)
    if o.fuse_ln:
        F = lambda i, e: V(128 + 8*i + e)
        D1 = V(28, 4); D2 = V(4, 4)
        for i in range(16):
            a(mfma16(D1, ONES, XP[4*i:4*i+4], D1 if i else 0)); a(mfma16(D2, XP[4*i:4*i+4], XP[4*i:4*i+4], D2 if i else 0))
            for q in range(4):
                a(valu('v_lshlrev_b32', F(i, 2*q), 16, XP[4*i+q])); a(valu('v_and_b32', F(i, 2*q+1), 0xffff0000, XP[4*i+q]))
        a(valu('v_and_b32', V(1), 3, l))
        for r in (2, 1, 0):
            a(I(f"v_cmp_eq_u32 vcc, {r}, v1", 'valu', reads=[V(1)], writes=['vcc']))
            a(I(f"v_cndmask_b32 v7, v7, {D2[r]}, vcc", 'valu', reads=[V(7), D2[r], 'vcc'], writes=[V(7)]))
        a(valu('v_and_b32', V(1), 15, l)); a(valu('v_lshrrev_b32', V(2), 2, V(1)))
        a(valu('v_lshl_add_u32', V(2), V(2), 4, V(1))); a(valu('v_lshlrev_b32', V(2), 2, V(2)))
        a(I("ds_bpermute_b32 v3, v2, v7", 'ds_read', reads=[V(2), V(7)], writes=[V(3)]))
        MEAN = V(28); RS = V(2); NB = V(3)
        a(valu('v_mul_f32', MEAN, 1.0/512, MEAN))
        a(valu('v_mul_f32', V(3), 1.0/512, V(3)))
        a(valu('v_fma_f32', V(3), '-v28', MEAN, V(3)))
        a(valu('v_max_f32', V(3), 0, V(3)))
        a(valu('v_add_f32', V(3), 1e-5, V(3)))
        a(valu('v_rsq_f32', RS, V(3)))
        if o.prescale: a(valu('v_mul_f32', RS, QSCALE, RS))
        a(valu('v_mul_f32', NB, MEAN, RS)); a(valu('v_sub_f32', NB, 0, NB))
        for i in range(16):
            for e in range(8): a(valu('v_fma_f32', F(i, e), F(i, e), RS, NB))
        a(valu('v_and_b32', V(4), 15, l)); a(valu('v_lshrrev_b32', V(5), 4, l))
        a(raw("s_lshl_b32 s43, s24, 14", writes=[S_T])); a(raw(f"s_add_u32 s43, s43, {XBASE}", writes=[S_T]))
        a(valu('v_lshlrev_b32', V(6), 10, V(4))); a(valu('v_add_u32', V(6), S_T, V(6)))
        WA = [V(28 + k) for k in range(4)]
        for k in range(4):
            a(valu('v_add_u32', V(7), 4*k, V(5))); a(valu('v_xor_b32', V(7), V(7), V(4))); a(valu('v_lshl_add_u32', WA[k], V(7), 4, V(6)))
        for i in range(16):
            for q in range(4): a(valu('v_cvt_pk_bf16_f32', XP[4*i+q], F(i, 2*q), F(i, 2*q+1)))
            a(ds_write(4, WA[i & 3], XP[4*i:4*i+4], off=(i >> 2)*256))
        if getattr(o, 'fine', False): s.extend(STP())
        a(waitcnt(lgkm=0)); a(barrier())
        if getattr(o, 'fine', False): s.extend(STP())
    else:
        a(waitcnt(vm=8)); a(barrier())
    s.extend(wq_stage(1)); s.extend(wq_stage(2))
    if o.fuse_ln:
        s_main, a_main = s, a
        ln2 = []; s = ln2; a = ln2.append
        R0 = [V(64 + i) for i in range(8)]; R1 = [V(72 + i) for i in range(8)]
        PK = [V(80, 4), V(84, 4)]
        a(raw("s_lshl_b32 s44, s25, 3", writes=[S(44)])); a(raw("s_lshl_b32 s45, s24, 1", writes=[S(45)])); a(raw("s_add_u32 s44, s44, s45", writes=[S(44)]))
        for k in range(2):
            a(sop('s_add_u32', S(45), S(44), k)); a(sop('s_and_b32', S(5), S(45), 15)); a(raw("s_lshl_b32 s5, s5, 4", writes=[S(5)]))
            a(raw("s_lshl_b32 s45, s45, 10", writes=[S(45)])); a(raw(f"s_add_u32 s45, s45, {XBASE}", writes=[S(45)]))
            a(valu('v_lshlrev_b32', V(94), 4, l)); a(valu('v_xor_b32', V(94), S(5), V(94))); a(valu('v_add_u32', V(94), S(45), V(94)))
            a(ds_read_b128(PK[k], V(94)))
        RR = [R0, R1]; SM = [V(88), V(90)]; TT = [V(89), V(91)]; QQ = [V(92), V(93)]
        for k in range(2):
            for q in range(4):
                a(valu('v_lshlrev_b32', RR[k][2*q], 16, PK[k][q])); a(valu('v_and_b32', RR[k][2*q+1], 0xffff0000, PK[k][q]))
        def both(f):
            x0, x1 = f(0), f(1)
            for u, v_ in zip(x0, x1): a(u); a(v_)
        both(lambda k: [valu('v_add_f32', SM[k], RR[k][0], RR[k][1])] + [valu('v_add_f32', SM[k], SM[k], RR[k][e]) for e in range(2, 8)])
        both(lambda k: wave_sum(SM[k], TT[k]))
        both(lambda k: [valu('v_mul_f32', SM[k], 1.0/512, SM[k])] + [valu('v_sub_f32', RR[k][e], RR[k][e], SM[k]) for e in range(8)])
        both(lambda k: [valu('v_mul_f32', QQ[k], RR[k][0], RR[k][0])] + [valu('v_fmac_f32', QQ[k], RR[k][e], RR[k][e], dst_read=True) for e in range(1, 8)])
        both(lambda k: wave_sum(QQ[k], TT[k]))
        both(lambda k: [valu('v_mov_b32', TT[k], 1e-5 * (QSCALE*QSCALE if o.prescale else 1.0)), valu('v_fmac_f32', TT[k], 1.0/512, QQ[k], dst_read=True), valu('v_rsq_f32', TT[k], TT[k])] +
                       [valu('v_mul_f32', RR[k][e], RR[k][e], TT[k]) for e in range(8)] + [valu('v_cvt_pk_bf16_f32', PK[k][q], RR[k][2*q], RR[k][2*q+1]) for q in range(4)])
        a(raw("s_lshl_b32 s45, s26, 6", writes=[S(45)])); a(raw("s_add_u32 s45, s45, s44", writes=[S(45)])); a(raw("s_lshl_b32 s45, s45, 10", writes=[S(45)]))
        a(raw(f"s_add_u32 s45, s45, {WS_H}", writes=[S(45)]))
        a(valu('v_lshlrev_b32', V(94), 4, l))
        a(lds_dep(bstore(4, PK[0], V(94), SRD_W, S(45), mods="sc1"), mark={'HS'}))
        a(lds_dep(bstore(4, PK[1], V(94), SRD_W, S(45), off=1024, mods="sc1"), mark={'HS'}))
        a(valu('v_lshlrev_b32', V(95), 25, l)); a(valu('v_mov_b32', V(96), 0))
        a(raw("s_and_b32 s45, s2, 127", writes=[S(45)])); a(raw("s_lshl_b32 s45, s45, 8", writes=[S(45)])); a(raw(f"s_add_u32 s45, s45, {WS_CNT}", writes=[S(45)]))
        a(lds_dep(bstore(1, V(96), V(95), SRD_W, S(45), mods="sc1"), mark={'HS'}))
        s, a = s_main, a_main
    s.extend(STP())
    def xread(n, qt, dst): return ds_read_b128(dst, XA[n & 3], (n >> 2)*256 + qt*16384)
    kv0 = [smov(S_TILE, 0)] + at.kv_dma(0)
    later = []
    if o.side: later += side_dma(SRD_W1, S_SA, 32*3584, SRD_W, S_SB, 32*1024, DA, DB, 0, False, modsB=HMOD) + [sop('s_xor_b32', S_SR, S_SR, 8192)]
    later += at.kv_dma(1)
    if o.side: later += side_dma(SRD_W1, S_SA, 32*3584, SRD_W, S_SB, 32*1024, DA, DB, 1, False, modsB=HMOD) + [sop('s_xor_b32', S_SR, S_SR, 8192)]
    hooks = {}
    last_pre = [waitcnt(lgkm=0)]
    if o.fuse_ln:
        arrive = [lds_dep(nop(0), need={'HS'}), barrier(),
                  valu('v_mov_b32', V(4), 1), valu('v_lshlrev_b32', V(5), 25, l),
                  raw("s_and_b32 s44, s2, 3", writes=[S(44)]), raw("s_lshl_b32 s44, s44, 6", writes=[S(44)]),
                  raw("s_cmp_eq_u32 s24, 0"), raw("s_cselect_b32 s44, s44, 0x1000", reads=['scc'], writes=[S(44)]),
                  I(f"buffer_atomic_add v4, v5, {SRD_DBG}, s44 offen sc1", 'vatomic', reads=[V(4), V(5), SRD_DBG, S(44)], writes=[])]
        hooks[6] = arrive
        if o.prefetch and o.side and o.pf_w1:
            hooks[o.pf_w1_at] = [raw("s_lshl_b32 s44, s47, 2", writes=[S(44)]), raw("s_add_u32 s44, s44, s24", writes=[S(44)]), raw("s_lshl_b32 s44, s44, 6", writes=[S(44)]),
                        valu('v_add_u32', V(2), S(44), l), smov(S(44), 3584), valu('v_mul_lo_u32', V(2), V(2), S(44)),
                        raw("s_lshl_b32 s44, s46, 7", writes=[S(44)]), bload(1, A(208), V(2), SRD_W1, S(44))]
        hooks[12] = [valu('v_and_b32', V(1), 3, l), valu('v_lshlrev_b32', V(1), 6, V(1)), bload(1, V(6), V(1), SRD_DBG, 0, mods="sc1")]
        chk = lambda: [I("v_cmp_le_u32 vcc, 64, v6", 'valu', reads=[V(6)], writes=['vcc']), nop(3), raw("s_cmp_eq_u64 vcc, -1", reads=['vcc'])]
        last_pre += [smov(S(45), 0), label("L_k3_hpoll")] + chk() + [raw("s_cbranch_scc1 L_k3_hpollok", 'branch'),
                     raw("s_sleep 4"), bload(1, V(6), V(1), SRD_DBG, 0, mods="sc1"), waitcnt(vm=0),
                     sop('s_add_u32', S(45), S(45), 1), scmp('s_cmp_lt_u32', S(45), 0x40000), raw("s_cbranch_scc1 L_k3_hpoll", 'branch'), label("L_k3_hpollok")]
    last_pre += [barrier()]
    proj_gemm2(a, s, PTA, DW, SRD_WQ, S_SO, 8192, S_RING, xread, 1024, 'q', last_pre=last_pre, last_fill=kv0, hooks=hooks, fill=(ln2 if o.fuse_ln else None))
    s.extend(STP())
    a(sload(S(96, 2), ARG_B1)); a(sload(S(98, 2), ARG_B2))
    a(smov(S(44), QSCALE))
    qpost = []
    for i in range(4):
        for qt in range(4):
            x, y = O(2*i, qt), O(2*i+1, qt)
            b_ = qpost.append
            if not (o.prescale and o.fuse_ln):
                for r in range(4):
                    b_(valu('v_mul_f32', x[r], S(44), x[r])); b_(valu('v_mul_f32', y[r], S(44), y[r]))
            T4 = V(48 + 4*((i*4+qt) & 1), 4)
            X0, X1, Y0, Y1 = T4[0], T4[1], T4[2], T4[3]
            b_(valu('v_cvt_pk_bf16_f32', X0, x[0], x[1])); b_(valu('v_cvt_pk_bf16_f32', X1, x[2], x[3]))
            b_(valu('v_cvt_pk_bf16_f32', Y0, y[0], y[1])); b_(valu('v_cvt_pk_bf16_f32', Y1, y[2], y[3]))
            b_(permlane32_swap(X0, Y0)); b_(permlane32_swap(X1, Y1))
            b_(permlane16_swap(X0, Y0)); b_(permlane16_swap(X1, Y1))
            q = Q(i, qt)
            b_(valu('v_accvgpr_write_b32', q[0], X0)); b_(valu('v_accvgpr_write_b32', q[1], X1))
            b_(valu('v_accvgpr_write_b32', q[2], Y0)); b_(valu('v_accvgpr_write_b32', q[3], Y1))
    grp = group_dma(later)
    step = max(1, len(qpost) // (len(grp) + 1)); gi = 0
    for k, ins in enumerate(qpost):
        a(ins)
        if k % step == step - 1 and gi < len(grp):
            s.extend(expand([grp[gi]])); gi += 1
            while gi < len(grp) and not isinstance(grp[gi], Grp):
                a(grp[gi]); gi += 1
    for g_ in grp[gi:]: s.extend(expand([g_]))
    s.extend(STP())
    a(waitcnt(vm=(24 if o.side else 8))); a(barrier())
    MX = [V(18 + 0), V(19), V(20), V(21)] if False else [V(28), V(29), V(30), V(31)]
    for kh in range(2 if o.fm64 else 1):
        s.extend(at.k_reads(0, kh))
        for c in range(2):
            for q2 in range(2):
                for t in range(2):
                    for i in range(4): a(mfma16(Sx(c, t, q2), Kf(t*4+i), Q(i, 2*c+q2), 0 if i == 0 else Sx(c, t, q2)))
        for qt in range(4):
            c, q2 = qt >> 1, qt & 1
            s0, s1 = Sx(c, 0, q2), Sx(c, 1, q2); m = MX[qt]
            if kh == 0: a(valu('v_max3_f32', m, s0[0], s0[1], s0[2]))
            else: a(valu('v_max3_f32', m, s0[0], s0[1], m)); a(valu('v_max_f32', m, m, s0[2]))
            a(valu('v_max3_f32', m, m, s0[3], s1[0])); a(valu('v_max3_f32', m, m, s1[1], s1[2])); a(valu('v_max_f32', m, m, s1[3]))
    for qt in range(4):
        m = MX[qt]; t = V(5)
        a(valu('v_mov_b32', t, m)); a(permlane16_swap(m, t)); a(valu('v_max_f32', m, m, t))
        a(valu('v_mov_b32', t, m)); a(permlane32_swap(m, t)); a(valu('v_max_f32', m, m, t))
        for r in range(4): a(valu('v_sub_f32', NM[qt][r], float(-o.moff), m))
    s.extend(STP())
    pro = s
    B1 = S(28, 4); B2 = S(32 - 4, 4)
    def scratch_write():
        o_ = [valu('v_lshlrev_b32', V(27), 4, l), valu('v_add_u32', V(26), S_XB, V(27))]
        for i in range(4):
            for j in range(4): o_.append(ds_write(4, V(26), sacc(i, j), off=(i*4+j)*1024))
        o_ += [raw("s_lshl_b32 s43, s24, 10", writes=[S_TMP]), raw(f"s_add_u32 s43, s43, {XBASE}", writes=[S_TMP]), valu('v_add_u32', V(27), S_TMP, V(27))]
        return o_
    PS = [[V(18, 2), V(20, 2), V(22, 2), V(24, 2)], [V(28, 2), V(30, 2), V(2, 2), V(4, 2)]]
    def unit_reads(u):
        i, h = u >> 1, u & 1
        return [ds_read_b64(PS[u & 1][w], V(27), w*16384 + i*4096 + 8*h) for w in range(4)]
    def unit_sum(u, e):
        P_ = PS[u & 1]; x = P_[3][e]
        return [valu('v_add_f32', P_[0][e], P_[0][e], P_[1][e]), valu('v_add_f32', x, x, P_[2][e]), valu('v_add_f32', x, x, P_[0][e])], x
    per = {}
    def side_spec(j):
        kw = dict(first=(j == 0), last_drain=(j == 32), kv=(j <= 29))
        if not o.side: return kw
        if j <= 15:
            rd, mf, dm = g1_parts(j, in_loop=(j >= 1))
            kw['side_groups'] = [(5, mf)] if o.g1_pos == 0 else ([(3, mf[:8]), (5, mf[8:])] if o.g1_pos == 1 else [(7, mf)] if o.g1_pos == 2 else [(1, mf[:4]), (3, mf[4:8]), (5, mf[8:12]), (6, mf[12:])])
            if getattr(o, 'x_noread', False): rd = []
            if getattr(o, 'x_nodma', False): dm = [i for i in dm if i.kind != 'dma' and 'm0' not in i.writes]
            kw['streams'] = [('srd', spread(rd, o.g1_rd[0], o.g1_rd[1]))]
            if dm: kw['side_dma_list'] = (dm, o.g1_dm[0], o.g1_dm[1], 0.5)
            kw['post'] = toggle_side()
        elif j == 16:
            pre = make_srd(B1, S(96, 2), 1792*2)
            bl = [valu('v_lshrrev_b32', V(1), 4, l), valu('v_lshlrev_b32', V(1), 3, V(1)), raw("s_lshl_b32 s44, s46, 7", writes=[S(44)])]
            bl += [bload(2, A(192 + 2*ft, 2), V(1), B1, S(44), off=32*ft) for ft in range(4)]
            kw['pre'] = pre
            pf = []
            if o.prefetch and o.pf_w2 and not o.g2_tail:
                pf = [raw("s_mul_i32 s44, s47, 224", writes=[S(44)]), raw("s_mul_i32 s45, s24, 56", writes=[S(45)]), raw("s_add_u32 s44, s44, s45", writes=[S(44)]),
                      valu('v_add_u32', V(2), S(44), l), valu('v_lshlrev_b32', V(2), 12, V(2)), raw("s_lshl_b32 s45, s46, 7", writes=[S(45)]),
                      bload(1, A(200), V(2), SRD_W2, S(45))]
            if o.wot:
                pf += [raw("s_lshl_b32 s3, s25, 4", writes=[S(3)]), raw("s_lshr_b32 s5, s26, 1", writes=[S(5)]), raw("s_add_u32 s3, s3, s5", writes=[S(3)]),
                       raw("s_lshl_b32 s3, s3, 15", writes=[S(3)]), raw("s_and_b32 s5, s26, 1", writes=[S(5)]), raw("s_lshl_b32 s5, s5, 9", writes=[S(5)]),
                       raw("s_add_u32 s3, s3, s5", writes=[S(3)]), raw("s_lshl_b32 s5, s24, 7", writes=[S(5)]), raw("s_add_u32 s3, s3, s5", writes=[S(3)]),
                       valu('v_and_b32', V(3), 31, l), valu('v_lshlrev_b32', V(3), 10, V(3)), bload(1, A(201), V(3), SRD_WO, S(3))]
            kw['streams'] = [('sw', spread(scratch_write(), 0.1, 0.7)), ('sb', spread(bl, 0.05, 0.1)), ('spf', [(0.15, 0.12, i) for i in pf])]
        elif j == 17:
            comp = [smov(S(45), -2.0*0.7978845608028654*LOG2E*0.044715), valu('v_mov_b32', V(1), -2.0*0.7978845608028654*LOG2E)]
            comp += [raw("s_lshl_b32 s43, s47, 2", writes=[S_TMP]), raw("s_add_u32 s43, s43, s24", writes=[S_TMP]), raw("s_mul_i32 s43, s43, 56", writes=[S_TMP]),
                     raw("s_lshl_b32 s39, s46, 1", writes=[S_SA]), raw("s_add_u32 s43, s43, s39", writes=[S_TMP]), raw("s_lshl_b32 s43, s43, 10", writes=[S_TMP]),
                     raw(f"s_add_u32 s43, s43, {WS_U}", writes=[S_TMP]), valu('v_lshlrev_b32', V(26), 4, l)]
            OUTA = A(240, 8)
            comp += unit_reads(0)
            for u in range(8):
                ft, h = u >> 1, u & 1
                if u + 1 < 8: comp += unit_reads(u + 1)
                comp.append(valu('v_accvgpr_read_b32', V(6), A(192 + 2*ft + h)))
                xs = []
                for e in range(2):
                    sm_, x = unit_sum(u, e); comp += sm_; xs.append(x)
                    comp.append(valu('v_and_b32', V(7), 0xffff0000, V(6)) if e else valu('v_lshlrev_b32', V(7), 16, V(6)))
                    comp.append(valu('v_add_f32', x, x, V(7)))
                    comp += [valu('v_mul_f32', V(7), x, x), valu('v_fma_f32', V(7), V(7), S(45), V(1)), valu('v_mul_f32', V(7), V(7), x), valu('v_exp_f32', V(7), V(7)),
                             valu('v_add_f32', V(7), 1.0, V(7)), valu('v_rcp_f32', V(7), V(7)), valu('v_mul_f32', x, x, V(7))]
                comp += [valu('v_cvt_pk_bf16_f32', V(6), xs[0], xs[1]), valu('v_accvgpr_write_b32', OUTA[u], V(6))]
                if u in (3, 7): comp.append(lds_dep(bstore(4, OUTA[u-3:u+1], V(26), SRD_US, S_TMP, off=(u >> 2)*1024, mods="sc1"), mark={'US'}))
            kw['streams'] = [('scomp', spread(comp, 0.0, 0.98))]
        elif o.g2_tail and j >= 18:
            if j == 18:
                sig = [valu('v_mov_b32', V(4), 1), valu('v_lshlrev_b32', V(5), 25, l),
                       raw("s_lshl_b32 s44, s47, 2", writes=[S(44)]), raw("s_add_u32 s44, s44, s24", writes=[S(44)]), raw("s_lshl_b32 s44, s44, 8", writes=[S(44)]),
                       raw(f"s_add_u32 s44, s44, {WS_CNT}", writes=[S(44)]),
                       lds_dep(I(f"buffer_atomic_add v4, v5, {SRD_US}, s44 offen sc1", 'vatomic', reads=[V(4), V(5), SRD_US, S(44)], writes=[]), need={'US'})]
                kw['streams'] = [('ssig', [(0.6, 0.5, i) for i in sig])]
            elif j == 28:
                pl = [valu('v_and_b32', V(1), 3, l), valu('v_lshlrev_b32', V(1), 8, V(1)), raw("s_lshl_b32 s43, s47, 10", writes=[S_TMP]),
                      raw(f"s_add_u32 s43, s43, {WS_CNT}", writes=[S_TMP]), bload(1, V(6), V(1), SRD_W, S_TMP, mods="sc1")]
                pf = []
                if o.prefetch and o.pf_w2:
                    pf = [raw("s_mul_i32 s44, s47, 224", writes=[S(44)]), raw("s_mul_i32 s45, s24, 56", writes=[S(45)]), raw("s_add_u32 s44, s44, s45", writes=[S(44)]),
                          valu('v_add_u32', V(2), S(44), l), valu('v_lshlrev_b32', V(2), 12, V(2)), raw("s_lshl_b32 s45, s46, 7", writes=[S(45)]),
                          bload(1, A(200), V(2), SRD_W2, S(45))]
                if o.prefetch:
                    pf += [raw("s_lshl_b32 s44, s25, 5", writes=[S(44)]), raw("s_add_u32 s44, s44, s26", writes=[S(44)]), raw("s_lshl_b32 s44, s44, 2", writes=[S(44)]),
                           raw("s_add_u32 s44, s44, s24", writes=[S(44)]), raw("s_lshl_b32 s44, s44, 12", writes=[S(44)]), valu('v_lshlrev_b32', V(3), 4, l)]
                    pf += [bload(4, A(240 + 4*n, 4), V(3), SRD_WO, S(44), off=n*1024) for n in range(4)]
                kw['streams'] = [('spoll', [(0.05, 0.0, i) for i in pl]), ('spf', spread(pf, 0.45, 0.9, rel=0.42))]
                chk = lambda: [I("v_cmp_le_u32 vcc, 28, v6", 'valu', reads=[V(6)], writes=['vcc']), nop(3), raw("s_cmp_eq_u64 vcc, -1", reads=['vcc'])]
                kw['post'] = [smov(S(45), 0), label("L_k3_poll")] + chk() + [raw("s_cbranch_scc1 L_k3_pollok", 'branch'),
                              raw("s_sleep 4"), bload(1, V(6), V(1), SRD_W, S_TMP, mods="sc1"), waitcnt(vm=0),
                              sop('s_add_u32', S(45), S(45), 1), scmp('s_cmp_lt_u32', S(45), 0x40000), raw("s_cbranch_scc1 L_k3_poll", 'branch'), label("L_k3_pollok")]
        elif j == 18:
            su = []
            dma_off_128(su.append, l, DA, 4096, V(1), V(2), V(3), s_tmp=S_TMP)
            su += [valu('v_lshlrev_b32', DB[0], 4, l)] + [valu('v_add_u32', DB[t], 56*1024, DB[t-1]) for t in range(1, 4)]
            su += [raw("s_mul_i32 s39, s24, 448*4096", writes=[S_SA]), raw("s_lshl_b32 s43, s46, 7", writes=[S_TMP]), raw("s_add_u32 s39, s39, s43", writes=[S_SA]),
                   raw("s_mul_i32 s36, s47, 4*56", writes=[S_SB]), raw("s_mul_i32 s43, s24, 14", writes=[S_TMP]), raw("s_add_u32 s36, s36, s43", writes=[S_SB]),
                   raw("s_lshl_b32 s36, s36, 10", writes=[S_SB]), raw(f"s_add_u32 s36, s36, {WS_U}", writes=[S_SB]), smov(S_N, 0), smov(S_SKIP, 0)]
            sig = [valu('v_mov_b32', V(4), 1), valu('v_lshlrev_b32', V(5), 25, l),
                   raw("s_lshl_b32 s44, s47, 2", writes=[S(44)]), raw("s_add_u32 s44, s44, s24", writes=[S(44)]), raw("s_lshl_b32 s44, s44, 8", writes=[S(44)]),
                   raw(f"s_add_u32 s44, s44, {WS_CNT}", writes=[S(44)]),
                   lds_dep(I(f"buffer_atomic_add v4, v5, {SRD_US}, s44 offen sc1", 'vatomic', reads=[V(4), V(5), SRD_US, S(44)], writes=[]), need={'US'})]
            kw['streams'] = [('ssu', spread(su, 0.05, 0.55)), ('ssig', [(0.6, 0.5, i) for i in sig])]
            if o.wot:
                WD = [V(28 + i) for i in range(4)]
                wsu = []
                dma_off_128(wsu.append, l, WD, 1024, V(6), V(7), V(26), s_tmp=S(5))
                wsu += [raw("s_lshl_b32 s3, s25, 4", writes=[S(3)]), raw("s_lshr_b32 s5, s26, 1", writes=[S(5)]), raw("s_add_u32 s3, s3, s5", writes=[S(3)]),
                        raw("s_lshl_b32 s3, s3, 15", writes=[S(3)]), raw("s_and_b32 s5, s26, 1", writes=[S(5)]), raw("s_lshl_b32 s5, s5, 9", writes=[S(5)]),
                        raw("s_add_u32 s3, s3, s5", writes=[S(3)]), raw("s_lshl_b32 s5, s24, 7", writes=[S(5)]), raw("s_add_u32 s3, s3, s5", writes=[S(3)])]
                kw['streams'].append(('swsu', spread(wsu, 0.0, 0.12)))
                dl = [sop('s_add_u32', 'm0', S_SR, 8192), nop(0)] + [lds_dep(dma(WD[i], SRD_WO, S(3), off=i*1024), need={'sR1'}, mark={'sL1'}) for i in range(4)]
                kw['side_dma_list'] = (dl, 0.42, 0.55, 0.2)
        elif j == 19:
            st = g2_dma(0, False) + [sop('s_xor_b32', S_SR, S_SR, 8192)] + g2_dma(1, False) + [sop('s_xor_b32', S_SR, S_SR, 8192)]
            kw['side_dma_list'] = (st, 0.42, 0.95, 0.0)
            if o.wot:
                rd = [lds_dep(ds_read_tr(A(192 + 4*t + 2*u, 2), TA[t], 8192 + u*2048), need={'sL1'}, mark={'sR1'}) for t in range(4) for u in range(2)]
                ad = [raw("s_lshl_b32 s3, s25, 4", writes=[S(3)]), raw("s_lshr_b32 s5, s26, 1", writes=[S(5)]), raw("s_add_u32 s3, s3, s5", writes=[S(3)]),
                      raw("s_lshl_b32 s3, s3, 5", writes=[S(3)]), raw("s_and_b32 s5, s26, 1", writes=[S(5)]), raw("s_lshl_b32 s5, s5, 4", writes=[S(5)]),
                      raw("s_add_u32 s3, s3, s5", writes=[S(3)]), raw("s_lshl_b32 s5, s24, 2", writes=[S(5)]), raw("s_add_u32 s3, s3, s5", writes=[S(3)]),
                      raw("s_lshl_b32 s3, s3, 10", writes=[S(3)]), raw(f"s_add_u32 s3, s3, {WS_WOT}", writes=[S(3)]), valu('v_lshlrev_b32', V(26), 4, l)]
                stw = [bstore(4, A(192 + 4*t, 4), V(26), SRD_W, S(3), off=t*1024, mods="sc1") for t in range(4)]
                kw['streams'] = [('swr', spread(rd, 0.50, 0.60, rel=0.48) + [(0.61, 0.0, i) for i in ad] + spread(stw, 0.64, 0.8, rel=0.62))]
                kw['side_dma_list'] = (st, 0.42, 0.97, 0.0)
        elif j == 20:
            pl = [valu('v_and_b32', V(1), 3, l), valu('v_lshlrev_b32', V(1), 8, V(1)), raw("s_lshl_b32 s43, s47, 10", writes=[S_TMP]),
                  raw(f"s_add_u32 s43, s43, {WS_CNT}", writes=[S_TMP]), bload(1, V(6), V(1), SRD_W, S_TMP, mods="sc1")]
            kw['streams'] = [('spoll', [(0.80, 0.7, i) for i in pl])]
            if o.prefetch and not o.wot:
                extra = [raw("s_lshl_b32 s44, s25, 5", writes=[S(44)]), raw("s_add_u32 s44, s44, s26", writes=[S(44)]), raw("s_lshl_b32 s44, s44, 2", writes=[S(44)]),
                         raw("s_add_u32 s44, s44, s24", writes=[S(44)]), raw("s_lshl_b32 s44, s44, 12", writes=[S(44)])]
                extra += [bload(4, A(240 + 4*n, 4), DB[0], SRD_WO, S(44), off=n*1024) for n in range(4)]
                kw['streams'].append(('spf', spread(extra, 0.42, 0.55)))
            chk = lambda: [I("v_cmp_le_u32 vcc, 28, v6", 'valu', reads=[V(6)], writes=['vcc']), nop(3), raw("s_cmp_eq_u64 vcc, -1", reads=['vcc'])]
            dg = (STP() if getattr(o, 'polldiag', False) else [])
            kw['post'] = dg + [smov(S(45), 0), label("L_k3_poll")] + chk() + [raw("s_cbranch_scc1 L_k3_pollok", 'branch'),
                          raw("s_sleep 4"), bload(1, V(6), V(1), SRD_W, S_TMP, mods="sc1"), waitcnt(vm=0),
                          sop('s_add_u32', S(45), S(45), 1), scmp('s_cmp_lt_u32', S(45), 0x40000), raw("s_cbranch_scc1 L_k3_poll", 'branch'), label("L_k3_pollok")] + ([smov(S(94), S(45))] if getattr(o, 'polldiag', False) else [])
            kw['vm_end'] = 0
        elif j == 21:
            if o.wot:
                kw['pre'] = [valu('v_mov_b32', V(4), 1), valu('v_lshlrev_b32', V(5), 25, l), sop('s_add_u32', S(44), S_G, 64), raw("s_lshl_b32 s44, s44, 8", writes=[S(44)]),
                             raw(f"s_add_u32 s44, s44, {WS_CNT}", writes=[S(44)]), raw("s_cmp_eq_u32 s24, 0"), raw(f"s_cselect_b32 s44, s44, {WS_END}", reads=['scc'], writes=[S(44)]),
                             I(f"buffer_atomic_add v4, v5, {SRD_W}, s44 offen sc1", 'vatomic', reads=[V(4), V(5), SRD_W, S(44)], writes=[])]
            z = [valu('v_accvgpr_write_b32', A(128 + r), 0) for r in range(64)]
            kw['streams'] = [('sul', spread(g2_uloads(), 0.05, 0.3)), ('sz', spread(z, 0.1, 0.95))]
        elif 22 <= j <= 28:
            i = j - 22
            rd, mfs = g2_parts(i if i else 1)
            rd, _ = g2_parts(i)
            kw['side_groups'] = [(3, mfs[0]), (5, mfs[1])]
            stl = [('srd', spread(rd, 0.02, 0.36))]
            if j <= 27:
                dm = [scmp('s_cmp_gt_u32', S_N, 4), I(f"s_cselect_b32 {S_SKIP}, 0x30000, 0", 'salu', reads=['scc'], writes=[S_SKIP]), sop('s_add_u32', S_N, S_N, 1)]
                dm += g2_dma(i & 1, True)
                kw['side_dma_list'] = (dm, 0.45, 0.78, 0.42)
                stl += [('sul', spread(g2_uloads(), 0.82, 0.98, rel=0.80))]
            kw['streams'] = stl
            kw['post'] = toggle_side()
        elif j == 29:
            pre = make_srd(B1, S(98, 2), 2048*2)
            bl = [valu('v_and_b32', V(1), 15, l), raw("s_lshl_b32 s44, s46, 6", writes=[S(44)]), raw("s_lshl_b32 s45, s24, 4", writes=[S(45)]),
                  raw("s_add_u32 s44, s44, s45", writes=[S(44)]), valu('v_add_u32', V(1), S(44), V(1)), valu('v_lshlrev_b32', V(1), 1, V(1)), bload_ushort(V(1), V(1), B1)]
            kw['pre'] = pre
            kw['streams'] = [('sw', spread(scratch_write(), 0.1, 0.7)), ('sb', spread(bl, 0.05, 0.1))]
        elif j == 30:
            comp = [smov(S(44), -LOG2E), valu('v_lshlrev_b32', V(1), 16, V(1))]
            comp += [raw("s_lshr_b32 s43, s47, 1", writes=[S_TMP]), raw("s_lshl_b32 s45, s46, 2", writes=[S(45)]), raw("s_add_u32 s43, s43, s45", writes=[S_TMP]),
                     raw("s_lshl_b32 s43, s43, 2", writes=[S_TMP]), raw("s_and_b32 s45, s47, 1", writes=[S(45)]), raw("s_lshl_b32 s45, s45, 1", writes=[S(45)]),
                     raw("s_add_u32 s43, s43, s45", writes=[S_TMP]), raw("s_lshl_b32 s43, s43, 2", writes=[S_TMP]), raw("s_add_u32 s43, s43, s24", writes=[S_TMP]),
                     raw("s_lshl_b32 s43, s43, 10", writes=[S_TMP]), raw(f"s_add_u32 s43, s43, {WS_GATE}", writes=[S_TMP]), valu('v_lshlrev_b32', V(26), 4, l)]
            OUTA = A(240, 8)
            comp += unit_reads(0)
            for u in range(8):
                if u + 1 < 8: comp += unit_reads(u + 1)
                xs = []
                for e in range(2):
                    sm_, y = unit_sum(u, e); comp += sm_; xs.append(y)
                    comp += [valu('v_add_f32', y, y, V(1)), valu('v_mul_f32', V(7), S(44), y), valu('v_exp_f32', V(7), V(7)), valu('v_add_f32', V(7), 1.0, V(7)),
                             valu('v_rcp_f32', V(7), V(7)), valu('v_mul_f32', y, y, V(7))]
                comp += [valu('v_cvt_pk_bf16_f32', V(6), xs[0], xs[1]), valu('v_accvgpr_write_b32', OUTA[u], V(6))]
                if u in (3, 7):
                    comp.append(bstore(4, OUTA[u-3:u+1], V(26), SRD_W, S_TMP, mods=("sc1" if o.fuse_comb else "")))
                    comp.append(sop('s_add_u32', S_TMP, S_TMP, 4096))
            kw['streams'] = [('scomp', spread(comp, 0.0, 0.98))]
        return kw
    DO = [V(14 + i) for i in range(4)]
    TO = [V(64 + i) for i in range(8)]; TO2 = [V(72 + i) for i in range(8)]
    S_SLOW = S(6); S_R2 = S(7)
    def wo_setup():
        s_ = []; a_ = s_.append
        dma_off_256(a_, l, DO, 1024, 'o', S_T)
        a_(raw("s_lshl_b32 s42, s25, 19", writes=[S_SO])); a_(raw("s_lshl_b32 s43, s24, 8", writes=[S_T]))
        a_(raw("s_add_u32 s42, s42, s43", writes=[S_SO]))
        a_(raw("s_lshl_b32 s7, s24, 13", writes=[S_R2])); a_(raw("s_add_u32 s7, s7, 65536", writes=[S_R2]))
        return s_
    def wo_stage(n):
        s_ = []
        sb, madd = (S_XB, n*8192) if n < 2 else (S_R2, 0)
        for h in range(2):
            s_ += [sop('s_add_u32', 'm0', sb, madd + h*4096), nop(0)]
            for i in range(4): s_.append(lds_dep(dma(DO[i], SRD_WO, S_SO, off=i*1024), need={f'oR{n}'}, mark={f'oL{n}'}))
            s_.append(sop('s_add_u32', S_SO, S_SO, 16*1024))
        return s_
    def wo_first_lds(): return wo_setup() + wo_stage(0) + wo_stage(1) + wo_stage(2)
    VLW = V(14)
    def wot_setup():
        return [valu('v_lshlrev_b32', VLW, 4, l), raw("s_lshl_b32 s42, s25, 19", writes=[S_SO]), raw("s_lshl_b32 s43, s24, 13", writes=[S_T]),
                raw("s_add_u32 s42, s42, s43", writes=[S_SO]), raw(f"s_add_u32 s42, s42, {WS_WOT}", writes=[S_SO])]
    def wot_loads(n): return proj3_loads(SRD_W, S_SO, VLW, n, 128)
    def wot_first(): return [i for n in range(P3_DEPTH) for i in wot_loads(n)]
    def wo_first(): return (wot_setup() + wot_first()) if o.wot else wo_first_lds()
    seqs = [('pro', pro)]
    for j in range(33):
        kw_ = side_spec(j)
        if j == 31 and o.wot:
            kw_['streams'] = list(kw_.get('streams', [])) + [('swo', spread(wot_setup(), 0.0, 0.05) + spread(wot_first(), 0.08, 0.95, rel=0.06))]
        elif j == 31 and o.wo_early:
            kw_['streams'] = list(kw_.get('streams', [])) + [('swo', spread(wo_setup(), 0.02, 0.2))]
            kw_['side_dma_list'] = (wo_stage(0) + wo_stage(1), 0.25, 0.95, 0.22)
        if j == 30 and o.wot:
            pl = [valu('v_mov_b32', V(16), 0), sop('s_add_u32', S(3), S_G, 64), raw("s_lshl_b32 s3, s3, 8", writes=[S(3)]), raw(f"s_add_u32 s3, s3, {WS_CNT}", writes=[S(3)]),
                  bload(1, V(17), V(16), SRD_W, S(3), mods="sc1")]
            kw_['streams'] = list(kw_.get('streams', [])) + [('swp', [(0.3, 0.25, i) for i in pl])]
            kw_['post'] = list(kw_.get('post', [])) + [smov(S(5), 0), label("L_k3_wpoll"), readfirstlane(S(4), V(17)), nop(3), scmp('s_cmp_ge_u32', S(4), 32),
                          raw("s_cbranch_scc1 L_k3_wpollok", 'branch'), raw("s_sleep 4"), bload(1, V(17), V(16), SRD_W, S(3), mods="sc1"), waitcnt(vm=0),
                          sop('s_add_u32', S(5), S(5), 1), scmp('s_cmp_lt_u32', S(5), 0x40000), raw("s_cbranch_scc1 L_k3_wpoll", 'branch'), label("L_k3_wpollok")]
        p = at.period(j, **kw_)
        if o.timing and j in o.stamp_after: p = p + STP()
        seqs.append((j, [label(f"@@P{j}")] + p))
    def arrive2(idx_s):
        return [valu('v_mov_b32', V(4), 1), valu('v_lshlrev_b32', V(5), 25, l),
                sop('s_add_u32', S(44), idx_s, 32), raw("s_lshl_b32 s44, s44, 8", writes=[S(44)]), raw(f"s_add_u32 s44, s44, {WS_CNT}", writes=[S(44)]),
                raw("s_cmp_eq_u32 s24, 0"), raw(f"s_cselect_b32 s44, s44, {WS_END}", reads=['scc'], writes=[S(44)]),
                I(f"buffer_atomic_add v4, v5, {SRD_W}, s44 offen sc1", 'vatomic', reads=[V(4), V(5), SRD_W, S(44)], writes=[])]
    pre_epi = [smov(S_SLOW, 0)]
    if o.fuse_comb: pre_epi += ([] if o.g2_tail else arrive2(S_T64)) + [sload(S(96, 2), ARG_X)] + ([sload(S(100, 2), ARG_OUT)] if o.g2_tail else [sload(S(98, 2), ARG_OUT)])
    if not o.wot: pre_epi += (wo_stage(2) if o.wo_early else wo_first())
    s = []; a = s.append
    a(label("@@EPI"))
    a(label("L_k3_norm"))
    a(nop(7))
    if not o.wot:
        a(valu('v_mov_b32', V(6), S_XB))
        addr_tr256(a, l, TO, V(6), 4)
        a(valu('v_mov_b32', V(6), S_R2))
        addr_tr256(a, l, TO2, V(6), 4)
    LI = [V(24 + i) for i in range(4)]
    for qt in range(4): a(valu('v_rcp_f32', LI[qt], LA[qt][0]))
    a(valu('v_lshlrev_b32', V(7), 4, l))
    a(raw("s_lshl_b32 s43, s24, 14", writes=[S_T]))
    a(valu('v_add_u32', V(22), S_T, V(7))); a(valu('v_mov_b32', V(23), V(7)))
    for kk in range(4):
        for qt in range(4):
            x, y = O(2*kk, qt), O(2*kk+1, qt)
            for r in range(4):
                a(valu('v_mul_f32', x[r], x[r], LI[qt])); a(valu('v_mul_f32', y[r], y[r], LI[qt]))
            if o.moff:
                mx = V(28 + qt)
                ab = lambda r_: f"|{r_}|"
                if kk == 0: a(valu('v_max3_f32', mx, ab(x[0]), ab(x[1]), ab(x[2])))
                else: a(valu('v_max3_f32', mx, ab(x[0]), ab(x[1]), mx)); a(valu('v_max_f32', mx, ab(x[2]), mx, mods=""))
                a(valu('v_max3_f32', mx, ab(x[3]), ab(y[0]), mx)); a(valu('v_max3_f32', mx, ab(y[1]), ab(y[2]), mx)); a(valu('v_max_f32', mx, ab(y[3]), mx))
            F = V(48 + 4*((kk*4+qt) & 3), 4)
            a(valu('v_cvt_pk_bf16_f32', F[0], x[0], x[1])); a(valu('v_cvt_pk_bf16_f32', F[1], x[2], x[3]))
            a(valu('v_cvt_pk_bf16_f32', F[2], y[0], y[1])); a(valu('v_cvt_pk_bf16_f32', F[3], y[2], y[3]))
            a(ds_write(4, V(22), F, off=(kk*4+qt)*1024))
    a(waitcnt(lgkm=0)); a(barrier())
    s.extend(STP())
    def oread(n, qt, dst): return ds_read_b128(dst, V(23), (n*4+qt)*1024)
    S_PS = S(3)
    def pstore(prange):
        o_ = []
        for p in prange:
            for qt in range(4):
                x, y = O(2*p, qt), O(2*p+1, qt)
                F = V(48 + 4*((p*4+qt) & 3), 4)
                o_ += [valu('v_cvt_pk_bf16_f32', F[0], x[0], x[1]), valu('v_cvt_pk_bf16_f32', F[1], x[2], x[3]),
                       valu('v_cvt_pk_bf16_f32', F[2], y[0], y[1]), valu('v_cvt_pk_bf16_f32', F[3], y[2], y[3]),
                       bstore(4, F, V(7), SRD_W, S_PS, off=qt*1024, mods=("sc1" if o.fuse_comb else ""))]
            o_.append(sop('s_add_u32', S_PS, S_PS, 4096))
        return o_
    a(raw("s_lshl_b32 s3, s25, 5", writes=[S_PS])); a(raw("s_add_u32 s3, s3, s26", writes=[S_PS]))
    a(raw("s_lshl_b32 s3, s3, 2", writes=[S_PS])); a(raw("s_add_u32 s3, s3, s24", writes=[S_PS]))
    a(raw("s_lshl_b32 s3, s3, 14", writes=[S_PS])); a(raw(f"s_add_u32 s3, s3, {WS_PART}", writes=[S_PS]))
    g2pre = {}
    if o.g2_tail:
        GTA = [[V(96 + t) for t in range(4)], [V(100 + t) for t in range(4)]]
        GDA = [V(104 + t) for t in range(4)]; GUL = [V(108 + t) for t in range(4)]
        a(valu('v_mov_b32', V(6), S_XB)); tr_addr_128(a, l, GTA[0], V(6), V(1), V(2), V(3), V(4))
        a(valu('v_mov_b32', V(6), S_R2)); tr_addr_128(a, l, GTA[1], V(6), V(1), V(2), V(3), V(4))
        dma_off_128(a, l, GDA, 4096, V(1), V(2), V(3), s_tmp=S(5))
        a(valu('v_lshlrev_b32', GUL[0], 4, l))
        for t in range(1, 4): a(valu('v_add_u32', GUL[t], 56*1024, GUL[t-1]))
        a(raw("s_mul_i32 s39, s24, 448*4096", writes=[S_SA])); a(raw("s_lshl_b32 s5, s46, 7", writes=[S(5)])); a(raw("s_add_u32 s39, s39, s5", writes=[S_SA]))
        a(raw("s_mul_i32 s36, s47, 4*56", writes=[S_SB])); a(raw("s_mul_i32 s5, s24, 14", writes=[S(5)])); a(raw("s_add_u32 s36, s36, s5", writes=[S_SB]))
        a(raw("s_lshl_b32 s36, s36, 10", writes=[S_SB])); a(raw(f"s_add_u32 s36, s36, {WS_U}", writes=[S_SB]))
        s.extend(make_srd(S(28, 4), S(98, 2), 2048*2))
        a(valu('v_and_b32', V(1), 15, l)); a(raw("s_lshl_b32 s44, s46, 6", writes=[S(44)])); a(raw("s_lshl_b32 s45, s24, 4", writes=[S(45)]))
        a(raw("s_add_u32 s44, s44, s45", writes=[S(44)])); a(valu('v_add_u32', V(1), S(44), V(1))); a(valu('v_lshlrev_b32', V(1), 1, V(1)))
        a(bload_ushort(V(18), V(1), S(28, 4)))
        gmap = [(0, 8192, S_XB, 8192), (0, 12288, S_XB, 12288), (1, 0, S_R2, 0), (1, 4096, S_R2, 4096)]
        wneed = ['oR1', 'oR1', 'oR2', 'oR2']
        def g2_w(n, first=False):
            st = n % 4; (_, _, sb, madd) = gmap[st]
            o_ = [sop('s_add_u32', 'm0', sb, madd)]
            for i in range(4): o_.append(lds_dep(dma(GDA[i], SRD_W2, S_SA, off=i*1024), need={f'gR{st}'} | ({wneed[st]} if first else set()), mark={f'gL{st}'}))
            o_.append(sop('s_add_u32', S_SA, S_SA, 32*4096))
            return o_
        gfa = lambda n, t: A(192 + 16*(n % 4) + 4*t, 4)
        gfb = lambda p, t: A(128 + 16*p + 4*t, 4)
        def g2_u(n):
            return [bload(4, gfa(n, t), GUL[t], SRD_W, S_SB, mods="sc1") for t in range(4)] + [sop('s_add_u32', S_SB, S_SB, 1024)]
        def g2_r(n):
            st = n % 4; (ti, imm, _, _) = gmap[st]
            return [lds_dep(ds_read_tr(gfb(n & 1, t)[2*u:2*u+2], GTA[ti][t], imm + u*2048), need={f'gL{st}'}, mark={f'gR{st}'}) for t in range(4) for u in range(2)]
        g2pre = {13: g2_w(0, True) + g2_w(1, True) + g2_u(0), 14: g2_w(2, True) + g2_w(3, True) + g2_u(1), 15: g2_u(2) + g2_u(3)}
    if o.wot:
        proj_gemm3(a, s, SRD_W, S_SO, VLW, oread, 128, 64, mid_fill=pstore(range(2)))
    else:
        proj_gemm2(a, s, TO, DO, SRD_WO, S_SO, 1024, S_RING, oread, 4096, 'o', fb_base=(160 if o.g2_tail else 128),
                   stage_map=[(TO, 0, S_XB, 0), (TO, 8192, S_XB, 8192), (TO2, 0, S_R2, 0)], extra_vm=g2pre)
    a(smov(S(44), float(2.0**100)))
    for qt in range(4):
        a(I(f"v_cmp_gt_f32 vcc, s44, {LA[qt][0]}", 'valu', reads=[S(44), LA[qt][0]], writes=['vcc']))
        a(nop(3))
        a(I("s_mov_b64 s[56:57], vcc" if qt == 0 else "s_and_b64 s[56:57], s[56:57], vcc", 'salu', reads=['vcc'], writes=[S(56, 2), 'scc']))
    if o.moff:
        a(smov(S(44), float(2.0**(o.moff - 105))))
        for qt in range(4):
            a(I(f"v_cmp_le_f32 vcc, s44, {V(28 + qt)}", 'valu', reads=[S(44), V(28 + qt)], writes=['vcc']))
            a(nop(3))
            a(I("s_and_b64 s[56:57], s[56:57], vcc", 'salu', reads=['vcc'], writes=[S(56, 2), 'scc']))
    a(nop(7))
    a(valu('v_mov_b32', V(1), 0x1F8))
    for qt in range(4):
        a(I(f"v_cmp_class_f32 vcc, {O(0, qt)[0]}, v1", 'valu', reads=[O(0, qt)[0], V(1)], writes=['vcc']))
        a(nop(3))
        a(I("s_and_b64 s[56:57], s[56:57], vcc", 'salu', reads=['vcc'], writes=[S(56, 2), 'scc']))
    a(raw("s_cmp_eq_u64 s[56:57], -1"))
    a(raw("s_cselect_b32 s44, 0, 1", reads=['scc'], writes=[S(44)]))
    a(valu('v_mov_b32', V(2), S(44))); a(valu('v_mov_b32', V(1), S_XB))
    a(ds_write(1, V(1), V(2)))
    a(waitcnt(lgkm=0)); a(barrier())
    a(valu('v_mov_b32', V(1), XBASE))
    a(ds_read_b32(V(2), V(1))); a(ds_read_b32(V(3), V(1), 16384)); a(ds_read_b32(V(4), V(1), 32768)); a(ds_read_b32(V(5), V(1), 49152))
    a(valu('v_or_b32', V(2), V(2), V(3))); a(valu('v_or_b32', V(4), V(4), V(5))); a(valu('v_or_b32', V(2), V(2), V(4)))
    a(readfirstlane(S(44), V(2)))
    a(nop(3))
    a(I("s_andn2_b32 s44, s44, s6", 'salu', reads=[S(44), S_SLOW], writes=[S(44), 'scc']))
    a(raw("s_cbranch_scc1 L_k3_slow", 'branch'))
    a(label("L_k3_store"))
    s.extend(STP())
    if not o.g2_tail: s.extend(pstore(range(2, 4) if o.wot else range(4)))
    if o.g2_tail:
        gacc = lambda mt, st_: A(64 + (mt*4+st_)*4, 4)
        pfill = pstore(range(4))
        s.extend(g2_r(0))
        for n in range(14):
            rd = g2_r(n + 1) if n + 1 < 14 else []
            vm = (g2_w(n + 4) + g2_u(n + 4)) if n + 4 < 14 else []
            mf = [mfma16(gacc(mt, st_), gfa(n, mt), gfb(n & 1, st_), gacc(mt, st_) if n else 0) for mt in range(4) for st_ in range(4)]
            gaps = [[] for _ in range(16)]
            for k, ins in enumerate(rd): gaps[k].append(ins)
            g = 8
            for (ins, st_) in dma_ops_with_setup(vm):
                if ins.kind == 'dma':
                    gaps[g - 1] += st_; gaps[g].append(ins); g = min(15, g + 2)
            late = [i for i in vm if i.kind == 'vload' or (i.kind == 'salu' and 'm0' not in i.writes)]
            for k, m in enumerate(mf):
                a(m); s.extend(sort_gap(gaps[k]))
                if n >= o.ps_from and pfill:
                    for _ in range(2 if gaps[k] else 3):
                        if pfill: a(pfill.pop(0))
            s.extend(late)
        s.extend(pfill)
        a(raw("s_lshl_b32 s44, s24, 14", writes=[S(44)])); a(valu('v_add_u32', V(26), S(44), V(7)))
        for mt in range(4):
            for st_ in range(4): a(ds_write(4, V(26), gacc(mt, st_), off=(mt*4+st_)*1024))
        a(waitcnt(lgkm=0)); a(barrier())
        a(raw("s_lshl_b32 s44, s24, 10", writes=[S(44)])); a(valu('v_add_u32', V(27), S(44), V(7)))
        for mt in range(4):
            for w in range(4): a(ds_read_b128(V(192 + (mt*4+w)*4, 4), V(27), w*16384 + mt*4096))
        a(smov(S(44), -LOG2E)); a(valu("v_lshlrev_b32", V(18), 16, V(18)))
        a(raw("s_lshr_b32 s43, s47, 1", writes=[S_T])); a(raw("s_lshl_b32 s45, s46, 2", writes=[S(45)])); a(raw("s_add_u32 s43, s43, s45", writes=[S_T]))
        a(raw("s_lshl_b32 s43, s43, 2", writes=[S_T])); a(raw("s_and_b32 s45, s47, 1", writes=[S(45)])); a(raw("s_lshl_b32 s45, s45, 1", writes=[S(45)]))
        a(raw("s_add_u32 s43, s43, s45", writes=[S_T])); a(raw("s_lshl_b32 s43, s43, 2", writes=[S_T])); a(raw("s_add_u32 s43, s43, s24", writes=[S_T]))
        a(raw("s_lshl_b32 s43, s43, 10", writes=[S_T])); a(raw(f"s_add_u32 s43, s43, {WS_GATE}", writes=[S_T]))
        for mt in range(4):
            for r in range(4):
                P_ = [V(192 + (mt*4+w)*4 + r) for w in range(4)]; y = P_[0]; tt = V(2 + (r & 1))
                a(valu('v_add_f32', y, y, P_[1])); a(valu('v_add_f32', P_[2], P_[2], P_[3])); a(valu('v_add_f32', y, y, P_[2])); a(valu("v_add_f32", y, y, V(18)))
                a(valu('v_mul_f32', tt, S(44), y)); a(valu('v_exp_f32', tt, tt)); a(valu('v_add_f32', tt, 1.0, tt)); a(valu('v_rcp_f32', tt, tt)); a(valu('v_mul_f32', y, y, tt))
            q = V(40 + 4*(mt >> 1) + 2*(mt & 1), 2)
            a(valu('v_cvt_pk_bf16_f32', q[0], V(192 + mt*16), V(192 + mt*16 + 1))); a(valu('v_cvt_pk_bf16_f32', q[1], V(192 + mt*16 + 2), V(192 + mt*16 + 3)))
            if mt & 1:
                a(bstore(4, V(40 + 4*(mt >> 1), 4), V(7), SRD_W, S_T, mods="sc1")); a(sop('s_add_u32', S_T, S_T, 4096))
    if o.fuse_comb:
        SRD_X2 = S(28, 4); SRD_O = S(48, 4)
        s.extend(make_srd(SRD_X2, S(96, 2), 2 << 20)); s.extend(make_srd(SRD_O, S(100, 2) if o.g2_tail else S(98, 2), 2 << 20))
        a(valu('v_and_b32', V(1), 15, l)); a(raw("s_lshl_b32 s44, s26, 6", writes=[S(44)])); a(raw("s_lshl_b32 s45, s24, 4", writes=[S(45)]))
        a(raw("s_add_u32 s44, s44, s45", writes=[S(44)])); a(valu('v_add_u32', V(1), S(44), V(1))); a(valu('v_lshlrev_b32', V(1), 10, V(1)))
        a(valu('v_lshrrev_b32', V(2), 4, l)); a(valu('v_lshl_add_u32', V(1), V(2), 3, V(1)))
        a(raw("s_lshl_b32 s44, s25, 7", writes=[S(44)])); a(valu('v_add_u32', V(22), S(44), V(1)))
        XR = V(32, 8)
        for j in range(2):
            for t in range(2): a(bload(2, XR[4*j+2*t:4*j+2*t+2], V(22), SRD_X2, 0, off=64*j + 32*t))
        a(waitcnt(vm=4))
        a(barrier())
        if o.g2_tail: s.extend(arrive2(S_T64)); a(nop(1))
        s.extend(arrive2(S_QB))
        s.extend(STP())
        a(sop('s_add_u32', S(44), S_QB, 32)); a(raw("s_lshl_b32 s44, s44, 8", writes=[S(44)])); a(raw(f"s_add_u32 s44, s44, {WS_CNT}", writes=[S(44)]))
        a(valu('v_mov_b32', V(1), 0)); a(smov(S(45), 0))
        a(label("L_k3_cpoll"))
        a(bload(1, V(6), V(1), SRD_W, S(44), mods="sc1")); a(waitcnt(vm=0))
        a(readfirstlane(S(43), V(6))); a(nop(3))
        a(scmp('s_cmp_ge_u32', S(43), 16)); a(raw("s_cbranch_scc1 L_k3_cpollok", 'branch'))
        a(raw("s_sleep 2")); a(sop('s_add_u32', S(45), S(45), 1)); a(scmp('s_cmp_lt_u32', S(45), 0x80000)); a(raw("s_cbranch_scc1 L_k3_cpoll", 'branch'))
        a(label("L_k3_cpollok"))
        a(raw("s_lshl_b32 s42, s26, 2", writes=[S_SO])); a(raw("s_lshr_b32 s43, s25, 1", writes=[S_T])); a(raw("s_add_u32 s42, s42, s43", writes=[S_SO]))
        a(raw("s_lshl_b32 s42, s42, 2", writes=[S_SO])); a(raw("s_and_b32 s43, s25, 1", writes=[S_T])); a(raw("s_lshl_b32 s43, s43, 1", writes=[S_T]))
        a(raw("s_add_u32 s42, s42, s43", writes=[S_SO])); a(raw("s_lshl_b32 s42, s42, 2", writes=[S_SO])); a(raw("s_add_u32 s42, s42, s24", writes=[S_SO]))
        a(raw("s_lshl_b32 s42, s42, 10", writes=[S_SO]))
        a(raw(f"s_add_u32 s43, s42, {WS_GATE}", writes=[S_T])); a(raw(f"s_add_u32 s42, s42, {WS_PART}", writes=[S_SO]))
        PPj = lambda j, g: V(128 + (j*8 + g)*4, 4)
        GG = [V(192, 4), V(196, 4)]
        for j in range(2):
            a(bload(4, GG[j], V(7), SRD_W, S_T, mods="sc1")); a(sop('s_add_u32', S_T, S_T, 4096))
        for g in range(8):
            a(bload(4, PPj(0, g), V(7), SRD_W, S_SO, mods="sc1"))
            a(sop('s_add_u32', S(44), S_SO, 4096))
            a(bload(4, PPj(1, g), V(7), SRD_W, S(44), mods="sc1"))
            if g < 7: a(sop('s_add_u32', S_SO, S_SO, 32*64*1024))
        for j in range(2):
            R = [V(200 + 8*j + i) for i in range(8)]
            for k in range(8):
                q = k >> 1; hi = k & 1
                unp = lambda dst, src: valu('v_and_b32', dst, 0xffff0000, src) if hi else valu('v_lshlrev_b32', dst, 16, src)
                a(unp(R[k], PPj(j, 0)[q]))
                for g in range(1, 8):
                    tt = V(2 + (g & 1))
                    a(unp(tt, PPj(j, g)[q])); a(valu('v_add_f32', R[k], R[k], tt))
                a(unp(V(4), GG[j][q])); a(unp(V(5), XR[4*j+q]))
                a(valu('v_fma_f32', R[k], R[k], V(4), V(5)))
            OUTR = V(216 + 4*j, 4)
            for q in range(4): a(valu('v_cvt_pk_bf16_f32', OUTR[q], R[2*q], R[2*q+1]))
            a(bstore(2, OUTR[0:2], V(22), SRD_O, 0, off=64*j)); a(bstore(2, OUTR[2:4], V(22), SRD_O, 0, off=64*j + 32))
    a(waitcnt(vm=0))
    s.extend(STP())
    if getattr(o, 'diag_period', None) is not None: STP.force(len(o.diag_marks))
    if getattr(o, 'polldiag', False): STP.n = 16
    s.extend(STP.flush(S_WAVE))
    epi = s
    s = []; a = s.append
    M = [V(72 + i) for i in range(4)]
    a(label("L_k3_slow"))
    at.nozero = True
    a(smov(S_SLOW, 1))
    for r in range(128): a(valu('v_mov_b32', V(128 + r), 0))
    for qt in range(4):
        for r in range(4): a(valu('v_mov_b32', LA[qt][r], 0))
        a(valu('v_mov_b32', M[qt], 0xff800000))
    a(smov(S_TILE, 0)); a(smov(S(45), 32))
    a(label("L_k3_slowloop"))
    a(barrier())
    s.extend(at.kv_dma(0))
    a(waitcnt(vm=0)); a(barrier())
    for kh in range(2):
        s.extend(at.k_reads(0, kh)); s.extend(at.v_reads(0, kh))
        for c in range(2):
            for q2 in range(2):
                for t in range(2):
                    for i in range(4): a(mfma16(Sx(c, t, q2), Kf(t*4+i), Q(i, 2*c+q2), 0 if i == 0 else Sx(c, t, q2)))
            for q2 in range(2):
                qt = 2*c + q2; s0, s1 = Sx(c, 0, q2), Sx(c, 1, q2); m = V(4); t_ = V(5)
                a(valu('v_max3_f32', m, s0[0], s0[1], s0[2])); a(valu('v_max3_f32', m, m, s0[3], s1[0]))
                a(valu('v_max3_f32', m, m, s1[1], s1[2])); a(valu('v_max3_f32', m, m, s1[3], M[qt]))
                a(valu('v_mov_b32', t_, m)); a(permlane16_swap(m, t_)); a(valu('v_max_f32', m, m, t_))
                a(valu('v_mov_b32', t_, m)); a(permlane32_swap(m, t_)); a(valu('v_max_f32', m, m, t_))
                a(valu('v_sub_f32', t_, M[qt], m)); a(valu('v_exp_f32', t_, t_)); a(valu('v_mov_b32', M[qt], m))
                for dt in range(8):
                    for r in range(4): a(valu('v_mul_f32', O(dt, qt)[r], O(dt, qt)[r], t_))
                for r in range(4): a(valu('v_mul_f32', LA[qt][r], LA[qt][r], t_))
                for t in range(2):
                    sx = Sx(c, t, q2)
                    for r in range(4):
                        a(valu('v_sub_f32', sx[r], sx[r], m)); a(valu('v_exp_f32', sx[r], sx[r]))
                    a(valu('v_cvt_pk_bf16_f32', Pb[c][4*q2 + 2*t], sx[0], sx[1])); a(valu('v_cvt_pk_bf16_f32', Pb[c][4*q2 + 2*t + 1], sx[2], sx[3]))
            for m_ in at.pv_slot(0, kh, c):
                m_.rt = {}; a(m_)
    a(waitcnt(lgkm=0))
    a(sop('s_sub_u32', S(45), S(45), 1)); a(scmp('s_cmp_lg_u32', S(45), 0)); a(raw("s_cbranch_scc1 L_k3_slowloop", 'branch'))
    a(nop(15)); a(barrier())
    s.extend(wo_first())
    a(raw("s_branch L_k3_norm", 'branch'))
    for i_ in s:
        if hasattr(i_, 'rt'): i_.rt = {}
    slow, _, _ = auto_waits(s)
    slow = fix_hazards(slow, "slow")
    full = []
    for (name, seq) in seqs:
        if name == 32: full += pre_epi
        full += seq
    full += epi
    full, _, _ = auto_waits(full)
    errs = validate_tags(full)
    for e in errs[:10]: print("DATAFLOW", e, file=sys.stderr)
    parts = {}; cur = 'pro'; parts[cur] = []
    for ins in full:
        if ins.kind == 'label' and ins.text.startswith('@@'):
            cur = ins.text[2:-1]; parts[cur] = []
        else: parts[cur].append(ins)
    P = lambda j: parts[f'P{j}']
    txt = lambda j: [i.text for i in P(j)]
    def loop(first_j, n_iter, lbl, cnt):
        body = []
        for k in range(3):
            base = list(P(first_j + k))
            for it in range(1, n_iter):
                other = P(first_j + 3*it + k)
                assert len(other) == len(base), f"loop {lbl}: period {first_j+k} vs {first_j+3*it+k} length {len(base)} {len(other)}"
                for idx, (x, y) in enumerate(zip(base, other)):
                    if x.text != y.text:
                        assert x.kind == 'wait' and y.kind == 'wait' and (x.vm is None) == (y.vm is None) and (x.lgkm is None) == (y.lgkm is None), (lbl, x.text, y.text)
                        base[idx] = waitcnt(vm=None if x.vm is None else min(x.vm, y.vm), lgkm=None if x.lgkm is None else min(x.lgkm, y.lgkm))
            body += [comment(f"period {first_j+k} (+3n)")] + base
        body += [sop('s_sub_u32', cnt, cnt, 1), scmp('s_cmp_lg_u32', cnt, 0), raw(f"s_cbranch_scc1 {lbl}", 'branch')]
        errs = check_hazards(body, loop=True, name=lbl)
        for e in errs[:20]: print("HAZARD", e, file=sys.stderr)
        return [smov(cnt, n_iter), label(lbl)] + body
    out = fix_hazards(parts['pro'] + [comment("period 0")] + P(0), "pro")
    S_CNT = S(4)
    if getattr(o, 'noloop', False):
        allp = []
        for j in range(1, 33): allp += [comment(f"period {j}")] + P(j)
        out += fix_hazards(allp + parts['EPI'], "all")
        out += [raw("s_branch L_k3_end", 'branch')] + slow
        out.append(label("L_k3_end"))
        return emit(out)
    if o.side and o.g2_tail:
        out += loop(1, 5, "L_k3_loopA", S_CNT)
        mid = []
        for j in range(16, 19): mid += [comment(f"period {j}")] + P(j)
        out += fix_hazards(mid, "mid")
        out += loop(19, 3, "L_k3_loopB", S_CNT)
        tail = []
        for j in range(28, 33): tail += [comment(f"period {j}")] + P(j)
    elif o.side:
        out += loop(1, 5, "L_k3_loopA", S_CNT)
        mid = []
        for j in range(16, 22): mid += [comment(f"period {j}")] + P(j)
        out += fix_hazards(P(15)[-30:] + mid, "mid")[len(P(15)[-30:]):] if False else fix_hazards(mid, "mid")
        out += loop(22, 2, "L_k3_loopB", S_CNT)
        tail = []
        for j in range(28, 33): tail += [comment(f"period {j}")] + P(j)
    else:
        out += loop(1, 9, "L_k3_loopA", S_CNT)
        tail = []
        for j in range(28, 33): tail += [comment(f"period {j}")] + P(j)
    tm = []
    out += fix_hazards(tail + parts['EPI'], "tail")
    out += [raw("s_branch L_k3_end", 'branch')] + slow
    out.append(label("L_k3_end"))
    if getattr(o, 'verbose', False):
        for j in (2, 16, 17, 18, 21, 23, 29, 30):
            tot = 0; gap = None
            for i in P(j):
                if i.kind == 'mfma':
                    if gap is not None: tot += max(16, gap)
                    gap = 8
                elif gap is not None: gap += cost(i)
            print(f"; period {j}: est {tot + max(16, gap or 0)} cycles, {len(P(j))} instrs", file=sys.stderr)
    return emit(out)
if __name__ == "__main__":
    o = Opt(); o.verbose = True
    for kv in sys.argv[1:]:
        k, v = kv.split("="); setattr(o, k, eval(v))
    t = build(o); print(len(t.splitlines()))
```

```python
from k_common import *
from k3_attn import (NST, KBASE, VBASE, XBASE, SRD_K, SRD_V, SRD_W, SRD_WQ, SRD_WO, S_TILE, S_WOFF, S_WAVE, S_G, S_QB, QSCALE,
                     O, Q, Kf, Vf, Sb, Sx, NM, LA, Pb, ONES, KA, VA, DK, DV, addr_tr256, dma_off_256, proj_gemm)
from k2_gemm1 import tr_addr_128, dma_off_128, gelu, LOG2E
WS_GATE = 6 << 20
HMOD = 'sc1'

class Opt:
    barrier = True
    minfill = 8; maxfill = 8; early = 1.5
    sm_rel = 4; p_lead = 2; k_span = 1.0; k_lead = 6; bar_lead = 5
    timing = False; prefetch = True; side = True; fuse_ln = True; fuse_comb = True
    stamp_after = (0, 16, 17, 21, 28, 30, 32)
    def __init__(self, **kw): self.__dict__.update(kw)

SRD_W1 = S(48, 4); SRD_W2 = S(52, 4); SRD_DBG = S(56, 4); SRD_US = S(60, 4)
S_T64 = S(46); S_DT = S(47); S_SR = S(40); S_SKIP = S(37); S_N = S(38); S_SA = S(39); S_SB = S(36); S_XB = S(27); S_KVSKIP = S(23); S_TMP = S(43)
TA = [V(14 + i) for i in range(4)]; DA = [V(18 + i) for i in range(4)]; DB = [V(22 + i) for i in range(4)]
def sacc(i, j): return A(128 + (i*4+j)*4, 4)
def sfa(h, t): return A(192 + 16*h + 4*t, 4)
def sfb(h, t): return A(224 + 16*h + 4*t, 4) if h else A(208 + 4*t, 4)
def g2a(h, t): return A(192 + 16*h + 4*t, 4)
def g2b(h, t): return A(224 + 16*h + 4*t, 4)

class Attn:
    def __init__(self, opt): self.o = opt
    def qk_slot(self, j, kh, c):
        out = []
        for q2 in range(2):
            for t in range(2):
                for i in range(4):
                    qt = 2*c + q2; sx = Sx(c, t, q2)
                    m = mfma16(sx, Kf(t*4+i), Q(i, qt), NM[qt] if i == 0 else sx)
                    tag(m, wt=('S', j, kh, c), rt=[(Kf(t*4+i), ('K', j, kh))] + ([(sx, ('S', j, kh, c))] if i else []))
                    out.append(m)
        return out
    def pv_slot(self, j, kh, c):
        out = []
        z = (j == 0 and kh == 0 and not getattr(self, 'nozero', False))
        for q2 in range(2):
            p = Pb[c][4*q2:4*q2+4]; qt = 2*c + q2
            for dt in range(8):
                m = mfma16(O(dt, qt), Vf(dt), p, 0 if z else O(dt, qt))
                tag(m, rt=[(Vf(dt), ('V', j, kh)), (p, ('P', j, kh, c))]); out.append(m)
            m = mfma16(LA[qt], ONES, p, 0 if z else LA[qt]); tag(m, rt=[(p, ('P', j, kh, c))]); out.append(m)
        return out
    def sm_list(self, j, kh, c):
        regs = []
        for q2 in range(2):
            for t in range(2):
                for r in range(4): regs.append((Sx(c, t, q2)[r], Pb[c][4*q2 + 2*t + (r >> 1)]))
        ops = []
        for n, (s, p) in enumerate(regs):
            ops.append((n, tag(valu('v_exp_f32', s, s), wt=('E', j, kh, c), rt=[(s, ('S', j, kh, c))])))
            if n & 1:
                sp = regs[n-1][0]
                ops.append((n + 1.04, tag(valu('v_cvt_pk_bf16_f32', p, sp, s), wt=('P', j, kh, c), rt=[(s, ('E', j, kh, c)), (sp, ('E', j, kh, c))])))
        return [i for (t, i) in sorted(ops, key=lambda x: x[0])]
    def k_reads(self, j, kh):
        st = j % NST
        return [tag(ds_read_b128(Kf(n), KA[n & 3], KBASE + st*16384 + kh*8192 + (n >> 2)*4096), wt=('K', j, kh)) for n in range(8)]
    def v_reads(self, j, kh):
        st = j % NST
        return [tag(ds_read_tr(Vf(dt)[2*u:2*u+2], VA[dt], st*16384 + kh*8192 + u*4096), wt=('V', j, kh)) for dt in range(8) for u in range(2)]
    def kv_dma(self, st, skip=False):
        ops = []
        for n in range(8):
            if n in (0, 4):
                base = (KBASE if n == 0 else VBASE) + st*16384
                ops.append(sop('s_add_u32', 'm0', S_WOFF, base))
                if skip: ops.append(sop('s_max_u32', 'm0', 'm0', S_KVSKIP))
                ops.append(nop(0))
            if n < 4: ops.append(dma(DK[n], SRD_K, S_TILE, off=n*1024))
            else: ops.append(dma(DV[n & 1], SRD_V, S_TILE, off=(n-4)*1024))
        ops.append(sop('s_add_u32', S_TILE, S_TILE, 16384))
        return ops

    def period(self, j, first=False, last_drain=False, kv=True, kvskip=False, side_groups=(), streams=(), pre=(), post=(), vm_end=None, side_dma_list=None):
        o = self.o
        hp, hc = not first, not last_drain
        base = [self.pv_slot(j-1, 1, 0) if hp else None, self.qk_slot(j, 0, 0) if hc else None,
                self.pv_slot(j-1, 1, 1) if hp else None, self.qk_slot(j, 0, 1) if hc else None,
                self.pv_slot(j, 0, 0) if hc else None, self.qk_slot(j, 1, 0) if hc else None,
                self.pv_slot(j, 0, 1) if hc else None, self.qk_slot(j, 1, 1) if hc else None]
        lens = [18, 16]*4
        mf = []; starts = []; ends = []; side_pos = []
        for s in range(8):
            starts.append(len(mf))
            mf += base[s] if base[s] is not None else [None]*lens[s]
            ends.append(len(mf))
            for (aft, g) in side_groups:
                if aft == s:
                    side_pos.append(len(mf)); mf += g
        T = len(mf)
        self.T = T
        ops = []
        CUT0 = o.cut0; CUT1 = o.cut1
        def sm_stream(jj, kh, c, t_lo, t_hi, tpv, i0=0, i1=None, release=None):
            raw_ops = self.sm_list(jj, kh, c); n = len(raw_ops); i1 = n if i1 is None else i1
            pv = self.pv_slot(jj, kh, c); res = []
            for idx in range(i0, i1):
                ins = raw_ops[idx]
                t = t_lo + (t_hi - t_lo) * (idx - i0) / max(1, (i1 - i0)); dl = 1e9
                if ins.op == 'v_cvt_pk_bf16_f32' and tpv is not None:
                    preg = list(ins.writes)[0]
                    dl = tpv + min(q for q, m in enumerate(pv) if preg in m.reads) - o.p_lead
                res.append([t, dl, ins])
            for idx in range(len(res) - 2, -1, -1): res[idx][1] = min(res[idx][1], res[idx+1][1])
            return [Op(ins, t, release=(t_lo if release is None else release), deadline=min(dl, T - 1), stream='sm') for (t, dl, ins) in res]
        rel = o.sm_rel
        if hp:
            ops += sm_stream(j-1, 1, 0, 0, rel, starts[0], i0=CUT0, release=0)
            ops += sm_stream(j-1, 1, 1, rel, ends[1] + rel, starts[2], i0=CUT1)
        if hc:
            ops += sm_stream(j, 0, 0, ends[1] + rel, ends[3] + rel, starts[4])
            ops += sm_stream(j, 0, 1, ends[3] + rel, ends[5] + rel, starts[6])
            ops += sm_stream(j, 1, 0, ends[5] + rel, T, None, i1=CUT0)
            if CUT1: ops += sm_stream(j, 1, 1, T - 1, T, None, i1=CUT1)
        if hc:
            for (kh, ks_slot, vs_slot) in ((0, 0, 2), (1, 4, 6)):
                qk = self.qk_slot(j, kh, 0)
                for n, ins in enumerate(self.k_reads(j, kh)):
                    fu = min(q for q, m in enumerate(qk) if ins.writes & m.reads)
                    t = starts[ks_slot] + n * 18 * o.k_span / 8
                    rl = (ends[ks_slot-1] if ks_slot else -1)
                    ops.append(Op(ins, max(t, rl), release=rl - 1 if ks_slot else -1, deadline=starts[ks_slot+1] + fu - o.k_lead, stream='k'))
                pv = self.pv_slot(j, kh, 0); pvo = self.pv_slot(j, kh, 1); info = []
                for ins in self.v_reads(j, kh):
                    lu = max(q for q, m in enumerate(pvo) if ins.writes & m.reads)
                    fu = min(q for q, m in enumerate(pv) if ins.writes & m.reads)
                    nxt = starts[vs_slot+2] if vs_slot + 2 < 8 else T + 18
                    dl = nxt + fu - o.k_lead
                    if kh == 1: dl = min(dl, T - 1 - o.bar_lead)
                    info.append((starts[vs_slot] + lu + 1, dl, ins))
                info.sort(key=lambda x: x[0])
                w0 = info[0][0]; w1 = min(x[1] for x in info)
                for n, (r, dl, ins) in enumerate(info):
                    ops.append(Op(ins, max(r, w0 + (w1 - w0) * n / len(info)), release=r, deadline=dl, stream='v'))
        dstream = []
        if kv and hc:
            lst = dma_ops_with_setup(self.kv_dma((j + 2) % NST, skip=kvskip))
            pos = o.kv_pos if not side_dma_list else o.kv_pos2; n = 0
            for (ins, st) in lst:
                if ins.kind == 'dma':
                    t = pos[n]; n += 1
                else: t = pos[min(n, 7)] if n < 8 else pos[7]
                dstream.append((t, 0.0, ins, st))
        if side_dma_list:
            (lst, f0, f1, fr) = side_dma_list
            lst = dma_ops_with_setup(lst)
            nd = sum(1 for (i, _) in lst if i.kind == 'dma'); n = 0
            for (ins, st) in lst:
                dstream.append((f0 + (f1 - f0) * n / max(1, nd), fr, ins, st))
                if ins.kind == 'dma': n += 1
        for (t, fr, ins, st) in dstream:
            op = Op(ins, t * T, release=fr * T, stream='dma'); op.setup = st
            ops.append(op)
        for (name, lst) in streams:
            for (ft, fr, ins) in lst:
                ops.append(Op(ins, ft * T, release=fr * T, stream=name))
        seq, fills = list_schedule2(mf, ops, o.minfill, o.maxfill, ahead=o.early)
        self.fills = fills
        seq = list(pre) + expand(seq) + list(post)
        if getattr(o, 'diag_period', None) == j:
            marks = sorted(set(starts + side_pos + [e for e in ends] + [T - 1]))
            marks = [m for m in marks if m < T]
            new = []; k = 0
            for ins in seq:
                if ins.kind == 'mfma':
                    kk = mf.index(ins)
                    if kk in marks:
                        r = S(o.diag_base + 2*len(o.diag_marks), 2); o.diag_marks.append(kk)
                        new.append(raw(f"s_memtime {r}", 'salu', writes=[r]))
                new.append(ins)
            seq = new
        if hc:
            nvm = sum(1 for i in seq if i.kind in ('dma', 'vload', 'vstore', 'vatomic')) if vm_end is None else vm_end
            seq.append(waitcnt(vm=nvm, lgkm=0))
            if o.barrier: seq.append(barrier())
        return seq
Opt.g1_rd = (0.03, 0.3); Opt.g1_dm = (0.62, 0.95)
Opt.pf_w1_at = 8; Opt.pf_w1 = False; Opt.pf_w2 = True
Opt.prescale = False; Opt.pf_kv = False; Opt.ps_from = 10; Opt.g2_tail = False; Opt.wot = False; Opt.wo_early = True; Opt.fm64 = False; Opt.g1_pos = 1; Opt.moff = 100
Opt.cut0 = 21; Opt.cut1 = 0
Opt.kv_pos = [0.147, 0.184, 0.22, 0.25, 0.647, 0.684, 0.72, 0.75]
Opt.kv_pos2 = [0.08, 0.12, 0.16, 0.20, 0.26, 0.30, 0.34, 0.38]

def side_dma(srdA, soA, strideA, srdB, soB, strideB, offsA, offsB, stage_tag, skip, modsB=""):
    o = []
    src = S_SR
    if skip:
        o.append(sop('s_max_u32', S(5), S_SR, S_SKIP)); src = S(5)
    o.append(smov('m0', src)); o.append(nop(0))
    for i in range(4): o.append(lds_dep(dma(offsA[i], srdA, soA, off=i*1024), need={f'sR{stage_tag}'}, mark={f'sL{stage_tag}'}))
    o.append(sop('s_add_u32', soA, soA, strideA))
    o.append(sop('s_add_u32', 'm0', src, 4096)); o.append(nop(0))
    for i in range(4): o.append(lds_dep(dma(offsB[i], srdB, soB, off=i*1024, mods=modsB), need={f'sR{stage_tag}'}, mark={f'sL{stage_tag}'}))
    o.append(sop('s_add_u32', soB, soB, strideB))
    return o
def spread(lst, f0, f1, rel=None):
    n = sum(1 for i in lst if cost(i) > 0) or 1
    out = []; k = 0
    for ins in lst:
        t = f0 + (f1 - f0) * k / n
        out.append((t, f0 if rel is None else rel, ins))
        if cost(ins) > 0: k += 1
    return out
def toggle_side():
    return [valu('v_xor_b32', TA[t], 8192, TA[t]) for t in range(4)] + [sop('s_xor_b32', S_SR, S_SR, 8192)]

def g1_parts(n, in_loop):
    st = n & 1
    rd = []
    for t in range(4):
        for u in range(2): rd.append(lds_dep(ds_read_tr(sfa(0, t)[2*u:2*u+2], TA[t], u*2048), need={f'sL{st}'}, mark={f'sR{st}'}))
    for t in range(4):
        for u in range(2): rd.append(lds_dep(ds_read_tr(sfb(0, t)[2*u:2*u+2], TA[t], 4096 + u*2048), need={f'sL{st}'}, mark={f'sR{st}'}))
    mf = [mfma16(sacc(ft, dt), sfa(0, ft), sfb(0, dt), sacc(ft, dt) if n else 0) for ft in range(4) for dt in range(4)]
    dm = []
    if in_loop:
        dm = [scmp('s_cmp_gt_u32', S_N, 13), I(f"s_cselect_b32 {S_SKIP}, 0x30000, 0", 'salu', reads=['scc'], writes=[S_SKIP]), sop('s_add_u32', S_N, S_N, 1)]
        dm += side_dma(SRD_W1, S_SA, 32*3584, SRD_W, S_SB, 32*1024, DA, DB, st, True, modsB=HMOD)
    elif n + 2 <= 15:
        dm = [sop('s_add_u32', S_N, S_N, 1)] + side_dma(SRD_W1, S_SA, 32*3584, SRD_W, S_SB, 32*1024, DA, DB, st, False, modsB=HMOD)
    return rd, mf, dm
def g2_parts(i):
    st = i & 1
    rd = []
    for h in range(2):
        for t in range(4):
            for u in range(2): rd.append(lds_dep(ds_read_tr(g2b(h, t)[2*u:2*u+2], TA[t], h*4096 + u*2048), need={f'sL{st}'}, mark={f'sR{st}'}))
    mfs = [[mfma16(sacc(mt, s_), g2a(h, mt), g2b(h, s_), sacc(mt, s_) if (i or h) else 0) for mt in range(4) for s_ in range(4)] for h in range(2)]
    return rd, mfs
def g2_dma(st, skip):
    return side_dma(SRD_W2, S_SA, 32*4096, SRD_W2, S_SA, 32*4096, DA, DA, st, skip)
def g2_uloads():
    o = []
    for h in range(2):
        for t in range(4): o.append(bload(4, g2a(h, t), DB[t], SRD_W, S_SB, mods="sc1"))
        o.append(sop('s_add_u32', S_SB, S_SB, 1024))
    return o

def proj_gemm2(a, s, TA_, DW, srd, SOFF, stride, S_RING, bread, uoff, name, last_pre=None, last_fill=None, dma_gap0=3, fb_base=0, hooks=None, fill=None, stage_map=None, extra_vm=None):
    NS = 3; NK = 16
    def fa(p, mt): return A(64 + 32*p + 4*mt, 4)
    def fb(p, qt): return A(fb_base + 16*p + 4*qt, 4)
    if stage_map is None: stage_map = [(TA_, st*8192, S_RING, st*8192) for st in range(NS)]
    def dma_step(n):
        o = []; st = n % NS
        (_, _, sb, madd) = stage_map[st]
        for h in range(2):
            o.append(sop('s_add_u32', 'm0', sb, madd + h*4096))
            for i in range(4):
                o.append(lds_dep(dma(DW[i], srd, SOFF, off=i*1024), need={f'{name}R{st}'}, mark={f'{name}L{st}'}))
            o.append(sop('s_add_u32', SOFF, SOFF, 16*stride))
        return o
    def reads(n):
        o = []; st = n % NS; p = n & 1
        (ta, imm, _, _) = stage_map[st]
        for qt in range(4): o.append(bread(n, qt, fb(p, qt)))
        for mt in range(8):
            for u in range(2):
                o.append(lds_dep(ds_read_tr(fa(p, mt)[2*u:2*u+2], ta[mt], imm + u*uoff), need={f'{name}L{st}'}, mark={f'{name}R{st}'}))
        return o
    s.extend(reads(0))
    for n in range(NK):
        rd = reads(n + 1) if n + 1 < NK else []
        dm = dma_step(n + 3) if n + 3 < NK else []
        if n == NK - 1:
            if last_pre: s.extend(last_pre)
            dm = list(last_fill or [])
        if extra_vm and n in extra_vm: dm = dm + extra_vm[n]
        if hooks and n in hooks: s.extend(hooks[n])
        mf = [mfma16(O(mt, qt), fa(n & 1, mt), fb(n & 1, qt), O(mt, qt) if n else 0) for mt in range(8) for qt in range(4)]
        gaps = [[] for _ in range(32)]
        g = dma_gap0
        for (ins, st_) in dma_ops_with_setup(dm):
            if ins.kind in ('dma', 'vload'):
                gaps[g - 1] += st_; gaps[g].append(ins); g = min(31, g + 2) if g + 2 <= 31 else 31
            else: gaps[min(31, g - 1)].append(ins) if g > dma_gap0 else gaps[0].append(ins)
        ev = [k for k in range(32) if not any(i.kind in ('dma', 'vload') for i in gaps[k])]
        for k, ins in enumerate(rd): gaps[ev[min(len(ev) - 1, k // 2)]].append(ins)
        for k, m in enumerate(mf):
            a(m); s.extend(sort_gap(gaps[k]))
            if fill:
                take = 0
                while fill and take < 2:
                    ins = fill.pop(0); a(ins)
                    if cost(ins) > 0: take += 1
    assert not fill

def proj_gemm3(a, s, srd, SOFF, VL, bread, abase, bbase, mid_fill=None, mods="sc1"):
    NK = 16; NT = 2*NK
    def fa(t, m): return A(abase + 16*(t % P3_SETS) + 4*m, 4)
    def fb(p, qt): return A(bbase + 16*p + 4*qt, 4)
    rdB = lambda t: [bread(t % NK, qt, fb(t & 1, qt)) for qt in range(4)]
    s.extend(rdB(0))
    fill = list(mid_fill or [])
    for t in range(NT):
        h, n = t // NK, t % NK
        rd = rdB(t + 1) if t + 1 < NT else []
        ld = proj3_loads(srd, SOFF, VL, t + P3_DEPTH, abase, mods) if t + P3_DEPTH < NT else []
        mf = [mfma16(O(4*h + m, qt), fa(t, m), fb(t & 1, qt), O(4*h + m, qt) if n else 0) for m in range(4) for qt in range(4)]
        gaps = [[] for _ in range(16)]
        g = 3
        for ins in ld:
            if ins.kind == 'vload':
                gaps[min(15, g)].append(ins); g += 3
            else: gaps[min(15, max(0, g - 1))].append(ins)
        for k, ins in enumerate(rd): gaps[1 + 3*k].append(ins)
        for k, m in enumerate(mf):
            a(m); s.extend(sort_gap(gaps[k]))
            if t >= NT - P3_DEPTH and fill:
                for _ in range(1 if gaps[k] else 2):
                    if fill: a(fill.pop(0))
                while fill and cost(fill[0]) == 0: a(fill.pop(0))
    s.extend(fill)
P3_SETS = 8; P3_DEPTH = 7
def proj3_loads(srd, SOFF, VL, t, abase, mods="sc1"):
    o = []
    for m in range(4): o.append(bload(4, A(abase + 16*(t % P3_SETS) + 4*m, 4), VL, srd, SOFF, off=m*1024, mods=mods))
    o.append(sop('s_add_u32', SOFF, SOFF, 32768) if (t % 16) != 15 else sop('s_sub_u32', SOFF, SOFF, 15*32768 - 4096))
    return o

def build(opt=None):
    o = opt or Opt()
    at = Attn(o)
    STP = Stamps(o.timing, 3); STP.cyc = getattr(o, 'cyc', False)
    s = []; a = s.append
    l = V(0)
    s.extend(STP())
    if getattr(o, 'dbgtime', False): a(raw('s_memrealtime s[94:95]', 'smem', writes=[S(94, 2)]))
    a(sload(S(4, 2), ARG_K)); a(sload(S(6, 2), ARG_V)); a(sload(S(22, 2), ARG_WS))
    a(sload(S(36, 2), ARG_WQ)); a(sload(S(56, 2), ARG_WO))
    a(sload(S(62, 2), ARG_W1)); a(sload(S(60, 2), ARG_W2)); a(sload(S(58, 2), ARG_DBG))
    if o.fuse_ln: a(sload(S(100, 2), ARG_X))
    a(raw("s_cmp_ge_u32 s2, 256")); a(raw("s_cbranch_scc1 L_k3_end", 'branch'))
    a(valu('v_lshrrev_b32', V(1), 6, V(0)))
    a(readfirstlane(S_WAVE, V(1)))
    a(valu('v_and_b32', l, 63, l))
    a(waitcnt(lgkm=0))
    a(raw("s_and_b32 s25, s2, 7", writes=[S_G])); a(raw("s_lshr_b32 s26, s2, 3", writes=[S_QB]))
    S_RING = S(41); S_SO = S(42); S_T = S(43)
    SRD_X = S(96, 4)
    XP = V(48, 64)
    if o.fuse_ln:
        s.extend(make_srd(SRD_X, S(100, 2), 2 << 20))
        a(valu('v_and_b32', V(1), 15, l)); a(valu('v_lshlrev_b32', V(1), 10, V(1)))
        a(valu('v_lshrrev_b32', V(2), 4, l)); a(valu('v_lshl_add_u32', V(1), V(2), 4, V(1)))
        a(raw("s_lshl_b32 s42, s26, 6", writes=[S_SO])); a(raw("s_lshl_b32 s43, s24, 4", writes=[S_T]))
        a(raw("s_add_u32 s42, s42, s43", writes=[S_SO])); a(raw("s_lshl_b32 s42, s42, 10", writes=[S_SO]))
        for i in range(16): a(bload(4, XP[4*i:4*i+4], V(1), SRD_X, S_SO, off=64*i))
    s.extend(make_srd(SRD_WQ, S(36, 2), 512*4096*2))
    a(valu('v_lshlrev_b32', V(7), 4, l))
    if o.prefetch:
        a(raw("s_lshl_b32 s42, s26, 4", writes=[S_SO])); a(raw("s_lshl_b32 s43, s24, 2", writes=[S_T]))
        a(raw("s_add_u32 s42, s42, s43", writes=[S_SO])); a(raw("s_lshl_b32 s42, s42, 13", writes=[S_SO]))
        a(raw("s_lshl_b32 s43, s25, 10", writes=[S_T])); a(raw("s_add_u32 s42, s42, s43", writes=[S_SO]))
        for n in range(4):
            a(bload(4, A(192 + 4*n, 4), V(7), SRD_WQ, S_SO)); a(sop('s_add_u32', S_SO, S_SO, 8192))
    a(raw("s_lshl_b32 s27, s25, 19", writes=[S(27)]))
    a(raw("s_sub_u32 s40, 0x400000, s27", writes=[S(40)]))
    s.extend(make_srd(SRD_K, S(4, 2), S(40), add=S(27))); s.extend(make_srd(SRD_V, S(6, 2), S(40), add=S(27)))
    s.extend(make_srd(SRD_W, S(22, 2), WS_END))
    s.extend(make_srd(SRD_WO, S(56, 2), 4096*512*2))
    a(raw("s_lshr_b32 s46, s26, 3", writes=[S_T64])); a(raw("s_lshl_b32 s46, s46, 3", writes=[S_T64])); a(raw("s_add_u32 s46, s46, s25", writes=[S_T64]))
    a(raw("s_and_b32 s47, s26, 7", writes=[S_DT]))
    a(raw("s_cmp_lt_u32 s46, 28"))
    a(raw(f"s_cselect_b32 s44, {2048*1792*2}, 0", writes=[S(44)]))
    a(raw(f"s_cselect_b32 s45, {WS_END}, 0", writes=[S(45)]))
    s.extend(make_srd(SRD_W1, S(62, 2), S(44)))
    s.extend(make_srd(SRD_W2, S(60, 2), 1792*2048*2))
    s.extend(make_srd(SRD_DBG, S(58, 2), 256))
    s.extend(make_srd(SRD_US, S(22, 2), S(45)))
    if o.pf_kv:
        a(valu('v_and_b32', V(2), 15, l)); a(raw("s_lshl_b32 s44, s26, 4", writes=[S(44)])); a(valu('v_add_u32', V(2), S(44), V(2))); a(valu('v_lshlrev_b32', V(2), 7, V(2)))
        a(I("v_cmp_gt_u32 vcc, 16, v0", 'valu', reads=[V(0)], writes=['vcc'])); a(nop(1))
        a(I(f"v_cndmask_b32 v2, -1, v2, vcc", 'valu', reads=[V(2), 'vcc'], writes=[V(2)]))
        a(bload(1, A(209), V(2), SRD_K, 0)); a(bload(1, A(210), V(2), SRD_V, 0))
    a(raw("s_lshl_b32 s21, s24, 12", writes=[S_WOFF]))
    a(raw("s_mul_i32 s41, s24, 24576", writes=[S_RING]))
    for r in range(4): a(valu('v_mov_b32', ONES[r], 0x3F803F80))
    if not o.fuse_ln:
        a(raw("s_lshl_b32 s42, s26, 6", writes=[S_SO])); a(raw("s_lshl_b32 s43, s24, 4", writes=[S_T]))
        a(raw("s_add_u32 s42, s42, s43", writes=[S_SO])); a(raw("s_lshl_b32 s42, s42, 10", writes=[S_SO]))
        a(raw("s_lshl_b32 s43, s24, 14", writes=[S_T])); a(raw(f"s_add_u32 s43, s43, {XBASE}", writes=[S_T]))
        for n in range(16):
            if n % 4 == 0: a(smov('m0', S_T))
            a(valu('v_xor_b32', V(14 + (n & 3)), n << 4, V(7)))
            a(lds_dep(dma(V(14 + (n & 3)), SRD_W, S_SO, off=(n & 3)*1024), mark={'XN'}))
            if n % 4 == 3:
                a(sop('s_add_u32', S_SO, S_SO, 4096)); a(sop('s_add_u32', S_T, S_T, 4096))
    PTA = [V(32 + i) for i in range(8)]; XA = [V(40 + i) for i in range(4)]; DW = [V(44 + i) for i in range(4)]
    dma_off_256(a, l, DW, 8192, 'q', S_T)
    a(raw("s_lshl_b32 s42, s25, 2", writes=[S_SO])); a(raw("s_add_u32 s42, s42, s24", writes=[S_SO]))
    a(raw("s_lshl_b32 s42, s42, 8", writes=[S_SO]))
    def wq_stage(n):
        o_ = []
        for h in range(2):
            o_ += [sop('s_add_u32', 'm0', S_RING, n*8192 + h*4096), nop(0)]
            for i in range(4): o_.append(lds_dep(dma(DW[i], SRD_WQ, S_SO, off=i*1024), need={f'qR{n}'}, mark={f'qL{n}'}))
            o_.append(sop('s_add_u32', S_SO, S_SO, 16*8192))
        return o_
    a(valu('v_mov_b32', V(6), S_RING))
    addr_tr256(a, l, PTA, V(6), 8)
    a(valu('v_and_b32', V(1), 15, l)); a(valu('v_lshrrev_b32', V(2), 4, l))
    a(valu('v_lshlrev_b32', V(3), 10, V(1))); a(valu('v_add_u32', V(3), XBASE, V(3)))
    for k in range(4):
        a(valu('v_add_u32', V(4), 4*k, V(2))); a(valu('v_xor_b32', V(4), V(4), V(1)))
        a(valu('v_lshl_add_u32', XA[k], V(4), 4, V(3)))
    a(valu('v_lshrrev_b32', V(2), 4, l)); a(valu('v_and_b32', V(3), 15, l))
    for i in range(4):
        a(valu('v_add_u32', V(4), 4*i, V(2))); a(valu('v_xor_b32', V(4), V(4), V(3)))
        a(valu('v_lshlrev_b32', V(4), 4, V(4))); a(valu('v_lshl_add_u32', KA[i], V(3), 8, V(4)))
    a(valu('v_lshrrev_b32', V(4), 2, V(3))); a(valu('v_and_b32', V(5), 3, l))
    a(valu('v_lshl_add_u32', V(7), V(2), 2, V(4)))
    a(valu('v_and_b32', V(1), 7, V(7))); a(valu('v_lshlrev_b32', V(1), 1, V(1)))
    a(valu('v_lshlrev_b32', V(7), 8, V(7)))
    a(valu('v_and_b32', V(6), 1, V(5))); a(valu('v_lshl_add_u32', V(7), V(6), 3, V(7)))
    a(valu('v_add_u32', V(7), VBASE, V(7)))
    a(valu('v_lshrrev_b32', V(6), 1, V(5)))
    for dt in range(8):
        a(valu('v_add_u32', V(5), 2*dt, V(6))); a(valu('v_xor_b32', V(5), V(5), V(1)))
        a(valu('v_lshl_add_u32', VA[dt], V(5), 4, V(7)))
    a(valu('v_lshlrev_b32', V(5), 8, V(2))); a(valu('v_add_u32', V(5), S_WOFF, V(5)))
    for n in range(4):
        a(valu('v_add_u32', V(6), 4*n, V(2))); a(valu('v_xor_b32', V(6), V(6), V(3)))
        a(valu('v_lshl_add_u32', DK[n], V(6), 4, V(5)))
    for n in range(2):
        a(valu('v_add_u32', V(6), 4*n, V(2))); a(valu('v_lshlrev_b32', V(6), 1, V(6)))
        a(valu('v_xor_b32', V(6), V(6), V(3))); a(valu('v_lshl_add_u32', DV[n], V(6), 4, V(5)))
    a(raw("s_lshl_b32 s27, s24, 14", writes=[S_XB])); a(raw(f"s_add_u32 s27, s27, {XBASE}", writes=[S_XB]))
    a(smov(S_SR, S_XB))
    a(valu('v_mov_b32', V(26), S_XB))
    tr_addr_128(a, l, TA, V(26), V(1), V(2), V(3), V(4))
    dma_off_128(a, l, DA, 3584, V(1), V(2), V(3), s_tmp=S_T)
    dma_off_128(a, l, DB, 1024, V(1), V(2), V(3), s_tmp=S_T)
    a(raw("s_lshl_b32 s44, s24, 9", writes=[S(44)]))
    a(raw("s_mul_i32 s39, s44, 3584", writes=[S_SA])); a(raw("s_lshl_b32 s45, s46, 7", writes=[S(45)])); a(raw("s_add_u32 s39, s39, s45", writes=[S_SA]))
    a(raw("s_lshl_b32 s36, s44, 10", writes=[S_SB])); a(raw("s_lshl_b32 s45, s47, 7", writes=[S(45)])); a(raw("s_add_u32 s36, s36, s45", writes=[S_SB]))
    a(raw(f"s_add_u32 s36, s36, {WS_H}", writes=[S_SB]))
    a(smov(S_N, 0)); a(smov(S_SKIP, 0))
    if getattr(o, 'fine', False): s.extend(STP())
    s.extend(wq_stage(0))
    if getattr(o, 'fine', False):
        a(lds_dep(nop(0), need=set(XP.regs()))); s.extend(STP())
    def pk(op, d, x, y, z=None, mods=""):
        srcs = [x, y] + ([z] if z is not None else [])
        return I(f"{op} {d}, " + ", ".join(str(t) for t in srcs) + (" " + mods if mods else ""), 'valu', reads=srcs, writes=[d], op=op)
    if o.fuse_ln:
        F = lambda i, e: V(128 + 8*i + e)
        D1 = V(28, 4); D2 = V(4, 4)
        for i in range(16):
            a(mfma16(D1, ONES, XP[4*i:4*i+4], D1 if i else 0)); a(mfma16(D2, XP[4*i:4*i+4], XP[4*i:4*i+4], D2 if i else 0))
            for q in range(4):
                a(valu('v_lshlrev_b32', F(i, 2*q), 16, XP[4*i+q])); a(valu('v_and_b32', F(i, 2*q+1), 0xffff0000, XP[4*i+q]))
        a(valu('v_and_b32', V(1), 3, l))
        for r in (2, 1, 0):
            a(I(f"v_cmp_eq_u32 vcc, {r}, v1", 'valu', reads=[V(1)], writes=['vcc']))
            a(I(f"v_cndmask_b32 v7, v7, {D2[r]}, vcc", 'valu', reads=[V(7), D2[r], 'vcc'], writes=[V(7)]))
        a(valu('v_and_b32', V(1), 15, l)); a(valu('v_lshrrev_b32', V(2), 2, V(1)))
        a(valu('v_lshl_add_u32', V(2), V(2), 4, V(1))); a(valu('v_lshlrev_b32', V(2), 2, V(2)))
        a(I("ds_bpermute_b32 v3, v2, v7", 'ds_read', reads=[V(2), V(7)], writes=[V(3)]))
        MEAN = V(28); RS = V(2); NB = V(3)
        a(valu('v_mul_f32', MEAN, 1.0/512, MEAN))
        a(valu('v_mul_f32', V(3), 1.0/512, V(3)))
        a(valu('v_fma_f32', V(3), '-v28', MEAN, V(3)))
        a(valu('v_max_f32', V(3), 0, V(3)))
        a(valu('v_add_f32', V(3), 1e-5, V(3)))
        a(valu('v_rsq_f32', RS, V(3)))
        if o.prescale: a(valu('v_mul_f32', RS, QSCALE, RS))
        a(valu('v_mul_f32', NB, MEAN, RS)); a(valu('v_sub_f32', NB, 0, NB))
        for i in range(16):
            for e in range(8): a(valu('v_fma_f32', F(i, e), F(i, e), RS, NB))
        a(valu('v_and_b32', V(4), 15, l)); a(valu('v_lshrrev_b32', V(5), 4, l))
        a(raw("s_lshl_b32 s43, s24, 14", writes=[S_T])); a(raw(f"s_add_u32 s43, s43, {XBASE}", writes=[S_T]))
        a(valu('v_lshlrev_b32', V(6), 10, V(4))); a(valu('v_add_u32', V(6), S_T, V(6)))
        WA = [V(28 + k) for k in range(4)]
        for k in range(4):
            a(valu('v_add_u32', V(7), 4*k, V(5))); a(valu('v_xor_b32', V(7), V(7), V(4))); a(valu('v_lshl_add_u32', WA[k], V(7), 4, V(6)))
        for i in range(16):
            for q in range(4): a(valu('v_cvt_pk_bf16_f32', XP[4*i+q], F(i, 2*q), F(i, 2*q+1)))
            a(ds_write(4, WA[i & 3], XP[4*i:4*i+4], off=(i >> 2)*256))
        if getattr(o, 'fine', False): s.extend(STP())
        a(waitcnt(lgkm=0)); a(barrier())
        if getattr(o, 'fine', False): s.extend(STP())
    else:
        a(waitcnt(vm=8)); a(barrier())
    s.extend(wq_stage(1)); s.extend(wq_stage(2))
    if o.fuse_ln:
        s_main, a_main = s, a
        ln2 = []; s = ln2; a = ln2.append
        R0 = [V(64 + i) for i in range(8)]; R1 = [V(72 + i) for i in range(8)]
        PK = [V(80, 4), V(84, 4)]
        a(raw("s_lshl_b32 s44, s25, 3", writes=[S(44)])); a(raw("s_lshl_b32 s45, s24, 1", writes=[S(45)])); a(raw("s_add_u32 s44, s44, s45", writes=[S(44)]))
        for k in range(2):
            a(sop('s_add_u32', S(45), S(44), k)); a(sop('s_and_b32', S(5), S(45), 15)); a(raw("s_lshl_b32 s5, s5, 4", writes=[S(5)]))
            a(raw("s_lshl_b32 s45, s45, 10", writes=[S(45)])); a(raw(f"s_add_u32 s45, s45, {XBASE}", writes=[S(45)]))
            a(valu('v_lshlrev_b32', V(94), 4, l)); a(valu('v_xor_b32', V(94), S(5), V(94))); a(valu('v_add_u32', V(94), S(45), V(94)))
            a(ds_read_b128(PK[k], V(94)))
        RR = [R0, R1]; SM = [V(88), V(90)]; TT = [V(89), V(91)]; QQ = [V(92), V(93)]
        for k in range(2):
            for q in range(4):
                a(valu('v_lshlrev_b32', RR[k][2*q], 16, PK[k][q])); a(valu('v_and_b32', RR[k][2*q+1], 0xffff0000, PK[k][q]))
        def both(f):
            x0, x1 = f(0), f(1)
            for u, v_ in zip(x0, x1): a(u); a(v_)
        both(lambda k: [valu('v_add_f32', SM[k], RR[k][0], RR[k][1])] + [valu('v_add_f32', SM[k], SM[k], RR[k][e]) for e in range(2, 8)])
        both(lambda k: wave_sum(SM[k], TT[k]))
        both(lambda k: [valu('v_mul_f32', SM[k], 1.0/512, SM[k])] + [valu('v_sub_f32', RR[k][e], RR[k][e], SM[k]) for e in range(8)])
        both(lambda k: [valu('v_mul_f32', QQ[k], RR[k][0], RR[k][0])] + [valu('v_fmac_f32', QQ[k], RR[k][e], RR[k][e], dst_read=True) for e in range(1, 8)])
        both(lambda k: wave_sum(QQ[k], TT[k]))
        both(lambda k: [valu('v_mov_b32', TT[k], 1e-5 * (QSCALE*QSCALE if o.prescale else 1.0)), valu('v_fmac_f32', TT[k], 1.0/512, QQ[k], dst_read=True), valu('v_rsq_f32', TT[k], TT[k])] +
                       [valu('v_mul_f32', RR[k][e], RR[k][e], TT[k]) for e in range(8)] + [valu('v_cvt_pk_bf16_f32', PK[k][q], RR[k][2*q], RR[k][2*q+1]) for q in range(4)])
        a(raw("s_lshl_b32 s45, s26, 6", writes=[S(45)])); a(raw("s_add_u32 s45, s45, s44", writes=[S(45)])); a(raw("s_lshl_b32 s45, s45, 10", writes=[S(45)]))
        a(raw(f"s_add_u32 s45, s45, {WS_H}", writes=[S(45)]))
        a(valu('v_lshlrev_b32', V(94), 4, l))
        a(lds_dep(bstore(4, PK[0], V(94), SRD_W, S(45), mods="sc1"), mark={'HS'}))
        a(lds_dep(bstore(4, PK[1], V(94), SRD_W, S(45), off=1024, mods="sc1"), mark={'HS'}))
        a(valu('v_lshlrev_b32', V(95), 25, l)); a(valu('v_mov_b32', V(96), 0))
        a(raw("s_and_b32 s45, s2, 127", writes=[S(45)])); a(raw("s_lshl_b32 s45, s45, 8", writes=[S(45)])); a(raw(f"s_add_u32 s45, s45, {WS_CNT}", writes=[S(45)]))
        a(lds_dep(bstore(1, V(96), V(95), SRD_W, S(45), mods="sc1"), mark={'HS'}))
        s, a = s_main, a_main
    s.extend(STP())
    def xread(n, qt, dst): return ds_read_b128(dst, XA[n & 3], (n >> 2)*256 + qt*16384)
    kv0 = [smov(S_TILE, 0)] + at.kv_dma(0)
    later = []
    if o.side: later += side_dma(SRD_W1, S_SA, 32*3584, SRD_W, S_SB, 32*1024, DA, DB, 0, False, modsB=HMOD) + [sop('s_xor_b32', S_SR, S_SR, 8192)]
    later += at.kv_dma(1)
    if o.side: later += side_dma(SRD_W1, S_SA, 32*3584, SRD_W, S_SB, 32*1024, DA, DB, 1, False, modsB=HMOD) + [sop('s_xor_b32', S_SR, S_SR, 8192)]
    hooks = {}
    last_pre = [waitcnt(lgkm=0)]
    if o.fuse_ln:
        arrive = [lds_dep(nop(0), need={'HS'}), barrier(),
                  valu('v_mov_b32', V(4), 1), valu('v_lshlrev_b32', V(5), 25, l),
                  raw("s_and_b32 s44, s2, 3", writes=[S(44)]), raw("s_lshl_b32 s44, s44, 6", writes=[S(44)]),
                  raw("s_cmp_eq_u32 s24, 0"), raw("s_cselect_b32 s44, s44, 0x1000", reads=['scc'], writes=[S(44)]),
                  I(f"buffer_atomic_add v4, v5, {SRD_DBG}, s44 offen sc1", 'vatomic', reads=[V(4), V(5), SRD_DBG, S(44)], writes=[])]
        hooks[6] = arrive
        if o.prefetch and o.side and o.pf_w1:
            hooks[o.pf_w1_at] = [raw("s_lshl_b32 s44, s47, 2", writes=[S(44)]), raw("s_add_u32 s44, s44, s24", writes=[S(44)]), raw("s_lshl_b32 s44, s44, 6", writes=[S(44)]),
                        valu('v_add_u32', V(2), S(44), l), smov(S(44), 3584), valu('v_mul_lo_u32', V(2), V(2), S(44)),
                        raw("s_lshl_b32 s44, s46, 7", writes=[S(44)]), bload(1, A(208), V(2), SRD_W1, S(44))]
        hooks[12] = [valu('v_and_b32', V(1), 3, l), valu('v_lshlrev_b32', V(1), 6, V(1)), bload(1, V(6), V(1), SRD_DBG, 0, mods="sc1")]
        chk = lambda: [I("v_cmp_le_u32 vcc, 64, v6", 'valu', reads=[V(6)], writes=['vcc']), nop(3), raw("s_cmp_eq_u64 vcc, -1", reads=['vcc'])]
        last_pre += [smov(S(45), 0), label("L_k3_hpoll")] + chk() + [raw("s_cbranch_scc1 L_k3_hpollok", 'branch'),
                     raw("s_sleep 4"), bload(1, V(6), V(1), SRD_DBG, 0, mods="sc1"), waitcnt(vm=0),
                     sop('s_add_u32', S(45), S(45), 1), scmp('s_cmp_lt_u32', S(45), 0x40000), raw("s_cbranch_scc1 L_k3_hpoll", 'branch'), label("L_k3_hpollok")]
    last_pre += [barrier()]
    proj_gemm2(a, s, PTA, DW, SRD_WQ, S_SO, 8192, S_RING, xread, 1024, 'q', last_pre=last_pre, last_fill=kv0, hooks=hooks, fill=(ln2 if o.fuse_ln else None))
    s.extend(STP())
    a(sload(S(96, 2), ARG_B1)); a(sload(S(98, 2), ARG_B2))
    a(smov(S(44), QSCALE))
    qpost = []
    for i in range(4):
        for qt in range(4):
            x, y = O(2*i, qt), O(2*i+1, qt)
            b_ = qpost.append
            if not (o.prescale and o.fuse_ln):
                for r in range(4):
                    b_(valu('v_mul_f32', x[r], S(44), x[r])); b_(valu('v_mul_f32', y[r], S(44), y[r]))
            T4 = V(48 + 4*((i*4+qt) & 1), 4)
            X0, X1, Y0, Y1 = T4[0], T4[1], T4[2], T4[3]
            b_(valu('v_cvt_pk_bf16_f32', X0, x[0], x[1])); b_(valu('v_cvt_pk_bf16_f32', X1, x[2], x[3]))
            b_(valu('v_cvt_pk_bf16_f32', Y0, y[0], y[1])); b_(valu('v_cvt_pk_bf16_f32', Y1, y[2], y[3]))
            b_(permlane32_swap(X0, Y0)); b_(permlane32_swap(X1, Y1))
            b_(permlane16_swap(X0, Y0)); b_(permlane16_swap(X1, Y1))
            q = Q(i, qt)
            b_(valu('v_accvgpr_write_b32', q[0], X0)); b_(valu('v_accvgpr_write_b32', q[1], X1))
            b_(valu('v_accvgpr_write_b32', q[2], Y0)); b_(valu('v_accvgpr_write_b32', q[3], Y1))
    grp = group_dma(later)
    step = max(1, len(qpost) // (len(grp) + 1)); gi = 0
    for k, ins in enumerate(qpost):
        a(ins)
        if k % step == step - 1 and gi < len(grp):
            s.extend(expand([grp[gi]])); gi += 1
            while gi < len(grp) and not isinstance(grp[gi], Grp):
                a(grp[gi]); gi += 1
    for g_ in grp[gi:]: s.extend(expand([g_]))
    s.extend(STP())
    a(waitcnt(vm=(24 if o.side else 8))); a(barrier())
    MX = [V(18 + 0), V(19), V(20), V(21)] if False else [V(28), V(29), V(30), V(31)]
    for kh in range(2 if o.fm64 else 1):
        s.extend(at.k_reads(0, kh))
        for c in range(2):
            for q2 in range(2):
                for t in range(2):
                    for i in range(4): a(mfma16(Sx(c, t, q2), Kf(t*4+i), Q(i, 2*c+q2), 0 if i == 0 else Sx(c, t, q2)))
        for qt in range(4):
            c, q2 = qt >> 1, qt & 1
            s0, s1 = Sx(c, 0, q2), Sx(c, 1, q2); m = MX[qt]
            if kh == 0: a(valu('v_max3_f32', m, s0[0], s0[1], s0[2]))
            else: a(valu('v_max3_f32', m, s0[0], s0[1], m)); a(valu('v_max_f32', m, m, s0[2]))
            a(valu('v_max3_f32', m, m, s0[3], s1[0])); a(valu('v_max3_f32', m, m, s1[1], s1[2])); a(valu('v_max_f32', m, m, s1[3]))
    for qt in range(4):
        m = MX[qt]; t = V(5)
        a(valu('v_mov_b32', t, m)); a(permlane16_swap(m, t)); a(valu('v_max_f32', m, m, t))
        a(valu('v_mov_b32', t, m)); a(permlane32_swap(m, t)); a(valu('v_max_f32', m, m, t))
        for r in range(4): a(valu('v_sub_f32', NM[qt][r], float(-o.moff), m))
    s.extend(STP())
    pro = s
    B1 = S(28, 4); B2 = S(32 - 4, 4)
    def scratch_write():
        o_ = [valu('v_lshlrev_b32', V(27), 4, l), valu('v_add_u32', V(26), S_XB, V(27))]
        for i in range(4):
            for j in range(4): o_.append(ds_write(4, V(26), sacc(i, j), off=(i*4+j)*1024))
        o_ += [raw("s_lshl_b32 s43, s24, 10", writes=[S_TMP]), raw(f"s_add_u32 s43, s43, {XBASE}", writes=[S_TMP]), valu('v_add_u32', V(27), S_TMP, V(27))]
        return o_
    PS = [[V(18, 2), V(20, 2), V(22, 2), V(24, 2)], [V(28, 2), V(30, 2), V(2, 2), V(4, 2)]]
    def unit_reads(u):
        i, h = u >> 1, u & 1
        return [ds_read_b64(PS[u & 1][w], V(27), w*16384 + i*4096 + 8*h) for w in range(4)]
    def unit_sum(u, e):
        P_ = PS[u & 1]; x = P_[3][e]
        return [valu('v_add_f32', P_[0][e], P_[0][e], P_[1][e]), valu('v_add_f32', x, x, P_[2][e]), valu('v_add_f32', x, x, P_[0][e])], x
    per = {}
    def side_spec(j):
        kw = dict(first=(j == 0), last_drain=(j == 32), kv=(j <= 29))
        if not o.side: return kw
        if j <= 15:
            rd, mf, dm = g1_parts(j, in_loop=(j >= 1))
            kw['side_groups'] = [(5, mf)] if o.g1_pos == 0 else ([(3, mf[:8]), (5, mf[8:])] if o.g1_pos == 1 else [(7, mf)] if o.g1_pos == 2 else [(1, mf[:4]), (3, mf[4:8]), (5, mf[8:12]), (6, mf[12:])])
            if getattr(o, 'x_noread', False): rd = []
            if getattr(o, 'x_nodma', False): dm = [i for i in dm if i.kind != 'dma' and 'm0' not in i.writes]
            kw['streams'] = [('srd', spread(rd, o.g1_rd[0], o.g1_rd[1]))]
            if dm: kw['side_dma_list'] = (dm, o.g1_dm[0], o.g1_dm[1], 0.5)
            kw['post'] = toggle_side()
        elif j == 16:
            pre = make_srd(B1, S(96, 2), 1792*2)
            bl = [valu('v_lshrrev_b32', V(1), 4, l), valu('v_lshlrev_b32', V(1), 3, V(1)), raw("s_lshl_b32 s44, s46, 7", writes=[S(44)])]
            bl += [bload(2, A(192 + 2*ft, 2), V(1), B1, S(44), off=32*ft) for ft in range(4)]
            kw['pre'] = pre
            pf = []
            if o.prefetch and o.pf_w2 and not o.g2_tail:
                pf = [raw("s_mul_i32 s44, s47, 224", writes=[S(44)]), raw("s_mul_i32 s45, s24, 56", writes=[S(45)]), raw("s_add_u32 s44, s44, s45", writes=[S(44)]),
                      valu('v_add_u32', V(2), S(44), l), valu('v_lshlrev_b32', V(2), 12, V(2)), raw("s_lshl_b32 s45, s46, 7", writes=[S(45)]),
                      bload(1, A(200), V(2), SRD_W2, S(45))]
            if o.wot:
                pf += [raw("s_lshl_b32 s3, s25, 4", writes=[S(3)]), raw("s_lshr_b32 s5, s26, 1", writes=[S(5)]), raw("s_add_u32 s3, s3, s5", writes=[S(3)]),
                       raw("s_lshl_b32 s3, s3, 15", writes=[S(3)]), raw("s_and_b32 s5, s26, 1", writes=[S(5)]), raw("s_lshl_b32 s5, s5, 9", writes=[S(5)]),
                       raw("s_add_u32 s3, s3, s5", writes=[S(3)]), raw("s_lshl_b32 s5, s24, 7", writes=[S(5)]), raw("s_add_u32 s3, s3, s5", writes=[S(3)]),
                       valu('v_and_b32', V(3), 31, l), valu('v_lshlrev_b32', V(3), 10, V(3)), bload(1, A(201), V(3), SRD_WO, S(3))]
            kw['streams'] = [('sw', spread(scratch_write(), 0.1, 0.7)), ('sb', spread(bl, 0.05, 0.1)), ('spf', [(0.15, 0.12, i) for i in pf])]
        elif j == 17:
            comp = [smov(S(45), -2.0*0.7978845608028654*LOG2E*0.044715), valu('v_mov_b32', V(1), -2.0*0.7978845608028654*LOG2E)]
            comp += [raw("s_lshl_b32 s43, s47, 2", writes=[S_TMP]), raw("s_add_u32 s43, s43, s24", writes=[S_TMP]), raw("s_mul_i32 s43, s43, 56", writes=[S_TMP]),
                     raw("s_lshl_b32 s39, s46, 1", writes=[S_SA]), raw("s_add_u32 s43, s43, s39", writes=[S_TMP]), raw("s_lshl_b32 s43, s43, 10", writes=[S_TMP]),
                     raw(f"s_add_u32 s43, s43, {WS_U}", writes=[S_TMP]), valu('v_lshlrev_b32', V(26), 4, l)]
            OUTA = A(240, 8)
            comp += unit_reads(0)
            for u in range(8):
                ft, h = u >> 1, u & 1
                if u + 1 < 8: comp += unit_reads(u + 1)
                comp.append(valu('v_accvgpr_read_b32', V(6), A(192 + 2*ft + h)))
                xs = []
                for e in range(2):
                    sm_, x = unit_sum(u, e); comp += sm_; xs.append(x)
                    comp.append(valu('v_and_b32', V(7), 0xffff0000, V(6)) if e else valu('v_lshlrev_b32', V(7), 16, V(6)))
                    comp.append(valu('v_add_f32', x, x, V(7)))
                    comp += [valu('v_mul_f32', V(7), x, x), valu('v_fma_f32', V(7), V(7), S(45), V(1)), valu('v_mul_f32', V(7), V(7), x), valu('v_exp_f32', V(7), V(7)),
                             valu('v_add_f32', V(7), 1.0, V(7)), valu('v_rcp_f32', V(7), V(7)), valu('v_mul_f32', x, x, V(7))]
                comp += [valu('v_cvt_pk_bf16_f32', V(6), xs[0], xs[1]), valu('v_accvgpr_write_b32', OUTA[u], V(6))]
                if u in (3, 7): comp.append(lds_dep(bstore(4, OUTA[u-3:u+1], V(26), SRD_US, S_TMP, off=(u >> 2)*1024, mods="sc1"), mark={'US'}))
            kw['streams'] = [('scomp', spread(comp, 0.0, 0.98))]
        elif o.g2_tail and j >= 18:
            if j == 18:
                sig = [valu('v_mov_b32', V(4), 1), valu('v_lshlrev_b32', V(5), 25, l),
                       raw("s_lshl_b32 s44, s47, 2", writes=[S(44)]), raw("s_add_u32 s44, s44, s24", writes=[S(44)]), raw("s_lshl_b32 s44, s44, 8", writes=[S(44)]),
                       raw(f"s_add_u32 s44, s44, {WS_CNT}", writes=[S(44)]),
                       lds_dep(I(f"buffer_atomic_add v4, v5, {SRD_US}, s44 offen sc1", 'vatomic', reads=[V(4), V(5), SRD_US, S(44)], writes=[]), need={'US'})]
                kw['streams'] = [('ssig', [(0.6, 0.5, i) for i in sig])]
            elif j == 28:
                pl = [valu('v_and_b32', V(1), 3, l), valu('v_lshlrev_b32', V(1), 8, V(1)), raw("s_lshl_b32 s43, s47, 10", writes=[S_TMP]),
                      raw(f"s_add_u32 s43, s43, {WS_CNT}", writes=[S_TMP]), bload(1, V(6), V(1), SRD_W, S_TMP, mods="sc1")]
                pf = []
                if o.prefetch and o.pf_w2:
                    pf = [raw("s_mul_i32 s44, s47, 224", writes=[S(44)]), raw("s_mul_i32 s45, s24, 56", writes=[S(45)]), raw("s_add_u32 s44, s44, s45", writes=[S(44)]),
                          valu('v_add_u32', V(2), S(44), l), valu('v_lshlrev_b32', V(2), 12, V(2)), raw("s_lshl_b32 s45, s46, 7", writes=[S(45)]),
                          bload(1, A(200), V(2), SRD_W2, S(45))]
                if o.prefetch:
                    pf += [raw("s_lshl_b32 s44, s25, 5", writes=[S(44)]), raw("s_add_u32 s44, s44, s26", writes=[S(44)]), raw("s_lshl_b32 s44, s44, 2", writes=[S(44)]),
                           raw("s_add_u32 s44, s44, s24", writes=[S(44)]), raw("s_lshl_b32 s44, s44, 12", writes=[S(44)]), valu('v_lshlrev_b32', V(3), 4, l)]
                    pf += [bload(4, A(240 + 4*n, 4), V(3), SRD_WO, S(44), off=n*1024) for n in range(4)]
                kw['streams'] = [('spoll', [(0.05, 0.0, i) for i in pl]), ('spf', spread(pf, 0.45, 0.9, rel=0.42))]
                chk = lambda: [I("v_cmp_le_u32 vcc, 28, v6", 'valu', reads=[V(6)], writes=['vcc']), nop(3), raw("s_cmp_eq_u64 vcc, -1", reads=['vcc'])]
                kw['post'] = [smov(S(45), 0), label("L_k3_poll")] + chk() + [raw("s_cbranch_scc1 L_k3_pollok", 'branch'),
                              raw("s_sleep 4"), bload(1, V(6), V(1), SRD_W, S_TMP, mods="sc1"), waitcnt(vm=0),
                              sop('s_add_u32', S(45), S(45), 1), scmp('s_cmp_lt_u32', S(45), 0x40000), raw("s_cbranch_scc1 L_k3_poll", 'branch'), label("L_k3_pollok")]
        elif j == 18:
            su = []
            dma_off_128(su.append, l, DA, 4096, V(1), V(2), V(3), s_tmp=S_TMP)
            su += [valu('v_lshlrev_b32', DB[0], 4, l)] + [valu('v_add_u32', DB[t], 56*1024, DB[t-1]) for t in range(1, 4)]
            su += [raw("s_mul_i32 s39, s24, 448*4096", writes=[S_SA]), raw("s_lshl_b32 s43, s46, 7", writes=[S_TMP]), raw("s_add_u32 s39, s39, s43", writes=[S_SA]),
                   raw("s_mul_i32 s36, s47, 4*56", writes=[S_SB]), raw("s_mul_i32 s43, s24, 14", writes=[S_TMP]), raw("s_add_u32 s36, s36, s43", writes=[S_SB]),
                   raw("s_lshl_b32 s36, s36, 10", writes=[S_SB]), raw(f"s_add_u32 s36, s36, {WS_U}", writes=[S_SB]), smov(S_N, 0), smov(S_SKIP, 0)]
            sig = [valu('v_mov_b32', V(4), 1), valu('v_lshlrev_b32', V(5), 25, l),
                   raw("s_lshl_b32 s44, s47, 2", writes=[S(44)]), raw("s_add_u32 s44, s44, s24", writes=[S(44)]), raw("s_lshl_b32 s44, s44, 8", writes=[S(44)]),
                   raw(f"s_add_u32 s44, s44, {WS_CNT}", writes=[S(44)]),
                   lds_dep(I(f"buffer_atomic_add v4, v5, {SRD_US}, s44 offen sc1", 'vatomic', reads=[V(4), V(5), SRD_US, S(44)], writes=[]), need={'US'})]
            kw['streams'] = [('ssu', spread(su, 0.05, 0.55)), ('ssig', [(0.6, 0.5, i) for i in sig])]
            if o.wot:
                WD = [V(28 + i) for i in range(4)]
                wsu = []
                dma_off_128(wsu.append, l, WD, 1024, V(6), V(7), V(26), s_tmp=S(5))
                wsu += [raw("s_lshl_b32 s3, s25, 4", writes=[S(3)]), raw("s_lshr_b32 s5, s26, 1", writes=[S(5)]), raw("s_add_u32 s3, s3, s5", writes=[S(3)]),
                        raw("s_lshl_b32 s3, s3, 15", writes=[S(3)]), raw("s_and_b32 s5, s26, 1", writes=[S(5)]), raw("s_lshl_b32 s5, s5, 9", writes=[S(5)]),
                        raw("s_add_u32 s3, s3, s5", writes=[S(3)]), raw("s_lshl_b32 s5, s24, 7", writes=[S(5)]), raw("s_add_u32 s3, s3, s5", writes=[S(3)])]
                kw['streams'].append(('swsu', spread(wsu, 0.0, 0.12)))
                dl = [sop('s_add_u32', 'm0', S_SR, 8192), nop(0)] + [lds_dep(dma(WD[i], SRD_WO, S(3), off=i*1024), need={'sR1'}, mark={'sL1'}) for i in range(4)]
                kw['side_dma_list'] = (dl, 0.42, 0.55, 0.2)
        elif j == 19:
            st = g2_dma(0, False) + [sop('s_xor_b32', S_SR, S_SR, 8192)] + g2_dma(1, False) + [sop('s_xor_b32', S_SR, S_SR, 8192)]
            kw['side_dma_list'] = (st, 0.42, 0.95, 0.0)
            if o.wot:
                rd = [lds_dep(ds_read_tr(A(192 + 4*t + 2*u, 2), TA[t], 8192 + u*2048), need={'sL1'}, mark={'sR1'}) for t in range(4) for u in range(2)]
                ad = [raw("s_lshl_b32 s3, s25, 4", writes=[S(3)]), raw("s_lshr_b32 s5, s26, 1", writes=[S(5)]), raw("s_add_u32 s3, s3, s5", writes=[S(3)]),
                      raw("s_lshl_b32 s3, s3, 5", writes=[S(3)]), raw("s_and_b32 s5, s26, 1", writes=[S(5)]), raw("s_lshl_b32 s5, s5, 4", writes=[S(5)]),
                      raw("s_add_u32 s3, s3, s5", writes=[S(3)]), raw("s_lshl_b32 s5, s24, 2", writes=[S(5)]), raw("s_add_u32 s3, s3, s5", writes=[S(3)]),
                      raw("s_lshl_b32 s3, s3, 10", writes=[S(3)]), raw(f"s_add_u32 s3, s3, {WS_WOT}", writes=[S(3)]), valu('v_lshlrev_b32', V(26), 4, l)]
                stw = [bstore(4, A(192 + 4*t, 4), V(26), SRD_W, S(3), off=t*1024, mods="sc1") for t in range(4)]
                kw['streams'] = [('swr', spread(rd, 0.50, 0.60, rel=0.48) + [(0.61, 0.0, i) for i in ad] + spread(stw, 0.64, 0.8, rel=0.62))]
                kw['side_dma_list'] = (st, 0.42, 0.97, 0.0)
        elif j == 20:
            pl = [valu('v_and_b32', V(1), 3, l), valu('v_lshlrev_b32', V(1), 8, V(1)), raw("s_lshl_b32 s43, s47, 10", writes=[S_TMP]),
                  raw(f"s_add_u32 s43, s43, {WS_CNT}", writes=[S_TMP]), bload(1, V(6), V(1), SRD_W, S_TMP, mods="sc1")]
            kw['streams'] = [('spoll', [(0.80, 0.7, i) for i in pl])]
            if o.prefetch and not o.wot:
                extra = [raw("s_lshl_b32 s44, s25, 5", writes=[S(44)]), raw("s_add_u32 s44, s44, s26", writes=[S(44)]), raw("s_lshl_b32 s44, s44, 2", writes=[S(44)]),
                         raw("s_add_u32 s44, s44, s24", writes=[S(44)]), raw("s_lshl_b32 s44, s44, 12", writes=[S(44)])]
                extra += [bload(4, A(240 + 4*n, 4), DB[0], SRD_WO, S(44), off=n*1024) for n in range(4)]
                kw['streams'].append(('spf', spread(extra, 0.42, 0.55)))
            chk = lambda: [I("v_cmp_le_u32 vcc, 28, v6", 'valu', reads=[V(6)], writes=['vcc']), nop(3), raw("s_cmp_eq_u64 vcc, -1", reads=['vcc'])]
            dg = (STP() if getattr(o, 'polldiag', False) else [])
            kw['post'] = dg + [smov(S(45), 0), label("L_k3_poll")] + chk() + [raw("s_cbranch_scc1 L_k3_pollok", 'branch'),
                          raw("s_sleep 4"), bload(1, V(6), V(1), SRD_W, S_TMP, mods="sc1"), waitcnt(vm=0),
                          sop('s_add_u32', S(45), S(45), 1), scmp('s_cmp_lt_u32', S(45), 0x40000), raw("s_cbranch_scc1 L_k3_poll", 'branch'), label("L_k3_pollok")] + ([smov(S(94), S(45))] if getattr(o, 'polldiag', False) else [])
            kw['vm_end'] = 0
        elif j == 21:
            if o.wot:
                kw['pre'] = [valu('v_mov_b32', V(4), 1), valu('v_lshlrev_b32', V(5), 25, l), sop('s_add_u32', S(44), S_G, 64), raw("s_lshl_b32 s44, s44, 8", writes=[S(44)]),
                             raw(f"s_add_u32 s44, s44, {WS_CNT}", writes=[S(44)]), raw("s_cmp_eq_u32 s24, 0"), raw(f"s_cselect_b32 s44, s44, {WS_END}", reads=['scc'], writes=[S(44)]),
                             I(f"buffer_atomic_add v4, v5, {SRD_W}, s44 offen sc1", 'vatomic', reads=[V(4), V(5), SRD_W, S(44)], writes=[])]
            z = [valu('v_accvgpr_write_b32', A(128 + r), 0) for r in range(64)]
            kw['streams'] = [('sul', spread(g2_uloads(), 0.05, 0.3)), ('sz', spread(z, 0.1, 0.95))]
        elif 22 <= j <= 28:
            i = j - 22
            rd, mfs = g2_parts(i if i else 1)
            rd, _ = g2_parts(i)
            kw['side_groups'] = [(3, mfs[0]), (5, mfs[1])]
            stl = [('srd', spread(rd, 0.02, 0.36))]
            if j <= 27:
                dm = [scmp('s_cmp_gt_u32', S_N, 4), I(f"s_cselect_b32 {S_SKIP}, 0x30000, 0", 'salu', reads=['scc'], writes=[S_SKIP]), sop('s_add_u32', S_N, S_N, 1)]
                dm += g2_dma(i & 1, True)
                kw['side_dma_list'] = (dm, 0.45, 0.78, 0.42)
                stl += [('sul', spread(g2_uloads(), 0.82, 0.98, rel=0.80))]
            kw['streams'] = stl
            kw['post'] = toggle_side()
        elif j == 29:
            pre = make_srd(B1, S(98, 2), 2048*2)
            bl = [valu('v_and_b32', V(1), 15, l), raw("s_lshl_b32 s44, s46, 6", writes=[S(44)]), raw("s_lshl_b32 s45, s24, 4", writes=[S(45)]),
                  raw("s_add_u32 s44, s44, s45", writes=[S(44)]), valu('v_add_u32', V(1), S(44), V(1)), valu('v_lshlrev_b32', V(1), 1, V(1)), bload_ushort(V(1), V(1), B1)]
            kw['pre'] = pre
            kw['streams'] = [('sw', spread(scratch_write(), 0.1, 0.7)), ('sb', spread(bl, 0.05, 0.1))]
        elif j == 30:
            comp = [smov(S(44), -LOG2E), valu('v_lshlrev_b32', V(1), 16, V(1))]
            comp += [raw("s_lshr_b32 s43, s47, 1", writes=[S_TMP]), raw("s_lshl_b32 s45, s46, 2", writes=[S(45)]), raw("s_add_u32 s43, s43, s45", writes=[S_TMP]),
                     raw("s_lshl_b32 s43, s43, 2", writes=[S_TMP]), raw("s_and_b32 s45, s47, 1", writes=[S(45)]), raw("s_lshl_b32 s45, s45, 1", writes=[S(45)]),
                     raw("s_add_u32 s43, s43, s45", writes=[S_TMP]), raw("s_lshl_b32 s43, s43, 2", writes=[S_TMP]), raw("s_add_u32 s43, s43, s24", writes=[S_TMP]),
                     raw("s_lshl_b32 s43, s43, 10", writes=[S_TMP]), raw(f"s_add_u32 s43, s43, {WS_GATE}", writes=[S_TMP]), valu('v_lshlrev_b32', V(26), 4, l)]
            OUTA = A(240, 8)
            comp += unit_reads(0)
            for u in range(8):
                if u + 1 < 8: comp += unit_reads(u + 1)
                xs = []
                for e in range(2):
                    sm_, y = unit_sum(u, e); comp += sm_; xs.append(y)
                    comp += [valu('v_add_f32', y, y, V(1)), valu('v_mul_f32', V(7), S(44), y), valu('v_exp_f32', V(7), V(7)), valu('v_add_f32', V(7), 1.0, V(7)),
                             valu('v_rcp_f32', V(7), V(7)), valu('v_mul_f32', y, y, V(7))]
                comp += [valu('v_cvt_pk_bf16_f32', V(6), xs[0], xs[1]), valu('v_accvgpr_write_b32', OUTA[u], V(6))]
                if u in (3, 7):
                    comp.append(bstore(4, OUTA[u-3:u+1], V(26), SRD_W, S_TMP, mods=("sc1" if o.fuse_comb else "")))
                    comp.append(sop('s_add_u32', S_TMP, S_TMP, 4096))
            kw['streams'] = [('scomp', spread(comp, 0.0, 0.98))]
        return kw
    DO = [V(14 + i) for i in range(4)]
    TO = [V(64 + i) for i in range(8)]; TO2 = [V(72 + i) for i in range(8)]
    S_SLOW = S(6); S_R2 = S(7)
    def wo_setup():
        s_ = []; a_ = s_.append
        dma_off_256(a_, l, DO, 1024, 'o', S_T)
        a_(raw("s_lshl_b32 s42, s25, 19", writes=[S_SO])); a_(raw("s_lshl_b32 s43, s24, 8", writes=[S_T]))
        a_(raw("s_add_u32 s42, s42, s43", writes=[S_SO]))
        a_(raw("s_lshl_b32 s7, s24, 13", writes=[S_R2])); a_(raw("s_add_u32 s7, s7, 65536", writes=[S_R2]))
        return s_
    def wo_stage(n):
        s_ = []
        sb, madd = (S_XB, n*8192) if n < 2 else (S_R2, 0)
        for h in range(2):
            s_ += [sop('s_add_u32', 'm0', sb, madd + h*4096), nop(0)]
            for i in range(4): s_.append(lds_dep(dma(DO[i], SRD_WO, S_SO, off=i*1024), need={f'oR{n}'}, mark={f'oL{n}'}))
            s_.append(sop('s_add_u32', S_SO, S_SO, 16*1024))
        return s_
    def wo_first_lds(): return wo_setup() + wo_stage(0) + wo_stage(1) + wo_stage(2)
    VLW = V(14)
    def wot_setup():
        return [valu('v_lshlrev_b32', VLW, 4, l), raw("s_lshl_b32 s42, s25, 19", writes=[S_SO]), raw("s_lshl_b32 s43, s24, 13", writes=[S_T]),
                raw("s_add_u32 s42, s42, s43", writes=[S_SO]), raw(f"s_add_u32 s42, s42, {WS_WOT}", writes=[S_SO])]
    def wot_loads(n): return proj3_loads(SRD_W, S_SO, VLW, n, 128)
    def wot_first(): return [i for n in range(P3_DEPTH) for i in wot_loads(n)]
    def wo_first(): return (wot_setup() + wot_first()) if o.wot else wo_first_lds()
    seqs = [('pro', pro)]
    for j in range(33):
        kw_ = side_spec(j)
        if j == 31 and o.wot:
            kw_['streams'] = list(kw_.get('streams', [])) + [('swo', spread(wot_setup(), 0.0, 0.05) + spread(wot_first(), 0.08, 0.95, rel=0.06))]
        elif j == 31 and o.wo_early:
            kw_['streams'] = list(kw_.get('streams', [])) + [('swo', spread(wo_setup(), 0.02, 0.2))]
            kw_['side_dma_list'] = (wo_stage(0) + wo_stage(1), 0.25, 0.95, 0.22)
        if j == 30 and o.wot:
            pl = [valu('v_mov_b32', V(16), 0), sop('s_add_u32', S(3), S_G, 64), raw("s_lshl_b32 s3, s3, 8", writes=[S(3)]), raw(f"s_add_u32 s3, s3, {WS_CNT}", writes=[S(3)]),
                  bload(1, V(17), V(16), SRD_W, S(3), mods="sc1")]
            kw_['streams'] = list(kw_.get('streams', [])) + [('swp', [(0.3, 0.25, i) for i in pl])]
            kw_['post'] = list(kw_.get('post', [])) + [smov(S(5), 0), label("L_k3_wpoll"), readfirstlane(S(4), V(17)), nop(3), scmp('s_cmp_ge_u32', S(4), 32),
                          raw("s_cbranch_scc1 L_k3_wpollok", 'branch'), raw("s_sleep 4"), bload(1, V(17), V(16), SRD_W, S(3), mods="sc1"), waitcnt(vm=0),
                          sop('s_add_u32', S(5), S(5), 1), scmp('s_cmp_lt_u32', S(5), 0x40000), raw("s_cbranch_scc1 L_k3_wpoll", 'branch'), label("L_k3_wpollok")]
        p = at.period(j, **kw_)
        if o.timing and j in o.stamp_after: p = p + STP()
        seqs.append((j, [label(f"@@P{j}")] + p))
    def arrive2(idx_s):
        return [valu('v_mov_b32', V(4), 1), valu('v_lshlrev_b32', V(5), 25, l),
                sop('s_add_u32', S(44), idx_s, 32), raw("s_lshl_b32 s44, s44, 8", writes=[S(44)]), raw(f"s_add_u32 s44, s44, {WS_CNT}", writes=[S(44)]),
                raw("s_cmp_eq_u32 s24, 0"), raw(f"s_cselect_b32 s44, s44, {WS_END}", reads=['scc'], writes=[S(44)]),
                I(f"buffer_atomic_add v4, v5, {SRD_W}, s44 offen sc1", 'vatomic', reads=[V(4), V(5), SRD_W, S(44)], writes=[])]
    pre_epi = [smov(S_SLOW, 0)]
    if o.fuse_comb: pre_epi += ([] if o.g2_tail else arrive2(S_T64)) + [sload(S(96, 2), ARG_X)] + ([sload(S(100, 2), ARG_OUT)] if o.g2_tail else [sload(S(98, 2), ARG_OUT)])
    if not o.wot: pre_epi += (wo_stage(2) if o.wo_early else wo_first())
    s = []; a = s.append
    a(label("@@EPI"))
    a(label("L_k3_norm"))
    a(nop(7))
    if not o.wot:
        a(valu('v_mov_b32', V(6), S_XB))
        addr_tr256(a, l, TO, V(6), 4)
        a(valu('v_mov_b32', V(6), S_R2))
        addr_tr256(a, l, TO2, V(6), 4)
    LI = [V(24 + i) for i in range(4)]
    for qt in range(4): a(valu('v_rcp_f32', LI[qt], LA[qt][0]))
    a(valu('v_lshlrev_b32', V(7), 4, l))
    a(raw("s_lshl_b32 s43, s24, 14", writes=[S_T]))
    a(valu('v_add_u32', V(22), S_T, V(7))); a(valu('v_mov_b32', V(23), V(7)))
    for kk in range(4):
        for qt in range(4):
            x, y = O(2*kk, qt), O(2*kk+1, qt)
            for r in range(4):
                a(valu('v_mul_f32', x[r], x[r], LI[qt])); a(valu('v_mul_f32', y[r], y[r], LI[qt]))
            if o.moff:
                mx = V(28 + qt)
                ab = lambda r_: f"|{r_}|"
                if kk == 0: a(valu('v_max3_f32', mx, ab(x[0]), ab(x[1]), ab(x[2])))
                else: a(valu('v_max3_f32', mx, ab(x[0]), ab(x[1]), mx)); a(valu('v_max_f32', mx, ab(x[2]), mx, mods=""))
                a(valu('v_max3_f32', mx, ab(x[3]), ab(y[0]), mx)); a(valu('v_max3_f32', mx, ab(y[1]), ab(y[2]), mx)); a(valu('v_max_f32', mx, ab(y[3]), mx))
            F = V(48 + 4*((kk*4+qt) & 3), 4)
            a(valu('v_cvt_pk_bf16_f32', F[0], x[0], x[1])); a(valu('v_cvt_pk_bf16_f32', F[1], x[2], x[3]))
            a(valu('v_cvt_pk_bf16_f32', F[2], y[0], y[1])); a(valu('v_cvt_pk_bf16_f32', F[3], y[2], y[3]))
            a(ds_write(4, V(22), F, off=(kk*4+qt)*1024))
    a(waitcnt(lgkm=0)); a(barrier())
    s.extend(STP())
    def oread(n, qt, dst): return ds_read_b128(dst, V(23), (n*4+qt)*1024)
    S_PS = S(3)
    def pstore(prange):
        o_ = []
        for p in prange:
            for qt in range(4):
                x, y = O(2*p, qt), O(2*p+1, qt)
                F = V(48 + 4*((p*4+qt) & 3), 4)
                o_ += [valu('v_cvt_pk_bf16_f32', F[0], x[0], x[1]), valu('v_cvt_pk_bf16_f32', F[1], x[2], x[3]),
                       valu('v_cvt_pk_bf16_f32', F[2], y[0], y[1]), valu('v_cvt_pk_bf16_f32', F[3], y[2], y[3]),
                       bstore(4, F, V(7), SRD_W, S_PS, off=qt*1024, mods=("sc1" if o.fuse_comb else ""))]
            o_.append(sop('s_add_u32', S_PS, S_PS, 4096))
        return o_
    a(raw("s_lshl_b32 s3, s25, 5", writes=[S_PS])); a(raw("s_add_u32 s3, s3, s26", writes=[S_PS]))
    a(raw("s_lshl_b32 s3, s3, 2", writes=[S_PS])); a(raw("s_add_u32 s3, s3, s24", writes=[S_PS]))
    a(raw("s_lshl_b32 s3, s3, 14", writes=[S_PS])); a(raw(f"s_add_u32 s3, s3, {WS_PART}", writes=[S_PS]))
    g2pre = {}
    if o.g2_tail:
        GTA = [[V(96 + t) for t in range(4)], [V(100 + t) for t in range(4)]]
        GDA = [V(104 + t) for t in range(4)]; GUL = [V(108 + t) for t in range(4)]
        a(valu('v_mov_b32', V(6), S_XB)); tr_addr_128(a, l, GTA[0], V(6), V(1), V(2), V(3), V(4))
        a(valu('v_mov_b32', V(6), S_R2)); tr_addr_128(a, l, GTA[1], V(6), V(1), V(2), V(3), V(4))
        dma_off_128(a, l, GDA, 4096, V(1), V(2), V(3), s_tmp=S(5))
        a(valu('v_lshlrev_b32', GUL[0], 4, l))
        for t in range(1, 4): a(valu('v_add_u32', GUL[t], 56*1024, GUL[t-1]))
        a(raw("s_mul_i32 s39, s24, 448*4096", writes=[S_SA])); a(raw("s_lshl_b32 s5, s46, 7", writes=[S(5)])); a(raw("s_add_u32 s39, s39, s5", writes=[S_SA]))
        a(raw("s_mul_i32 s36, s47, 4*56", writes=[S_SB])); a(raw("s_mul_i32 s5, s24, 14", writes=[S(5)])); a(raw("s_add_u32 s36, s36, s5", writes=[S_SB]))
        a(raw("s_lshl_b32 s36, s36, 10", writes=[S_SB])); a(raw(f"s_add_u32 s36, s36, {WS_U}", writes=[S_SB]))
        s.extend(make_srd(S(28, 4), S(98, 2), 2048*2))
        a(valu('v_and_b32', V(1), 15, l)); a(raw("s_lshl_b32 s44, s46, 6", writes=[S(44)])); a(raw("s_lshl_b32 s45, s24, 4", writes=[S(45)]))
        a(raw("s_add_u32 s44, s44, s45", writes=[S(44)])); a(valu('v_add_u32', V(1), S(44), V(1))); a(valu('v_lshlrev_b32', V(1), 1, V(1)))
        a(bload_ushort(V(18), V(1), S(28, 4)))
        gmap = [(0, 8192, S_XB, 8192), (0, 12288, S_XB, 12288), (1, 0, S_R2, 0), (1, 4096, S_R2, 4096)]
        wneed = ['oR1', 'oR1', 'oR2', 'oR2']
        def g2_w(n, first=False):
            st = n % 4; (_, _, sb, madd) = gmap[st]
            o_ = [sop('s_add_u32', 'm0', sb, madd)]
            for i in range(4): o_.append(lds_dep(dma(GDA[i], SRD_W2, S_SA, off=i*1024), need={f'gR{st}'} | ({wneed[st]} if first else set()), mark={f'gL{st}'}))
            o_.append(sop('s_add_u32', S_SA, S_SA, 32*4096))
            return o_
        gfa = lambda n, t: A(192 + 16*(n % 4) + 4*t, 4)
        gfb = lambda p, t: A(128 + 16*p + 4*t, 4)
        def g2_u(n):
            return [bload(4, gfa(n, t), GUL[t], SRD_W, S_SB, mods="sc1") for t in range(4)] + [sop('s_add_u32', S_SB, S_SB, 1024)]
        def g2_r(n):
            st = n % 4; (ti, imm, _, _) = gmap[st]
            return [lds_dep(ds_read_tr(gfb(n & 1, t)[2*u:2*u+2], GTA[ti][t], imm + u*2048), need={f'gL{st}'}, mark={f'gR{st}'}) for t in range(4) for u in range(2)]
        g2pre = {13: g2_w(0, True) + g2_w(1, True) + g2_u(0), 14: g2_w(2, True) + g2_w(3, True) + g2_u(1), 15: g2_u(2) + g2_u(3)}
    if o.wot:
        proj_gemm3(a, s, SRD_W, S_SO, VLW, oread, 128, 64, mid_fill=pstore(range(2)))
    else:
        proj_gemm2(a, s, TO, DO, SRD_WO, S_SO, 1024, S_RING, oread, 4096, 'o', fb_base=(160 if o.g2_tail else 128),
                   stage_map=[(TO, 0, S_XB, 0), (TO, 8192, S_XB, 8192), (TO2, 0, S_R2, 0)], extra_vm=g2pre)
    a(smov(S(44), float(2.0**100)))
    for qt in range(4):
        a(I(f"v_cmp_gt_f32 vcc, s44, {LA[qt][0]}", 'valu', reads=[S(44), LA[qt][0]], writes=['vcc']))
        a(nop(3))
        a(I("s_mov_b64 s[56:57], vcc" if qt == 0 else "s_and_b64 s[56:57], s[56:57], vcc", 'salu', reads=['vcc'], writes=[S(56, 2), 'scc']))
    if o.moff:
        a(smov(S(44), float(2.0**(o.moff - 105))))
        for qt in range(4):
            a(I(f"v_cmp_le_f32 vcc, s44, {V(28 + qt)}", 'valu', reads=[S(44), V(28 + qt)], writes=['vcc']))
            a(nop(3))
            a(I("s_and_b64 s[56:57], s[56:57], vcc", 'salu', reads=['vcc'], writes=[S(56, 2), 'scc']))
    a(nop(7))
    a(valu('v_mov_b32', V(1), 0x1F8))
    for qt in range(4):
        a(I(f"v_cmp_class_f32 vcc, {O(0, qt)[0]}, v1", 'valu', reads=[O(0, qt)[0], V(1)], writes=['vcc']))
        a(nop(3))
        a(I("s_and_b64 s[56:57], s[56:57], vcc", 'salu', reads=['vcc'], writes=[S(56, 2), 'scc']))
    a(raw("s_cmp_eq_u64 s[56:57], -1"))
    a(raw("s_cselect_b32 s44, 0, 1", reads=['scc'], writes=[S(44)]))
    a(valu('v_mov_b32', V(2), S(44))); a(valu('v_mov_b32', V(1), S_XB))
    a(ds_write(1, V(1), V(2)))
    a(waitcnt(lgkm=0)); a(barrier())
    a(valu('v_mov_b32', V(1), XBASE))
    a(ds_read_b32(V(2), V(1))); a(ds_read_b32(V(3), V(1), 16384)); a(ds_read_b32(V(4), V(1), 32768)); a(ds_read_b32(V(5), V(1), 49152))
    a(valu('v_or_b32', V(2), V(2), V(3))); a(valu('v_or_b32', V(4), V(4), V(5))); a(valu('v_or_b32', V(2), V(2), V(4)))
    a(readfirstlane(S(44), V(2)))
    a(nop(3))
    a(I("s_andn2_b32 s44, s44, s6", 'salu', reads=[S(44), S_SLOW], writes=[S(44), 'scc']))
    a(raw("s_cbranch_scc1 L_k3_slow", 'branch'))
    a(label("L_k3_store"))
    s.extend(STP())
    if not o.g2_tail: s.extend(pstore(range(2, 4) if o.wot else range(4)))
    if o.g2_tail:
        gacc = lambda mt, st_: A(64 + (mt*4+st_)*4, 4)
        pfill = pstore(range(4))
        s.extend(g2_r(0))
        for n in range(14):
            rd = g2_r(n + 1) if n + 1 < 14 else []
            vm = (g2_w(n + 4) + g2_u(n + 4)) if n + 4 < 14 else []
            mf = [mfma16(gacc(mt, st_), gfa(n, mt), gfb(n & 1, st_), gacc(mt, st_) if n else 0) for mt in range(4) for st_ in range(4)]
            gaps = [[] for _ in range(16)]
            for k, ins in enumerate(rd): gaps[k].append(ins)
            g = 8
            for (ins, st_) in dma_ops_with_setup(vm):
                if ins.kind == 'dma':
                    gaps[g - 1] += st_; gaps[g].append(ins); g = min(15, g + 2)
            late = [i for i in vm if i.kind == 'vload' or (i.kind == 'salu' and 'm0' not in i.writes)]
            for k, m in enumerate(mf):
                a(m); s.extend(sort_gap(gaps[k]))
                if n >= o.ps_from and pfill:
                    for _ in range(2 if gaps[k] else 3):
                        if pfill: a(pfill.pop(0))
            s.extend(late)
        s.extend(pfill)
        a(raw("s_lshl_b32 s44, s24, 14", writes=[S(44)])); a(valu('v_add_u32', V(26), S(44), V(7)))
        for mt in range(4):
            for st_ in range(4): a(ds_write(4, V(26), gacc(mt, st_), off=(mt*4+st_)*1024))
        a(waitcnt(lgkm=0)); a(barrier())
        a(raw("s_lshl_b32 s44, s24, 10", writes=[S(44)])); a(valu('v_add_u32', V(27), S(44), V(7)))
        for mt in range(4):
            for w in range(4): a(ds_read_b128(V(192 + (mt*4+w)*4, 4), V(27), w*16384 + mt*4096))
        a(smov(S(44), -LOG2E)); a(valu("v_lshlrev_b32", V(18), 16, V(18)))
        a(raw("s_lshr_b32 s43, s47, 1", writes=[S_T])); a(raw("s_lshl_b32 s45, s46, 2", writes=[S(45)])); a(raw("s_add_u32 s43, s43, s45", writes=[S_T]))
        a(raw("s_lshl_b32 s43, s43, 2", writes=[S_T])); a(raw("s_and_b32 s45, s47, 1", writes=[S(45)])); a(raw("s_lshl_b32 s45, s45, 1", writes=[S(45)]))
        a(raw("s_add_u32 s43, s43, s45", writes=[S_T])); a(raw("s_lshl_b32 s43, s43, 2", writes=[S_T])); a(raw("s_add_u32 s43, s43, s24", writes=[S_T]))
        a(raw("s_lshl_b32 s43, s43, 10", writes=[S_T])); a(raw(f"s_add_u32 s43, s43, {WS_GATE}", writes=[S_T]))
        for mt in range(4):
            for r in range(4):
                P_ = [V(192 + (mt*4+w)*4 + r) for w in range(4)]; y = P_[0]; tt = V(2 + (r & 1))
                a(valu('v_add_f32', y, y, P_[1])); a(valu('v_add_f32', P_[2], P_[2], P_[3])); a(valu('v_add_f32', y, y, P_[2])); a(valu("v_add_f32", y, y, V(18)))
                a(valu('v_mul_f32', tt, S(44), y)); a(valu('v_exp_f32', tt, tt)); a(valu('v_add_f32', tt, 1.0, tt)); a(valu('v_rcp_f32', tt, tt)); a(valu('v_mul_f32', y, y, tt))
            q = V(40 + 4*(mt >> 1) + 2*(mt & 1), 2)
            a(valu('v_cvt_pk_bf16_f32', q[0], V(192 + mt*16), V(192 + mt*16 + 1))); a(valu('v_cvt_pk_bf16_f32', q[1], V(192 + mt*16 + 2), V(192 + mt*16 + 3)))
            if mt & 1:
                a(bstore(4, V(40 + 4*(mt >> 1), 4), V(7), SRD_W, S_T, mods="sc1")); a(sop('s_add_u32', S_T, S_T, 4096))
    if o.fuse_comb:
        SRD_X2 = S(28, 4); SRD_O = S(48, 4)
        s.extend(make_srd(SRD_X2, S(96, 2), 2 << 20)); s.extend(make_srd(SRD_O, S(100, 2) if o.g2_tail else S(98, 2), 2 << 20))
        a(valu('v_and_b32', V(1), 15, l)); a(raw("s_lshl_b32 s44, s26, 6", writes=[S(44)])); a(raw("s_lshl_b32 s45, s24, 4", writes=[S(45)]))
        a(raw("s_add_u32 s44, s44, s45", writes=[S(44)])); a(valu('v_add_u32', V(1), S(44), V(1))); a(valu('v_lshlrev_b32', V(1), 10, V(1)))
        a(valu('v_lshrrev_b32', V(2), 4, l)); a(valu('v_lshl_add_u32', V(1), V(2), 3, V(1)))
        a(raw("s_lshl_b32 s44, s25, 7", writes=[S(44)])); a(valu('v_add_u32', V(22), S(44), V(1)))
        XR = V(32, 8)
        for j in range(2):
            for t in range(2): a(bload(2, XR[4*j+2*t:4*j+2*t+2], V(22), SRD_X2, 0, off=64*j + 32*t))
        a(waitcnt(vm=4))
        a(barrier())
        if o.g2_tail: s.extend(arrive2(S_T64)); a(nop(1))
        s.extend(arrive2(S_QB))
        s.extend(STP())
        a(sop('s_add_u32', S(44), S_QB, 32)); a(raw("s_lshl_b32 s44, s44, 8", writes=[S(44)])); a(raw(f"s_add_u32 s44, s44, {WS_CNT}", writes=[S(44)]))
        a(valu('v_mov_b32', V(1), 0)); a(smov(S(45), 0))
        a(label("L_k3_cpoll"))
        a(bload(1, V(6), V(1), SRD_W, S(44), mods="sc1")); a(waitcnt(vm=0))
        a(readfirstlane(S(43), V(6))); a(nop(3))
        a(scmp('s_cmp_ge_u32', S(43), 16)); a(raw("s_cbranch_scc1 L_k3_cpollok", 'branch'))
        a(raw("s_sleep 2")); a(sop('s_add_u32', S(45), S(45), 1)); a(scmp('s_cmp_lt_u32', S(45), 0x80000)); a(raw("s_cbranch_scc1 L_k3_cpoll", 'branch'))
        a(label("L_k3_cpollok"))
        a(raw("s_lshl_b32 s42, s26, 2", writes=[S_SO])); a(raw("s_lshr_b32 s43, s25, 1", writes=[S_T])); a(raw("s_add_u32 s42, s42, s43", writes=[S_SO]))
        a(raw("s_lshl_b32 s42, s42, 2", writes=[S_SO])); a(raw("s_and_b32 s43, s25, 1", writes=[S_T])); a(raw("s_lshl_b32 s43, s43, 1", writes=[S_T]))
        a(raw("s_add_u32 s42, s42, s43", writes=[S_SO])); a(raw("s_lshl_b32 s42, s42, 2", writes=[S_SO])); a(raw("s_add_u32 s42, s42, s24", writes=[S_SO]))
        a(raw("s_lshl_b32 s42, s42, 10", writes=[S_SO]))
        a(raw(f"s_add_u32 s43, s42, {WS_GATE}", writes=[S_T])); a(raw(f"s_add_u32 s42, s42, {WS_PART}", writes=[S_SO]))
        PPj = lambda j, g: V(128 + (j*8 + g)*4, 4)
        GG = [V(192, 4), V(196, 4)]
        for j in range(2):
            a(bload(4, GG[j], V(7), SRD_W, S_T, mods="sc1")); a(sop('s_add_u32', S_T, S_T, 4096))
        for g in range(8):
            a(bload(4, PPj(0, g), V(7), SRD_W, S_SO, mods="sc1"))
            a(sop('s_add_u32', S(44), S_SO, 4096))
            a(bload(4, PPj(1, g), V(7), SRD_W, S(44), mods="sc1"))
            if g < 7: a(sop('s_add_u32', S_SO, S_SO, 32*64*1024))
        for j in range(2):
            R = [V(200 + 8*j + i) for i in range(8)]
            for k in range(8):
                q = k >> 1; hi = k & 1
                unp = lambda dst, src: valu('v_and_b32', dst, 0xffff0000, src) if hi else valu('v_lshlrev_b32', dst, 16, src)
                a(unp(R[k], PPj(j, 0)[q]))
                for g in range(1, 8):
                    tt = V(2 + (g & 1))
                    a(unp(tt, PPj(j, g)[q])); a(valu('v_add_f32', R[k], R[k], tt))
                a(unp(V(4), GG[j][q])); a(unp(V(5), XR[4*j+q]))
                a(valu('v_fma_f32', R[k], R[k], V(4), V(5)))
            OUTR = V(216 + 4*j, 4)
            for q in range(4): a(valu('v_cvt_pk_bf16_f32', OUTR[q], R[2*q], R[2*q+1]))
            a(bstore(2, OUTR[0:2], V(22), SRD_O, 0, off=64*j)); a(bstore(2, OUTR[2:4], V(22), SRD_O, 0, off=64*j + 32))
    a(waitcnt(vm=0))
    s.extend(STP())
    if getattr(o, 'dbgtime', False):
        a(raw('s_memrealtime s[92:93]', 'smem', writes=[S(92, 2)])); a(sload(S(90, 2), ARG_DBG)); a(waitcnt(lgkm=0))
        s.extend(make_srd(S(84, 4), S(90, 2), 256))
        a(raw("s_sub_u32 s92, s92, s94", writes=[S(92)]))
        a(raw("s_add_u32 s93, s2, 4", writes=[S(93)])); a(raw("s_lshl_b32 s93, s93, 2", writes=[S(93)]))
        a(raw("s_cmp_lt_u32 s2, 8")); a(raw("s_cselect_b32 s93, s93, 0x1000", writes=[S(93)]))
        a(raw("s_cmp_eq_u32 s24, 0")); a(raw("s_cselect_b32 s93, s93, 0x1000", writes=[S(93)]))
        a(valu('v_mov_b32', V(2), S(92))); a(valu('v_lshlrev_b32', V(3), 25, l)); a(nop(3))
        a(bstore(1, V(2), V(3), S(84, 4), S(93))); a(waitcnt(vm=0))
    if getattr(o, 'diag_period', None) is not None: STP.force(len(o.diag_marks))
    if getattr(o, 'polldiag', False): STP.n = 16
    s.extend(STP.flush(S_WAVE))
    epi = s
    s = []; a = s.append
    M = [V(72 + i) for i in range(4)]
    a(label("L_k3_slow"))
    at.nozero = True
    a(smov(S_SLOW, 1))
    for r in range(128): a(valu('v_mov_b32', V(128 + r), 0))
    for qt in range(4):
        for r in range(4): a(valu('v_mov_b32', LA[qt][r], 0))
        a(valu('v_mov_b32', M[qt], 0xff800000))
    a(smov(S_TILE, 0)); a(smov(S(45), 32))
    a(label("L_k3_slowloop"))
    a(barrier())
    s.extend(at.kv_dma(0))
    a(waitcnt(vm=0)); a(barrier())
    for kh in range(2):
        s.extend(at.k_reads(0, kh)); s.extend(at.v_reads(0, kh))
        for c in range(2):
            for q2 in range(2):
                for t in range(2):
                    for i in range(4): a(mfma16(Sx(c, t, q2), Kf(t*4+i), Q(i, 2*c+q2), 0 if i == 0 else Sx(c, t, q2)))
            for q2 in range(2):
                qt = 2*c + q2; s0, s1 = Sx(c, 0, q2), Sx(c, 1, q2); m = V(4); t_ = V(5)
                a(valu('v_max3_f32', m, s0[0], s0[1], s0[2])); a(valu('v_max3_f32', m, m, s0[3], s1[0]))
                a(valu('v_max3_f32', m, m, s1[1], s1[2])); a(valu('v_max3_f32', m, m, s1[3], M[qt]))
                a(valu('v_mov_b32', t_, m)); a(permlane16_swap(m, t_)); a(valu('v_max_f32', m, m, t_))
                a(valu('v_mov_b32', t_, m)); a(permlane32_swap(m, t_)); a(valu('v_max_f32', m, m, t_))
                a(valu('v_sub_f32', t_, M[qt], m)); a(valu('v_exp_f32', t_, t_)); a(valu('v_mov_b32', M[qt], m))
                for dt in range(8):
                    for r in range(4): a(valu('v_mul_f32', O(dt, qt)[r], O(dt, qt)[r], t_))
                for r in range(4): a(valu('v_mul_f32', LA[qt][r], LA[qt][r], t_))
                for t in range(2):
                    sx = Sx(c, t, q2)
                    for r in range(4):
                        a(valu('v_sub_f32', sx[r], sx[r], m)); a(valu('v_exp_f32', sx[r], sx[r]))
                    a(valu('v_cvt_pk_bf16_f32', Pb[c][4*q2 + 2*t], sx[0], sx[1])); a(valu('v_cvt_pk_bf16_f32', Pb[c][4*q2 + 2*t + 1], sx[2], sx[3]))
            for m_ in at.pv_slot(0, kh, c):
                m_.rt = {}; a(m_)
    a(waitcnt(lgkm=0))
    a(sop('s_sub_u32', S(45), S(45), 1)); a(scmp('s_cmp_lg_u32', S(45), 0)); a(raw("s_cbranch_scc1 L_k3_slowloop", 'branch'))
    a(nop(15)); a(barrier())
    s.extend(wo_first())
    a(raw("s_branch L_k3_norm", 'branch'))
    for i_ in s:
        if hasattr(i_, 'rt'): i_.rt = {}
    slow, _, _ = auto_waits(s)
    slow = fix_hazards(slow, "slow")
    full = []
    for (name, seq) in seqs:
        if name == 32: full += pre_epi
        full += seq
    full += epi
    full, _, _ = auto_waits(full)
    errs = validate_tags(full)
    for e in errs[:10]: print("DATAFLOW", e, file=sys.stderr)
    parts = {}; cur = 'pro'; parts[cur] = []
    for ins in full:
        if ins.kind == 'label' and ins.text.startswith('@@'):
            cur = ins.text[2:-1]; parts[cur] = []
        else: parts[cur].append(ins)
    P = lambda j: parts[f'P{j}']
    txt = lambda j: [i.text for i in P(j)]
    def loop(first_j, n_iter, lbl, cnt):
        body = []
        for k in range(3):
            base = list(P(first_j + k))
            for it in range(1, n_iter):
                other = P(first_j + 3*it + k)
                assert len(other) == len(base), f"loop {lbl}: period {first_j+k} vs {first_j+3*it+k} length {len(base)} {len(other)}"
                for idx, (x, y) in enumerate(zip(base, other)):
                    if x.text != y.text:
                        assert x.kind == 'wait' and y.kind == 'wait' and (x.vm is None) == (y.vm is None) and (x.lgkm is None) == (y.lgkm is None), (lbl, x.text, y.text)
                        base[idx] = waitcnt(vm=None if x.vm is None else min(x.vm, y.vm), lgkm=None if x.lgkm is None else min(x.lgkm, y.lgkm))
            body += [comment(f"period {first_j+k} (+3n)")] + base
        body += [sop('s_sub_u32', cnt, cnt, 1), scmp('s_cmp_lg_u32', cnt, 0), raw(f"s_cbranch_scc1 {lbl}", 'branch')]
        errs = check_hazards(body, loop=True, name=lbl)
        for e in errs[:20]: print("HAZARD", e, file=sys.stderr)
        return [smov(cnt, n_iter), label(lbl)] + body
    out = fix_hazards(parts['pro'] + [comment("period 0")] + P(0), "pro")
    S_CNT = S(4)
    if getattr(o, 'noloop', False):
        allp = []
        for j in range(1, 33): allp += [comment(f"period {j}")] + P(j)
        out += fix_hazards(allp + parts['EPI'], "all")
        out += [raw("s_branch L_k3_end", 'branch')] + slow
        out.append(label("L_k3_end"))
        return emit(out)
    if o.side and o.g2_tail:
        out += loop(1, 5, "L_k3_loopA", S_CNT)
        mid = []
        for j in range(16, 19): mid += [comment(f"period {j}")] + P(j)
        out += fix_hazards(mid, "mid")
        out += loop(19, 3, "L_k3_loopB", S_CNT)
        tail = []
        for j in range(28, 33): tail += [comment(f"period {j}")] + P(j)
    elif o.side:
        out += loop(1, 5, "L_k3_loopA", S_CNT)
        mid = []
        for j in range(16, 22): mid += [comment(f"period {j}")] + P(j)
        out += fix_hazards(P(15)[-30:] + mid, "mid")[len(P(15)[-30:]):] if False else fix_hazards(mid, "mid")
        out += loop(22, 2, "L_k3_loopB", S_CNT)
        tail = []
        for j in range(28, 33): tail += [comment(f"period {j}")] + P(j)
    else:
        out += loop(1, 9, "L_k3_loopA", S_CNT)
        tail = []
        for j in range(28, 33): tail += [comment(f"period {j}")] + P(j)
    tm = []
    out += fix_hazards(tail + parts['EPI'], "tail")
    out += [raw("s_branch L_k3_end", 'branch')] + slow
    out.append(label("L_k3_end"))
    if getattr(o, 'verbose', False):
        for j in (2, 16, 17, 18, 21, 23, 29, 30):
            tot = 0; gap = None
            for i in P(j):
                if i.kind == 'mfma':
                    if gap is not None: tot += max(16, gap)
                    gap = 8
                elif gap is not None: gap += cost(i)
            print(f"; period {j}: est {tot + max(16, gap or 0)} cycles, {len(P(j))} instrs", file=sys.stderr)
    return emit(out)
if __name__ == "__main__":
    o = Opt(); o.verbose = True
    for kv in sys.argv[1:]:
        k, v = kv.split("="); setattr(o, k, eval(v))
    t = build(o); print(len(t.splitlines()))
```

```python
from k_common import *
from k3_attn import (NST, KBASE, VBASE, XBASE, SRD_K, SRD_V, SRD_W, SRD_WQ, SRD_WO, S_TILE, S_WOFF, S_WAVE, S_G, S_QB, QSCALE,
                     O, Q, Kf, Vf, Sb, Sx, NM, LA, Pb, ONES, KA, VA, DK, DV, addr_tr256, dma_off_256, proj_gemm)
from k2_gemm1 import tr_addr_128, dma_off_128, gelu, LOG2E
WS_GATE = 6 << 20
HMOD = 'sc1'

class Opt:
    barrier = True
    minfill = 8; maxfill = 8; early = 1.5
    sm_rel = 4; p_lead = 2; k_span = 1.0; k_lead = 6; bar_lead = 5
    timing = False; prefetch = True; side = True; fuse_ln = True; fuse_comb = True
    stamp_after = (0, 16, 17, 21, 28, 30, 32)
    def __init__(self, **kw): self.__dict__.update(kw)

SRD_W1 = S(48, 4); SRD_W2 = S(52, 4); SRD_DBG = S(56, 4); SRD_US = S(60, 4)
S_T64 = S(46); S_DT = S(47); S_SR = S(40); S_SKIP = S(37); S_N = S(38); S_SA = S(39); S_SB = S(36); S_XB = S(27); S_KVSKIP = S(23); S_TMP = S(43)
TA = [V(14 + i) for i in range(4)]; DA = [V(18 + i) for i in range(4)]; DB = [V(22 + i) for i in range(4)]
def sacc(i, j): return A(128 + (i*4+j)*4, 4)
def sfa(h, t): return A(192 + 16*h + 4*t, 4)
def sfb(h, t): return A(224 + 16*h + 4*t, 4) if h else A(208 + 4*t, 4)
def g2a(h, t): return A(192 + 16*h + 4*t, 4)
def g2b(h, t): return A(224 + 16*h + 4*t, 4)

class Attn:
    def __init__(self, opt): self.o = opt
    def qk_slot(self, j, kh, c):
        out = []
        for q2 in range(2):
            for t in range(2):
                for i in range(4):
                    qt = 2*c + q2; sx = Sx(c, t, q2)
                    m = mfma16(sx, Kf(t*4+i), Q(i, qt), NM[qt] if i == 0 else sx)
                    tag(m, wt=('S', j, kh, c), rt=[(Kf(t*4+i), ('K', j, kh))] + ([(sx, ('S', j, kh, c))] if i else []))
                    out.append(m)
        return out
    def pv_slot(self, j, kh, c):
        out = []
        z = (j == 0 and kh == 0 and not getattr(self, 'nozero', False))
        for q2 in range(2):
            p = Pb[c][4*q2:4*q2+4]; qt = 2*c + q2
            for dt in range(8):
                m = mfma16(O(dt, qt), Vf(dt), p, 0 if z else O(dt, qt))
                tag(m, rt=[(Vf(dt), ('V', j, kh)), (p, ('P', j, kh, c))]); out.append(m)
            m = mfma16(LA[qt], ONES, p, 0 if z else LA[qt]); tag(m, rt=[(p, ('P', j, kh, c))]); out.append(m)
        return out
    def sm_list(self, j, kh, c):
        regs = []
        for q2 in range(2):
            for t in range(2):
                for r in range(4): regs.append((Sx(c, t, q2)[r], Pb[c][4*q2 + 2*t + (r >> 1)]))
        ops = []
        for n, (s, p) in enumerate(regs):
            ops.append((n, tag(valu('v_exp_f32', s, s), wt=('E', j, kh, c), rt=[(s, ('S', j, kh, c))])))
            if n & 1:
                sp = regs[n-1][0]
                ops.append((n + 1.04, tag(valu('v_cvt_pk_bf16_f32', p, sp, s), wt=('P', j, kh, c), rt=[(s, ('E', j, kh, c)), (sp, ('E', j, kh, c))])))
        return [i for (t, i) in sorted(ops, key=lambda x: x[0])]
    def k_reads(self, j, kh):
        st = j % NST
        return [tag(ds_read_b128(Kf(n), KA[n & 3], KBASE + st*16384 + kh*8192 + (n >> 2)*4096), wt=('K', j, kh)) for n in range(8)]
    def v_reads(self, j, kh):
        st = j % NST
        return [tag(ds_read_tr(Vf(dt)[2*u:2*u+2], VA[dt], st*16384 + kh*8192 + u*4096), wt=('V', j, kh)) for dt in range(8) for u in range(2)]
    def kv_dma(self, st, skip=False):
        ops = []
        for n in range(8):
            if n in (0, 4):
                base = (KBASE if n == 0 else VBASE) + st*16384
                ops.append(sop('s_add_u32', 'm0', S_WOFF, base))
                if skip: ops.append(sop('s_max_u32', 'm0', 'm0', S_KVSKIP))
                ops.append(nop(0))
            if n < 4: ops.append(dma(DK[n], SRD_K, S_TILE, off=n*1024))
            else: ops.append(dma(DV[n & 1], SRD_V, S_TILE, off=(n-4)*1024))
        ops.append(sop('s_add_u32', S_TILE, S_TILE, 16384))
        return ops

    def period(self, j, first=False, last_drain=False, kv=True, kvskip=False, side_groups=(), streams=(), pre=(), post=(), vm_end=None, side_dma_list=None):
        o = self.o
        hp, hc = not first, not last_drain
        base = [self.pv_slot(j-1, 1, 0) if hp else None, self.qk_slot(j, 0, 0) if hc else None,
                self.pv_slot(j-1, 1, 1) if hp else None, self.qk_slot(j, 0, 1) if hc else None,
                self.pv_slot(j, 0, 0) if hc else None, self.qk_slot(j, 1, 0) if hc else None,
                self.pv_slot(j, 0, 1) if hc else None, self.qk_slot(j, 1, 1) if hc else None]
        lens = [18, 16]*4
        mf = []; starts = []; ends = []; side_pos = []
        for s in range(8):
            starts.append(len(mf))
            mf += base[s] if base[s] is not None else [None]*lens[s]
            ends.append(len(mf))
            for (aft, g) in side_groups:
                if aft == s:
                    side_pos.append(len(mf)); mf += g
        T = len(mf)
        self.T = T
        ops = []
        CUT0 = o.cut0; CUT1 = o.cut1
        def sm_stream(jj, kh, c, t_lo, t_hi, tpv, i0=0, i1=None, release=None):
            raw_ops = self.sm_list(jj, kh, c); n = len(raw_ops); i1 = n if i1 is None else i1
            pv = self.pv_slot(jj, kh, c); res = []
            for idx in range(i0, i1):
                ins = raw_ops[idx]
                t = t_lo + (t_hi - t_lo) * (idx - i0) / max(1, (i1 - i0)); dl = 1e9
                if ins.op == 'v_cvt_pk_bf16_f32' and tpv is not None:
                    preg = list(ins.writes)[0]
                    dl = tpv + min(q for q, m in enumerate(pv) if preg in m.reads) - o.p_lead
                res.append([t, dl, ins])
            for idx in range(len(res) - 2, -1, -1): res[idx][1] = min(res[idx][1], res[idx+1][1])
            return [Op(ins, t, release=(t_lo if release is None else release), deadline=min(dl, T - 1), stream='sm') for (t, dl, ins) in res]
        rel = o.sm_rel
        if hp:
            ops += sm_stream(j-1, 1, 0, 0, rel, starts[0], i0=CUT0, release=0)
            ops += sm_stream(j-1, 1, 1, rel, ends[1] + rel, starts[2], i0=CUT1)
        if hc:
            ops += sm_stream(j, 0, 0, ends[1] + rel, ends[3] + rel, starts[4])
            ops += sm_stream(j, 0, 1, ends[3] + rel, ends[5] + rel, starts[6])
            ops += sm_stream(j, 1, 0, ends[5] + rel, T, None, i1=CUT0)
            if CUT1: ops += sm_stream(j, 1, 1, T - 1, T, None, i1=CUT1)
        if hc:
            for (kh, ks_slot, vs_slot) in ((0, 0, 2), (1, 4, 6)):
                qk = self.qk_slot(j, kh, 0)
                for n, ins in enumerate(self.k_reads(j, kh)):
                    fu = min(q for q, m in enumerate(qk) if ins.writes & m.reads)
                    t = starts[ks_slot] + n * 18 * o.k_span / 8
                    rl = (ends[ks_slot-1] if ks_slot else -1)
                    ops.append(Op(ins, max(t, rl), release=rl - 1 if ks_slot else -1, deadline=starts[ks_slot+1] + fu - o.k_lead, stream='k'))
                pv = self.pv_slot(j, kh, 0); pvo = self.pv_slot(j, kh, 1); info = []
                for ins in self.v_reads(j, kh):
                    lu = max(q for q, m in enumerate(pvo) if ins.writes & m.reads)
                    fu = min(q for q, m in enumerate(pv) if ins.writes & m.reads)
                    nxt = starts[vs_slot+2] if vs_slot + 2 < 8 else T + 18
                    dl = nxt + fu - o.k_lead
                    if kh == 1: dl = min(dl, T - 1 - o.bar_lead)
                    info.append((starts[vs_slot] + lu + 1, dl, ins))
                info.sort(key=lambda x: x[0])
                w0 = info[0][0]; w1 = min(x[1] for x in info)
                for n, (r, dl, ins) in enumerate(info):
                    ops.append(Op(ins, max(r, w0 + (w1 - w0) * n / len(info)), release=r, deadline=dl, stream='v'))
        dstream = []
        if kv and hc:
            lst = dma_ops_with_setup(self.kv_dma((j + 2) % NST, skip=kvskip))
            pos = o.kv_pos if not side_dma_list else o.kv_pos2; n = 0
            for (ins, st) in lst:
                if ins.kind == 'dma':
                    t = pos[n]; n += 1
                else: t = pos[min(n, 7)] if n < 8 else pos[7]
                dstream.append((t, 0.0, ins, st))
        if side_dma_list:
            (lst, f0, f1, fr) = side_dma_list
            lst = dma_ops_with_setup(lst)
            nd = sum(1 for (i, _) in lst if i.kind == 'dma'); n = 0
            for (ins, st) in lst:
                dstream.append((f0 + (f1 - f0) * n / max(1, nd), fr, ins, st))
                if ins.kind == 'dma': n += 1
        for (t, fr, ins, st) in dstream:
            op = Op(ins, t * T, release=fr * T, stream='dma'); op.setup = st
            ops.append(op)
        for (name, lst) in streams:
            for (ft, fr, ins) in lst:
                ops.append(Op(ins, ft * T, release=fr * T, stream=name))
        seq, fills = list_schedule2(mf, ops, o.minfill, o.maxfill, ahead=o.early)
        self.fills = fills
        seq = list(pre) + expand(seq) + list(post)
        if getattr(o, 'diag_period', None) == j:
            marks = sorted(set(starts + side_pos + [e for e in ends] + [T - 1]))
            marks = [m for m in marks if m < T]
            new = []; k = 0
            for ins in seq:
                if ins.kind == 'mfma':
                    kk = mf.index(ins)
                    if kk in marks:
                        r = S(o.diag_base + 2*len(o.diag_marks), 2); o.diag_marks.append(kk)
                        new.append(raw(f"s_memtime {r}", 'salu', writes=[r]))
                new.append(ins)
            seq = new
        if hc:
            nvm = sum(1 for i in seq if i.kind in ('dma', 'vload', 'vstore', 'vatomic')) if vm_end is None else vm_end
            seq.append(waitcnt(vm=nvm, lgkm=0))
            if o.barrier: seq.append(barrier())
        return seq
Opt.g1_rd = (0.03, 0.3); Opt.g1_dm = (0.62, 0.95)
Opt.pf_w1_at = 8; Opt.pf_w1 = False; Opt.pf_w2 = True
Opt.prescale = False; Opt.pf_kv = False; Opt.wq_early = False; Opt.arrive_at = 6; Opt.hpoll_at = 12; Opt.ln2_rate = 2; Opt.late2 = False; Opt.ps_from = 10; Opt.g2_tail = False; Opt.wot = False; Opt.wo_early = True; Opt.fm64 = False; Opt.g1_pos = 1; Opt.moff = 100
Opt.cut0 = 21; Opt.cut1 = 0
Opt.kv_pos = [0.147, 0.184, 0.22, 0.25, 0.647, 0.684, 0.72, 0.75]
Opt.kv_pos2 = [0.08, 0.12, 0.16, 0.20, 0.26, 0.30, 0.34, 0.38]

def side_dma(srdA, soA, strideA, srdB, soB, strideB, offsA, offsB, stage_tag, skip, modsB=""):
    o = []
    src = S_SR
    if skip:
        o.append(sop('s_max_u32', S(5), S_SR, S_SKIP)); src = S(5)
    o.append(smov('m0', src)); o.append(nop(0))
    for i in range(4): o.append(lds_dep(dma(offsA[i], srdA, soA, off=i*1024), need={f'sR{stage_tag}'}, mark={f'sL{stage_tag}'}))
    o.append(sop('s_add_u32', soA, soA, strideA))
    o.append(sop('s_add_u32', 'm0', src, 4096)); o.append(nop(0))
    for i in range(4): o.append(lds_dep(dma(offsB[i], srdB, soB, off=i*1024, mods=modsB), need={f'sR{stage_tag}'}, mark={f'sL{stage_tag}'}))
    o.append(sop('s_add_u32', soB, soB, strideB))
    return o
def spread(lst, f0, f1, rel=None):
    n = sum(1 for i in lst if cost(i) > 0) or 1
    out = []; k = 0
    for ins in lst:
        t = f0 + (f1 - f0) * k / n
        out.append((t, f0 if rel is None else rel, ins))
        if cost(ins) > 0: k += 1
    return out
def toggle_side():
    return [valu('v_xor_b32', TA[t], 8192, TA[t]) for t in range(4)] + [sop('s_xor_b32', S_SR, S_SR, 8192)]

def g1_parts(n, in_loop):
    st = n & 1
    rd = []
    for t in range(4):
        for u in range(2): rd.append(lds_dep(ds_read_tr(sfa(0, t)[2*u:2*u+2], TA[t], u*2048), need={f'sL{st}'}, mark={f'sR{st}'}))
    for t in range(4):
        for u in range(2): rd.append(lds_dep(ds_read_tr(sfb(0, t)[2*u:2*u+2], TA[t], 4096 + u*2048), need={f'sL{st}'}, mark={f'sR{st}'}))
    mf = [mfma16(sacc(ft, dt), sfa(0, ft), sfb(0, dt), sacc(ft, dt) if n else 0) for ft in range(4) for dt in range(4)]
    dm = []
    if in_loop:
        dm = [scmp('s_cmp_gt_u32', S_N, 13), I(f"s_cselect_b32 {S_SKIP}, 0x30000, 0", 'salu', reads=['scc'], writes=[S_SKIP]), sop('s_add_u32', S_N, S_N, 1)]
        dm += side_dma(SRD_W1, S_SA, 32*3584, SRD_W, S_SB, 32*1024, DA, DB, st, True, modsB=HMOD)
    elif n + 2 <= 15:
        dm = [sop('s_add_u32', S_N, S_N, 1)] + side_dma(SRD_W1, S_SA, 32*3584, SRD_W, S_SB, 32*1024, DA, DB, st, False, modsB=HMOD)
    return rd, mf, dm
def g2_parts(i):
    st = i & 1
    rd = []
    for h in range(2):
        for t in range(4):
            for u in range(2): rd.append(lds_dep(ds_read_tr(g2b(h, t)[2*u:2*u+2], TA[t], h*4096 + u*2048), need={f'sL{st}'}, mark={f'sR{st}'}))
    mfs = [[mfma16(sacc(mt, s_), g2a(h, mt), g2b(h, s_), sacc(mt, s_) if (i or h) else 0) for mt in range(4) for s_ in range(4)] for h in range(2)]
    return rd, mfs
def g2_dma(st, skip):
    return side_dma(SRD_W2, S_SA, 32*4096, SRD_W2, S_SA, 32*4096, DA, DA, st, skip)
def g2_uloads():
    o = []
    for h in range(2):
        for t in range(4): o.append(bload(4, g2a(h, t), DB[t], SRD_W, S_SB, mods="sc1"))
        o.append(sop('s_add_u32', S_SB, S_SB, 1024))
    return o

def proj_gemm2(a, s, TA_, DW, srd, SOFF, stride, S_RING, bread, uoff, name, last_pre=None, last_fill=None, dma_gap0=3, fb_base=0, hooks=None, fill=None, stage_map=None, extra_vm=None, fill_rate=2):
    NS = 3; NK = 16
    def fa(p, mt): return A(64 + 32*p + 4*mt, 4)
    def fb(p, qt): return A(fb_base + 16*p + 4*qt, 4)
    if stage_map is None: stage_map = [(TA_, st*8192, S_RING, st*8192) for st in range(NS)]
    def dma_step(n):
        o = []; st = n % NS
        (_, _, sb, madd) = stage_map[st]
        for h in range(2):
            o.append(sop('s_add_u32', 'm0', sb, madd + h*4096))
            for i in range(4):
                o.append(lds_dep(dma(DW[i], srd, SOFF, off=i*1024), need={f'{name}R{st}'}, mark={f'{name}L{st}'}))
            o.append(sop('s_add_u32', SOFF, SOFF, 16*stride))
        return o
    def reads(n):
        o = []; st = n % NS; p = n & 1
        (ta, imm, _, _) = stage_map[st]
        for qt in range(4): o.append(bread(n, qt, fb(p, qt)))
        for mt in range(8):
            for u in range(2):
                o.append(lds_dep(ds_read_tr(fa(p, mt)[2*u:2*u+2], ta[mt], imm + u*uoff), need={f'{name}L{st}'}, mark={f'{name}R{st}'}))
        return o
    s.extend(reads(0))
    for n in range(NK):
        rd = reads(n + 1) if n + 1 < NK else []
        dm = dma_step(n + 3) if n + 3 < NK else []
        if n == NK - 1:
            if last_pre: s.extend(last_pre)
            dm = list(last_fill or [])
        if extra_vm and n in extra_vm: dm = dm + extra_vm[n]
        if hooks and n in hooks: s.extend(hooks[n])
        mf = [mfma16(O(mt, qt), fa(n & 1, mt), fb(n & 1, qt), O(mt, qt) if n else 0) for mt in range(8) for qt in range(4)]
        gaps = [[] for _ in range(32)]
        g = dma_gap0
        for (ins, st_) in dma_ops_with_setup(dm):
            if ins.kind in ('dma', 'vload'):
                gaps[g - 1] += st_; gaps[g].append(ins); g = min(31, g + 2) if g + 2 <= 31 else 31
            else: gaps[min(31, g - 1)].append(ins) if g > dma_gap0 else gaps[0].append(ins)
        ev = [k for k in range(32) if not any(i.kind in ('dma', 'vload') for i in gaps[k])]
        for k, ins in enumerate(rd): gaps[ev[min(len(ev) - 1, k // 2)]].append(ins)
        for k, m in enumerate(mf):
            a(m); s.extend(sort_gap(gaps[k]))
            if fill:
                take = 0
                lim = fill_rate if not any(i.kind in ('dma', 'vload') for i in gaps[k]) else 0
                while fill and take < lim:
                    ins = fill.pop(0); a(ins)
                    if cost(ins) > 0: take += 1
    assert not fill

def proj_gemm3(a, s, srd, SOFF, VL, bread, abase, bbase, mid_fill=None, mods="sc1"):
    NK = 16; NT = 2*NK
    def fa(t, m): return A(abase + 16*(t % P3_SETS) + 4*m, 4)
    def fb(p, qt): return A(bbase + 16*p + 4*qt, 4)
    rdB = lambda t: [bread(t % NK, qt, fb(t & 1, qt)) for qt in range(4)]
    s.extend(rdB(0))
    fill = list(mid_fill or [])
    for t in range(NT):
        h, n = t // NK, t % NK
        rd = rdB(t + 1) if t + 1 < NT else []
        ld = proj3_loads(srd, SOFF, VL, t + P3_DEPTH, abase, mods) if t + P3_DEPTH < NT else []
        mf = [mfma16(O(4*h + m, qt), fa(t, m), fb(t & 1, qt), O(4*h + m, qt) if n else 0) for m in range(4) for qt in range(4)]
        gaps = [[] for _ in range(16)]
        g = 3
        for ins in ld:
            if ins.kind == 'vload':
                gaps[min(15, g)].append(ins); g += 3
            else: gaps[min(15, max(0, g - 1))].append(ins)
        for k, ins in enumerate(rd): gaps[1 + 3*k].append(ins)
        for k, m in enumerate(mf):
            a(m); s.extend(sort_gap(gaps[k]))
            if t >= NT - P3_DEPTH and fill:
                for _ in range(1 if gaps[k] else 2):
                    if fill: a(fill.pop(0))
                while fill and cost(fill[0]) == 0: a(fill.pop(0))
    s.extend(fill)
P3_SETS = 8; P3_DEPTH = 7
def proj3_loads(srd, SOFF, VL, t, abase, mods="sc1"):
    o = []
    for m in range(4): o.append(bload(4, A(abase + 16*(t % P3_SETS) + 4*m, 4), VL, srd, SOFF, off=m*1024, mods=mods))
    o.append(sop('s_add_u32', SOFF, SOFF, 32768) if (t % 16) != 15 else sop('s_sub_u32', SOFF, SOFF, 15*32768 - 4096))
    return o

def build(opt=None):
    o = opt or Opt()
    at = Attn(o)
    STP = Stamps(o.timing, 3); STP.cyc = getattr(o, 'cyc', False)
    s = []; a = s.append
    l = V(0)
    s.extend(STP())
    if getattr(o, 'dbgtime', False): a(raw('s_memrealtime s[94:95]', 'smem', writes=[S(94, 2)]))
    a(sload(S(4, 2), ARG_K)); a(sload(S(6, 2), ARG_V)); a(sload(S(22, 2), ARG_WS))
    a(sload(S(36, 2), ARG_WQ)); a(sload(S(56, 2), ARG_WO))
    a(sload(S(62, 2), ARG_W1)); a(sload(S(60, 2), ARG_W2)); a(sload(S(58, 2), ARG_DBG))
    if o.fuse_ln: a(sload(S(100, 2), ARG_X))
    a(raw("s_cmp_ge_u32 s2, 256")); a(raw("s_cbranch_scc1 L_k3_end", 'branch'))
    a(valu('v_lshrrev_b32', V(1), 6, V(0)))
    a(readfirstlane(S_WAVE, V(1)))
    a(valu('v_and_b32', l, 63, l))
    a(waitcnt(lgkm=0))
    a(raw("s_and_b32 s25, s2, 7", writes=[S_G])); a(raw("s_lshr_b32 s26, s2, 3", writes=[S_QB]))
    S_RING = S(41); S_SO = S(42); S_T = S(43)
    SRD_X = S(96, 4)
    XP = V(48, 64)
    if o.fuse_ln:
        s.extend(make_srd(SRD_X, S(100, 2), 2 << 20))
        a(valu('v_and_b32', V(1), 15, l)); a(valu('v_lshlrev_b32', V(1), 10, V(1)))
        a(valu('v_lshrrev_b32', V(2), 4, l)); a(valu('v_lshl_add_u32', V(1), V(2), 4, V(1)))
        a(raw("s_lshl_b32 s42, s26, 6", writes=[S_SO])); a(raw("s_lshl_b32 s43, s24, 4", writes=[S_T]))
        a(raw("s_add_u32 s42, s42, s43", writes=[S_SO])); a(raw("s_lshl_b32 s42, s42, 10", writes=[S_SO]))
        for i in range(16): a(bload(4, XP[4*i:4*i+4], V(1), SRD_X, S_SO, off=64*i))
    s.extend(make_srd(SRD_WQ, S(36, 2), 512*4096*2))
    a(valu('v_lshlrev_b32', V(7), 4, l))
    if o.prefetch:
        a(raw("s_lshl_b32 s42, s26, 4", writes=[S_SO])); a(raw("s_lshl_b32 s43, s24, 2", writes=[S_T]))
        a(raw("s_add_u32 s42, s42, s43", writes=[S_SO])); a(raw("s_lshl_b32 s42, s42, 13", writes=[S_SO]))
        a(raw("s_lshl_b32 s43, s25, 10", writes=[S_T])); a(raw("s_add_u32 s42, s42, s43", writes=[S_SO]))
        for n in range(4):
            a(bload(4, A(192 + 4*n, 4), V(7), SRD_WQ, S_SO)); a(sop('s_add_u32', S_SO, S_SO, 8192))
    a(raw("s_lshl_b32 s27, s25, 19", writes=[S(27)]))
    a(raw("s_sub_u32 s40, 0x400000, s27", writes=[S(40)]))
    s.extend(make_srd(SRD_K, S(4, 2), S(40), add=S(27))); s.extend(make_srd(SRD_V, S(6, 2), S(40), add=S(27)))
    s.extend(make_srd(SRD_W, S(22, 2), WS_END))
    s.extend(make_srd(SRD_WO, S(56, 2), 4096*512*2))
    a(raw("s_lshr_b32 s46, s26, 3", writes=[S_T64])); a(raw("s_lshl_b32 s46, s46, 3", writes=[S_T64])); a(raw("s_add_u32 s46, s46, s25", writes=[S_T64]))
    a(raw("s_and_b32 s47, s26, 7", writes=[S_DT]))
    a(raw("s_cmp_lt_u32 s46, 28"))
    a(raw(f"s_cselect_b32 s44, {2048*1792*2}, 0", writes=[S(44)]))
    a(raw(f"s_cselect_b32 s45, {WS_END}, 0", writes=[S(45)]))
    s.extend(make_srd(SRD_W1, S(62, 2), S(44)))
    s.extend(make_srd(SRD_W2, S(60, 2), 1792*2048*2))
    s.extend(make_srd(SRD_DBG, S(58, 2), 256))
    s.extend(make_srd(SRD_US, S(22, 2), S(45)))
    if o.pf_kv:
        a(valu('v_and_b32', V(2), 15, l)); a(raw("s_lshl_b32 s44, s26, 4", writes=[S(44)])); a(valu('v_add_u32', V(2), S(44), V(2))); a(valu('v_lshlrev_b32', V(2), 7, V(2)))
        a(I("v_cmp_gt_u32 vcc, 16, v0", 'valu', reads=[V(0)], writes=['vcc'])); a(nop(1))
        a(I(f"v_cndmask_b32 v2, -1, v2, vcc", 'valu', reads=[V(2), 'vcc'], writes=[V(2)]))
        a(bload(1, A(209), V(2), SRD_K, 0)); a(bload(1, A(210), V(2), SRD_V, 0))
    a(raw("s_lshl_b32 s21, s24, 12", writes=[S_WOFF]))
    a(raw("s_mul_i32 s41, s24, 24576", writes=[S_RING]))
    for r in range(4): a(valu('v_mov_b32', ONES[r], 0x3F803F80))
    if not o.fuse_ln:
        a(raw("s_lshl_b32 s42, s26, 6", writes=[S_SO])); a(raw("s_lshl_b32 s43, s24, 4", writes=[S_T]))
        a(raw("s_add_u32 s42, s42, s43", writes=[S_SO])); a(raw("s_lshl_b32 s42, s42, 10", writes=[S_SO]))
        a(raw("s_lshl_b32 s43, s24, 14", writes=[S_T])); a(raw(f"s_add_u32 s43, s43, {XBASE}", writes=[S_T]))
        for n in range(16):
            if n % 4 == 0: a(smov('m0', S_T))
            a(valu('v_xor_b32', V(14 + (n & 3)), n << 4, V(7)))
            a(lds_dep(dma(V(14 + (n & 3)), SRD_W, S_SO, off=(n & 3)*1024), mark={'XN'}))
            if n % 4 == 3:
                a(sop('s_add_u32', S_SO, S_SO, 4096)); a(sop('s_add_u32', S_T, S_T, 4096))
    PTA = [V(32 + i) for i in range(8)]; XA = [V(40 + i) for i in range(4)]; DW = [V(44 + i) for i in range(4)]
    dma_off_256(a, l, DW, 8192, 'q', S_T)
    a(raw("s_lshl_b32 s42, s25, 2", writes=[S_SO])); a(raw("s_add_u32 s42, s42, s24", writes=[S_SO]))
    a(raw("s_lshl_b32 s42, s42, 8", writes=[S_SO]))
    def wq_stage(n):
        o_ = []
        for h in range(2):
            o_ += [sop('s_add_u32', 'm0', S_RING, n*8192 + h*4096), nop(0)]
            for i in range(4): o_.append(lds_dep(dma(DW[i], SRD_WQ, S_SO, off=i*1024), need={f'qR{n}'}, mark={f'qL{n}'}))
            o_.append(sop('s_add_u32', S_SO, S_SO, 16*8192))
        return o_
    a(valu('v_mov_b32', V(6), S_RING))
    addr_tr256(a, l, PTA, V(6), 8)
    a(valu('v_and_b32', V(1), 15, l)); a(valu('v_lshrrev_b32', V(2), 4, l))
    a(valu('v_lshlrev_b32', V(3), 10, V(1))); a(valu('v_add_u32', V(3), XBASE, V(3)))
    for k in range(4):
        a(valu('v_add_u32', V(4), 4*k, V(2))); a(valu('v_xor_b32', V(4), V(4), V(1)))
        a(valu('v_lshl_add_u32', XA[k], V(4), 4, V(3)))
    a(valu('v_lshrrev_b32', V(2), 4, l)); a(valu('v_and_b32', V(3), 15, l))
    for i in range(4):
        a(valu('v_add_u32', V(4), 4*i, V(2))); a(valu('v_xor_b32', V(4), V(4), V(3)))
        a(valu('v_lshlrev_b32', V(4), 4, V(4))); a(valu('v_lshl_add_u32', KA[i], V(3), 8, V(4)))
    a(valu('v_lshrrev_b32', V(4), 2, V(3))); a(valu('v_and_b32', V(5), 3, l))
    a(valu('v_lshl_add_u32', V(7), V(2), 2, V(4)))
    a(valu('v_and_b32', V(1), 7, V(7))); a(valu('v_lshlrev_b32', V(1), 1, V(1)))
    a(valu('v_lshlrev_b32', V(7), 8, V(7)))
    a(valu('v_and_b32', V(6), 1, V(5))); a(valu('v_lshl_add_u32', V(7), V(6), 3, V(7)))
    a(valu('v_add_u32', V(7), VBASE, V(7)))
    a(valu('v_lshrrev_b32', V(6), 1, V(5)))
    for dt in range(8):
        a(valu('v_add_u32', V(5), 2*dt, V(6))); a(valu('v_xor_b32', V(5), V(5), V(1)))
        a(valu('v_lshl_add_u32', VA[dt], V(5), 4, V(7)))
    a(valu('v_lshlrev_b32', V(5), 8, V(2))); a(valu('v_add_u32', V(5), S_WOFF, V(5)))
    for n in range(4):
        a(valu('v_add_u32', V(6), 4*n, V(2))); a(valu('v_xor_b32', V(6), V(6), V(3)))
        a(valu('v_lshl_add_u32', DK[n], V(6), 4, V(5)))
    for n in range(2):
        a(valu('v_add_u32', V(6), 4*n, V(2))); a(valu('v_lshlrev_b32', V(6), 1, V(6)))
        a(valu('v_xor_b32', V(6), V(6), V(3))); a(valu('v_lshl_add_u32', DV[n], V(6), 4, V(5)))
    a(raw("s_lshl_b32 s27, s24, 14", writes=[S_XB])); a(raw(f"s_add_u32 s27, s27, {XBASE}", writes=[S_XB]))
    a(smov(S_SR, S_XB))
    a(valu('v_mov_b32', V(26), S_XB))
    tr_addr_128(a, l, TA, V(26), V(1), V(2), V(3), V(4))
    dma_off_128(a, l, DA, 3584, V(1), V(2), V(3), s_tmp=S_T)
    dma_off_128(a, l, DB, 1024, V(1), V(2), V(3), s_tmp=S_T)
    a(raw("s_lshl_b32 s44, s24, 9", writes=[S(44)]))
    a(raw("s_mul_i32 s39, s44, 3584", writes=[S_SA])); a(raw("s_lshl_b32 s45, s46, 7", writes=[S(45)])); a(raw("s_add_u32 s39, s39, s45", writes=[S_SA]))
    a(raw("s_lshl_b32 s36, s44, 10", writes=[S_SB])); a(raw("s_lshl_b32 s45, s47, 7", writes=[S(45)])); a(raw("s_add_u32 s36, s36, s45", writes=[S_SB]))
    a(raw(f"s_add_u32 s36, s36, {WS_H}", writes=[S_SB]))
    a(smov(S_N, 0)); a(smov(S_SKIP, 0))
    if getattr(o, 'fine', False): s.extend(STP())
    s.extend(wq_stage(0))
    if getattr(o, 'fine', False):
        a(lds_dep(nop(0), need=set(XP.regs()))); s.extend(STP())
    def pk(op, d, x, y, z=None, mods=""):
        srcs = [x, y] + ([z] if z is not None else [])
        return I(f"{op} {d}, " + ", ".join(str(t) for t in srcs) + (" " + mods if mods else ""), 'valu', reads=srcs, writes=[d], op=op)
    if o.fuse_ln:
        F = lambda i, e: V(128 + 8*i + e)
        D1 = V(28, 4); D2 = V(4, 4)
        for i in range(16):
            a(mfma16(D1, ONES, XP[4*i:4*i+4], D1 if i else 0)); a(mfma16(D2, XP[4*i:4*i+4], XP[4*i:4*i+4], D2 if i else 0))
            for q in range(4):
                a(valu('v_lshlrev_b32', F(i, 2*q), 16, XP[4*i+q])); a(valu('v_and_b32', F(i, 2*q+1), 0xffff0000, XP[4*i+q]))
        if o.wq_early: s.extend(wq_stage(1)); s.extend(wq_stage(2))
        a(valu('v_and_b32', V(1), 3, l))
        for r in (2, 1, 0):
            a(I(f"v_cmp_eq_u32 vcc, {r}, v1", 'valu', reads=[V(1)], writes=['vcc']))
            a(I(f"v_cndmask_b32 v7, v7, {D2[r]}, vcc", 'valu', reads=[V(7), D2[r], 'vcc'], writes=[V(7)]))
        a(valu('v_and_b32', V(1), 15, l)); a(valu('v_lshrrev_b32', V(2), 2, V(1)))
        a(valu('v_lshl_add_u32', V(2), V(2), 4, V(1))); a(valu('v_lshlrev_b32', V(2), 2, V(2)))
        a(I("ds_bpermute_b32 v3, v2, v7", 'ds_read', reads=[V(2), V(7)], writes=[V(3)]))
        MEAN = V(28); RS = V(2); NB = V(3)
        a(valu('v_mul_f32', MEAN, 1.0/512, MEAN))
        a(valu('v_mul_f32', V(3), 1.0/512, V(3)))
        a(valu('v_fma_f32', V(3), '-v28', MEAN, V(3)))
        a(valu('v_max_f32', V(3), 0, V(3)))
        a(valu('v_add_f32', V(3), 1e-5, V(3)))
        a(valu('v_rsq_f32', RS, V(3)))
        if o.prescale: a(valu('v_mul_f32', RS, QSCALE, RS))
        a(valu('v_mul_f32', NB, MEAN, RS)); a(valu('v_sub_f32', NB, 0, NB))
        for i in range(16):
            for e in range(8): a(valu('v_fma_f32', F(i, e), F(i, e), RS, NB))
        a(valu('v_and_b32', V(4), 15, l)); a(valu('v_lshrrev_b32', V(5), 4, l))
        a(raw("s_lshl_b32 s43, s24, 14", writes=[S_T])); a(raw(f"s_add_u32 s43, s43, {XBASE}", writes=[S_T]))
        a(valu('v_lshlrev_b32', V(6), 10, V(4))); a(valu('v_add_u32', V(6), S_T, V(6)))
        WA = [V(28 + k) for k in range(4)]
        for k in range(4):
            a(valu('v_add_u32', V(7), 4*k, V(5))); a(valu('v_xor_b32', V(7), V(7), V(4))); a(valu('v_lshl_add_u32', WA[k], V(7), 4, V(6)))
        for i in range(16):
            for q in range(4): a(valu('v_cvt_pk_bf16_f32', XP[4*i+q], F(i, 2*q), F(i, 2*q+1)))
            a(ds_write(4, WA[i & 3], XP[4*i:4*i+4], off=(i >> 2)*256))
        if getattr(o, 'fine', False): s.extend(STP())
        a(waitcnt(lgkm=0)); a(barrier())
        if getattr(o, 'fine', False): s.extend(STP())
    else:
        a(waitcnt(vm=8)); a(barrier())
    if not (o.fuse_ln and o.wq_early): s.extend(wq_stage(1)); s.extend(wq_stage(2))
    if o.fuse_ln:
        s_main, a_main = s, a
        ln2 = []; s = ln2; a = ln2.append
        R0 = [V(64 + i) for i in range(8)]; R1 = [V(72 + i) for i in range(8)]
        PK = [V(80, 4), V(84, 4)]
        a(raw("s_lshl_b32 s44, s25, 3", writes=[S(44)])); a(raw("s_lshl_b32 s45, s24, 1", writes=[S(45)])); a(raw("s_add_u32 s44, s44, s45", writes=[S(44)]))
        for k in range(2):
            a(sop('s_add_u32', S(45), S(44), k)); a(sop('s_and_b32', S(5), S(45), 15)); a(raw("s_lshl_b32 s5, s5, 4", writes=[S(5)]))
            a(raw("s_lshl_b32 s45, s45, 10", writes=[S(45)])); a(raw(f"s_add_u32 s45, s45, {XBASE}", writes=[S(45)]))
            a(valu('v_lshlrev_b32', V(94), 4, l)); a(valu('v_xor_b32', V(94), S(5), V(94))); a(valu('v_add_u32', V(94), S(45), V(94)))
            a(ds_read_b128(PK[k], V(94)))
        RR = [R0, R1]; SM = [V(88), V(90)]; TT = [V(89), V(91)]; QQ = [V(92), V(93)]
        for k in range(2):
            for q in range(4):
                a(valu('v_lshlrev_b32', RR[k][2*q], 16, PK[k][q])); a(valu('v_and_b32', RR[k][2*q+1], 0xffff0000, PK[k][q]))
        def both(f):
            x0, x1 = f(0), f(1)
            for u, v_ in zip(x0, x1): a(u); a(v_)
        both(lambda k: [valu('v_add_f32', SM[k], RR[k][0], RR[k][1])] + [valu('v_add_f32', SM[k], SM[k], RR[k][e]) for e in range(2, 8)])
        both(lambda k: wave_sum(SM[k], TT[k]))
        both(lambda k: [valu('v_mul_f32', SM[k], 1.0/512, SM[k])] + [valu('v_sub_f32', RR[k][e], RR[k][e], SM[k]) for e in range(8)])
        both(lambda k: [valu('v_mul_f32', QQ[k], RR[k][0], RR[k][0])] + [valu('v_fmac_f32', QQ[k], RR[k][e], RR[k][e], dst_read=True) for e in range(1, 8)])
        both(lambda k: wave_sum(QQ[k], TT[k]))
        both(lambda k: [valu('v_mov_b32', TT[k], 1e-5 * (QSCALE*QSCALE if o.prescale else 1.0)), valu('v_fmac_f32', TT[k], 1.0/512, QQ[k], dst_read=True), valu('v_rsq_f32', TT[k], TT[k])] +
                       [valu('v_mul_f32', RR[k][e], RR[k][e], TT[k]) for e in range(8)] + [valu('v_cvt_pk_bf16_f32', PK[k][q], RR[k][2*q], RR[k][2*q+1]) for q in range(4)])
        a(raw("s_lshl_b32 s45, s26, 6", writes=[S(45)])); a(raw("s_add_u32 s45, s45, s44", writes=[S(45)])); a(raw("s_lshl_b32 s45, s45, 10", writes=[S(45)]))
        a(raw(f"s_add_u32 s45, s45, {WS_H}", writes=[S(45)]))
        a(valu('v_lshlrev_b32', V(94), 4, l))
        a(lds_dep(bstore(4, PK[0], V(94), SRD_W, S(45), mods="sc1"), mark={'HS'}))
        a(lds_dep(bstore(4, PK[1], V(94), SRD_W, S(45), off=1024, mods="sc1"), mark={'HS'}))
        a(valu('v_lshlrev_b32', V(95), 25, l)); a(valu('v_mov_b32', V(96), 0))
        a(raw("s_and_b32 s45, s2, 127", writes=[S(45)])); a(raw("s_lshl_b32 s45, s45, 8", writes=[S(45)])); a(raw(f"s_add_u32 s45, s45, {WS_CNT}", writes=[S(45)]))
        a(lds_dep(bstore(1, V(96), V(95), SRD_W, S(45), mods="sc1"), mark={'HS'}))
        s, a = s_main, a_main
    s.extend(STP())
    def xread(n, qt, dst): return ds_read_b128(dst, XA[n & 3], (n >> 2)*256 + qt*16384)
    kv0 = [smov(S_TILE, 0)] + at.kv_dma(0)
    later = []; later2 = []
    if o.side: later += side_dma(SRD_W1, S_SA, 32*3584, SRD_W, S_SB, 32*1024, DA, DB, 0, False, modsB=HMOD) + [sop('s_xor_b32', S_SR, S_SR, 8192)]
    later2 += at.kv_dma(1)
    if o.side: later2 += side_dma(SRD_W1, S_SA, 32*3584, SRD_W, S_SB, 32*1024, DA, DB, 1, False, modsB=HMOD) + [sop('s_xor_b32', S_SR, S_SR, 8192)]
    if not o.late2: later += later2; later2 = []
    hooks = {}
    last_pre = [waitcnt(lgkm=0)]
    if o.fuse_ln:
        arrive = [lds_dep(nop(0), need={'HS'}), barrier(),
                  valu('v_mov_b32', V(4), 1), valu('v_lshlrev_b32', V(5), 25, l),
                  raw("s_and_b32 s44, s2, 3", writes=[S(44)]), raw("s_lshl_b32 s44, s44, 6", writes=[S(44)]),
                  raw("s_cmp_eq_u32 s24, 0"), raw("s_cselect_b32 s44, s44, 0x1000", reads=['scc'], writes=[S(44)]),
                  I(f"buffer_atomic_add v4, v5, {SRD_DBG}, s44 offen sc1", 'vatomic', reads=[V(4), V(5), SRD_DBG, S(44)], writes=[])]
        hooks[o.arrive_at] = arrive
        if o.prefetch and o.side and o.pf_w1:
            hooks[o.pf_w1_at] = [raw("s_lshl_b32 s44, s47, 2", writes=[S(44)]), raw("s_add_u32 s44, s44, s24", writes=[S(44)]), raw("s_lshl_b32 s44, s44, 6", writes=[S(44)]),
                        valu('v_add_u32', V(2), S(44), l), smov(S(44), 3584), valu('v_mul_lo_u32', V(2), V(2), S(44)),
                        raw("s_lshl_b32 s44, s46, 7", writes=[S(44)]), bload(1, A(208), V(2), SRD_W1, S(44))]
        hooks[o.hpoll_at] = [valu('v_and_b32', V(1), 3, l), valu('v_lshlrev_b32', V(1), 6, V(1)), bload(1, V(6), V(1), SRD_DBG, 0, mods="sc1")]
        chk = lambda: [I("v_cmp_le_u32 vcc, 64, v6", 'valu', reads=[V(6)], writes=['vcc']), nop(3), raw("s_cmp_eq_u64 vcc, -1", reads=['vcc'])]
        last_pre += [smov(S(45), 0), label("L_k3_hpoll")] + chk() + [raw("s_cbranch_scc1 L_k3_hpollok", 'branch'),
                     raw("s_sleep 4"), bload(1, V(6), V(1), SRD_DBG, 0, mods="sc1"), waitcnt(vm=0),
                     sop('s_add_u32', S(45), S(45), 1), scmp('s_cmp_lt_u32', S(45), 0x40000), raw("s_cbranch_scc1 L_k3_hpoll", 'branch'), label("L_k3_hpollok")]
    if getattr(o, 'qdiag', False):
        for n_ in (2, 4, 6, 8, 10, 12, 14): hooks[n_] = STP() + hooks.get(n_, [])
    last_pre += [barrier()]
    proj_gemm2(a, s, PTA, DW, SRD_WQ, S_SO, 8192, S_RING, xread, 1024, 'q', last_pre=last_pre, last_fill=kv0, hooks=hooks, fill=(ln2 if o.fuse_ln else None), fill_rate=o.ln2_rate)
    s.extend(STP())
    a(sload(S(96, 2), ARG_B1)); a(sload(S(98, 2), ARG_B2))
    a(smov(S(44), QSCALE))
    qpost = []
    for i in range(4):
        for qt in range(4):
            x, y = O(2*i, qt), O(2*i+1, qt)
            b_ = qpost.append
            if not (o.prescale and o.fuse_ln):
                for r in range(4):
                    b_(valu('v_mul_f32', x[r], S(44), x[r])); b_(valu('v_mul_f32', y[r], S(44), y[r]))
            T4 = V(48 + 4*((i*4+qt) & 1), 4)
            X0, X1, Y0, Y1 = T4[0], T4[1], T4[2], T4[3]
            b_(valu('v_cvt_pk_bf16_f32', X0, x[0], x[1])); b_(valu('v_cvt_pk_bf16_f32', X1, x[2], x[3]))
            b_(valu('v_cvt_pk_bf16_f32', Y0, y[0], y[1])); b_(valu('v_cvt_pk_bf16_f32', Y1, y[2], y[3]))
            b_(permlane32_swap(X0, Y0)); b_(permlane32_swap(X1, Y1))
            b_(permlane16_swap(X0, Y0)); b_(permlane16_swap(X1, Y1))
            q = Q(i, qt)
            b_(valu('v_accvgpr_write_b32', q[0], X0)); b_(valu('v_accvgpr_write_b32', q[1], X1))
            b_(valu('v_accvgpr_write_b32', q[2], Y0)); b_(valu('v_accvgpr_write_b32', q[3], Y1))
    grp = group_dma(later)
    step = max(1, len(qpost) // (len(grp) + 1)); gi = 0
    for k, ins in enumerate(qpost):
        a(ins)
        if k % step == step - 1 and gi < len(grp):
            s.extend(expand([grp[gi]])); gi += 1
            while gi < len(grp) and not isinstance(grp[gi], Grp):
                a(grp[gi]); gi += 1
    for g_ in grp[gi:]: s.extend(expand([g_]))
    s.extend(STP())
    a(waitcnt(vm=((8 if o.side else 0) if o.late2 else (24 if o.side else 8)))); a(barrier())
    MX = [V(18 + 0), V(19), V(20), V(21)] if False else [V(28), V(29), V(30), V(31)]
    g2l = group_dma(later2)
    for kh in range(2 if o.fm64 else 1):
        s.extend(at.k_reads(0, kh))
        for c in range(2):
            for q2 in range(2):
                for t in range(2):
                    for i in range(4):
                        a(mfma16(Sx(c, t, q2), Kf(t*4+i), Q(i, 2*c+q2), 0 if i == 0 else Sx(c, t, q2)))
                        if g2l and (i & 1):
                            s.extend(expand([g2l.pop(0)]))
                            while g2l and not isinstance(g2l[0], Grp): a(g2l.pop(0))
        for qt in range(4):
            c, q2 = qt >> 1, qt & 1
            s0, s1 = Sx(c, 0, q2), Sx(c, 1, q2); m = MX[qt]
            if kh == 0: a(valu('v_max3_f32', m, s0[0], s0[1], s0[2]))
            else: a(valu('v_max3_f32', m, s0[0], s0[1], m)); a(valu('v_max_f32', m, m, s0[2]))
            a(valu('v_max3_f32', m, m, s0[3], s1[0])); a(valu('v_max3_f32', m, m, s1[1], s1[2])); a(valu('v_max_f32', m, m, s1[3]))
    s.extend(expand(g2l))
    for qt in range(4):
        m = MX[qt]; t = V(5)
        a(valu('v_mov_b32', t, m)); a(permlane16_swap(m, t)); a(valu('v_max_f32', m, m, t))
        a(valu('v_mov_b32', t, m)); a(permlane32_swap(m, t)); a(valu('v_max_f32', m, m, t))
        for r in range(4): a(valu('v_sub_f32', NM[qt][r], float(-o.moff), m))
    s.extend(STP())
    pro = s
    B1 = S(28, 4); B2 = S(32 - 4, 4)
    def scratch_write():
        o_ = [valu('v_lshlrev_b32', V(27), 4, l), valu('v_add_u32', V(26), S_XB, V(27))]
        for i in range(4):
            for j in range(4): o_.append(ds_write(4, V(26), sacc(i, j), off=(i*4+j)*1024))
        o_ += [raw("s_lshl_b32 s43, s24, 10", writes=[S_TMP]), raw(f"s_add_u32 s43, s43, {XBASE}", writes=[S_TMP]), valu('v_add_u32', V(27), S_TMP, V(27))]
        return o_
    PS = [[V(18, 2), V(20, 2), V(22, 2), V(24, 2)], [V(28, 2), V(30, 2), V(2, 2), V(4, 2)]]
    def unit_reads(u):
        i, h = u >> 1, u & 1
        return [ds_read_b64(PS[u & 1][w], V(27), w*16384 + i*4096 + 8*h) for w in range(4)]
    def unit_sum(u, e):
        P_ = PS[u & 1]; x = P_[3][e]
        return [valu('v_add_f32', P_[0][e], P_[0][e], P_[1][e]), valu('v_add_f32', x, x, P_[2][e]), valu('v_add_f32', x, x, P_[0][e])], x
    per = {}
    def side_spec(j):
        kw = dict(first=(j == 0), last_drain=(j == 32), kv=(j <= 29))
        if not o.side: return kw
        if j <= 15:
            rd, mf, dm = g1_parts(j, in_loop=(j >= 1))
            kw['side_groups'] = [(5, mf)] if o.g1_pos == 0 else ([(3, mf[:8]), (5, mf[8:])] if o.g1_pos == 1 else [(7, mf)] if o.g1_pos == 2 else [(1, mf[:4]), (3, mf[4:8]), (5, mf[8:12]), (6, mf[12:])])
            if getattr(o, 'x_noread', False): rd = []
            if getattr(o, 'x_nodma', False): dm = [i for i in dm if i.kind != 'dma' and 'm0' not in i.writes]
            kw['streams'] = [('srd', spread(rd, o.g1_rd[0], o.g1_rd[1]))]
            if dm: kw['side_dma_list'] = (dm, o.g1_dm[0], o.g1_dm[1], 0.5)
            kw['post'] = toggle_side()
        elif j == 16:
            pre = make_srd(B1, S(96, 2), 1792*2)
            bl = [valu('v_lshrrev_b32', V(1), 4, l), valu('v_lshlrev_b32', V(1), 3, V(1)), raw("s_lshl_b32 s44, s46, 7", writes=[S(44)])]
            bl += [bload(2, A(192 + 2*ft, 2), V(1), B1, S(44), off=32*ft) for ft in range(4)]
            kw['pre'] = pre
            pf = []
            if o.prefetch and o.pf_w2 and not o.g2_tail:
                pf = [raw("s_mul_i32 s44, s47, 224", writes=[S(44)]), raw("s_mul_i32 s45, s24, 56", writes=[S(45)]), raw("s_add_u32 s44, s44, s45", writes=[S(44)]),
                      valu('v_add_u32', V(2), S(44), l), valu('v_lshlrev_b32', V(2), 12, V(2)), raw("s_lshl_b32 s45, s46, 7", writes=[S(45)]),
                      bload(1, A(200), V(2), SRD_W2, S(45))]
            if o.wot:
                pf += [raw("s_lshl_b32 s3, s25, 4", writes=[S(3)]), raw("s_lshr_b32 s5, s26, 1", writes=[S(5)]), raw("s_add_u32 s3, s3, s5", writes=[S(3)]),
                       raw("s_lshl_b32 s3, s3, 15", writes=[S(3)]), raw("s_and_b32 s5, s26, 1", writes=[S(5)]), raw("s_lshl_b32 s5, s5, 9", writes=[S(5)]),
                       raw("s_add_u32 s3, s3, s5", writes=[S(3)]), raw("s_lshl_b32 s5, s24, 7", writes=[S(5)]), raw("s_add_u32 s3, s3, s5", writes=[S(3)]),
                       valu('v_and_b32', V(3), 31, l), valu('v_lshlrev_b32', V(3), 10, V(3)), bload(1, A(201), V(3), SRD_WO, S(3))]
            kw['streams'] = [('sw', spread(scratch_write(), 0.1, 0.7)), ('sb', spread(bl, 0.05, 0.1)), ('spf', [(0.15, 0.12, i) for i in pf])]
        elif j == 17:
            comp = [smov(S(45), -2.0*0.7978845608028654*LOG2E*0.044715), valu('v_mov_b32', V(1), -2.0*0.7978845608028654*LOG2E)]
            comp += [raw("s_lshl_b32 s43, s47, 2", writes=[S_TMP]), raw("s_add_u32 s43, s43, s24", writes=[S_TMP]), raw("s_mul_i32 s43, s43, 56", writes=[S_TMP]),
                     raw("s_lshl_b32 s39, s46, 1", writes=[S_SA]), raw("s_add_u32 s43, s43, s39", writes=[S_TMP]), raw("s_lshl_b32 s43, s43, 10", writes=[S_TMP]),
                     raw(f"s_add_u32 s43, s43, {WS_U}", writes=[S_TMP]), valu('v_lshlrev_b32', V(26), 4, l)]
            OUTA = A(240, 8)
            comp += unit_reads(0)
            for u in range(8):
                ft, h = u >> 1, u & 1
                if u + 1 < 8: comp += unit_reads(u + 1)
                comp.append(valu('v_accvgpr_read_b32', V(6), A(192 + 2*ft + h)))
                xs = []
                for e in range(2):
                    sm_, x = unit_sum(u, e); comp += sm_; xs.append(x)
                    comp.append(valu('v_and_b32', V(7), 0xffff0000, V(6)) if e else valu('v_lshlrev_b32', V(7), 16, V(6)))
                    comp.append(valu('v_add_f32', x, x, V(7)))
                    comp += [valu('v_mul_f32', V(7), x, x), valu('v_fma_f32', V(7), V(7), S(45), V(1)), valu('v_mul_f32', V(7), V(7), x), valu('v_exp_f32', V(7), V(7)),
                             valu('v_add_f32', V(7), 1.0, V(7)), valu('v_rcp_f32', V(7), V(7)), valu('v_mul_f32', x, x, V(7))]
                comp += [valu('v_cvt_pk_bf16_f32', V(6), xs[0], xs[1]), valu('v_accvgpr_write_b32', OUTA[u], V(6))]
                if u in (3, 7): comp.append(lds_dep(bstore(4, OUTA[u-3:u+1], V(26), SRD_US, S_TMP, off=(u >> 2)*1024, mods="sc1"), mark={'US'}))
            kw['streams'] = [('scomp', spread(comp, 0.0, 0.98))]
        elif o.g2_tail and j >= 18:
            if j == 18:
                sig = [valu('v_mov_b32', V(4), 1), valu('v_lshlrev_b32', V(5), 25, l),
                       raw("s_lshl_b32 s44, s47, 2", writes=[S(44)]), raw("s_add_u32 s44, s44, s24", writes=[S(44)]), raw("s_lshl_b32 s44, s44, 8", writes=[S(44)]),
                       raw(f"s_add_u32 s44, s44, {WS_CNT}", writes=[S(44)]),
                       lds_dep(I(f"buffer_atomic_add v4, v5, {SRD_US}, s44 offen sc1", 'vatomic', reads=[V(4), V(5), SRD_US, S(44)], writes=[]), need={'US'})]
                kw['streams'] = [('ssig', [(0.6, 0.5, i) for i in sig])]
            elif j == 28:
                pl = [valu('v_and_b32', V(1), 3, l), valu('v_lshlrev_b32', V(1), 8, V(1)), raw("s_lshl_b32 s43, s47, 10", writes=[S_TMP]),
                      raw(f"s_add_u32 s43, s43, {WS_CNT}", writes=[S_TMP]), bload(1, V(6), V(1), SRD_W, S_TMP, mods="sc1")]
                pf = []
                if o.prefetch and o.pf_w2:
                    pf = [raw("s_mul_i32 s44, s47, 224", writes=[S(44)]), raw("s_mul_i32 s45, s24, 56", writes=[S(45)]), raw("s_add_u32 s44, s44, s45", writes=[S(44)]),
                          valu('v_add_u32', V(2), S(44), l), valu('v_lshlrev_b32', V(2), 12, V(2)), raw("s_lshl_b32 s45, s46, 7", writes=[S(45)]),
                          bload(1, A(200), V(2), SRD_W2, S(45))]
                if o.prefetch:
                    pf += [raw("s_lshl_b32 s44, s25, 5", writes=[S(44)]), raw("s_add_u32 s44, s44, s26", writes=[S(44)]), raw("s_lshl_b32 s44, s44, 2", writes=[S(44)]),
                           raw("s_add_u32 s44, s44, s24", writes=[S(44)]), raw("s_lshl_b32 s44, s44, 12", writes=[S(44)]), valu('v_lshlrev_b32', V(3), 4, l)]
                    pf += [bload(4, A(240 + 4*n, 4), V(3), SRD_WO, S(44), off=n*1024) for n in range(4)]
                kw['streams'] = [('spoll', [(0.05, 0.0, i) for i in pl]), ('spf', spread(pf, 0.45, 0.9, rel=0.42))]
                chk = lambda: [I("v_cmp_le_u32 vcc, 28, v6", 'valu', reads=[V(6)], writes=['vcc']), nop(3), raw("s_cmp_eq_u64 vcc, -1", reads=['vcc'])]
                kw['post'] = [smov(S(45), 0), label("L_k3_poll")] + chk() + [raw("s_cbranch_scc1 L_k3_pollok", 'branch'),
                              raw("s_sleep 4"), bload(1, V(6), V(1), SRD_W, S_TMP, mods="sc1"), waitcnt(vm=0),
                              sop('s_add_u32', S(45), S(45), 1), scmp('s_cmp_lt_u32', S(45), 0x40000), raw("s_cbranch_scc1 L_k3_poll", 'branch'), label("L_k3_pollok")]
        elif j == 18:
            su = []
            dma_off_128(su.append, l, DA, 4096, V(1), V(2), V(3), s_tmp=S_TMP)
            su += [valu('v_lshlrev_b32', DB[0], 4, l)] + [valu('v_add_u32', DB[t], 56*1024, DB[t-1]) for t in range(1, 4)]
            su += [raw("s_mul_i32 s39, s24, 448*4096", writes=[S_SA]), raw("s_lshl_b32 s43, s46, 7", writes=[S_TMP]), raw("s_add_u32 s39, s39, s43", writes=[S_SA]),
                   raw("s_mul_i32 s36, s47, 4*56", writes=[S_SB]), raw("s_mul_i32 s43, s24, 14", writes=[S_TMP]), raw("s_add_u32 s36, s36, s43", writes=[S_SB]),
                   raw("s_lshl_b32 s36, s36, 10", writes=[S_SB]), raw(f"s_add_u32 s36, s36, {WS_U}", writes=[S_SB]), smov(S_N, 0), smov(S_SKIP, 0)]
            sig = [valu('v_mov_b32', V(4), 1), valu('v_lshlrev_b32', V(5), 25, l),
                   raw("s_lshl_b32 s44, s47, 2", writes=[S(44)]), raw("s_add_u32 s44, s44, s24", writes=[S(44)]), raw("s_lshl_b32 s44, s44, 8", writes=[S(44)]),
                   raw(f"s_add_u32 s44, s44, {WS_CNT}", writes=[S(44)]),
                   lds_dep(I(f"buffer_atomic_add v4, v5, {SRD_US}, s44 offen sc1", 'vatomic', reads=[V(4), V(5), SRD_US, S(44)], writes=[]), need={'US'})]
            kw['streams'] = [('ssu', spread(su, 0.05, 0.55)), ('ssig', [(0.6, 0.5, i) for i in sig])]
            if o.wot:
                WD = [V(28 + i) for i in range(4)]
                wsu = []
                dma_off_128(wsu.append, l, WD, 1024, V(6), V(7), V(26), s_tmp=S(5))
                wsu += [raw("s_lshl_b32 s3, s25, 4", writes=[S(3)]), raw("s_lshr_b32 s5, s26, 1", writes=[S(5)]), raw("s_add_u32 s3, s3, s5", writes=[S(3)]),
                        raw("s_lshl_b32 s3, s3, 15", writes=[S(3)]), raw("s_and_b32 s5, s26, 1", writes=[S(5)]), raw("s_lshl_b32 s5, s5, 9", writes=[S(5)]),
                        raw("s_add_u32 s3, s3, s5", writes=[S(3)]), raw("s_lshl_b32 s5, s24, 7", writes=[S(5)]), raw("s_add_u32 s3, s3, s5", writes=[S(3)])]
                kw['streams'].append(('swsu', spread(wsu, 0.0, 0.12)))
                dl = [sop('s_add_u32', 'm0', S_SR, 8192), nop(0)] + [lds_dep(dma(WD[i], SRD_WO, S(3), off=i*1024), need={'sR1'}, mark={'sL1'}) for i in range(4)]
                kw['side_dma_list'] = (dl, 0.42, 0.55, 0.2)
        elif j == 19:
            st = g2_dma(0, False) + [sop('s_xor_b32', S_SR, S_SR, 8192)] + g2_dma(1, False) + [sop('s_xor_b32', S_SR, S_SR, 8192)]
            kw['side_dma_list'] = (st, 0.42, 0.95, 0.0)
            if o.wot:
                rd = [lds_dep(ds_read_tr(A(192 + 4*t + 2*u, 2), TA[t], 8192 + u*2048), need={'sL1'}, mark={'sR1'}) for t in range(4) for u in range(2)]
                ad = [raw("s_lshl_b32 s3, s25, 4", writes=[S(3)]), raw("s_lshr_b32 s5, s26, 1", writes=[S(5)]), raw("s_add_u32 s3, s3, s5", writes=[S(3)]),
                      raw("s_lshl_b32 s3, s3, 5", writes=[S(3)]), raw("s_and_b32 s5, s26, 1", writes=[S(5)]), raw("s_lshl_b32 s5, s5, 4", writes=[S(5)]),
                      raw("s_add_u32 s3, s3, s5", writes=[S(3)]), raw("s_lshl_b32 s5, s24, 2", writes=[S(5)]), raw("s_add_u32 s3, s3, s5", writes=[S(3)]),
                      raw("s_lshl_b32 s3, s3, 10", writes=[S(3)]), raw(f"s_add_u32 s3, s3, {WS_WOT}", writes=[S(3)]), valu('v_lshlrev_b32', V(26), 4, l)]
                stw = [bstore(4, A(192 + 4*t, 4), V(26), SRD_W, S(3), off=t*1024, mods="sc1") for t in range(4)]
                kw['streams'] = [('swr', spread(rd, 0.50, 0.60, rel=0.48) + [(0.61, 0.0, i) for i in ad] + spread(stw, 0.64, 0.8, rel=0.62))]
                kw['side_dma_list'] = (st, 0.42, 0.97, 0.0)
        elif j == 20:
            pl = [valu('v_and_b32', V(1), 3, l), valu('v_lshlrev_b32', V(1), 8, V(1)), raw("s_lshl_b32 s43, s47, 10", writes=[S_TMP]),
                  raw(f"s_add_u32 s43, s43, {WS_CNT}", writes=[S_TMP]), bload(1, V(6), V(1), SRD_W, S_TMP, mods="sc1")]
            kw['streams'] = [('spoll', [(0.80, 0.7, i) for i in pl])]
            if o.prefetch and not o.wot:
                extra = [raw("s_lshl_b32 s44, s25, 5", writes=[S(44)]), raw("s_add_u32 s44, s44, s26", writes=[S(44)]), raw("s_lshl_b32 s44, s44, 2", writes=[S(44)]),
                         raw("s_add_u32 s44, s44, s24", writes=[S(44)]), raw("s_lshl_b32 s44, s44, 12", writes=[S(44)])]
                extra += [bload(4, A(240 + 4*n, 4), DB[0], SRD_WO, S(44), off=n*1024) for n in range(4)]
                kw['streams'].append(('spf', spread(extra, 0.42, 0.55)))
            chk = lambda: [I("v_cmp_le_u32 vcc, 28, v6", 'valu', reads=[V(6)], writes=['vcc']), nop(3), raw("s_cmp_eq_u64 vcc, -1", reads=['vcc'])]
            dg = (STP() if getattr(o, 'polldiag', False) else [])
            kw['post'] = dg + [smov(S(45), 0), label("L_k3_poll")] + chk() + [raw("s_cbranch_scc1 L_k3_pollok", 'branch'),
                          raw("s_sleep 4"), bload(1, V(6), V(1), SRD_W, S_TMP, mods="sc1"), waitcnt(vm=0),
                          sop('s_add_u32', S(45), S(45), 1), scmp('s_cmp_lt_u32', S(45), 0x40000), raw("s_cbranch_scc1 L_k3_poll", 'branch'), label("L_k3_pollok")] + ([smov(S(94), S(45))] if getattr(o, 'polldiag', False) else [])
            kw['vm_end'] = 0
        elif j == 21:
            if o.wot:
                kw['pre'] = [valu('v_mov_b32', V(4), 1), valu('v_lshlrev_b32', V(5), 25, l), sop('s_add_u32', S(44), S_G, 64), raw("s_lshl_b32 s44, s44, 8", writes=[S(44)]),
                             raw(f"s_add_u32 s44, s44, {WS_CNT}", writes=[S(44)]), raw("s_cmp_eq_u32 s24, 0"), raw(f"s_cselect_b32 s44, s44, {WS_END}", reads=['scc'], writes=[S(44)]),
                             I(f"buffer_atomic_add v4, v5, {SRD_W}, s44 offen sc1", 'vatomic', reads=[V(4), V(5), SRD_W, S(44)], writes=[])]
            z = [valu('v_accvgpr_write_b32', A(128 + r), 0) for r in range(64)]
            kw['streams'] = [('sul', spread(g2_uloads(), 0.05, 0.3)), ('sz', spread(z, 0.1, 0.95))]
        elif 22 <= j <= 28:
            i = j - 22
            rd, mfs = g2_parts(i if i else 1)
            rd, _ = g2_parts(i)
            kw['side_groups'] = [(3, mfs[0]), (5, mfs[1])]
            stl = [('srd', spread(rd, 0.02, 0.36))]
            if j <= 27:
                dm = [scmp('s_cmp_gt_u32', S_N, 4), I(f"s_cselect_b32 {S_SKIP}, 0x30000, 0", 'salu', reads=['scc'], writes=[S_SKIP]), sop('s_add_u32', S_N, S_N, 1)]
                dm += g2_dma(i & 1, True)
                kw['side_dma_list'] = (dm, 0.45, 0.78, 0.42)
                stl += [('sul', spread(g2_uloads(), 0.82, 0.98, rel=0.80))]
            kw['streams'] = stl
            kw['post'] = toggle_side()
        elif j == 29:
            pre = make_srd(B1, S(98, 2), 2048*2)
            bl = [valu('v_and_b32', V(1), 15, l), raw("s_lshl_b32 s44, s46, 6", writes=[S(44)]), raw("s_lshl_b32 s45, s24, 4", writes=[S(45)]),
                  raw("s_add_u32 s44, s44, s45", writes=[S(44)]), valu('v_add_u32', V(1), S(44), V(1)), valu('v_lshlrev_b32', V(1), 1, V(1)), bload_ushort(V(1), V(1), B1)]
            kw['pre'] = pre
            kw['streams'] = [('sw', spread(scratch_write(), 0.1, 0.7)), ('sb', spread(bl, 0.05, 0.1))]
        elif j == 30:
            comp = [smov(S(44), -LOG2E), valu('v_lshlrev_b32', V(1), 16, V(1))]
            comp += [raw("s_lshr_b32 s43, s47, 1", writes=[S_TMP]), raw("s_lshl_b32 s45, s46, 2", writes=[S(45)]), raw("s_add_u32 s43, s43, s45", writes=[S_TMP]),
                     raw("s_lshl_b32 s43, s43, 2", writes=[S_TMP]), raw("s_and_b32 s45, s47, 1", writes=[S(45)]), raw("s_lshl_b32 s45, s45, 1", writes=[S(45)]),
                     raw("s_add_u32 s43, s43, s45", writes=[S_TMP]), raw("s_lshl_b32 s43, s43, 2", writes=[S_TMP]), raw("s_add_u32 s43, s43, s24", writes=[S_TMP]),
                     raw("s_lshl_b32 s43, s43, 10", writes=[S_TMP]), raw(f"s_add_u32 s43, s43, {WS_GATE}", writes=[S_TMP]), valu('v_lshlrev_b32', V(26), 4, l)]
            OUTA = A(240, 8)
            comp += unit_reads(0)
            for u in range(8):
                if u + 1 < 8: comp += unit_reads(u + 1)
                xs = []
                for e in range(2):
                    sm_, y = unit_sum(u, e); comp += sm_; xs.append(y)
                    comp += [valu('v_add_f32', y, y, V(1)), valu('v_mul_f32', V(7), S(44), y), valu('v_exp_f32', V(7), V(7)), valu('v_add_f32', V(7), 1.0, V(7)),
                             valu('v_rcp_f32', V(7), V(7)), valu('v_mul_f32', y, y, V(7))]
                comp += [valu('v_cvt_pk_bf16_f32', V(6), xs[0], xs[1]), valu('v_accvgpr_write_b32', OUTA[u], V(6))]
                if u in (3, 7):
                    comp.append(bstore(4, OUTA[u-3:u+1], V(26), SRD_W, S_TMP, mods=("sc1" if o.fuse_comb else "")))
                    comp.append(sop('s_add_u32', S_TMP, S_TMP, 4096))
            kw['streams'] = [('scomp', spread(comp, 0.0, 0.98))]
        return kw
    DO = [V(14 + i) for i in range(4)]
    TO = [V(64 + i) for i in range(8)]; TO2 = [V(72 + i) for i in range(8)]
    S_SLOW = S(6); S_R2 = S(7)
    def wo_setup():
        s_ = []; a_ = s_.append
        dma_off_256(a_, l, DO, 1024, 'o', S_T)
        a_(raw("s_lshl_b32 s42, s25, 19", writes=[S_SO])); a_(raw("s_lshl_b32 s43, s24, 8", writes=[S_T]))
        a_(raw("s_add_u32 s42, s42, s43", writes=[S_SO]))
        a_(raw("s_lshl_b32 s7, s24, 13", writes=[S_R2])); a_(raw("s_add_u32 s7, s7, 65536", writes=[S_R2]))
        return s_
    def wo_stage(n):
        s_ = []
        sb, madd = (S_XB, n*8192) if n < 2 else (S_R2, 0)
        for h in range(2):
            s_ += [sop('s_add_u32', 'm0', sb, madd + h*4096), nop(0)]
            for i in range(4): s_.append(lds_dep(dma(DO[i], SRD_WO, S_SO, off=i*1024), need={f'oR{n}'}, mark={f'oL{n}'}))
            s_.append(sop('s_add_u32', S_SO, S_SO, 16*1024))
        return s_
    def wo_first_lds(): return wo_setup() + wo_stage(0) + wo_stage(1) + wo_stage(2)
    VLW = V(14)
    def wot_setup():
        return [valu('v_lshlrev_b32', VLW, 4, l), raw("s_lshl_b32 s42, s25, 19", writes=[S_SO]), raw("s_lshl_b32 s43, s24, 13", writes=[S_T]),
                raw("s_add_u32 s42, s42, s43", writes=[S_SO]), raw(f"s_add_u32 s42, s42, {WS_WOT}", writes=[S_SO])]
    def wot_loads(n): return proj3_loads(SRD_W, S_SO, VLW, n, 128)
    def wot_first(): return [i for n in range(P3_DEPTH) for i in wot_loads(n)]
    def wo_first(): return (wot_setup() + wot_first()) if o.wot else wo_first_lds()
    seqs = [('pro', pro)]
    for j in range(33):
        kw_ = side_spec(j)
        if j == 31 and o.wot:
            kw_['streams'] = list(kw_.get('streams', [])) + [('swo', spread(wot_setup(), 0.0, 0.05) + spread(wot_first(), 0.08, 0.95, rel=0.06))]
        elif j == 31 and o.wo_early:
            kw_['streams'] = list(kw_.get('streams', [])) + [('swo', spread(wo_setup(), 0.02, 0.2))]
            kw_['side_dma_list'] = (wo_stage(0) + wo_stage(1), 0.25, 0.95, 0.22)
        if j == 30 and o.wot:
            pl = [valu('v_mov_b32', V(16), 0), sop('s_add_u32', S(3), S_G, 64), raw("s_lshl_b32 s3, s3, 8", writes=[S(3)]), raw(f"s_add_u32 s3, s3, {WS_CNT}", writes=[S(3)]),
                  bload(1, V(17), V(16), SRD_W, S(3), mods="sc1")]
            kw_['streams'] = list(kw_.get('streams', [])) + [('swp', [(0.3, 0.25, i) for i in pl])]
            kw_['post'] = list(kw_.get('post', [])) + [smov(S(5), 0), label("L_k3_wpoll"), readfirstlane(S(4), V(17)), nop(3), scmp('s_cmp_ge_u32', S(4), 32),
                          raw("s_cbranch_scc1 L_k3_wpollok", 'branch'), raw("s_sleep 4"), bload(1, V(17), V(16), SRD_W, S(3), mods="sc1"), waitcnt(vm=0),
                          sop('s_add_u32', S(5), S(5), 1), scmp('s_cmp_lt_u32', S(5), 0x40000), raw("s_cbranch_scc1 L_k3_wpoll", 'branch'), label("L_k3_wpollok")]
        p = at.period(j, **kw_)
        if o.timing and j in o.stamp_after: p = p + STP()
        seqs.append((j, [label(f"@@P{j}")] + p))
    def arrive2(idx_s):
        return [valu('v_mov_b32', V(4), 1), valu('v_lshlrev_b32', V(5), 25, l),
                sop('s_add_u32', S(44), idx_s, 32), raw("s_lshl_b32 s44, s44, 8", writes=[S(44)]), raw(f"s_add_u32 s44, s44, {WS_CNT}", writes=[S(44)]),
                raw("s_cmp_eq_u32 s24, 0"), raw(f"s_cselect_b32 s44, s44, {WS_END}", reads=['scc'], writes=[S(44)]),
                I(f"buffer_atomic_add v4, v5, {SRD_W}, s44 offen sc1", 'vatomic', reads=[V(4), V(5), SRD_W, S(44)], writes=[])]
    pre_epi = [smov(S_SLOW, 0)]
    if o.fuse_comb: pre_epi += ([] if o.g2_tail else arrive2(S_T64)) + [sload(S(96, 2), ARG_X)] + ([sload(S(100, 2), ARG_OUT)] if o.g2_tail else [sload(S(98, 2), ARG_OUT)])
    if not o.wot: pre_epi += (wo_stage(2) if o.wo_early else wo_first())
    s = []; a = s.append
    a(label("@@EPI"))
    a(label("L_k3_norm"))
    a(nop(7))
    if not o.wot:
        a(valu('v_mov_b32', V(6), S_XB))
        addr_tr256(a, l, TO, V(6), 4)
        a(valu('v_mov_b32', V(6), S_R2))
        addr_tr256(a, l, TO2, V(6), 4)
    LI = [V(24 + i) for i in range(4)]
    for qt in range(4): a(valu('v_rcp_f32', LI[qt], LA[qt][0]))
    a(valu('v_lshlrev_b32', V(7), 4, l))
    a(raw("s_lshl_b32 s43, s24, 14", writes=[S_T]))
    a(valu('v_add_u32', V(22), S_T, V(7))); a(valu('v_mov_b32', V(23), V(7)))
    for kk in range(4):
        for qt in range(4):
            x, y = O(2*kk, qt), O(2*kk+1, qt)
            for r in range(4):
                a(valu('v_mul_f32', x[r], x[r], LI[qt])); a(valu('v_mul_f32', y[r], y[r], LI[qt]))
            if o.moff:
                mx = V(28 + qt)
                ab = lambda r_: f"|{r_}|"
                if kk == 0: a(valu('v_max3_f32', mx, ab(x[0]), ab(x[1]), ab(x[2])))
                else: a(valu('v_max3_f32', mx, ab(x[0]), ab(x[1]), mx)); a(valu('v_max_f32', mx, ab(x[2]), mx, mods=""))
                a(valu('v_max3_f32', mx, ab(x[3]), ab(y[0]), mx)); a(valu('v_max3_f32', mx, ab(y[1]), ab(y[2]), mx)); a(valu('v_max_f32', mx, ab(y[3]), mx))
            F = V(48 + 4*((kk*4+qt) & 3), 4)
            a(valu('v_cvt_pk_bf16_f32', F[0], x[0], x[1])); a(valu('v_cvt_pk_bf16_f32', F[1], x[2], x[3]))
            a(valu('v_cvt_pk_bf16_f32', F[2], y[0], y[1])); a(valu('v_cvt_pk_bf16_f32', F[3], y[2], y[3]))
            a(ds_write(4, V(22), F, off=(kk*4+qt)*1024))
    a(waitcnt(lgkm=0)); a(barrier())
    s.extend(STP())
    def oread(n, qt, dst): return ds_read_b128(dst, V(23), (n*4+qt)*1024)
    S_PS = S(3)
    def pstore(prange):
        o_ = []
        for p in prange:
            for qt in range(4):
                x, y = O(2*p, qt), O(2*p+1, qt)
                F = V(48 + 4*((p*4+qt) & 3), 4)
                o_ += [valu('v_cvt_pk_bf16_f32', F[0], x[0], x[1]), valu('v_cvt_pk_bf16_f32', F[1], x[2], x[3]),
                       valu('v_cvt_pk_bf16_f32', F[2], y[0], y[1]), valu('v_cvt_pk_bf16_f32', F[3], y[2], y[3]),
                       bstore(4, F, V(7), SRD_W, S_PS, off=qt*1024, mods=("sc1" if o.fuse_comb else ""))]
            o_.append(sop('s_add_u32', S_PS, S_PS, 4096))
        return o_
    a(raw("s_lshl_b32 s3, s25, 5", writes=[S_PS])); a(raw("s_add_u32 s3, s3, s26", writes=[S_PS]))
    a(raw("s_lshl_b32 s3, s3, 2", writes=[S_PS])); a(raw("s_add_u32 s3, s3, s24", writes=[S_PS]))
    a(raw("s_lshl_b32 s3, s3, 14", writes=[S_PS])); a(raw(f"s_add_u32 s3, s3, {WS_PART}", writes=[S_PS]))
    g2pre = {}
    if o.g2_tail:
        GTA = [[V(96 + t) for t in range(4)], [V(100 + t) for t in range(4)]]
        GDA = [V(104 + t) for t in range(4)]; GUL = [V(108 + t) for t in range(4)]
        a(valu('v_mov_b32', V(6), S_XB)); tr_addr_128(a, l, GTA[0], V(6), V(1), V(2), V(3), V(4))
        a(valu('v_mov_b32', V(6), S_R2)); tr_addr_128(a, l, GTA[1], V(6), V(1), V(2), V(3), V(4))
        dma_off_128(a, l, GDA, 4096, V(1), V(2), V(3), s_tmp=S(5))
        a(valu('v_lshlrev_b32', GUL[0], 4, l))
        for t in range(1, 4): a(valu('v_add_u32', GUL[t], 56*1024, GUL[t-1]))
        a(raw("s_mul_i32 s39, s24, 448*4096", writes=[S_SA])); a(raw("s_lshl_b32 s5, s46, 7", writes=[S(5)])); a(raw("s_add_u32 s39, s39, s5", writes=[S_SA]))
        a(raw("s_mul_i32 s36, s47, 4*56", writes=[S_SB])); a(raw("s_mul_i32 s5, s24, 14", writes=[S(5)])); a(raw("s_add_u32 s36, s36, s5", writes=[S_SB]))
        a(raw("s_lshl_b32 s36, s36, 10", writes=[S_SB])); a(raw(f"s_add_u32 s36, s36, {WS_U}", writes=[S_SB]))
        s.extend(make_srd(S(28, 4), S(98, 2), 2048*2))
        a(valu('v_and_b32', V(1), 15, l)); a(raw("s_lshl_b32 s44, s46, 6", writes=[S(44)])); a(raw("s_lshl_b32 s45, s24, 4", writes=[S(45)]))
        a(raw("s_add_u32 s44, s44, s45", writes=[S(44)])); a(valu('v_add_u32', V(1), S(44), V(1))); a(valu('v_lshlrev_b32', V(1), 1, V(1)))
        a(bload_ushort(V(18), V(1), S(28, 4)))
        gmap = [(0, 8192, S_XB, 8192), (0, 12288, S_XB, 12288), (1, 0, S_R2, 0), (1, 4096, S_R2, 4096)]
        wneed = ['oR1', 'oR1', 'oR2', 'oR2']
        def g2_w(n, first=False):
            st = n % 4; (_, _, sb, madd) = gmap[st]
            o_ = [sop('s_add_u32', 'm0', sb, madd)]
            for i in range(4): o_.append(lds_dep(dma(GDA[i], SRD_W2, S_SA, off=i*1024), need={f'gR{st}'} | ({wneed[st]} if first else set()), mark={f'gL{st}'}))
            o_.append(sop('s_add_u32', S_SA, S_SA, 32*4096))
            return o_
        gfa = lambda n, t: A(192 + 16*(n % 4) + 4*t, 4)
        gfb = lambda p, t: A(128 + 16*p + 4*t, 4)
        def g2_u(n):
            return [bload(4, gfa(n, t), GUL[t], SRD_W, S_SB, mods="sc1") for t in range(4)] + [sop('s_add_u32', S_SB, S_SB, 1024)]
        def g2_r(n):
            st = n % 4; (ti, imm, _, _) = gmap[st]
            return [lds_dep(ds_read_tr(gfb(n & 1, t)[2*u:2*u+2], GTA[ti][t], imm + u*2048), need={f'gL{st}'}, mark={f'gR{st}'}) for t in range(4) for u in range(2)]
        g2pre = {13: g2_w(0, True) + g2_w(1, True) + g2_u(0), 14: g2_w(2, True) + g2_w(3, True) + g2_u(1), 15: g2_u(2) + g2_u(3)}
    if o.wot:
        proj_gemm3(a, s, SRD_W, S_SO, VLW, oread, 128, 64, mid_fill=pstore(range(2)))
    else:
        proj_gemm2(a, s, TO, DO, SRD_WO, S_SO, 1024, S_RING, oread, 4096, 'o', fb_base=(160 if o.g2_tail else 128),
                   stage_map=[(TO, 0, S_XB, 0), (TO, 8192, S_XB, 8192), (TO2, 0, S_R2, 0)], extra_vm=g2pre)
    a(smov(S(44), float(2.0**100)))
    for qt in range(4):
        a(I(f"v_cmp_gt_f32 vcc, s44, {LA[qt][0]}", 'valu', reads=[S(44), LA[qt][0]], writes=['vcc']))
        a(nop(3))
        a(I("s_mov_b64 s[56:57], vcc" if qt == 0 else "s_and_b64 s[56:57], s[56:57], vcc", 'salu', reads=['vcc'], writes=[S(56, 2), 'scc']))
    if o.moff:
        a(smov(S(44), float(2.0**(o.moff - 105))))
        for qt in range(4):
            a(I(f"v_cmp_le_f32 vcc, s44, {V(28 + qt)}", 'valu', reads=[S(44), V(28 + qt)], writes=['vcc']))
            a(nop(3))
            a(I("s_and_b64 s[56:57], s[56:57], vcc", 'salu', reads=['vcc'], writes=[S(56, 2), 'scc']))
    a(nop(7))
    a(valu('v_mov_b32', V(1), 0x1F8))
    for qt in range(4):
        a(I(f"v_cmp_class_f32 vcc, {O(0, qt)[0]}, v1", 'valu', reads=[O(0, qt)[0], V(1)], writes=['vcc']))
        a(nop(3))
        a(I("s_and_b64 s[56:57], s[56:57], vcc", 'salu', reads=['vcc'], writes=[S(56, 2), 'scc']))
    a(raw("s_cmp_eq_u64 s[56:57], -1"))
    a(raw("s_cselect_b32 s44, 0, 1", reads=['scc'], writes=[S(44)]))
    a(valu('v_mov_b32', V(2), S(44))); a(valu('v_mov_b32', V(1), S_XB))
    a(ds_write(1, V(1), V(2)))
    a(waitcnt(lgkm=0)); a(barrier())
    a(valu('v_mov_b32', V(1), XBASE))
    a(ds_read_b32(V(2), V(1))); a(ds_read_b32(V(3), V(1), 16384)); a(ds_read_b32(V(4), V(1), 32768)); a(ds_read_b32(V(5), V(1), 49152))
    a(valu('v_or_b32', V(2), V(2), V(3))); a(valu('v_or_b32', V(4), V(4), V(5))); a(valu('v_or_b32', V(2), V(2), V(4)))
    a(readfirstlane(S(44), V(2)))
    a(nop(3))
    a(I("s_andn2_b32 s44, s44, s6", 'salu', reads=[S(44), S_SLOW], writes=[S(44), 'scc']))
    a(raw("s_cbranch_scc1 L_k3_slow", 'branch'))
    a(label("L_k3_store"))
    s.extend(STP())
    if not o.g2_tail: s.extend(pstore(range(2, 4) if o.wot else range(4)))
    if o.g2_tail:
        gacc = lambda mt, st_: A(64 + (mt*4+st_)*4, 4)
        pfill = pstore(range(4))
        s.extend(g2_r(0))
        for n in range(14):
            rd = g2_r(n + 1) if n + 1 < 14 else []
            vm = (g2_w(n + 4) + g2_u(n + 4)) if n + 4 < 14 else []
            mf = [mfma16(gacc(mt, st_), gfa(n, mt), gfb(n & 1, st_), gacc(mt, st_) if n else 0) for mt in range(4) for st_ in range(4)]
            gaps = [[] for _ in range(16)]
            for k, ins in enumerate(rd): gaps[k].append(ins)
            g = 8
            for (ins, st_) in dma_ops_with_setup(vm):
                if ins.kind == 'dma':
                    gaps[g - 1] += st_; gaps[g].append(ins); g = min(15, g + 2)
            late = [i for i in vm if i.kind == 'vload' or (i.kind == 'salu' and 'm0' not in i.writes)]
            for k, m in enumerate(mf):
                a(m); s.extend(sort_gap(gaps[k]))
                if n >= o.ps_from and pfill:
                    for _ in range(2 if gaps[k] else 3):
                        if pfill: a(pfill.pop(0))
            s.extend(late)
        s.extend(pfill)
        a(raw("s_lshl_b32 s44, s24, 14", writes=[S(44)])); a(valu('v_add_u32', V(26), S(44), V(7)))
        for mt in range(4):
            for st_ in range(4): a(ds_write(4, V(26), gacc(mt, st_), off=(mt*4+st_)*1024))
        a(waitcnt(lgkm=0)); a(barrier())
        a(raw("s_lshl_b32 s44, s24, 10", writes=[S(44)])); a(valu('v_add_u32', V(27), S(44), V(7)))
        for mt in range(4):
            for w in range(4): a(ds_read_b128(V(192 + (mt*4+w)*4, 4), V(27), w*16384 + mt*4096))
        a(smov(S(44), -LOG2E)); a(valu("v_lshlrev_b32", V(18), 16, V(18)))
        a(raw("s_lshr_b32 s43, s47, 1", writes=[S_T])); a(raw("s_lshl_b32 s45, s46, 2", writes=[S(45)])); a(raw("s_add_u32 s43, s43, s45", writes=[S_T]))
        a(raw("s_lshl_b32 s43, s43, 2", writes=[S_T])); a(raw("s_and_b32 s45, s47, 1", writes=[S(45)])); a(raw("s_lshl_b32 s45, s45, 1", writes=[S(45)]))
        a(raw("s_add_u32 s43, s43, s45", writes=[S_T])); a(raw("s_lshl_b32 s43, s43, 2", writes=[S_T])); a(raw("s_add_u32 s43, s43, s24", writes=[S_T]))
        a(raw("s_lshl_b32 s43, s43, 10", writes=[S_T])); a(raw(f"s_add_u32 s43, s43, {WS_GATE}", writes=[S_T]))
        for mt in range(4):
            for r in range(4):
                P_ = [V(192 + (mt*4+w)*4 + r) for w in range(4)]; y = P_[0]; tt = V(2 + (r & 1))
                a(valu('v_add_f32', y, y, P_[1])); a(valu('v_add_f32', P_[2], P_[2], P_[3])); a(valu('v_add_f32', y, y, P_[2])); a(valu("v_add_f32", y, y, V(18)))
                a(valu('v_mul_f32', tt, S(44), y)); a(valu('v_exp_f32', tt, tt)); a(valu('v_add_f32', tt, 1.0, tt)); a(valu('v_rcp_f32', tt, tt)); a(valu('v_mul_f32', y, y, tt))
            q = V(40 + 4*(mt >> 1) + 2*(mt & 1), 2)
            a(valu('v_cvt_pk_bf16_f32', q[0], V(192 + mt*16), V(192 + mt*16 + 1))); a(valu('v_cvt_pk_bf16_f32', q[1], V(192 + mt*16 + 2), V(192 + mt*16 + 3)))
            if mt & 1:
                a(bstore(4, V(40 + 4*(mt >> 1), 4), V(7), SRD_W, S_T, mods="sc1")); a(sop('s_add_u32', S_T, S_T, 4096))
    if o.fuse_comb:
        SRD_X2 = S(28, 4); SRD_O = S(48, 4)
        s.extend(make_srd(SRD_X2, S(96, 2), 2 << 20)); s.extend(make_srd(SRD_O, S(100, 2) if o.g2_tail else S(98, 2), 2 << 20))
        a(valu('v_and_b32', V(1), 15, l)); a(raw("s_lshl_b32 s44, s26, 6", writes=[S(44)])); a(raw("s_lshl_b32 s45, s24, 4", writes=[S(45)]))
        a(raw("s_add_u32 s44, s44, s45", writes=[S(44)])); a(valu('v_add_u32', V(1), S(44), V(1))); a(valu('v_lshlrev_b32', V(1), 10, V(1)))
        a(valu('v_lshrrev_b32', V(2), 4, l)); a(valu('v_lshl_add_u32', V(1), V(2), 3, V(1)))
        a(raw("s_lshl_b32 s44, s25, 7", writes=[S(44)])); a(valu('v_add_u32', V(22), S(44), V(1)))
        XR = V(32, 8)
        for j in range(2):
            for t in range(2): a(bload(2, XR[4*j+2*t:4*j+2*t+2], V(22), SRD_X2, 0, off=64*j + 32*t))
        a(waitcnt(vm=4))
        a(barrier())
        if o.g2_tail: s.extend(arrive2(S_T64)); a(nop(1))
        s.extend(arrive2(S_QB))
        s.extend(STP())
        a(sop('s_add_u32', S(44), S_QB, 32)); a(raw("s_lshl_b32 s44, s44, 8", writes=[S(44)])); a(raw(f"s_add_u32 s44, s44, {WS_CNT}", writes=[S(44)]))
        a(valu('v_mov_b32', V(1), 0)); a(smov(S(45), 0))
        a(label("L_k3_cpoll"))
        a(bload(1, V(6), V(1), SRD_W, S(44), mods="sc1")); a(waitcnt(vm=0))
        a(readfirstlane(S(43), V(6))); a(nop(3))
        a(scmp('s_cmp_ge_u32', S(43), 16)); a(raw("s_cbranch_scc1 L_k3_cpollok", 'branch'))
        a(raw("s_sleep 2")); a(sop('s_add_u32', S(45), S(45), 1)); a(scmp('s_cmp_lt_u32', S(45), 0x80000)); a(raw("s_cbranch_scc1 L_k3_cpoll", 'branch'))
        a(label("L_k3_cpollok"))
        a(raw("s_lshl_b32 s42, s26, 2", writes=[S_SO])); a(raw("s_lshr_b32 s43, s25, 1", writes=[S_T])); a(raw("s_add_u32 s42, s42, s43", writes=[S_SO]))
        a(raw("s_lshl_b32 s42, s42, 2", writes=[S_SO])); a(raw("s_and_b32 s43, s25, 1", writes=[S_T])); a(raw("s_lshl_b32 s43, s43, 1", writes=[S_T]))
        a(raw("s_add_u32 s42, s42, s43", writes=[S_SO])); a(raw("s_lshl_b32 s42, s42, 2", writes=[S_SO])); a(raw("s_add_u32 s42, s42, s24", writes=[S_SO]))
        a(raw("s_lshl_b32 s42, s42, 10", writes=[S_SO]))
        a(raw(f"s_add_u32 s43, s42, {WS_GATE}", writes=[S_T])); a(raw(f"s_add_u32 s42, s42, {WS_PART}", writes=[S_SO]))
        PPj = lambda j, g: V(128 + (j*8 + g)*4, 4)
        GG = [V(192, 4), V(196, 4)]
        for j in range(2):
            a(bload(4, GG[j], V(7), SRD_W, S_T, mods="sc1")); a(sop('s_add_u32', S_T, S_T, 4096))
        for g in range(8):
            a(bload(4, PPj(0, g), V(7), SRD_W, S_SO, mods="sc1"))
            a(sop('s_add_u32', S(44), S_SO, 4096))
            a(bload(4, PPj(1, g), V(7), SRD_W, S(44), mods="sc1"))
            if g < 7: a(sop('s_add_u32', S_SO, S_SO, 32*64*1024))
        for j in range(2):
            R = [V(200 + 8*j + i) for i in range(8)]
            for k in range(8):
                q = k >> 1; hi = k & 1
                unp = lambda dst, src: valu('v_and_b32', dst, 0xffff0000, src) if hi else valu('v_lshlrev_b32', dst, 16, src)
                a(unp(R[k], PPj(j, 0)[q]))
                for g in range(1, 8):
                    tt = V(2 + (g & 1))
                    a(unp(tt, PPj(j, g)[q])); a(valu('v_add_f32', R[k], R[k], tt))
                a(unp(V(4), GG[j][q])); a(unp(V(5), XR[4*j+q]))
                a(valu('v_fma_f32', R[k], R[k], V(4), V(5)))
            OUTR = V(216 + 4*j, 4)
            for q in range(4): a(valu('v_cvt_pk_bf16_f32', OUTR[q], R[2*q], R[2*q+1]))
            a(bstore(2, OUTR[0:2], V(22), SRD_O, 0, off=64*j)); a(bstore(2, OUTR[2:4], V(22), SRD_O, 0, off=64*j + 32))
    if o.timing or not o.fuse_comb: a(waitcnt(vm=0))
    s.extend(STP())
    if getattr(o, 'dbgtime', False):
        a(raw('s_memrealtime s[92:93]', 'smem', writes=[S(92, 2)])); a(sload(S(90, 2), ARG_DBG)); a(waitcnt(lgkm=0))
        s.extend(make_srd(S(84, 4), S(90, 2), 256))
        a(raw("s_sub_u32 s92, s92, s94", writes=[S(92)]))
        a(raw("s_add_u32 s93, s2, 4", writes=[S(93)])); a(raw("s_lshl_b32 s93, s93, 2", writes=[S(93)]))
        a(raw("s_cmp_lt_u32 s2, 8")); a(raw("s_cselect_b32 s93, s93, 0x1000", writes=[S(93)]))
        a(raw("s_cmp_eq_u32 s24, 0")); a(raw("s_cselect_b32 s93, s93, 0x1000", writes=[S(93)]))
        a(valu('v_mov_b32', V(2), S(92))); a(valu('v_lshlrev_b32', V(3), 25, l)); a(nop(3))
        a(bstore(1, V(2), V(3), S(84, 4), S(93))); a(waitcnt(vm=0))
    if getattr(o, 'diag_period', None) is not None: STP.force(len(o.diag_marks))
    if getattr(o, 'polldiag', False): STP.n = 16
    s.extend(STP.flush_dbg(S_WAVE, o.dbgwg) if getattr(o, 'dbgwg', None) is not None else STP.flush(S_WAVE))
    epi = s
    s = []; a = s.append
    M = [V(72 + i) for i in range(4)]
    a(label("L_k3_slow"))
    at.nozero = True
    a(smov(S_SLOW, 1))
    for r in range(128): a(valu('v_mov_b32', V(128 + r), 0))
    for qt in range(4):
        for r in range(4): a(valu('v_mov_b32', LA[qt][r], 0))
        a(valu('v_mov_b32', M[qt], 0xff800000))
    a(smov(S_TILE, 0)); a(smov(S(45), 32))
    a(label("L_k3_slowloop"))
    a(barrier())
    s.extend(at.kv_dma(0))
    a(waitcnt(vm=0)); a(barrier())
    for kh in range(2):
        s.extend(at.k_reads(0, kh)); s.extend(at.v_reads(0, kh))
        for c in range(2):
            for q2 in range(2):
                for t in range(2):
                    for i in range(4): a(mfma16(Sx(c, t, q2), Kf(t*4+i), Q(i, 2*c+q2), 0 if i == 0 else Sx(c, t, q2)))
            for q2 in range(2):
                qt = 2*c + q2; s0, s1 = Sx(c, 0, q2), Sx(c, 1, q2); m = V(4); t_ = V(5)
                a(valu('v_max3_f32', m, s0[0], s0[1], s0[2])); a(valu('v_max3_f32', m, m, s0[3], s1[0]))
                a(valu('v_max3_f32', m, m, s1[1], s1[2])); a(valu('v_max3_f32', m, m, s1[3], M[qt]))
                a(valu('v_mov_b32', t_, m)); a(permlane16_swap(m, t_)); a(valu('v_max_f32', m, m, t_))
                a(valu('v_mov_b32', t_, m)); a(permlane32_swap(m, t_)); a(valu('v_max_f32', m, m, t_))
                a(valu('v_sub_f32', t_, M[qt], m)); a(valu('v_exp_f32', t_, t_)); a(valu('v_mov_b32', M[qt], m))
                for dt in range(8):
                    for r in range(4): a(valu('v_mul_f32', O(dt, qt)[r], O(dt, qt)[r], t_))
                for r in range(4): a(valu('v_mul_f32', LA[qt][r], LA[qt][r], t_))
                for t in range(2):
                    sx = Sx(c, t, q2)
                    for r in range(4):
                        a(valu('v_sub_f32', sx[r], sx[r], m)); a(valu('v_exp_f32', sx[r], sx[r]))
                    a(valu('v_cvt_pk_bf16_f32', Pb[c][4*q2 + 2*t], sx[0], sx[1])); a(valu('v_cvt_pk_bf16_f32', Pb[c][4*q2 + 2*t + 1], sx[2], sx[3]))
            for m_ in at.pv_slot(0, kh, c):
                m_.rt = {}; a(m_)
    a(waitcnt(lgkm=0))
    a(sop('s_sub_u32', S(45), S(45), 1)); a(scmp('s_cmp_lg_u32', S(45), 0)); a(raw("s_cbranch_scc1 L_k3_slowloop", 'branch'))
    a(nop(15)); a(barrier())
    s.extend(wo_first())
    a(raw("s_branch L_k3_norm", 'branch'))
    for i_ in s:
        if hasattr(i_, 'rt'): i_.rt = {}
    slow, _, _ = auto_waits(s)
    slow = fix_hazards(slow, "slow")
    full = []
    for (name, seq) in seqs:
        if name == 32: full += pre_epi
        full += seq
    full += epi
    full, _, _ = auto_waits(full)
    errs = validate_tags(full)
    for e in errs[:10]: print("DATAFLOW", e, file=sys.stderr)
    parts = {}; cur = 'pro'; parts[cur] = []
    for ins in full:
        if ins.kind == 'label' and ins.text.startswith('@@'):
            cur = ins.text[2:-1]; parts[cur] = []
        else: parts[cur].append(ins)
    P = lambda j: parts[f'P{j}']
    txt = lambda j: [i.text for i in P(j)]
    def loop(first_j, n_iter, lbl, cnt):
        body = []
        for k in range(3):
            base = list(P(first_j + k))
            for it in range(1, n_iter):
                other = P(first_j + 3*it + k)
                assert len(other) == len(base), f"loop {lbl}: period {first_j+k} vs {first_j+3*it+k} length {len(base)} {len(other)}"
                for idx, (x, y) in enumerate(zip(base, other)):
                    if x.text != y.text:
                        assert x.kind == 'wait' and y.kind == 'wait' and (x.vm is None) == (y.vm is None) and (x.lgkm is None) == (y.lgkm is None), (lbl, x.text, y.text)
                        base[idx] = waitcnt(vm=None if x.vm is None else min(x.vm, y.vm), lgkm=None if x.lgkm is None else min(x.lgkm, y.lgkm))
            body += [comment(f"period {first_j+k} (+3n)")] + base
        body += [sop('s_sub_u32', cnt, cnt, 1), scmp('s_cmp_lg_u32', cnt, 0), raw(f"s_cbranch_scc1 {lbl}", 'branch')]
        errs = check_hazards(body, loop=True, name=lbl)
        for e in errs[:20]: print("HAZARD", e, file=sys.stderr)
        return [smov(cnt, n_iter), label(lbl)] + body
    out = fix_hazards(parts['pro'] + [comment("period 0")] + P(0), "pro")
    S_CNT = S(4)
    if getattr(o, 'noloop', False):
        allp = []
        for j in range(1, 33): allp += [comment(f"period {j}")] + P(j)
        out += fix_hazards(allp + parts['EPI'], "all")
        out += [raw("s_branch L_k3_end", 'branch')] + slow
        out.append(label("L_k3_end"))
        return emit(out)
    if o.side and o.g2_tail:
        out += loop(1, 5, "L_k3_loopA", S_CNT)
        mid = []
        for j in range(16, 19): mid += [comment(f"period {j}")] + P(j)
        out += fix_hazards(mid, "mid")
        out += loop(19, 3, "L_k3_loopB", S_CNT)
        tail = []
        for j in range(28, 33): tail += [comment(f"period {j}")] + P(j)
    elif o.side:
        out += loop(1, 5, "L_k3_loopA", S_CNT)
        mid = []
        for j in range(16, 22): mid += [comment(f"period {j}")] + P(j)
        out += fix_hazards(P(15)[-30:] + mid, "mid")[len(P(15)[-30:]):] if False else fix_hazards(mid, "mid")
        out += loop(22, 2, "L_k3_loopB", S_CNT)
        tail = []
        for j in range(28, 33): tail += [comment(f"period {j}")] + P(j)
    else:
        out += loop(1, 9, "L_k3_loopA", S_CNT)
        tail = []
        for j in range(28, 33): tail += [comment(f"period {j}")] + P(j)
    tm = []
    out += fix_hazards(tail + parts['EPI'], "tail")
    out += [raw("s_branch L_k3_end", 'branch')] + slow
    out.append(label("L_k3_end"))
    if getattr(o, 'verbose', False):
        for j in (2, 16, 17, 18, 21, 23, 29, 30):
            tot = 0; gap = None
            for i in P(j):
                if i.kind == 'mfma':
                    if gap is not None: tot += max(16, gap)
                    gap = 8
                elif gap is not None: gap += cost(i)
            print(f"; period {j}: est {tot + max(16, gap or 0)} cycles, {len(P(j))} instrs", file=sys.stderr)
    return emit(out)
if __name__ == "__main__":
    o = Opt(); o.verbose = True
    for kv in sys.argv[1:]:
        k, v = kv.split("="); setattr(o, k, eval(v))
    t = build(o); print(len(t.splitlines()))
```

```python
import sys; sys.path.insert(0, 'work')
from asmgen import *

ARG_X, ARG_K, ARG_V, ARG_WQ, ARG_WO, ARG_BX, ARG_W1, ARG_B1, ARG_W2, ARG_B2, ARG_OUT, ARG_DBG, ARG_WS = [8*i for i in range(13)]
WS_XN = 0
WS_H = 2 << 20
WS_U = 4 << 20
WS_PART = 8 << 20
WS_CNT = (7 << 20)
WS_WOT = 24 << 20
WS_WQT = 28 << 20
WS_END = 32 << 20

def sload(dst, off):
    return raw(f"s_load_dwordx2 {dst}, s[0:1], {off}", 'smem', writes=[dst])
def smov(d, x): return raw(f"s_mov_b32 {d}, {fmt(x)}", 'salu', reads=[x], writes=[d])
def sop(op, d, a, b):
    return I(f"{op} {d}, {fmt(a)}, {fmt(b)}", 'salu', reads=[a, b], writes=[d, 'scc'], op=op)
def make_srd(srd, ptr, nbytes, add=None):
    o = []
    if add is None:
        o += [smov(srd[0], ptr[0]), smov(srd[1], ptr[1])]
    else:
        o += [sop('s_add_u32', srd[0], ptr[0], add), I(f"s_addc_u32 {srd[1]}, {ptr[1]}, 0", 'salu', reads=[ptr[1], 'scc'], writes=[srd[1], 'scc'])]
    o += [smov(srd[2], nbytes), smov(srd[3], 0x20000)]
    return o
def readfirstlane(s, v):
    return I(f"v_readfirstlane_b32 {s}, {v}", 'valu', reads=[v], writes=[s], op='v_readfirstlane')
def dpp_add(d, a, ctrl):
    return I(f"v_add_f32_dpp {d}, {a}, {a} {ctrl} row_mask:0xf bank_mask:0xf", 'valu', reads=[a], writes=[d], op='v_add_f32_dpp')
def dpp_mov(d, a, ctrl):
    return I(f"v_mov_b32_dpp {d}, {a} {ctrl} row_mask:0xf bank_mask:0xf", 'valu', reads=[a], writes=[d], op='v_mov_b32_dpp')
def wave_sum(v, t):
    o = []
    for ctrl in ("quad_perm:[1,0,3,2]", "quad_perm:[2,3,0,1]", "row_half_mirror", "row_mirror"):
        o.append(dpp_add(v, v, ctrl))
    o += [valu('v_mov_b32', t, v), permlane16_swap(v, t), valu('v_add_f32', v, v, t)]
    o += [valu('v_mov_b32', t, v), permlane32_swap(v, t), valu('v_add_f32', v, v, t)]
    return o
def finish(seq, name):
    seq, _, _ = insert_waits(seq)
    return fix_hazards(seq, name)

def kernel_text(name, body_text, vgpr, accum, sgpr=96):
    return f""".globl {name}
.p2align 8
.type {name},@function
{name}:
{body_text}  s_endpgm
"""
def kernel_desc(name, vgpr, accum, sgpr=96):
    return f""".amdhsa_kernel {name}
  .amdhsa_next_free_vgpr {vgpr}
  .amdhsa_next_free_sgpr {sgpr}
  .amdhsa_accum_offset {accum}
  .amdhsa_group_segment_fixed_size 0
  .amdhsa_kernarg_size 104
  .amdhsa_user_sgpr_count 2
  .amdhsa_user_sgpr_kernarg_segment_ptr 1
  .amdhsa_system_sgpr_workgroup_id_x 1
.end_amdhsa_kernel
"""

WS_STAMP = 32 << 20
class Stamps:
    def __init__(self, enable, kid, base=64):
        self.en, self.kid, self.base, self.n = enable, kid, base, 0
    def __call__(self):
        if not self.en: return []
        r = S(self.base + 2*self.n, 2); self.n += 1
        op = 's_memtime' if getattr(self, 'cyc', False) else 's_memrealtime'
        return [raw(f"{op} {r}", 'smem', writes=[r]), waitcnt(lgkm=0)]
    def flush_dbg(self, wave_s, wg, vt=(V(1), V(2))):
        o = [sload(S(60, 2), ARG_DBG), waitcnt(lgkm=0)]
        o += make_srd(S(56, 4), S(60, 2), 256)
        o += [smov(S(62), 16), scmp('s_cmp_eq_u32', S(2), wg), raw("s_cselect_b32 s62, s62, 0x1000", writes=[S(62)]),
              scmp('s_cmp_eq_u32', wave_s, 0), raw("s_cselect_b32 s62, s62, 0x1000", writes=[S(62)]), valu('v_lshlrev_b32', vt[1], 25, V(0))]
        for i in range(1, min(self.n, 13)):
            o += [sop('s_sub_u32', S(63), S(self.base + 2*i), S(self.base)), valu('v_mov_b32', vt[0], S(63)), nop(1), bstore(1, vt[0], vt[1], S(56, 4), S(62), off=4*(i-1)), nop(1)]
        o += [waitcnt(vm=0)]
        return o
    def force(self, n):
        self.en = True; self.n = n
    def flush(self, wave_s, vt=(V(1), V(2))):
        if not self.en: return []
        o = [sload(S(60, 2), ARG_WS), waitcnt(lgkm=0)]
        o += make_srd(S(56, 4), S(60, 2), 64 << 20)
        o += [raw(f"s_lshl_b32 s62, s2, 2", writes=[S(62)]), sop('s_add_u32', S(62), S(62), wave_s), raw("s_lshl_b32 s62, s62, 6", writes=[S(62)]),
              sop('s_add_u32', S(62), S(62), WS_STAMP + (self.kid << 20))]
        o += [valu('v_mov_b32', vt[1], 0)]
        for i in range(self.n):
            o += [valu('v_mov_b32', vt[0], S(self.base + 2*i)), nop(1), bstore(1, vt[0], vt[1], S(56, 4), S(62), off=4*i), nop(1)]
        o += [waitcnt(vm=0)]
        return o
```

```python
from k_common import *
from k3_attn import (NST, KBASE, VBASE, XBASE, SRD_K, SRD_V, SRD_W, SRD_WQ, SRD_WO, S_TILE, S_WOFF, S_WAVE, S_G, S_QB, QSCALE,
                     O, Q, Kf, Vf, Sb, Sx, NM, LA, Pb, ONES, KA, VA, DK, DV, addr_tr256, dma_off_256, proj_gemm)
from k2_gemm1 import tr_addr_128, dma_off_128, gelu, LOG2E
WS_GATE = 6 << 20
HMOD = 'sc1'

class Opt:
    barrier = True
    minfill = 8; maxfill = 8; early = 1.5
    sm_rel = 4; p_lead = 2; k_span = 1.0; k_lead = 6; bar_lead = 5
    timing = False; prefetch = True; side = True; fuse_ln = True; fuse_comb = True
    stamp_after = (0, 16, 17, 21, 28, 30, 32)
    def __init__(self, **kw): self.__dict__.update(kw)

SRD_W1 = S(48, 4); SRD_W2 = S(52, 4); SRD_DBG = S(56, 4); SRD_US = S(60, 4)
S_T64 = S(46); S_DT = S(47); S_SR = S(40); S_SKIP = S(37); S_N = S(38); S_SA = S(39); S_SB = S(36); S_XB = S(27); S_KVSKIP = S(23); S_TMP = S(43)
TA = [V(14 + i) for i in range(4)]; DA = [V(18 + i) for i in range(4)]; DB = [V(22 + i) for i in range(4)]
def sacc(i, j): return A(128 + (i*4+j)*4, 4)
def sfa(h, t): return A(192 + 16*h + 4*t, 4)
def sfb(h, t): return A(224 + 16*h + 4*t, 4) if h else A(208 + 4*t, 4)
def g2a(h, t): return A(192 + 16*h + 4*t, 4)
def g2b(h, t): return A(224 + 16*h + 4*t, 4)

class Attn:
    def __init__(self, opt): self.o = opt
    def qk_slot(self, j, kh, c):
        out = []
        for q2 in range(2):
            for t in range(2):
                for i in range(4):
                    qt = 2*c + q2; sx = Sx(c, t, q2)
                    m = mfma16(sx, Kf(t*4+i), Q(i, qt), NM[qt] if i == 0 else sx)
                    tag(m, wt=('S', j, kh, c), rt=[(Kf(t*4+i), ('K', j, kh))] + ([(sx, ('S', j, kh, c))] if i else []))
                    out.append(m)
        return out
    def pv_slot(self, j, kh, c):
        out = []
        z = (j == 0 and kh == 0 and not getattr(self, 'nozero', False))
        for q2 in range(2):
            p = Pb[c][4*q2:4*q2+4]; qt = 2*c + q2
            for dt in range(8):
                m = mfma16(O(dt, qt), Vf(dt), p, 0 if z else O(dt, qt))
                tag(m, rt=[(Vf(dt), ('V', j, kh)), (p, ('P', j, kh, c))]); out.append(m)
            m = mfma16(LA[qt], ONES, p, 0 if z else LA[qt]); tag(m, rt=[(p, ('P', j, kh, c))]); out.append(m)
        return out
    def sm_list(self, j, kh, c):
        regs = []
        for q2 in range(2):
            for t in range(2):
                for r in range(4): regs.append((Sx(c, t, q2)[r], Pb[c][4*q2 + 2*t + (r >> 1)]))
        ops = []
        for n, (s, p) in enumerate(regs):
            ops.append((n, tag(valu('v_exp_f32', s, s), wt=('E', j, kh, c), rt=[(s, ('S', j, kh, c))])))
            if n & 1:
                sp = regs[n-1][0]
                ops.append((n + 1.04, tag(valu('v_cvt_pk_bf16_f32', p, sp, s), wt=('P', j, kh, c), rt=[(s, ('E', j, kh, c)), (sp, ('E', j, kh, c))])))
        return [i for (t, i) in sorted(ops, key=lambda x: x[0])]
    def k_reads(self, j, kh):
        st = j % NST
        return [tag(ds_read_b128(Kf(n), KA[n & 3], KBASE + st*16384 + kh*8192 + (n >> 2)*4096), wt=('K', j, kh)) for n in range(8)]
    def v_reads(self, j, kh):
        st = j % NST
        return [tag(ds_read_tr(Vf(dt)[2*u:2*u+2], VA[dt], st*16384 + kh*8192 + u*4096), wt=('V', j, kh)) for dt in range(8) for u in range(2)]
    def kv_dma(self, st, skip=False):
        ops = []
        for n in range(8):
            if n in (0, 4):
                base = (KBASE if n == 0 else VBASE) + st*16384
                ops.append(sop('s_add_u32', 'm0', S_WOFF, base))
                if skip: ops.append(sop('s_max_u32', 'm0', 'm0', S_KVSKIP))
                ops.append(nop(0))
            if n < 4: ops.append(dma(DK[n], SRD_K, S_TILE, off=n*1024))
            else: ops.append(dma(DV[n & 1], SRD_V, S_TILE, off=(n-4)*1024))
        ops.append(sop('s_add_u32', S_TILE, S_TILE, 16384))
        return ops

    def period(self, j, first=False, last_drain=False, kv=True, kvskip=False, side_groups=(), streams=(), pre=(), post=(), vm_end=None, side_dma_list=None):
        o = self.o
        hp, hc = not first, not last_drain
        base = [self.pv_slot(j-1, 1, 0) if hp else None, self.qk_slot(j, 0, 0) if hc else None,
                self.pv_slot(j-1, 1, 1) if hp else None, self.qk_slot(j, 0, 1) if hc else None,
                self.pv_slot(j, 0, 0) if hc else None, self.qk_slot(j, 1, 0) if hc else None,
                self.pv_slot(j, 0, 1) if hc else None, self.qk_slot(j, 1, 1) if hc else None]
        lens = [18, 16]*4
        mf = []; starts = []; ends = []; side_pos = []
        for s in range(8):
            starts.append(len(mf))
            mf += base[s] if base[s] is not None else [None]*lens[s]
            ends.append(len(mf))
            for (aft, g) in side_groups:
                if aft == s:
                    side_pos.append(len(mf)); mf += g
        T = len(mf)
        self.T = T
        ops = []
        CUT0 = o.cut0; CUT1 = o.cut1
        def sm_stream(jj, kh, c, t_lo, t_hi, tpv, i0=0, i1=None, release=None):
            raw_ops = self.sm_list(jj, kh, c); n = len(raw_ops); i1 = n if i1 is None else i1
            pv = self.pv_slot(jj, kh, c); res = []
            for idx in range(i0, i1):
                ins = raw_ops[idx]
                t = t_lo + (t_hi - t_lo) * (idx - i0) / max(1, (i1 - i0)); dl = 1e9
                if ins.op == 'v_cvt_pk_bf16_f32' and tpv is not None:
                    preg = list(ins.writes)[0]
                    dl = tpv + min(q for q, m in enumerate(pv) if preg in m.reads) - o.p_lead
                res.append([t, dl, ins])
            for idx in range(len(res) - 2, -1, -1): res[idx][1] = min(res[idx][1], res[idx+1][1])
            return [Op(ins, t, release=(t_lo if release is None else release), deadline=min(dl, T - 1), stream='sm') for (t, dl, ins) in res]
        rel = o.sm_rel
        if hp:
            ops += sm_stream(j-1, 1, 0, 0, rel, starts[0], i0=CUT0, release=0)
            ops += sm_stream(j-1, 1, 1, rel, ends[1] + rel, starts[2], i0=CUT1)
        if hc:
            ops += sm_stream(j, 0, 0, ends[1] + rel, ends[3] + rel, starts[4])
            ops += sm_stream(j, 0, 1, ends[3] + rel, ends[5] + rel, starts[6])
            ops += sm_stream(j, 1, 0, ends[5] + rel, T, None, i1=CUT0)
            if CUT1: ops += sm_stream(j, 1, 1, T - 1, T, None, i1=CUT1)
        if hc:
            for (kh, ks_slot, vs_slot) in ((0, 0, 2), (1, 4, 6)):
                qk = self.qk_slot(j, kh, 0)
                for n, ins in enumerate(self.k_reads(j, kh)):
                    fu = min(q for q, m in enumerate(qk) if ins.writes & m.reads)
                    t = starts[ks_slot] + n * 18 * o.k_span / 8
                    rl = (ends[ks_slot-1] if ks_slot else -1)
                    ops.append(Op(ins, max(t, rl), release=rl - 1 if ks_slot else -1, deadline=starts[ks_slot+1] + fu - o.k_lead, stream='k'))
                pv = self.pv_slot(j, kh, 0); pvo = self.pv_slot(j, kh, 1); info = []
                for ins in self.v_reads(j, kh):
                    lu = max(q for q, m in enumerate(pvo) if ins.writes & m.reads)
                    fu = min(q for q, m in enumerate(pv) if ins.writes & m.reads)
                    nxt = starts[vs_slot+2] if vs_slot + 2 < 8 else T + 18
                    dl = nxt + fu - o.k_lead
                    if kh == 1: dl = min(dl, T - 1 - o.bar_lead)
                    info.append((starts[vs_slot] + lu + 1, dl, ins))
                info.sort(key=lambda x: x[0])
                w0 = info[0][0]; w1 = min(x[1] for x in info)
                for n, (r, dl, ins) in enumerate(info):
                    ops.append(Op(ins, max(r, w0 + (w1 - w0) * n / len(info)), release=r, deadline=dl, stream='v'))
        dstream = []
        if kv and hc:
            lst = dma_ops_with_setup(self.kv_dma((j + 2) % NST, skip=kvskip))
            pos = o.kv_pos if not side_dma_list else o.kv_pos2; n = 0
            for (ins, st) in lst:
                if ins.kind == 'dma':
                    t = pos[n]; n += 1
                else: t = pos[min(n, 7)] if n < 8 else pos[7]
                dstream.append((t, 0.0, ins, st))
        if side_dma_list:
            (lst, f0, f1, fr) = side_dma_list
            lst = dma_ops_with_setup(lst)
            nd = sum(1 for (i, _) in lst if i.kind == 'dma'); n = 0
            for (ins, st) in lst:
                dstream.append((f0 + (f1 - f0) * n / max(1, nd), fr, ins, st))
                if ins.kind == 'dma': n += 1
        for (t, fr, ins, st) in dstream:
            op = Op(ins, t * T, release=fr * T, stream='dma'); op.setup = st
            ops.append(op)
        for (name, lst) in streams:
            for (ft, fr, ins) in lst:
                ops.append(Op(ins, ft * T, release=fr * T, stream=name))
        seq, fills = list_schedule2(mf, ops, o.minfill, o.maxfill, ahead=o.early)
        self.fills = fills
        seq = list(pre) + expand(seq) + list(post)
        if getattr(o, 'diag_period', None) == j:
            marks = sorted(set(starts + side_pos + [e for e in ends] + [T - 1]))
            marks = [m for m in marks if m < T]
            new = []; k = 0
            for ins in seq:
                if ins.kind == 'mfma':
                    kk = mf.index(ins)
                    if kk in marks:
                        r = S(o.diag_base + 2*len(o.diag_marks), 2); o.diag_marks.append(kk)
                        new.append(raw(f"s_memtime {r}", 'salu', writes=[r]))
                new.append(ins)
            seq = new
        if hc:
            nvm = sum(1 for i in seq if i.kind in ('dma', 'vload', 'vstore', 'vatomic')) if vm_end is None else vm_end
            seq.append(waitcnt(vm=nvm, lgkm=0))
            if o.barrier: seq.append(barrier())
        return seq
Opt.g1_rd = (0.03, 0.3); Opt.g1_dm = (0.62, 0.95)
Opt.pf_w1_at = 8; Opt.pf_w1 = False; Opt.pf_w2 = True
Opt.prescale = False; Opt.pf_kv = False; Opt.fast_tail = True; Opt.out_mods = ''; Opt.wq_early = False; Opt.arrive_at = 6; Opt.hpoll_at = 12; Opt.ln2_rate = 2; Opt.late2 = False; Opt.ps_from = 10; Opt.g2_tail = False; Opt.wot = False; Opt.wo_early = True; Opt.fm64 = False; Opt.g1_pos = 1; Opt.moff = 100
Opt.cut0 = 21; Opt.cut1 = 0
Opt.kv_pos = [0.147, 0.184, 0.22, 0.25, 0.647, 0.684, 0.72, 0.75]
Opt.kv_pos2 = [0.08, 0.12, 0.16, 0.20, 0.26, 0.30, 0.34, 0.38]

def side_dma(srdA, soA, strideA, srdB, soB, strideB, offsA, offsB, stage_tag, skip, modsB=""):
    o = []
    src = S_SR
    if skip:
        o.append(sop('s_max_u32', S(5), S_SR, S_SKIP)); src = S(5)
    o.append(smov('m0', src)); o.append(nop(0))
    for i in range(4): o.append(lds_dep(dma(offsA[i], srdA, soA, off=i*1024), need={f'sR{stage_tag}'}, mark={f'sL{stage_tag}'}))
    o.append(sop('s_add_u32', soA, soA, strideA))
    o.append(sop('s_add_u32', 'm0', src, 4096)); o.append(nop(0))
    for i in range(4): o.append(lds_dep(dma(offsB[i], srdB, soB, off=i*1024, mods=modsB), need={f'sR{stage_tag}'}, mark={f'sL{stage_tag}'}))
    o.append(sop('s_add_u32', soB, soB, strideB))
    return o
def spread(lst, f0, f1, rel=None):
    n = sum(1 for i in lst if cost(i) > 0) or 1
    out = []; k = 0
    for ins in lst:
        t = f0 + (f1 - f0) * k / n
        out.append((t, f0 if rel is None else rel, ins))
        if cost(ins) > 0: k += 1
    return out
def toggle_side():
    return [valu('v_xor_b32', TA[t], 8192, TA[t]) for t in range(4)] + [sop('s_xor_b32', S_SR, S_SR, 8192)]

def g1_parts(n, in_loop):
    st = n & 1
    rd = []
    for t in range(4):
        for u in range(2): rd.append(lds_dep(ds_read_tr(sfa(0, t)[2*u:2*u+2], TA[t], u*2048), need={f'sL{st}'}, mark={f'sR{st}'}))
    for t in range(4):
        for u in range(2): rd.append(lds_dep(ds_read_tr(sfb(0, t)[2*u:2*u+2], TA[t], 4096 + u*2048), need={f'sL{st}'}, mark={f'sR{st}'}))
    mf = [mfma16(sacc(ft, dt), sfa(0, ft), sfb(0, dt), sacc(ft, dt) if n else 0) for ft in range(4) for dt in range(4)]
    dm = []
    if in_loop:
        dm = [scmp('s_cmp_gt_u32', S_N, 13), I(f"s_cselect_b32 {S_SKIP}, 0x30000, 0", 'salu', reads=['scc'], writes=[S_SKIP]), sop('s_add_u32', S_N, S_N, 1)]
        dm += side_dma(SRD_W1, S_SA, 32*3584, SRD_W, S_SB, 32*1024, DA, DB, st, True, modsB=HMOD)
    elif n + 2 <= 15:
        dm = [sop('s_add_u32', S_N, S_N, 1)] + side_dma(SRD_W1, S_SA, 32*3584, SRD_W, S_SB, 32*1024, DA, DB, st, False, modsB=HMOD)
    return rd, mf, dm
def g2_parts(i):
    st = i & 1
    rd = []
    for h in range(2):
        for t in range(4):
            for u in range(2): rd.append(lds_dep(ds_read_tr(g2b(h, t)[2*u:2*u+2], TA[t], h*4096 + u*2048), need={f'sL{st}'}, mark={f'sR{st}'}))
    mfs = [[mfma16(sacc(mt, s_), g2a(h, mt), g2b(h, s_), sacc(mt, s_) if (i or h) else 0) for mt in range(4) for s_ in range(4)] for h in range(2)]
    return rd, mfs
def g2_dma(st, skip):
    return side_dma(SRD_W2, S_SA, 32*4096, SRD_W2, S_SA, 32*4096, DA, DA, st, skip)
def g2_uloads():
    o = []
    for h in range(2):
        for t in range(4): o.append(bload(4, g2a(h, t), DB[t], SRD_W, S_SB, mods="sc1"))
        o.append(sop('s_add_u32', S_SB, S_SB, 1024))
    return o

def proj_gemm2(a, s, TA_, DW, srd, SOFF, stride, S_RING, bread, uoff, name, last_pre=None, last_fill=None, dma_gap0=3, fb_base=0, hooks=None, fill=None, stage_map=None, extra_vm=None, fill_rate=2):
    NS = 3; NK = 16
    def fa(p, mt): return A(64 + 32*p + 4*mt, 4)
    def fb(p, qt): return A(fb_base + 16*p + 4*qt, 4)
    if stage_map is None: stage_map = [(TA_, st*8192, S_RING, st*8192) for st in range(NS)]
    def dma_step(n):
        o = []; st = n % NS
        (_, _, sb, madd) = stage_map[st]
        for h in range(2):
            o.append(sop('s_add_u32', 'm0', sb, madd + h*4096))
            for i in range(4):
                o.append(lds_dep(dma(DW[i], srd, SOFF, off=i*1024), need={f'{name}R{st}'}, mark={f'{name}L{st}'}))
            o.append(sop('s_add_u32', SOFF, SOFF, 16*stride))
        return o
    def reads(n):
        o = []; st = n % NS; p = n & 1
        (ta, imm, _, _) = stage_map[st]
        for qt in range(4): o.append(bread(n, qt, fb(p, qt)))
        for mt in range(8):
            for u in range(2):
                o.append(lds_dep(ds_read_tr(fa(p, mt)[2*u:2*u+2], ta[mt], imm + u*uoff), need={f'{name}L{st}'}, mark={f'{name}R{st}'}))
        return o
    s.extend(reads(0))
    for n in range(NK):
        rd = reads(n + 1) if n + 1 < NK else []
        dm = dma_step(n + 3) if n + 3 < NK else []
        if n == NK - 1:
            if last_pre: s.extend(last_pre)
            dm = list(last_fill or [])
        if extra_vm and n in extra_vm: dm = dm + extra_vm[n]
        if hooks and n in hooks: s.extend(hooks[n])
        mf = [mfma16(O(mt, qt), fa(n & 1, mt), fb(n & 1, qt), O(mt, qt) if n else 0) for mt in range(8) for qt in range(4)]
        gaps = [[] for _ in range(32)]
        g = dma_gap0
        for (ins, st_) in dma_ops_with_setup(dm):
            if ins.kind in ('dma', 'vload'):
                gaps[g - 1] += st_; gaps[g].append(ins); g = min(31, g + 2) if g + 2 <= 31 else 31
            else: gaps[min(31, g - 1)].append(ins) if g > dma_gap0 else gaps[0].append(ins)
        ev = [k for k in range(32) if not any(i.kind in ('dma', 'vload') for i in gaps[k])]
        for k, ins in enumerate(rd): gaps[ev[min(len(ev) - 1, k // 2)]].append(ins)
        for k, m in enumerate(mf):
            a(m); s.extend(sort_gap(gaps[k]))
            if fill:
                take = 0
                lim = fill_rate if not any(i.kind in ('dma', 'vload') for i in gaps[k]) else 0
                while fill and take < lim:
                    ins = fill.pop(0); a(ins)
                    if cost(ins) > 0: take += 1
    assert not fill

def proj_gemm3(a, s, srd, SOFF, VL, bread, abase, bbase, mid_fill=None, mods="sc1"):
    NK = 16; NT = 2*NK
    def fa(t, m): return A(abase + 16*(t % P3_SETS) + 4*m, 4)
    def fb(p, qt): return A(bbase + 16*p + 4*qt, 4)
    rdB = lambda t: [bread(t % NK, qt, fb(t & 1, qt)) for qt in range(4)]
    s.extend(rdB(0))
    fill = list(mid_fill or [])
    for t in range(NT):
        h, n = t // NK, t % NK
        rd = rdB(t + 1) if t + 1 < NT else []
        ld = proj3_loads(srd, SOFF, VL, t + P3_DEPTH, abase, mods) if t + P3_DEPTH < NT else []
        mf = [mfma16(O(4*h + m, qt), fa(t, m), fb(t & 1, qt), O(4*h + m, qt) if n else 0) for m in range(4) for qt in range(4)]
        gaps = [[] for _ in range(16)]
        g = 3
        for ins in ld:
            if ins.kind == 'vload':
                gaps[min(15, g)].append(ins); g += 3
            else: gaps[min(15, max(0, g - 1))].append(ins)
        for k, ins in enumerate(rd): gaps[1 + 3*k].append(ins)
        for k, m in enumerate(mf):
            a(m); s.extend(sort_gap(gaps[k]))
            if t >= NT - P3_DEPTH and fill:
                for _ in range(1 if gaps[k] else 2):
                    if fill: a(fill.pop(0))
                while fill and cost(fill[0]) == 0: a(fill.pop(0))
    s.extend(fill)
P3_SETS = 8; P3_DEPTH = 7
def proj3_loads(srd, SOFF, VL, t, abase, mods="sc1"):
    o = []
    for m in range(4): o.append(bload(4, A(abase + 16*(t % P3_SETS) + 4*m, 4), VL, srd, SOFF, off=m*1024, mods=mods))
    o.append(sop('s_add_u32', SOFF, SOFF, 32768) if (t % 16) != 15 else sop('s_sub_u32', SOFF, SOFF, 15*32768 - 4096))
    return o

def build(opt=None):
    o = opt or Opt()
    at = Attn(o)
    STP = Stamps(o.timing, 3); STP.cyc = getattr(o, 'cyc', False)
    s = []; a = s.append
    l = V(0)
    s.extend(STP())
    if getattr(o, 'dbgtime', False): a(raw('s_memrealtime s[94:95]', 'smem', writes=[S(94, 2)]))
    a(sload(S(4, 2), ARG_K)); a(sload(S(6, 2), ARG_V)); a(sload(S(22, 2), ARG_WS))
    a(sload(S(36, 2), ARG_WQ)); a(sload(S(56, 2), ARG_WO))
    a(sload(S(62, 2), ARG_W1)); a(sload(S(60, 2), ARG_W2)); a(sload(S(58, 2), ARG_DBG))
    if o.fuse_ln: a(sload(S(100, 2), ARG_X))
    a(raw("s_cmp_ge_u32 s2, 256")); a(raw("s_cbranch_scc1 L_k3_end", 'branch'))
    a(valu('v_lshrrev_b32', V(1), 6, V(0)))
    a(readfirstlane(S_WAVE, V(1)))
    a(valu('v_and_b32', l, 63, l))
    a(waitcnt(lgkm=0))
    a(raw("s_and_b32 s25, s2, 7", writes=[S_G])); a(raw("s_lshr_b32 s26, s2, 3", writes=[S_QB]))
    S_RING = S(41); S_SO = S(42); S_T = S(43)
    SRD_X = S(96, 4)
    XP = V(48, 64)
    if o.fuse_ln:
        s.extend(make_srd(SRD_X, S(100, 2), 2 << 20))
        a(valu('v_and_b32', V(1), 15, l)); a(valu('v_lshlrev_b32', V(1), 10, V(1)))
        a(valu('v_lshrrev_b32', V(2), 4, l)); a(valu('v_lshl_add_u32', V(1), V(2), 4, V(1)))
        a(raw("s_lshl_b32 s42, s26, 6", writes=[S_SO])); a(raw("s_lshl_b32 s43, s24, 4", writes=[S_T]))
        a(raw("s_add_u32 s42, s42, s43", writes=[S_SO])); a(raw("s_lshl_b32 s42, s42, 10", writes=[S_SO]))
        if getattr(o, 'fine2', False): s.extend(STP())
        for i in range(16): a(bload(4, XP[4*i:4*i+4], V(1), SRD_X, S_SO, off=64*i))
        if getattr(o, 'fine2', False): s.extend(STP())
    s.extend(make_srd(SRD_WQ, S(36, 2), 512*4096*2))
    a(valu('v_lshlrev_b32', V(7), 4, l))
    if o.prefetch:
        a(raw("s_lshl_b32 s42, s26, 4", writes=[S_SO])); a(raw("s_lshl_b32 s43, s24, 2", writes=[S_T]))
        a(raw("s_add_u32 s42, s42, s43", writes=[S_SO])); a(raw("s_lshl_b32 s42, s42, 13", writes=[S_SO]))
        a(raw("s_lshl_b32 s43, s25, 10", writes=[S_T])); a(raw("s_add_u32 s42, s42, s43", writes=[S_SO]))
        for n in range(4):
            a(bload(4, A(192 + 4*n, 4), V(7), SRD_WQ, S_SO)); a(sop('s_add_u32', S_SO, S_SO, 8192))
    a(raw("s_lshl_b32 s27, s25, 19", writes=[S(27)]))
    a(raw("s_sub_u32 s40, 0x400000, s27", writes=[S(40)]))
    s.extend(make_srd(SRD_K, S(4, 2), S(40), add=S(27))); s.extend(make_srd(SRD_V, S(6, 2), S(40), add=S(27)))
    s.extend(make_srd(SRD_W, S(22, 2), WS_END))
    s.extend(make_srd(SRD_WO, S(56, 2), 4096*512*2))
    a(raw("s_lshr_b32 s46, s26, 3", writes=[S_T64])); a(raw("s_lshl_b32 s46, s46, 3", writes=[S_T64])); a(raw("s_add_u32 s46, s46, s25", writes=[S_T64]))
    a(raw("s_and_b32 s47, s26, 7", writes=[S_DT]))
    a(raw("s_cmp_lt_u32 s46, 28"))
    a(raw(f"s_cselect_b32 s44, {2048*1792*2}, 0", writes=[S(44)]))
    a(raw(f"s_cselect_b32 s45, {WS_END}, 0", writes=[S(45)]))
    s.extend(make_srd(SRD_W1, S(62, 2), S(44)))
    s.extend(make_srd(SRD_W2, S(60, 2), 1792*2048*2))
    s.extend(make_srd(SRD_DBG, S(58, 2), 256))
    s.extend(make_srd(SRD_US, S(22, 2), S(45)))
    if o.pf_kv:
        a(valu('v_and_b32', V(2), 15, l)); a(raw("s_lshl_b32 s44, s26, 4", writes=[S(44)])); a(valu('v_add_u32', V(2), S(44), V(2))); a(valu('v_lshlrev_b32', V(2), 7, V(2)))
        a(I("v_cmp_gt_u32 vcc, 16, v0", 'valu', reads=[V(0)], writes=['vcc'])); a(nop(1))
        a(I(f"v_cndmask_b32 v2, -1, v2, vcc", 'valu', reads=[V(2), 'vcc'], writes=[V(2)]))
        a(bload(1, A(209), V(2), SRD_K, 0)); a(bload(1, A(210), V(2), SRD_V, 0))
    a(raw("s_lshl_b32 s21, s24, 12", writes=[S_WOFF]))
    a(raw("s_mul_i32 s41, s24, 24576", writes=[S_RING]))
    for r in range(4): a(valu('v_mov_b32', ONES[r], 0x3F803F80))
    if not o.fuse_ln:
        a(raw("s_lshl_b32 s42, s26, 6", writes=[S_SO])); a(raw("s_lshl_b32 s43, s24, 4", writes=[S_T]))
        a(raw("s_add_u32 s42, s42, s43", writes=[S_SO])); a(raw("s_lshl_b32 s42, s42, 10", writes=[S_SO]))
        a(raw("s_lshl_b32 s43, s24, 14", writes=[S_T])); a(raw(f"s_add_u32 s43, s43, {XBASE}", writes=[S_T]))
        for n in range(16):
            if n % 4 == 0: a(smov('m0', S_T))
            a(valu('v_xor_b32', V(14 + (n & 3)), n << 4, V(7)))
            a(lds_dep(dma(V(14 + (n & 3)), SRD_W, S_SO, off=(n & 3)*1024), mark={'XN'}))
            if n % 4 == 3:
                a(sop('s_add_u32', S_SO, S_SO, 4096)); a(sop('s_add_u32', S_T, S_T, 4096))
    PTA = [V(32 + i) for i in range(8)]; XA = [V(40 + i) for i in range(4)]; DW = [V(44 + i) for i in range(4)]
    dma_off_256(a, l, DW, 8192, 'q', S_T)
    a(raw("s_lshl_b32 s42, s25, 2", writes=[S_SO])); a(raw("s_add_u32 s42, s42, s24", writes=[S_SO]))
    a(raw("s_lshl_b32 s42, s42, 8", writes=[S_SO]))
    def wq_stage(n):
        o_ = []
        for h in range(2):
            o_ += [sop('s_add_u32', 'm0', S_RING, n*8192 + h*4096), nop(0)]
            for i in range(4): o_.append(lds_dep(dma(DW[i], SRD_WQ, S_SO, off=i*1024), need={f'qR{n}'}, mark={f'qL{n}'}))
            o_.append(sop('s_add_u32', S_SO, S_SO, 16*8192))
        return o_
    a(valu('v_mov_b32', V(6), S_RING))
    addr_tr256(a, l, PTA, V(6), 8)
    a(valu('v_and_b32', V(1), 15, l)); a(valu('v_lshrrev_b32', V(2), 4, l))
    a(valu('v_lshlrev_b32', V(3), 10, V(1))); a(valu('v_add_u32', V(3), XBASE, V(3)))
    for k in range(4):
        a(valu('v_add_u32', V(4), 4*k, V(2))); a(valu('v_xor_b32', V(4), V(4), V(1)))
        a(valu('v_lshl_add_u32', XA[k], V(4), 4, V(3)))
    a(valu('v_lshrrev_b32', V(2), 4, l)); a(valu('v_and_b32', V(3), 15, l))
    for i in range(4):
        a(valu('v_add_u32', V(4), 4*i, V(2))); a(valu('v_xor_b32', V(4), V(4), V(3)))
        a(valu('v_lshlrev_b32', V(4), 4, V(4))); a(valu('v_lshl_add_u32', KA[i], V(3), 8, V(4)))
    a(valu('v_lshrrev_b32', V(4), 2, V(3))); a(valu('v_and_b32', V(5), 3, l))
    a(valu('v_lshl_add_u32', V(7), V(2), 2, V(4)))
    a(valu('v_and_b32', V(1), 7, V(7))); a(valu('v_lshlrev_b32', V(1), 1, V(1)))
    a(valu('v_lshlrev_b32', V(7), 8, V(7)))
    a(valu('v_and_b32', V(6), 1, V(5))); a(valu('v_lshl_add_u32', V(7), V(6), 3, V(7)))
    a(valu('v_add_u32', V(7), VBASE, V(7)))
    a(valu('v_lshrrev_b32', V(6), 1, V(5)))
    for dt in range(8):
        a(valu('v_add_u32', V(5), 2*dt, V(6))); a(valu('v_xor_b32', V(5), V(5), V(1)))
        a(valu('v_lshl_add_u32', VA[dt], V(5), 4, V(7)))
    a(valu('v_lshlrev_b32', V(5), 8, V(2))); a(valu('v_add_u32', V(5), S_WOFF, V(5)))
    for n in range(4):
        a(valu('v_add_u32', V(6), 4*n, V(2))); a(valu('v_xor_b32', V(6), V(6), V(3)))
        a(valu('v_lshl_add_u32', DK[n], V(6), 4, V(5)))
    for n in range(2):
        a(valu('v_add_u32', V(6), 4*n, V(2))); a(valu('v_lshlrev_b32', V(6), 1, V(6)))
        a(valu('v_xor_b32', V(6), V(6), V(3))); a(valu('v_lshl_add_u32', DV[n], V(6), 4, V(5)))
    a(raw("s_lshl_b32 s27, s24, 14", writes=[S_XB])); a(raw(f"s_add_u32 s27, s27, {XBASE}", writes=[S_XB]))
    a(smov(S_SR, S_XB))
    a(valu('v_mov_b32', V(26), S_XB))
    tr_addr_128(a, l, TA, V(26), V(1), V(2), V(3), V(4))
    dma_off_128(a, l, DA, 3584, V(1), V(2), V(3), s_tmp=S_T)
    dma_off_128(a, l, DB, 1024, V(1), V(2), V(3), s_tmp=S_T)
    a(raw("s_lshl_b32 s44, s24, 9", writes=[S(44)]))
    a(raw("s_mul_i32 s39, s44, 3584", writes=[S_SA])); a(raw("s_lshl_b32 s45, s46, 7", writes=[S(45)])); a(raw("s_add_u32 s39, s39, s45", writes=[S_SA]))
    a(raw("s_lshl_b32 s36, s44, 10", writes=[S_SB])); a(raw("s_lshl_b32 s45, s47, 7", writes=[S(45)])); a(raw("s_add_u32 s36, s36, s45", writes=[S_SB]))
    a(raw(f"s_add_u32 s36, s36, {WS_H}", writes=[S_SB]))
    a(smov(S_N, 0)); a(smov(S_SKIP, 0))
    if getattr(o, 'fine', False): s.extend(STP())
    s.extend(wq_stage(0))
    if getattr(o, 'fine', False):
        a(lds_dep(nop(0), need=set(XP.regs()))); s.extend(STP())
    def pk(op, d, x, y, z=None, mods=""):
        srcs = [x, y] + ([z] if z is not None else [])
        return I(f"{op} {d}, " + ", ".join(str(t) for t in srcs) + (" " + mods if mods else ""), 'valu', reads=srcs, writes=[d], op=op)
    if o.fuse_ln:
        F = lambda i, e: V(128 + 8*i + e)
        D1 = V(28, 4); D2 = V(4, 4)
        for i in range(16):
            a(mfma16(D1, ONES, XP[4*i:4*i+4], D1 if i else 0)); a(mfma16(D2, XP[4*i:4*i+4], XP[4*i:4*i+4], D2 if i else 0))
            for q in range(4):
                a(valu('v_lshlrev_b32', F(i, 2*q), 16, XP[4*i+q])); a(valu('v_and_b32', F(i, 2*q+1), 0xffff0000, XP[4*i+q]))
        if o.wq_early: s.extend(wq_stage(1)); s.extend(wq_stage(2))
        a(valu('v_and_b32', V(1), 3, l))
        for r in (2, 1, 0):
            a(I(f"v_cmp_eq_u32 vcc, {r}, v1", 'valu', reads=[V(1)], writes=['vcc']))
            a(I(f"v_cndmask_b32 v7, v7, {D2[r]}, vcc", 'valu', reads=[V(7), D2[r], 'vcc'], writes=[V(7)]))
        a(valu('v_and_b32', V(1), 15, l)); a(valu('v_lshrrev_b32', V(2), 2, V(1)))
        a(valu('v_lshl_add_u32', V(2), V(2), 4, V(1))); a(valu('v_lshlrev_b32', V(2), 2, V(2)))
        a(I("ds_bpermute_b32 v3, v2, v7", 'ds_read', reads=[V(2), V(7)], writes=[V(3)]))
        MEAN = V(28); RS = V(2); NB = V(3)
        a(valu('v_mul_f32', MEAN, 1.0/512, MEAN))
        a(valu('v_mul_f32', V(3), 1.0/512, V(3)))
        a(valu('v_fma_f32', V(3), '-v28', MEAN, V(3)))
        a(valu('v_max_f32', V(3), 0, V(3)))
        a(valu('v_add_f32', V(3), 1e-5, V(3)))
        a(valu('v_rsq_f32', RS, V(3)))
        if o.prescale: a(valu('v_mul_f32', RS, QSCALE, RS))
        a(valu('v_mul_f32', NB, MEAN, RS)); a(valu('v_sub_f32', NB, 0, NB))
        for i in range(16):
            for e in range(8): a(valu('v_fma_f32', F(i, e), F(i, e), RS, NB))
        a(valu('v_and_b32', V(4), 15, l)); a(valu('v_lshrrev_b32', V(5), 4, l))
        a(raw("s_lshl_b32 s43, s24, 14", writes=[S_T])); a(raw(f"s_add_u32 s43, s43, {XBASE}", writes=[S_T]))
        a(valu('v_lshlrev_b32', V(6), 10, V(4))); a(valu('v_add_u32', V(6), S_T, V(6)))
        WA = [V(28 + k) for k in range(4)]
        for k in range(4):
            a(valu('v_add_u32', V(7), 4*k, V(5))); a(valu('v_xor_b32', V(7), V(7), V(4))); a(valu('v_lshl_add_u32', WA[k], V(7), 4, V(6)))
        for i in range(16):
            for q in range(4): a(valu('v_cvt_pk_bf16_f32', XP[4*i+q], F(i, 2*q), F(i, 2*q+1)))
            a(ds_write(4, WA[i & 3], XP[4*i:4*i+4], off=(i >> 2)*256))
        if getattr(o, 'fine', False): s.extend(STP())
        a(waitcnt(lgkm=0)); a(barrier())
        if getattr(o, 'fine', False): s.extend(STP())
    else:
        a(waitcnt(vm=8)); a(barrier())
    if not (o.fuse_ln and o.wq_early): s.extend(wq_stage(1)); s.extend(wq_stage(2))
    if o.fuse_ln:
        s_main, a_main = s, a
        ln2 = []; s = ln2; a = ln2.append
        R0 = [V(64 + i) for i in range(8)]; R1 = [V(72 + i) for i in range(8)]
        PK = [V(80, 4), V(84, 4)]
        a(raw("s_lshl_b32 s44, s25, 3", writes=[S(44)])); a(raw("s_lshl_b32 s45, s24, 1", writes=[S(45)])); a(raw("s_add_u32 s44, s44, s45", writes=[S(44)]))
        for k in range(2):
            a(sop('s_add_u32', S(45), S(44), k)); a(sop('s_and_b32', S(5), S(45), 15)); a(raw("s_lshl_b32 s5, s5, 4", writes=[S(5)]))
            a(raw("s_lshl_b32 s45, s45, 10", writes=[S(45)])); a(raw(f"s_add_u32 s45, s45, {XBASE}", writes=[S(45)]))
            a(valu('v_lshlrev_b32', V(94), 4, l)); a(valu('v_xor_b32', V(94), S(5), V(94))); a(valu('v_add_u32', V(94), S(45), V(94)))
            a(ds_read_b128(PK[k], V(94)))
        RR = [R0, R1]; SM = [V(88), V(90)]; TT = [V(89), V(91)]; QQ = [V(92), V(93)]
        for k in range(2):
            for q in range(4):
                a(valu('v_lshlrev_b32', RR[k][2*q], 16, PK[k][q])); a(valu('v_and_b32', RR[k][2*q+1], 0xffff0000, PK[k][q]))
        def both(f):
            x0, x1 = f(0), f(1)
            for u, v_ in zip(x0, x1): a(u); a(v_)
        both(lambda k: [valu('v_add_f32', SM[k], RR[k][0], RR[k][1])] + [valu('v_add_f32', SM[k], SM[k], RR[k][e]) for e in range(2, 8)])
        both(lambda k: wave_sum(SM[k], TT[k]))
        both(lambda k: [valu('v_mul_f32', SM[k], 1.0/512, SM[k])] + [valu('v_sub_f32', RR[k][e], RR[k][e], SM[k]) for e in range(8)])
        both(lambda k: [valu('v_mul_f32', QQ[k], RR[k][0], RR[k][0])] + [valu('v_fmac_f32', QQ[k], RR[k][e], RR[k][e], dst_read=True) for e in range(1, 8)])
        both(lambda k: wave_sum(QQ[k], TT[k]))
        both(lambda k: [valu('v_mov_b32', TT[k], 1e-5 * (QSCALE*QSCALE if o.prescale else 1.0)), valu('v_fmac_f32', TT[k], 1.0/512, QQ[k], dst_read=True), valu('v_rsq_f32', TT[k], TT[k])] +
                       [valu('v_mul_f32', RR[k][e], RR[k][e], TT[k]) for e in range(8)] + [valu('v_cvt_pk_bf16_f32', PK[k][q], RR[k][2*q], RR[k][2*q+1]) for q in range(4)])
        a(raw("s_lshl_b32 s45, s26, 6", writes=[S(45)])); a(raw("s_add_u32 s45, s45, s44", writes=[S(45)])); a(raw("s_lshl_b32 s45, s45, 10", writes=[S(45)]))
        a(raw(f"s_add_u32 s45, s45, {WS_H}", writes=[S(45)]))
        a(valu('v_lshlrev_b32', V(94), 4, l))
        a(lds_dep(bstore(4, PK[0], V(94), SRD_W, S(45), mods="sc1"), mark={'HS'}))
        a(lds_dep(bstore(4, PK[1], V(94), SRD_W, S(45), off=1024, mods="sc1"), mark={'HS'}))
        a(valu('v_lshlrev_b32', V(95), 25, l)); a(valu('v_mov_b32', V(96), 0))
        a(raw("s_and_b32 s45, s2, 127", writes=[S(45)])); a(raw("s_lshl_b32 s45, s45, 8", writes=[S(45)])); a(raw(f"s_add_u32 s45, s45, {WS_CNT}", writes=[S(45)]))
        a(lds_dep(bstore(1, V(96), V(95), SRD_W, S(45), mods="sc1"), mark={'HS'}))
        s, a = s_main, a_main
    s.extend(STP())
    def xread(n, qt, dst): return ds_read_b128(dst, XA[n & 3], (n >> 2)*256 + qt*16384)
    kv0 = [smov(S_TILE, 0)] + at.kv_dma(0)
    later = []; later2 = []
    if o.side: later += side_dma(SRD_W1, S_SA, 32*3584, SRD_W, S_SB, 32*1024, DA, DB, 0, False, modsB=HMOD) + [sop('s_xor_b32', S_SR, S_SR, 8192)]
    later2 += at.kv_dma(1)
    if o.side: later2 += side_dma(SRD_W1, S_SA, 32*3584, SRD_W, S_SB, 32*1024, DA, DB, 1, False, modsB=HMOD) + [sop('s_xor_b32', S_SR, S_SR, 8192)]
    if not o.late2: later += later2; later2 = []
    hooks = {}
    last_pre = [waitcnt(lgkm=0)]
    if o.fuse_ln:
        arrive = [lds_dep(nop(0), need={'HS'}), barrier(),
                  valu('v_mov_b32', V(4), 1), valu('v_lshlrev_b32', V(5), 25, l),
                  raw("s_and_b32 s44, s2, 3", writes=[S(44)]), raw("s_lshl_b32 s44, s44, 6", writes=[S(44)]),
                  raw("s_cmp_eq_u32 s24, 0"), raw("s_cselect_b32 s44, s44, 0x1000", reads=['scc'], writes=[S(44)]),
                  I(f"buffer_atomic_add v4, v5, {SRD_DBG}, s44 offen sc1", 'vatomic', reads=[V(4), V(5), SRD_DBG, S(44)], writes=[])]
        hooks[o.arrive_at] = arrive
        if o.prefetch and o.side and o.pf_w1:
            hooks[o.pf_w1_at] = [raw("s_lshl_b32 s44, s47, 2", writes=[S(44)]), raw("s_add_u32 s44, s44, s24", writes=[S(44)]), raw("s_lshl_b32 s44, s44, 6", writes=[S(44)]),
                        valu('v_add_u32', V(2), S(44), l), smov(S(44), 3584), valu('v_mul_lo_u32', V(2), V(2), S(44)),
                        raw("s_lshl_b32 s44, s46, 7", writes=[S(44)]), bload(1, A(208), V(2), SRD_W1, S(44))]
        hooks[o.hpoll_at] = [valu('v_and_b32', V(1), 3, l), valu('v_lshlrev_b32', V(1), 6, V(1)), bload(1, V(6), V(1), SRD_DBG, 0, mods="sc1")]
        chk = lambda: [I("v_cmp_le_u32 vcc, 64, v6", 'valu', reads=[V(6)], writes=['vcc']), nop(3), raw("s_cmp_eq_u64 vcc, -1", reads=['vcc'])]
        last_pre += [smov(S(45), 0), label("L_k3_hpoll")] + chk() + [raw("s_cbranch_scc1 L_k3_hpollok", 'branch'),
                     raw("s_sleep 4"), bload(1, V(6), V(1), SRD_DBG, 0, mods="sc1"), waitcnt(vm=0),
                     sop('s_add_u32', S(45), S(45), 1), scmp('s_cmp_lt_u32', S(45), 0x40000), raw("s_cbranch_scc1 L_k3_hpoll", 'branch'), label("L_k3_hpollok")]
    if getattr(o, 'qdiag', False):
        for n_ in (2, 4, 6, 8, 10, 12, 14): hooks[n_] = STP() + hooks.get(n_, [])
    last_pre += [barrier()]
    proj_gemm2(a, s, PTA, DW, SRD_WQ, S_SO, 8192, S_RING, xread, 1024, 'q', last_pre=last_pre, last_fill=kv0, hooks=hooks, fill=(ln2 if o.fuse_ln else None), fill_rate=o.ln2_rate)
    s.extend(STP())
    a(sload(S(96, 2), ARG_B1)); a(sload(S(98, 2), ARG_B2))
    a(smov(S(44), QSCALE))
    qpost = []
    for i in range(4):
        for qt in range(4):
            x, y = O(2*i, qt), O(2*i+1, qt)
            b_ = qpost.append
            if not (o.prescale and o.fuse_ln):
                for r in range(4):
                    b_(valu('v_mul_f32', x[r], S(44), x[r])); b_(valu('v_mul_f32', y[r], S(44), y[r]))
            T4 = V(48 + 4*((i*4+qt) & 1), 4)
            X0, X1, Y0, Y1 = T4[0], T4[1], T4[2], T4[3]
            b_(valu('v_cvt_pk_bf16_f32', X0, x[0], x[1])); b_(valu('v_cvt_pk_bf16_f32', X1, x[2], x[3]))
            b_(valu('v_cvt_pk_bf16_f32', Y0, y[0], y[1])); b_(valu('v_cvt_pk_bf16_f32', Y1, y[2], y[3]))
            b_(permlane32_swap(X0, Y0)); b_(permlane32_swap(X1, Y1))
            b_(permlane16_swap(X0, Y0)); b_(permlane16_swap(X1, Y1))
            q = Q(i, qt)
            b_(valu('v_accvgpr_write_b32', q[0], X0)); b_(valu('v_accvgpr_write_b32', q[1], X1))
            b_(valu('v_accvgpr_write_b32', q[2], Y0)); b_(valu('v_accvgpr_write_b32', q[3], Y1))
    grp = group_dma(later)
    step = max(1, len(qpost) // (len(grp) + 1)); gi = 0
    for k, ins in enumerate(qpost):
        a(ins)
        if k % step == step - 1 and gi < len(grp):
            s.extend(expand([grp[gi]])); gi += 1
            while gi < len(grp) and not isinstance(grp[gi], Grp):
                a(grp[gi]); gi += 1
    for g_ in grp[gi:]: s.extend(expand([g_]))
    s.extend(STP())
    a(waitcnt(vm=((8 if o.side else 0) if o.late2 else (24 if o.side else 8)))); a(barrier())
    MX = [V(18 + 0), V(19), V(20), V(21)] if False else [V(28), V(29), V(30), V(31)]
    g2l = group_dma(later2)
    for kh in range(2 if o.fm64 else 1):
        s.extend(at.k_reads(0, kh))
        for c in range(2):
            for q2 in range(2):
                for t in range(2):
                    for i in range(4):
                        a(mfma16(Sx(c, t, q2), Kf(t*4+i), Q(i, 2*c+q2), 0 if i == 0 else Sx(c, t, q2)))
                        if g2l and (i & 1):
                            s.extend(expand([g2l.pop(0)]))
                            while g2l and not isinstance(g2l[0], Grp): a(g2l.pop(0))
        for qt in range(4):
            c, q2 = qt >> 1, qt & 1
            s0, s1 = Sx(c, 0, q2), Sx(c, 1, q2); m = MX[qt]
            if kh == 0: a(valu('v_max3_f32', m, s0[0], s0[1], s0[2]))
            else: a(valu('v_max3_f32', m, s0[0], s0[1], m)); a(valu('v_max_f32', m, m, s0[2]))
            a(valu('v_max3_f32', m, m, s0[3], s1[0])); a(valu('v_max3_f32', m, m, s1[1], s1[2])); a(valu('v_max_f32', m, m, s1[3]))
    s.extend(expand(g2l))
    for qt in range(4):
        m = MX[qt]; t = V(5)
        a(valu('v_mov_b32', t, m)); a(permlane16_swap(m, t)); a(valu('v_max_f32', m, m, t))
        a(valu('v_mov_b32', t, m)); a(permlane32_swap(m, t)); a(valu('v_max_f32', m, m, t))
        for r in range(4): a(valu('v_sub_f32', NM[qt][r], float(-o.moff), m))
    s.extend(STP())
    pro = s
    B1 = S(28, 4); B2 = S(32 - 4, 4)
    def scratch_write():
        o_ = [valu('v_lshlrev_b32', V(27), 4, l), valu('v_add_u32', V(26), S_XB, V(27))]
        for i in range(4):
            for j in range(4): o_.append(ds_write(4, V(26), sacc(i, j), off=(i*4+j)*1024))
        o_ += [raw("s_lshl_b32 s43, s24, 10", writes=[S_TMP]), raw(f"s_add_u32 s43, s43, {XBASE}", writes=[S_TMP]), valu('v_add_u32', V(27), S_TMP, V(27))]
        return o_
    PS = [[V(18, 2), V(20, 2), V(22, 2), V(24, 2)], [V(28, 2), V(30, 2), V(2, 2), V(4, 2)]]
    def unit_reads(u):
        i, h = u >> 1, u & 1
        return [ds_read_b64(PS[u & 1][w], V(27), w*16384 + i*4096 + 8*h) for w in range(4)]
    def unit_sum(u, e):
        P_ = PS[u & 1]; x = P_[3][e]
        return [valu('v_add_f32', P_[0][e], P_[0][e], P_[1][e]), valu('v_add_f32', x, x, P_[2][e]), valu('v_add_f32', x, x, P_[0][e])], x
    per = {}
    def side_spec(j):
        kw = dict(first=(j == 0), last_drain=(j == 32), kv=(j <= 29))
        if not o.side: return kw
        if j <= 15:
            rd, mf, dm = g1_parts(j, in_loop=(j >= 1))
            kw['side_groups'] = [(5, mf)] if o.g1_pos == 0 else ([(3, mf[:8]), (5, mf[8:])] if o.g1_pos == 1 else [(7, mf)] if o.g1_pos == 2 else [(1, mf[:4]), (3, mf[4:8]), (5, mf[8:12]), (6, mf[12:])])
            if getattr(o, 'x_noread', False): rd = []
            if getattr(o, 'x_nodma', False): dm = [i for i in dm if i.kind != 'dma' and 'm0' not in i.writes]
            kw['streams'] = [('srd', spread(rd, o.g1_rd[0], o.g1_rd[1]))]
            if dm: kw['side_dma_list'] = (dm, o.g1_dm[0], o.g1_dm[1], 0.5)
            kw['post'] = toggle_side()
        elif j == 16:
            pre = make_srd(B1, S(96, 2), 1792*2)
            bl = [valu('v_lshrrev_b32', V(1), 4, l), valu('v_lshlrev_b32', V(1), 3, V(1)), raw("s_lshl_b32 s44, s46, 7", writes=[S(44)])]
            bl += [bload(2, A(192 + 2*ft, 2), V(1), B1, S(44), off=32*ft) for ft in range(4)]
            kw['pre'] = pre
            pf = []
            if o.prefetch and o.pf_w2 and not o.g2_tail:
                pf = [raw("s_mul_i32 s44, s47, 224", writes=[S(44)]), raw("s_mul_i32 s45, s24, 56", writes=[S(45)]), raw("s_add_u32 s44, s44, s45", writes=[S(44)]),
                      valu('v_add_u32', V(2), S(44), l), valu('v_lshlrev_b32', V(2), 12, V(2)), raw("s_lshl_b32 s45, s46, 7", writes=[S(45)]),
                      bload(1, A(200), V(2), SRD_W2, S(45))]
            if o.wot:
                pf += [raw("s_lshl_b32 s3, s25, 4", writes=[S(3)]), raw("s_lshr_b32 s5, s26, 1", writes=[S(5)]), raw("s_add_u32 s3, s3, s5", writes=[S(3)]),
                       raw("s_lshl_b32 s3, s3, 15", writes=[S(3)]), raw("s_and_b32 s5, s26, 1", writes=[S(5)]), raw("s_lshl_b32 s5, s5, 9", writes=[S(5)]),
                       raw("s_add_u32 s3, s3, s5", writes=[S(3)]), raw("s_lshl_b32 s5, s24, 7", writes=[S(5)]), raw("s_add_u32 s3, s3, s5", writes=[S(3)]),
                       valu('v_and_b32', V(3), 31, l), valu('v_lshlrev_b32', V(3), 10, V(3)), bload(1, A(201), V(3), SRD_WO, S(3))]
            kw['streams'] = [('sw', spread(scratch_write(), 0.1, 0.7)), ('sb', spread(bl, 0.05, 0.1)), ('spf', [(0.15, 0.12, i) for i in pf])]
        elif j == 17:
            comp = [smov(S(45), -2.0*0.7978845608028654*LOG2E*0.044715), valu('v_mov_b32', V(1), -2.0*0.7978845608028654*LOG2E)]
            comp += [raw("s_lshl_b32 s43, s47, 2", writes=[S_TMP]), raw("s_add_u32 s43, s43, s24", writes=[S_TMP]), raw("s_mul_i32 s43, s43, 56", writes=[S_TMP]),
                     raw("s_lshl_b32 s39, s46, 1", writes=[S_SA]), raw("s_add_u32 s43, s43, s39", writes=[S_TMP]), raw("s_lshl_b32 s43, s43, 10", writes=[S_TMP]),
                     raw(f"s_add_u32 s43, s43, {WS_U}", writes=[S_TMP]), valu('v_lshlrev_b32', V(26), 4, l)]
            OUTA = A(240, 8)
            comp += unit_reads(0)
            for u in range(8):
                ft, h = u >> 1, u & 1
                if u + 1 < 8: comp += unit_reads(u + 1)
                comp.append(valu('v_accvgpr_read_b32', V(6), A(192 + 2*ft + h)))
                xs = []
                for e in range(2):
                    sm_, x = unit_sum(u, e); comp += sm_; xs.append(x)
                    comp.append(valu('v_and_b32', V(7), 0xffff0000, V(6)) if e else valu('v_lshlrev_b32', V(7), 16, V(6)))
                    comp.append(valu('v_add_f32', x, x, V(7)))
                    comp += [valu('v_mul_f32', V(7), x, x), valu('v_fma_f32', V(7), V(7), S(45), V(1)), valu('v_mul_f32', V(7), V(7), x), valu('v_exp_f32', V(7), V(7)),
                             valu('v_add_f32', V(7), 1.0, V(7)), valu('v_rcp_f32', V(7), V(7)), valu('v_mul_f32', x, x, V(7))]
                comp += [valu('v_cvt_pk_bf16_f32', V(6), xs[0], xs[1]), valu('v_accvgpr_write_b32', OUTA[u], V(6))]
                if u in (3, 7): comp.append(lds_dep(bstore(4, OUTA[u-3:u+1], V(26), SRD_US, S_TMP, off=(u >> 2)*1024, mods="sc1"), mark={'US'}))
            kw['streams'] = [('scomp', spread(comp, 0.0, 0.98))]
        elif o.g2_tail and j >= 18:
            if j == 18:
                sig = [valu('v_mov_b32', V(4), 1), valu('v_lshlrev_b32', V(5), 25, l),
                       raw("s_lshl_b32 s44, s47, 2", writes=[S(44)]), raw("s_add_u32 s44, s44, s24", writes=[S(44)]), raw("s_lshl_b32 s44, s44, 8", writes=[S(44)]),
                       raw(f"s_add_u32 s44, s44, {WS_CNT}", writes=[S(44)]),
                       lds_dep(I(f"buffer_atomic_add v4, v5, {SRD_US}, s44 offen sc1", 'vatomic', reads=[V(4), V(5), SRD_US, S(44)], writes=[]), need={'US'})]
                kw['streams'] = [('ssig', [(0.6, 0.5, i) for i in sig])]
            elif j == 28:
                pl = [valu('v_and_b32', V(1), 3, l), valu('v_lshlrev_b32', V(1), 8, V(1)), raw("s_lshl_b32 s43, s47, 10", writes=[S_TMP]),
                      raw(f"s_add_u32 s43, s43, {WS_CNT}", writes=[S_TMP]), bload(1, V(6), V(1), SRD_W, S_TMP, mods="sc1")]
                pf = []
                if o.prefetch and o.pf_w2:
                    pf = [raw("s_mul_i32 s44, s47, 224", writes=[S(44)]), raw("s_mul_i32 s45, s24, 56", writes=[S(45)]), raw("s_add_u32 s44, s44, s45", writes=[S(44)]),
                          valu('v_add_u32', V(2), S(44), l), valu('v_lshlrev_b32', V(2), 12, V(2)), raw("s_lshl_b32 s45, s46, 7", writes=[S(45)]),
                          bload(1, A(200), V(2), SRD_W2, S(45))]
                if o.prefetch:
                    pf += [raw("s_lshl_b32 s44, s25, 5", writes=[S(44)]), raw("s_add_u32 s44, s44, s26", writes=[S(44)]), raw("s_lshl_b32 s44, s44, 2", writes=[S(44)]),
                           raw("s_add_u32 s44, s44, s24", writes=[S(44)]), raw("s_lshl_b32 s44, s44, 12", writes=[S(44)]), valu('v_lshlrev_b32', V(3), 4, l)]
                    pf += [bload(4, A(240 + 4*n, 4), V(3), SRD_WO, S(44), off=n*1024) for n in range(4)]
                kw['streams'] = [('spoll', [(0.05, 0.0, i) for i in pl]), ('spf', spread(pf, 0.45, 0.9, rel=0.42))]
                chk = lambda: [I("v_cmp_le_u32 vcc, 28, v6", 'valu', reads=[V(6)], writes=['vcc']), nop(3), raw("s_cmp_eq_u64 vcc, -1", reads=['vcc'])]
                kw['post'] = [smov(S(45), 0), label("L_k3_poll")] + chk() + [raw("s_cbranch_scc1 L_k3_pollok", 'branch'),
                              raw("s_sleep 4"), bload(1, V(6), V(1), SRD_W, S_TMP, mods="sc1"), waitcnt(vm=0),
                              sop('s_add_u32', S(45), S(45), 1), scmp('s_cmp_lt_u32', S(45), 0x40000), raw("s_cbranch_scc1 L_k3_poll", 'branch'), label("L_k3_pollok")]
        elif j == 18:
            su = []
            dma_off_128(su.append, l, DA, 4096, V(1), V(2), V(3), s_tmp=S_TMP)
            su += [valu('v_lshlrev_b32', DB[0], 4, l)] + [valu('v_add_u32', DB[t], 56*1024, DB[t-1]) for t in range(1, 4)]
            su += [raw("s_mul_i32 s39, s24, 448*4096", writes=[S_SA]), raw("s_lshl_b32 s43, s46, 7", writes=[S_TMP]), raw("s_add_u32 s39, s39, s43", writes=[S_SA]),
                   raw("s_mul_i32 s36, s47, 4*56", writes=[S_SB]), raw("s_mul_i32 s43, s24, 14", writes=[S_TMP]), raw("s_add_u32 s36, s36, s43", writes=[S_SB]),
                   raw("s_lshl_b32 s36, s36, 10", writes=[S_SB]), raw(f"s_add_u32 s36, s36, {WS_U}", writes=[S_SB]), smov(S_N, 0), smov(S_SKIP, 0)]
            sig = [valu('v_mov_b32', V(4), 1), valu('v_lshlrev_b32', V(5), 25, l),
                   raw("s_lshl_b32 s44, s47, 2", writes=[S(44)]), raw("s_add_u32 s44, s44, s24", writes=[S(44)]), raw("s_lshl_b32 s44, s44, 8", writes=[S(44)]),
                   raw(f"s_add_u32 s44, s44, {WS_CNT}", writes=[S(44)]),
                   lds_dep(I(f"buffer_atomic_add v4, v5, {SRD_US}, s44 offen sc1", 'vatomic', reads=[V(4), V(5), SRD_US, S(44)], writes=[]), need={'US'})]
            kw['streams'] = [('ssu', spread(su, 0.05, 0.55)), ('ssig', [(0.6, 0.5, i) for i in sig])]
            if o.wot:
                WD = [V(28 + i) for i in range(4)]
                wsu = []
                dma_off_128(wsu.append, l, WD, 1024, V(6), V(7), V(26), s_tmp=S(5))
                wsu += [raw("s_lshl_b32 s3, s25, 4", writes=[S(3)]), raw("s_lshr_b32 s5, s26, 1", writes=[S(5)]), raw("s_add_u32 s3, s3, s5", writes=[S(3)]),
                        raw("s_lshl_b32 s3, s3, 15", writes=[S(3)]), raw("s_and_b32 s5, s26, 1", writes=[S(5)]), raw("s_lshl_b32 s5, s5, 9", writes=[S(5)]),
                        raw("s_add_u32 s3, s3, s5", writes=[S(3)]), raw("s_lshl_b32 s5, s24, 7", writes=[S(5)]), raw("s_add_u32 s3, s3, s5", writes=[S(3)])]
                kw['streams'].append(('swsu', spread(wsu, 0.0, 0.12)))
                dl = [sop('s_add_u32', 'm0', S_SR, 8192), nop(0)] + [lds_dep(dma(WD[i], SRD_WO, S(3), off=i*1024), need={'sR1'}, mark={'sL1'}) for i in range(4)]
                kw['side_dma_list'] = (dl, 0.42, 0.55, 0.2)
        elif j == 19:
            st = g2_dma(0, False) + [sop('s_xor_b32', S_SR, S_SR, 8192)] + g2_dma(1, False) + [sop('s_xor_b32', S_SR, S_SR, 8192)]
            kw['side_dma_list'] = (st, 0.42, 0.95, 0.0)
            if o.wot:
                rd = [lds_dep(ds_read_tr(A(192 + 4*t + 2*u, 2), TA[t], 8192 + u*2048), need={'sL1'}, mark={'sR1'}) for t in range(4) for u in range(2)]
                ad = [raw("s_lshl_b32 s3, s25, 4", writes=[S(3)]), raw("s_lshr_b32 s5, s26, 1", writes=[S(5)]), raw("s_add_u32 s3, s3, s5", writes=[S(3)]),
                      raw("s_lshl_b32 s3, s3, 5", writes=[S(3)]), raw("s_and_b32 s5, s26, 1", writes=[S(5)]), raw("s_lshl_b32 s5, s5, 4", writes=[S(5)]),
                      raw("s_add_u32 s3, s3, s5", writes=[S(3)]), raw("s_lshl_b32 s5, s24, 2", writes=[S(5)]), raw("s_add_u32 s3, s3, s5", writes=[S(3)]),
                      raw("s_lshl_b32 s3, s3, 10", writes=[S(3)]), raw(f"s_add_u32 s3, s3, {WS_WOT}", writes=[S(3)]), valu('v_lshlrev_b32', V(26), 4, l)]
                stw = [bstore(4, A(192 + 4*t, 4), V(26), SRD_W, S(3), off=t*1024, mods="sc1") for t in range(4)]
                kw['streams'] = [('swr', spread(rd, 0.50, 0.60, rel=0.48) + [(0.61, 0.0, i) for i in ad] + spread(stw, 0.64, 0.8, rel=0.62))]
                kw['side_dma_list'] = (st, 0.42, 0.97, 0.0)
        elif j == 20:
            pl = [valu('v_and_b32', V(1), 3, l), valu('v_lshlrev_b32', V(1), 8, V(1)), raw("s_lshl_b32 s43, s47, 10", writes=[S_TMP]),
                  raw(f"s_add_u32 s43, s43, {WS_CNT}", writes=[S_TMP]), bload(1, V(6), V(1), SRD_W, S_TMP, mods="sc1")]
            kw['streams'] = [('spoll', [(0.80, 0.7, i) for i in pl])]
            if o.prefetch and not o.wot:
                extra = [raw("s_lshl_b32 s44, s25, 5", writes=[S(44)]), raw("s_add_u32 s44, s44, s26", writes=[S(44)]), raw("s_lshl_b32 s44, s44, 2", writes=[S(44)]),
                         raw("s_add_u32 s44, s44, s24", writes=[S(44)]), raw("s_lshl_b32 s44, s44, 12", writes=[S(44)])]
                extra += [bload(4, A(240 + 4*n, 4), DB[0], SRD_WO, S(44), off=n*1024) for n in range(4)]
                kw['streams'].append(('spf', spread(extra, 0.42, 0.55)))
            chk = lambda: [I("v_cmp_le_u32 vcc, 28, v6", 'valu', reads=[V(6)], writes=['vcc']), nop(3), raw("s_cmp_eq_u64 vcc, -1", reads=['vcc'])]
            dg = (STP() if getattr(o, 'polldiag', False) else [])
            kw['post'] = dg + [smov(S(45), 0), label("L_k3_poll")] + chk() + [raw("s_cbranch_scc1 L_k3_pollok", 'branch'),
                          raw("s_sleep 4"), bload(1, V(6), V(1), SRD_W, S_TMP, mods="sc1"), waitcnt(vm=0),
                          sop('s_add_u32', S(45), S(45), 1), scmp('s_cmp_lt_u32', S(45), 0x40000), raw("s_cbranch_scc1 L_k3_poll", 'branch'), label("L_k3_pollok")] + ([smov(S(94), S(45))] if getattr(o, 'polldiag', False) else [])
            kw['vm_end'] = 0
        elif j == 21:
            if o.wot:
                kw['pre'] = [valu('v_mov_b32', V(4), 1), valu('v_lshlrev_b32', V(5), 25, l), sop('s_add_u32', S(44), S_G, 64), raw("s_lshl_b32 s44, s44, 8", writes=[S(44)]),
                             raw(f"s_add_u32 s44, s44, {WS_CNT}", writes=[S(44)]), raw("s_cmp_eq_u32 s24, 0"), raw(f"s_cselect_b32 s44, s44, {WS_END}", reads=['scc'], writes=[S(44)]),
                             I(f"buffer_atomic_add v4, v5, {SRD_W}, s44 offen sc1", 'vatomic', reads=[V(4), V(5), SRD_W, S(44)], writes=[])]
            z = [valu('v_accvgpr_write_b32', A(128 + r), 0) for r in range(64)]
            kw['streams'] = [('sul', spread(g2_uloads(), 0.05, 0.3)), ('sz', spread(z, 0.1, 0.95))]
        elif 22 <= j <= 28:
            i = j - 22
            rd, mfs = g2_parts(i if i else 1)
            rd, _ = g2_parts(i)
            kw['side_groups'] = [(3, mfs[0]), (5, mfs[1])]
            stl = [('srd', spread(rd, 0.02, 0.36))]
            if j <= 27:
                dm = [scmp('s_cmp_gt_u32', S_N, 4), I(f"s_cselect_b32 {S_SKIP}, 0x30000, 0", 'salu', reads=['scc'], writes=[S_SKIP]), sop('s_add_u32', S_N, S_N, 1)]
                dm += g2_dma(i & 1, True)
                kw['side_dma_list'] = (dm, 0.45, 0.78, 0.42)
                stl += [('sul', spread(g2_uloads(), 0.82, 0.98, rel=0.80))]
            kw['streams'] = stl
            kw['post'] = toggle_side()
        elif j == 29:
            pre = make_srd(B1, S(98, 2), 2048*2)
            bl = [valu('v_and_b32', V(1), 15, l), raw("s_lshl_b32 s44, s46, 6", writes=[S(44)]), raw("s_lshl_b32 s45, s24, 4", writes=[S(45)]),
                  raw("s_add_u32 s44, s44, s45", writes=[S(44)]), valu('v_add_u32', V(1), S(44), V(1)), valu('v_lshlrev_b32', V(1), 1, V(1)), bload_ushort(V(1), V(1), B1)]
            kw['pre'] = pre
            kw['streams'] = [('sw', spread(scratch_write(), 0.1, 0.7)), ('sb', spread(bl, 0.05, 0.1))]
        elif j == 30:
            comp = [smov(S(44), -LOG2E), valu('v_lshlrev_b32', V(1), 16, V(1))]
            comp += [raw("s_lshr_b32 s43, s47, 1", writes=[S_TMP]), raw("s_lshl_b32 s45, s46, 2", writes=[S(45)]), raw("s_add_u32 s43, s43, s45", writes=[S_TMP]),
                     raw("s_lshl_b32 s43, s43, 2", writes=[S_TMP]), raw("s_and_b32 s45, s47, 1", writes=[S(45)]), raw("s_lshl_b32 s45, s45, 1", writes=[S(45)]),
                     raw("s_add_u32 s43, s43, s45", writes=[S_TMP]), raw("s_lshl_b32 s43, s43, 2", writes=[S_TMP]), raw("s_add_u32 s43, s43, s24", writes=[S_TMP]),
                     raw("s_lshl_b32 s43, s43, 10", writes=[S_TMP]), raw(f"s_add_u32 s43, s43, {WS_GATE}", writes=[S_TMP]), valu('v_lshlrev_b32', V(26), 4, l)]
            OUTA = A(240, 8)
            comp += unit_reads(0)
            for u in range(8):
                if u + 1 < 8: comp += unit_reads(u + 1)
                xs = []
                for e in range(2):
                    sm_, y = unit_sum(u, e); comp += sm_; xs.append(y)
                    comp += [valu('v_add_f32', y, y, V(1)), valu('v_mul_f32', V(7), S(44), y), valu('v_exp_f32', V(7), V(7)), valu('v_add_f32', V(7), 1.0, V(7)),
                             valu('v_rcp_f32', V(7), V(7)), valu('v_mul_f32', y, y, V(7))]
                comp += [valu('v_cvt_pk_bf16_f32', V(6), xs[0], xs[1]), valu('v_accvgpr_write_b32', OUTA[u], V(6))]
                if u in (3, 7):
                    comp.append(bstore(4, OUTA[u-3:u+1], V(26), SRD_W, S_TMP, mods=("sc1" if o.fuse_comb else "")))
                    comp.append(sop('s_add_u32', S_TMP, S_TMP, 4096))
            kw['streams'] = [('scomp', spread(comp, 0.0, 0.98))]
        return kw
    DO = [V(14 + i) for i in range(4)]
    TO = [V(64 + i) for i in range(8)]; TO2 = [V(72 + i) for i in range(8)]
    S_SLOW = S(6); S_R2 = S(7)
    def wo_setup():
        s_ = []; a_ = s_.append
        dma_off_256(a_, l, DO, 1024, 'o', S_T)
        a_(raw("s_lshl_b32 s42, s25, 19", writes=[S_SO])); a_(raw("s_lshl_b32 s43, s24, 8", writes=[S_T]))
        a_(raw("s_add_u32 s42, s42, s43", writes=[S_SO]))
        a_(raw("s_lshl_b32 s7, s24, 13", writes=[S_R2])); a_(raw("s_add_u32 s7, s7, 65536", writes=[S_R2]))
        return s_
    def wo_stage(n):
        s_ = []
        sb, madd = (S_XB, n*8192) if n < 2 else (S_R2, 0)
        for h in range(2):
            s_ += [sop('s_add_u32', 'm0', sb, madd + h*4096), nop(0)]
            for i in range(4): s_.append(lds_dep(dma(DO[i], SRD_WO, S_SO, off=i*1024), need={f'oR{n}'}, mark={f'oL{n}'}))
            s_.append(sop('s_add_u32', S_SO, S_SO, 16*1024))
        return s_
    def wo_first_lds(): return wo_setup() + wo_stage(0) + wo_stage(1) + wo_stage(2)
    VLW = V(14)
    def wot_setup():
        return [valu('v_lshlrev_b32', VLW, 4, l), raw("s_lshl_b32 s42, s25, 19", writes=[S_SO]), raw("s_lshl_b32 s43, s24, 13", writes=[S_T]),
                raw("s_add_u32 s42, s42, s43", writes=[S_SO]), raw(f"s_add_u32 s42, s42, {WS_WOT}", writes=[S_SO])]
    def wot_loads(n): return proj3_loads(SRD_W, S_SO, VLW, n, 128)
    def wot_first(): return [i for n in range(P3_DEPTH) for i in wot_loads(n)]
    def wo_first(): return (wot_setup() + wot_first()) if o.wot else wo_first_lds()
    seqs = [('pro', pro)]
    for j in range(33):
        kw_ = side_spec(j)
        if j == 31 and o.wot:
            kw_['streams'] = list(kw_.get('streams', [])) + [('swo', spread(wot_setup(), 0.0, 0.05) + spread(wot_first(), 0.08, 0.95, rel=0.06))]
        elif j == 31 and o.wo_early:
            kw_['streams'] = list(kw_.get('streams', [])) + [('swo', spread(wo_setup(), 0.02, 0.2))]
            kw_['side_dma_list'] = (wo_stage(0) + wo_stage(1), 0.25, 0.95, 0.22)
        if j == 30 and o.wot:
            pl = [valu('v_mov_b32', V(16), 0), sop('s_add_u32', S(3), S_G, 64), raw("s_lshl_b32 s3, s3, 8", writes=[S(3)]), raw(f"s_add_u32 s3, s3, {WS_CNT}", writes=[S(3)]),
                  bload(1, V(17), V(16), SRD_W, S(3), mods="sc1")]
            kw_['streams'] = list(kw_.get('streams', [])) + [('swp', [(0.3, 0.25, i) for i in pl])]
            kw_['post'] = list(kw_.get('post', [])) + [smov(S(5), 0), label("L_k3_wpoll"), readfirstlane(S(4), V(17)), nop(3), scmp('s_cmp_ge_u32', S(4), 32),
                          raw("s_cbranch_scc1 L_k3_wpollok", 'branch'), raw("s_sleep 4"), bload(1, V(17), V(16), SRD_W, S(3), mods="sc1"), waitcnt(vm=0),
                          sop('s_add_u32', S(5), S(5), 1), scmp('s_cmp_lt_u32', S(5), 0x40000), raw("s_cbranch_scc1 L_k3_wpoll", 'branch'), label("L_k3_wpollok")]
        p = at.period(j, **kw_)
        if o.timing and j in o.stamp_after: p = p + STP()
        seqs.append((j, [label(f"@@P{j}")] + p))
    def arrive2(idx_s):
        return [valu('v_mov_b32', V(4), 1), valu('v_lshlrev_b32', V(5), 25, l),
                sop('s_add_u32', S(44), idx_s, 32), raw("s_lshl_b32 s44, s44, 8", writes=[S(44)]), raw(f"s_add_u32 s44, s44, {WS_CNT}", writes=[S(44)]),
                raw("s_cmp_eq_u32 s24, 0"), raw(f"s_cselect_b32 s44, s44, {WS_END}", reads=['scc'], writes=[S(44)]),
                I(f"buffer_atomic_add v4, v5, {SRD_W}, s44 offen sc1", 'vatomic', reads=[V(4), V(5), SRD_W, S(44)], writes=[])]
    pre_epi = [smov(S_SLOW, 0)]
    if o.fuse_comb: pre_epi += ([] if o.g2_tail else arrive2(S_T64)) + [sload(S(96, 2), ARG_X)] + ([sload(S(100, 2), ARG_OUT)] if o.g2_tail else [sload(S(98, 2), ARG_OUT)])
    if not o.wot: pre_epi += (wo_stage(2) if o.wo_early else wo_first())
    s = []; a = s.append
    a(label("@@EPI"))
    a(label("L_k3_norm"))
    a(nop(7))
    if not o.wot:
        a(valu('v_mov_b32', V(6), S_XB))
        addr_tr256(a, l, TO, V(6), 4)
        a(valu('v_mov_b32', V(6), S_R2))
        addr_tr256(a, l, TO2, V(6), 4)
    LI = [V(24 + i) for i in range(4)]
    for qt in range(4): a(valu('v_rcp_f32', LI[qt], LA[qt][0]))
    a(valu('v_lshlrev_b32', V(7), 4, l))
    a(raw("s_lshl_b32 s43, s24, 14", writes=[S_T]))
    a(valu('v_add_u32', V(22), S_T, V(7))); a(valu('v_mov_b32', V(23), V(7)))
    for kk in range(4):
        for qt in range(4):
            x, y = O(2*kk, qt), O(2*kk+1, qt)
            for r in range(4):
                a(valu('v_mul_f32', x[r], x[r], LI[qt])); a(valu('v_mul_f32', y[r], y[r], LI[qt]))
            if o.moff:
                mx = V(28 + qt)
                ab = lambda r_: f"|{r_}|"
                if kk == 0: a(valu('v_max3_f32', mx, ab(x[0]), ab(x[1]), ab(x[2])))
                else: a(valu('v_max3_f32', mx, ab(x[0]), ab(x[1]), mx)); a(valu('v_max_f32', mx, ab(x[2]), mx, mods=""))
                a(valu('v_max3_f32', mx, ab(x[3]), ab(y[0]), mx)); a(valu('v_max3_f32', mx, ab(y[1]), ab(y[2]), mx)); a(valu('v_max_f32', mx, ab(y[3]), mx))
            F = V(48 + 4*((kk*4+qt) & 3), 4)
            a(valu('v_cvt_pk_bf16_f32', F[0], x[0], x[1])); a(valu('v_cvt_pk_bf16_f32', F[1], x[2], x[3]))
            a(valu('v_cvt_pk_bf16_f32', F[2], y[0], y[1])); a(valu('v_cvt_pk_bf16_f32', F[3], y[2], y[3]))
            a(ds_write(4, V(22), F, off=(kk*4+qt)*1024))
    a(waitcnt(lgkm=0)); a(barrier())
    s.extend(STP())
    def oread(n, qt, dst): return ds_read_b128(dst, V(23), (n*4+qt)*1024)
    S_PS = S(3)
    def pstore(prange):
        o_ = []
        for p in prange:
            for qt in range(4):
                x, y = O(2*p, qt), O(2*p+1, qt)
                F = V(48 + 4*((p*4+qt) & 3), 4)
                o_ += [valu('v_cvt_pk_bf16_f32', F[0], x[0], x[1]), valu('v_cvt_pk_bf16_f32', F[1], x[2], x[3]),
                       valu('v_cvt_pk_bf16_f32', F[2], y[0], y[1]), valu('v_cvt_pk_bf16_f32', F[3], y[2], y[3]),
                       bstore(4, F, V(7), SRD_W, S_PS, off=qt*1024, mods=("sc1" if o.fuse_comb else ""))]
            o_.append(sop('s_add_u32', S_PS, S_PS, 4096))
        return o_
    a(raw("s_lshl_b32 s3, s25, 5", writes=[S_PS])); a(raw("s_add_u32 s3, s3, s26", writes=[S_PS]))
    a(raw("s_lshl_b32 s3, s3, 2", writes=[S_PS])); a(raw("s_add_u32 s3, s3, s24", writes=[S_PS]))
    a(raw("s_lshl_b32 s3, s3, 14", writes=[S_PS])); a(raw(f"s_add_u32 s3, s3, {WS_PART}", writes=[S_PS]))
    g2pre = {}
    if o.g2_tail:
        GTA = [[V(96 + t) for t in range(4)], [V(100 + t) for t in range(4)]]
        GDA = [V(104 + t) for t in range(4)]; GUL = [V(108 + t) for t in range(4)]
        a(valu('v_mov_b32', V(6), S_XB)); tr_addr_128(a, l, GTA[0], V(6), V(1), V(2), V(3), V(4))
        a(valu('v_mov_b32', V(6), S_R2)); tr_addr_128(a, l, GTA[1], V(6), V(1), V(2), V(3), V(4))
        dma_off_128(a, l, GDA, 4096, V(1), V(2), V(3), s_tmp=S(5))
        a(valu('v_lshlrev_b32', GUL[0], 4, l))
        for t in range(1, 4): a(valu('v_add_u32', GUL[t], 56*1024, GUL[t-1]))
        a(raw("s_mul_i32 s39, s24, 448*4096", writes=[S_SA])); a(raw("s_lshl_b32 s5, s46, 7", writes=[S(5)])); a(raw("s_add_u32 s39, s39, s5", writes=[S_SA]))
        a(raw("s_mul_i32 s36, s47, 4*56", writes=[S_SB])); a(raw("s_mul_i32 s5, s24, 14", writes=[S(5)])); a(raw("s_add_u32 s36, s36, s5", writes=[S_SB]))
        a(raw("s_lshl_b32 s36, s36, 10", writes=[S_SB])); a(raw(f"s_add_u32 s36, s36, {WS_U}", writes=[S_SB]))
        s.extend(make_srd(S(28, 4), S(98, 2), 2048*2))
        a(valu('v_and_b32', V(1), 15, l)); a(raw("s_lshl_b32 s44, s46, 6", writes=[S(44)])); a(raw("s_lshl_b32 s45, s24, 4", writes=[S(45)]))
        a(raw("s_add_u32 s44, s44, s45", writes=[S(44)])); a(valu('v_add_u32', V(1), S(44), V(1))); a(valu('v_lshlrev_b32', V(1), 1, V(1)))
        a(bload_ushort(V(18), V(1), S(28, 4)))
        gmap = [(0, 8192, S_XB, 8192), (0, 12288, S_XB, 12288), (1, 0, S_R2, 0), (1, 4096, S_R2, 4096)]
        wneed = ['oR1', 'oR1', 'oR2', 'oR2']
        def g2_w(n, first=False):
            st = n % 4; (_, _, sb, madd) = gmap[st]
            o_ = [sop('s_add_u32', 'm0', sb, madd)]
            for i in range(4): o_.append(lds_dep(dma(GDA[i], SRD_W2, S_SA, off=i*1024), need={f'gR{st}'} | ({wneed[st]} if first else set()), mark={f'gL{st}'}))
            o_.append(sop('s_add_u32', S_SA, S_SA, 32*4096))
            return o_
        gfa = lambda n, t: A(192 + 16*(n % 4) + 4*t, 4)
        gfb = lambda p, t: A(128 + 16*p + 4*t, 4)
        def g2_u(n):
            return [bload(4, gfa(n, t), GUL[t], SRD_W, S_SB, mods="sc1") for t in range(4)] + [sop('s_add_u32', S_SB, S_SB, 1024)]
        def g2_r(n):
            st = n % 4; (ti, imm, _, _) = gmap[st]
            return [lds_dep(ds_read_tr(gfb(n & 1, t)[2*u:2*u+2], GTA[ti][t], imm + u*2048), need={f'gL{st}'}, mark={f'gR{st}'}) for t in range(4) for u in range(2)]
        g2pre = {13: g2_w(0, True) + g2_w(1, True) + g2_u(0), 14: g2_w(2, True) + g2_w(3, True) + g2_u(1), 15: g2_u(2) + g2_u(3)}
    if o.wot:
        proj_gemm3(a, s, SRD_W, S_SO, VLW, oread, 128, 64, mid_fill=pstore(range(2)))
    else:
        proj_gemm2(a, s, TO, DO, SRD_WO, S_SO, 1024, S_RING, oread, 4096, 'o', fb_base=(160 if o.g2_tail else 128),
                   stage_map=[(TO, 0, S_XB, 0), (TO, 8192, S_XB, 8192), (TO2, 0, S_R2, 0)], extra_vm=g2pre)
    if o.fast_tail and o.fuse_comb and not o.g2_tail and not o.wot: s.extend(pstore(range(4)))
    a(smov(S(44), float(2.0**100)))
    for qt in range(4):
        a(I(f"v_cmp_gt_f32 vcc, s44, {LA[qt][0]}", 'valu', reads=[S(44), LA[qt][0]], writes=['vcc']))
        a(nop(3))
        a(I("s_mov_b64 s[56:57], vcc" if qt == 0 else "s_and_b64 s[56:57], s[56:57], vcc", 'salu', reads=['vcc'], writes=[S(56, 2), 'scc']))
    if o.moff:
        a(smov(S(44), float(2.0**(o.moff - 108))))
        for qt in range(4):
            a(I(f"v_cmp_le_f32 vcc, s44, {V(28 + qt)}", 'valu', reads=[S(44), V(28 + qt)], writes=['vcc']))
            a(nop(3))
            a(I("s_and_b64 s[56:57], s[56:57], vcc", 'salu', reads=['vcc'], writes=[S(56, 2), 'scc']))
    a(nop(7))
    a(valu('v_mov_b32', V(1), 0x1F8))
    for qt in range(4):
        a(I(f"v_cmp_class_f32 vcc, {O(0, qt)[0]}, v1", 'valu', reads=[O(0, qt)[0], V(1)], writes=['vcc']))
        a(nop(3))
        a(I("s_and_b64 s[56:57], s[56:57], vcc", 'salu', reads=['vcc'], writes=[S(56, 2), 'scc']))
    a(raw("s_cmp_eq_u64 s[56:57], -1"))
    a(raw("s_cselect_b32 s44, 0, 1", reads=['scc'], writes=[S(44)]))
    a(valu('v_mov_b32', V(2), S(44))); a(valu('v_mov_b32', V(1), S_XB))
    a(ds_write(1, V(1), V(2)))
    def flag_decide():
        a(valu('v_mov_b32', V(1), XBASE))
        a(ds_read_b32(V(2), V(1))); a(ds_read_b32(V(3), V(1), 16384)); a(ds_read_b32(V(4), V(1), 32768)); a(ds_read_b32(V(5), V(1), 49152))
        a(valu('v_or_b32', V(2), V(2), V(3))); a(valu('v_or_b32', V(4), V(4), V(5))); a(valu('v_or_b32', V(2), V(2), V(4)))
        a(readfirstlane(S(44), V(2)))
        a(nop(3))
        a(I("s_andn2_b32 s44, s44, s6", 'salu', reads=[S(44), S_SLOW], writes=[S(44), 'scc']))
        a(raw("s_cbranch_scc1 L_k3_slow", 'branch'))
    FT = o.fast_tail and o.fuse_comb and not o.g2_tail and not o.wot
    if not FT:
        a(waitcnt(lgkm=0)); a(barrier())
        flag_decide()
        a(label("L_k3_store"))
        s.extend(STP())
        if not o.g2_tail: s.extend(pstore(range(2, 4) if o.wot else range(4)))
    else:
        s.extend(STP())
    if o.g2_tail:
        gacc = lambda mt, st_: A(64 + (mt*4+st_)*4, 4)
        pfill = pstore(range(4))
        s.extend(g2_r(0))
        for n in range(14):
            rd = g2_r(n + 1) if n + 1 < 14 else []
            vm = (g2_w(n + 4) + g2_u(n + 4)) if n + 4 < 14 else []
            mf = [mfma16(gacc(mt, st_), gfa(n, mt), gfb(n & 1, st_), gacc(mt, st_) if n else 0) for mt in range(4) for st_ in range(4)]
            gaps = [[] for _ in range(16)]
            for k, ins in enumerate(rd): gaps[k].append(ins)
            g = 8
            for (ins, st_) in dma_ops_with_setup(vm):
                if ins.kind == 'dma':
                    gaps[g - 1] += st_; gaps[g].append(ins); g = min(15, g + 2)
            late = [i for i in vm if i.kind == 'vload' or (i.kind == 'salu' and 'm0' not in i.writes)]
            for k, m in enumerate(mf):
                a(m); s.extend(sort_gap(gaps[k]))
                if n >= o.ps_from and pfill:
                    for _ in range(2 if gaps[k] else 3):
                        if pfill: a(pfill.pop(0))
            s.extend(late)
        s.extend(pfill)
        a(raw("s_lshl_b32 s44, s24, 14", writes=[S(44)])); a(valu('v_add_u32', V(26), S(44), V(7)))
        for mt in range(4):
            for st_ in range(4): a(ds_write(4, V(26), gacc(mt, st_), off=(mt*4+st_)*1024))
        a(waitcnt(lgkm=0)); a(barrier())
        a(raw("s_lshl_b32 s44, s24, 10", writes=[S(44)])); a(valu('v_add_u32', V(27), S(44), V(7)))
        for mt in range(4):
            for w in range(4): a(ds_read_b128(V(192 + (mt*4+w)*4, 4), V(27), w*16384 + mt*4096))
        a(smov(S(44), -LOG2E)); a(valu("v_lshlrev_b32", V(18), 16, V(18)))
        a(raw("s_lshr_b32 s43, s47, 1", writes=[S_T])); a(raw("s_lshl_b32 s45, s46, 2", writes=[S(45)])); a(raw("s_add_u32 s43, s43, s45", writes=[S_T]))
        a(raw("s_lshl_b32 s43, s43, 2", writes=[S_T])); a(raw("s_and_b32 s45, s47, 1", writes=[S(45)])); a(raw("s_lshl_b32 s45, s45, 1", writes=[S(45)]))
        a(raw("s_add_u32 s43, s43, s45", writes=[S_T])); a(raw("s_lshl_b32 s43, s43, 2", writes=[S_T])); a(raw("s_add_u32 s43, s43, s24", writes=[S_T]))
        a(raw("s_lshl_b32 s43, s43, 10", writes=[S_T])); a(raw(f"s_add_u32 s43, s43, {WS_GATE}", writes=[S_T]))
        for mt in range(4):
            for r in range(4):
                P_ = [V(192 + (mt*4+w)*4 + r) for w in range(4)]; y = P_[0]; tt = V(2 + (r & 1))
                a(valu('v_add_f32', y, y, P_[1])); a(valu('v_add_f32', P_[2], P_[2], P_[3])); a(valu('v_add_f32', y, y, P_[2])); a(valu("v_add_f32", y, y, V(18)))
                a(valu('v_mul_f32', tt, S(44), y)); a(valu('v_exp_f32', tt, tt)); a(valu('v_add_f32', tt, 1.0, tt)); a(valu('v_rcp_f32', tt, tt)); a(valu('v_mul_f32', y, y, tt))
            q = V(40 + 4*(mt >> 1) + 2*(mt & 1), 2)
            a(valu('v_cvt_pk_bf16_f32', q[0], V(192 + mt*16), V(192 + mt*16 + 1))); a(valu('v_cvt_pk_bf16_f32', q[1], V(192 + mt*16 + 2), V(192 + mt*16 + 3)))
            if mt & 1:
                a(bstore(4, V(40 + 4*(mt >> 1), 4), V(7), SRD_W, S_T, mods="sc1")); a(sop('s_add_u32', S_T, S_T, 4096))
    if o.fuse_comb:
        SRD_X2 = S(28, 4); SRD_O = S(48, 4)
        s.extend(make_srd(SRD_X2, S(96, 2), 2 << 20)); s.extend(make_srd(SRD_O, S(100, 2) if o.g2_tail else S(98, 2), 2 << 20))
        a(valu('v_and_b32', V(1), 15, l)); a(raw("s_lshl_b32 s44, s26, 6", writes=[S(44)])); a(raw("s_lshl_b32 s45, s24, 4", writes=[S(45)]))
        a(raw("s_add_u32 s44, s44, s45", writes=[S(44)])); a(valu('v_add_u32', V(1), S(44), V(1))); a(valu('v_lshlrev_b32', V(1), 10, V(1)))
        a(valu('v_lshrrev_b32', V(2), 4, l)); a(valu('v_lshl_add_u32', V(1), V(2), 3, V(1)))
        a(raw("s_lshl_b32 s44, s25, 7", writes=[S(44)])); a(valu('v_add_u32', V(22), S(44), V(1)))
        XR = V(32, 8)
        for j in range(2):
            for t in range(2): a(bload(2, XR[4*j+2*t:4*j+2*t+2], V(22), SRD_X2, 0, off=64*j + 32*t))
        a(waitcnt(vm=4, lgkm=0))
        a(barrier())
        if FT: flag_decide()
        if o.g2_tail: s.extend(arrive2(S_T64)); a(nop(1))
        if FT:
            a(raw("s_cmp_eq_u32 s24, 0")); a(raw("s_cbranch_scc0 L_k3_cpollok", 'branch'))
            a(sop('s_add_u32', S(44), S_QB, 32)); a(raw("s_lshl_b32 s44, s44, 8", writes=[S(44)])); a(raw(f"s_add_u32 s44, s44, {WS_CNT}", writes=[S(44)]))
            a(valu('v_mov_b32', V(6), 1)); a(valu('v_lshlrev_b32', V(5), 25, l)); a(valu('v_mov_b32', V(1), 0)); a(smov(S(45), 0))
            a(I(f"buffer_atomic_add v6, v5, {SRD_W}, s44 offen sc0 sc1", 'vload', reads=[V(6), V(5), SRD_W, S(44)], writes=[V(6)]))
            a(waitcnt(vm=0)); a(readfirstlane(S(43), V(6))); a(nop(3)); a(sop('s_add_u32', S(43), S(43), 1))
            a(label("L_k3_cpoll"))
            a(scmp('s_cmp_ge_u32', S(43), 16)); a(raw("s_cbranch_scc1 L_k3_cpollok", 'branch'))
            a(raw("s_sleep 1"))
            a(bload(1, V(6), V(1), SRD_W, S(44), mods="sc1")); a(waitcnt(vm=0))
            a(readfirstlane(S(43), V(6))); a(nop(3))
            a(sop('s_add_u32', S(45), S(45), 1)); a(scmp('s_cmp_lt_u32', S(45), 0x80000)); a(raw("s_cbranch_scc1 L_k3_cpoll", 'branch'))
            a(label("L_k3_cpollok"))
            a(barrier())
            s.extend(STP())
        else:
            s.extend(arrive2(S_QB))
            s.extend(STP())
            a(sop('s_add_u32', S(44), S_QB, 32)); a(raw("s_lshl_b32 s44, s44, 8", writes=[S(44)])); a(raw(f"s_add_u32 s44, s44, {WS_CNT}", writes=[S(44)]))
            a(valu('v_mov_b32', V(1), 0)); a(smov(S(45), 0))
            a(label("L_k3_cpoll"))
            a(bload(1, V(6), V(1), SRD_W, S(44), mods="sc1")); a(waitcnt(vm=0))
            a(readfirstlane(S(43), V(6))); a(nop(3))
            a(scmp('s_cmp_ge_u32', S(43), 16)); a(raw("s_cbranch_scc1 L_k3_cpollok", 'branch'))
            a(raw("s_sleep 2")); a(sop('s_add_u32', S(45), S(45), 1)); a(scmp('s_cmp_lt_u32', S(45), 0x80000)); a(raw("s_cbranch_scc1 L_k3_cpoll", 'branch'))
            a(label("L_k3_cpollok"))
        a(raw("s_lshl_b32 s42, s26, 2", writes=[S_SO])); a(raw("s_lshr_b32 s43, s25, 1", writes=[S_T])); a(raw("s_add_u32 s42, s42, s43", writes=[S_SO]))
        a(raw("s_lshl_b32 s42, s42, 2", writes=[S_SO])); a(raw("s_and_b32 s43, s25, 1", writes=[S_T])); a(raw("s_lshl_b32 s43, s43, 1", writes=[S_T]))
        a(raw("s_add_u32 s42, s42, s43", writes=[S_SO])); a(raw("s_lshl_b32 s42, s42, 2", writes=[S_SO])); a(raw("s_add_u32 s42, s42, s24", writes=[S_SO]))
        a(raw("s_lshl_b32 s42, s42, 10", writes=[S_SO]))
        a(raw(f"s_add_u32 s43, s42, {WS_GATE}", writes=[S_T])); a(raw(f"s_add_u32 s42, s42, {WS_PART}", writes=[S_SO]))
        PPj = lambda j, g: V(128 + (j*8 + g)*4, 4)
        GG = [V(192, 4), V(196, 4)]
        for j in range(2):
            a(bload(4, GG[j], V(7), SRD_W, S_T, mods="sc1")); a(sop('s_add_u32', S_T, S_T, 4096))
        for g in range(8):
            a(bload(4, PPj(0, g), V(7), SRD_W, S_SO, mods="sc1"))
            a(sop('s_add_u32', S(44), S_SO, 4096))
            a(bload(4, PPj(1, g), V(7), SRD_W, S(44), mods="sc1"))
            if g < 7: a(sop('s_add_u32', S_SO, S_SO, 32*64*1024))
        for j in range(2):
            R = [V(200 + 8*j + i) for i in range(8)]
            for k in range(8):
                q = k >> 1; hi = k & 1
                unp = lambda dst, src: valu('v_and_b32', dst, 0xffff0000, src) if hi else valu('v_lshlrev_b32', dst, 16, src)
                a(unp(R[k], PPj(j, 0)[q]))
                for g in range(1, 8):
                    tt = V(2 + (g & 1))
                    a(unp(tt, PPj(j, g)[q])); a(valu('v_add_f32', R[k], R[k], tt))
                a(unp(V(4), GG[j][q])); a(unp(V(5), XR[4*j+q]))
                a(valu('v_fma_f32', R[k], R[k], V(4), V(5)))
            OUTR = V(216 + 4*j, 4)
            for q in range(4): a(valu('v_cvt_pk_bf16_f32', OUTR[q], R[2*q], R[2*q+1]))
            a(bstore(2, OUTR[0:2], V(22), SRD_O, 0, off=64*j, mods=o.out_mods)); a(bstore(2, OUTR[2:4], V(22), SRD_O, 0, off=64*j + 32, mods=o.out_mods))
    if o.timing or not o.fuse_comb: a(waitcnt(vm=0))
    s.extend(STP())
    if getattr(o, 'dbgtime', False):
        a(raw('s_memrealtime s[92:93]', 'smem', writes=[S(92, 2)])); a(sload(S(90, 2), ARG_DBG)); a(waitcnt(lgkm=0))
        s.extend(make_srd(S(84, 4), S(90, 2), 256))
        a(raw("s_sub_u32 s92, s92, s94", writes=[S(92)]))
        a(raw("s_add_u32 s93, s2, 4", writes=[S(93)])); a(raw("s_lshl_b32 s93, s93, 2", writes=[S(93)]))
        a(raw("s_cmp_lt_u32 s2, 8")); a(raw("s_cselect_b32 s93, s93, 0x1000", writes=[S(93)]))
        a(raw("s_cmp_eq_u32 s24, 0")); a(raw("s_cselect_b32 s93, s93, 0x1000", writes=[S(93)]))
        a(valu('v_mov_b32', V(2), S(92))); a(valu('v_lshlrev_b32', V(3), 25, l)); a(nop(3))
        a(bstore(1, V(2), V(3), S(84, 4), S(93))); a(waitcnt(vm=0))
    if getattr(o, 'diag_period', None) is not None: STP.force(len(o.diag_marks))
    if getattr(o, 'polldiag', False): STP.n = 16
    s.extend(STP.flush_dbg(S_WAVE, o.dbgwg) if getattr(o, 'dbgwg', None) is not None else STP.flush(S_WAVE))
    epi = s
    s = []; a = s.append
    M = [V(72 + i) for i in range(4)]
    a(label("L_k3_slow"))
    at.nozero = True
    a(smov(S_SLOW, 1))
    for r in range(128): a(valu('v_mov_b32', V(128 + r), 0))
    for qt in range(4):
        for r in range(4): a(valu('v_mov_b32', LA[qt][r], 0))
        a(valu('v_mov_b32', M[qt], 0xff800000))
    a(smov(S_TILE, 0)); a(smov(S(45), 32))
    a(label("L_k3_slowloop"))
    a(barrier())
    s.extend(at.kv_dma(0))
    a(waitcnt(vm=0)); a(barrier())
    for kh in range(2):
        s.extend(at.k_reads(0, kh)); s.extend(at.v_reads(0, kh))
        for c in range(2):
            for q2 in range(2):
                for t in range(2):
                    for i in range(4): a(mfma16(Sx(c, t, q2), Kf(t*4+i), Q(i, 2*c+q2), 0 if i == 0 else Sx(c, t, q2)))
            for q2 in range(2):
                qt = 2*c + q2; s0, s1 = Sx(c, 0, q2), Sx(c, 1, q2); m = V(4); t_ = V(5)
                a(valu('v_max3_f32', m, s0[0], s0[1], s0[2])); a(valu('v_max3_f32', m, m, s0[3], s1[0]))
                a(valu('v_max3_f32', m, m, s1[1], s1[2])); a(valu('v_max3_f32', m, m, s1[3], M[qt]))
                a(valu('v_mov_b32', t_, m)); a(permlane16_swap(m, t_)); a(valu('v_max_f32', m, m, t_))
                a(valu('v_mov_b32', t_, m)); a(permlane32_swap(m, t_)); a(valu('v_max_f32', m, m, t_))
                a(valu('v_sub_f32', t_, M[qt], m)); a(valu('v_exp_f32', t_, t_)); a(valu('v_mov_b32', M[qt], m))
                for dt in range(8):
                    for r in range(4): a(valu('v_mul_f32', O(dt, qt)[r], O(dt, qt)[r], t_))
                for r in range(4): a(valu('v_mul_f32', LA[qt][r], LA[qt][r], t_))
                for t in range(2):
                    sx = Sx(c, t, q2)
                    for r in range(4):
                        a(valu('v_sub_f32', sx[r], sx[r], m)); a(valu('v_exp_f32', sx[r], sx[r]))
                    a(valu('v_cvt_pk_bf16_f32', Pb[c][4*q2 + 2*t], sx[0], sx[1])); a(valu('v_cvt_pk_bf16_f32', Pb[c][4*q2 + 2*t + 1], sx[2], sx[3]))
            for m_ in at.pv_slot(0, kh, c):
                m_.rt = {}; a(m_)
    a(waitcnt(lgkm=0))
    a(sop('s_sub_u32', S(45), S(45), 1)); a(scmp('s_cmp_lg_u32', S(45), 0)); a(raw("s_cbranch_scc1 L_k3_slowloop", 'branch'))
    a(nop(15)); a(barrier())
    s.extend(wo_first())
    a(raw("s_branch L_k3_norm", 'branch'))
    for i_ in s:
        if hasattr(i_, 'rt'): i_.rt = {}
    slow, _, _ = auto_waits(s)
    slow = fix_hazards(slow, "slow")
    full = []
    for (name, seq) in seqs:
        if name == 32: full += pre_epi
        full += seq
    full += epi
    full, _, _ = auto_waits(full)
    errs = validate_tags(full)
    for e in errs[:10]: print("DATAFLOW", e, file=sys.stderr)
    parts = {}; cur = 'pro'; parts[cur] = []
    for ins in full:
        if ins.kind == 'label' and ins.text.startswith('@@'):
            cur = ins.text[2:-1]; parts[cur] = []
        else: parts[cur].append(ins)
    P = lambda j: parts[f'P{j}']
    txt = lambda j: [i.text for i in P(j)]
    def loop(first_j, n_iter, lbl, cnt):
        body = []
        for k in range(3):
            base = list(P(first_j + k))
            for it in range(1, n_iter):
                other = P(first_j + 3*it + k)
                assert len(other) == len(base), f"loop {lbl}: period {first_j+k} vs {first_j+3*it+k} length {len(base)} {len(other)}"
                for idx, (x, y) in enumerate(zip(base, other)):
                    if x.text != y.text:
                        assert x.kind == 'wait' and y.kind == 'wait' and (x.vm is None) == (y.vm is None) and (x.lgkm is None) == (y.lgkm is None), (lbl, x.text, y.text)
                        base[idx] = waitcnt(vm=None if x.vm is None else min(x.vm, y.vm), lgkm=None if x.lgkm is None else min(x.lgkm, y.lgkm))
            body += [comment(f"period {first_j+k} (+3n)")] + base
        body += [sop('s_sub_u32', cnt, cnt, 1), scmp('s_cmp_lg_u32', cnt, 0), raw(f"s_cbranch_scc1 {lbl}", 'branch')]
        errs = check_hazards(body, loop=True, name=lbl)
        for e in errs[:20]: print("HAZARD", e, file=sys.stderr)
        return [smov(cnt, n_iter), label(lbl)] + body
    out = fix_hazards(parts['pro'] + [comment("period 0")] + P(0), "pro")
    S_CNT = S(4)
    if getattr(o, 'noloop', False):
        allp = []
        for j in range(1, 33): allp += [comment(f"period {j}")] + P(j)
        out += fix_hazards(allp + parts['EPI'], "all")
        out += [raw("s_branch L_k3_end", 'branch')] + slow
        out.append(label("L_k3_end"))
        return emit(out)
    if o.side and o.g2_tail:
        out += loop(1, 5, "L_k3_loopA", S_CNT)
        mid = []
        for j in range(16, 19): mid += [comment(f"period {j}")] + P(j)
        out += fix_hazards(mid, "mid")
        out += loop(19, 3, "L_k3_loopB", S_CNT)
        tail = []
        for j in range(28, 33): tail += [comment(f"period {j}")] + P(j)
    elif o.side:
        out += loop(1, 5, "L_k3_loopA", S_CNT)
        mid = []
        for j in range(16, 22): mid += [comment(f"period {j}")] + P(j)
        out += fix_hazards(P(15)[-30:] + mid, "mid")[len(P(15)[-30:]):] if False else fix_hazards(mid, "mid")
        out += loop(22, 2, "L_k3_loopB", S_CNT)
        tail = []
        for j in range(28, 33): tail += [comment(f"period {j}")] + P(j)
    else:
        out += loop(1, 9, "L_k3_loopA", S_CNT)
        tail = []
        for j in range(28, 33): tail += [comment(f"period {j}")] + P(j)
    tm = []
    out += fix_hazards(tail + parts['EPI'], "tail")
    out += [raw("s_branch L_k3_end", 'branch')] + slow
    out.append(label("L_k3_end"))
    if getattr(o, 'verbose', False):
        for j in (2, 16, 17, 18, 21, 23, 29, 30):
            tot = 0; gap = None
            for i in P(j):
                if i.kind == 'mfma':
                    if gap is not None: tot += max(16, gap)
                    gap = 8
                elif gap is not None: gap += cost(i)
            print(f"; period {j}: est {tot + max(16, gap or 0)} cycles, {len(P(j))} instrs", file=sys.stderr)
    return emit(out)
if __name__ == "__main__":
    o = Opt(); o.verbose = True
    for kv in sys.argv[1:]:
        k, v = kv.split("="); setattr(o, k, eval(v))
    t = build(o); print(len(t.splitlines()))
```

```python
from k_common import *
from k3_attn import (NST, KBASE, VBASE, XBASE, SRD_K, SRD_V, SRD_W, SRD_WQ, SRD_WO, S_TILE, S_WOFF, S_WAVE, S_G, S_QB, QSCALE,
                     O, Q, Kf, Vf, Sb, Sx, NM, LA, Pb, ONES, KA, VA, DK, DV, addr_tr256, dma_off_256, proj_gemm)
from k2_gemm1 import tr_addr_128, dma_off_128, gelu, LOG2E
WS_GATE = 6 << 20
HMOD = 'sc1'

class Opt:
    barrier = True
    minfill = 8; maxfill = 8; early = 1.5
    sm_rel = 4; p_lead = 2; k_span = 1.0; k_lead = 6; bar_lead = 5
    timing = False; prefetch = True; side = True; fuse_ln = True; fuse_comb = True
    stamp_after = (0, 16, 17, 21, 28, 30, 32)
    def __init__(self, **kw): self.__dict__.update(kw)

SRD_W1 = S(48, 4); SRD_W2 = S(52, 4); SRD_DBG = S(56, 4); SRD_US = S(60, 4)
S_T64 = S(46); S_DT = S(47); S_SR = S(40); S_SKIP = S(37); S_N = S(38); S_SA = S(39); S_SB = S(36); S_XB = S(27); S_KVSKIP = S(23); S_TMP = S(43)
TA = [V(14 + i) for i in range(4)]; DA = [V(18 + i) for i in range(4)]; DB = [V(22 + i) for i in range(4)]
def sacc(i, j): return A(128 + (i*4+j)*4, 4)
def sfa(h, t): return A(192 + 16*h + 4*t, 4)
def sfb(h, t): return A(224 + 16*h + 4*t, 4) if h else A(208 + 4*t, 4)
def g2a(h, t): return A(192 + 16*h + 4*t, 4)
def g2b(h, t): return A(224 + 16*h + 4*t, 4)

class Attn:
    def __init__(self, opt): self.o = opt
    def qk_slot(self, j, kh, c):
        out = []
        for q2 in range(2):
            for t in range(2):
                for i in range(4):
                    qt = 2*c + q2; sx = Sx(c, t, q2)
                    m = mfma16(sx, Kf(t*4+i), Q(i, qt), NM[qt] if i == 0 else sx)
                    tag(m, wt=('S', j, kh, c), rt=[(Kf(t*4+i), ('K', j, kh))] + ([(sx, ('S', j, kh, c))] if i else []))
                    out.append(m)
        return out
    def pv_slot(self, j, kh, c):
        out = []
        z = (j == 0 and kh == 0 and not getattr(self, 'nozero', False))
        for q2 in range(2):
            p = Pb[c][4*q2:4*q2+4]; qt = 2*c + q2
            for dt in range(8):
                m = mfma16(O(dt, qt), Vf(dt), p, 0 if z else O(dt, qt))
                tag(m, rt=[(Vf(dt), ('V', j, kh)), (p, ('P', j, kh, c))]); out.append(m)
            m = mfma16(LA[qt], ONES, p, 0 if z else LA[qt]); tag(m, rt=[(p, ('P', j, kh, c))]); out.append(m)
        return out
    def sm_list(self, j, kh, c):
        regs = []
        for q2 in range(2):
            for t in range(2):
                for r in range(4): regs.append((Sx(c, t, q2)[r], Pb[c][4*q2 + 2*t + (r >> 1)]))
        ops = []
        for n, (s, p) in enumerate(regs):
            ops.append((n, tag(valu('v_exp_f32', s, s), wt=('E', j, kh, c), rt=[(s, ('S', j, kh, c))])))
            if n & 1:
                sp = regs[n-1][0]
                ops.append((n + 1.04, tag(valu('v_cvt_pk_bf16_f32', p, sp, s), wt=('P', j, kh, c), rt=[(s, ('E', j, kh, c)), (sp, ('E', j, kh, c))])))
        return [i for (t, i) in sorted(ops, key=lambda x: x[0])]
    def k_reads(self, j, kh):
        st = j % NST
        return [tag(ds_read_b128(Kf(n), KA[n & 3], KBASE + st*16384 + kh*8192 + (n >> 2)*4096), wt=('K', j, kh)) for n in range(8)]
    def v_reads(self, j, kh):
        st = j % NST
        return [tag(ds_read_tr(Vf(dt)[2*u:2*u+2], VA[dt], st*16384 + kh*8192 + u*4096), wt=('V', j, kh)) for dt in range(8) for u in range(2)]
    def kv_dma(self, st, skip=False):
        ops = []
        for n in range(8):
            if n in (0, 4):
                base = (KBASE if n == 0 else VBASE) + st*16384
                ops.append(sop('s_add_u32', 'm0', S_WOFF, base))
                if skip: ops.append(sop('s_max_u32', 'm0', 'm0', S_KVSKIP))
                ops.append(nop(0))
            if n < 4: ops.append(dma(DK[n], SRD_K, S_TILE, off=n*1024))
            else: ops.append(dma(DV[n & 1], SRD_V, S_TILE, off=(n-4)*1024))
        ops.append(sop('s_add_u32', S_TILE, S_TILE, 16384))
        return ops

    def period(self, j, first=False, last_drain=False, kv=True, kvskip=False, side_groups=(), streams=(), pre=(), post=(), vm_end=None, side_dma_list=None):
        o = self.o
        hp, hc = not first, not last_drain
        base = [self.pv_slot(j-1, 1, 0) if hp else None, self.qk_slot(j, 0, 0) if hc else None,
                self.pv_slot(j-1, 1, 1) if hp else None, self.qk_slot(j, 0, 1) if hc else None,
                self.pv_slot(j, 0, 0) if hc else None, self.qk_slot(j, 1, 0) if hc else None,
                self.pv_slot(j, 0, 1) if hc else None, self.qk_slot(j, 1, 1) if hc else None]
        lens = [18, 16]*4
        mf = []; starts = []; ends = []; side_pos = []
        for s in range(8):
            starts.append(len(mf))
            mf += base[s] if base[s] is not None else [None]*lens[s]
            ends.append(len(mf))
            for (aft, g) in side_groups:
                if aft == s:
                    side_pos.append(len(mf)); mf += g
        T = len(mf)
        self.T = T
        ops = []
        CUT0 = o.cut0; CUT1 = o.cut1
        def sm_stream(jj, kh, c, t_lo, t_hi, tpv, i0=0, i1=None, release=None):
            raw_ops = self.sm_list(jj, kh, c); n = len(raw_ops); i1 = n if i1 is None else i1
            pv = self.pv_slot(jj, kh, c); res = []
            for idx in range(i0, i1):
                ins = raw_ops[idx]
                t = t_lo + (t_hi - t_lo) * (idx - i0) / max(1, (i1 - i0)); dl = 1e9
                if ins.op == 'v_cvt_pk_bf16_f32' and tpv is not None:
                    preg = list(ins.writes)[0]
                    dl = tpv + min(q for q, m in enumerate(pv) if preg in m.reads) - o.p_lead
                res.append([t, dl, ins])
            for idx in range(len(res) - 2, -1, -1): res[idx][1] = min(res[idx][1], res[idx+1][1])
            return [Op(ins, t, release=(t_lo if release is None else release), deadline=min(dl, T - 1), stream='sm') for (t, dl, ins) in res]
        rel = o.sm_rel
        if hp:
            ops += sm_stream(j-1, 1, 0, 0, rel, starts[0], i0=CUT0, release=0)
            ops += sm_stream(j-1, 1, 1, rel, ends[1] + rel, starts[2], i0=CUT1)
        if hc:
            ops += sm_stream(j, 0, 0, ends[1] + rel, ends[3] + rel, starts[4])
            ops += sm_stream(j, 0, 1, ends[3] + rel, ends[5] + rel, starts[6])
            ops += sm_stream(j, 1, 0, ends[5] + rel, T, None, i1=CUT0)
            if CUT1: ops += sm_stream(j, 1, 1, T - 1, T, None, i1=CUT1)
        if hc:
            for (kh, ks_slot, vs_slot) in ((0, 0, 2), (1, 4, 6)):
                qk = self.qk_slot(j, kh, 0)
                for n, ins in enumerate(self.k_reads(j, kh)):
                    fu = min(q for q, m in enumerate(qk) if ins.writes & m.reads)
                    t = starts[ks_slot] + n * 18 * o.k_span / 8
                    rl = (ends[ks_slot-1] if ks_slot else -1)
                    ops.append(Op(ins, max(t, rl), release=rl - 1 if ks_slot else -1, deadline=starts[ks_slot+1] + fu - o.k_lead, stream='k'))
                pv = self.pv_slot(j, kh, 0); pvo = self.pv_slot(j, kh, 1); info = []
                for ins in self.v_reads(j, kh):
                    lu = max(q for q, m in enumerate(pvo) if ins.writes & m.reads)
                    fu = min(q for q, m in enumerate(pv) if ins.writes & m.reads)
                    nxt = starts[vs_slot+2] if vs_slot + 2 < 8 else T + 18
                    dl = nxt + fu - o.k_lead
                    if kh == 1: dl = min(dl, T - 1 - o.bar_lead)
                    info.append((starts[vs_slot] + lu + 1, dl, ins))
                info.sort(key=lambda x: x[0])
                w0 = info[0][0]; w1 = min(x[1] for x in info)
                for n, (r, dl, ins) in enumerate(info):
                    ops.append(Op(ins, max(r, w0 + (w1 - w0) * n / len(info)), release=r, deadline=dl, stream='v'))
        dstream = []
        if kv and hc:
            lst = dma_ops_with_setup(self.kv_dma((j + 2) % NST, skip=kvskip))
            pos = o.kv_pos if not side_dma_list else o.kv_pos2; n = 0
            for (ins, st) in lst:
                if ins.kind == 'dma':
                    t = pos[n]; n += 1
                else: t = pos[min(n, 7)] if n < 8 else pos[7]
                dstream.append((t, 0.0, ins, st))
        if side_dma_list:
            (lst, f0, f1, fr) = side_dma_list
            lst = dma_ops_with_setup(lst)
            nd = sum(1 for (i, _) in lst if i.kind == 'dma'); n = 0
            for (ins, st) in lst:
                dstream.append((f0 + (f1 - f0) * n / max(1, nd), fr, ins, st))
                if ins.kind == 'dma': n += 1
        for (t, fr, ins, st) in dstream:
            op = Op(ins, t * T, release=fr * T, stream='dma'); op.setup = st
            ops.append(op)
        for (name, lst) in streams:
            for (ft, fr, ins) in lst:
                ops.append(Op(ins, ft * T, release=fr * T, stream=name))
        seq, fills = list_schedule2(mf, ops, o.minfill, o.maxfill, ahead=o.early)
        self.fills = fills
        seq = list(pre) + expand(seq) + list(post)
        if getattr(o, 'diag_period', None) == j:
            marks = sorted(set(starts + side_pos + [e for e in ends] + [T - 1]))
            marks = [m for m in marks if m < T]
            new = []; k = 0
            for ins in seq:
                if ins.kind == 'mfma':
                    kk = mf.index(ins)
                    if kk in marks:
                        r = S(o.diag_base + 2*len(o.diag_marks), 2); o.diag_marks.append(kk)
                        new.append(raw(f"s_memtime {r}", 'salu', writes=[r]))
                new.append(ins)
            seq = new
        if hc:
            nvm = sum(1 for i in seq if i.kind in ('dma', 'vload', 'vstore', 'vatomic')) if vm_end is None else vm_end
            seq.append(waitcnt(vm=nvm, lgkm=0))
            if o.barrier: seq.append(barrier())
        return seq
Opt.g1_rd = (0.03, 0.3); Opt.g1_dm = (0.62, 0.95)
Opt.pf_w1_at = 8; Opt.pf_w1 = False; Opt.pf_w2 = True
Opt.prescale = False; Opt.pf_kv = False; Opt.defer_addr = True; Opt.fast_tail = True; Opt.out_mods = ''; Opt.wq_early = False; Opt.arrive_at = 6; Opt.hpoll_at = 12; Opt.ln2_rate = 2; Opt.late2 = False; Opt.ps_from = 10; Opt.g2_tail = False; Opt.wot = False; Opt.wo_early = True; Opt.fm64 = False; Opt.g1_pos = 1; Opt.moff = 100
Opt.cut0 = 21; Opt.cut1 = 0
Opt.kv_pos = [0.147, 0.184, 0.22, 0.25, 0.647, 0.684, 0.72, 0.75]
Opt.kv_pos2 = [0.08, 0.12, 0.16, 0.20, 0.26, 0.30, 0.34, 0.38]

def side_dma(srdA, soA, strideA, srdB, soB, strideB, offsA, offsB, stage_tag, skip, modsB=""):
    o = []
    src = S_SR
    if skip:
        o.append(sop('s_max_u32', S(5), S_SR, S_SKIP)); src = S(5)
    o.append(smov('m0', src)); o.append(nop(0))
    for i in range(4): o.append(lds_dep(dma(offsA[i], srdA, soA, off=i*1024), need={f'sR{stage_tag}'}, mark={f'sL{stage_tag}'}))
    o.append(sop('s_add_u32', soA, soA, strideA))
    o.append(sop('s_add_u32', 'm0', src, 4096)); o.append(nop(0))
    for i in range(4): o.append(lds_dep(dma(offsB[i], srdB, soB, off=i*1024, mods=modsB), need={f'sR{stage_tag}'}, mark={f'sL{stage_tag}'}))
    o.append(sop('s_add_u32', soB, soB, strideB))
    return o
def spread(lst, f0, f1, rel=None):
    n = sum(1 for i in lst if cost(i) > 0) or 1
    out = []; k = 0
    for ins in lst:
        t = f0 + (f1 - f0) * k / n
        out.append((t, f0 if rel is None else rel, ins))
        if cost(ins) > 0: k += 1
    return out
def toggle_side():
    return [valu('v_xor_b32', TA[t], 8192, TA[t]) for t in range(4)] + [sop('s_xor_b32', S_SR, S_SR, 8192)]

def g1_parts(n, in_loop):
    st = n & 1
    rd = []
    for t in range(4):
        for u in range(2): rd.append(lds_dep(ds_read_tr(sfa(0, t)[2*u:2*u+2], TA[t], u*2048), need={f'sL{st}'}, mark={f'sR{st}'}))
    for t in range(4):
        for u in range(2): rd.append(lds_dep(ds_read_tr(sfb(0, t)[2*u:2*u+2], TA[t], 4096 + u*2048), need={f'sL{st}'}, mark={f'sR{st}'}))
    mf = [mfma16(sacc(ft, dt), sfa(0, ft), sfb(0, dt), sacc(ft, dt) if n else 0) for ft in range(4) for dt in range(4)]
    dm = []
    if in_loop:
        dm = [scmp('s_cmp_gt_u32', S_N, 13), I(f"s_cselect_b32 {S_SKIP}, 0x30000, 0", 'salu', reads=['scc'], writes=[S_SKIP]), sop('s_add_u32', S_N, S_N, 1)]
        dm += side_dma(SRD_W1, S_SA, 32*3584, SRD_W, S_SB, 32*1024, DA, DB, st, True, modsB=HMOD)
    elif n + 2 <= 15:
        dm = [sop('s_add_u32', S_N, S_N, 1)] + side_dma(SRD_W1, S_SA, 32*3584, SRD_W, S_SB, 32*1024, DA, DB, st, False, modsB=HMOD)
    return rd, mf, dm
def g2_parts(i):
    st = i & 1
    rd = []
    for h in range(2):
        for t in range(4):
            for u in range(2): rd.append(lds_dep(ds_read_tr(g2b(h, t)[2*u:2*u+2], TA[t], h*4096 + u*2048), need={f'sL{st}'}, mark={f'sR{st}'}))
    mfs = [[mfma16(sacc(mt, s_), g2a(h, mt), g2b(h, s_), sacc(mt, s_) if (i or h) else 0) for mt in range(4) for s_ in range(4)] for h in range(2)]
    return rd, mfs
def g2_dma(st, skip):
    return side_dma(SRD_W2, S_SA, 32*4096, SRD_W2, S_SA, 32*4096, DA, DA, st, skip)
def g2_uloads():
    o = []
    for h in range(2):
        for t in range(4): o.append(bload(4, g2a(h, t), DB[t], SRD_W, S_SB, mods="sc1"))
        o.append(sop('s_add_u32', S_SB, S_SB, 1024))
    return o

def proj_gemm2(a, s, TA_, DW, srd, SOFF, stride, S_RING, bread, uoff, name, last_pre=None, last_fill=None, dma_gap0=3, fb_base=0, hooks=None, fill=None, stage_map=None, extra_vm=None, fill_rate=2):
    NS = 3; NK = 16
    def fa(p, mt): return A(64 + 32*p + 4*mt, 4)
    def fb(p, qt): return A(fb_base + 16*p + 4*qt, 4)
    if stage_map is None: stage_map = [(TA_, st*8192, S_RING, st*8192) for st in range(NS)]
    def dma_step(n):
        o = []; st = n % NS
        (_, _, sb, madd) = stage_map[st]
        for h in range(2):
            o.append(sop('s_add_u32', 'm0', sb, madd + h*4096))
            for i in range(4):
                o.append(lds_dep(dma(DW[i], srd, SOFF, off=i*1024), need={f'{name}R{st}'}, mark={f'{name}L{st}'}))
            o.append(sop('s_add_u32', SOFF, SOFF, 16*stride))
        return o
    def reads(n):
        o = []; st = n % NS; p = n & 1
        (ta, imm, _, _) = stage_map[st]
        for qt in range(4): o.append(bread(n, qt, fb(p, qt)))
        for mt in range(8):
            for u in range(2):
                o.append(lds_dep(ds_read_tr(fa(p, mt)[2*u:2*u+2], ta[mt], imm + u*uoff), need={f'{name}L{st}'}, mark={f'{name}R{st}'}))
        return o
    s.extend(reads(0))
    for n in range(NK):
        rd = reads(n + 1) if n + 1 < NK else []
        dm = dma_step(n + 3) if n + 3 < NK else []
        if n == NK - 1:
            if last_pre: s.extend(last_pre)
            dm = list(last_fill or [])
        if extra_vm and n in extra_vm: dm = dm + extra_vm[n]
        if hooks and n in hooks: s.extend(hooks[n])
        mf = [mfma16(O(mt, qt), fa(n & 1, mt), fb(n & 1, qt), O(mt, qt) if n else 0) for mt in range(8) for qt in range(4)]
        gaps = [[] for _ in range(32)]
        g = dma_gap0
        for (ins, st_) in dma_ops_with_setup(dm):
            if ins.kind in ('dma', 'vload'):
                gaps[g - 1] += st_; gaps[g].append(ins); g = min(31, g + 2) if g + 2 <= 31 else 31
            else: gaps[min(31, g - 1)].append(ins) if g > dma_gap0 else gaps[0].append(ins)
        ev = [k for k in range(32) if not any(i.kind in ('dma', 'vload') for i in gaps[k])]
        for k, ins in enumerate(rd): gaps[ev[min(len(ev) - 1, k // 2)]].append(ins)
        for k, m in enumerate(mf):
            a(m); s.extend(sort_gap(gaps[k]))
            if fill:
                take = 0
                lim = fill_rate if not any(i.kind in ('dma', 'vload') for i in gaps[k]) else 0
                while fill and take < lim:
                    ins = fill.pop(0); a(ins)
                    if cost(ins) > 0: take += 1
    assert not fill

def proj_gemm3(a, s, srd, SOFF, VL, bread, abase, bbase, mid_fill=None, mods="sc1"):
    NK = 16; NT = 2*NK
    def fa(t, m): return A(abase + 16*(t % P3_SETS) + 4*m, 4)
    def fb(p, qt): return A(bbase + 16*p + 4*qt, 4)
    rdB = lambda t: [bread(t % NK, qt, fb(t & 1, qt)) for qt in range(4)]
    s.extend(rdB(0))
    fill = list(mid_fill or [])
    for t in range(NT):
        h, n = t // NK, t % NK
        rd = rdB(t + 1) if t + 1 < NT else []
        ld = proj3_loads(srd, SOFF, VL, t + P3_DEPTH, abase, mods) if t + P3_DEPTH < NT else []
        mf = [mfma16(O(4*h + m, qt), fa(t, m), fb(t & 1, qt), O(4*h + m, qt) if n else 0) for m in range(4) for qt in range(4)]
        gaps = [[] for _ in range(16)]
        g = 3
        for ins in ld:
            if ins.kind == 'vload':
                gaps[min(15, g)].append(ins); g += 3
            else: gaps[min(15, max(0, g - 1))].append(ins)
        for k, ins in enumerate(rd): gaps[1 + 3*k].append(ins)
        for k, m in enumerate(mf):
            a(m); s.extend(sort_gap(gaps[k]))
            if t >= NT - P3_DEPTH and fill:
                for _ in range(1 if gaps[k] else 2):
                    if fill: a(fill.pop(0))
                while fill and cost(fill[0]) == 0: a(fill.pop(0))
    s.extend(fill)
P3_SETS = 8; P3_DEPTH = 7
def proj3_loads(srd, SOFF, VL, t, abase, mods="sc1"):
    o = []
    for m in range(4): o.append(bload(4, A(abase + 16*(t % P3_SETS) + 4*m, 4), VL, srd, SOFF, off=m*1024, mods=mods))
    o.append(sop('s_add_u32', SOFF, SOFF, 32768) if (t % 16) != 15 else sop('s_sub_u32', SOFF, SOFF, 15*32768 - 4096))
    return o

def build(opt=None):
    o = opt or Opt()
    at = Attn(o)
    STP = Stamps(o.timing, 3); STP.cyc = getattr(o, 'cyc', False)
    s = []; a = s.append
    l = V(0)
    s.extend(STP())
    if getattr(o, 'dbgtime', False): a(raw('s_memrealtime s[94:95]', 'smem', writes=[S(94, 2)]))
    a(sload(S(4, 2), ARG_K)); a(sload(S(6, 2), ARG_V)); a(sload(S(22, 2), ARG_WS))
    a(sload(S(36, 2), ARG_WQ)); a(sload(S(56, 2), ARG_WO))
    a(sload(S(62, 2), ARG_W1)); a(sload(S(60, 2), ARG_W2)); a(sload(S(58, 2), ARG_DBG))
    if o.fuse_ln: a(sload(S(100, 2), ARG_X))
    a(raw("s_cmp_ge_u32 s2, 256")); a(raw("s_cbranch_scc1 L_k3_end", 'branch'))
    a(valu('v_lshrrev_b32', V(1), 6, V(0)))
    a(readfirstlane(S_WAVE, V(1)))
    a(valu('v_and_b32', l, 63, l))
    a(waitcnt(lgkm=0))
    a(raw("s_and_b32 s25, s2, 7", writes=[S_G])); a(raw("s_lshr_b32 s26, s2, 3", writes=[S_QB]))
    S_RING = S(41); S_SO = S(42); S_T = S(43)
    SRD_X = S(96, 4)
    XP = V(48, 64)
    if o.fuse_ln:
        s.extend(make_srd(SRD_X, S(100, 2), 2 << 20))
        a(valu('v_and_b32', V(1), 15, l)); a(valu('v_lshlrev_b32', V(1), 10, V(1)))
        a(valu('v_lshrrev_b32', V(2), 4, l)); a(valu('v_lshl_add_u32', V(1), V(2), 4, V(1)))
        a(raw("s_lshl_b32 s42, s26, 6", writes=[S_SO])); a(raw("s_lshl_b32 s43, s24, 4", writes=[S_T]))
        a(raw("s_add_u32 s42, s42, s43", writes=[S_SO])); a(raw("s_lshl_b32 s42, s42, 10", writes=[S_SO]))
        if getattr(o, 'fine2', False): s.extend(STP())
        for i in range(16): a(bload(4, XP[4*i:4*i+4], V(1), SRD_X, S_SO, off=64*i))
        if getattr(o, 'fine2', False): s.extend(STP())
    s.extend(make_srd(SRD_WQ, S(36, 2), 512*4096*2))
    a(valu('v_lshlrev_b32', V(7), 4, l))
    if o.prefetch:
        a(raw("s_lshl_b32 s42, s26, 4", writes=[S_SO])); a(raw("s_lshl_b32 s43, s24, 2", writes=[S_T]))
        a(raw("s_add_u32 s42, s42, s43", writes=[S_SO])); a(raw("s_lshl_b32 s42, s42, 13", writes=[S_SO]))
        a(raw("s_lshl_b32 s43, s25, 10", writes=[S_T])); a(raw("s_add_u32 s42, s42, s43", writes=[S_SO]))
        for n in range(4):
            a(bload(4, A(192 + 4*n, 4), V(7), SRD_WQ, S_SO)); a(sop('s_add_u32', S_SO, S_SO, 8192))
    a(raw("s_lshl_b32 s27, s25, 19", writes=[S(27)]))
    a(raw("s_sub_u32 s40, 0x400000, s27", writes=[S(40)]))
    s.extend(make_srd(SRD_K, S(4, 2), S(40), add=S(27))); s.extend(make_srd(SRD_V, S(6, 2), S(40), add=S(27)))
    s.extend(make_srd(SRD_W, S(22, 2), WS_END))
    s.extend(make_srd(SRD_WO, S(56, 2), 4096*512*2))
    a(raw("s_lshr_b32 s46, s26, 3", writes=[S_T64])); a(raw("s_lshl_b32 s46, s46, 3", writes=[S_T64])); a(raw("s_add_u32 s46, s46, s25", writes=[S_T64]))
    a(raw("s_and_b32 s47, s26, 7", writes=[S_DT]))
    a(raw("s_cmp_lt_u32 s46, 28"))
    a(raw(f"s_cselect_b32 s44, {2048*1792*2}, 0", writes=[S(44)]))
    a(raw(f"s_cselect_b32 s45, {WS_END}, 0", writes=[S(45)]))
    s.extend(make_srd(SRD_W1, S(62, 2), S(44)))
    s.extend(make_srd(SRD_W2, S(60, 2), 1792*2048*2))
    s.extend(make_srd(SRD_DBG, S(58, 2), 256))
    s.extend(make_srd(SRD_US, S(22, 2), S(45)))
    if o.pf_kv:
        a(valu('v_and_b32', V(2), 15, l)); a(raw("s_lshl_b32 s44, s26, 4", writes=[S(44)])); a(valu('v_add_u32', V(2), S(44), V(2))); a(valu('v_lshlrev_b32', V(2), 7, V(2)))
        a(I("v_cmp_gt_u32 vcc, 16, v0", 'valu', reads=[V(0)], writes=['vcc'])); a(nop(1))
        a(I(f"v_cndmask_b32 v2, -1, v2, vcc", 'valu', reads=[V(2), 'vcc'], writes=[V(2)]))
        a(bload(1, A(209), V(2), SRD_K, 0)); a(bload(1, A(210), V(2), SRD_V, 0))
    a(raw("s_lshl_b32 s21, s24, 12", writes=[S_WOFF]))
    a(raw("s_mul_i32 s41, s24, 24576", writes=[S_RING]))
    for r in range(4): a(valu('v_mov_b32', ONES[r], 0x3F803F80))
    if not o.fuse_ln:
        a(raw("s_lshl_b32 s42, s26, 6", writes=[S_SO])); a(raw("s_lshl_b32 s43, s24, 4", writes=[S_T]))
        a(raw("s_add_u32 s42, s42, s43", writes=[S_SO])); a(raw("s_lshl_b32 s42, s42, 10", writes=[S_SO]))
        a(raw("s_lshl_b32 s43, s24, 14", writes=[S_T])); a(raw(f"s_add_u32 s43, s43, {XBASE}", writes=[S_T]))
        for n in range(16):
            if n % 4 == 0: a(smov('m0', S_T))
            a(valu('v_xor_b32', V(14 + (n & 3)), n << 4, V(7)))
            a(lds_dep(dma(V(14 + (n & 3)), SRD_W, S_SO, off=(n & 3)*1024), mark={'XN'}))
            if n % 4 == 3:
                a(sop('s_add_u32', S_SO, S_SO, 4096)); a(sop('s_add_u32', S_T, S_T, 4096))
    PTA = [V(32 + i) for i in range(8)]; XA = [V(40 + i) for i in range(4)]; DW = [V(44 + i) for i in range(4)]
    dma_off_256(a, l, DW, 8192, 'q', S_T)
    a(raw("s_lshl_b32 s42, s25, 2", writes=[S_SO])); a(raw("s_add_u32 s42, s42, s24", writes=[S_SO]))
    a(raw("s_lshl_b32 s42, s42, 8", writes=[S_SO]))
    def wq_stage(n):
        o_ = []
        for h in range(2):
            o_ += [sop('s_add_u32', 'm0', S_RING, n*8192 + h*4096), nop(0)]
            for i in range(4): o_.append(lds_dep(dma(DW[i], SRD_WQ, S_SO, off=i*1024), need={f'qR{n}'}, mark={f'qL{n}'}))
            o_.append(sop('s_add_u32', S_SO, S_SO, 16*8192))
        return o_
    a(valu('v_mov_b32', V(6), S_RING))
    addr_tr256(a, l, PTA, V(6), 8)
    a(valu('v_and_b32', V(1), 15, l)); a(valu('v_lshrrev_b32', V(2), 4, l))
    a(valu('v_lshlrev_b32', V(3), 10, V(1))); a(valu('v_add_u32', V(3), XBASE, V(3)))
    for k in range(4):
        a(valu('v_add_u32', V(4), 4*k, V(2))); a(valu('v_xor_b32', V(4), V(4), V(1)))
        a(valu('v_lshl_add_u32', XA[k], V(4), 4, V(3)))
    TV = (lambda k: V(96 + k)) if o.defer_addr else (lambda k: V(k) if k < 8 else V(26))
    s_main0, a_main0 = s, a
    deferred = []
    if o.defer_addr:
        s = deferred; a = deferred.append
    a(valu('v_lshrrev_b32', TV(2), 4, l)); a(valu('v_and_b32', TV(3), 15, l))
    for i in range(4):
        a(valu('v_add_u32', TV(4), 4*i, TV(2))); a(valu('v_xor_b32', TV(4), TV(4), TV(3)))
        a(valu('v_lshlrev_b32', TV(4), 4, TV(4))); a(valu('v_lshl_add_u32', KA[i], TV(3), 8, TV(4)))
    a(valu('v_lshrrev_b32', TV(4), 2, TV(3))); a(valu('v_and_b32', TV(5), 3, l))
    a(valu('v_lshl_add_u32', TV(7), TV(2), 2, TV(4)))
    a(valu('v_and_b32', TV(1), 7, TV(7))); a(valu('v_lshlrev_b32', TV(1), 1, TV(1)))
    a(valu('v_lshlrev_b32', TV(7), 8, TV(7)))
    a(valu('v_and_b32', TV(6), 1, TV(5))); a(valu('v_lshl_add_u32', TV(7), TV(6), 3, TV(7)))
    a(valu('v_add_u32', TV(7), VBASE, TV(7)))
    a(valu('v_lshrrev_b32', TV(6), 1, TV(5)))
    for dt in range(8):
        a(valu('v_add_u32', TV(5), 2*dt, TV(6))); a(valu('v_xor_b32', TV(5), TV(5), TV(1)))
        a(valu('v_lshl_add_u32', VA[dt], TV(5), 4, TV(7)))
    a(valu('v_lshlrev_b32', TV(5), 8, TV(2))); a(valu('v_add_u32', TV(5), S_WOFF, TV(5)))
    for n in range(4):
        a(valu('v_add_u32', TV(6), 4*n, TV(2))); a(valu('v_xor_b32', TV(6), TV(6), TV(3)))
        a(valu('v_lshl_add_u32', DK[n], TV(6), 4, TV(5)))
    for n in range(2):
        a(valu('v_add_u32', TV(6), 4*n, TV(2))); a(valu('v_lshlrev_b32', TV(6), 1, TV(6)))
        a(valu('v_xor_b32', TV(6), TV(6), TV(3))); a(valu('v_lshl_add_u32', DV[n], TV(6), 4, TV(5)))
    a(raw("s_lshl_b32 s27, s24, 14", writes=[S_XB])); a(raw(f"s_add_u32 s27, s27, {XBASE}", writes=[S_XB]))
    a(smov(S_SR, S_XB))
    a(valu('v_mov_b32', TV(8), S_XB))
    tr_addr_128(a, l, TA, TV(8), TV(1), TV(2), TV(3), TV(4))
    dma_off_128(a, l, DA, 3584, TV(1), TV(2), TV(3), s_tmp=S_T)
    dma_off_128(a, l, DB, 1024, TV(1), TV(2), TV(3), s_tmp=S_T)
    a(raw("s_lshl_b32 s44, s24, 9", writes=[S(44)]))
    a(raw("s_mul_i32 s39, s44, 3584", writes=[S_SA])); a(raw("s_lshl_b32 s45, s46, 7", writes=[S(45)])); a(raw("s_add_u32 s39, s39, s45", writes=[S_SA]))
    a(raw("s_lshl_b32 s36, s44, 10", writes=[S_SB])); a(raw("s_lshl_b32 s45, s47, 7", writes=[S(45)])); a(raw("s_add_u32 s36, s36, s45", writes=[S_SB]))
    a(raw(f"s_add_u32 s36, s36, {WS_H}", writes=[S_SB]))
    s, a = s_main0, a_main0
    a(smov(S_N, 0)); a(smov(S_SKIP, 0))
    if getattr(o, 'fine', False): s.extend(STP())
    s.extend(wq_stage(0))
    if getattr(o, 'fine', False):
        a(lds_dep(nop(0), need=set(XP.regs()))); s.extend(STP())
    def pk(op, d, x, y, z=None, mods=""):
        srcs = [x, y] + ([z] if z is not None else [])
        return I(f"{op} {d}, " + ", ".join(str(t) for t in srcs) + (" " + mods if mods else ""), 'valu', reads=srcs, writes=[d], op=op)
    if o.fuse_ln:
        F = lambda i, e: V(128 + 8*i + e)
        D1 = V(28, 4); D2 = V(4, 4)
        for i in range(16):
            a(mfma16(D1, ONES, XP[4*i:4*i+4], D1 if i else 0)); a(mfma16(D2, XP[4*i:4*i+4], XP[4*i:4*i+4], D2 if i else 0))
            for q in range(4):
                a(valu('v_lshlrev_b32', F(i, 2*q), 16, XP[4*i+q])); a(valu('v_and_b32', F(i, 2*q+1), 0xffff0000, XP[4*i+q]))
        if o.wq_early: s.extend(wq_stage(1)); s.extend(wq_stage(2))
        a(valu('v_and_b32', V(1), 3, l))
        for r in (2, 1, 0):
            a(I(f"v_cmp_eq_u32 vcc, {r}, v1", 'valu', reads=[V(1)], writes=['vcc']))
            a(I(f"v_cndmask_b32 v7, v7, {D2[r]}, vcc", 'valu', reads=[V(7), D2[r], 'vcc'], writes=[V(7)]))
        a(valu('v_and_b32', V(1), 15, l)); a(valu('v_lshrrev_b32', V(2), 2, V(1)))
        a(valu('v_lshl_add_u32', V(2), V(2), 4, V(1))); a(valu('v_lshlrev_b32', V(2), 2, V(2)))
        a(I("ds_bpermute_b32 v3, v2, v7", 'ds_read', reads=[V(2), V(7)], writes=[V(3)]))
        MEAN = V(28); RS = V(2); NB = V(3)
        a(valu('v_mul_f32', MEAN, 1.0/512, MEAN))
        a(valu('v_mul_f32', V(3), 1.0/512, V(3)))
        a(valu('v_fma_f32', V(3), '-v28', MEAN, V(3)))
        a(valu('v_max_f32', V(3), 0, V(3)))
        a(valu('v_add_f32', V(3), 1e-5, V(3)))
        a(valu('v_rsq_f32', RS, V(3)))
        if o.prescale: a(valu('v_mul_f32', RS, QSCALE, RS))
        a(valu('v_mul_f32', NB, MEAN, RS)); a(valu('v_sub_f32', NB, 0, NB))
        for i in range(16):
            for e in range(8): a(valu('v_fma_f32', F(i, e), F(i, e), RS, NB))
        a(valu('v_and_b32', V(4), 15, l)); a(valu('v_lshrrev_b32', V(5), 4, l))
        a(raw("s_lshl_b32 s43, s24, 14", writes=[S_T])); a(raw(f"s_add_u32 s43, s43, {XBASE}", writes=[S_T]))
        a(valu('v_lshlrev_b32', V(6), 10, V(4))); a(valu('v_add_u32', V(6), S_T, V(6)))
        WA = [V(28 + k) for k in range(4)]
        for k in range(4):
            a(valu('v_add_u32', V(7), 4*k, V(5))); a(valu('v_xor_b32', V(7), V(7), V(4))); a(valu('v_lshl_add_u32', WA[k], V(7), 4, V(6)))
        for i in range(16):
            for q in range(4): a(valu('v_cvt_pk_bf16_f32', XP[4*i+q], F(i, 2*q), F(i, 2*q+1)))
            a(ds_write(4, WA[i & 3], XP[4*i:4*i+4], off=(i >> 2)*256))
        if getattr(o, 'fine', False): s.extend(STP())
        a(waitcnt(lgkm=0)); a(barrier())
        if getattr(o, 'fine', False): s.extend(STP())
    else:
        a(waitcnt(vm=8)); a(barrier())
    if not (o.fuse_ln and o.wq_early): s.extend(wq_stage(1)); s.extend(wq_stage(2))
    if o.fuse_ln:
        s_main, a_main = s, a
        ln2 = []; s = ln2; a = ln2.append
        R0 = [V(64 + i) for i in range(8)]; R1 = [V(72 + i) for i in range(8)]
        PK = [V(80, 4), V(84, 4)]
        a(raw("s_lshl_b32 s44, s25, 3", writes=[S(44)])); a(raw("s_lshl_b32 s45, s24, 1", writes=[S(45)])); a(raw("s_add_u32 s44, s44, s45", writes=[S(44)]))
        for k in range(2):
            a(sop('s_add_u32', S(45), S(44), k)); a(sop('s_and_b32', S(5), S(45), 15)); a(raw("s_lshl_b32 s5, s5, 4", writes=[S(5)]))
            a(raw("s_lshl_b32 s45, s45, 10", writes=[S(45)])); a(raw(f"s_add_u32 s45, s45, {XBASE}", writes=[S(45)]))
            a(valu('v_lshlrev_b32', V(94), 4, l)); a(valu('v_xor_b32', V(94), S(5), V(94))); a(valu('v_add_u32', V(94), S(45), V(94)))
            a(ds_read_b128(PK[k], V(94)))
        RR = [R0, R1]; SM = [V(88), V(90)]; TT = [V(89), V(91)]; QQ = [V(92), V(93)]
        for k in range(2):
            for q in range(4):
                a(valu('v_lshlrev_b32', RR[k][2*q], 16, PK[k][q])); a(valu('v_and_b32', RR[k][2*q+1], 0xffff0000, PK[k][q]))
        def both(f):
            x0, x1 = f(0), f(1)
            for u, v_ in zip(x0, x1): a(u); a(v_)
        both(lambda k: [valu('v_add_f32', SM[k], RR[k][0], RR[k][1])] + [valu('v_add_f32', SM[k], SM[k], RR[k][e]) for e in range(2, 8)])
        both(lambda k: wave_sum(SM[k], TT[k]))
        both(lambda k: [valu('v_mul_f32', SM[k], 1.0/512, SM[k])] + [valu('v_sub_f32', RR[k][e], RR[k][e], SM[k]) for e in range(8)])
        both(lambda k: [valu('v_mul_f32', QQ[k], RR[k][0], RR[k][0])] + [valu('v_fmac_f32', QQ[k], RR[k][e], RR[k][e], dst_read=True) for e in range(1, 8)])
        both(lambda k: wave_sum(QQ[k], TT[k]))
        both(lambda k: [valu('v_mov_b32', TT[k], 1e-5 * (QSCALE*QSCALE if o.prescale else 1.0)), valu('v_fmac_f32', TT[k], 1.0/512, QQ[k], dst_read=True), valu('v_rsq_f32', TT[k], TT[k])] +
                       [valu('v_mul_f32', RR[k][e], RR[k][e], TT[k]) for e in range(8)] + [valu('v_cvt_pk_bf16_f32', PK[k][q], RR[k][2*q], RR[k][2*q+1]) for q in range(4)])
        a(raw("s_lshl_b32 s45, s26, 6", writes=[S(45)])); a(raw("s_add_u32 s45, s45, s44", writes=[S(45)])); a(raw("s_lshl_b32 s45, s45, 10", writes=[S(45)]))
        a(raw(f"s_add_u32 s45, s45, {WS_H}", writes=[S(45)]))
        a(valu('v_lshlrev_b32', V(94), 4, l))
        a(lds_dep(bstore(4, PK[0], V(94), SRD_W, S(45), mods="sc1"), mark={'HS'}))
        a(lds_dep(bstore(4, PK[1], V(94), SRD_W, S(45), off=1024, mods="sc1"), mark={'HS'}))
        a(valu('v_lshlrev_b32', V(95), 25, l)); a(valu('v_mov_b32', V(96), 0))
        a(raw("s_and_b32 s45, s2, 127", writes=[S(45)])); a(raw("s_lshl_b32 s45, s45, 8", writes=[S(45)])); a(raw(f"s_add_u32 s45, s45, {WS_CNT}", writes=[S(45)]))
        a(lds_dep(bstore(1, V(96), V(95), SRD_W, S(45), mods="sc1"), mark={'HS'}))
        s, a = s_main, a_main
    s.extend(STP())
    def xread(n, qt, dst): return ds_read_b128(dst, XA[n & 3], (n >> 2)*256 + qt*16384)
    kv0 = [smov(S_TILE, 0)] + at.kv_dma(0)
    later = []; later2 = []
    if o.side: later += side_dma(SRD_W1, S_SA, 32*3584, SRD_W, S_SB, 32*1024, DA, DB, 0, False, modsB=HMOD) + [sop('s_xor_b32', S_SR, S_SR, 8192)]
    later2 += at.kv_dma(1)
    if o.side: later2 += side_dma(SRD_W1, S_SA, 32*3584, SRD_W, S_SB, 32*1024, DA, DB, 1, False, modsB=HMOD) + [sop('s_xor_b32', S_SR, S_SR, 8192)]
    if not o.late2: later += later2; later2 = []
    hooks = {}
    last_pre = [waitcnt(lgkm=0)]
    if o.fuse_ln:
        arrive = [lds_dep(nop(0), need={'HS'}), barrier(),
                  valu('v_mov_b32', V(4), 1), valu('v_lshlrev_b32', V(5), 25, l),
                  raw("s_and_b32 s44, s2, 3", writes=[S(44)]), raw("s_lshl_b32 s44, s44, 6", writes=[S(44)]),
                  raw("s_cmp_eq_u32 s24, 0"), raw("s_cselect_b32 s44, s44, 0x1000", reads=['scc'], writes=[S(44)]),
                  I(f"buffer_atomic_add v4, v5, {SRD_DBG}, s44 offen sc1", 'vatomic', reads=[V(4), V(5), SRD_DBG, S(44)], writes=[])]
        hooks[o.arrive_at] = arrive
        if o.prefetch and o.side and o.pf_w1:
            hooks[o.pf_w1_at] = [raw("s_lshl_b32 s44, s47, 2", writes=[S(44)]), raw("s_add_u32 s44, s44, s24", writes=[S(44)]), raw("s_lshl_b32 s44, s44, 6", writes=[S(44)]),
                        valu('v_add_u32', V(2), S(44), l), smov(S(44), 3584), valu('v_mul_lo_u32', V(2), V(2), S(44)),
                        raw("s_lshl_b32 s44, s46, 7", writes=[S(44)]), bload(1, A(208), V(2), SRD_W1, S(44))]
        hooks[o.hpoll_at] = [valu('v_and_b32', V(1), 3, l), valu('v_lshlrev_b32', V(1), 6, V(1)), bload(1, V(6), V(1), SRD_DBG, 0, mods="sc1")]
        chk = lambda: [I("v_cmp_le_u32 vcc, 64, v6", 'valu', reads=[V(6)], writes=['vcc']), nop(3), raw("s_cmp_eq_u64 vcc, -1", reads=['vcc'])]
        last_pre += [smov(S(45), 0), label("L_k3_hpoll")] + chk() + [raw("s_cbranch_scc1 L_k3_hpollok", 'branch'),
                     raw("s_sleep 4"), bload(1, V(6), V(1), SRD_DBG, 0, mods="sc1"), waitcnt(vm=0),
                     sop('s_add_u32', S(45), S(45), 1), scmp('s_cmp_lt_u32', S(45), 0x40000), raw("s_cbranch_scc1 L_k3_hpoll", 'branch'), label("L_k3_hpollok")]
    if getattr(o, 'qdiag', False):
        for n_ in (2, 4, 6, 8, 10, 12, 14): hooks[n_] = STP() + hooks.get(n_, [])
    last_pre += [barrier()]
    proj_gemm2(a, s, PTA, DW, SRD_WQ, S_SO, 8192, S_RING, xread, 1024, 'q', last_pre=last_pre, last_fill=kv0, hooks=hooks, fill=((ln2 + deferred) if o.fuse_ln else None), fill_rate=o.ln2_rate)
    s.extend(STP())
    a(sload(S(96, 2), ARG_B1)); a(sload(S(98, 2), ARG_B2))
    a(smov(S(44), QSCALE))
    qpost = []
    for i in range(4):
        for qt in range(4):
            x, y = O(2*i, qt), O(2*i+1, qt)
            b_ = qpost.append
            if not (o.prescale and o.fuse_ln):
                for r in range(4):
                    b_(valu('v_mul_f32', x[r], S(44), x[r])); b_(valu('v_mul_f32', y[r], S(44), y[r]))
            T4 = V(48 + 4*((i*4+qt) & 1), 4)
            X0, X1, Y0, Y1 = T4[0], T4[1], T4[2], T4[3]
            b_(valu('v_cvt_pk_bf16_f32', X0, x[0], x[1])); b_(valu('v_cvt_pk_bf16_f32', X1, x[2], x[3]))
            b_(valu('v_cvt_pk_bf16_f32', Y0, y[0], y[1])); b_(valu('v_cvt_pk_bf16_f32', Y1, y[2], y[3]))
            b_(permlane32_swap(X0, Y0)); b_(permlane32_swap(X1, Y1))
            b_(permlane16_swap(X0, Y0)); b_(permlane16_swap(X1, Y1))
            q = Q(i, qt)
            b_(valu('v_accvgpr_write_b32', q[0], X0)); b_(valu('v_accvgpr_write_b32', q[1], X1))
            b_(valu('v_accvgpr_write_b32', q[2], Y0)); b_(valu('v_accvgpr_write_b32', q[3], Y1))
    grp = group_dma(later)
    step = max(1, len(qpost) // (len(grp) + 1)); gi = 0
    for k, ins in enumerate(qpost):
        a(ins)
        if k % step == step - 1 and gi < len(grp):
            s.extend(expand([grp[gi]])); gi += 1
            while gi < len(grp) and not isinstance(grp[gi], Grp):
                a(grp[gi]); gi += 1
    for g_ in grp[gi:]: s.extend(expand([g_]))
    s.extend(STP())
    a(waitcnt(vm=((8 if o.side else 0) if o.late2 else (24 if o.side else 8)))); a(barrier())
    MX = [V(18 + 0), V(19), V(20), V(21)] if False else [V(28), V(29), V(30), V(31)]
    g2l = group_dma(later2)
    for kh in range(2 if o.fm64 else 1):
        s.extend(at.k_reads(0, kh))
        for c in range(2):
            for q2 in range(2):
                for t in range(2):
                    for i in range(4):
                        a(mfma16(Sx(c, t, q2), Kf(t*4+i), Q(i, 2*c+q2), 0 if i == 0 else Sx(c, t, q2)))
                        if g2l and (i & 1):
                            s.extend(expand([g2l.pop(0)]))
                            while g2l and not isinstance(g2l[0], Grp): a(g2l.pop(0))
        for qt in range(4):
            c, q2 = qt >> 1, qt & 1
            s0, s1 = Sx(c, 0, q2), Sx(c, 1, q2); m = MX[qt]
            if kh == 0: a(valu('v_max3_f32', m, s0[0], s0[1], s0[2]))
            else: a(valu('v_max3_f32', m, s0[0], s0[1], m)); a(valu('v_max_f32', m, m, s0[2]))
            a(valu('v_max3_f32', m, m, s0[3], s1[0])); a(valu('v_max3_f32', m, m, s1[1], s1[2])); a(valu('v_max_f32', m, m, s1[3]))
    s.extend(expand(g2l))
    for qt in range(4):
        m = MX[qt]; t = V(5)
        a(valu('v_mov_b32', t, m)); a(permlane16_swap(m, t)); a(valu('v_max_f32', m, m, t))
        a(valu('v_mov_b32', t, m)); a(permlane32_swap(m, t)); a(valu('v_max_f32', m, m, t))
        for r in range(4): a(valu('v_sub_f32', NM[qt][r], float(-o.moff), m))
    s.extend(STP())
    if o.fuse_ln:
        i_st = max(i for i, x in enumerate(s) if 'HS' in getattr(x, 'mark', set()))
        i_ar = min(i for i, x in enumerate(s) if 'HS' in getattr(x, 'need', set()))
        assert i_st < i_ar, 'h stores must be issued before the arrival'
    pro = s
    B1 = S(28, 4); B2 = S(32 - 4, 4)
    def scratch_write():
        o_ = [valu('v_lshlrev_b32', V(27), 4, l), valu('v_add_u32', V(26), S_XB, V(27))]
        for i in range(4):
            for j in range(4): o_.append(ds_write(4, V(26), sacc(i, j), off=(i*4+j)*1024))
        o_ += [raw("s_lshl_b32 s43, s24, 10", writes=[S_TMP]), raw(f"s_add_u32 s43, s43, {XBASE}", writes=[S_TMP]), valu('v_add_u32', V(27), S_TMP, V(27))]
        return o_
    PS = [[V(18, 2), V(20, 2), V(22, 2), V(24, 2)], [V(28, 2), V(30, 2), V(2, 2), V(4, 2)]]
    def unit_reads(u):
        i, h = u >> 1, u & 1
        return [ds_read_b64(PS[u & 1][w], V(27), w*16384 + i*4096 + 8*h) for w in range(4)]
    def unit_sum(u, e):
        P_ = PS[u & 1]; x = P_[3][e]
        return [valu('v_add_f32', P_[0][e], P_[0][e], P_[1][e]), valu('v_add_f32', x, x, P_[2][e]), valu('v_add_f32', x, x, P_[0][e])], x
    per = {}
    def side_spec(j):
        kw = dict(first=(j == 0), last_drain=(j == 32), kv=(j <= 29))
        if not o.side: return kw
        if j <= 15:
            rd, mf, dm = g1_parts(j, in_loop=(j >= 1))
            kw['side_groups'] = [(5, mf)] if o.g1_pos == 0 else ([(3, mf[:8]), (5, mf[8:])] if o.g1_pos == 1 else [(7, mf)] if o.g1_pos == 2 else [(1, mf[:4]), (3, mf[4:8]), (5, mf[8:12]), (6, mf[12:])])
            if getattr(o, 'x_noread', False): rd = []
            if getattr(o, 'x_nodma', False): dm = [i for i in dm if i.kind != 'dma' and 'm0' not in i.writes]
            kw['streams'] = [('srd', spread(rd, o.g1_rd[0], o.g1_rd[1]))]
            if dm: kw['side_dma_list'] = (dm, o.g1_dm[0], o.g1_dm[1], 0.5)
            kw['post'] = toggle_side()
        elif j == 16:
            pre = make_srd(B1, S(96, 2), 1792*2)
            bl = [valu('v_lshrrev_b32', V(1), 4, l), valu('v_lshlrev_b32', V(1), 3, V(1)), raw("s_lshl_b32 s44, s46, 7", writes=[S(44)])]
            bl += [bload(2, A(192 + 2*ft, 2), V(1), B1, S(44), off=32*ft) for ft in range(4)]
            kw['pre'] = pre
            pf = []
            if o.prefetch and o.pf_w2 and not o.g2_tail:
                pf = [raw("s_mul_i32 s44, s47, 224", writes=[S(44)]), raw("s_mul_i32 s45, s24, 56", writes=[S(45)]), raw("s_add_u32 s44, s44, s45", writes=[S(44)]),
                      valu('v_add_u32', V(2), S(44), l), valu('v_lshlrev_b32', V(2), 12, V(2)), raw("s_lshl_b32 s45, s46, 7", writes=[S(45)]),
                      bload(1, A(200), V(2), SRD_W2, S(45))]
            if o.wot:
                pf += [raw("s_lshl_b32 s3, s25, 4", writes=[S(3)]), raw("s_lshr_b32 s5, s26, 1", writes=[S(5)]), raw("s_add_u32 s3, s3, s5", writes=[S(3)]),
                       raw("s_lshl_b32 s3, s3, 15", writes=[S(3)]), raw("s_and_b32 s5, s26, 1", writes=[S(5)]), raw("s_lshl_b32 s5, s5, 9", writes=[S(5)]),
                       raw("s_add_u32 s3, s3, s5", writes=[S(3)]), raw("s_lshl_b32 s5, s24, 7", writes=[S(5)]), raw("s_add_u32 s3, s3, s5", writes=[S(3)]),
                       valu('v_and_b32', V(3), 31, l), valu('v_lshlrev_b32', V(3), 10, V(3)), bload(1, A(201), V(3), SRD_WO, S(3))]
            kw['streams'] = [('sw', spread(scratch_write(), 0.1, 0.7)), ('sb', spread(bl, 0.05, 0.1)), ('spf', [(0.15, 0.12, i) for i in pf])]
        elif j == 17:
            comp = [smov(S(45), -2.0*0.7978845608028654*LOG2E*0.044715), valu('v_mov_b32', V(1), -2.0*0.7978845608028654*LOG2E)]
            comp += [raw("s_lshl_b32 s43, s47, 2", writes=[S_TMP]), raw("s_add_u32 s43, s43, s24", writes=[S_TMP]), raw("s_mul_i32 s43, s43, 56", writes=[S_TMP]),
                     raw("s_lshl_b32 s39, s46, 1", writes=[S_SA]), raw("s_add_u32 s43, s43, s39", writes=[S_TMP]), raw("s_lshl_b32 s43, s43, 10", writes=[S_TMP]),
                     raw(f"s_add_u32 s43, s43, {WS_U}", writes=[S_TMP]), valu('v_lshlrev_b32', V(26), 4, l)]
            OUTA = A(240, 8)
            comp += unit_reads(0)
            for u in range(8):
                ft, h = u >> 1, u & 1
                if u + 1 < 8: comp += unit_reads(u + 1)
                comp.append(valu('v_accvgpr_read_b32', V(6), A(192 + 2*ft + h)))
                xs = []
                for e in range(2):
                    sm_, x = unit_sum(u, e); comp += sm_; xs.append(x)
                    comp.append(valu('v_and_b32', V(7), 0xffff0000, V(6)) if e else valu('v_lshlrev_b32', V(7), 16, V(6)))
                    comp.append(valu('v_add_f32', x, x, V(7)))
                    comp += [valu('v_mul_f32', V(7), x, x), valu('v_fma_f32', V(7), V(7), S(45), V(1)), valu('v_mul_f32', V(7), V(7), x), valu('v_exp_f32', V(7), V(7)),
                             valu('v_add_f32', V(7), 1.0, V(7)), valu('v_rcp_f32', V(7), V(7)), valu('v_mul_f32', x, x, V(7))]
                comp += [valu('v_cvt_pk_bf16_f32', V(6), xs[0], xs[1]), valu('v_accvgpr_write_b32', OUTA[u], V(6))]
                if u in (3, 7): comp.append(lds_dep(bstore(4, OUTA[u-3:u+1], V(26), SRD_US, S_TMP, off=(u >> 2)*1024, mods="sc1"), mark={'US'}))
            kw['streams'] = [('scomp', spread(comp, 0.0, 0.98))]
        elif o.g2_tail and j >= 18:
            if j == 18:
                sig = [valu('v_mov_b32', V(4), 1), valu('v_lshlrev_b32', V(5), 25, l),
                       raw("s_lshl_b32 s44, s47, 2", writes=[S(44)]), raw("s_add_u32 s44, s44, s24", writes=[S(44)]), raw("s_lshl_b32 s44, s44, 8", writes=[S(44)]),
                       raw(f"s_add_u32 s44, s44, {WS_CNT}", writes=[S(44)]),
                       lds_dep(I(f"buffer_atomic_add v4, v5, {SRD_US}, s44 offen sc1", 'vatomic', reads=[V(4), V(5), SRD_US, S(44)], writes=[]), need={'US'})]
                kw['streams'] = [('ssig', [(0.6, 0.5, i) for i in sig])]
            elif j == 28:
                pl = [valu('v_and_b32', V(1), 3, l), valu('v_lshlrev_b32', V(1), 8, V(1)), raw("s_lshl_b32 s43, s47, 10", writes=[S_TMP]),
                      raw(f"s_add_u32 s43, s43, {WS_CNT}", writes=[S_TMP]), bload(1, V(6), V(1), SRD_W, S_TMP, mods="sc1")]
                pf = []
                if o.prefetch and o.pf_w2:
                    pf = [raw("s_mul_i32 s44, s47, 224", writes=[S(44)]), raw("s_mul_i32 s45, s24, 56", writes=[S(45)]), raw("s_add_u32 s44, s44, s45", writes=[S(44)]),
                          valu('v_add_u32', V(2), S(44), l), valu('v_lshlrev_b32', V(2), 12, V(2)), raw("s_lshl_b32 s45, s46, 7", writes=[S(45)]),
                          bload(1, A(200), V(2), SRD_W2, S(45))]
                if o.prefetch:
                    pf += [raw("s_lshl_b32 s44, s25, 5", writes=[S(44)]), raw("s_add_u32 s44, s44, s26", writes=[S(44)]), raw("s_lshl_b32 s44, s44, 2", writes=[S(44)]),
                           raw("s_add_u32 s44, s44, s24", writes=[S(44)]), raw("s_lshl_b32 s44, s44, 12", writes=[S(44)]), valu('v_lshlrev_b32', V(3), 4, l)]
                    pf += [bload(4, A(240 + 4*n, 4), V(3), SRD_WO, S(44), off=n*1024) for n in range(4)]
                kw['streams'] = [('spoll', [(0.05, 0.0, i) for i in pl]), ('spf', spread(pf, 0.45, 0.9, rel=0.42))]
                chk = lambda: [I("v_cmp_le_u32 vcc, 28, v6", 'valu', reads=[V(6)], writes=['vcc']), nop(3), raw("s_cmp_eq_u64 vcc, -1", reads=['vcc'])]
                kw['post'] = [smov(S(45), 0), label("L_k3_poll")] + chk() + [raw("s_cbranch_scc1 L_k3_pollok", 'branch'),
                              raw("s_sleep 4"), bload(1, V(6), V(1), SRD_W, S_TMP, mods="sc1"), waitcnt(vm=0),
                              sop('s_add_u32', S(45), S(45), 1), scmp('s_cmp_lt_u32', S(45), 0x40000), raw("s_cbranch_scc1 L_k3_poll", 'branch'), label("L_k3_pollok")]
        elif j == 18:
            su = []
            dma_off_128(su.append, l, DA, 4096, V(1), V(2), V(3), s_tmp=S_TMP)
            su += [valu('v_lshlrev_b32', DB[0], 4, l)] + [valu('v_add_u32', DB[t], 56*1024, DB[t-1]) for t in range(1, 4)]
            su += [raw("s_mul_i32 s39, s24, 448*4096", writes=[S_SA]), raw("s_lshl_b32 s43, s46, 7", writes=[S_TMP]), raw("s_add_u32 s39, s39, s43", writes=[S_SA]),
                   raw("s_mul_i32 s36, s47, 4*56", writes=[S_SB]), raw("s_mul_i32 s43, s24, 14", writes=[S_TMP]), raw("s_add_u32 s36, s36, s43", writes=[S_SB]),
                   raw("s_lshl_b32 s36, s36, 10", writes=[S_SB]), raw(f"s_add_u32 s36, s36, {WS_U}", writes=[S_SB]), smov(S_N, 0), smov(S_SKIP, 0)]
            sig = [valu('v_mov_b32', V(4), 1), valu('v_lshlrev_b32', V(5), 25, l),
                   raw("s_lshl_b32 s44, s47, 2", writes=[S(44)]), raw("s_add_u32 s44, s44, s24", writes=[S(44)]), raw("s_lshl_b32 s44, s44, 8", writes=[S(44)]),
                   raw(f"s_add_u32 s44, s44, {WS_CNT}", writes=[S(44)]),
                   lds_dep(I(f"buffer_atomic_add v4, v5, {SRD_US}, s44 offen sc1", 'vatomic', reads=[V(4), V(5), SRD_US, S(44)], writes=[]), need={'US'})]
            kw['streams'] = [('ssu', spread(su, 0.05, 0.55)), ('ssig', [(0.6, 0.5, i) for i in sig])]
            if o.wot:
                WD = [V(28 + i) for i in range(4)]
                wsu = []
                dma_off_128(wsu.append, l, WD, 1024, V(6), V(7), V(26), s_tmp=S(5))
                wsu += [raw("s_lshl_b32 s3, s25, 4", writes=[S(3)]), raw("s_lshr_b32 s5, s26, 1", writes=[S(5)]), raw("s_add_u32 s3, s3, s5", writes=[S(3)]),
                        raw("s_lshl_b32 s3, s3, 15", writes=[S(3)]), raw("s_and_b32 s5, s26, 1", writes=[S(5)]), raw("s_lshl_b32 s5, s5, 9", writes=[S(5)]),
                        raw("s_add_u32 s3, s3, s5", writes=[S(3)]), raw("s_lshl_b32 s5, s24, 7", writes=[S(5)]), raw("s_add_u32 s3, s3, s5", writes=[S(3)])]
                kw['streams'].append(('swsu', spread(wsu, 0.0, 0.12)))
                dl = [sop('s_add_u32', 'm0', S_SR, 8192), nop(0)] + [lds_dep(dma(WD[i], SRD_WO, S(3), off=i*1024), need={'sR1'}, mark={'sL1'}) for i in range(4)]
                kw['side_dma_list'] = (dl, 0.42, 0.55, 0.2)
        elif j == 19:
            st = g2_dma(0, False) + [sop('s_xor_b32', S_SR, S_SR, 8192)] + g2_dma(1, False) + [sop('s_xor_b32', S_SR, S_SR, 8192)]
            kw['side_dma_list'] = (st, 0.42, 0.95, 0.0)
            if o.wot:
                rd = [lds_dep(ds_read_tr(A(192 + 4*t + 2*u, 2), TA[t], 8192 + u*2048), need={'sL1'}, mark={'sR1'}) for t in range(4) for u in range(2)]
                ad = [raw("s_lshl_b32 s3, s25, 4", writes=[S(3)]), raw("s_lshr_b32 s5, s26, 1", writes=[S(5)]), raw("s_add_u32 s3, s3, s5", writes=[S(3)]),
                      raw("s_lshl_b32 s3, s3, 5", writes=[S(3)]), raw("s_and_b32 s5, s26, 1", writes=[S(5)]), raw("s_lshl_b32 s5, s5, 4", writes=[S(5)]),
                      raw("s_add_u32 s3, s3, s5", writes=[S(3)]), raw("s_lshl_b32 s5, s24, 2", writes=[S(5)]), raw("s_add_u32 s3, s3, s5", writes=[S(3)]),
                      raw("s_lshl_b32 s3, s3, 10", writes=[S(3)]), raw(f"s_add_u32 s3, s3, {WS_WOT}", writes=[S(3)]), valu('v_lshlrev_b32', V(26), 4, l)]
                stw = [bstore(4, A(192 + 4*t, 4), V(26), SRD_W, S(3), off=t*1024, mods="sc1") for t in range(4)]
                kw['streams'] = [('swr', spread(rd, 0.50, 0.60, rel=0.48) + [(0.61, 0.0, i) for i in ad] + spread(stw, 0.64, 0.8, rel=0.62))]
                kw['side_dma_list'] = (st, 0.42, 0.97, 0.0)
        elif j == 20:
            pl = [valu('v_and_b32', V(1), 3, l), valu('v_lshlrev_b32', V(1), 8, V(1)), raw("s_lshl_b32 s43, s47, 10", writes=[S_TMP]),
                  raw(f"s_add_u32 s43, s43, {WS_CNT}", writes=[S_TMP]), bload(1, V(6), V(1), SRD_W, S_TMP, mods="sc1")]
            kw['streams'] = [('spoll', [(0.80, 0.7, i) for i in pl])]
            if o.prefetch and not o.wot:
                extra = [raw("s_lshl_b32 s44, s25, 5", writes=[S(44)]), raw("s_add_u32 s44, s44, s26", writes=[S(44)]), raw("s_lshl_b32 s44, s44, 2", writes=[S(44)]),
                         raw("s_add_u32 s44, s44, s24", writes=[S(44)]), raw("s_lshl_b32 s44, s44, 12", writes=[S(44)])]
                extra += [bload(4, A(240 + 4*n, 4), DB[0], SRD_WO, S(44), off=n*1024) for n in range(4)]
                kw['streams'].append(('spf', spread(extra, 0.42, 0.55)))
            chk = lambda: [I("v_cmp_le_u32 vcc, 28, v6", 'valu', reads=[V(6)], writes=['vcc']), nop(3), raw("s_cmp_eq_u64 vcc, -1", reads=['vcc'])]
            dg = (STP() if getattr(o, 'polldiag', False) else [])
            kw['post'] = dg + [smov(S(45), 0), label("L_k3_poll")] + chk() + [raw("s_cbranch_scc1 L_k3_pollok", 'branch'),
                          raw("s_sleep 4"), bload(1, V(6), V(1), SRD_W, S_TMP, mods="sc1"), waitcnt(vm=0),
                          sop('s_add_u32', S(45), S(45), 1), scmp('s_cmp_lt_u32', S(45), 0x40000), raw("s_cbranch_scc1 L_k3_poll", 'branch'), label("L_k3_pollok")] + ([smov(S(94), S(45))] if getattr(o, 'polldiag', False) else [])
            kw['vm_end'] = 0
        elif j == 21:
            if o.wot:
                kw['pre'] = [valu('v_mov_b32', V(4), 1), valu('v_lshlrev_b32', V(5), 25, l), sop('s_add_u32', S(44), S_G, 64), raw("s_lshl_b32 s44, s44, 8", writes=[S(44)]),
                             raw(f"s_add_u32 s44, s44, {WS_CNT}", writes=[S(44)]), raw("s_cmp_eq_u32 s24, 0"), raw(f"s_cselect_b32 s44, s44, {WS_END}", reads=['scc'], writes=[S(44)]),
                             I(f"buffer_atomic_add v4, v5, {SRD_W}, s44 offen sc1", 'vatomic', reads=[V(4), V(5), SRD_W, S(44)], writes=[])]
            z = [valu('v_accvgpr_write_b32', A(128 + r), 0) for r in range(64)]
            kw['streams'] = [('sul', spread(g2_uloads(), 0.05, 0.3)), ('sz', spread(z, 0.1, 0.95))]
        elif 22 <= j <= 28:
            i = j - 22
            rd, mfs = g2_parts(i if i else 1)
            rd, _ = g2_parts(i)
            kw['side_groups'] = [(3, mfs[0]), (5, mfs[1])]
            stl = [('srd', spread(rd, 0.02, 0.36))]
            if j <= 27:
                dm = [scmp('s_cmp_gt_u32', S_N, 4), I(f"s_cselect_b32 {S_SKIP}, 0x30000, 0", 'salu', reads=['scc'], writes=[S_SKIP]), sop('s_add_u32', S_N, S_N, 1)]
                dm += g2_dma(i & 1, True)
                kw['side_dma_list'] = (dm, 0.45, 0.78, 0.42)
                stl += [('sul', spread(g2_uloads(), 0.82, 0.98, rel=0.80))]
            kw['streams'] = stl
            kw['post'] = toggle_side()
        elif j == 29:
            pre = make_srd(B1, S(98, 2), 2048*2)
            bl = [valu('v_and_b32', V(1), 15, l), raw("s_lshl_b32 s44, s46, 6", writes=[S(44)]), raw("s_lshl_b32 s45, s24, 4", writes=[S(45)]),
                  raw("s_add_u32 s44, s44, s45", writes=[S(44)]), valu('v_add_u32', V(1), S(44), V(1)), valu('v_lshlrev_b32', V(1), 1, V(1)), bload_ushort(V(1), V(1), B1)]
            kw['pre'] = pre
            kw['streams'] = [('sw', spread(scratch_write(), 0.1, 0.7)), ('sb', spread(bl, 0.05, 0.1))]
        elif j == 30:
            comp = [smov(S(44), -LOG2E), valu('v_lshlrev_b32', V(1), 16, V(1))]
            comp += [raw("s_lshr_b32 s43, s47, 1", writes=[S_TMP]), raw("s_lshl_b32 s45, s46, 2", writes=[S(45)]), raw("s_add_u32 s43, s43, s45", writes=[S_TMP]),
                     raw("s_lshl_b32 s43, s43, 2", writes=[S_TMP]), raw("s_and_b32 s45, s47, 1", writes=[S(45)]), raw("s_lshl_b32 s45, s45, 1", writes=[S(45)]),
                     raw("s_add_u32 s43, s43, s45", writes=[S_TMP]), raw("s_lshl_b32 s43, s43, 2", writes=[S_TMP]), raw("s_add_u32 s43, s43, s24", writes=[S_TMP]),
                     raw("s_lshl_b32 s43, s43, 10", writes=[S_TMP]), raw(f"s_add_u32 s43, s43, {WS_GATE}", writes=[S_TMP]), valu('v_lshlrev_b32', V(26), 4, l)]
            OUTA = A(240, 8)
            comp += unit_reads(0)
            for u in range(8):
                if u + 1 < 8: comp += unit_reads(u + 1)
                xs = []
                for e in range(2):
                    sm_, y = unit_sum(u, e); comp += sm_; xs.append(y)
                    comp += [valu('v_add_f32', y, y, V(1)), valu('v_mul_f32', V(7), S(44), y), valu('v_exp_f32', V(7), V(7)), valu('v_add_f32', V(7), 1.0, V(7)),
                             valu('v_rcp_f32', V(7), V(7)), valu('v_mul_f32', y, y, V(7))]
                comp += [valu('v_cvt_pk_bf16_f32', V(6), xs[0], xs[1]), valu('v_accvgpr_write_b32', OUTA[u], V(6))]
                if u in (3, 7):
                    comp.append(bstore(4, OUTA[u-3:u+1], V(26), SRD_W, S_TMP, mods=("sc1" if o.fuse_comb else "")))
                    comp.append(sop('s_add_u32', S_TMP, S_TMP, 4096))
            kw['streams'] = [('scomp', spread(comp, 0.0, 0.98))]
        return kw
    DO = [V(14 + i) for i in range(4)]
    TO = [V(64 + i) for i in range(8)]; TO2 = [V(72 + i) for i in range(8)]
    S_SLOW = S(6); S_R2 = S(7)
    def wo_setup():
        s_ = []; a_ = s_.append
        dma_off_256(a_, l, DO, 1024, 'o', S_T)
        a_(raw("s_lshl_b32 s42, s25, 19", writes=[S_SO])); a_(raw("s_lshl_b32 s43, s24, 8", writes=[S_T]))
        a_(raw("s_add_u32 s42, s42, s43", writes=[S_SO]))
        a_(raw("s_lshl_b32 s7, s24, 13", writes=[S_R2])); a_(raw("s_add_u32 s7, s7, 65536", writes=[S_R2]))
        return s_
    def wo_stage(n):
        s_ = []
        sb, madd = (S_XB, n*8192) if n < 2 else (S_R2, 0)
        for h in range(2):
            s_ += [sop('s_add_u32', 'm0', sb, madd + h*4096), nop(0)]
            for i in range(4): s_.append(lds_dep(dma(DO[i], SRD_WO, S_SO, off=i*1024), need={f'oR{n}'}, mark={f'oL{n}'}))
            s_.append(sop('s_add_u32', S_SO, S_SO, 16*1024))
        return s_
    def wo_first_lds(): return wo_setup() + wo_stage(0) + wo_stage(1) + wo_stage(2)
    VLW = V(14)
    def wot_setup():
        return [valu('v_lshlrev_b32', VLW, 4, l), raw("s_lshl_b32 s42, s25, 19", writes=[S_SO]), raw("s_lshl_b32 s43, s24, 13", writes=[S_T]),
                raw("s_add_u32 s42, s42, s43", writes=[S_SO]), raw(f"s_add_u32 s42, s42, {WS_WOT}", writes=[S_SO])]
    def wot_loads(n): return proj3_loads(SRD_W, S_SO, VLW, n, 128)
    def wot_first(): return [i for n in range(P3_DEPTH) for i in wot_loads(n)]
    def wo_first(): return (wot_setup() + wot_first()) if o.wot else wo_first_lds()
    seqs = [('pro', pro)]
    for j in range(33):
        kw_ = side_spec(j)
        if j == 31 and o.wot:
            kw_['streams'] = list(kw_.get('streams', [])) + [('swo', spread(wot_setup(), 0.0, 0.05) + spread(wot_first(), 0.08, 0.95, rel=0.06))]
        elif j == 31 and o.wo_early:
            kw_['streams'] = list(kw_.get('streams', [])) + [('swo', spread(wo_setup(), 0.02, 0.2))]
            kw_['side_dma_list'] = (wo_stage(0) + wo_stage(1), 0.25, 0.95, 0.22)
        if j == 30 and o.wot:
            pl = [valu('v_mov_b32', V(16), 0), sop('s_add_u32', S(3), S_G, 64), raw("s_lshl_b32 s3, s3, 8", writes=[S(3)]), raw(f"s_add_u32 s3, s3, {WS_CNT}", writes=[S(3)]),
                  bload(1, V(17), V(16), SRD_W, S(3), mods="sc1")]
            kw_['streams'] = list(kw_.get('streams', [])) + [('swp', [(0.3, 0.25, i) for i in pl])]
            kw_['post'] = list(kw_.get('post', [])) + [smov(S(5), 0), label("L_k3_wpoll"), readfirstlane(S(4), V(17)), nop(3), scmp('s_cmp_ge_u32', S(4), 32),
                          raw("s_cbranch_scc1 L_k3_wpollok", 'branch'), raw("s_sleep 4"), bload(1, V(17), V(16), SRD_W, S(3), mods="sc1"), waitcnt(vm=0),
                          sop('s_add_u32', S(5), S(5), 1), scmp('s_cmp_lt_u32', S(5), 0x40000), raw("s_cbranch_scc1 L_k3_wpoll", 'branch'), label("L_k3_wpollok")]
        p = at.period(j, **kw_)
        if o.timing and j in o.stamp_after: p = p + STP()
        seqs.append((j, [label(f"@@P{j}")] + p))
    def arrive2(idx_s):
        return [valu('v_mov_b32', V(4), 1), valu('v_lshlrev_b32', V(5), 25, l),
                sop('s_add_u32', S(44), idx_s, 32), raw("s_lshl_b32 s44, s44, 8", writes=[S(44)]), raw(f"s_add_u32 s44, s44, {WS_CNT}", writes=[S(44)]),
                raw("s_cmp_eq_u32 s24, 0"), raw(f"s_cselect_b32 s44, s44, {WS_END}", reads=['scc'], writes=[S(44)]),
                I(f"buffer_atomic_add v4, v5, {SRD_W}, s44 offen sc1", 'vatomic', reads=[V(4), V(5), SRD_W, S(44)], writes=[])]
    pre_epi = [smov(S_SLOW, 0)]
    if o.fuse_comb: pre_epi += ([] if o.g2_tail else arrive2(S_T64)) + [sload(S(96, 2), ARG_X)] + ([sload(S(100, 2), ARG_OUT)] if o.g2_tail else [sload(S(98, 2), ARG_OUT)])
    if not o.wot: pre_epi += (wo_stage(2) if o.wo_early else wo_first())
    s = []; a = s.append
    a(label("@@EPI"))
    a(label("L_k3_norm"))
    a(nop(7))
    if not o.wot:
        a(valu('v_mov_b32', V(6), S_XB))
        addr_tr256(a, l, TO, V(6), 4)
        a(valu('v_mov_b32', V(6), S_R2))
        addr_tr256(a, l, TO2, V(6), 4)
    LI = [V(24 + i) for i in range(4)]
    for qt in range(4): a(valu('v_rcp_f32', LI[qt], LA[qt][0]))
    a(valu('v_lshlrev_b32', V(7), 4, l))
    a(raw("s_lshl_b32 s43, s24, 14", writes=[S_T]))
    a(valu('v_add_u32', V(22), S_T, V(7))); a(valu('v_mov_b32', V(23), V(7)))
    for kk in range(4):
        for qt in range(4):
            x, y = O(2*kk, qt), O(2*kk+1, qt)
            for r in range(4):
                a(valu('v_mul_f32', x[r], x[r], LI[qt])); a(valu('v_mul_f32', y[r], y[r], LI[qt]))
            if o.moff:
                mx = V(28 + qt)
                ab = lambda r_: f"|{r_}|"
                if kk == 0: a(valu('v_max3_f32', mx, ab(x[0]), ab(x[1]), ab(x[2])))
                else: a(valu('v_max3_f32', mx, ab(x[0]), ab(x[1]), mx)); a(valu('v_max_f32', mx, ab(x[2]), mx, mods=""))
                a(valu('v_max3_f32', mx, ab(x[3]), ab(y[0]), mx)); a(valu('v_max3_f32', mx, ab(y[1]), ab(y[2]), mx)); a(valu('v_max_f32', mx, ab(y[3]), mx))
            F = V(48 + 4*((kk*4+qt) & 3), 4)
            a(valu('v_cvt_pk_bf16_f32', F[0], x[0], x[1])); a(valu('v_cvt_pk_bf16_f32', F[1], x[2], x[3]))
            a(valu('v_cvt_pk_bf16_f32', F[2], y[0], y[1])); a(valu('v_cvt_pk_bf16_f32', F[3], y[2], y[3]))
            a(ds_write(4, V(22), F, off=(kk*4+qt)*1024))
    a(waitcnt(lgkm=0)); a(barrier())
    s.extend(STP())
    def oread(n, qt, dst): return ds_read_b128(dst, V(23), (n*4+qt)*1024)
    S_PS = S(3)
    def pstore(prange):
        o_ = []
        for p in prange:
            for qt in range(4):
                x, y = O(2*p, qt), O(2*p+1, qt)
                F = V(48 + 4*((p*4+qt) & 3), 4)
                o_ += [valu('v_cvt_pk_bf16_f32', F[0], x[0], x[1]), valu('v_cvt_pk_bf16_f32', F[1], x[2], x[3]),
                       valu('v_cvt_pk_bf16_f32', F[2], y[0], y[1]), valu('v_cvt_pk_bf16_f32', F[3], y[2], y[3]),
                       bstore(4, F, V(7), SRD_W, S_PS, off=qt*1024, mods=("sc1" if o.fuse_comb else ""))]
            o_.append(sop('s_add_u32', S_PS, S_PS, 4096))
        return o_
    a(raw("s_lshl_b32 s3, s25, 5", writes=[S_PS])); a(raw("s_add_u32 s3, s3, s26", writes=[S_PS]))
    a(raw("s_lshl_b32 s3, s3, 2", writes=[S_PS])); a(raw("s_add_u32 s3, s3, s24", writes=[S_PS]))
    a(raw("s_lshl_b32 s3, s3, 14", writes=[S_PS])); a(raw(f"s_add_u32 s3, s3, {WS_PART}", writes=[S_PS]))
    g2pre = {}
    if o.g2_tail:
        GTA = [[V(96 + t) for t in range(4)], [V(100 + t) for t in range(4)]]
        GDA = [V(104 + t) for t in range(4)]; GUL = [V(108 + t) for t in range(4)]
        a(valu('v_mov_b32', V(6), S_XB)); tr_addr_128(a, l, GTA[0], V(6), V(1), V(2), V(3), V(4))
        a(valu('v_mov_b32', V(6), S_R2)); tr_addr_128(a, l, GTA[1], V(6), V(1), V(2), V(3), V(4))
        dma_off_128(a, l, GDA, 4096, V(1), V(2), V(3), s_tmp=S(5))
        a(valu('v_lshlrev_b32', GUL[0], 4, l))
        for t in range(1, 4): a(valu('v_add_u32', GUL[t], 56*1024, GUL[t-1]))
        a(raw("s_mul_i32 s39, s24, 448*4096", writes=[S_SA])); a(raw("s_lshl_b32 s5, s46, 7", writes=[S(5)])); a(raw("s_add_u32 s39, s39, s5", writes=[S_SA]))
        a(raw("s_mul_i32 s36, s47, 4*56", writes=[S_SB])); a(raw("s_mul_i32 s5, s24, 14", writes=[S(5)])); a(raw("s_add_u32 s36, s36, s5", writes=[S_SB]))
        a(raw("s_lshl_b32 s36, s36, 10", writes=[S_SB])); a(raw(f"s_add_u32 s36, s36, {WS_U}", writes=[S_SB]))
        s.extend(make_srd(S(28, 4), S(98, 2), 2048*2))
        a(valu('v_and_b32', V(1), 15, l)); a(raw("s_lshl_b32 s44, s46, 6", writes=[S(44)])); a(raw("s_lshl_b32 s45, s24, 4", writes=[S(45)]))
        a(raw("s_add_u32 s44, s44, s45", writes=[S(44)])); a(valu('v_add_u32', V(1), S(44), V(1))); a(valu('v_lshlrev_b32', V(1), 1, V(1)))
        a(bload_ushort(V(18), V(1), S(28, 4)))
        gmap = [(0, 8192, S_XB, 8192), (0, 12288, S_XB, 12288), (1, 0, S_R2, 0), (1, 4096, S_R2, 4096)]
        wneed = ['oR1', 'oR1', 'oR2', 'oR2']
        def g2_w(n, first=False):
            st = n % 4; (_, _, sb, madd) = gmap[st]
            o_ = [sop('s_add_u32', 'm0', sb, madd)]
            for i in range(4): o_.append(lds_dep(dma(GDA[i], SRD_W2, S_SA, off=i*1024), need={f'gR{st}'} | ({wneed[st]} if first else set()), mark={f'gL{st}'}))
            o_.append(sop('s_add_u32', S_SA, S_SA, 32*4096))
            return o_
        gfa = lambda n, t: A(192 + 16*(n % 4) + 4*t, 4)
        gfb = lambda p, t: A(128 + 16*p + 4*t, 4)
        def g2_u(n):
            return [bload(4, gfa(n, t), GUL[t], SRD_W, S_SB, mods="sc1") for t in range(4)] + [sop('s_add_u32', S_SB, S_SB, 1024)]
        def g2_r(n):
            st = n % 4; (ti, imm, _, _) = gmap[st]
            return [lds_dep(ds_read_tr(gfb(n & 1, t)[2*u:2*u+2], GTA[ti][t], imm + u*2048), need={f'gL{st}'}, mark={f'gR{st}'}) for t in range(4) for u in range(2)]
        g2pre = {13: g2_w(0, True) + g2_w(1, True) + g2_u(0), 14: g2_w(2, True) + g2_w(3, True) + g2_u(1), 15: g2_u(2) + g2_u(3)}
    if o.wot:
        proj_gemm3(a, s, SRD_W, S_SO, VLW, oread, 128, 64, mid_fill=pstore(range(2)))
    else:
        proj_gemm2(a, s, TO, DO, SRD_WO, S_SO, 1024, S_RING, oread, 4096, 'o', fb_base=(160 if o.g2_tail else 128),
                   stage_map=[(TO, 0, S_XB, 0), (TO, 8192, S_XB, 8192), (TO2, 0, S_R2, 0)], extra_vm=g2pre)
    if o.fast_tail and o.fuse_comb and not o.g2_tail and not o.wot: s.extend(pstore(range(4)))
    a(smov(S(44), float(2.0**100)))
    for qt in range(4):
        a(I(f"v_cmp_gt_f32 vcc, s44, {LA[qt][0]}", 'valu', reads=[S(44), LA[qt][0]], writes=['vcc']))
        a(nop(3))
        a(I("s_mov_b64 s[56:57], vcc" if qt == 0 else "s_and_b64 s[56:57], s[56:57], vcc", 'salu', reads=['vcc'], writes=[S(56, 2), 'scc']))
    if o.moff:
        a(smov(S(44), float(2.0**(o.moff - 108))))
        for qt in range(4):
            a(I(f"v_cmp_le_f32 vcc, s44, {V(28 + qt)}", 'valu', reads=[S(44), V(28 + qt)], writes=['vcc']))
            a(nop(3))
            a(I("s_and_b64 s[56:57], s[56:57], vcc", 'salu', reads=['vcc'], writes=[S(56, 2), 'scc']))
    a(nop(7))
    a(valu('v_mov_b32', V(1), 0x1F8))
    for qt in range(4):
        a(I(f"v_cmp_class_f32 vcc, {O(0, qt)[0]}, v1", 'valu', reads=[O(0, qt)[0], V(1)], writes=['vcc']))
        a(nop(3))
        a(I("s_and_b64 s[56:57], s[56:57], vcc", 'salu', reads=['vcc'], writes=[S(56, 2), 'scc']))
    a(raw("s_cmp_eq_u64 s[56:57], -1"))
    a(raw("s_cselect_b32 s44, 0, 1", reads=['scc'], writes=[S(44)]))
    a(valu('v_mov_b32', V(2), S(44))); a(valu('v_mov_b32', V(1), S_XB))
    a(ds_write(1, V(1), V(2)))
    def flag_decide():
        a(valu('v_mov_b32', V(1), XBASE))
        a(ds_read_b32(V(2), V(1))); a(ds_read_b32(V(3), V(1), 16384)); a(ds_read_b32(V(4), V(1), 32768)); a(ds_read_b32(V(5), V(1), 49152))
        a(valu('v_or_b32', V(2), V(2), V(3))); a(valu('v_or_b32', V(4), V(4), V(5))); a(valu('v_or_b32', V(2), V(2), V(4)))
        a(readfirstlane(S(44), V(2)))
        a(nop(3))
        a(I("s_andn2_b32 s44, s44, s6", 'salu', reads=[S(44), S_SLOW], writes=[S(44), 'scc']))
        a(raw("s_cbranch_scc1 L_k3_slow", 'branch'))
    FT = o.fast_tail and o.fuse_comb and not o.g2_tail and not o.wot
    if not FT:
        a(waitcnt(lgkm=0)); a(barrier())
        flag_decide()
        a(label("L_k3_store"))
        s.extend(STP())
        if not o.g2_tail: s.extend(pstore(range(2, 4) if o.wot else range(4)))
    else:
        s.extend(STP())
    if o.g2_tail:
        gacc = lambda mt, st_: A(64 + (mt*4+st_)*4, 4)
        pfill = pstore(range(4))
        s.extend(g2_r(0))
        for n in range(14):
            rd = g2_r(n + 1) if n + 1 < 14 else []
            vm = (g2_w(n + 4) + g2_u(n + 4)) if n + 4 < 14 else []
            mf = [mfma16(gacc(mt, st_), gfa(n, mt), gfb(n & 1, st_), gacc(mt, st_) if n else 0) for mt in range(4) for st_ in range(4)]
            gaps = [[] for _ in range(16)]
            for k, ins in enumerate(rd): gaps[k].append(ins)
            g = 8
            for (ins, st_) in dma_ops_with_setup(vm):
                if ins.kind == 'dma':
                    gaps[g - 1] += st_; gaps[g].append(ins); g = min(15, g + 2)
            late = [i for i in vm if i.kind == 'vload' or (i.kind == 'salu' and 'm0' not in i.writes)]
            for k, m in enumerate(mf):
                a(m); s.extend(sort_gap(gaps[k]))
                if n >= o.ps_from and pfill:
                    for _ in range(2 if gaps[k] else 3):
                        if pfill: a(pfill.pop(0))
            s.extend(late)
        s.extend(pfill)
        a(raw("s_lshl_b32 s44, s24, 14", writes=[S(44)])); a(valu('v_add_u32', V(26), S(44), V(7)))
        for mt in range(4):
            for st_ in range(4): a(ds_write(4, V(26), gacc(mt, st_), off=(mt*4+st_)*1024))
        a(waitcnt(lgkm=0)); a(barrier())
        a(raw("s_lshl_b32 s44, s24, 10", writes=[S(44)])); a(valu('v_add_u32', V(27), S(44), V(7)))
        for mt in range(4):
            for w in range(4): a(ds_read_b128(V(192 + (mt*4+w)*4, 4), V(27), w*16384 + mt*4096))
        a(smov(S(44), -LOG2E)); a(valu("v_lshlrev_b32", V(18), 16, V(18)))
        a(raw("s_lshr_b32 s43, s47, 1", writes=[S_T])); a(raw("s_lshl_b32 s45, s46, 2", writes=[S(45)])); a(raw("s_add_u32 s43, s43, s45", writes=[S_T]))
        a(raw("s_lshl_b32 s43, s43, 2", writes=[S_T])); a(raw("s_and_b32 s45, s47, 1", writes=[S(45)])); a(raw("s_lshl_b32 s45, s45, 1", writes=[S(45)]))
        a(raw("s_add_u32 s43, s43, s45", writes=[S_T])); a(raw("s_lshl_b32 s43, s43, 2", writes=[S_T])); a(raw("s_add_u32 s43, s43, s24", writes=[S_T]))
        a(raw("s_lshl_b32 s43, s43, 10", writes=[S_T])); a(raw(f"s_add_u32 s43, s43, {WS_GATE}", writes=[S_T]))
        for mt in range(4):
            for r in range(4):
                P_ = [V(192 + (mt*4+w)*4 + r) for w in range(4)]; y = P_[0]; tt = V(2 + (r & 1))
                a(valu('v_add_f32', y, y, P_[1])); a(valu('v_add_f32', P_[2], P_[2], P_[3])); a(valu('v_add_f32', y, y, P_[2])); a(valu("v_add_f32", y, y, V(18)))
                a(valu('v_mul_f32', tt, S(44), y)); a(valu('v_exp_f32', tt, tt)); a(valu('v_add_f32', tt, 1.0, tt)); a(valu('v_rcp_f32', tt, tt)); a(valu('v_mul_f32', y, y, tt))
            q = V(40 + 4*(mt >> 1) + 2*(mt & 1), 2)
            a(valu('v_cvt_pk_bf16_f32', q[0], V(192 + mt*16), V(192 + mt*16 + 1))); a(valu('v_cvt_pk_bf16_f32', q[1], V(192 + mt*16 + 2), V(192 + mt*16 + 3)))
            if mt & 1:
                a(bstore(4, V(40 + 4*(mt >> 1), 4), V(7), SRD_W, S_T, mods="sc1")); a(sop('s_add_u32', S_T, S_T, 4096))
    if o.fuse_comb:
        SRD_X2 = S(28, 4); SRD_O = S(48, 4)
        s.extend(make_srd(SRD_X2, S(96, 2), 2 << 20)); s.extend(make_srd(SRD_O, S(100, 2) if o.g2_tail else S(98, 2), 2 << 20))
        a(valu('v_and_b32', V(1), 15, l)); a(raw("s_lshl_b32 s44, s26, 6", writes=[S(44)])); a(raw("s_lshl_b32 s45, s24, 4", writes=[S(45)]))
        a(raw("s_add_u32 s44, s44, s45", writes=[S(44)])); a(valu('v_add_u32', V(1), S(44), V(1))); a(valu('v_lshlrev_b32', V(1), 10, V(1)))
        a(valu('v_lshrrev_b32', V(2), 4, l)); a(valu('v_lshl_add_u32', V(1), V(2), 3, V(1)))
        a(raw("s_lshl_b32 s44, s25, 7", writes=[S(44)])); a(valu('v_add_u32', V(22), S(44), V(1)))
        XR = V(32, 8)
        for j in range(2):
            for t in range(2): a(bload(2, XR[4*j+2*t:4*j+2*t+2], V(22), SRD_X2, 0, off=64*j + 32*t))
        a(waitcnt(vm=4, lgkm=0))
        a(barrier())
        if FT: flag_decide()
        if o.g2_tail: s.extend(arrive2(S_T64)); a(nop(1))
        if FT:
            a(raw("s_cmp_eq_u32 s24, 0")); a(raw("s_cbranch_scc0 L_k3_cpollok", 'branch'))
            a(sop('s_add_u32', S(44), S_QB, 32)); a(raw("s_lshl_b32 s44, s44, 8", writes=[S(44)])); a(raw(f"s_add_u32 s44, s44, {WS_CNT}", writes=[S(44)]))
            a(valu('v_mov_b32', V(6), 1)); a(valu('v_lshlrev_b32', V(5), 25, l)); a(valu('v_mov_b32', V(1), 0)); a(smov(S(45), 0))
            a(I(f"buffer_atomic_add v6, v5, {SRD_W}, s44 offen sc0 sc1", 'vload', reads=[V(6), V(5), SRD_W, S(44)], writes=[V(6)]))
            a(waitcnt(vm=0)); a(readfirstlane(S(43), V(6))); a(nop(3)); a(sop('s_add_u32', S(43), S(43), 1))
            a(label("L_k3_cpoll"))
            a(scmp('s_cmp_ge_u32', S(43), 16)); a(raw("s_cbranch_scc1 L_k3_cpollok", 'branch'))
            a(raw("s_sleep 1"))
            a(bload(1, V(6), V(1), SRD_W, S(44), mods="sc1")); a(waitcnt(vm=0))
            a(readfirstlane(S(43), V(6))); a(nop(3))
            a(sop('s_add_u32', S(45), S(45), 1)); a(scmp('s_cmp_lt_u32', S(45), 0x80000)); a(raw("s_cbranch_scc1 L_k3_cpoll", 'branch'))
            a(label("L_k3_cpollok"))
            a(barrier())
            s.extend(STP())
        else:
            s.extend(arrive2(S_QB))
            s.extend(STP())
            a(sop('s_add_u32', S(44), S_QB, 32)); a(raw("s_lshl_b32 s44, s44, 8", writes=[S(44)])); a(raw(f"s_add_u32 s44, s44, {WS_CNT}", writes=[S(44)]))
            a(valu('v_mov_b32', V(1), 0)); a(smov(S(45), 0))
            a(label("L_k3_cpoll"))
            a(bload(1, V(6), V(1), SRD_W, S(44), mods="sc1")); a(waitcnt(vm=0))
            a(readfirstlane(S(43), V(6))); a(nop(3))
            a(scmp('s_cmp_ge_u32', S(43), 16)); a(raw("s_cbranch_scc1 L_k3_cpollok", 'branch'))
            a(raw("s_sleep 2")); a(sop('s_add_u32', S(45), S(45), 1)); a(scmp('s_cmp_lt_u32', S(45), 0x80000)); a(raw("s_cbranch_scc1 L_k3_cpoll", 'branch'))
            a(label("L_k3_cpollok"))
        a(raw("s_lshl_b32 s42, s26, 2", writes=[S_SO])); a(raw("s_lshr_b32 s43, s25, 1", writes=[S_T])); a(raw("s_add_u32 s42, s42, s43", writes=[S_SO]))
        a(raw("s_lshl_b32 s42, s42, 2", writes=[S_SO])); a(raw("s_and_b32 s43, s25, 1", writes=[S_T])); a(raw("s_lshl_b32 s43, s43, 1", writes=[S_T]))
        a(raw("s_add_u32 s42, s42, s43", writes=[S_SO])); a(raw("s_lshl_b32 s42, s42, 2", writes=[S_SO])); a(raw("s_add_u32 s42, s42, s24", writes=[S_SO]))
        a(raw("s_lshl_b32 s42, s42, 10", writes=[S_SO]))
        a(raw(f"s_add_u32 s43, s42, {WS_GATE}", writes=[S_T])); a(raw(f"s_add_u32 s42, s42, {WS_PART}", writes=[S_SO]))
        PPj = lambda j, g: V(128 + (j*8 + g)*4, 4)
        GG = [V(192, 4), V(196, 4)]
        for j in range(2):
            a(bload(4, GG[j], V(7), SRD_W, S_T, mods="sc1")); a(sop('s_add_u32', S_T, S_T, 4096))
        for g in range(8):
            a(bload(4, PPj(0, g), V(7), SRD_W, S_SO, mods="sc1"))
            a(sop('s_add_u32', S(44), S_SO, 4096))
            a(bload(4, PPj(1, g), V(7), SRD_W, S(44), mods="sc1"))
            if g < 7: a(sop('s_add_u32', S_SO, S_SO, 32*64*1024))
        for j in range(2):
            R = [V(200 + 8*j + i) for i in range(8)]
            for k in range(8):
                q = k >> 1; hi = k & 1
                unp = lambda dst, src: valu('v_and_b32', dst, 0xffff0000, src) if hi else valu('v_lshlrev_b32', dst, 16, src)
                a(unp(R[k], PPj(j, 0)[q]))
                for g in range(1, 8):
                    tt = V(2 + (g & 1))
                    a(unp(tt, PPj(j, g)[q])); a(valu('v_add_f32', R[k], R[k], tt))
                a(unp(V(4), GG[j][q])); a(unp(V(5), XR[4*j+q]))
                a(valu('v_fma_f32', R[k], R[k], V(4), V(5)))
            OUTR = V(216 + 4*j, 4)
            for q in range(4): a(valu('v_cvt_pk_bf16_f32', OUTR[q], R[2*q], R[2*q+1]))
            a(bstore(2, OUTR[0:2], V(22), SRD_O, 0, off=64*j, mods=o.out_mods)); a(bstore(2, OUTR[2:4], V(22), SRD_O, 0, off=64*j + 32, mods=o.out_mods))
    if o.timing or not o.fuse_comb: a(waitcnt(vm=0))
    s.extend(STP())
    if getattr(o, 'dbgtime', False):
        a(raw('s_memrealtime s[92:93]', 'smem', writes=[S(92, 2)])); a(sload(S(90, 2), ARG_DBG)); a(waitcnt(lgkm=0))
        s.extend(make_srd(S(84, 4), S(90, 2), 256))
        a(raw("s_sub_u32 s92, s92, s94", writes=[S(92)]))
        a(raw("s_add_u32 s93, s2, 4", writes=[S(93)])); a(raw("s_lshl_b32 s93, s93, 2", writes=[S(93)]))
        a(raw("s_cmp_lt_u32 s2, 8")); a(raw("s_cselect_b32 s93, s93, 0x1000", writes=[S(93)]))
        a(raw("s_cmp_eq_u32 s24, 0")); a(raw("s_cselect_b32 s93, s93, 0x1000", writes=[S(93)]))
        a(valu('v_mov_b32', V(2), S(92))); a(valu('v_lshlrev_b32', V(3), 25, l)); a(nop(3))
        a(bstore(1, V(2), V(3), S(84, 4), S(93))); a(waitcnt(vm=0))
    if getattr(o, 'diag_period', None) is not None: STP.force(len(o.diag_marks))
    if getattr(o, 'polldiag', False): STP.n = 16
    s.extend(STP.flush_dbg(S_WAVE, o.dbgwg) if getattr(o, 'dbgwg', None) is not None else STP.flush(S_WAVE))
    epi = s
    s = []; a = s.append
    M = [V(72 + i) for i in range(4)]
    a(label("L_k3_slow"))
    at.nozero = True
    a(smov(S_SLOW, 1))
    for r in range(128): a(valu('v_mov_b32', V(128 + r), 0))
    for qt in range(4):
        for r in range(4): a(valu('v_mov_b32', LA[qt][r], 0))
        a(valu('v_mov_b32', M[qt], 0xff800000))
    a(smov(S_TILE, 0)); a(smov(S(45), 32))
    a(label("L_k3_slowloop"))
    a(barrier())
    s.extend(at.kv_dma(0))
    a(waitcnt(vm=0)); a(barrier())
    for kh in range(2):
        s.extend(at.k_reads(0, kh)); s.extend(at.v_reads(0, kh))
        for c in range(2):
            for q2 in range(2):
                for t in range(2):
                    for i in range(4): a(mfma16(Sx(c, t, q2), Kf(t*4+i), Q(i, 2*c+q2), 0 if i == 0 else Sx(c, t, q2)))
            for q2 in range(2):
                qt = 2*c + q2; s0, s1 = Sx(c, 0, q2), Sx(c, 1, q2); m = V(4); t_ = V(5)
                a(valu('v_max3_f32', m, s0[0], s0[1], s0[2])); a(valu('v_max3_f32', m, m, s0[3], s1[0]))
                a(valu('v_max3_f32', m, m, s1[1], s1[2])); a(valu('v_max3_f32', m, m, s1[3], M[qt]))
                a(valu('v_mov_b32', t_, m)); a(permlane16_swap(m, t_)); a(valu('v_max_f32', m, m, t_))
                a(valu('v_mov_b32', t_, m)); a(permlane32_swap(m, t_)); a(valu('v_max_f32', m, m, t_))
                a(valu('v_sub_f32', t_, M[qt], m)); a(valu('v_exp_f32', t_, t_)); a(valu('v_mov_b32', M[qt], m))
                for dt in range(8):
                    for r in range(4): a(valu('v_mul_f32', O(dt, qt)[r], O(dt, qt)[r], t_))
                for r in range(4): a(valu('v_mul_f32', LA[qt][r], LA[qt][r], t_))
                for t in range(2):
                    sx = Sx(c, t, q2)
                    for r in range(4):
                        a(valu('v_sub_f32', sx[r], sx[r], m)); a(valu('v_exp_f32', sx[r], sx[r]))
                    a(valu('v_cvt_pk_bf16_f32', Pb[c][4*q2 + 2*t], sx[0], sx[1])); a(valu('v_cvt_pk_bf16_f32', Pb[c][4*q2 + 2*t + 1], sx[2], sx[3]))
            for m_ in at.pv_slot(0, kh, c):
                m_.rt = {}; a(m_)
    a(waitcnt(lgkm=0))
    a(sop('s_sub_u32', S(45), S(45), 1)); a(scmp('s_cmp_lg_u32', S(45), 0)); a(raw("s_cbranch_scc1 L_k3_slowloop", 'branch'))
    a(nop(15)); a(barrier())
    s.extend(wo_first())
    a(raw("s_branch L_k3_norm", 'branch'))
    for i_ in s:
        if hasattr(i_, 'rt'): i_.rt = {}
    slow, _, _ = auto_waits(s)
    slow = fix_hazards(slow, "slow")
    full = []
    for (name, seq) in seqs:
        if name == 32: full += pre_epi
        full += seq
    full += epi
    full, _, _ = auto_waits(full)
    errs = validate_tags(full)
    for e in errs[:10]: print("DATAFLOW", e, file=sys.stderr)
    parts = {}; cur = 'pro'; parts[cur] = []
    for ins in full:
        if ins.kind == 'label' and ins.text.startswith('@@'):
            cur = ins.text[2:-1]; parts[cur] = []
        else: parts[cur].append(ins)
    P = lambda j: parts[f'P{j}']
    txt = lambda j: [i.text for i in P(j)]
    def loop(first_j, n_iter, lbl, cnt):
        body = []
        for k in range(3):
            base = list(P(first_j + k))
            for it in range(1, n_iter):
                other = P(first_j + 3*it + k)
                assert len(other) == len(base), f"loop {lbl}: period {first_j+k} vs {first_j+3*it+k} length {len(base)} {len(other)}"
                for idx, (x, y) in enumerate(zip(base, other)):
                    if x.text != y.text:
                        assert x.kind == 'wait' and y.kind == 'wait' and (x.vm is None) == (y.vm is None) and (x.lgkm is None) == (y.lgkm is None), (lbl, x.text, y.text)
                        base[idx] = waitcnt(vm=None if x.vm is None else min(x.vm, y.vm), lgkm=None if x.lgkm is None else min(x.lgkm, y.lgkm))
            body += [comment(f"period {first_j+k} (+3n)")] + base
        body += [sop('s_sub_u32', cnt, cnt, 1), scmp('s_cmp_lg_u32', cnt, 0), raw(f"s_cbranch_scc1 {lbl}", 'branch')]
        errs = check_hazards(body, loop=True, name=lbl)
        for e in errs[:20]: print("HAZARD", e, file=sys.stderr)
        return [smov(cnt, n_iter), label(lbl)] + body
    out = fix_hazards(parts['pro'] + [comment("period 0")] + P(0), "pro")
    S_CNT = S(4)
    if getattr(o, 'noloop', False):
        allp = []
        for j in range(1, 33): allp += [comment(f"period {j}")] + P(j)
        out += fix_hazards(allp + parts['EPI'], "all")
        out += [raw("s_branch L_k3_end", 'branch')] + slow
        out.append(label("L_k3_end"))
        return emit(out)
    if o.side and o.g2_tail:
        out += loop(1, 5, "L_k3_loopA", S_CNT)
        mid = []
        for j in range(16, 19): mid += [comment(f"period {j}")] + P(j)
        out += fix_hazards(mid, "mid")
        out += loop(19, 3, "L_k3_loopB", S_CNT)
        tail = []
        for j in range(28, 33): tail += [comment(f"period {j}")] + P(j)
    elif o.side:
        out += loop(1, 5, "L_k3_loopA", S_CNT)
        mid = []
        for j in range(16, 22): mid += [comment(f"period {j}")] + P(j)
        out += fix_hazards(P(15)[-30:] + mid, "mid")[len(P(15)[-30:]):] if False else fix_hazards(mid, "mid")
        out += loop(22, 2, "L_k3_loopB", S_CNT)
        tail = []
        for j in range(28, 33): tail += [comment(f"period {j}")] + P(j)
    else:
        out += loop(1, 9, "L_k3_loopA", S_CNT)
        tail = []
        for j in range(28, 33): tail += [comment(f"period {j}")] + P(j)
    tm = []
    out += fix_hazards(tail + parts['EPI'], "tail")
    out += [raw("s_branch L_k3_end", 'branch')] + slow
    out.append(label("L_k3_end"))
    if getattr(o, 'verbose', False):
        for j in (2, 16, 17, 18, 21, 23, 29, 30):
            tot = 0; gap = None
            for i in P(j):
                if i.kind == 'mfma':
                    if gap is not None: tot += max(16, gap)
                    gap = 8
                elif gap is not None: gap += cost(i)
            print(f"; period {j}: est {tot + max(16, gap or 0)} cycles, {len(P(j))} instrs", file=sys.stderr)
    return emit(out)
if __name__ == "__main__":
    o = Opt(); o.verbose = True
    for kv in sys.argv[1:]:
        k, v = kv.split("="); setattr(o, k, eval(v))
    t = build(o); print(len(t.splitlines()))
```

```python
from k_common import *
from k3_attn import (NST, KBASE, VBASE, XBASE, SRD_K, SRD_V, SRD_W, SRD_WQ, SRD_WO, S_TILE, S_WOFF, S_WAVE, S_G, S_QB, QSCALE,
                     O, Q, Kf, Vf, Sb, Sx, NM, LA, Pb, ONES, KA, VA, DK, DV, addr_tr256, dma_off_256, proj_gemm)
from k2_gemm1 import tr_addr_128, dma_off_128, gelu, LOG2E
WS_GATE = 6 << 20
HMOD = 'sc1'

class Opt:
    barrier = True
    minfill = 8; maxfill = 8; early = 1.5
    sm_rel = 4; p_lead = 2; k_span = 1.0; k_lead = 6; bar_lead = 5
    timing = False; prefetch = True; side = True; fuse_ln = True; fuse_comb = True
    stamp_after = (0, 16, 17, 21, 28, 30, 32)
    def __init__(self, **kw): self.__dict__.update(kw)

SRD_W1 = S(48, 4); SRD_W2 = S(52, 4); SRD_DBG = S(56, 4); SRD_US = S(60, 4)
S_T64 = S(46); S_DT = S(47); S_SR = S(40); S_SKIP = S(37); S_N = S(38); S_SA = S(39); S_SB = S(36); S_XB = S(27); S_KVSKIP = S(23); S_TMP = S(43)
TA = [V(14 + i) for i in range(4)]; DA = [V(18 + i) for i in range(4)]; DB = [V(22 + i) for i in range(4)]
def sacc(i, j): return A(128 + (i*4+j)*4, 4)
def sfa(h, t): return A(192 + 16*h + 4*t, 4)
def sfb(h, t): return A(224 + 16*h + 4*t, 4) if h else A(208 + 4*t, 4)
def g2a(h, t): return A(192 + 16*h + 4*t, 4)
def g2b(h, t): return A(224 + 16*h + 4*t, 4)

class Attn:
    def __init__(self, opt): self.o = opt
    def qk_slot(self, j, kh, c):
        out = []
        for q2 in range(2):
            for t in range(2):
                for i in range(4):
                    qt = 2*c + q2; sx = Sx(c, t, q2)
                    m = mfma16(sx, Kf(t*4+i), Q(i, qt), NM[qt] if i == 0 else sx)
                    tag(m, wt=('S', j, kh, c), rt=[(Kf(t*4+i), ('K', j, kh))] + ([(sx, ('S', j, kh, c))] if i else []))
                    out.append(m)
        return out
    def pv_slot(self, j, kh, c):
        out = []
        z = (j == 0 and kh == 0 and not getattr(self, 'nozero', False))
        for q2 in range(2):
            p = Pb[c][4*q2:4*q2+4]; qt = 2*c + q2
            for dt in range(8):
                m = mfma16(O(dt, qt), Vf(dt), p, 0 if z else O(dt, qt))
                tag(m, rt=[(Vf(dt), ('V', j, kh)), (p, ('P', j, kh, c))]); out.append(m)
            m = mfma16(LA[qt], ONES, p, 0 if z else LA[qt]); tag(m, rt=[(p, ('P', j, kh, c))]); out.append(m)
        return out
    def sm_list(self, j, kh, c):
        regs = []
        for q2 in range(2):
            for t in range(2):
                for r in range(4): regs.append((Sx(c, t, q2)[r], Pb[c][4*q2 + 2*t + (r >> 1)]))
        ops = []
        for n, (s, p) in enumerate(regs):
            ops.append((n, tag(valu('v_exp_f32', s, s), wt=('E', j, kh, c), rt=[(s, ('S', j, kh, c))])))
            if n & 1:
                sp = regs[n-1][0]
                ops.append((n + 1.04, tag(valu('v_cvt_pk_bf16_f32', p, sp, s), wt=('P', j, kh, c), rt=[(s, ('E', j, kh, c)), (sp, ('E', j, kh, c))])))
        return [i for (t, i) in sorted(ops, key=lambda x: x[0])]
    def k_reads(self, j, kh):
        st = j % NST
        return [tag(ds_read_b128(Kf(n), KA[n & 3], KBASE + st*16384 + kh*8192 + (n >> 2)*4096), wt=('K', j, kh)) for n in range(8)]
    def v_reads(self, j, kh):
        st = j % NST
        return [tag(ds_read_tr(Vf(dt)[2*u:2*u+2], VA[dt], st*16384 + kh*8192 + u*4096), wt=('V', j, kh)) for dt in range(8) for u in range(2)]
    def kv_dma(self, st, skip=False):
        ops = []
        for n in range(8):
            if n in (0, 4):
                base = (KBASE if n == 0 else VBASE) + st*16384
                ops.append(sop('s_add_u32', 'm0', S_WOFF, base))
                if skip: ops.append(sop('s_max_u32', 'm0', 'm0', S_KVSKIP))
                ops.append(nop(0))
            if n < 4: ops.append(dma(DK[n], SRD_K, S_TILE, off=n*1024))
            else: ops.append(dma(DV[n & 1], SRD_V, S_TILE, off=(n-4)*1024))
        ops.append(sop('s_add_u32', S_TILE, S_TILE, 16384))
        return ops

    def period(self, j, first=False, last_drain=False, kv=True, kvskip=False, side_groups=(), streams=(), pre=(), post=(), vm_end=None, side_dma_list=None):
        o = self.o
        hp, hc = not first, not last_drain
        base = [self.pv_slot(j-1, 1, 0) if hp else None, self.qk_slot(j, 0, 0) if hc else None,
                self.pv_slot(j-1, 1, 1) if hp else None, self.qk_slot(j, 0, 1) if hc else None,
                self.pv_slot(j, 0, 0) if hc else None, self.qk_slot(j, 1, 0) if hc else None,
                self.pv_slot(j, 0, 1) if hc else None, self.qk_slot(j, 1, 1) if hc else None]
        lens = [18, 16]*4
        mf = []; starts = []; ends = []; side_pos = []
        for s in range(8):
            starts.append(len(mf))
            mf += base[s] if base[s] is not None else [None]*lens[s]
            ends.append(len(mf))
            for (aft, g) in side_groups:
                if aft == s:
                    side_pos.append(len(mf)); mf += g
        T = len(mf)
        self.T = T
        ops = []
        CUT0 = o.cut0; CUT1 = o.cut1
        def sm_stream(jj, kh, c, t_lo, t_hi, tpv, i0=0, i1=None, release=None):
            raw_ops = self.sm_list(jj, kh, c); n = len(raw_ops); i1 = n if i1 is None else i1
            pv = self.pv_slot(jj, kh, c); res = []
            for idx in range(i0, i1):
                ins = raw_ops[idx]
                t = t_lo + (t_hi - t_lo) * (idx - i0) / max(1, (i1 - i0)); dl = 1e9
                if ins.op == 'v_cvt_pk_bf16_f32' and tpv is not None:
                    preg = list(ins.writes)[0]
                    dl = tpv + min(q for q, m in enumerate(pv) if preg in m.reads) - o.p_lead
                res.append([t, dl, ins])
            for idx in range(len(res) - 2, -1, -1): res[idx][1] = min(res[idx][1], res[idx+1][1])
            return [Op(ins, t, release=(t_lo if release is None else release), deadline=min(dl, T - 1), stream='sm') for (t, dl, ins) in res]
        rel = o.sm_rel
        if hp:
            ops += sm_stream(j-1, 1, 0, 0, rel, starts[0], i0=CUT0, release=0)
            ops += sm_stream(j-1, 1, 1, rel, ends[1] + rel, starts[2], i0=CUT1)
        if hc:
            ops += sm_stream(j, 0, 0, ends[1] + rel, ends[3] + rel, starts[4])
            ops += sm_stream(j, 0, 1, ends[3] + rel, ends[5] + rel, starts[6])
            ops += sm_stream(j, 1, 0, ends[5] + rel, T, None, i1=CUT0)
            if CUT1: ops += sm_stream(j, 1, 1, T - 1, T, None, i1=CUT1)
        if hc:
            for (kh, ks_slot, vs_slot) in ((0, 0, 2), (1, 4, 6)):
                qk = self.qk_slot(j, kh, 0)
                for n, ins in enumerate(self.k_reads(j, kh)):
                    fu = min(q for q, m in enumerate(qk) if ins.writes & m.reads)
                    t = starts[ks_slot] + n * 18 * o.k_span / 8
                    rl = (ends[ks_slot-1] if ks_slot else -1)
                    ops.append(Op(ins, max(t, rl), release=rl - 1 if ks_slot else -1, deadline=starts[ks_slot+1] + fu - o.k_lead, stream='k'))
                pv = self.pv_slot(j, kh, 0); pvo = self.pv_slot(j, kh, 1); info = []
                for ins in self.v_reads(j, kh):
                    lu = max(q for q, m in enumerate(pvo) if ins.writes & m.reads)
                    fu = min(q for q, m in enumerate(pv) if ins.writes & m.reads)
                    nxt = starts[vs_slot+2] if vs_slot + 2 < 8 else T + 18
                    dl = nxt + fu - o.k_lead
                    if kh == 1: dl = min(dl, T - 1 - o.bar_lead)
                    info.append((starts[vs_slot] + lu + 1, dl, ins))
                info.sort(key=lambda x: x[0])
                w0 = info[0][0]; w1 = min(x[1] for x in info)
                for n, (r, dl, ins) in enumerate(info):
                    ops.append(Op(ins, max(r, w0 + (w1 - w0) * n / len(info)), release=r, deadline=dl, stream='v'))
        dstream = []
        if kv and hc:
            lst = dma_ops_with_setup(self.kv_dma((j + 2) % NST, skip=kvskip))
            pos = o.kv_pos if not side_dma_list else o.kv_pos2; n = 0
            for (ins, st) in lst:
                if ins.kind == 'dma':
                    t = pos[n]; n += 1
                else: t = pos[min(n, 7)] if n < 8 else pos[7]
                dstream.append((t, 0.0, ins, st))
        if side_dma_list:
            (lst, f0, f1, fr) = side_dma_list
            lst = dma_ops_with_setup(lst)
            nd = sum(1 for (i, _) in lst if i.kind == 'dma'); n = 0
            for (ins, st) in lst:
                dstream.append((f0 + (f1 - f0) * n / max(1, nd), fr, ins, st))
                if ins.kind == 'dma': n += 1
        for (t, fr, ins, st) in dstream:
            op = Op(ins, t * T, release=fr * T, stream='dma'); op.setup = st
            ops.append(op)
        for (name, lst) in streams:
            for (ft, fr, ins) in lst:
                ops.append(Op(ins, ft * T, release=fr * T, stream=name))
        seq, fills = list_schedule2(mf, ops, o.minfill, o.maxfill, ahead=o.early)
        self.fills = fills
        seq = list(pre) + expand(seq) + list(post)
        if getattr(o, 'diag_period', None) == j:
            marks = sorted(set(starts + side_pos + [e for e in ends] + [T - 1]))
            marks = [m for m in marks if m < T]
            new = []; k = 0
            for ins in seq:
                if ins.kind == 'mfma':
                    kk = mf.index(ins)
                    if kk in marks:
                        r = S(o.diag_base + 2*len(o.diag_marks), 2); o.diag_marks.append(kk)
                        new.append(raw(f"s_memtime {r}", 'salu', writes=[r]))
                new.append(ins)
            seq = new
        if hc:
            nvm = sum(1 for i in seq if i.kind in ('dma', 'vload', 'vstore', 'vatomic')) if vm_end is None else vm_end
            seq.append(waitcnt(vm=nvm, lgkm=0))
            if o.barrier: seq.append(barrier())
        return seq
Opt.g1_rd = (0.03, 0.3); Opt.g1_dm = (0.62, 0.95)
Opt.pf_w1_at = 8; Opt.pf_w1 = False; Opt.pf_w2 = True
Opt.prescale = False; Opt.pf_kv = False; Opt.tlb_warm = True; Opt.defer_addr = False; Opt.fast_tail = True; Opt.out_mods = ''; Opt.wq_early = False; Opt.arrive_at = 6; Opt.hpoll_at = 12; Opt.ln2_rate = 2; Opt.late2 = False; Opt.ps_from = 10; Opt.g2_tail = False; Opt.wot = False; Opt.wo_early = True; Opt.fm64 = False; Opt.g1_pos = 1; Opt.moff = 100
Opt.cut0 = 21; Opt.cut1 = 0
Opt.kv_pos = [0.147, 0.184, 0.22, 0.25, 0.647, 0.684, 0.72, 0.75]
Opt.kv_pos2 = [0.08, 0.12, 0.16, 0.20, 0.26, 0.30, 0.34, 0.38]

def side_dma(srdA, soA, strideA, srdB, soB, strideB, offsA, offsB, stage_tag, skip, modsB=""):
    o = []
    src = S_SR
    if skip:
        o.append(sop('s_max_u32', S(5), S_SR, S_SKIP)); src = S(5)
    o.append(smov('m0', src)); o.append(nop(0))
    for i in range(4): o.append(lds_dep(dma(offsA[i], srdA, soA, off=i*1024), need={f'sR{stage_tag}'}, mark={f'sL{stage_tag}'}))
    o.append(sop('s_add_u32', soA, soA, strideA))
    o.append(sop('s_add_u32', 'm0', src, 4096)); o.append(nop(0))
    for i in range(4): o.append(lds_dep(dma(offsB[i], srdB, soB, off=i*1024, mods=modsB), need={f'sR{stage_tag}'}, mark={f'sL{stage_tag}'}))
    o.append(sop('s_add_u32', soB, soB, strideB))
    return o
def spread(lst, f0, f1, rel=None):
    n = sum(1 for i in lst if cost(i) > 0) or 1
    out = []; k = 0
    for ins in lst:
        t = f0 + (f1 - f0) * k / n
        out.append((t, f0 if rel is None else rel, ins))
        if cost(ins) > 0: k += 1
    return out
def toggle_side():
    return [valu('v_xor_b32', TA[t], 8192, TA[t]) for t in range(4)] + [sop('s_xor_b32', S_SR, S_SR, 8192)]

def g1_parts(n, in_loop):
    st = n & 1
    rd = []
    for t in range(4):
        for u in range(2): rd.append(lds_dep(ds_read_tr(sfa(0, t)[2*u:2*u+2], TA[t], u*2048), need={f'sL{st}'}, mark={f'sR{st}'}))
    for t in range(4):
        for u in range(2): rd.append(lds_dep(ds_read_tr(sfb(0, t)[2*u:2*u+2], TA[t], 4096 + u*2048), need={f'sL{st}'}, mark={f'sR{st}'}))
    mf = [mfma16(sacc(ft, dt), sfa(0, ft), sfb(0, dt), sacc(ft, dt) if n else 0) for ft in range(4) for dt in range(4)]
    dm = []
    if in_loop:
        dm = [scmp('s_cmp_gt_u32', S_N, 13), I(f"s_cselect_b32 {S_SKIP}, 0x30000, 0", 'salu', reads=['scc'], writes=[S_SKIP]), sop('s_add_u32', S_N, S_N, 1)]
        dm += side_dma(SRD_W1, S_SA, 32*3584, SRD_W, S_SB, 32*1024, DA, DB, st, True, modsB=HMOD)
    elif n + 2 <= 15:
        dm = [sop('s_add_u32', S_N, S_N, 1)] + side_dma(SRD_W1, S_SA, 32*3584, SRD_W, S_SB, 32*1024, DA, DB, st, False, modsB=HMOD)
    return rd, mf, dm
def g2_parts(i):
    st = i & 1
    rd = []
    for h in range(2):
        for t in range(4):
            for u in range(2): rd.append(lds_dep(ds_read_tr(g2b(h, t)[2*u:2*u+2], TA[t], h*4096 + u*2048), need={f'sL{st}'}, mark={f'sR{st}'}))
    mfs = [[mfma16(sacc(mt, s_), g2a(h, mt), g2b(h, s_), sacc(mt, s_) if (i or h) else 0) for mt in range(4) for s_ in range(4)] for h in range(2)]
    return rd, mfs
def g2_dma(st, skip):
    return side_dma(SRD_W2, S_SA, 32*4096, SRD_W2, S_SA, 32*4096, DA, DA, st, skip)
def g2_uloads():
    o = []
    for h in range(2):
        for t in range(4): o.append(bload(4, g2a(h, t), DB[t], SRD_W, S_SB, mods="sc1"))
        o.append(sop('s_add_u32', S_SB, S_SB, 1024))
    return o

def proj_gemm2(a, s, TA_, DW, srd, SOFF, stride, S_RING, bread, uoff, name, last_pre=None, last_fill=None, dma_gap0=3, fb_base=0, hooks=None, fill=None, stage_map=None, extra_vm=None, fill_rate=2):
    NS = 3; NK = 16
    def fa(p, mt): return A(64 + 32*p + 4*mt, 4)
    def fb(p, qt): return A(fb_base + 16*p + 4*qt, 4)
    if stage_map is None: stage_map = [(TA_, st*8192, S_RING, st*8192) for st in range(NS)]
    def dma_step(n):
        o = []; st = n % NS
        (_, _, sb, madd) = stage_map[st]
        for h in range(2):
            o.append(sop('s_add_u32', 'm0', sb, madd + h*4096))
            for i in range(4):
                o.append(lds_dep(dma(DW[i], srd, SOFF, off=i*1024), need={f'{name}R{st}'}, mark={f'{name}L{st}'}))
            o.append(sop('s_add_u32', SOFF, SOFF, 16*stride))
        return o
    def reads(n):
        o = []; st = n % NS; p = n & 1
        (ta, imm, _, _) = stage_map[st]
        for qt in range(4): o.append(bread(n, qt, fb(p, qt)))
        for mt in range(8):
            for u in range(2):
                o.append(lds_dep(ds_read_tr(fa(p, mt)[2*u:2*u+2], ta[mt], imm + u*uoff), need={f'{name}L{st}'}, mark={f'{name}R{st}'}))
        return o
    s.extend(reads(0))
    for n in range(NK):
        rd = reads(n + 1) if n + 1 < NK else []
        dm = dma_step(n + 3) if n + 3 < NK else []
        if n == NK - 1:
            if last_pre: s.extend(last_pre)
            dm = list(last_fill or [])
        if extra_vm and n in extra_vm: dm = dm + extra_vm[n]
        if hooks and n in hooks: s.extend(hooks[n])
        mf = [mfma16(O(mt, qt), fa(n & 1, mt), fb(n & 1, qt), O(mt, qt) if n else 0) for mt in range(8) for qt in range(4)]
        gaps = [[] for _ in range(32)]
        g = dma_gap0
        for (ins, st_) in dma_ops_with_setup(dm):
            if ins.kind in ('dma', 'vload'):
                gaps[g - 1] += st_; gaps[g].append(ins); g = min(31, g + 2) if g + 2 <= 31 else 31
            else: gaps[min(31, g - 1)].append(ins) if g > dma_gap0 else gaps[0].append(ins)
        ev = [k for k in range(32) if not any(i.kind in ('dma', 'vload') for i in gaps[k])]
        for k, ins in enumerate(rd): gaps[ev[min(len(ev) - 1, k // 2)]].append(ins)
        for k, m in enumerate(mf):
            a(m); s.extend(sort_gap(gaps[k]))
            if fill:
                take = 0
                lim = fill_rate if not any(i.kind in ('dma', 'vload') for i in gaps[k]) else 0
                while fill and take < lim:
                    ins = fill.pop(0); a(ins)
                    if cost(ins) > 0: take += 1
    assert not fill

def proj_gemm3(a, s, srd, SOFF, VL, bread, abase, bbase, mid_fill=None, mods="sc1"):
    NK = 16; NT = 2*NK
    def fa(t, m): return A(abase + 16*(t % P3_SETS) + 4*m, 4)
    def fb(p, qt): return A(bbase + 16*p + 4*qt, 4)
    rdB = lambda t: [bread(t % NK, qt, fb(t & 1, qt)) for qt in range(4)]
    s.extend(rdB(0))
    fill = list(mid_fill or [])
    for t in range(NT):
        h, n = t // NK, t % NK
        rd = rdB(t + 1) if t + 1 < NT else []
        ld = proj3_loads(srd, SOFF, VL, t + P3_DEPTH, abase, mods) if t + P3_DEPTH < NT else []
        mf = [mfma16(O(4*h + m, qt), fa(t, m), fb(t & 1, qt), O(4*h + m, qt) if n else 0) for m in range(4) for qt in range(4)]
        gaps = [[] for _ in range(16)]
        g = 3
        for ins in ld:
            if ins.kind == 'vload':
                gaps[min(15, g)].append(ins); g += 3
            else: gaps[min(15, max(0, g - 1))].append(ins)
        for k, ins in enumerate(rd): gaps[1 + 3*k].append(ins)
        for k, m in enumerate(mf):
            a(m); s.extend(sort_gap(gaps[k]))
            if t >= NT - P3_DEPTH and fill:
                for _ in range(1 if gaps[k] else 2):
                    if fill: a(fill.pop(0))
                while fill and cost(fill[0]) == 0: a(fill.pop(0))
    s.extend(fill)
P3_SETS = 8; P3_DEPTH = 7
def proj3_loads(srd, SOFF, VL, t, abase, mods="sc1"):
    o = []
    for m in range(4): o.append(bload(4, A(abase + 16*(t % P3_SETS) + 4*m, 4), VL, srd, SOFF, off=m*1024, mods=mods))
    o.append(sop('s_add_u32', SOFF, SOFF, 32768) if (t % 16) != 15 else sop('s_sub_u32', SOFF, SOFF, 15*32768 - 4096))
    return o

def build(opt=None):
    o = opt or Opt()
    at = Attn(o)
    STP = Stamps(o.timing, 3); STP.cyc = getattr(o, 'cyc', False)
    s = []; a = s.append
    l = V(0)
    s.extend(STP())
    if getattr(o, 'dbgtime', False): a(raw('s_memrealtime s[94:95]', 'smem', writes=[S(94, 2)]))
    a(sload(S(4, 2), ARG_K)); a(sload(S(6, 2), ARG_V)); a(sload(S(22, 2), ARG_WS))
    a(sload(S(36, 2), ARG_WQ)); a(sload(S(56, 2), ARG_WO))
    a(sload(S(62, 2), ARG_W1)); a(sload(S(60, 2), ARG_W2)); a(sload(S(58, 2), ARG_DBG))
    if o.fuse_ln: a(sload(S(100, 2), ARG_X))
    a(raw("s_cmp_ge_u32 s2, 256")); a(raw("s_cbranch_scc1 L_k3_end", 'branch'))
    a(valu('v_lshrrev_b32', V(1), 6, V(0)))
    a(readfirstlane(S_WAVE, V(1)))
    a(valu('v_and_b32', l, 63, l))
    a(waitcnt(lgkm=0))
    a(raw("s_and_b32 s25, s2, 7", writes=[S_G])); a(raw("s_lshr_b32 s26, s2, 3", writes=[S_QB]))
    S_RING = S(41); S_SO = S(42); S_T = S(43)
    SRD_X = S(96, 4)
    XP = V(48, 64)
    if o.fuse_ln:
        s.extend(make_srd(SRD_X, S(100, 2), 2 << 20))
        a(valu('v_and_b32', V(1), 15, l)); a(valu('v_lshlrev_b32', V(1), 10, V(1)))
        a(valu('v_lshrrev_b32', V(2), 4, l)); a(valu('v_lshl_add_u32', V(1), V(2), 4, V(1)))
        a(raw("s_lshl_b32 s42, s26, 6", writes=[S_SO])); a(raw("s_lshl_b32 s43, s24, 4", writes=[S_T]))
        a(raw("s_add_u32 s42, s42, s43", writes=[S_SO])); a(raw("s_lshl_b32 s42, s42, 10", writes=[S_SO]))
        if getattr(o, 'fine2', False): s.extend(STP())
        for i in range(16): a(bload(4, XP[4*i:4*i+4], V(1), SRD_X, S_SO, off=64*i))
        if getattr(o, 'fine2', False): s.extend(STP())
    s.extend(make_srd(SRD_WQ, S(36, 2), 512*4096*2))
    a(valu('v_lshlrev_b32', V(7), 4, l))
    if o.prefetch:
        a(raw("s_lshl_b32 s42, s26, 4", writes=[S_SO])); a(raw("s_lshl_b32 s43, s24, 2", writes=[S_T]))
        a(raw("s_add_u32 s42, s42, s43", writes=[S_SO])); a(raw("s_lshl_b32 s42, s42, 13", writes=[S_SO]))
        a(raw("s_lshl_b32 s43, s25, 10", writes=[S_T])); a(raw("s_add_u32 s42, s42, s43", writes=[S_SO]))
        for n in range(4):
            a(bload(4, A(192 + 4*n, 4), V(7), SRD_WQ, S_SO)); a(sop('s_add_u32', S_SO, S_SO, 8192))
    a(raw("s_lshl_b32 s27, s25, 19", writes=[S(27)]))
    a(raw("s_sub_u32 s40, 0x400000, s27", writes=[S(40)]))
    s.extend(make_srd(SRD_K, S(4, 2), S(40), add=S(27))); s.extend(make_srd(SRD_V, S(6, 2), S(40), add=S(27)))
    s.extend(make_srd(SRD_W, S(22, 2), WS_END))
    s.extend(make_srd(SRD_WO, S(56, 2), 4096*512*2))
    a(raw("s_lshr_b32 s46, s26, 3", writes=[S_T64])); a(raw("s_lshl_b32 s46, s46, 3", writes=[S_T64])); a(raw("s_add_u32 s46, s46, s25", writes=[S_T64]))
    a(raw("s_and_b32 s47, s26, 7", writes=[S_DT]))
    a(raw("s_cmp_lt_u32 s46, 28"))
    a(raw(f"s_cselect_b32 s44, {2048*1792*2}, 0", writes=[S(44)]))
    a(raw(f"s_cselect_b32 s45, {WS_END}, 0", writes=[S(45)]))
    s.extend(make_srd(SRD_W1, S(62, 2), S(44)))
    s.extend(make_srd(SRD_W2, S(60, 2), 1792*2048*2))
    s.extend(make_srd(SRD_DBG, S(58, 2), 256))
    s.extend(make_srd(SRD_US, S(22, 2), S(45)))
    if o.pf_kv:
        a(valu('v_and_b32', V(2), 15, l)); a(raw("s_lshl_b32 s44, s26, 4", writes=[S(44)])); a(valu('v_add_u32', V(2), S(44), V(2))); a(valu('v_lshlrev_b32', V(2), 7, V(2)))
        a(I("v_cmp_gt_u32 vcc, 16, v0", 'valu', reads=[V(0)], writes=['vcc'])); a(nop(1))
        a(I(f"v_cndmask_b32 v2, -1, v2, vcc", 'valu', reads=[V(2), 'vcc'], writes=[V(2)]))
        a(bload(1, A(209), V(2), SRD_K, 0)); a(bload(1, A(210), V(2), SRD_V, 0))
    a(raw("s_lshl_b32 s21, s24, 12", writes=[S_WOFF]))
    a(raw("s_mul_i32 s41, s24, 24576", writes=[S_RING]))
    for r in range(4): a(valu('v_mov_b32', ONES[r], 0x3F803F80))
    if not o.fuse_ln:
        a(raw("s_lshl_b32 s42, s26, 6", writes=[S_SO])); a(raw("s_lshl_b32 s43, s24, 4", writes=[S_T]))
        a(raw("s_add_u32 s42, s42, s43", writes=[S_SO])); a(raw("s_lshl_b32 s42, s42, 10", writes=[S_SO]))
        a(raw("s_lshl_b32 s43, s24, 14", writes=[S_T])); a(raw(f"s_add_u32 s43, s43, {XBASE}", writes=[S_T]))
        for n in range(16):
            if n % 4 == 0: a(smov('m0', S_T))
            a(valu('v_xor_b32', V(14 + (n & 3)), n << 4, V(7)))
            a(lds_dep(dma(V(14 + (n & 3)), SRD_W, S_SO, off=(n & 3)*1024), mark={'XN'}))
            if n % 4 == 3:
                a(sop('s_add_u32', S_SO, S_SO, 4096)); a(sop('s_add_u32', S_T, S_T, 4096))
    PTA = [V(32 + i) for i in range(8)]; XA = [V(40 + i) for i in range(4)]; DW = [V(44 + i) for i in range(4)]
    dma_off_256(a, l, DW, 8192, 'q', S_T)
    a(raw("s_lshl_b32 s42, s25, 2", writes=[S_SO])); a(raw("s_add_u32 s42, s42, s24", writes=[S_SO]))
    a(raw("s_lshl_b32 s42, s42, 8", writes=[S_SO]))
    def wq_stage(n):
        o_ = []
        for h in range(2):
            o_ += [sop('s_add_u32', 'm0', S_RING, n*8192 + h*4096), nop(0)]
            for i in range(4): o_.append(lds_dep(dma(DW[i], SRD_WQ, S_SO, off=i*1024), need={f'qR{n}'}, mark={f'qL{n}'}))
            o_.append(sop('s_add_u32', S_SO, S_SO, 16*8192))
        return o_
    a(valu('v_mov_b32', V(6), S_RING))
    addr_tr256(a, l, PTA, V(6), 8)
    a(valu('v_and_b32', V(1), 15, l)); a(valu('v_lshrrev_b32', V(2), 4, l))
    a(valu('v_lshlrev_b32', V(3), 10, V(1))); a(valu('v_add_u32', V(3), XBASE, V(3)))
    for k in range(4):
        a(valu('v_add_u32', V(4), 4*k, V(2))); a(valu('v_xor_b32', V(4), V(4), V(1)))
        a(valu('v_lshl_add_u32', XA[k], V(4), 4, V(3)))
    TV = (lambda k: V(96 + k)) if o.defer_addr else (lambda k: V(k) if k < 8 else V(26))
    s_main0, a_main0 = s, a
    deferred = []
    if o.defer_addr:
        s = deferred; a = deferred.append
    a(valu('v_lshrrev_b32', TV(2), 4, l)); a(valu('v_and_b32', TV(3), 15, l))
    for i in range(4):
        a(valu('v_add_u32', TV(4), 4*i, TV(2))); a(valu('v_xor_b32', TV(4), TV(4), TV(3)))
        a(valu('v_lshlrev_b32', TV(4), 4, TV(4))); a(valu('v_lshl_add_u32', KA[i], TV(3), 8, TV(4)))
    a(valu('v_lshrrev_b32', TV(4), 2, TV(3))); a(valu('v_and_b32', TV(5), 3, l))
    a(valu('v_lshl_add_u32', TV(7), TV(2), 2, TV(4)))
    a(valu('v_and_b32', TV(1), 7, TV(7))); a(valu('v_lshlrev_b32', TV(1), 1, TV(1)))
    a(valu('v_lshlrev_b32', TV(7), 8, TV(7)))
    a(valu('v_and_b32', TV(6), 1, TV(5))); a(valu('v_lshl_add_u32', TV(7), TV(6), 3, TV(7)))
    a(valu('v_add_u32', TV(7), VBASE, TV(7)))
    a(valu('v_lshrrev_b32', TV(6), 1, TV(5)))
    for dt in range(8):
        a(valu('v_add_u32', TV(5), 2*dt, TV(6))); a(valu('v_xor_b32', TV(5), TV(5), TV(1)))
        a(valu('v_lshl_add_u32', VA[dt], TV(5), 4, TV(7)))
    a(valu('v_lshlrev_b32', TV(5), 8, TV(2))); a(valu('v_add_u32', TV(5), S_WOFF, TV(5)))
    for n in range(4):
        a(valu('v_add_u32', TV(6), 4*n, TV(2))); a(valu('v_xor_b32', TV(6), TV(6), TV(3)))
        a(valu('v_lshl_add_u32', DK[n], TV(6), 4, TV(5)))
    for n in range(2):
        a(valu('v_add_u32', TV(6), 4*n, TV(2))); a(valu('v_lshlrev_b32', TV(6), 1, TV(6)))
        a(valu('v_xor_b32', TV(6), TV(6), TV(3))); a(valu('v_lshl_add_u32', DV[n], TV(6), 4, TV(5)))
    a(raw("s_lshl_b32 s27, s24, 14", writes=[S_XB])); a(raw(f"s_add_u32 s27, s27, {XBASE}", writes=[S_XB]))
    a(smov(S_SR, S_XB))
    a(valu('v_mov_b32', TV(8), S_XB))
    tr_addr_128(a, l, TA, TV(8), TV(1), TV(2), TV(3), TV(4))
    dma_off_128(a, l, DA, 3584, TV(1), TV(2), TV(3), s_tmp=S_T)
    dma_off_128(a, l, DB, 1024, TV(1), TV(2), TV(3), s_tmp=S_T)
    a(raw("s_lshl_b32 s44, s24, 9", writes=[S(44)]))
    a(raw("s_mul_i32 s39, s44, 3584", writes=[S_SA])); a(raw("s_lshl_b32 s45, s46, 7", writes=[S(45)])); a(raw("s_add_u32 s39, s39, s45", writes=[S_SA]))
    a(raw("s_lshl_b32 s36, s44, 10", writes=[S_SB])); a(raw("s_lshl_b32 s45, s47, 7", writes=[S(45)])); a(raw("s_add_u32 s36, s36, s45", writes=[S_SB]))
    a(raw(f"s_add_u32 s36, s36, {WS_H}", writes=[S_SB]))
    s, a = s_main0, a_main0
    a(smov(S_N, 0)); a(smov(S_SKIP, 0))
    if getattr(o, 'fine', False): s.extend(STP())
    s.extend(wq_stage(0))
    if getattr(o, 'fine', False):
        a(lds_dep(nop(0), need=set(XP.regs()))); s.extend(STP())
    def pk(op, d, x, y, z=None, mods=""):
        srcs = [x, y] + ([z] if z is not None else [])
        return I(f"{op} {d}, " + ", ".join(str(t) for t in srcs) + (" " + mods if mods else ""), 'valu', reads=srcs, writes=[d], op=op)
    if o.fuse_ln:
        F = lambda i, e: V(128 + 8*i + e)
        D1 = V(28, 4); D2 = V(4, 4)
        for i in range(16):
            a(mfma16(D1, ONES, XP[4*i:4*i+4], D1 if i else 0)); a(mfma16(D2, XP[4*i:4*i+4], XP[4*i:4*i+4], D2 if i else 0))
            for q in range(4):
                a(valu('v_lshlrev_b32', F(i, 2*q), 16, XP[4*i+q])); a(valu('v_and_b32', F(i, 2*q+1), 0xffff0000, XP[4*i+q]))
        if o.wq_early: s.extend(wq_stage(1)); s.extend(wq_stage(2))
        a(valu('v_and_b32', V(1), 3, l))
        for r in (2, 1, 0):
            a(I(f"v_cmp_eq_u32 vcc, {r}, v1", 'valu', reads=[V(1)], writes=['vcc']))
            a(I(f"v_cndmask_b32 v7, v7, {D2[r]}, vcc", 'valu', reads=[V(7), D2[r], 'vcc'], writes=[V(7)]))
        a(valu('v_and_b32', V(1), 15, l)); a(valu('v_lshrrev_b32', V(2), 2, V(1)))
        a(valu('v_lshl_add_u32', V(2), V(2), 4, V(1))); a(valu('v_lshlrev_b32', V(2), 2, V(2)))
        a(I("ds_bpermute_b32 v3, v2, v7", 'ds_read', reads=[V(2), V(7)], writes=[V(3)]))
        MEAN = V(28); RS = V(2); NB = V(3)
        a(valu('v_mul_f32', MEAN, 1.0/512, MEAN))
        a(valu('v_mul_f32', V(3), 1.0/512, V(3)))
        a(valu('v_fma_f32', V(3), '-v28', MEAN, V(3)))
        a(valu('v_max_f32', V(3), 0, V(3)))
        a(valu('v_add_f32', V(3), 1e-5, V(3)))
        a(valu('v_rsq_f32', RS, V(3)))
        if o.prescale: a(valu('v_mul_f32', RS, QSCALE, RS))
        a(valu('v_mul_f32', NB, MEAN, RS)); a(valu('v_sub_f32', NB, 0, NB))
        for i in range(16):
            for e in range(8): a(valu('v_fma_f32', F(i, e), F(i, e), RS, NB))
        a(valu('v_and_b32', V(4), 15, l)); a(valu('v_lshrrev_b32', V(5), 4, l))
        a(raw("s_lshl_b32 s43, s24, 14", writes=[S_T])); a(raw(f"s_add_u32 s43, s43, {XBASE}", writes=[S_T]))
        a(valu('v_lshlrev_b32', V(6), 10, V(4))); a(valu('v_add_u32', V(6), S_T, V(6)))
        WA = [V(28 + k) for k in range(4)]
        for k in range(4):
            a(valu('v_add_u32', V(7), 4*k, V(5))); a(valu('v_xor_b32', V(7), V(7), V(4))); a(valu('v_lshl_add_u32', WA[k], V(7), 4, V(6)))
        for i in range(16):
            for q in range(4): a(valu('v_cvt_pk_bf16_f32', XP[4*i+q], F(i, 2*q), F(i, 2*q+1)))
            a(ds_write(4, WA[i & 3], XP[4*i:4*i+4], off=(i >> 2)*256))
        if getattr(o, 'fine', False): s.extend(STP())
        a(waitcnt(lgkm=0)); a(barrier())
        if getattr(o, 'fine', False): s.extend(STP())
    else:
        a(waitcnt(vm=8)); a(barrier())
    if not (o.fuse_ln and o.wq_early): s.extend(wq_stage(1)); s.extend(wq_stage(2))
    if o.fuse_ln:
        s_main, a_main = s, a
        ln2 = []; s = ln2; a = ln2.append
        R0 = [V(64 + i) for i in range(8)]; R1 = [V(72 + i) for i in range(8)]
        PK = [V(80, 4), V(84, 4)]
        a(raw("s_lshl_b32 s44, s25, 3", writes=[S(44)])); a(raw("s_lshl_b32 s45, s24, 1", writes=[S(45)])); a(raw("s_add_u32 s44, s44, s45", writes=[S(44)]))
        for k in range(2):
            a(sop('s_add_u32', S(45), S(44), k)); a(sop('s_and_b32', S(5), S(45), 15)); a(raw("s_lshl_b32 s5, s5, 4", writes=[S(5)]))
            a(raw("s_lshl_b32 s45, s45, 10", writes=[S(45)])); a(raw(f"s_add_u32 s45, s45, {XBASE}", writes=[S(45)]))
            a(valu('v_lshlrev_b32', V(94), 4, l)); a(valu('v_xor_b32', V(94), S(5), V(94))); a(valu('v_add_u32', V(94), S(45), V(94)))
            a(ds_read_b128(PK[k], V(94)))
        RR = [R0, R1]; SM = [V(88), V(90)]; TT = [V(89), V(91)]; QQ = [V(92), V(93)]
        for k in range(2):
            for q in range(4):
                a(valu('v_lshlrev_b32', RR[k][2*q], 16, PK[k][q])); a(valu('v_and_b32', RR[k][2*q+1], 0xffff0000, PK[k][q]))
        def both(f):
            x0, x1 = f(0), f(1)
            for u, v_ in zip(x0, x1): a(u); a(v_)
        both(lambda k: [valu('v_add_f32', SM[k], RR[k][0], RR[k][1])] + [valu('v_add_f32', SM[k], SM[k], RR[k][e]) for e in range(2, 8)])
        both(lambda k: wave_sum(SM[k], TT[k]))
        both(lambda k: [valu('v_mul_f32', SM[k], 1.0/512, SM[k])] + [valu('v_sub_f32', RR[k][e], RR[k][e], SM[k]) for e in range(8)])
        both(lambda k: [valu('v_mul_f32', QQ[k], RR[k][0], RR[k][0])] + [valu('v_fmac_f32', QQ[k], RR[k][e], RR[k][e], dst_read=True) for e in range(1, 8)])
        both(lambda k: wave_sum(QQ[k], TT[k]))
        both(lambda k: [valu('v_mov_b32', TT[k], 1e-5 * (QSCALE*QSCALE if o.prescale else 1.0)), valu('v_fmac_f32', TT[k], 1.0/512, QQ[k], dst_read=True), valu('v_rsq_f32', TT[k], TT[k])] +
                       [valu('v_mul_f32', RR[k][e], RR[k][e], TT[k]) for e in range(8)] + [valu('v_cvt_pk_bf16_f32', PK[k][q], RR[k][2*q], RR[k][2*q+1]) for q in range(4)])
        a(raw("s_lshl_b32 s45, s26, 6", writes=[S(45)])); a(raw("s_add_u32 s45, s45, s44", writes=[S(45)])); a(raw("s_lshl_b32 s45, s45, 10", writes=[S(45)]))
        a(raw(f"s_add_u32 s45, s45, {WS_H}", writes=[S(45)]))
        a(valu('v_lshlrev_b32', V(94), 4, l))
        a(lds_dep(bstore(4, PK[0], V(94), SRD_W, S(45), mods="sc1"), mark={'HS'}))
        a(lds_dep(bstore(4, PK[1], V(94), SRD_W, S(45), off=1024, mods="sc1"), mark={'HS'}))
        a(valu('v_lshlrev_b32', V(95), 25, l)); a(valu('v_mov_b32', V(96), 0))
        a(raw("s_and_b32 s45, s2, 127", writes=[S(45)])); a(raw("s_lshl_b32 s45, s45, 8", writes=[S(45)])); a(raw(f"s_add_u32 s45, s45, {WS_CNT}", writes=[S(45)]))
        a(lds_dep(bstore(1, V(96), V(95), SRD_W, S(45), mods="sc1"), mark={'HS'}))
        s, a = s_main, a_main
    s.extend(STP())
    def xread(n, qt, dst): return ds_read_b128(dst, XA[n & 3], (n >> 2)*256 + qt*16384)
    kv0 = [smov(S_TILE, 0)] + at.kv_dma(0)
    later = []; later2 = []
    if o.side: later += side_dma(SRD_W1, S_SA, 32*3584, SRD_W, S_SB, 32*1024, DA, DB, 0, False, modsB=HMOD) + [sop('s_xor_b32', S_SR, S_SR, 8192)]
    later2 += at.kv_dma(1)
    if o.side: later2 += side_dma(SRD_W1, S_SA, 32*3584, SRD_W, S_SB, 32*1024, DA, DB, 1, False, modsB=HMOD) + [sop('s_xor_b32', S_SR, S_SR, 8192)]
    if not o.late2: later += later2; later2 = []
    hooks = {}
    last_pre = [waitcnt(lgkm=0)]
    if o.fuse_ln:
        arrive = [lds_dep(nop(0), need={'HS'}), barrier(),
                  valu('v_mov_b32', V(4), 1), valu('v_lshlrev_b32', V(5), 25, l),
                  raw("s_and_b32 s44, s2, 3", writes=[S(44)]), raw("s_lshl_b32 s44, s44, 6", writes=[S(44)]),
                  raw("s_cmp_eq_u32 s24, 0"), raw("s_cselect_b32 s44, s44, 0x1000", reads=['scc'], writes=[S(44)]),
                  I(f"buffer_atomic_add v4, v5, {SRD_DBG}, s44 offen sc1", 'vatomic', reads=[V(4), V(5), SRD_DBG, S(44)], writes=[])]
        hooks[o.arrive_at] = arrive
        if o.prefetch and o.side and o.pf_w1:
            hooks[o.pf_w1_at] = [raw("s_lshl_b32 s44, s47, 2", writes=[S(44)]), raw("s_add_u32 s44, s44, s24", writes=[S(44)]), raw("s_lshl_b32 s44, s44, 6", writes=[S(44)]),
                        valu('v_add_u32', V(2), S(44), l), smov(S(44), 3584), valu('v_mul_lo_u32', V(2), V(2), S(44)),
                        raw("s_lshl_b32 s44, s46, 7", writes=[S(44)]), bload(1, A(208), V(2), SRD_W1, S(44))]
        hooks[o.hpoll_at] = [valu('v_and_b32', V(1), 3, l), valu('v_lshlrev_b32', V(1), 6, V(1)), bload(1, V(6), V(1), SRD_DBG, 0, mods="sc1")]
        chk = lambda: [I("v_cmp_le_u32 vcc, 64, v6", 'valu', reads=[V(6)], writes=['vcc']), nop(3), raw("s_cmp_eq_u64 vcc, -1", reads=['vcc'])]
        last_pre += [smov(S(45), 0), label("L_k3_hpoll")] + chk() + [raw("s_cbranch_scc1 L_k3_hpollok", 'branch'),
                     raw("s_sleep 4"), bload(1, V(6), V(1), SRD_DBG, 0, mods="sc1"), waitcnt(vm=0),
                     sop('s_add_u32', S(45), S(45), 1), scmp('s_cmp_lt_u32', S(45), 0x40000), raw("s_cbranch_scc1 L_k3_hpoll", 'branch'), label("L_k3_hpollok")]
    if getattr(o, 'qdiag', False):
        for n_ in (2, 4, 6, 8, 10, 12, 14): hooks[n_] = STP() + hooks.get(n_, [])
    last_pre += [barrier()]
    proj_gemm2(a, s, PTA, DW, SRD_WQ, S_SO, 8192, S_RING, xread, 1024, 'q', last_pre=last_pre, last_fill=kv0, hooks=hooks, fill=((ln2 + deferred) if o.fuse_ln else None), fill_rate=o.ln2_rate)
    s.extend(STP())
    a(sload(S(96, 2), ARG_B1)); a(sload(S(98, 2), ARG_B2)); a(sload(S(100, 2), ARG_OUT))
    a(smov(S(44), QSCALE))
    qpost = []
    for i in range(4):
        for qt in range(4):
            x, y = O(2*i, qt), O(2*i+1, qt)
            b_ = qpost.append
            if not (o.prescale and o.fuse_ln):
                for r in range(4):
                    b_(valu('v_mul_f32', x[r], S(44), x[r])); b_(valu('v_mul_f32', y[r], S(44), y[r]))
            T4 = V(48 + 4*((i*4+qt) & 1), 4)
            X0, X1, Y0, Y1 = T4[0], T4[1], T4[2], T4[3]
            b_(valu('v_cvt_pk_bf16_f32', X0, x[0], x[1])); b_(valu('v_cvt_pk_bf16_f32', X1, x[2], x[3]))
            b_(valu('v_cvt_pk_bf16_f32', Y0, y[0], y[1])); b_(valu('v_cvt_pk_bf16_f32', Y1, y[2], y[3]))
            b_(permlane32_swap(X0, Y0)); b_(permlane32_swap(X1, Y1))
            b_(permlane16_swap(X0, Y0)); b_(permlane16_swap(X1, Y1))
            q = Q(i, qt)
            b_(valu('v_accvgpr_write_b32', q[0], X0)); b_(valu('v_accvgpr_write_b32', q[1], X1))
            b_(valu('v_accvgpr_write_b32', q[2], Y0)); b_(valu('v_accvgpr_write_b32', q[3], Y1))
    grp = group_dma(later)
    step = max(1, len(qpost) // (len(grp) + 1)); gi = 0
    for k, ins in enumerate(qpost):
        a(ins)
        if k % step == step - 1 and gi < len(grp):
            s.extend(expand([grp[gi]])); gi += 1
            while gi < len(grp) and not isinstance(grp[gi], Grp):
                a(grp[gi]); gi += 1
    for g_ in grp[gi:]: s.extend(expand([g_]))
    s.extend(STP())
    a(waitcnt(vm=((8 if o.side else 0) if o.late2 else (24 if o.side else 8)))); a(barrier())
    MX = [V(18 + 0), V(19), V(20), V(21)] if False else [V(28), V(29), V(30), V(31)]
    g2l = group_dma(later2)
    for kh in range(2 if o.fm64 else 1):
        s.extend(at.k_reads(0, kh))
        for c in range(2):
            for q2 in range(2):
                for t in range(2):
                    for i in range(4):
                        a(mfma16(Sx(c, t, q2), Kf(t*4+i), Q(i, 2*c+q2), 0 if i == 0 else Sx(c, t, q2)))
                        if g2l and (i & 1):
                            s.extend(expand([g2l.pop(0)]))
                            while g2l and not isinstance(g2l[0], Grp): a(g2l.pop(0))
        for qt in range(4):
            c, q2 = qt >> 1, qt & 1
            s0, s1 = Sx(c, 0, q2), Sx(c, 1, q2); m = MX[qt]
            if kh == 0: a(valu('v_max3_f32', m, s0[0], s0[1], s0[2]))
            else: a(valu('v_max3_f32', m, s0[0], s0[1], m)); a(valu('v_max_f32', m, m, s0[2]))
            a(valu('v_max3_f32', m, m, s0[3], s1[0])); a(valu('v_max3_f32', m, m, s1[1], s1[2])); a(valu('v_max_f32', m, m, s1[3]))
    s.extend(expand(g2l))
    for qt in range(4):
        m = MX[qt]; t = V(5)
        a(valu('v_mov_b32', t, m)); a(permlane16_swap(m, t)); a(valu('v_max_f32', m, m, t))
        a(valu('v_mov_b32', t, m)); a(permlane32_swap(m, t)); a(valu('v_max_f32', m, m, t))
        for r in range(4): a(valu('v_sub_f32', NM[qt][r], float(-o.moff), m))
    s.extend(STP())
    if o.fuse_ln:
        i_st = max(i for i, x in enumerate(s) if 'HS' in getattr(x, 'mark', set()))
        i_ar = min(i for i, x in enumerate(s) if 'HS' in getattr(x, 'need', set()))
        assert i_st < i_ar, 'h stores must be issued before the arrival'
    pro = s
    B1 = S(28, 4); B2 = S(32 - 4, 4)
    def scratch_write():
        o_ = [valu('v_lshlrev_b32', V(27), 4, l), valu('v_add_u32', V(26), S_XB, V(27))]
        for i in range(4):
            for j in range(4): o_.append(ds_write(4, V(26), sacc(i, j), off=(i*4+j)*1024))
        o_ += [raw("s_lshl_b32 s43, s24, 10", writes=[S_TMP]), raw(f"s_add_u32 s43, s43, {XBASE}", writes=[S_TMP]), valu('v_add_u32', V(27), S_TMP, V(27))]
        return o_
    PS = [[V(18, 2), V(20, 2), V(22, 2), V(24, 2)], [V(28, 2), V(30, 2), V(2, 2), V(4, 2)]]
    def unit_reads(u):
        i, h = u >> 1, u & 1
        return [ds_read_b64(PS[u & 1][w], V(27), w*16384 + i*4096 + 8*h) for w in range(4)]
    def unit_sum(u, e):
        P_ = PS[u & 1]; x = P_[3][e]
        return [valu('v_add_f32', P_[0][e], P_[0][e], P_[1][e]), valu('v_add_f32', x, x, P_[2][e]), valu('v_add_f32', x, x, P_[0][e])], x
    per = {}
    def side_spec(j):
        kw = dict(first=(j == 0), last_drain=(j == 32), kv=(j <= 29))
        if not o.side: return kw
        if j <= 15:
            rd, mf, dm = g1_parts(j, in_loop=(j >= 1))
            kw['side_groups'] = [(5, mf)] if o.g1_pos == 0 else ([(3, mf[:8]), (5, mf[8:])] if o.g1_pos == 1 else [(7, mf)] if o.g1_pos == 2 else [(1, mf[:4]), (3, mf[4:8]), (5, mf[8:12]), (6, mf[12:])])
            if getattr(o, 'x_noread', False): rd = []
            if getattr(o, 'x_nodma', False): dm = [i for i in dm if i.kind != 'dma' and 'm0' not in i.writes]
            kw['streams'] = [('srd', spread(rd, o.g1_rd[0], o.g1_rd[1]))]
            if dm: kw['side_dma_list'] = (dm, o.g1_dm[0], o.g1_dm[1], 0.5)
            kw['post'] = toggle_side()
        elif j == 16:
            pre = make_srd(B1, S(96, 2), 1792*2)
            bl = [valu('v_lshrrev_b32', V(1), 4, l), valu('v_lshlrev_b32', V(1), 3, V(1)), raw("s_lshl_b32 s44, s46, 7", writes=[S(44)])]
            bl += [bload(2, A(192 + 2*ft, 2), V(1), B1, S(44), off=32*ft) for ft in range(4)]
            kw['pre'] = pre
            pf = []
            if o.prefetch and o.pf_w2 and not o.g2_tail:
                pf = [raw("s_mul_i32 s44, s47, 224", writes=[S(44)]), raw("s_mul_i32 s45, s24, 56", writes=[S(45)]), raw("s_add_u32 s44, s44, s45", writes=[S(44)]),
                      valu('v_add_u32', V(2), S(44), l), valu('v_lshlrev_b32', V(2), 12, V(2)), raw("s_lshl_b32 s45, s46, 7", writes=[S(45)]),
                      bload(1, A(200), V(2), SRD_W2, S(45))]
            if o.wot:
                pf += [raw("s_lshl_b32 s3, s25, 4", writes=[S(3)]), raw("s_lshr_b32 s5, s26, 1", writes=[S(5)]), raw("s_add_u32 s3, s3, s5", writes=[S(3)]),
                       raw("s_lshl_b32 s3, s3, 15", writes=[S(3)]), raw("s_and_b32 s5, s26, 1", writes=[S(5)]), raw("s_lshl_b32 s5, s5, 9", writes=[S(5)]),
                       raw("s_add_u32 s3, s3, s5", writes=[S(3)]), raw("s_lshl_b32 s5, s24, 7", writes=[S(5)]), raw("s_add_u32 s3, s3, s5", writes=[S(3)]),
                       valu('v_and_b32', V(3), 31, l), valu('v_lshlrev_b32', V(3), 10, V(3)), bload(1, A(201), V(3), SRD_WO, S(3))]
            kw['streams'] = [('sw', spread(scratch_write(), 0.1, 0.7)), ('sb', spread(bl, 0.05, 0.1)), ('spf', [(0.15, 0.12, i) for i in pf])]
        elif j == 17:
            comp = [smov(S(45), -2.0*0.7978845608028654*LOG2E*0.044715), valu('v_mov_b32', V(1), -2.0*0.7978845608028654*LOG2E)]
            comp += [raw("s_lshl_b32 s43, s47, 2", writes=[S_TMP]), raw("s_add_u32 s43, s43, s24", writes=[S_TMP]), raw("s_mul_i32 s43, s43, 56", writes=[S_TMP]),
                     raw("s_lshl_b32 s39, s46, 1", writes=[S_SA]), raw("s_add_u32 s43, s43, s39", writes=[S_TMP]), raw("s_lshl_b32 s43, s43, 10", writes=[S_TMP]),
                     raw(f"s_add_u32 s43, s43, {WS_U}", writes=[S_TMP]), valu('v_lshlrev_b32', V(26), 4, l)]
            OUTA = A(240, 8)
            comp += unit_reads(0)
            for u in range(8):
                ft, h = u >> 1, u & 1
                if u + 1 < 8: comp += unit_reads(u + 1)
                comp.append(valu('v_accvgpr_read_b32', V(6), A(192 + 2*ft + h)))
                xs = []
                for e in range(2):
                    sm_, x = unit_sum(u, e); comp += sm_; xs.append(x)
                    comp.append(valu('v_and_b32', V(7), 0xffff0000, V(6)) if e else valu('v_lshlrev_b32', V(7), 16, V(6)))
                    comp.append(valu('v_add_f32', x, x, V(7)))
                    comp += [valu('v_mul_f32', V(7), x, x), valu('v_fma_f32', V(7), V(7), S(45), V(1)), valu('v_mul_f32', V(7), V(7), x), valu('v_exp_f32', V(7), V(7)),
                             valu('v_add_f32', V(7), 1.0, V(7)), valu('v_rcp_f32', V(7), V(7)), valu('v_mul_f32', x, x, V(7))]
                comp += [valu('v_cvt_pk_bf16_f32', V(6), xs[0], xs[1]), valu('v_accvgpr_write_b32', OUTA[u], V(6))]
                if u in (3, 7): comp.append(lds_dep(bstore(4, OUTA[u-3:u+1], V(26), SRD_US, S_TMP, off=(u >> 2)*1024, mods="sc1"), mark={'US'}))
            kw['streams'] = [('scomp', spread(comp, 0.0, 0.98))]
        elif o.g2_tail and j >= 18:
            if j == 18:
                sig = [valu('v_mov_b32', V(4), 1), valu('v_lshlrev_b32', V(5), 25, l),
                       raw("s_lshl_b32 s44, s47, 2", writes=[S(44)]), raw("s_add_u32 s44, s44, s24", writes=[S(44)]), raw("s_lshl_b32 s44, s44, 8", writes=[S(44)]),
                       raw(f"s_add_u32 s44, s44, {WS_CNT}", writes=[S(44)]),
                       lds_dep(I(f"buffer_atomic_add v4, v5, {SRD_US}, s44 offen sc1", 'vatomic', reads=[V(4), V(5), SRD_US, S(44)], writes=[]), need={'US'})]
                kw['streams'] = [('ssig', [(0.6, 0.5, i) for i in sig])]
            elif j == 28:
                pl = [valu('v_and_b32', V(1), 3, l), valu('v_lshlrev_b32', V(1), 8, V(1)), raw("s_lshl_b32 s43, s47, 10", writes=[S_TMP]),
                      raw(f"s_add_u32 s43, s43, {WS_CNT}", writes=[S_TMP]), bload(1, V(6), V(1), SRD_W, S_TMP, mods="sc1")]
                pf = []
                if o.prefetch and o.pf_w2:
                    pf = [raw("s_mul_i32 s44, s47, 224", writes=[S(44)]), raw("s_mul_i32 s45, s24, 56", writes=[S(45)]), raw("s_add_u32 s44, s44, s45", writes=[S(44)]),
                          valu('v_add_u32', V(2), S(44), l), valu('v_lshlrev_b32', V(2), 12, V(2)), raw("s_lshl_b32 s45, s46, 7", writes=[S(45)]),
                          bload(1, A(200), V(2), SRD_W2, S(45))]
                if o.prefetch:
                    pf += [raw("s_lshl_b32 s44, s25, 5", writes=[S(44)]), raw("s_add_u32 s44, s44, s26", writes=[S(44)]), raw("s_lshl_b32 s44, s44, 2", writes=[S(44)]),
                           raw("s_add_u32 s44, s44, s24", writes=[S(44)]), raw("s_lshl_b32 s44, s44, 12", writes=[S(44)]), valu('v_lshlrev_b32', V(3), 4, l)]
                    pf += [bload(4, A(240 + 4*n, 4), V(3), SRD_WO, S(44), off=n*1024) for n in range(4)]
                kw['streams'] = [('spoll', [(0.05, 0.0, i) for i in pl]), ('spf', spread(pf, 0.45, 0.9, rel=0.42))]
                chk = lambda: [I("v_cmp_le_u32 vcc, 28, v6", 'valu', reads=[V(6)], writes=['vcc']), nop(3), raw("s_cmp_eq_u64 vcc, -1", reads=['vcc'])]
                kw['post'] = [smov(S(45), 0), label("L_k3_poll")] + chk() + [raw("s_cbranch_scc1 L_k3_pollok", 'branch'),
                              raw("s_sleep 4"), bload(1, V(6), V(1), SRD_W, S_TMP, mods="sc1"), waitcnt(vm=0),
                              sop('s_add_u32', S(45), S(45), 1), scmp('s_cmp_lt_u32', S(45), 0x40000), raw("s_cbranch_scc1 L_k3_poll", 'branch'), label("L_k3_pollok")]
        elif j == 18:
            su = []
            dma_off_128(su.append, l, DA, 4096, V(1), V(2), V(3), s_tmp=S_TMP)
            su += [valu('v_lshlrev_b32', DB[0], 4, l)] + [valu('v_add_u32', DB[t], 56*1024, DB[t-1]) for t in range(1, 4)]
            su += [raw("s_mul_i32 s39, s24, 448*4096", writes=[S_SA]), raw("s_lshl_b32 s43, s46, 7", writes=[S_TMP]), raw("s_add_u32 s39, s39, s43", writes=[S_SA]),
                   raw("s_mul_i32 s36, s47, 4*56", writes=[S_SB]), raw("s_mul_i32 s43, s24, 14", writes=[S_TMP]), raw("s_add_u32 s36, s36, s43", writes=[S_SB]),
                   raw("s_lshl_b32 s36, s36, 10", writes=[S_SB]), raw(f"s_add_u32 s36, s36, {WS_U}", writes=[S_SB]), smov(S_N, 0), smov(S_SKIP, 0)]
            sig = [valu('v_mov_b32', V(4), 1), valu('v_lshlrev_b32', V(5), 25, l),
                   raw("s_lshl_b32 s44, s47, 2", writes=[S(44)]), raw("s_add_u32 s44, s44, s24", writes=[S(44)]), raw("s_lshl_b32 s44, s44, 8", writes=[S(44)]),
                   raw(f"s_add_u32 s44, s44, {WS_CNT}", writes=[S(44)]),
                   lds_dep(I(f"buffer_atomic_add v4, v5, {SRD_US}, s44 offen sc1", 'vatomic', reads=[V(4), V(5), SRD_US, S(44)], writes=[]), need={'US'})]
            kw['streams'] = [('ssu', spread(su, 0.05, 0.55)), ('ssig', [(0.6, 0.5, i) for i in sig])]
            if o.wot:
                WD = [V(28 + i) for i in range(4)]
                wsu = []
                dma_off_128(wsu.append, l, WD, 1024, V(6), V(7), V(26), s_tmp=S(5))
                wsu += [raw("s_lshl_b32 s3, s25, 4", writes=[S(3)]), raw("s_lshr_b32 s5, s26, 1", writes=[S(5)]), raw("s_add_u32 s3, s3, s5", writes=[S(3)]),
                        raw("s_lshl_b32 s3, s3, 15", writes=[S(3)]), raw("s_and_b32 s5, s26, 1", writes=[S(5)]), raw("s_lshl_b32 s5, s5, 9", writes=[S(5)]),
                        raw("s_add_u32 s3, s3, s5", writes=[S(3)]), raw("s_lshl_b32 s5, s24, 7", writes=[S(5)]), raw("s_add_u32 s3, s3, s5", writes=[S(3)])]
                kw['streams'].append(('swsu', spread(wsu, 0.0, 0.12)))
                dl = [sop('s_add_u32', 'm0', S_SR, 8192), nop(0)] + [lds_dep(dma(WD[i], SRD_WO, S(3), off=i*1024), need={'sR1'}, mark={'sL1'}) for i in range(4)]
                kw['side_dma_list'] = (dl, 0.42, 0.55, 0.2)
        elif j == 19:
            st = g2_dma(0, False) + [sop('s_xor_b32', S_SR, S_SR, 8192)] + g2_dma(1, False) + [sop('s_xor_b32', S_SR, S_SR, 8192)]
            kw['side_dma_list'] = (st, 0.42, 0.95, 0.0)
            if o.wot:
                rd = [lds_dep(ds_read_tr(A(192 + 4*t + 2*u, 2), TA[t], 8192 + u*2048), need={'sL1'}, mark={'sR1'}) for t in range(4) for u in range(2)]
                ad = [raw("s_lshl_b32 s3, s25, 4", writes=[S(3)]), raw("s_lshr_b32 s5, s26, 1", writes=[S(5)]), raw("s_add_u32 s3, s3, s5", writes=[S(3)]),
                      raw("s_lshl_b32 s3, s3, 5", writes=[S(3)]), raw("s_and_b32 s5, s26, 1", writes=[S(5)]), raw("s_lshl_b32 s5, s5, 4", writes=[S(5)]),
                      raw("s_add_u32 s3, s3, s5", writes=[S(3)]), raw("s_lshl_b32 s5, s24, 2", writes=[S(5)]), raw("s_add_u32 s3, s3, s5", writes=[S(3)]),
                      raw("s_lshl_b32 s3, s3, 10", writes=[S(3)]), raw(f"s_add_u32 s3, s3, {WS_WOT}", writes=[S(3)]), valu('v_lshlrev_b32', V(26), 4, l)]
                stw = [bstore(4, A(192 + 4*t, 4), V(26), SRD_W, S(3), off=t*1024, mods="sc1") for t in range(4)]
                kw['streams'] = [('swr', spread(rd, 0.50, 0.60, rel=0.48) + [(0.61, 0.0, i) for i in ad] + spread(stw, 0.64, 0.8, rel=0.62))]
                kw['side_dma_list'] = (st, 0.42, 0.97, 0.0)
        elif j == 20:
            pl = [valu('v_and_b32', V(1), 3, l), valu('v_lshlrev_b32', V(1), 8, V(1)), raw("s_lshl_b32 s43, s47, 10", writes=[S_TMP]),
                  raw(f"s_add_u32 s43, s43, {WS_CNT}", writes=[S_TMP]), bload(1, V(6), V(1), SRD_W, S_TMP, mods="sc1")]
            kw['streams'] = [('spoll', [(0.80, 0.7, i) for i in pl])]
            if o.prefetch and not o.wot:
                extra = [raw("s_lshl_b32 s44, s25, 5", writes=[S(44)]), raw("s_add_u32 s44, s44, s26", writes=[S(44)]), raw("s_lshl_b32 s44, s44, 2", writes=[S(44)]),
                         raw("s_add_u32 s44, s44, s24", writes=[S(44)]), raw("s_lshl_b32 s44, s44, 12", writes=[S(44)])]
                extra += [bload(4, A(240 + 4*n, 4), DB[0], SRD_WO, S(44), off=n*1024) for n in range(4)]
                kw['streams'].append(('spf', spread(extra, 0.42, 0.55)))
            chk = lambda: [I("v_cmp_le_u32 vcc, 28, v6", 'valu', reads=[V(6)], writes=['vcc']), nop(3), raw("s_cmp_eq_u64 vcc, -1", reads=['vcc'])]
            dg = (STP() if getattr(o, 'polldiag', False) else [])
            kw['post'] = dg + [smov(S(45), 0), label("L_k3_poll")] + chk() + [raw("s_cbranch_scc1 L_k3_pollok", 'branch'),
                          raw("s_sleep 4"), bload(1, V(6), V(1), SRD_W, S_TMP, mods="sc1"), waitcnt(vm=0),
                          sop('s_add_u32', S(45), S(45), 1), scmp('s_cmp_lt_u32', S(45), 0x40000), raw("s_cbranch_scc1 L_k3_poll", 'branch'), label("L_k3_pollok")] + ([smov(S(94), S(45))] if getattr(o, 'polldiag', False) else [])
            kw['vm_end'] = 0
        elif j == 21:
            if o.wot:
                kw['pre'] = [valu('v_mov_b32', V(4), 1), valu('v_lshlrev_b32', V(5), 25, l), sop('s_add_u32', S(44), S_G, 64), raw("s_lshl_b32 s44, s44, 8", writes=[S(44)]),
                             raw(f"s_add_u32 s44, s44, {WS_CNT}", writes=[S(44)]), raw("s_cmp_eq_u32 s24, 0"), raw(f"s_cselect_b32 s44, s44, {WS_END}", reads=['scc'], writes=[S(44)]),
                             I(f"buffer_atomic_add v4, v5, {SRD_W}, s44 offen sc1", 'vatomic', reads=[V(4), V(5), SRD_W, S(44)], writes=[])]
            z = [valu('v_accvgpr_write_b32', A(128 + r), 0) for r in range(64)]
            kw['streams'] = [('sul', spread(g2_uloads(), 0.05, 0.3)), ('sz', spread(z, 0.1, 0.95))]
        elif 22 <= j <= 28:
            i = j - 22
            rd, mfs = g2_parts(i if i else 1)
            rd, _ = g2_parts(i)
            kw['side_groups'] = [(3, mfs[0]), (5, mfs[1])]
            stl = [('srd', spread(rd, 0.02, 0.36))]
            if j <= 27:
                dm = [scmp('s_cmp_gt_u32', S_N, 4), I(f"s_cselect_b32 {S_SKIP}, 0x30000, 0", 'salu', reads=['scc'], writes=[S_SKIP]), sop('s_add_u32', S_N, S_N, 1)]
                dm += g2_dma(i & 1, True)
                kw['side_dma_list'] = (dm, 0.45, 0.78, 0.42)
                stl += [('sul', spread(g2_uloads(), 0.82, 0.98, rel=0.80))]
            kw['streams'] = stl
            kw['post'] = toggle_side()
        elif j == 29:
            pre = make_srd(B1, S(98, 2), 2048*2)
            bl = [valu('v_and_b32', V(1), 15, l), raw("s_lshl_b32 s44, s46, 6", writes=[S(44)]), raw("s_lshl_b32 s45, s24, 4", writes=[S(45)]),
                  raw("s_add_u32 s44, s44, s45", writes=[S(44)]), valu('v_add_u32', V(1), S(44), V(1)), valu('v_lshlrev_b32', V(1), 1, V(1)), bload_ushort(V(1), V(1), B1)]
            kw['pre'] = pre
            kw['streams'] = [('sw', spread(scratch_write(), 0.1, 0.7)), ('sb', spread(bl, 0.05, 0.1))]
        elif j == 30:
            comp = [smov(S(44), -LOG2E), valu('v_lshlrev_b32', V(1), 16, V(1))]
            comp += [raw("s_lshr_b32 s43, s47, 1", writes=[S_TMP]), raw("s_lshl_b32 s45, s46, 2", writes=[S(45)]), raw("s_add_u32 s43, s43, s45", writes=[S_TMP]),
                     raw("s_lshl_b32 s43, s43, 2", writes=[S_TMP]), raw("s_and_b32 s45, s47, 1", writes=[S(45)]), raw("s_lshl_b32 s45, s45, 1", writes=[S(45)]),
                     raw("s_add_u32 s43, s43, s45", writes=[S_TMP]), raw("s_lshl_b32 s43, s43, 2", writes=[S_TMP]), raw("s_add_u32 s43, s43, s24", writes=[S_TMP]),
                     raw("s_lshl_b32 s43, s43, 10", writes=[S_TMP]), raw(f"s_add_u32 s43, s43, {WS_GATE}", writes=[S_TMP]), valu('v_lshlrev_b32', V(26), 4, l)]
            OUTA = A(240, 8)
            comp += unit_reads(0)
            for u in range(8):
                if u + 1 < 8: comp += unit_reads(u + 1)
                xs = []
                for e in range(2):
                    sm_, y = unit_sum(u, e); comp += sm_; xs.append(y)
                    comp += [valu('v_add_f32', y, y, V(1)), valu('v_mul_f32', V(7), S(44), y), valu('v_exp_f32', V(7), V(7)), valu('v_add_f32', V(7), 1.0, V(7)),
                             valu('v_rcp_f32', V(7), V(7)), valu('v_mul_f32', y, y, V(7))]
                comp += [valu('v_cvt_pk_bf16_f32', V(6), xs[0], xs[1]), valu('v_accvgpr_write_b32', OUTA[u], V(6))]
                if u in (3, 7):
                    comp.append(bstore(4, OUTA[u-3:u+1], V(26), SRD_W, S_TMP, mods=("sc1" if o.fuse_comb else "")))
                    comp.append(sop('s_add_u32', S_TMP, S_TMP, 4096))
            kw['streams'] = [('scomp', spread(comp, 0.0, 0.98))]
        return kw
    DO = [V(14 + i) for i in range(4)]
    TO = [V(64 + i) for i in range(8)]; TO2 = [V(72 + i) for i in range(8)]
    S_SLOW = S(6); S_R2 = S(7)
    def wo_setup():
        s_ = []; a_ = s_.append
        dma_off_256(a_, l, DO, 1024, 'o', S_T)
        a_(raw("s_lshl_b32 s42, s25, 19", writes=[S_SO])); a_(raw("s_lshl_b32 s43, s24, 8", writes=[S_T]))
        a_(raw("s_add_u32 s42, s42, s43", writes=[S_SO]))
        a_(raw("s_lshl_b32 s7, s24, 13", writes=[S_R2])); a_(raw("s_add_u32 s7, s7, 65536", writes=[S_R2]))
        return s_
    def wo_stage(n):
        s_ = []
        sb, madd = (S_XB, n*8192) if n < 2 else (S_R2, 0)
        for h in range(2):
            s_ += [sop('s_add_u32', 'm0', sb, madd + h*4096), nop(0)]
            for i in range(4): s_.append(lds_dep(dma(DO[i], SRD_WO, S_SO, off=i*1024), need={f'oR{n}'}, mark={f'oL{n}'}))
            s_.append(sop('s_add_u32', S_SO, S_SO, 16*1024))
        return s_
    def wo_first_lds(): return wo_setup() + wo_stage(0) + wo_stage(1) + wo_stage(2)
    VLW = V(14)
    def wot_setup():
        return [valu('v_lshlrev_b32', VLW, 4, l), raw("s_lshl_b32 s42, s25, 19", writes=[S_SO]), raw("s_lshl_b32 s43, s24, 13", writes=[S_T]),
                raw("s_add_u32 s42, s42, s43", writes=[S_SO]), raw(f"s_add_u32 s42, s42, {WS_WOT}", writes=[S_SO])]
    def wot_loads(n): return proj3_loads(SRD_W, S_SO, VLW, n, 128)
    def wot_first(): return [i for n in range(P3_DEPTH) for i in wot_loads(n)]
    def wo_first(): return (wot_setup() + wot_first()) if o.wot else wo_first_lds()
    seqs = [('pro', pro)]
    for j in range(33):
        kw_ = side_spec(j)
        if j == 31 and o.wot:
            kw_['streams'] = list(kw_.get('streams', [])) + [('swo', spread(wot_setup(), 0.0, 0.05) + spread(wot_first(), 0.08, 0.95, rel=0.06))]
        elif j == 31 and o.wo_early:
            kw_['streams'] = list(kw_.get('streams', [])) + [('swo', spread(wo_setup(), 0.02, 0.2))]
            kw_['side_dma_list'] = (wo_stage(0) + wo_stage(1), 0.25, 0.95, 0.22)
        if j == 31 and o.tlb_warm and o.fuse_comb:
            tw = [valu('v_and_b32', V(2), 7, l), valu('v_lshlrev_b32', V(2), 21, V(2)),
                  raw("s_lshl_b32 s3, s26, 16", writes=[S(3)]), raw(f"s_add_u32 s3, s3, {WS_PART}", writes=[S(3)]),
                  bload(1, A(201), V(2), SRD_W, S(3)),
                  valu('v_mov_b32', V(3), 0), raw("s_lshl_b32 s3, s26, 16", writes=[S(3)]), raw(f"s_add_u32 s3, s3, {WS_GATE}", writes=[S(3)]),
                  bload(1, A(202), V(3), SRD_W, S(3))]
            tw += make_srd(S(48, 4), S(100, 2), 2 << 20) + [raw("s_lshl_b32 s3, s26, 16", writes=[S(3)]), bload(1, A(203), V(3), S(48, 4), S(3))]
            kw_['streams'] = list(kw_.get('streams', [])) + [('stw', [(0.02, 0.0, i) for i in tw])]
        if j == 30 and o.wot:
            pl = [valu('v_mov_b32', V(16), 0), sop('s_add_u32', S(3), S_G, 64), raw("s_lshl_b32 s3, s3, 8", writes=[S(3)]), raw(f"s_add_u32 s3, s3, {WS_CNT}", writes=[S(3)]),
                  bload(1, V(17), V(16), SRD_W, S(3), mods="sc1")]
            kw_['streams'] = list(kw_.get('streams', [])) + [('swp', [(0.3, 0.25, i) for i in pl])]
            kw_['post'] = list(kw_.get('post', [])) + [smov(S(5), 0), label("L_k3_wpoll"), readfirstlane(S(4), V(17)), nop(3), scmp('s_cmp_ge_u32', S(4), 32),
                          raw("s_cbranch_scc1 L_k3_wpollok", 'branch'), raw("s_sleep 4"), bload(1, V(17), V(16), SRD_W, S(3), mods="sc1"), waitcnt(vm=0),
                          sop('s_add_u32', S(5), S(5), 1), scmp('s_cmp_lt_u32', S(5), 0x40000), raw("s_cbranch_scc1 L_k3_wpoll", 'branch'), label("L_k3_wpollok")]
        p = at.period(j, **kw_)
        if o.timing and j in o.stamp_after: p = p + STP()
        seqs.append((j, [label(f"@@P{j}")] + p))
    def arrive2(idx_s):
        return [valu('v_mov_b32', V(4), 1), valu('v_lshlrev_b32', V(5), 25, l),
                sop('s_add_u32', S(44), idx_s, 32), raw("s_lshl_b32 s44, s44, 8", writes=[S(44)]), raw(f"s_add_u32 s44, s44, {WS_CNT}", writes=[S(44)]),
                raw("s_cmp_eq_u32 s24, 0"), raw(f"s_cselect_b32 s44, s44, {WS_END}", reads=['scc'], writes=[S(44)]),
                I(f"buffer_atomic_add v4, v5, {SRD_W}, s44 offen sc1", 'vatomic', reads=[V(4), V(5), SRD_W, S(44)], writes=[])]
    pre_epi = [smov(S_SLOW, 0)]
    if o.fuse_comb: pre_epi += ([] if o.g2_tail else arrive2(S_T64)) + [sload(S(96, 2), ARG_X)] + ([sload(S(100, 2), ARG_OUT)] if o.g2_tail else [sload(S(98, 2), ARG_OUT)])
    if not o.wot: pre_epi += (wo_stage(2) if o.wo_early else wo_first())
    s = []; a = s.append
    a(label("@@EPI"))
    a(label("L_k3_norm"))
    a(nop(7))
    if not o.wot:
        a(valu('v_mov_b32', V(6), S_XB))
        addr_tr256(a, l, TO, V(6), 4)
        a(valu('v_mov_b32', V(6), S_R2))
        addr_tr256(a, l, TO2, V(6), 4)
    LI = [V(24 + i) for i in range(4)]
    for qt in range(4): a(valu('v_rcp_f32', LI[qt], LA[qt][0]))
    a(valu('v_lshlrev_b32', V(7), 4, l))
    a(raw("s_lshl_b32 s43, s24, 14", writes=[S_T]))
    a(valu('v_add_u32', V(22), S_T, V(7))); a(valu('v_mov_b32', V(23), V(7)))
    for kk in range(4):
        for qt in range(4):
            x, y = O(2*kk, qt), O(2*kk+1, qt)
            for r in range(4):
                a(valu('v_mul_f32', x[r], x[r], LI[qt])); a(valu('v_mul_f32', y[r], y[r], LI[qt]))
            if o.moff:
                mx = V(28 + qt)
                ab = lambda r_: f"|{r_}|"
                if kk == 0: a(valu('v_max3_f32', mx, ab(x[0]), ab(x[1]), ab(x[2])))
                else: a(valu('v_max3_f32', mx, ab(x[0]), ab(x[1]), mx)); a(valu('v_max_f32', mx, ab(x[2]), mx, mods=""))
                a(valu('v_max3_f32', mx, ab(x[3]), ab(y[0]), mx)); a(valu('v_max3_f32', mx, ab(y[1]), ab(y[2]), mx)); a(valu('v_max_f32', mx, ab(y[3]), mx))
            F = V(48 + 4*((kk*4+qt) & 3), 4)
            a(valu('v_cvt_pk_bf16_f32', F[0], x[0], x[1])); a(valu('v_cvt_pk_bf16_f32', F[1], x[2], x[3]))
            a(valu('v_cvt_pk_bf16_f32', F[2], y[0], y[1])); a(valu('v_cvt_pk_bf16_f32', F[3], y[2], y[3]))
            a(ds_write(4, V(22), F, off=(kk*4+qt)*1024))
    a(waitcnt(lgkm=0)); a(barrier())
    s.extend(STP())
    def oread(n, qt, dst): return ds_read_b128(dst, V(23), (n*4+qt)*1024)
    S_PS = S(3)
    def pstore(prange):
        o_ = []
        for p in prange:
            for qt in range(4):
                x, y = O(2*p, qt), O(2*p+1, qt)
                F = V(48 + 4*((p*4+qt) & 3), 4)
                o_ += [valu('v_cvt_pk_bf16_f32', F[0], x[0], x[1]), valu('v_cvt_pk_bf16_f32', F[1], x[2], x[3]),
                       valu('v_cvt_pk_bf16_f32', F[2], y[0], y[1]), valu('v_cvt_pk_bf16_f32', F[3], y[2], y[3]),
                       bstore(4, F, V(7), SRD_W, S_PS, off=qt*1024, mods=("sc1" if o.fuse_comb else ""))]
            o_.append(sop('s_add_u32', S_PS, S_PS, 4096))
        return o_
    a(raw("s_lshl_b32 s3, s25, 5", writes=[S_PS])); a(raw("s_add_u32 s3, s3, s26", writes=[S_PS]))
    a(raw("s_lshl_b32 s3, s3, 2", writes=[S_PS])); a(raw("s_add_u32 s3, s3, s24", writes=[S_PS]))
    a(raw("s_lshl_b32 s3, s3, 14", writes=[S_PS])); a(raw(f"s_add_u32 s3, s3, {WS_PART}", writes=[S_PS]))
    g2pre = {}
    if o.g2_tail:
        GTA = [[V(96 + t) for t in range(4)], [V(100 + t) for t in range(4)]]
        GDA = [V(104 + t) for t in range(4)]; GUL = [V(108 + t) for t in range(4)]
        a(valu('v_mov_b32', V(6), S_XB)); tr_addr_128(a, l, GTA[0], V(6), V(1), V(2), V(3), V(4))
        a(valu('v_mov_b32', V(6), S_R2)); tr_addr_128(a, l, GTA[1], V(6), V(1), V(2), V(3), V(4))
        dma_off_128(a, l, GDA, 4096, V(1), V(2), V(3), s_tmp=S(5))
        a(valu('v_lshlrev_b32', GUL[0], 4, l))
        for t in range(1, 4): a(valu('v_add_u32', GUL[t], 56*1024, GUL[t-1]))
        a(raw("s_mul_i32 s39, s24, 448*4096", writes=[S_SA])); a(raw("s_lshl_b32 s5, s46, 7", writes=[S(5)])); a(raw("s_add_u32 s39, s39, s5", writes=[S_SA]))
        a(raw("s_mul_i32 s36, s47, 4*56", writes=[S_SB])); a(raw("s_mul_i32 s5, s24, 14", writes=[S(5)])); a(raw("s_add_u32 s36, s36, s5", writes=[S_SB]))
        a(raw("s_lshl_b32 s36, s36, 10", writes=[S_SB])); a(raw(f"s_add_u32 s36, s36, {WS_U}", writes=[S_SB]))
        s.extend(make_srd(S(28, 4), S(98, 2), 2048*2))
        a(valu('v_and_b32', V(1), 15, l)); a(raw("s_lshl_b32 s44, s46, 6", writes=[S(44)])); a(raw("s_lshl_b32 s45, s24, 4", writes=[S(45)]))
        a(raw("s_add_u32 s44, s44, s45", writes=[S(44)])); a(valu('v_add_u32', V(1), S(44), V(1))); a(valu('v_lshlrev_b32', V(1), 1, V(1)))
        a(bload_ushort(V(18), V(1), S(28, 4)))
        gmap = [(0, 8192, S_XB, 8192), (0, 12288, S_XB, 12288), (1, 0, S_R2, 0), (1, 4096, S_R2, 4096)]
        wneed = ['oR1', 'oR1', 'oR2', 'oR2']
        def g2_w(n, first=False):
            st = n % 4; (_, _, sb, madd) = gmap[st]
            o_ = [sop('s_add_u32', 'm0', sb, madd)]
            for i in range(4): o_.append(lds_dep(dma(GDA[i], SRD_W2, S_SA, off=i*1024), need={f'gR{st}'} | ({wneed[st]} if first else set()), mark={f'gL{st}'}))
            o_.append(sop('s_add_u32', S_SA, S_SA, 32*4096))
            return o_
        gfa = lambda n, t: A(192 + 16*(n % 4) + 4*t, 4)
        gfb = lambda p, t: A(128 + 16*p + 4*t, 4)
        def g2_u(n):
            return [bload(4, gfa(n, t), GUL[t], SRD_W, S_SB, mods="sc1") for t in range(4)] + [sop('s_add_u32', S_SB, S_SB, 1024)]
        def g2_r(n):
            st = n % 4; (ti, imm, _, _) = gmap[st]
            return [lds_dep(ds_read_tr(gfb(n & 1, t)[2*u:2*u+2], GTA[ti][t], imm + u*2048), need={f'gL{st}'}, mark={f'gR{st}'}) for t in range(4) for u in range(2)]
        g2pre = {13: g2_w(0, True) + g2_w(1, True) + g2_u(0), 14: g2_w(2, True) + g2_w(3, True) + g2_u(1), 15: g2_u(2) + g2_u(3)}
    if o.wot:
        proj_gemm3(a, s, SRD_W, S_SO, VLW, oread, 128, 64, mid_fill=pstore(range(2)))
    else:
        proj_gemm2(a, s, TO, DO, SRD_WO, S_SO, 1024, S_RING, oread, 4096, 'o', fb_base=(160 if o.g2_tail else 128),
                   stage_map=[(TO, 0, S_XB, 0), (TO, 8192, S_XB, 8192), (TO2, 0, S_R2, 0)], extra_vm=g2pre)
    if o.fast_tail and o.fuse_comb and not o.g2_tail and not o.wot: s.extend(pstore(range(4)))
    a(smov(S(44), float(2.0**100)))
    for qt in range(4):
        a(I(f"v_cmp_gt_f32 vcc, s44, {LA[qt][0]}", 'valu', reads=[S(44), LA[qt][0]], writes=['vcc']))
        a(nop(3))
        a(I("s_mov_b64 s[56:57], vcc" if qt == 0 else "s_and_b64 s[56:57], s[56:57], vcc", 'salu', reads=['vcc'], writes=[S(56, 2), 'scc']))
    if o.moff:
        a(smov(S(44), float(2.0**(o.moff - 108))))
        for qt in range(4):
            a(I(f"v_cmp_le_f32 vcc, s44, {V(28 + qt)}", 'valu', reads=[S(44), V(28 + qt)], writes=['vcc']))
            a(nop(3))
            a(I("s_and_b64 s[56:57], s[56:57], vcc", 'salu', reads=['vcc'], writes=[S(56, 2), 'scc']))
    a(nop(7))
    a(valu('v_mov_b32', V(1), 0x1F8))
    for qt in range(4):
        a(I(f"v_cmp_class_f32 vcc, {O(0, qt)[0]}, v1", 'valu', reads=[O(0, qt)[0], V(1)], writes=['vcc']))
        a(nop(3))
        a(I("s_and_b64 s[56:57], s[56:57], vcc", 'salu', reads=['vcc'], writes=[S(56, 2), 'scc']))
    a(raw("s_cmp_eq_u64 s[56:57], -1"))
    a(raw("s_cselect_b32 s44, 0, 1", reads=['scc'], writes=[S(44)]))
    a(valu('v_mov_b32', V(2), S(44))); a(valu('v_mov_b32', V(1), S_XB))
    a(ds_write(1, V(1), V(2)))
    def flag_decide():
        a(valu('v_mov_b32', V(1), XBASE))
        a(ds_read_b32(V(2), V(1))); a(ds_read_b32(V(3), V(1), 16384)); a(ds_read_b32(V(4), V(1), 32768)); a(ds_read_b32(V(5), V(1), 49152))
        a(valu('v_or_b32', V(2), V(2), V(3))); a(valu('v_or_b32', V(4), V(4), V(5))); a(valu('v_or_b32', V(2), V(2), V(4)))
        a(readfirstlane(S(44), V(2)))
        a(nop(3))
        a(I("s_andn2_b32 s44, s44, s6", 'salu', reads=[S(44), S_SLOW], writes=[S(44), 'scc']))
        a(raw("s_cbranch_scc1 L_k3_slow", 'branch'))
    FT = o.fast_tail and o.fuse_comb and not o.g2_tail and not o.wot
    if not FT:
        a(waitcnt(lgkm=0)); a(barrier())
        flag_decide()
        a(label("L_k3_store"))
        s.extend(STP())
        if not o.g2_tail: s.extend(pstore(range(2, 4) if o.wot else range(4)))
    else:
        s.extend(STP())
    if o.g2_tail:
        gacc = lambda mt, st_: A(64 + (mt*4+st_)*4, 4)
        pfill = pstore(range(4))
        s.extend(g2_r(0))
        for n in range(14):
            rd = g2_r(n + 1) if n + 1 < 14 else []
            vm = (g2_w(n + 4) + g2_u(n + 4)) if n + 4 < 14 else []
            mf = [mfma16(gacc(mt, st_), gfa(n, mt), gfb(n & 1, st_), gacc(mt, st_) if n else 0) for mt in range(4) for st_ in range(4)]
            gaps = [[] for _ in range(16)]
            for k, ins in enumerate(rd): gaps[k].append(ins)
            g = 8
            for (ins, st_) in dma_ops_with_setup(vm):
                if ins.kind == 'dma':
                    gaps[g - 1] += st_; gaps[g].append(ins); g = min(15, g + 2)
            late = [i for i in vm if i.kind == 'vload' or (i.kind == 'salu' and 'm0' not in i.writes)]
            for k, m in enumerate(mf):
                a(m); s.extend(sort_gap(gaps[k]))
                if n >= o.ps_from and pfill:
                    for _ in range(2 if gaps[k] else 3):
                        if pfill: a(pfill.pop(0))
            s.extend(late)
        s.extend(pfill)
        a(raw("s_lshl_b32 s44, s24, 14", writes=[S(44)])); a(valu('v_add_u32', V(26), S(44), V(7)))
        for mt in range(4):
            for st_ in range(4): a(ds_write(4, V(26), gacc(mt, st_), off=(mt*4+st_)*1024))
        a(waitcnt(lgkm=0)); a(barrier())
        a(raw("s_lshl_b32 s44, s24, 10", writes=[S(44)])); a(valu('v_add_u32', V(27), S(44), V(7)))
        for mt in range(4):
            for w in range(4): a(ds_read_b128(V(192 + (mt*4+w)*4, 4), V(27), w*16384 + mt*4096))
        a(smov(S(44), -LOG2E)); a(valu("v_lshlrev_b32", V(18), 16, V(18)))
        a(raw("s_lshr_b32 s43, s47, 1", writes=[S_T])); a(raw("s_lshl_b32 s45, s46, 2", writes=[S(45)])); a(raw("s_add_u32 s43, s43, s45", writes=[S_T]))
        a(raw("s_lshl_b32 s43, s43, 2", writes=[S_T])); a(raw("s_and_b32 s45, s47, 1", writes=[S(45)])); a(raw("s_lshl_b32 s45, s45, 1", writes=[S(45)]))
        a(raw("s_add_u32 s43, s43, s45", writes=[S_T])); a(raw("s_lshl_b32 s43, s43, 2", writes=[S_T])); a(raw("s_add_u32 s43, s43, s24", writes=[S_T]))
        a(raw("s_lshl_b32 s43, s43, 10", writes=[S_T])); a(raw(f"s_add_u32 s43, s43, {WS_GATE}", writes=[S_T]))
        for mt in range(4):
            for r in range(4):
                P_ = [V(192 + (mt*4+w)*4 + r) for w in range(4)]; y = P_[0]; tt = V(2 + (r & 1))
                a(valu('v_add_f32', y, y, P_[1])); a(valu('v_add_f32', P_[2], P_[2], P_[3])); a(valu('v_add_f32', y, y, P_[2])); a(valu("v_add_f32", y, y, V(18)))
                a(valu('v_mul_f32', tt, S(44), y)); a(valu('v_exp_f32', tt, tt)); a(valu('v_add_f32', tt, 1.0, tt)); a(valu('v_rcp_f32', tt, tt)); a(valu('v_mul_f32', y, y, tt))
            q = V(40 + 4*(mt >> 1) + 2*(mt & 1), 2)
            a(valu('v_cvt_pk_bf16_f32', q[0], V(192 + mt*16), V(192 + mt*16 + 1))); a(valu('v_cvt_pk_bf16_f32', q[1], V(192 + mt*16 + 2), V(192 + mt*16 + 3)))
            if mt & 1:
                a(bstore(4, V(40 + 4*(mt >> 1), 4), V(7), SRD_W, S_T, mods="sc1")); a(sop('s_add_u32', S_T, S_T, 4096))
    if o.fuse_comb:
        SRD_X2 = S(28, 4); SRD_O = S(48, 4)
        s.extend(make_srd(SRD_X2, S(96, 2), 2 << 20)); s.extend(make_srd(SRD_O, S(100, 2) if o.g2_tail else S(98, 2), 2 << 20))
        a(valu('v_and_b32', V(1), 15, l)); a(raw("s_lshl_b32 s44, s26, 6", writes=[S(44)])); a(raw("s_lshl_b32 s45, s24, 4", writes=[S(45)]))
        a(raw("s_add_u32 s44, s44, s45", writes=[S(44)])); a(valu('v_add_u32', V(1), S(44), V(1))); a(valu('v_lshlrev_b32', V(1), 10, V(1)))
        a(valu('v_lshrrev_b32', V(2), 4, l)); a(valu('v_lshl_add_u32', V(1), V(2), 3, V(1)))
        a(raw("s_lshl_b32 s44, s25, 7", writes=[S(44)])); a(valu('v_add_u32', V(22), S(44), V(1)))
        XR = V(32, 8)
        for j in range(2):
            for t in range(2): a(bload(2, XR[4*j+2*t:4*j+2*t+2], V(22), SRD_X2, 0, off=64*j + 32*t))
        a(waitcnt(vm=4, lgkm=0))
        a(barrier())
        if FT: flag_decide()
        if o.g2_tail: s.extend(arrive2(S_T64)); a(nop(1))
        if FT:
            a(raw("s_cmp_eq_u32 s24, 0")); a(raw("s_cbranch_scc0 L_k3_cpollok", 'branch'))
            a(sop('s_add_u32', S(44), S_QB, 32)); a(raw("s_lshl_b32 s44, s44, 8", writes=[S(44)])); a(raw(f"s_add_u32 s44, s44, {WS_CNT}", writes=[S(44)]))
            a(valu('v_mov_b32', V(6), 1)); a(valu('v_lshlrev_b32', V(5), 25, l)); a(valu('v_mov_b32', V(1), 0)); a(smov(S(45), 0))
            a(I(f"buffer_atomic_add v6, v5, {SRD_W}, s44 offen sc0 sc1", 'vload', reads=[V(6), V(5), SRD_W, S(44)], writes=[V(6)]))
            a(waitcnt(vm=0)); a(readfirstlane(S(43), V(6))); a(nop(3)); a(sop('s_add_u32', S(43), S(43), 1))
            a(label("L_k3_cpoll"))
            a(scmp('s_cmp_ge_u32', S(43), 16)); a(raw("s_cbranch_scc1 L_k3_cpollok", 'branch'))
            a(raw("s_sleep 1"))
            a(bload(1, V(6), V(1), SRD_W, S(44), mods="sc1")); a(waitcnt(vm=0))
            a(readfirstlane(S(43), V(6))); a(nop(3))
            a(sop('s_add_u32', S(45), S(45), 1)); a(scmp('s_cmp_lt_u32', S(45), 0x80000)); a(raw("s_cbranch_scc1 L_k3_cpoll", 'branch'))
            a(label("L_k3_cpollok"))
            a(barrier())
            s.extend(STP())
        else:
            s.extend(arrive2(S_QB))
            s.extend(STP())
            a(sop('s_add_u32', S(44), S_QB, 32)); a(raw("s_lshl_b32 s44, s44, 8", writes=[S(44)])); a(raw(f"s_add_u32 s44, s44, {WS_CNT}", writes=[S(44)]))
            a(valu('v_mov_b32', V(1), 0)); a(smov(S(45), 0))
            a(label("L_k3_cpoll"))
            a(bload(1, V(6), V(1), SRD_W, S(44), mods="sc1")); a(waitcnt(vm=0))
            a(readfirstlane(S(43), V(6))); a(nop(3))
            a(scmp('s_cmp_ge_u32', S(43), 16)); a(raw("s_cbranch_scc1 L_k3_cpollok", 'branch'))
            a(raw("s_sleep 2")); a(sop('s_add_u32', S(45), S(45), 1)); a(scmp('s_cmp_lt_u32', S(45), 0x80000)); a(raw("s_cbranch_scc1 L_k3_cpoll", 'branch'))
            a(label("L_k3_cpollok"))
        a(raw("s_lshl_b32 s42, s26, 2", writes=[S_SO])); a(raw("s_lshr_b32 s43, s25, 1", writes=[S_T])); a(raw("s_add_u32 s42, s42, s43", writes=[S_SO]))
        a(raw("s_lshl_b32 s42, s42, 2", writes=[S_SO])); a(raw("s_and_b32 s43, s25, 1", writes=[S_T])); a(raw("s_lshl_b32 s43, s43, 1", writes=[S_T]))
        a(raw("s_add_u32 s42, s42, s43", writes=[S_SO])); a(raw("s_lshl_b32 s42, s42, 2", writes=[S_SO])); a(raw("s_add_u32 s42, s42, s24", writes=[S_SO]))
        a(raw("s_lshl_b32 s42, s42, 10", writes=[S_SO]))
        a(raw(f"s_add_u32 s43, s42, {WS_GATE}", writes=[S_T])); a(raw(f"s_add_u32 s42, s42, {WS_PART}", writes=[S_SO]))
        PPj = lambda j, g: V(128 + (j*8 + g)*4, 4)
        GG = [V(192, 4), V(196, 4)]
        for j in range(2):
            a(bload(4, GG[j], V(7), SRD_W, S_T, mods="sc1")); a(sop('s_add_u32', S_T, S_T, 4096))
        for g in range(8):
            a(bload(4, PPj(0, g), V(7), SRD_W, S_SO, mods="sc1"))
            a(sop('s_add_u32', S(44), S_SO, 4096))
            a(bload(4, PPj(1, g), V(7), SRD_W, S(44), mods="sc1"))
            if g < 7: a(sop('s_add_u32', S_SO, S_SO, 32*64*1024))
        for j in range(2):
            R = [V(200 + 8*j + i) for i in range(8)]
            for k in range(8):
                q = k >> 1; hi = k & 1
                unp = lambda dst, src: valu('v_and_b32', dst, 0xffff0000, src) if hi else valu('v_lshlrev_b32', dst, 16, src)
                a(unp(R[k], PPj(j, 0)[q]))
                for g in range(1, 8):
                    tt = V(2 + (g & 1))
                    a(unp(tt, PPj(j, g)[q])); a(valu('v_add_f32', R[k], R[k], tt))
                a(unp(V(4), GG[j][q])); a(unp(V(5), XR[4*j+q]))
                a(valu('v_fma_f32', R[k], R[k], V(4), V(5)))
            OUTR = V(216 + 4*j, 4)
            for q in range(4): a(valu('v_cvt_pk_bf16_f32', OUTR[q], R[2*q], R[2*q+1]))
            a(bstore(2, OUTR[0:2], V(22), SRD_O, 0, off=64*j, mods=o.out_mods)); a(bstore(2, OUTR[2:4], V(22), SRD_O, 0, off=64*j + 32, mods=o.out_mods))
    if o.timing or not o.fuse_comb: a(waitcnt(vm=0))
    s.extend(STP())
    if getattr(o, 'dbgtime', False):
        a(raw('s_memrealtime s[92:93]', 'smem', writes=[S(92, 2)])); a(sload(S(90, 2), ARG_DBG)); a(waitcnt(lgkm=0))
        s.extend(make_srd(S(84, 4), S(90, 2), 256))
        a(raw("s_sub_u32 s92, s92, s94", writes=[S(92)]))
        a(raw("s_add_u32 s93, s2, 4", writes=[S(93)])); a(raw("s_lshl_b32 s93, s93, 2", writes=[S(93)]))
        a(raw("s_cmp_lt_u32 s2, 8")); a(raw("s_cselect_b32 s93, s93, 0x1000", writes=[S(93)]))
        a(raw("s_cmp_eq_u32 s24, 0")); a(raw("s_cselect_b32 s93, s93, 0x1000", writes=[S(93)]))
        a(valu('v_mov_b32', V(2), S(92))); a(valu('v_lshlrev_b32', V(3), 25, l)); a(nop(3))
        a(bstore(1, V(2), V(3), S(84, 4), S(93))); a(waitcnt(vm=0))
    if getattr(o, 'diag_period', None) is not None: STP.force(len(o.diag_marks))
    if getattr(o, 'polldiag', False): STP.n = 16
    s.extend(STP.flush_dbg(S_WAVE, o.dbgwg) if getattr(o, 'dbgwg', None) is not None else STP.flush(S_WAVE))
    epi = s
    s = []; a = s.append
    M = [V(72 + i) for i in range(4)]
    a(label("L_k3_slow"))
    at.nozero = True
    a(smov(S_SLOW, 1))
    for r in range(128): a(valu('v_mov_b32', V(128 + r), 0))
    for qt in range(4):
        for r in range(4): a(valu('v_mov_b32', LA[qt][r], 0))
        a(valu('v_mov_b32', M[qt], 0xff800000))
    a(smov(S_TILE, 0)); a(smov(S(45), 32))
    a(label("L_k3_slowloop"))
    a(barrier())
    s.extend(at.kv_dma(0))
    a(waitcnt(vm=0)); a(barrier())
    for kh in range(2):
        s.extend(at.k_reads(0, kh)); s.extend(at.v_reads(0, kh))
        for c in range(2):
            for q2 in range(2):
                for t in range(2):
                    for i in range(4): a(mfma16(Sx(c, t, q2), Kf(t*4+i), Q(i, 2*c+q2), 0 if i == 0 else Sx(c, t, q2)))
            for q2 in range(2):
                qt = 2*c + q2; s0, s1 = Sx(c, 0, q2), Sx(c, 1, q2); m = V(4); t_ = V(5)
                a(valu('v_max3_f32', m, s0[0], s0[1], s0[2])); a(valu('v_max3_f32', m, m, s0[3], s1[0]))
                a(valu('v_max3_f32', m, m, s1[1], s1[2])); a(valu('v_max3_f32', m, m, s1[3], M[qt]))
                a(valu('v_mov_b32', t_, m)); a(permlane16_swap(m, t_)); a(valu('v_max_f32', m, m, t_))
                a(valu('v_mov_b32', t_, m)); a(permlane32_swap(m, t_)); a(valu('v_max_f32', m, m, t_))
                a(valu('v_sub_f32', t_, M[qt], m)); a(valu('v_exp_f32', t_, t_)); a(valu('v_mov_b32', M[qt], m))
                for dt in range(8):
                    for r in range(4): a(valu('v_mul_f32', O(dt, qt)[r], O(dt, qt)[r], t_))
                for r in range(4): a(valu('v_mul_f32', LA[qt][r], LA[qt][r], t_))
                for t in range(2):
                    sx = Sx(c, t, q2)
                    for r in range(4):
                        a(valu('v_sub_f32', sx[r], sx[r], m)); a(valu('v_exp_f32', sx[r], sx[r]))
                    a(valu('v_cvt_pk_bf16_f32', Pb[c][4*q2 + 2*t], sx[0], sx[1])); a(valu('v_cvt_pk_bf16_f32', Pb[c][4*q2 + 2*t + 1], sx[2], sx[3]))
            for m_ in at.pv_slot(0, kh, c):
                m_.rt = {}; a(m_)
    a(waitcnt(lgkm=0))
    a(sop('s_sub_u32', S(45), S(45), 1)); a(scmp('s_cmp_lg_u32', S(45), 0)); a(raw("s_cbranch_scc1 L_k3_slowloop", 'branch'))
    a(nop(15)); a(barrier())
    s.extend(wo_first())
    a(raw("s_branch L_k3_norm", 'branch'))
    for i_ in s:
        if hasattr(i_, 'rt'): i_.rt = {}
    slow, _, _ = auto_waits(s)
    slow = fix_hazards(slow, "slow")
    full = []
    for (name, seq) in seqs:
        if name == 32: full += pre_epi
        full += seq
    full += epi
    full, _, _ = auto_waits(full)
    errs = validate_tags(full)
    for e in errs[:10]: print("DATAFLOW", e, file=sys.stderr)
    parts = {}; cur = 'pro'; parts[cur] = []
    for ins in full:
        if ins.kind == 'label' and ins.text.startswith('@@'):
            cur = ins.text[2:-1]; parts[cur] = []
        else: parts[cur].append(ins)
    P = lambda j: parts[f'P{j}']
    txt = lambda j: [i.text for i in P(j)]
    def loop(first_j, n_iter, lbl, cnt):
        body = []
        for k in range(3):
            base = list(P(first_j + k))
            for it in range(1, n_iter):
                other = P(first_j + 3*it + k)
                assert len(other) == len(base), f"loop {lbl}: period {first_j+k} vs {first_j+3*it+k} length {len(base)} {len(other)}"
                for idx, (x, y) in enumerate(zip(base, other)):
                    if x.text != y.text:
                        assert x.kind == 'wait' and y.kind == 'wait' and (x.vm is None) == (y.vm is None) and (x.lgkm is None) == (y.lgkm is None), (lbl, x.text, y.text)
                        base[idx] = waitcnt(vm=None if x.vm is None else min(x.vm, y.vm), lgkm=None if x.lgkm is None else min(x.lgkm, y.lgkm))
            body += [comment(f"period {first_j+k} (+3n)")] + base
        body += [sop('s_sub_u32', cnt, cnt, 1), scmp('s_cmp_lg_u32', cnt, 0), raw(f"s_cbranch_scc1 {lbl}", 'branch')]
        errs = check_hazards(body, loop=True, name=lbl)
        for e in errs[:20]: print("HAZARD", e, file=sys.stderr)
        return [smov(cnt, n_iter), label(lbl)] + body
    out = fix_hazards(parts['pro'] + [comment("period 0")] + P(0), "pro")
    S_CNT = S(4)
    if getattr(o, 'noloop', False):
        allp = []
        for j in range(1, 33): allp += [comment(f"period {j}")] + P(j)
        out += fix_hazards(allp + parts['EPI'], "all")
        out += [raw("s_branch L_k3_end", 'branch')] + slow
        out.append(label("L_k3_end"))
        return emit(out)
    if o.side and o.g2_tail:
        out += loop(1, 5, "L_k3_loopA", S_CNT)
        mid = []
        for j in range(16, 19): mid += [comment(f"period {j}")] + P(j)
        out += fix_hazards(mid, "mid")
        out += loop(19, 3, "L_k3_loopB", S_CNT)
        tail = []
        for j in range(28, 33): tail += [comment(f"period {j}")] + P(j)
    elif o.side:
        out += loop(1, 5, "L_k3_loopA", S_CNT)
        mid = []
        for j in range(16, 22): mid += [comment(f"period {j}")] + P(j)
        out += fix_hazards(P(15)[-30:] + mid, "mid")[len(P(15)[-30:]):] if False else fix_hazards(mid, "mid")
        out += loop(22, 2, "L_k3_loopB", S_CNT)
        tail = []
        for j in range(28, 33): tail += [comment(f"period {j}")] + P(j)
    else:
        out += loop(1, 9, "L_k3_loopA", S_CNT)
        tail = []
        for j in range(28, 33): tail += [comment(f"period {j}")] + P(j)
    tm = []
    out += fix_hazards(tail + parts['EPI'], "tail")
    out += [raw("s_branch L_k3_end", 'branch')] + slow
    out.append(label("L_k3_end"))
    if getattr(o, 'verbose', False):
        for j in (2, 16, 17, 18, 21, 23, 29, 30):
            tot = 0; gap = None
            for i in P(j):
                if i.kind == 'mfma':
                    if gap is not None: tot += max(16, gap)
                    gap = 8
                elif gap is not None: gap += cost(i)
            print(f"; period {j}: est {tot + max(16, gap or 0)} cycles, {len(P(j))} instrs", file=sys.stderr)
    return emit(out)
if __name__ == "__main__":
    o = Opt(); o.verbose = True
    for kv in sys.argv[1:]:
        k, v = kv.split("="); setattr(o, k, eval(v))
    t = build(o); print(len(t.splitlines()))
```

```python
from k_common import *
from k3_attn import (NST, KBASE, VBASE, XBASE, SRD_K, SRD_V, SRD_W, SRD_WQ, SRD_WO, S_TILE, S_WOFF, S_WAVE, S_G, S_QB, QSCALE,
                     O, Q, Kf, Vf, Sb, Sx, NM, LA, Pb, ONES, KA, VA, DK, DV, addr_tr256, dma_off_256, proj_gemm)
from k2_gemm1 import tr_addr_128, dma_off_128, gelu, LOG2E
WS_GATE = 6 << 20
HMOD = 'sc1'

class Opt:
    barrier = True
    minfill = 8; maxfill = 8; early = 1.5
    sm_rel = 4; p_lead = 2; k_span = 1.0; k_lead = 6; bar_lead = 5
    timing = False; prefetch = True; side = True; fuse_ln = True; fuse_comb = True
    stamp_after = (0, 16, 17, 21, 28, 30, 32)
    def __init__(self, **kw): self.__dict__.update(kw)

SRD_W1 = S(48, 4); SRD_W2 = S(52, 4); SRD_DBG = S(56, 4); SRD_US = S(60, 4)
S_T64 = S(46); S_DT = S(47); S_SR = S(40); S_SKIP = S(37); S_N = S(38); S_SA = S(39); S_SB = S(36); S_XB = S(27); S_KVSKIP = S(23); S_TMP = S(43)
TA = [V(14 + i) for i in range(4)]; DA = [V(18 + i) for i in range(4)]; DB = [V(22 + i) for i in range(4)]
def sacc(i, j): return A(128 + (i*4+j)*4, 4)
def sfa(h, t): return A(192 + 16*h + 4*t, 4)
def sfb(h, t): return A(224 + 16*h + 4*t, 4) if h else A(208 + 4*t, 4)
def g2a(h, t): return A(192 + 16*h + 4*t, 4)
def g2b(h, t): return A(224 + 16*h + 4*t, 4)

class Attn:
    def __init__(self, opt): self.o = opt
    def qk_slot(self, j, kh, c):
        out = []
        for q2 in range(2):
            for t in range(2):
                for i in range(4):
                    qt = 2*c + q2; sx = Sx(c, t, q2)
                    m = mfma16(sx, Kf(t*4+i), Q(i, qt), NM[qt] if i == 0 else sx)
                    tag(m, wt=('S', j, kh, c), rt=[(Kf(t*4+i), ('K', j, kh))] + ([(sx, ('S', j, kh, c))] if i else []))
                    out.append(m)
        return out
    def pv_slot(self, j, kh, c):
        out = []
        z = (j == 0 and kh == 0 and not getattr(self, 'nozero', False))
        for q2 in range(2):
            p = Pb[c][4*q2:4*q2+4]; qt = 2*c + q2
            for dt in range(8):
                m = mfma16(O(dt, qt), Vf(dt), p, 0 if z else O(dt, qt))
                tag(m, rt=[(Vf(dt), ('V', j, kh)), (p, ('P', j, kh, c))]); out.append(m)
            m = mfma16(LA[qt], ONES, p, 0 if z else LA[qt]); tag(m, rt=[(p, ('P', j, kh, c))]); out.append(m)
        return out
    def sm_list(self, j, kh, c):
        regs = []
        for q2 in range(2):
            for t in range(2):
                for r in range(4): regs.append((Sx(c, t, q2)[r], Pb[c][4*q2 + 2*t + (r >> 1)]))
        ops = []
        for n, (s, p) in enumerate(regs):
            ops.append((n, tag(valu('v_exp_f32', s, s), wt=('E', j, kh, c), rt=[(s, ('S', j, kh, c))])))
            if n & 1:
                sp = regs[n-1][0]
                ops.append((n + 1.04, tag(valu('v_cvt_pk_bf16_f32', p, sp, s), wt=('P', j, kh, c), rt=[(s, ('E', j, kh, c)), (sp, ('E', j, kh, c))])))
        return [i for (t, i) in sorted(ops, key=lambda x: x[0])]
    def k_reads(self, j, kh):
        st = j % NST
        return [tag(ds_read_b128(Kf(n), KA[n & 3], KBASE + st*16384 + kh*8192 + (n >> 2)*4096), wt=('K', j, kh)) for n in range(8)]
    def v_reads(self, j, kh):
        st = j % NST
        return [tag(ds_read_tr(Vf(dt)[2*u:2*u+2], VA[dt], st*16384 + kh*8192 + u*4096), wt=('V', j, kh)) for dt in range(8) for u in range(2)]
    def kv_dma(self, st, skip=False):
        ops = []
        for n in range(8):
            if n in (0, 4):
                base = (KBASE if n == 0 else VBASE) + st*16384
                ops.append(sop('s_add_u32', 'm0', S_WOFF, base))
                if skip: ops.append(sop('s_max_u32', 'm0', 'm0', S_KVSKIP))
                ops.append(nop(0))
            if n < 4: ops.append(dma(DK[n], SRD_K, S_TILE, off=n*1024))
            else: ops.append(dma(DV[n & 1], SRD_V, S_TILE, off=(n-4)*1024))
        ops.append(sop('s_add_u32', S_TILE, S_TILE, 16384))
        return ops

    def period(self, j, first=False, last_drain=False, kv=True, kvskip=False, side_groups=(), streams=(), pre=(), post=(), vm_end=None, side_dma_list=None):
        o = self.o
        hp, hc = not first, not last_drain
        base = [self.pv_slot(j-1, 1, 0) if hp else None, self.qk_slot(j, 0, 0) if hc else None,
                self.pv_slot(j-1, 1, 1) if hp else None, self.qk_slot(j, 0, 1) if hc else None,
                self.pv_slot(j, 0, 0) if hc else None, self.qk_slot(j, 1, 0) if hc else None,
                self.pv_slot(j, 0, 1) if hc else None, self.qk_slot(j, 1, 1) if hc else None]
        lens = [18, 16]*4
        mf = []; starts = []; ends = []; side_pos = []
        for s in range(8):
            starts.append(len(mf))
            mf += base[s] if base[s] is not None else [None]*lens[s]
            ends.append(len(mf))
            for (aft, g) in side_groups:
                if aft == s:
                    side_pos.append(len(mf)); mf += g
        T = len(mf)
        self.T = T
        ops = []
        CUT0 = o.cut0; CUT1 = o.cut1
        def sm_stream(jj, kh, c, t_lo, t_hi, tpv, i0=0, i1=None, release=None):
            raw_ops = self.sm_list(jj, kh, c); n = len(raw_ops); i1 = n if i1 is None else i1
            pv = self.pv_slot(jj, kh, c); res = []
            for idx in range(i0, i1):
                ins = raw_ops[idx]
                t = t_lo + (t_hi - t_lo) * (idx - i0) / max(1, (i1 - i0)); dl = 1e9
                if ins.op == 'v_cvt_pk_bf16_f32' and tpv is not None:
                    preg = list(ins.writes)[0]
                    dl = tpv + min(q for q, m in enumerate(pv) if preg in m.reads) - o.p_lead
                res.append([t, dl, ins])
            for idx in range(len(res) - 2, -1, -1): res[idx][1] = min(res[idx][1], res[idx+1][1])
            return [Op(ins, t, release=(t_lo if release is None else release), deadline=min(dl, T - 1), stream='sm') for (t, dl, ins) in res]
        rel = o.sm_rel
        if hp:
            ops += sm_stream(j-1, 1, 0, 0, rel, starts[0], i0=CUT0, release=0)
            ops += sm_stream(j-1, 1, 1, rel, ends[1] + rel, starts[2], i0=CUT1)
        if hc:
            ops += sm_stream(j, 0, 0, ends[1] + rel, ends[3] + rel, starts[4])
            ops += sm_stream(j, 0, 1, ends[3] + rel, ends[5] + rel, starts[6])
            ops += sm_stream(j, 1, 0, ends[5] + rel, T, None, i1=CUT0)
            if CUT1: ops += sm_stream(j, 1, 1, T - 1, T, None, i1=CUT1)
        if hc:
            for (kh, ks_slot, vs_slot) in ((0, 0, 2), (1, 4, 6)):
                qk = self.qk_slot(j, kh, 0)
                for n, ins in enumerate(self.k_reads(j, kh)):
                    fu = min(q for q, m in enumerate(qk) if ins.writes & m.reads)
                    t = starts[ks_slot] + n * 18 * o.k_span / 8
                    rl = (ends[ks_slot-1] if ks_slot else -1)
                    ops.append(Op(ins, max(t, rl), release=rl - 1 if ks_slot else -1, deadline=starts[ks_slot+1] + fu - o.k_lead, stream='k'))
                pv = self.pv_slot(j, kh, 0); pvo = self.pv_slot(j, kh, 1); info = []
                for ins in self.v_reads(j, kh):
                    lu = max(q for q, m in enumerate(pvo) if ins.writes & m.reads)
                    fu = min(q for q, m in enumerate(pv) if ins.writes & m.reads)
                    nxt = starts[vs_slot+2] if vs_slot + 2 < 8 else T + 18
                    dl = nxt + fu - o.k_lead
                    if kh == 1: dl = min(dl, T - 1 - o.bar_lead)
                    info.append((starts[vs_slot] + lu + 1, dl, ins))
                info.sort(key=lambda x: x[0])
                w0 = info[0][0]; w1 = min(x[1] for x in info)
                for n, (r, dl, ins) in enumerate(info):
                    ops.append(Op(ins, max(r, w0 + (w1 - w0) * n / len(info)), release=r, deadline=dl, stream='v'))
        dstream = []
        if kv and hc:
            lst = dma_ops_with_setup(self.kv_dma((j + 2) % NST, skip=kvskip))
            pos = o.kv_pos if not side_dma_list else o.kv_pos2; n = 0
            for (ins, st) in lst:
                if ins.kind == 'dma':
                    t = pos[n]; n += 1
                else: t = pos[min(n, 7)] if n < 8 else pos[7]
                dstream.append((t, 0.0, ins, st))
        if side_dma_list:
            (lst, f0, f1, fr) = side_dma_list
            lst = dma_ops_with_setup(lst)
            nd = sum(1 for (i, _) in lst if i.kind == 'dma'); n = 0
            for (ins, st) in lst:
                dstream.append((f0 + (f1 - f0) * n / max(1, nd), fr, ins, st))
                if ins.kind == 'dma': n += 1
        for (t, fr, ins, st) in dstream:
            op = Op(ins, t * T, release=fr * T, stream='dma'); op.setup = st
            ops.append(op)
        for (name, lst) in streams:
            for (ft, fr, ins) in lst:
                ops.append(Op(ins, ft * T, release=fr * T, stream=name))
        seq, fills = list_schedule2(mf, ops, o.minfill, o.maxfill, ahead=o.early)
        self.fills = fills
        seq = list(pre) + expand(seq) + list(post)
        if getattr(o, 'diag_period', None) == j:
            marks = sorted(set(starts + side_pos + [e for e in ends] + [T - 1]))
            marks = [m for m in marks if m < T]
            new = []; k = 0
            for ins in seq:
                if ins.kind == 'mfma':
                    kk = mf.index(ins)
                    if kk in marks:
                        r = S(o.diag_base + 2*len(o.diag_marks), 2); o.diag_marks.append(kk)
                        new.append(raw(f"s_memtime {r}", 'salu', writes=[r]))
                new.append(ins)
            seq = new
        if hc:
            nvm = sum(1 for i in seq if i.kind in ('dma', 'vload', 'vstore', 'vatomic')) if vm_end is None else vm_end
            seq.append(waitcnt(vm=nvm, lgkm=0))
            if o.barrier: seq.append(barrier())
        return seq
Opt.g1_rd = (0.03, 0.3); Opt.g1_dm = (0.62, 0.95)
Opt.pf_w1_at = 8; Opt.pf_w1 = False; Opt.pf_w2 = True
Opt.prescale = False; Opt.pf_kv = True; Opt.tlb_early = True; Opt.tlb_warm = True; Opt.defer_addr = False; Opt.fast_tail = True; Opt.out_mods = ''; Opt.wq_early = False; Opt.arrive_at = 6; Opt.hpoll_at = 12; Opt.ln2_rate = 2; Opt.late2 = False; Opt.ps_from = 10; Opt.g2_tail = False; Opt.wot = False; Opt.wo_early = True; Opt.fm64 = False; Opt.g1_pos = 1; Opt.moff = 100
Opt.cut0 = 21; Opt.cut1 = 0
Opt.kv_pos = [0.147, 0.184, 0.22, 0.25, 0.647, 0.684, 0.72, 0.75]
Opt.kv_pos2 = [0.08, 0.12, 0.16, 0.20, 0.26, 0.30, 0.34, 0.38]

def side_dma(srdA, soA, strideA, srdB, soB, strideB, offsA, offsB, stage_tag, skip, modsB=""):
    o = []
    src = S_SR
    if skip:
        o.append(sop('s_max_u32', S(5), S_SR, S_SKIP)); src = S(5)
    o.append(smov('m0', src)); o.append(nop(0))
    for i in range(4): o.append(lds_dep(dma(offsA[i], srdA, soA, off=i*1024), need={f'sR{stage_tag}'}, mark={f'sL{stage_tag}'}))
    o.append(sop('s_add_u32', soA, soA, strideA))
    o.append(sop('s_add_u32', 'm0', src, 4096)); o.append(nop(0))
    for i in range(4): o.append(lds_dep(dma(offsB[i], srdB, soB, off=i*1024, mods=modsB), need={f'sR{stage_tag}'}, mark={f'sL{stage_tag}'}))
    o.append(sop('s_add_u32', soB, soB, strideB))
    return o
def spread(lst, f0, f1, rel=None):
    n = sum(1 for i in lst if cost(i) > 0) or 1
    out = []; k = 0
    for ins in lst:
        t = f0 + (f1 - f0) * k / n
        out.append((t, f0 if rel is None else rel, ins))
        if cost(ins) > 0: k += 1
    return out
def toggle_side():
    return [valu('v_xor_b32', TA[t], 8192, TA[t]) for t in range(4)] + [sop('s_xor_b32', S_SR, S_SR, 8192)]

def g1_parts(n, in_loop):
    st = n & 1
    rd = []
    for t in range(4):
        for u in range(2): rd.append(lds_dep(ds_read_tr(sfa(0, t)[2*u:2*u+2], TA[t], u*2048), need={f'sL{st}'}, mark={f'sR{st}'}))
    for t in range(4):
        for u in range(2): rd.append(lds_dep(ds_read_tr(sfb(0, t)[2*u:2*u+2], TA[t], 4096 + u*2048), need={f'sL{st}'}, mark={f'sR{st}'}))
    mf = [mfma16(sacc(ft, dt), sfa(0, ft), sfb(0, dt), sacc(ft, dt) if n else 0) for ft in range(4) for dt in range(4)]
    dm = []
    if in_loop:
        dm = [scmp('s_cmp_gt_u32', S_N, 13), I(f"s_cselect_b32 {S_SKIP}, 0x30000, 0", 'salu', reads=['scc'], writes=[S_SKIP]), sop('s_add_u32', S_N, S_N, 1)]
        dm += side_dma(SRD_W1, S_SA, 32*3584, SRD_W, S_SB, 32*1024, DA, DB, st, True, modsB=HMOD)
    elif n + 2 <= 15:
        dm = [sop('s_add_u32', S_N, S_N, 1)] + side_dma(SRD_W1, S_SA, 32*3584, SRD_W, S_SB, 32*1024, DA, DB, st, False, modsB=HMOD)
    return rd, mf, dm
def g2_parts(i):
    st = i & 1
    rd = []
    for h in range(2):
        for t in range(4):
            for u in range(2): rd.append(lds_dep(ds_read_tr(g2b(h, t)[2*u:2*u+2], TA[t], h*4096 + u*2048), need={f'sL{st}'}, mark={f'sR{st}'}))
    mfs = [[mfma16(sacc(mt, s_), g2a(h, mt), g2b(h, s_), sacc(mt, s_) if (i or h) else 0) for mt in range(4) for s_ in range(4)] for h in range(2)]
    return rd, mfs
def g2_dma(st, skip):
    return side_dma(SRD_W2, S_SA, 32*4096, SRD_W2, S_SA, 32*4096, DA, DA, st, skip)
def g2_uloads():
    o = []
    for h in range(2):
        for t in range(4): o.append(bload(4, g2a(h, t), DB[t], SRD_W, S_SB, mods="sc1"))
        o.append(sop('s_add_u32', S_SB, S_SB, 1024))
    return o

def proj_gemm2(a, s, TA_, DW, srd, SOFF, stride, S_RING, bread, uoff, name, last_pre=None, last_fill=None, dma_gap0=3, fb_base=0, hooks=None, fill=None, stage_map=None, extra_vm=None, fill_rate=2):
    NS = 3; NK = 16
    def fa(p, mt): return A(64 + 32*p + 4*mt, 4)
    def fb(p, qt): return A(fb_base + 16*p + 4*qt, 4)
    if stage_map is None: stage_map = [(TA_, st*8192, S_RING, st*8192) for st in range(NS)]
    def dma_step(n):
        o = []; st = n % NS
        (_, _, sb, madd) = stage_map[st]
        for h in range(2):
            o.append(sop('s_add_u32', 'm0', sb, madd + h*4096))
            for i in range(4):
                o.append(lds_dep(dma(DW[i], srd, SOFF, off=i*1024), need={f'{name}R{st}'}, mark={f'{name}L{st}'}))
            o.append(sop('s_add_u32', SOFF, SOFF, 16*stride))
        return o
    def reads(n):
        o = []; st = n % NS; p = n & 1
        (ta, imm, _, _) = stage_map[st]
        for qt in range(4): o.append(bread(n, qt, fb(p, qt)))
        for mt in range(8):
            for u in range(2):
                o.append(lds_dep(ds_read_tr(fa(p, mt)[2*u:2*u+2], ta[mt], imm + u*uoff), need={f'{name}L{st}'}, mark={f'{name}R{st}'}))
        return o
    s.extend(reads(0))
    for n in range(NK):
        rd = reads(n + 1) if n + 1 < NK else []
        dm = dma_step(n + 3) if n + 3 < NK else []
        if n == NK - 1:
            if last_pre: s.extend(last_pre)
            dm = list(last_fill or [])
        if extra_vm and n in extra_vm: dm = dm + extra_vm[n]
        if hooks and n in hooks: s.extend(hooks[n])
        mf = [mfma16(O(mt, qt), fa(n & 1, mt), fb(n & 1, qt), O(mt, qt) if n else 0) for mt in range(8) for qt in range(4)]
        gaps = [[] for _ in range(32)]
        g = dma_gap0
        for (ins, st_) in dma_ops_with_setup(dm):
            if ins.kind in ('dma', 'vload'):
                gaps[g - 1] += st_; gaps[g].append(ins); g = min(31, g + 2) if g + 2 <= 31 else 31
            else: gaps[min(31, g - 1)].append(ins) if g > dma_gap0 else gaps[0].append(ins)
        ev = [k for k in range(32) if not any(i.kind in ('dma', 'vload') for i in gaps[k])]
        for k, ins in enumerate(rd): gaps[ev[min(len(ev) - 1, k // 2)]].append(ins)
        for k, m in enumerate(mf):
            a(m); s.extend(sort_gap(gaps[k]))
            if fill:
                take = 0
                lim = fill_rate if not any(i.kind in ('dma', 'vload') for i in gaps[k]) else 0
                while fill and take < lim:
                    ins = fill.pop(0); a(ins)
                    if cost(ins) > 0: take += 1
    assert not fill

def proj_gemm3(a, s, srd, SOFF, VL, bread, abase, bbase, mid_fill=None, mods="sc1"):
    NK = 16; NT = 2*NK
    def fa(t, m): return A(abase + 16*(t % P3_SETS) + 4*m, 4)
    def fb(p, qt): return A(bbase + 16*p + 4*qt, 4)
    rdB = lambda t: [bread(t % NK, qt, fb(t & 1, qt)) for qt in range(4)]
    s.extend(rdB(0))
    fill = list(mid_fill or [])
    for t in range(NT):
        h, n = t // NK, t % NK
        rd = rdB(t + 1) if t + 1 < NT else []
        ld = proj3_loads(srd, SOFF, VL, t + P3_DEPTH, abase, mods) if t + P3_DEPTH < NT else []
        mf = [mfma16(O(4*h + m, qt), fa(t, m), fb(t & 1, qt), O(4*h + m, qt) if n else 0) for m in range(4) for qt in range(4)]
        gaps = [[] for _ in range(16)]
        g = 3
        for ins in ld:
            if ins.kind == 'vload':
                gaps[min(15, g)].append(ins); g += 3
            else: gaps[min(15, max(0, g - 1))].append(ins)
        for k, ins in enumerate(rd): gaps[1 + 3*k].append(ins)
        for k, m in enumerate(mf):
            a(m); s.extend(sort_gap(gaps[k]))
            if t >= NT - P3_DEPTH and fill:
                for _ in range(1 if gaps[k] else 2):
                    if fill: a(fill.pop(0))
                while fill and cost(fill[0]) == 0: a(fill.pop(0))
    s.extend(fill)
P3_SETS = 8; P3_DEPTH = 7
def proj3_loads(srd, SOFF, VL, t, abase, mods="sc1"):
    o = []
    for m in range(4): o.append(bload(4, A(abase + 16*(t % P3_SETS) + 4*m, 4), VL, srd, SOFF, off=m*1024, mods=mods))
    o.append(sop('s_add_u32', SOFF, SOFF, 32768) if (t % 16) != 15 else sop('s_sub_u32', SOFF, SOFF, 15*32768 - 4096))
    return o

def build(opt=None):
    o = opt or Opt()
    at = Attn(o)
    STP = Stamps(o.timing, 3); STP.cyc = getattr(o, 'cyc', False)
    s = []; a = s.append
    l = V(0)
    s.extend(STP())
    if getattr(o, 'dbgtime', False): a(raw('s_memrealtime s[94:95]', 'smem', writes=[S(94, 2)]))
    a(sload(S(4, 2), ARG_K)); a(sload(S(6, 2), ARG_V)); a(sload(S(22, 2), ARG_WS))
    a(sload(S(36, 2), ARG_WQ)); a(sload(S(56, 2), ARG_WO))
    a(sload(S(62, 2), ARG_W1)); a(sload(S(60, 2), ARG_W2)); a(sload(S(58, 2), ARG_DBG))
    if o.fuse_ln: a(sload(S(100, 2), ARG_X))
    a(raw("s_cmp_ge_u32 s2, 256")); a(raw("s_cbranch_scc1 L_k3_end", 'branch'))
    a(valu('v_lshrrev_b32', V(1), 6, V(0)))
    a(readfirstlane(S_WAVE, V(1)))
    a(valu('v_and_b32', l, 63, l))
    a(waitcnt(lgkm=0))
    a(raw("s_and_b32 s25, s2, 7", writes=[S_G])); a(raw("s_lshr_b32 s26, s2, 3", writes=[S_QB]))
    S_RING = S(41); S_SO = S(42); S_T = S(43)
    SRD_X = S(96, 4)
    XP = V(48, 64)
    if o.fuse_ln:
        s.extend(make_srd(SRD_X, S(100, 2), 2 << 20))
        a(valu('v_and_b32', V(1), 15, l)); a(valu('v_lshlrev_b32', V(1), 10, V(1)))
        a(valu('v_lshrrev_b32', V(2), 4, l)); a(valu('v_lshl_add_u32', V(1), V(2), 4, V(1)))
        a(raw("s_lshl_b32 s42, s26, 6", writes=[S_SO])); a(raw("s_lshl_b32 s43, s24, 4", writes=[S_T]))
        a(raw("s_add_u32 s42, s42, s43", writes=[S_SO])); a(raw("s_lshl_b32 s42, s42, 10", writes=[S_SO]))
        if getattr(o, 'fine2', False): s.extend(STP())
        for i in range(16): a(bload(4, XP[4*i:4*i+4], V(1), SRD_X, S_SO, off=64*i))
        if getattr(o, 'fine2', False): s.extend(STP())
    s.extend(make_srd(SRD_WQ, S(36, 2), 512*4096*2))
    a(valu('v_lshlrev_b32', V(7), 4, l))
    if o.prefetch:
        a(raw("s_lshl_b32 s42, s26, 4", writes=[S_SO])); a(raw("s_lshl_b32 s43, s24, 2", writes=[S_T]))
        a(raw("s_add_u32 s42, s42, s43", writes=[S_SO])); a(raw("s_lshl_b32 s42, s42, 13", writes=[S_SO]))
        a(raw("s_lshl_b32 s43, s25, 10", writes=[S_T])); a(raw("s_add_u32 s42, s42, s43", writes=[S_SO]))
        for n in range(4):
            a(bload(4, A(192 + 4*n, 4), V(7), SRD_WQ, S_SO)); a(sop('s_add_u32', S_SO, S_SO, 8192))
    a(raw("s_lshl_b32 s27, s25, 19", writes=[S(27)]))
    a(raw("s_sub_u32 s40, 0x400000, s27", writes=[S(40)]))
    s.extend(make_srd(SRD_K, S(4, 2), S(40), add=S(27))); s.extend(make_srd(SRD_V, S(6, 2), S(40), add=S(27)))
    s.extend(make_srd(SRD_W, S(22, 2), WS_END))
    s.extend(make_srd(SRD_WO, S(56, 2), 4096*512*2))
    a(raw("s_lshr_b32 s46, s26, 3", writes=[S_T64])); a(raw("s_lshl_b32 s46, s46, 3", writes=[S_T64])); a(raw("s_add_u32 s46, s46, s25", writes=[S_T64]))
    a(raw("s_and_b32 s47, s26, 7", writes=[S_DT]))
    a(raw("s_cmp_lt_u32 s46, 28"))
    a(raw(f"s_cselect_b32 s44, {2048*1792*2}, 0", writes=[S(44)]))
    a(raw(f"s_cselect_b32 s45, {WS_END}, 0", writes=[S(45)]))
    s.extend(make_srd(SRD_W1, S(62, 2), S(44)))
    s.extend(make_srd(SRD_W2, S(60, 2), 1792*2048*2))
    s.extend(make_srd(SRD_DBG, S(58, 2), 256))
    s.extend(make_srd(SRD_US, S(22, 2), S(45)))
    if o.tlb_early:
        a(valu('v_lshlrev_b32', V(2), 25, l)); a(raw("s_lshl_b32 s44, s24, 9", writes=[S(44)])); a(raw("s_mul_i32 s44, s44, 3584", writes=[S(44)]))
        a(bload(1, A(211), V(2), SRD_W1, S(44)))
        a(bload(1, A(212), V(2), SRD_WO, S(27)))
    if o.pf_kv:
        a(valu('v_and_b32', V(2), 15, l)); a(raw("s_lshl_b32 s44, s26, 4", writes=[S(44)])); a(valu('v_add_u32', V(2), S(44), V(2))); a(valu('v_lshlrev_b32', V(2), 7, V(2)))
        a(I("v_cmp_gt_u32 vcc, 16, v0", 'valu', reads=[V(0)], writes=['vcc'])); a(nop(1))
        a(I(f"v_cndmask_b32 v2, -1, v2, vcc", 'valu', reads=[V(2), 'vcc'], writes=[V(2)]))
        a(bload(1, A(209), V(2), SRD_K, 0)); a(bload(1, A(210), V(2), SRD_V, 0))
    a(raw("s_lshl_b32 s21, s24, 12", writes=[S_WOFF]))
    a(raw("s_mul_i32 s41, s24, 24576", writes=[S_RING]))
    for r in range(4): a(valu('v_mov_b32', ONES[r], 0x3F803F80))
    if not o.fuse_ln:
        a(raw("s_lshl_b32 s42, s26, 6", writes=[S_SO])); a(raw("s_lshl_b32 s43, s24, 4", writes=[S_T]))
        a(raw("s_add_u32 s42, s42, s43", writes=[S_SO])); a(raw("s_lshl_b32 s42, s42, 10", writes=[S_SO]))
        a(raw("s_lshl_b32 s43, s24, 14", writes=[S_T])); a(raw(f"s_add_u32 s43, s43, {XBASE}", writes=[S_T]))
        for n in range(16):
            if n % 4 == 0: a(smov('m0', S_T))
            a(valu('v_xor_b32', V(14 + (n & 3)), n << 4, V(7)))
            a(lds_dep(dma(V(14 + (n & 3)), SRD_W, S_SO, off=(n & 3)*1024), mark={'XN'}))
            if n % 4 == 3:
                a(sop('s_add_u32', S_SO, S_SO, 4096)); a(sop('s_add_u32', S_T, S_T, 4096))
    PTA = [V(32 + i) for i in range(8)]; XA = [V(40 + i) for i in range(4)]; DW = [V(44 + i) for i in range(4)]
    dma_off_256(a, l, DW, 8192, 'q', S_T)
    a(raw("s_lshl_b32 s42, s25, 2", writes=[S_SO])); a(raw("s_add_u32 s42, s42, s24", writes=[S_SO]))
    a(raw("s_lshl_b32 s42, s42, 8", writes=[S_SO]))
    def wq_stage(n):
        o_ = []
        for h in range(2):
            o_ += [sop('s_add_u32', 'm0', S_RING, n*8192 + h*4096), nop(0)]
            for i in range(4): o_.append(lds_dep(dma(DW[i], SRD_WQ, S_SO, off=i*1024), need={f'qR{n}'}, mark={f'qL{n}'}))
            o_.append(sop('s_add_u32', S_SO, S_SO, 16*8192))
        return o_
    a(valu('v_mov_b32', V(6), S_RING))
    addr_tr256(a, l, PTA, V(6), 8)
    a(valu('v_and_b32', V(1), 15, l)); a(valu('v_lshrrev_b32', V(2), 4, l))
    a(valu('v_lshlrev_b32', V(3), 10, V(1))); a(valu('v_add_u32', V(3), XBASE, V(3)))
    for k in range(4):
        a(valu('v_add_u32', V(4), 4*k, V(2))); a(valu('v_xor_b32', V(4), V(4), V(1)))
        a(valu('v_lshl_add_u32', XA[k], V(4), 4, V(3)))
    TV = (lambda k: V(96 + k)) if o.defer_addr else (lambda k: V(k) if k < 8 else V(26))
    s_main0, a_main0 = s, a
    deferred = []
    if o.defer_addr:
        s = deferred; a = deferred.append
    a(valu('v_lshrrev_b32', TV(2), 4, l)); a(valu('v_and_b32', TV(3), 15, l))
    for i in range(4):
        a(valu('v_add_u32', TV(4), 4*i, TV(2))); a(valu('v_xor_b32', TV(4), TV(4), TV(3)))
        a(valu('v_lshlrev_b32', TV(4), 4, TV(4))); a(valu('v_lshl_add_u32', KA[i], TV(3), 8, TV(4)))
    a(valu('v_lshrrev_b32', TV(4), 2, TV(3))); a(valu('v_and_b32', TV(5), 3, l))
    a(valu('v_lshl_add_u32', TV(7), TV(2), 2, TV(4)))
    a(valu('v_and_b32', TV(1), 7, TV(7))); a(valu('v_lshlrev_b32', TV(1), 1, TV(1)))
    a(valu('v_lshlrev_b32', TV(7), 8, TV(7)))
    a(valu('v_and_b32', TV(6), 1, TV(5))); a(valu('v_lshl_add_u32', TV(7), TV(6), 3, TV(7)))
    a(valu('v_add_u32', TV(7), VBASE, TV(7)))
    a(valu('v_lshrrev_b32', TV(6), 1, TV(5)))
    for dt in range(8):
        a(valu('v_add_u32', TV(5), 2*dt, TV(6))); a(valu('v_xor_b32', TV(5), TV(5), TV(1)))
        a(valu('v_lshl_add_u32', VA[dt], TV(5), 4, TV(7)))
    a(valu('v_lshlrev_b32', TV(5), 8, TV(2))); a(valu('v_add_u32', TV(5), S_WOFF, TV(5)))
    for n in range(4):
        a(valu('v_add_u32', TV(6), 4*n, TV(2))); a(valu('v_xor_b32', TV(6), TV(6), TV(3)))
        a(valu('v_lshl_add_u32', DK[n], TV(6), 4, TV(5)))
    for n in range(2):
        a(valu('v_add_u32', TV(6), 4*n, TV(2))); a(valu('v_lshlrev_b32', TV(6), 1, TV(6)))
        a(valu('v_xor_b32', TV(6), TV(6), TV(3))); a(valu('v_lshl_add_u32', DV[n], TV(6), 4, TV(5)))
    a(raw("s_lshl_b32 s27, s24, 14", writes=[S_XB])); a(raw(f"s_add_u32 s27, s27, {XBASE}", writes=[S_XB]))
    a(smov(S_SR, S_XB))
    a(valu('v_mov_b32', TV(8), S_XB))
    tr_addr_128(a, l, TA, TV(8), TV(1), TV(2), TV(3), TV(4))
    dma_off_128(a, l, DA, 3584, TV(1), TV(2), TV(3), s_tmp=S_T)
    dma_off_128(a, l, DB, 1024, TV(1), TV(2), TV(3), s_tmp=S_T)
    a(raw("s_lshl_b32 s44, s24, 9", writes=[S(44)]))
    a(raw("s_mul_i32 s39, s44, 3584", writes=[S_SA])); a(raw("s_lshl_b32 s45, s46, 7", writes=[S(45)])); a(raw("s_add_u32 s39, s39, s45", writes=[S_SA]))
    a(raw("s_lshl_b32 s36, s44, 10", writes=[S_SB])); a(raw("s_lshl_b32 s45, s47, 7", writes=[S(45)])); a(raw("s_add_u32 s36, s36, s45", writes=[S_SB]))
    a(raw(f"s_add_u32 s36, s36, {WS_H}", writes=[S_SB]))
    s, a = s_main0, a_main0
    a(smov(S_N, 0)); a(smov(S_SKIP, 0))
    if getattr(o, 'fine', False): s.extend(STP())
    s.extend(wq_stage(0))
    if getattr(o, 'fine', False):
        a(lds_dep(nop(0), need=set(XP.regs()))); s.extend(STP())
    def pk(op, d, x, y, z=None, mods=""):
        srcs = [x, y] + ([z] if z is not None else [])
        return I(f"{op} {d}, " + ", ".join(str(t) for t in srcs) + (" " + mods if mods else ""), 'valu', reads=srcs, writes=[d], op=op)
    if o.fuse_ln:
        F = lambda i, e: V(128 + 8*i + e)
        D1 = V(28, 4); D2 = V(4, 4)
        for i in range(16):
            a(mfma16(D1, ONES, XP[4*i:4*i+4], D1 if i else 0)); a(mfma16(D2, XP[4*i:4*i+4], XP[4*i:4*i+4], D2 if i else 0))
            for q in range(4):
                a(valu('v_lshlrev_b32', F(i, 2*q), 16, XP[4*i+q])); a(valu('v_and_b32', F(i, 2*q+1), 0xffff0000, XP[4*i+q]))
        if o.wq_early: s.extend(wq_stage(1)); s.extend(wq_stage(2))
        a(valu('v_and_b32', V(1), 3, l))
        for r in (2, 1, 0):
            a(I(f"v_cmp_eq_u32 vcc, {r}, v1", 'valu', reads=[V(1)], writes=['vcc']))
            a(I(f"v_cndmask_b32 v7, v7, {D2[r]}, vcc", 'valu', reads=[V(7), D2[r], 'vcc'], writes=[V(7)]))
        a(valu('v_and_b32', V(1), 15, l)); a(valu('v_lshrrev_b32', V(2), 2, V(1)))
        a(valu('v_lshl_add_u32', V(2), V(2), 4, V(1))); a(valu('v_lshlrev_b32', V(2), 2, V(2)))
        a(I("ds_bpermute_b32 v3, v2, v7", 'ds_read', reads=[V(2), V(7)], writes=[V(3)]))
        MEAN = V(28); RS = V(2); NB = V(3)
        a(valu('v_mul_f32', MEAN, 1.0/512, MEAN))
        a(valu('v_mul_f32', V(3), 1.0/512, V(3)))
        a(valu('v_fma_f32', V(3), '-v28', MEAN, V(3)))
        a(valu('v_max_f32', V(3), 0, V(3)))
        a(valu('v_add_f32', V(3), 1e-5, V(3)))
        a(valu('v_rsq_f32', RS, V(3)))
        if o.prescale: a(valu('v_mul_f32', RS, QSCALE, RS))
        a(valu('v_mul_f32', NB, MEAN, RS)); a(valu('v_sub_f32', NB, 0, NB))
        for i in range(16):
            for e in range(8): a(valu('v_fma_f32', F(i, e), F(i, e), RS, NB))
        a(valu('v_and_b32', V(4), 15, l)); a(valu('v_lshrrev_b32', V(5), 4, l))
        a(raw("s_lshl_b32 s43, s24, 14", writes=[S_T])); a(raw(f"s_add_u32 s43, s43, {XBASE}", writes=[S_T]))
        a(valu('v_lshlrev_b32', V(6), 10, V(4))); a(valu('v_add_u32', V(6), S_T, V(6)))
        WA = [V(28 + k) for k in range(4)]
        for k in range(4):
            a(valu('v_add_u32', V(7), 4*k, V(5))); a(valu('v_xor_b32', V(7), V(7), V(4))); a(valu('v_lshl_add_u32', WA[k], V(7), 4, V(6)))
        for i in range(16):
            for q in range(4): a(valu('v_cvt_pk_bf16_f32', XP[4*i+q], F(i, 2*q), F(i, 2*q+1)))
            a(ds_write(4, WA[i & 3], XP[4*i:4*i+4], off=(i >> 2)*256))
        if getattr(o, 'fine', False): s.extend(STP())
        a(waitcnt(lgkm=0)); a(barrier())
        if getattr(o, 'fine', False): s.extend(STP())
    else:
        a(waitcnt(vm=8)); a(barrier())
    if not (o.fuse_ln and o.wq_early): s.extend(wq_stage(1)); s.extend(wq_stage(2))
    if o.fuse_ln:
        s_main, a_main = s, a
        ln2 = []; s = ln2; a = ln2.append
        R0 = [V(64 + i) for i in range(8)]; R1 = [V(72 + i) for i in range(8)]
        PK = [V(80, 4), V(84, 4)]
        a(raw("s_lshl_b32 s44, s25, 3", writes=[S(44)])); a(raw("s_lshl_b32 s45, s24, 1", writes=[S(45)])); a(raw("s_add_u32 s44, s44, s45", writes=[S(44)]))
        for k in range(2):
            a(sop('s_add_u32', S(45), S(44), k)); a(sop('s_and_b32', S(5), S(45), 15)); a(raw("s_lshl_b32 s5, s5, 4", writes=[S(5)]))
            a(raw("s_lshl_b32 s45, s45, 10", writes=[S(45)])); a(raw(f"s_add_u32 s45, s45, {XBASE}", writes=[S(45)]))
            a(valu('v_lshlrev_b32', V(94), 4, l)); a(valu('v_xor_b32', V(94), S(5), V(94))); a(valu('v_add_u32', V(94), S(45), V(94)))
            a(ds_read_b128(PK[k], V(94)))
        RR = [R0, R1]; SM = [V(88), V(90)]; TT = [V(89), V(91)]; QQ = [V(92), V(93)]
        for k in range(2):
            for q in range(4):
                a(valu('v_lshlrev_b32', RR[k][2*q], 16, PK[k][q])); a(valu('v_and_b32', RR[k][2*q+1], 0xffff0000, PK[k][q]))
        def both(f):
            x0, x1 = f(0), f(1)
            for u, v_ in zip(x0, x1): a(u); a(v_)
        both(lambda k: [valu('v_add_f32', SM[k], RR[k][0], RR[k][1])] + [valu('v_add_f32', SM[k], SM[k], RR[k][e]) for e in range(2, 8)])
        both(lambda k: wave_sum(SM[k], TT[k]))
        both(lambda k: [valu('v_mul_f32', SM[k], 1.0/512, SM[k])] + [valu('v_sub_f32', RR[k][e], RR[k][e], SM[k]) for e in range(8)])
        both(lambda k: [valu('v_mul_f32', QQ[k], RR[k][0], RR[k][0])] + [valu('v_fmac_f32', QQ[k], RR[k][e], RR[k][e], dst_read=True) for e in range(1, 8)])
        both(lambda k: wave_sum(QQ[k], TT[k]))
        both(lambda k: [valu('v_mov_b32', TT[k], 1e-5 * (QSCALE*QSCALE if o.prescale else 1.0)), valu('v_fmac_f32', TT[k], 1.0/512, QQ[k], dst_read=True), valu('v_rsq_f32', TT[k], TT[k])] +
                       [valu('v_mul_f32', RR[k][e], RR[k][e], TT[k]) for e in range(8)] + [valu('v_cvt_pk_bf16_f32', PK[k][q], RR[k][2*q], RR[k][2*q+1]) for q in range(4)])
        a(raw("s_lshl_b32 s45, s26, 6", writes=[S(45)])); a(raw("s_add_u32 s45, s45, s44", writes=[S(45)])); a(raw("s_lshl_b32 s45, s45, 10", writes=[S(45)]))
        a(raw(f"s_add_u32 s45, s45, {WS_H}", writes=[S(45)]))
        a(valu('v_lshlrev_b32', V(94), 4, l))
        a(lds_dep(bstore(4, PK[0], V(94), SRD_W, S(45), mods="sc1"), mark={'HS'}))
        a(lds_dep(bstore(4, PK[1], V(94), SRD_W, S(45), off=1024, mods="sc1"), mark={'HS'}))
        a(valu('v_lshlrev_b32', V(95), 25, l)); a(valu('v_mov_b32', V(96), 0))
        a(raw("s_and_b32 s45, s2, 127", writes=[S(45)])); a(raw("s_lshl_b32 s45, s45, 8", writes=[S(45)])); a(raw(f"s_add_u32 s45, s45, {WS_CNT}", writes=[S(45)]))
        a(lds_dep(bstore(1, V(96), V(95), SRD_W, S(45), mods="sc1"), mark={'HS'}))
        s, a = s_main, a_main
    s.extend(STP())
    def xread(n, qt, dst): return ds_read_b128(dst, XA[n & 3], (n >> 2)*256 + qt*16384)
    kv0 = [smov(S_TILE, 0)] + at.kv_dma(0)
    later = []; later2 = []
    if o.side: later += side_dma(SRD_W1, S_SA, 32*3584, SRD_W, S_SB, 32*1024, DA, DB, 0, False, modsB=HMOD) + [sop('s_xor_b32', S_SR, S_SR, 8192)]
    later2 += at.kv_dma(1)
    if o.side: later2 += side_dma(SRD_W1, S_SA, 32*3584, SRD_W, S_SB, 32*1024, DA, DB, 1, False, modsB=HMOD) + [sop('s_xor_b32', S_SR, S_SR, 8192)]
    if not o.late2: later += later2; later2 = []
    hooks = {}
    last_pre = [waitcnt(lgkm=0)]
    if o.fuse_ln:
        arrive = [lds_dep(nop(0), need={'HS'}), barrier(),
                  valu('v_mov_b32', V(4), 1), valu('v_lshlrev_b32', V(5), 25, l),
                  raw("s_and_b32 s44, s2, 3", writes=[S(44)]), raw("s_lshl_b32 s44, s44, 6", writes=[S(44)]),
                  raw("s_cmp_eq_u32 s24, 0"), raw("s_cselect_b32 s44, s44, 0x1000", reads=['scc'], writes=[S(44)]),
                  I(f"buffer_atomic_add v4, v5, {SRD_DBG}, s44 offen sc1", 'vatomic', reads=[V(4), V(5), SRD_DBG, S(44)], writes=[])]
        hooks[o.arrive_at] = arrive
        if o.prefetch and o.side and o.pf_w1:
            hooks[o.pf_w1_at] = [raw("s_lshl_b32 s44, s47, 2", writes=[S(44)]), raw("s_add_u32 s44, s44, s24", writes=[S(44)]), raw("s_lshl_b32 s44, s44, 6", writes=[S(44)]),
                        valu('v_add_u32', V(2), S(44), l), smov(S(44), 3584), valu('v_mul_lo_u32', V(2), V(2), S(44)),
                        raw("s_lshl_b32 s44, s46, 7", writes=[S(44)]), bload(1, A(208), V(2), SRD_W1, S(44))]
        hooks[o.hpoll_at] = [valu('v_and_b32', V(1), 3, l), valu('v_lshlrev_b32', V(1), 6, V(1)), bload(1, V(6), V(1), SRD_DBG, 0, mods="sc1")]
        chk = lambda: [I("v_cmp_le_u32 vcc, 64, v6", 'valu', reads=[V(6)], writes=['vcc']), nop(3), raw("s_cmp_eq_u64 vcc, -1", reads=['vcc'])]
        last_pre += [smov(S(45), 0), label("L_k3_hpoll")] + chk() + [raw("s_cbranch_scc1 L_k3_hpollok", 'branch'),
                     raw("s_sleep 4"), bload(1, V(6), V(1), SRD_DBG, 0, mods="sc1"), waitcnt(vm=0),
                     sop('s_add_u32', S(45), S(45), 1), scmp('s_cmp_lt_u32', S(45), 0x40000), raw("s_cbranch_scc1 L_k3_hpoll", 'branch'), label("L_k3_hpollok")]
    if getattr(o, 'qdiag', False):
        for n_ in (2, 4, 6, 8, 10, 12, 14): hooks[n_] = STP() + hooks.get(n_, [])
    last_pre += [barrier()]
    proj_gemm2(a, s, PTA, DW, SRD_WQ, S_SO, 8192, S_RING, xread, 1024, 'q', last_pre=last_pre, last_fill=kv0, hooks=hooks, fill=((ln2 + deferred) if o.fuse_ln else None), fill_rate=o.ln2_rate)
    s.extend(STP())
    a(sload(S(96, 2), ARG_B1)); a(sload(S(98, 2), ARG_B2)); a(sload(S(100, 2), ARG_OUT))
    a(smov(S(44), QSCALE))
    qpost = []
    for i in range(4):
        for qt in range(4):
            x, y = O(2*i, qt), O(2*i+1, qt)
            b_ = qpost.append
            if not (o.prescale and o.fuse_ln):
                for r in range(4):
                    b_(valu('v_mul_f32', x[r], S(44), x[r])); b_(valu('v_mul_f32', y[r], S(44), y[r]))
            T4 = V(48 + 4*((i*4+qt) & 1), 4)
            X0, X1, Y0, Y1 = T4[0], T4[1], T4[2], T4[3]
            b_(valu('v_cvt_pk_bf16_f32', X0, x[0], x[1])); b_(valu('v_cvt_pk_bf16_f32', X1, x[2], x[3]))
            b_(valu('v_cvt_pk_bf16_f32', Y0, y[0], y[1])); b_(valu('v_cvt_pk_bf16_f32', Y1, y[2], y[3]))
            b_(permlane32_swap(X0, Y0)); b_(permlane32_swap(X1, Y1))
            b_(permlane16_swap(X0, Y0)); b_(permlane16_swap(X1, Y1))
            q = Q(i, qt)
            b_(valu('v_accvgpr_write_b32', q[0], X0)); b_(valu('v_accvgpr_write_b32', q[1], X1))
            b_(valu('v_accvgpr_write_b32', q[2], Y0)); b_(valu('v_accvgpr_write_b32', q[3], Y1))
    grp = group_dma(later)
    step = max(1, len(qpost) // (len(grp) + 1)); gi = 0
    for k, ins in enumerate(qpost):
        a(ins)
        if k % step == step - 1 and gi < len(grp):
            s.extend(expand([grp[gi]])); gi += 1
            while gi < len(grp) and not isinstance(grp[gi], Grp):
                a(grp[gi]); gi += 1
    for g_ in grp[gi:]: s.extend(expand([g_]))
    s.extend(STP())
    a(waitcnt(vm=((8 if o.side else 0) if o.late2 else (24 if o.side else 8)))); a(barrier())
    MX = [V(18 + 0), V(19), V(20), V(21)] if False else [V(28), V(29), V(30), V(31)]
    g2l = group_dma(later2)
    for kh in range(2 if o.fm64 else 1):
        s.extend(at.k_reads(0, kh))
        for c in range(2):
            for q2 in range(2):
                for t in range(2):
                    for i in range(4):
                        a(mfma16(Sx(c, t, q2), Kf(t*4+i), Q(i, 2*c+q2), 0 if i == 0 else Sx(c, t, q2)))
                        if g2l and (i & 1):
                            s.extend(expand([g2l.pop(0)]))
                            while g2l and not isinstance(g2l[0], Grp): a(g2l.pop(0))
        for qt in range(4):
            c, q2 = qt >> 1, qt & 1
            s0, s1 = Sx(c, 0, q2), Sx(c, 1, q2); m = MX[qt]
            if kh == 0: a(valu('v_max3_f32', m, s0[0], s0[1], s0[2]))
            else: a(valu('v_max3_f32', m, s0[0], s0[1], m)); a(valu('v_max_f32', m, m, s0[2]))
            a(valu('v_max3_f32', m, m, s0[3], s1[0])); a(valu('v_max3_f32', m, m, s1[1], s1[2])); a(valu('v_max_f32', m, m, s1[3]))
    s.extend(expand(g2l))
    for qt in range(4):
        m = MX[qt]; t = V(5)
        a(valu('v_mov_b32', t, m)); a(permlane16_swap(m, t)); a(valu('v_max_f32', m, m, t))
        a(valu('v_mov_b32', t, m)); a(permlane32_swap(m, t)); a(valu('v_max_f32', m, m, t))
        for r in range(4): a(valu('v_sub_f32', NM[qt][r], float(-o.moff), m))
    s.extend(STP())
    if o.fuse_ln:
        i_st = max(i for i, x in enumerate(s) if 'HS' in getattr(x, 'mark', set()))
        i_ar = min(i for i, x in enumerate(s) if 'HS' in getattr(x, 'need', set()))
        assert i_st < i_ar, 'h stores must be issued before the arrival'
    pro = s
    B1 = S(28, 4); B2 = S(32 - 4, 4)
    def scratch_write():
        o_ = [valu('v_lshlrev_b32', V(27), 4, l), valu('v_add_u32', V(26), S_XB, V(27))]
        for i in range(4):
            for j in range(4): o_.append(ds_write(4, V(26), sacc(i, j), off=(i*4+j)*1024))
        o_ += [raw("s_lshl_b32 s43, s24, 10", writes=[S_TMP]), raw(f"s_add_u32 s43, s43, {XBASE}", writes=[S_TMP]), valu('v_add_u32', V(27), S_TMP, V(27))]
        return o_
    PS = [[V(18, 2), V(20, 2), V(22, 2), V(24, 2)], [V(28, 2), V(30, 2), V(2, 2), V(4, 2)]]
    def unit_reads(u):
        i, h = u >> 1, u & 1
        return [ds_read_b64(PS[u & 1][w], V(27), w*16384 + i*4096 + 8*h) for w in range(4)]
    def unit_sum(u, e):
        P_ = PS[u & 1]; x = P_[3][e]
        return [valu('v_add_f32', P_[0][e], P_[0][e], P_[1][e]), valu('v_add_f32', x, x, P_[2][e]), valu('v_add_f32', x, x, P_[0][e])], x
    per = {}
    def side_spec(j):
        kw = dict(first=(j == 0), last_drain=(j == 32), kv=(j <= 29))
        if not o.side: return kw
        if j <= 15:
            rd, mf, dm = g1_parts(j, in_loop=(j >= 1))
            kw['side_groups'] = [(5, mf)] if o.g1_pos == 0 else ([(3, mf[:8]), (5, mf[8:])] if o.g1_pos == 1 else [(7, mf)] if o.g1_pos == 2 else [(1, mf[:4]), (3, mf[4:8]), (5, mf[8:12]), (6, mf[12:])])
            if getattr(o, 'x_noread', False): rd = []
            if getattr(o, 'x_nodma', False): dm = [i for i in dm if i.kind != 'dma' and 'm0' not in i.writes]
            kw['streams'] = [('srd', spread(rd, o.g1_rd[0], o.g1_rd[1]))]
            if dm: kw['side_dma_list'] = (dm, o.g1_dm[0], o.g1_dm[1], 0.5)
            kw['post'] = toggle_side()
        elif j == 16:
            pre = make_srd(B1, S(96, 2), 1792*2)
            bl = [valu('v_lshrrev_b32', V(1), 4, l), valu('v_lshlrev_b32', V(1), 3, V(1)), raw("s_lshl_b32 s44, s46, 7", writes=[S(44)])]
            bl += [bload(2, A(192 + 2*ft, 2), V(1), B1, S(44), off=32*ft) for ft in range(4)]
            kw['pre'] = pre
            pf = []
            if o.prefetch and o.pf_w2 and not o.g2_tail:
                pf = [raw("s_mul_i32 s44, s47, 224", writes=[S(44)]), raw("s_mul_i32 s45, s24, 56", writes=[S(45)]), raw("s_add_u32 s44, s44, s45", writes=[S(44)]),
                      valu('v_add_u32', V(2), S(44), l), valu('v_lshlrev_b32', V(2), 12, V(2)), raw("s_lshl_b32 s45, s46, 7", writes=[S(45)]),
                      bload(1, A(200), V(2), SRD_W2, S(45))]
            if o.wot:
                pf += [raw("s_lshl_b32 s3, s25, 4", writes=[S(3)]), raw("s_lshr_b32 s5, s26, 1", writes=[S(5)]), raw("s_add_u32 s3, s3, s5", writes=[S(3)]),
                       raw("s_lshl_b32 s3, s3, 15", writes=[S(3)]), raw("s_and_b32 s5, s26, 1", writes=[S(5)]), raw("s_lshl_b32 s5, s5, 9", writes=[S(5)]),
                       raw("s_add_u32 s3, s3, s5", writes=[S(3)]), raw("s_lshl_b32 s5, s24, 7", writes=[S(5)]), raw("s_add_u32 s3, s3, s5", writes=[S(3)]),
                       valu('v_and_b32', V(3), 31, l), valu('v_lshlrev_b32', V(3), 10, V(3)), bload(1, A(201), V(3), SRD_WO, S(3))]
            kw['streams'] = [('sw', spread(scratch_write(), 0.1, 0.7)), ('sb', spread(bl, 0.05, 0.1)), ('spf', [(0.15, 0.12, i) for i in pf])]
        elif j == 17:
            comp = [smov(S(45), -2.0*0.7978845608028654*LOG2E*0.044715), valu('v_mov_b32', V(1), -2.0*0.7978845608028654*LOG2E)]
            comp += [raw("s_lshl_b32 s43, s47, 2", writes=[S_TMP]), raw("s_add_u32 s43, s43, s24", writes=[S_TMP]), raw("s_mul_i32 s43, s43, 56", writes=[S_TMP]),
                     raw("s_lshl_b32 s39, s46, 1", writes=[S_SA]), raw("s_add_u32 s43, s43, s39", writes=[S_TMP]), raw("s_lshl_b32 s43, s43, 10", writes=[S_TMP]),
                     raw(f"s_add_u32 s43, s43, {WS_U}", writes=[S_TMP]), valu('v_lshlrev_b32', V(26), 4, l)]
            OUTA = A(240, 8)
            comp += unit_reads(0)
            for u in range(8):
                ft, h = u >> 1, u & 1
                if u + 1 < 8: comp += unit_reads(u + 1)
                comp.append(valu('v_accvgpr_read_b32', V(6), A(192 + 2*ft + h)))
                xs = []
                for e in range(2):
                    sm_, x = unit_sum(u, e); comp += sm_; xs.append(x)
                    comp.append(valu('v_and_b32', V(7), 0xffff0000, V(6)) if e else valu('v_lshlrev_b32', V(7), 16, V(6)))
                    comp.append(valu('v_add_f32', x, x, V(7)))
                    comp += [valu('v_mul_f32', V(7), x, x), valu('v_fma_f32', V(7), V(7), S(45), V(1)), valu('v_mul_f32', V(7), V(7), x), valu('v_exp_f32', V(7), V(7)),
                             valu('v_add_f32', V(7), 1.0, V(7)), valu('v_rcp_f32', V(7), V(7)), valu('v_mul_f32', x, x, V(7))]
                comp += [valu('v_cvt_pk_bf16_f32', V(6), xs[0], xs[1]), valu('v_accvgpr_write_b32', OUTA[u], V(6))]
                if u in (3, 7): comp.append(lds_dep(bstore(4, OUTA[u-3:u+1], V(26), SRD_US, S_TMP, off=(u >> 2)*1024, mods="sc1"), mark={'US'}))
            kw['streams'] = [('scomp', spread(comp, 0.0, 0.98))]
        elif o.g2_tail and j >= 18:
            if j == 18:
                sig = [valu('v_mov_b32', V(4), 1), valu('v_lshlrev_b32', V(5), 25, l),
                       raw("s_lshl_b32 s44, s47, 2", writes=[S(44)]), raw("s_add_u32 s44, s44, s24", writes=[S(44)]), raw("s_lshl_b32 s44, s44, 8", writes=[S(44)]),
                       raw(f"s_add_u32 s44, s44, {WS_CNT}", writes=[S(44)]),
                       lds_dep(I(f"buffer_atomic_add v4, v5, {SRD_US}, s44 offen sc1", 'vatomic', reads=[V(4), V(5), SRD_US, S(44)], writes=[]), need={'US'})]
                kw['streams'] = [('ssig', [(0.6, 0.5, i) for i in sig])]
            elif j == 28:
                pl = [valu('v_and_b32', V(1), 3, l), valu('v_lshlrev_b32', V(1), 8, V(1)), raw("s_lshl_b32 s43, s47, 10", writes=[S_TMP]),
                      raw(f"s_add_u32 s43, s43, {WS_CNT}", writes=[S_TMP]), bload(1, V(6), V(1), SRD_W, S_TMP, mods="sc1")]
                pf = []
                if o.prefetch and o.pf_w2:
                    pf = [raw("s_mul_i32 s44, s47, 224", writes=[S(44)]), raw("s_mul_i32 s45, s24, 56", writes=[S(45)]), raw("s_add_u32 s44, s44, s45", writes=[S(44)]),
                          valu('v_add_u32', V(2), S(44), l), valu('v_lshlrev_b32', V(2), 12, V(2)), raw("s_lshl_b32 s45, s46, 7", writes=[S(45)]),
                          bload(1, A(200), V(2), SRD_W2, S(45))]
                if o.prefetch:
                    pf += [raw("s_lshl_b32 s44, s25, 5", writes=[S(44)]), raw("s_add_u32 s44, s44, s26", writes=[S(44)]), raw("s_lshl_b32 s44, s44, 2", writes=[S(44)]),
                           raw("s_add_u32 s44, s44, s24", writes=[S(44)]), raw("s_lshl_b32 s44, s44, 12", writes=[S(44)]), valu('v_lshlrev_b32', V(3), 4, l)]
                    pf += [bload(4, A(240 + 4*n, 4), V(3), SRD_WO, S(44), off=n*1024) for n in range(4)]
                kw['streams'] = [('spoll', [(0.05, 0.0, i) for i in pl]), ('spf', spread(pf, 0.45, 0.9, rel=0.42))]
                chk = lambda: [I("v_cmp_le_u32 vcc, 28, v6", 'valu', reads=[V(6)], writes=['vcc']), nop(3), raw("s_cmp_eq_u64 vcc, -1", reads=['vcc'])]
                kw['post'] = [smov(S(45), 0), label("L_k3_poll")] + chk() + [raw("s_cbranch_scc1 L_k3_pollok", 'branch'),
                              raw("s_sleep 4"), bload(1, V(6), V(1), SRD_W, S_TMP, mods="sc1"), waitcnt(vm=0),
                              sop('s_add_u32', S(45), S(45), 1), scmp('s_cmp_lt_u32', S(45), 0x40000), raw("s_cbranch_scc1 L_k3_poll", 'branch'), label("L_k3_pollok")]
        elif j == 18:
            su = []
            dma_off_128(su.append, l, DA, 4096, V(1), V(2), V(3), s_tmp=S_TMP)
            su += [valu('v_lshlrev_b32', DB[0], 4, l)] + [valu('v_add_u32', DB[t], 56*1024, DB[t-1]) for t in range(1, 4)]
            su += [raw("s_mul_i32 s39, s24, 448*4096", writes=[S_SA]), raw("s_lshl_b32 s43, s46, 7", writes=[S_TMP]), raw("s_add_u32 s39, s39, s43", writes=[S_SA]),
                   raw("s_mul_i32 s36, s47, 4*56", writes=[S_SB]), raw("s_mul_i32 s43, s24, 14", writes=[S_TMP]), raw("s_add_u32 s36, s36, s43", writes=[S_SB]),
                   raw("s_lshl_b32 s36, s36, 10", writes=[S_SB]), raw(f"s_add_u32 s36, s36, {WS_U}", writes=[S_SB]), smov(S_N, 0), smov(S_SKIP, 0)]
            sig = [valu('v_mov_b32', V(4), 1), valu('v_lshlrev_b32', V(5), 25, l),
                   raw("s_lshl_b32 s44, s47, 2", writes=[S(44)]), raw("s_add_u32 s44, s44, s24", writes=[S(44)]), raw("s_lshl_b32 s44, s44, 8", writes=[S(44)]),
                   raw(f"s_add_u32 s44, s44, {WS_CNT}", writes=[S(44)]),
                   lds_dep(I(f"buffer_atomic_add v4, v5, {SRD_US}, s44 offen sc1", 'vatomic', reads=[V(4), V(5), SRD_US, S(44)], writes=[]), need={'US'})]
            kw['streams'] = [('ssu', spread(su, 0.05, 0.55)), ('ssig', [(0.6, 0.5, i) for i in sig])]
            if o.wot:
                WD = [V(28 + i) for i in range(4)]
                wsu = []
                dma_off_128(wsu.append, l, WD, 1024, V(6), V(7), V(26), s_tmp=S(5))
                wsu += [raw("s_lshl_b32 s3, s25, 4", writes=[S(3)]), raw("s_lshr_b32 s5, s26, 1", writes=[S(5)]), raw("s_add_u32 s3, s3, s5", writes=[S(3)]),
                        raw("s_lshl_b32 s3, s3, 15", writes=[S(3)]), raw("s_and_b32 s5, s26, 1", writes=[S(5)]), raw("s_lshl_b32 s5, s5, 9", writes=[S(5)]),
                        raw("s_add_u32 s3, s3, s5", writes=[S(3)]), raw("s_lshl_b32 s5, s24, 7", writes=[S(5)]), raw("s_add_u32 s3, s3, s5", writes=[S(3)])]
                kw['streams'].append(('swsu', spread(wsu, 0.0, 0.12)))
                dl = [sop('s_add_u32', 'm0', S_SR, 8192), nop(0)] + [lds_dep(dma(WD[i], SRD_WO, S(3), off=i*1024), need={'sR1'}, mark={'sL1'}) for i in range(4)]
                kw['side_dma_list'] = (dl, 0.42, 0.55, 0.2)
        elif j == 19:
            st = g2_dma(0, False) + [sop('s_xor_b32', S_SR, S_SR, 8192)] + g2_dma(1, False) + [sop('s_xor_b32', S_SR, S_SR, 8192)]
            kw['side_dma_list'] = (st, 0.42, 0.95, 0.0)
            if o.wot:
                rd = [lds_dep(ds_read_tr(A(192 + 4*t + 2*u, 2), TA[t], 8192 + u*2048), need={'sL1'}, mark={'sR1'}) for t in range(4) for u in range(2)]
                ad = [raw("s_lshl_b32 s3, s25, 4", writes=[S(3)]), raw("s_lshr_b32 s5, s26, 1", writes=[S(5)]), raw("s_add_u32 s3, s3, s5", writes=[S(3)]),
                      raw("s_lshl_b32 s3, s3, 5", writes=[S(3)]), raw("s_and_b32 s5, s26, 1", writes=[S(5)]), raw("s_lshl_b32 s5, s5, 4", writes=[S(5)]),
                      raw("s_add_u32 s3, s3, s5", writes=[S(3)]), raw("s_lshl_b32 s5, s24, 2", writes=[S(5)]), raw("s_add_u32 s3, s3, s5", writes=[S(3)]),
                      raw("s_lshl_b32 s3, s3, 10", writes=[S(3)]), raw(f"s_add_u32 s3, s3, {WS_WOT}", writes=[S(3)]), valu('v_lshlrev_b32', V(26), 4, l)]
                stw = [bstore(4, A(192 + 4*t, 4), V(26), SRD_W, S(3), off=t*1024, mods="sc1") for t in range(4)]
                kw['streams'] = [('swr', spread(rd, 0.50, 0.60, rel=0.48) + [(0.61, 0.0, i) for i in ad] + spread(stw, 0.64, 0.8, rel=0.62))]
                kw['side_dma_list'] = (st, 0.42, 0.97, 0.0)
        elif j == 20:
            pl = [valu('v_and_b32', V(1), 3, l), valu('v_lshlrev_b32', V(1), 8, V(1)), raw("s_lshl_b32 s43, s47, 10", writes=[S_TMP]),
                  raw(f"s_add_u32 s43, s43, {WS_CNT}", writes=[S_TMP]), bload(1, V(6), V(1), SRD_W, S_TMP, mods="sc1")]
            kw['streams'] = [('spoll', [(0.80, 0.7, i) for i in pl])]
            if o.prefetch and not o.wot:
                extra = [raw("s_lshl_b32 s44, s25, 5", writes=[S(44)]), raw("s_add_u32 s44, s44, s26", writes=[S(44)]), raw("s_lshl_b32 s44, s44, 2", writes=[S(44)]),
                         raw("s_add_u32 s44, s44, s24", writes=[S(44)]), raw("s_lshl_b32 s44, s44, 12", writes=[S(44)])]
                extra += [bload(4, A(240 + 4*n, 4), DB[0], SRD_WO, S(44), off=n*1024) for n in range(4)]
                kw['streams'].append(('spf', spread(extra, 0.42, 0.55)))
            chk = lambda: [I("v_cmp_le_u32 vcc, 28, v6", 'valu', reads=[V(6)], writes=['vcc']), nop(3), raw("s_cmp_eq_u64 vcc, -1", reads=['vcc'])]
            dg = (STP() if getattr(o, 'polldiag', False) else [])
            kw['post'] = dg + [smov(S(45), 0), label("L_k3_poll")] + chk() + [raw("s_cbranch_scc1 L_k3_pollok", 'branch'),
                          raw("s_sleep 4"), bload(1, V(6), V(1), SRD_W, S_TMP, mods="sc1"), waitcnt(vm=0),
                          sop('s_add_u32', S(45), S(45), 1), scmp('s_cmp_lt_u32', S(45), 0x40000), raw("s_cbranch_scc1 L_k3_poll", 'branch'), label("L_k3_pollok")] + ([smov(S(94), S(45))] if getattr(o, 'polldiag', False) else [])
            kw['vm_end'] = 0
        elif j == 21:
            if o.wot:
                kw['pre'] = [valu('v_mov_b32', V(4), 1), valu('v_lshlrev_b32', V(5), 25, l), sop('s_add_u32', S(44), S_G, 64), raw("s_lshl_b32 s44, s44, 8", writes=[S(44)]),
                             raw(f"s_add_u32 s44, s44, {WS_CNT}", writes=[S(44)]), raw("s_cmp_eq_u32 s24, 0"), raw(f"s_cselect_b32 s44, s44, {WS_END}", reads=['scc'], writes=[S(44)]),
                             I(f"buffer_atomic_add v4, v5, {SRD_W}, s44 offen sc1", 'vatomic', reads=[V(4), V(5), SRD_W, S(44)], writes=[])]
            z = [valu('v_accvgpr_write_b32', A(128 + r), 0) for r in range(64)]
            kw['streams'] = [('sul', spread(g2_uloads(), 0.05, 0.3)), ('sz', spread(z, 0.1, 0.95))]
        elif 22 <= j <= 28:
            i = j - 22
            rd, mfs = g2_parts(i if i else 1)
            rd, _ = g2_parts(i)
            kw['side_groups'] = [(3, mfs[0]), (5, mfs[1])]
            stl = [('srd', spread(rd, 0.02, 0.36))]
            if j <= 27:
                dm = [scmp('s_cmp_gt_u32', S_N, 4), I(f"s_cselect_b32 {S_SKIP}, 0x30000, 0", 'salu', reads=['scc'], writes=[S_SKIP]), sop('s_add_u32', S_N, S_N, 1)]
                dm += g2_dma(i & 1, True)
                kw['side_dma_list'] = (dm, 0.45, 0.78, 0.42)
                stl += [('sul', spread(g2_uloads(), 0.82, 0.98, rel=0.80))]
            kw['streams'] = stl
            kw['post'] = toggle_side()
        elif j == 29:
            pre = make_srd(B1, S(98, 2), 2048*2)
            bl = [valu('v_and_b32', V(1), 15, l), raw("s_lshl_b32 s44, s46, 6", writes=[S(44)]), raw("s_lshl_b32 s45, s24, 4", writes=[S(45)]),
                  raw("s_add_u32 s44, s44, s45", writes=[S(44)]), valu('v_add_u32', V(1), S(44), V(1)), valu('v_lshlrev_b32', V(1), 1, V(1)), bload_ushort(V(1), V(1), B1)]
            kw['pre'] = pre
            kw['streams'] = [('sw', spread(scratch_write(), 0.1, 0.7)), ('sb', spread(bl, 0.05, 0.1))]
        elif j == 30:
            comp = [smov(S(44), -LOG2E), valu('v_lshlrev_b32', V(1), 16, V(1))]
            comp += [raw("s_lshr_b32 s43, s47, 1", writes=[S_TMP]), raw("s_lshl_b32 s45, s46, 2", writes=[S(45)]), raw("s_add_u32 s43, s43, s45", writes=[S_TMP]),
                     raw("s_lshl_b32 s43, s43, 2", writes=[S_TMP]), raw("s_and_b32 s45, s47, 1", writes=[S(45)]), raw("s_lshl_b32 s45, s45, 1", writes=[S(45)]),
                     raw("s_add_u32 s43, s43, s45", writes=[S_TMP]), raw("s_lshl_b32 s43, s43, 2", writes=[S_TMP]), raw("s_add_u32 s43, s43, s24", writes=[S_TMP]),
                     raw("s_lshl_b32 s43, s43, 10", writes=[S_TMP]), raw(f"s_add_u32 s43, s43, {WS_GATE}", writes=[S_TMP]), valu('v_lshlrev_b32', V(26), 4, l)]
            OUTA = A(240, 8)
            comp += unit_reads(0)
            for u in range(8):
                if u + 1 < 8: comp += unit_reads(u + 1)
                xs = []
                for e in range(2):
                    sm_, y = unit_sum(u, e); comp += sm_; xs.append(y)
                    comp += [valu('v_add_f32', y, y, V(1)), valu('v_mul_f32', V(7), S(44), y), valu('v_exp_f32', V(7), V(7)), valu('v_add_f32', V(7), 1.0, V(7)),
                             valu('v_rcp_f32', V(7), V(7)), valu('v_mul_f32', y, y, V(7))]
                comp += [valu('v_cvt_pk_bf16_f32', V(6), xs[0], xs[1]), valu('v_accvgpr_write_b32', OUTA[u], V(6))]
                if u in (3, 7):
                    comp.append(bstore(4, OUTA[u-3:u+1], V(26), SRD_W, S_TMP, mods=("sc1" if o.fuse_comb else "")))
                    comp.append(sop('s_add_u32', S_TMP, S_TMP, 4096))
            kw['streams'] = [('scomp', spread(comp, 0.0, 0.98))]
        return kw
    DO = [V(14 + i) for i in range(4)]
    TO = [V(64 + i) for i in range(8)]; TO2 = [V(72 + i) for i in range(8)]
    S_SLOW = S(6); S_R2 = S(7)
    def wo_setup():
        s_ = []; a_ = s_.append
        dma_off_256(a_, l, DO, 1024, 'o', S_T)
        a_(raw("s_lshl_b32 s42, s25, 19", writes=[S_SO])); a_(raw("s_lshl_b32 s43, s24, 8", writes=[S_T]))
        a_(raw("s_add_u32 s42, s42, s43", writes=[S_SO]))
        a_(raw("s_lshl_b32 s7, s24, 13", writes=[S_R2])); a_(raw("s_add_u32 s7, s7, 65536", writes=[S_R2]))
        return s_
    def wo_stage(n):
        s_ = []
        sb, madd = (S_XB, n*8192) if n < 2 else (S_R2, 0)
        for h in range(2):
            s_ += [sop('s_add_u32', 'm0', sb, madd + h*4096), nop(0)]
            for i in range(4): s_.append(lds_dep(dma(DO[i], SRD_WO, S_SO, off=i*1024), need={f'oR{n}'}, mark={f'oL{n}'}))
            s_.append(sop('s_add_u32', S_SO, S_SO, 16*1024))
        return s_
    def wo_first_lds(): return wo_setup() + wo_stage(0) + wo_stage(1) + wo_stage(2)
    VLW = V(14)
    def wot_setup():
        return [valu('v_lshlrev_b32', VLW, 4, l), raw("s_lshl_b32 s42, s25, 19", writes=[S_SO]), raw("s_lshl_b32 s43, s24, 13", writes=[S_T]),
                raw("s_add_u32 s42, s42, s43", writes=[S_SO]), raw(f"s_add_u32 s42, s42, {WS_WOT}", writes=[S_SO])]
    def wot_loads(n): return proj3_loads(SRD_W, S_SO, VLW, n, 128)
    def wot_first(): return [i for n in range(P3_DEPTH) for i in wot_loads(n)]
    def wo_first(): return (wot_setup() + wot_first()) if o.wot else wo_first_lds()
    seqs = [('pro', pro)]
    for j in range(33):
        kw_ = side_spec(j)
        if j == 31 and o.wot:
            kw_['streams'] = list(kw_.get('streams', [])) + [('swo', spread(wot_setup(), 0.0, 0.05) + spread(wot_first(), 0.08, 0.95, rel=0.06))]
        elif j == 31 and o.wo_early:
            kw_['streams'] = list(kw_.get('streams', [])) + [('swo', spread(wo_setup(), 0.02, 0.2))]
            kw_['side_dma_list'] = (wo_stage(0) + wo_stage(1), 0.25, 0.95, 0.22)
        if j == 31 and o.tlb_warm and o.fuse_comb:
            tw = [valu('v_and_b32', V(2), 7, l), valu('v_lshlrev_b32', V(2), 21, V(2)),
                  raw("s_lshl_b32 s3, s26, 16", writes=[S(3)]), raw(f"s_add_u32 s3, s3, {WS_PART}", writes=[S(3)]),
                  bload(1, A(201), V(2), SRD_W, S(3), mods="sc1"),
                  valu('v_mov_b32', V(3), 0), raw("s_lshl_b32 s3, s26, 16", writes=[S(3)]), raw(f"s_add_u32 s3, s3, {WS_GATE}", writes=[S(3)]),
                  bload(1, A(202), V(3), SRD_W, S(3), mods="sc1")]
            tw += make_srd(S(48, 4), S(100, 2), 2 << 20) + [raw("s_lshl_b32 s3, s26, 16", writes=[S(3)]), bload(1, A(203), V(3), S(48, 4), S(3))]
            kw_['streams'] = list(kw_.get('streams', [])) + [('stw', [(0.02, 0.0, i) for i in tw])]
        if j == 30 and o.wot:
            pl = [valu('v_mov_b32', V(16), 0), sop('s_add_u32', S(3), S_G, 64), raw("s_lshl_b32 s3, s3, 8", writes=[S(3)]), raw(f"s_add_u32 s3, s3, {WS_CNT}", writes=[S(3)]),
                  bload(1, V(17), V(16), SRD_W, S(3), mods="sc1")]
            kw_['streams'] = list(kw_.get('streams', [])) + [('swp', [(0.3, 0.25, i) for i in pl])]
            kw_['post'] = list(kw_.get('post', [])) + [smov(S(5), 0), label("L_k3_wpoll"), readfirstlane(S(4), V(17)), nop(3), scmp('s_cmp_ge_u32', S(4), 32),
                          raw("s_cbranch_scc1 L_k3_wpollok", 'branch'), raw("s_sleep 4"), bload(1, V(17), V(16), SRD_W, S(3), mods="sc1"), waitcnt(vm=0),
                          sop('s_add_u32', S(5), S(5), 1), scmp('s_cmp_lt_u32', S(5), 0x40000), raw("s_cbranch_scc1 L_k3_wpoll", 'branch'), label("L_k3_wpollok")]
        p = at.period(j, **kw_)
        if o.timing and j in o.stamp_after: p = p + STP()
        seqs.append((j, [label(f"@@P{j}")] + p))
    def arrive2(idx_s):
        return [valu('v_mov_b32', V(4), 1), valu('v_lshlrev_b32', V(5), 25, l),
                sop('s_add_u32', S(44), idx_s, 32), raw("s_lshl_b32 s44, s44, 8", writes=[S(44)]), raw(f"s_add_u32 s44, s44, {WS_CNT}", writes=[S(44)]),
                raw("s_cmp_eq_u32 s24, 0"), raw(f"s_cselect_b32 s44, s44, {WS_END}", reads=['scc'], writes=[S(44)]),
                I(f"buffer_atomic_add v4, v5, {SRD_W}, s44 offen sc1", 'vatomic', reads=[V(4), V(5), SRD_W, S(44)], writes=[])]
    pre_epi = [smov(S_SLOW, 0)]
    if o.fuse_comb: pre_epi += ([] if o.g2_tail else arrive2(S_T64)) + [sload(S(96, 2), ARG_X)] + ([sload(S(100, 2), ARG_OUT)] if o.g2_tail else [sload(S(98, 2), ARG_OUT)])
    if not o.wot: pre_epi += (wo_stage(2) if o.wo_early else wo_first())
    s = []; a = s.append
    a(label("@@EPI"))
    a(label("L_k3_norm"))
    a(nop(7))
    if not o.wot:
        a(valu('v_mov_b32', V(6), S_XB))
        addr_tr256(a, l, TO, V(6), 4)
        a(valu('v_mov_b32', V(6), S_R2))
        addr_tr256(a, l, TO2, V(6), 4)
    LI = [V(24 + i) for i in range(4)]
    for qt in range(4): a(valu('v_rcp_f32', LI[qt], LA[qt][0]))
    a(valu('v_lshlrev_b32', V(7), 4, l))
    a(raw("s_lshl_b32 s43, s24, 14", writes=[S_T]))
    a(valu('v_add_u32', V(22), S_T, V(7))); a(valu('v_mov_b32', V(23), V(7)))
    for kk in range(4):
        for qt in range(4):
            x, y = O(2*kk, qt), O(2*kk+1, qt)
            for r in range(4):
                a(valu('v_mul_f32', x[r], x[r], LI[qt])); a(valu('v_mul_f32', y[r], y[r], LI[qt]))
            if o.moff:
                mx = V(28 + qt)
                ab = lambda r_: f"|{r_}|"
                if kk == 0: a(valu('v_max3_f32', mx, ab(x[0]), ab(x[1]), ab(x[2])))
                else: a(valu('v_max3_f32', mx, ab(x[0]), ab(x[1]), mx)); a(valu('v_max_f32', mx, ab(x[2]), mx, mods=""))
                a(valu('v_max3_f32', mx, ab(x[3]), ab(y[0]), mx)); a(valu('v_max3_f32', mx, ab(y[1]), ab(y[2]), mx)); a(valu('v_max_f32', mx, ab(y[3]), mx))
            F = V(48 + 4*((kk*4+qt) & 3), 4)
            a(valu('v_cvt_pk_bf16_f32', F[0], x[0], x[1])); a(valu('v_cvt_pk_bf16_f32', F[1], x[2], x[3]))
            a(valu('v_cvt_pk_bf16_f32', F[2], y[0], y[1])); a(valu('v_cvt_pk_bf16_f32', F[3], y[2], y[3]))
            a(ds_write(4, V(22), F, off=(kk*4+qt)*1024))
    a(waitcnt(lgkm=0)); a(barrier())
    s.extend(STP())
    def oread(n, qt, dst): return ds_read_b128(dst, V(23), (n*4+qt)*1024)
    S_PS = S(3)
    def pstore(prange):
        o_ = []
        for p in prange:
            for qt in range(4):
                x, y = O(2*p, qt), O(2*p+1, qt)
                F = V(48 + 4*((p*4+qt) & 3), 4)
                o_ += [valu('v_cvt_pk_bf16_f32', F[0], x[0], x[1]), valu('v_cvt_pk_bf16_f32', F[1], x[2], x[3]),
                       valu('v_cvt_pk_bf16_f32', F[2], y[0], y[1]), valu('v_cvt_pk_bf16_f32', F[3], y[2], y[3]),
                       bstore(4, F, V(7), SRD_W, S_PS, off=qt*1024, mods=("sc1" if o.fuse_comb else ""))]
            o_.append(sop('s_add_u32', S_PS, S_PS, 4096))
        return o_
    a(raw("s_lshl_b32 s3, s25, 5", writes=[S_PS])); a(raw("s_add_u32 s3, s3, s26", writes=[S_PS]))
    a(raw("s_lshl_b32 s3, s3, 2", writes=[S_PS])); a(raw("s_add_u32 s3, s3, s24", writes=[S_PS]))
    a(raw("s_lshl_b32 s3, s3, 14", writes=[S_PS])); a(raw(f"s_add_u32 s3, s3, {WS_PART}", writes=[S_PS]))
    g2pre = {}
    if o.g2_tail:
        GTA = [[V(96 + t) for t in range(4)], [V(100 + t) for t in range(4)]]
        GDA = [V(104 + t) for t in range(4)]; GUL = [V(108 + t) for t in range(4)]
        a(valu('v_mov_b32', V(6), S_XB)); tr_addr_128(a, l, GTA[0], V(6), V(1), V(2), V(3), V(4))
        a(valu('v_mov_b32', V(6), S_R2)); tr_addr_128(a, l, GTA[1], V(6), V(1), V(2), V(3), V(4))
        dma_off_128(a, l, GDA, 4096, V(1), V(2), V(3), s_tmp=S(5))
        a(valu('v_lshlrev_b32', GUL[0], 4, l))
        for t in range(1, 4): a(valu('v_add_u32', GUL[t], 56*1024, GUL[t-1]))
        a(raw("s_mul_i32 s39, s24, 448*4096", writes=[S_SA])); a(raw("s_lshl_b32 s5, s46, 7", writes=[S(5)])); a(raw("s_add_u32 s39, s39, s5", writes=[S_SA]))
        a(raw("s_mul_i32 s36, s47, 4*56", writes=[S_SB])); a(raw("s_mul_i32 s5, s24, 14", writes=[S(5)])); a(raw("s_add_u32 s36, s36, s5", writes=[S_SB]))
        a(raw("s_lshl_b32 s36, s36, 10", writes=[S_SB])); a(raw(f"s_add_u32 s36, s36, {WS_U}", writes=[S_SB]))
        s.extend(make_srd(S(28, 4), S(98, 2), 2048*2))
        a(valu('v_and_b32', V(1), 15, l)); a(raw("s_lshl_b32 s44, s46, 6", writes=[S(44)])); a(raw("s_lshl_b32 s45, s24, 4", writes=[S(45)]))
        a(raw("s_add_u32 s44, s44, s45", writes=[S(44)])); a(valu('v_add_u32', V(1), S(44), V(1))); a(valu('v_lshlrev_b32', V(1), 1, V(1)))
        a(bload_ushort(V(18), V(1), S(28, 4)))
        gmap = [(0, 8192, S_XB, 8192), (0, 12288, S_XB, 12288), (1, 0, S_R2, 0), (1, 4096, S_R2, 4096)]
        wneed = ['oR1', 'oR1', 'oR2', 'oR2']
        def g2_w(n, first=False):
            st = n % 4; (_, _, sb, madd) = gmap[st]
            o_ = [sop('s_add_u32', 'm0', sb, madd)]
            for i in range(4): o_.append(lds_dep(dma(GDA[i], SRD_W2, S_SA, off=i*1024), need={f'gR{st}'} | ({wneed[st]} if first else set()), mark={f'gL{st}'}))
            o_.append(sop('s_add_u32', S_SA, S_SA, 32*4096))
            return o_
        gfa = lambda n, t: A(192 + 16*(n % 4) + 4*t, 4)
        gfb = lambda p, t: A(128 + 16*p + 4*t, 4)
        def g2_u(n):
            return [bload(4, gfa(n, t), GUL[t], SRD_W, S_SB, mods="sc1") for t in range(4)] + [sop('s_add_u32', S_SB, S_SB, 1024)]
        def g2_r(n):
            st = n % 4; (ti, imm, _, _) = gmap[st]
            return [lds_dep(ds_read_tr(gfb(n & 1, t)[2*u:2*u+2], GTA[ti][t], imm + u*2048), need={f'gL{st}'}, mark={f'gR{st}'}) for t in range(4) for u in range(2)]
        g2pre = {13: g2_w(0, True) + g2_w(1, True) + g2_u(0), 14: g2_w(2, True) + g2_w(3, True) + g2_u(1), 15: g2_u(2) + g2_u(3)}
    if o.wot:
        proj_gemm3(a, s, SRD_W, S_SO, VLW, oread, 128, 64, mid_fill=pstore(range(2)))
    else:
        proj_gemm2(a, s, TO, DO, SRD_WO, S_SO, 1024, S_RING, oread, 4096, 'o', fb_base=(160 if o.g2_tail else 128),
                   stage_map=[(TO, 0, S_XB, 0), (TO, 8192, S_XB, 8192), (TO2, 0, S_R2, 0)], extra_vm=g2pre)
    if o.fast_tail and o.fuse_comb and not o.g2_tail and not o.wot: s.extend(pstore(range(4)))
    a(smov(S(44), float(2.0**100)))
    for qt in range(4):
        a(I(f"v_cmp_gt_f32 vcc, s44, {LA[qt][0]}", 'valu', reads=[S(44), LA[qt][0]], writes=['vcc']))
        a(nop(3))
        a(I("s_mov_b64 s[56:57], vcc" if qt == 0 else "s_and_b64 s[56:57], s[56:57], vcc", 'salu', reads=['vcc'], writes=[S(56, 2), 'scc']))
    if o.moff:
        a(smov(S(44), float(2.0**(o.moff - 108))))
        for qt in range(4):
            a(I(f"v_cmp_le_f32 vcc, s44, {V(28 + qt)}", 'valu', reads=[S(44), V(28 + qt)], writes=['vcc']))
            a(nop(3))
            a(I("s_and_b64 s[56:57], s[56:57], vcc", 'salu', reads=['vcc'], writes=[S(56, 2), 'scc']))
    a(nop(7))
    a(valu('v_mov_b32', V(1), 0x1F8))
    for qt in range(4):
        a(I(f"v_cmp_class_f32 vcc, {O(0, qt)[0]}, v1", 'valu', reads=[O(0, qt)[0], V(1)], writes=['vcc']))
        a(nop(3))
        a(I("s_and_b64 s[56:57], s[56:57], vcc", 'salu', reads=['vcc'], writes=[S(56, 2), 'scc']))
    a(raw("s_cmp_eq_u64 s[56:57], -1"))
    a(raw("s_cselect_b32 s44, 0, 1", reads=['scc'], writes=[S(44)]))
    a(valu('v_mov_b32', V(2), S(44))); a(valu('v_mov_b32', V(1), S_XB))
    a(ds_write(1, V(1), V(2)))
    def flag_decide():
        a(valu('v_mov_b32', V(1), XBASE))
        a(ds_read_b32(V(2), V(1))); a(ds_read_b32(V(3), V(1), 16384)); a(ds_read_b32(V(4), V(1), 32768)); a(ds_read_b32(V(5), V(1), 49152))
        a(valu('v_or_b32', V(2), V(2), V(3))); a(valu('v_or_b32', V(4), V(4), V(5))); a(valu('v_or_b32', V(2), V(2), V(4)))
        a(readfirstlane(S(44), V(2)))
        a(nop(3))
        a(I("s_andn2_b32 s44, s44, s6", 'salu', reads=[S(44), S_SLOW], writes=[S(44), 'scc']))
        a(raw("s_cbranch_scc1 L_k3_slow", 'branch'))
    FT = o.fast_tail and o.fuse_comb and not o.g2_tail and not o.wot
    if not FT:
        a(waitcnt(lgkm=0)); a(barrier())
        flag_decide()
        a(label("L_k3_store"))
        s.extend(STP())
        if not o.g2_tail: s.extend(pstore(range(2, 4) if o.wot else range(4)))
    else:
        s.extend(STP())
    if o.g2_tail:
        gacc = lambda mt, st_: A(64 + (mt*4+st_)*4, 4)
        pfill = pstore(range(4))
        s.extend(g2_r(0))
        for n in range(14):
            rd = g2_r(n + 1) if n + 1 < 14 else []
            vm = (g2_w(n + 4) + g2_u(n + 4)) if n + 4 < 14 else []
            mf = [mfma16(gacc(mt, st_), gfa(n, mt), gfb(n & 1, st_), gacc(mt, st_) if n else 0) for mt in range(4) for st_ in range(4)]
            gaps = [[] for _ in range(16)]
            for k, ins in enumerate(rd): gaps[k].append(ins)
            g = 8
            for (ins, st_) in dma_ops_with_setup(vm):
                if ins.kind == 'dma':
                    gaps[g - 1] += st_; gaps[g].append(ins); g = min(15, g + 2)
            late = [i for i in vm if i.kind == 'vload' or (i.kind == 'salu' and 'm0' not in i.writes)]
            for k, m in enumerate(mf):
                a(m); s.extend(sort_gap(gaps[k]))
                if n >= o.ps_from and pfill:
                    for _ in range(2 if gaps[k] else 3):
                        if pfill: a(pfill.pop(0))
            s.extend(late)
        s.extend(pfill)
        a(raw("s_lshl_b32 s44, s24, 14", writes=[S(44)])); a(valu('v_add_u32', V(26), S(44), V(7)))
        for mt in range(4):
            for st_ in range(4): a(ds_write(4, V(26), gacc(mt, st_), off=(mt*4+st_)*1024))
        a(waitcnt(lgkm=0)); a(barrier())
        a(raw("s_lshl_b32 s44, s24, 10", writes=[S(44)])); a(valu('v_add_u32', V(27), S(44), V(7)))
        for mt in range(4):
            for w in range(4): a(ds_read_b128(V(192 + (mt*4+w)*4, 4), V(27), w*16384 + mt*4096))
        a(smov(S(44), -LOG2E)); a(valu("v_lshlrev_b32", V(18), 16, V(18)))
        a(raw("s_lshr_b32 s43, s47, 1", writes=[S_T])); a(raw("s_lshl_b32 s45, s46, 2", writes=[S(45)])); a(raw("s_add_u32 s43, s43, s45", writes=[S_T]))
        a(raw("s_lshl_b32 s43, s43, 2", writes=[S_T])); a(raw("s_and_b32 s45, s47, 1", writes=[S(45)])); a(raw("s_lshl_b32 s45, s45, 1", writes=[S(45)]))
        a(raw("s_add_u32 s43, s43, s45", writes=[S_T])); a(raw("s_lshl_b32 s43, s43, 2", writes=[S_T])); a(raw("s_add_u32 s43, s43, s24", writes=[S_T]))
        a(raw("s_lshl_b32 s43, s43, 10", writes=[S_T])); a(raw(f"s_add_u32 s43, s43, {WS_GATE}", writes=[S_T]))
        for mt in range(4):
            for r in range(4):
                P_ = [V(192 + (mt*4+w)*4 + r) for w in range(4)]; y = P_[0]; tt = V(2 + (r & 1))
                a(valu('v_add_f32', y, y, P_[1])); a(valu('v_add_f32', P_[2], P_[2], P_[3])); a(valu('v_add_f32', y, y, P_[2])); a(valu("v_add_f32", y, y, V(18)))
                a(valu('v_mul_f32', tt, S(44), y)); a(valu('v_exp_f32', tt, tt)); a(valu('v_add_f32', tt, 1.0, tt)); a(valu('v_rcp_f32', tt, tt)); a(valu('v_mul_f32', y, y, tt))
            q = V(40 + 4*(mt >> 1) + 2*(mt & 1), 2)
            a(valu('v_cvt_pk_bf16_f32', q[0], V(192 + mt*16), V(192 + mt*16 + 1))); a(valu('v_cvt_pk_bf16_f32', q[1], V(192 + mt*16 + 2), V(192 + mt*16 + 3)))
            if mt & 1:
                a(bstore(4, V(40 + 4*(mt >> 1), 4), V(7), SRD_W, S_T, mods="sc1")); a(sop('s_add_u32', S_T, S_T, 4096))
    if o.fuse_comb:
        SRD_X2 = S(28, 4); SRD_O = S(48, 4)
        s.extend(make_srd(SRD_X2, S(96, 2), 2 << 20)); s.extend(make_srd(SRD_O, S(100, 2) if o.g2_tail else S(98, 2), 2 << 20))
        a(valu('v_and_b32', V(1), 15, l)); a(raw("s_lshl_b32 s44, s26, 6", writes=[S(44)])); a(raw("s_lshl_b32 s45, s24, 4", writes=[S(45)]))
        a(raw("s_add_u32 s44, s44, s45", writes=[S(44)])); a(valu('v_add_u32', V(1), S(44), V(1))); a(valu('v_lshlrev_b32', V(1), 10, V(1)))
        a(valu('v_lshrrev_b32', V(2), 4, l)); a(valu('v_lshl_add_u32', V(1), V(2), 3, V(1)))
        a(raw("s_lshl_b32 s44, s25, 7", writes=[S(44)])); a(valu('v_add_u32', V(22), S(44), V(1)))
        XR = V(32, 8)
        for j in range(2):
            for t in range(2): a(bload(2, XR[4*j+2*t:4*j+2*t+2], V(22), SRD_X2, 0, off=64*j + 32*t))
        a(waitcnt(vm=4, lgkm=0))
        a(barrier())
        if FT: flag_decide()
        if o.g2_tail: s.extend(arrive2(S_T64)); a(nop(1))
        if FT:
            a(raw("s_cmp_eq_u32 s24, 0")); a(raw("s_cbranch_scc0 L_k3_cpollok", 'branch'))
            a(sop('s_add_u32', S(44), S_QB, 32)); a(raw("s_lshl_b32 s44, s44, 8", writes=[S(44)])); a(raw(f"s_add_u32 s44, s44, {WS_CNT}", writes=[S(44)]))
            a(valu('v_mov_b32', V(6), 1)); a(valu('v_lshlrev_b32', V(5), 25, l)); a(valu('v_mov_b32', V(1), 0)); a(smov(S(45), 0))
            a(I(f"buffer_atomic_add v6, v5, {SRD_W}, s44 offen sc0 sc1", 'vload', reads=[V(6), V(5), SRD_W, S(44)], writes=[V(6)]))
            a(waitcnt(vm=0)); a(readfirstlane(S(43), V(6))); a(nop(3)); a(sop('s_add_u32', S(43), S(43), 1))
            a(label("L_k3_cpoll"))
            a(scmp('s_cmp_ge_u32', S(43), 16)); a(raw("s_cbranch_scc1 L_k3_cpollok", 'branch'))
            a(raw("s_sleep 1"))
            a(bload(1, V(6), V(1), SRD_W, S(44), mods="sc1")); a(waitcnt(vm=0))
            a(readfirstlane(S(43), V(6))); a(nop(3))
            a(sop('s_add_u32', S(45), S(45), 1)); a(scmp('s_cmp_lt_u32', S(45), 0x80000)); a(raw("s_cbranch_scc1 L_k3_cpoll", 'branch'))
            a(label("L_k3_cpollok"))
            a(barrier())
            s.extend(STP())
        else:
            s.extend(arrive2(S_QB))
            s.extend(STP())
            a(sop('s_add_u32', S(44), S_QB, 32)); a(raw("s_lshl_b32 s44, s44, 8", writes=[S(44)])); a(raw(f"s_add_u32 s44, s44, {WS_CNT}", writes=[S(44)]))
            a(valu('v_mov_b32', V(1), 0)); a(smov(S(45), 0))
            a(label("L_k3_cpoll"))
            a(bload(1, V(6), V(1), SRD_W, S(44), mods="sc1")); a(waitcnt(vm=0))
            a(readfirstlane(S(43), V(6))); a(nop(3))
            a(scmp('s_cmp_ge_u32', S(43), 16)); a(raw("s_cbranch_scc1 L_k3_cpollok", 'branch'))
            a(raw("s_sleep 2")); a(sop('s_add_u32', S(45), S(45), 1)); a(scmp('s_cmp_lt_u32', S(45), 0x80000)); a(raw("s_cbranch_scc1 L_k3_cpoll", 'branch'))
            a(label("L_k3_cpollok"))
        a(raw("s_lshl_b32 s42, s26, 2", writes=[S_SO])); a(raw("s_lshr_b32 s43, s25, 1", writes=[S_T])); a(raw("s_add_u32 s42, s42, s43", writes=[S_SO]))
        a(raw("s_lshl_b32 s42, s42, 2", writes=[S_SO])); a(raw("s_and_b32 s43, s25, 1", writes=[S_T])); a(raw("s_lshl_b32 s43, s43, 1", writes=[S_T]))
        a(raw("s_add_u32 s42, s42, s43", writes=[S_SO])); a(raw("s_lshl_b32 s42, s42, 2", writes=[S_SO])); a(raw("s_add_u32 s42, s42, s24", writes=[S_SO]))
        a(raw("s_lshl_b32 s42, s42, 10", writes=[S_SO]))
        a(raw(f"s_add_u32 s43, s42, {WS_GATE}", writes=[S_T])); a(raw(f"s_add_u32 s42, s42, {WS_PART}", writes=[S_SO]))
        PPj = lambda j, g: V(128 + (j*8 + g)*4, 4)
        GG = [V(192, 4), V(196, 4)]
        for j in range(2):
            a(bload(4, GG[j], V(7), SRD_W, S_T, mods="sc1")); a(sop('s_add_u32', S_T, S_T, 4096))
        for g in range(8):
            a(bload(4, PPj(0, g), V(7), SRD_W, S_SO, mods="sc1"))
            a(sop('s_add_u32', S(44), S_SO, 4096))
            a(bload(4, PPj(1, g), V(7), SRD_W, S(44), mods="sc1"))
            if g < 7: a(sop('s_add_u32', S_SO, S_SO, 32*64*1024))
        for j in range(2):
            R = [V(200 + 8*j + i) for i in range(8)]
            for k in range(8):
                q = k >> 1; hi = k & 1
                unp = lambda dst, src: valu('v_and_b32', dst, 0xffff0000, src) if hi else valu('v_lshlrev_b32', dst, 16, src)
                a(unp(R[k], PPj(j, 0)[q]))
                for g in range(1, 8):
                    tt = V(2 + (g & 1))
                    a(unp(tt, PPj(j, g)[q])); a(valu('v_add_f32', R[k], R[k], tt))
                a(unp(V(4), GG[j][q])); a(unp(V(5), XR[4*j+q]))
                a(valu('v_fma_f32', R[k], R[k], V(4), V(5)))
            OUTR = V(216 + 4*j, 4)
            for q in range(4): a(valu('v_cvt_pk_bf16_f32', OUTR[q], R[2*q], R[2*q+1]))
            a(bstore(2, OUTR[0:2], V(22), SRD_O, 0, off=64*j, mods=o.out_mods)); a(bstore(2, OUTR[2:4], V(22), SRD_O, 0, off=64*j + 32, mods=o.out_mods))
    if o.timing or not o.fuse_comb: a(waitcnt(vm=0))
    s.extend(STP())
    if getattr(o, 'dbgtime', False):
        a(raw('s_memrealtime s[92:93]', 'smem', writes=[S(92, 2)])); a(sload(S(90, 2), ARG_DBG)); a(waitcnt(lgkm=0))
        s.extend(make_srd(S(84, 4), S(90, 2), 256))
        a(raw("s_sub_u32 s92, s92, s94", writes=[S(92)]))
        a(raw("s_add_u32 s93, s2, 4", writes=[S(93)])); a(raw("s_lshl_b32 s93, s93, 2", writes=[S(93)]))
        a(raw("s_cmp_lt_u32 s2, 8")); a(raw("s_cselect_b32 s93, s93, 0x1000", writes=[S(93)]))
        a(raw("s_cmp_eq_u32 s24, 0")); a(raw("s_cselect_b32 s93, s93, 0x1000", writes=[S(93)]))
        a(valu('v_mov_b32', V(2), S(92))); a(valu('v_lshlrev_b32', V(3), 25, l)); a(nop(3))
        a(bstore(1, V(2), V(3), S(84, 4), S(93))); a(waitcnt(vm=0))
    if getattr(o, 'diag_period', None) is not None: STP.force(len(o.diag_marks))
    if getattr(o, 'polldiag', False): STP.n = 16
    s.extend(STP.flush_dbg(S_WAVE, o.dbgwg) if getattr(o, 'dbgwg', None) is not None else STP.flush(S_WAVE))
    epi = s
    s = []; a = s.append
    M = [V(72 + i) for i in range(4)]
    a(label("L_k3_slow"))
    at.nozero = True
    a(smov(S_SLOW, 1))
    for r in range(128): a(valu('v_mov_b32', V(128 + r), 0))
    for qt in range(4):
        for r in range(4): a(valu('v_mov_b32', LA[qt][r], 0))
        a(valu('v_mov_b32', M[qt], 0xff800000))
    a(smov(S_TILE, 0)); a(smov(S(45), 32))
    a(label("L_k3_slowloop"))
    a(barrier())
    s.extend(at.kv_dma(0))
    a(waitcnt(vm=0)); a(barrier())
    for kh in range(2):
        s.extend(at.k_reads(0, kh)); s.extend(at.v_reads(0, kh))
        for c in range(2):
            for q2 in range(2):
                for t in range(2):
                    for i in range(4): a(mfma16(Sx(c, t, q2), Kf(t*4+i), Q(i, 2*c+q2), 0 if i == 0 else Sx(c, t, q2)))
            for q2 in range(2):
                qt = 2*c + q2; s0, s1 = Sx(c, 0, q2), Sx(c, 1, q2); m = V(4); t_ = V(5)
                a(valu('v_max3_f32', m, s0[0], s0[1], s0[2])); a(valu('v_max3_f32', m, m, s0[3], s1[0]))
                a(valu('v_max3_f32', m, m, s1[1], s1[2])); a(valu('v_max3_f32', m, m, s1[3], M[qt]))
                a(valu('v_mov_b32', t_, m)); a(permlane16_swap(m, t_)); a(valu('v_max_f32', m, m, t_))
                a(valu('v_mov_b32', t_, m)); a(permlane32_swap(m, t_)); a(valu('v_max_f32', m, m, t_))
                a(valu('v_sub_f32', t_, M[qt], m)); a(valu('v_exp_f32', t_, t_)); a(valu('v_mov_b32', M[qt], m))
                for dt in range(8):
                    for r in range(4): a(valu('v_mul_f32', O(dt, qt)[r], O(dt, qt)[r], t_))
                for r in range(4): a(valu('v_mul_f32', LA[qt][r], LA[qt][r], t_))
                for t in range(2):
                    sx = Sx(c, t, q2)
                    for r in range(4):
                        a(valu('v_sub_f32', sx[r], sx[r], m)); a(valu('v_exp_f32', sx[r], sx[r]))
                    a(valu('v_cvt_pk_bf16_f32', Pb[c][4*q2 + 2*t], sx[0], sx[1])); a(valu('v_cvt_pk_bf16_f32', Pb[c][4*q2 + 2*t + 1], sx[2], sx[3]))
            for m_ in at.pv_slot(0, kh, c):
                m_.rt = {}; a(m_)
    a(waitcnt(lgkm=0))
    a(sop('s_sub_u32', S(45), S(45), 1)); a(scmp('s_cmp_lg_u32', S(45), 0)); a(raw("s_cbranch_scc1 L_k3_slowloop", 'branch'))
    a(nop(15)); a(barrier())
    s.extend(wo_first())
    a(raw("s_branch L_k3_norm", 'branch'))
    for i_ in s:
        if hasattr(i_, 'rt'): i_.rt = {}
    slow, _, _ = auto_waits(s)
    slow = fix_hazards(slow, "slow")
    full = []
    for (name, seq) in seqs:
        if name == 32: full += pre_epi
        full += seq
    full += epi
    full, _, _ = auto_waits(full)
    errs = validate_tags(full)
    for e in errs[:10]: print("DATAFLOW", e, file=sys.stderr)
    parts = {}; cur = 'pro'; parts[cur] = []
    for ins in full:
        if ins.kind == 'label' and ins.text.startswith('@@'):
            cur = ins.text[2:-1]; parts[cur] = []
        else: parts[cur].append(ins)
    P = lambda j: parts[f'P{j}']
    txt = lambda j: [i.text for i in P(j)]
    def loop(first_j, n_iter, lbl, cnt):
        body = []
        for k in range(3):
            base = list(P(first_j + k))
            for it in range(1, n_iter):
                other = P(first_j + 3*it + k)
                assert len(other) == len(base), f"loop {lbl}: period {first_j+k} vs {first_j+3*it+k} length {len(base)} {len(other)}"
                for idx, (x, y) in enumerate(zip(base, other)):
                    if x.text != y.text:
                        assert x.kind == 'wait' and y.kind == 'wait' and (x.vm is None) == (y.vm is None) and (x.lgkm is None) == (y.lgkm is None), (lbl, x.text, y.text)
                        base[idx] = waitcnt(vm=None if x.vm is None else min(x.vm, y.vm), lgkm=None if x.lgkm is None else min(x.lgkm, y.lgkm))
            body += [comment(f"period {first_j+k} (+3n)")] + base
        body += [sop('s_sub_u32', cnt, cnt, 1), scmp('s_cmp_lg_u32', cnt, 0), raw(f"s_cbranch_scc1 {lbl}", 'branch')]
        errs = check_hazards(body, loop=True, name=lbl)
        for e in errs[:20]: print("HAZARD", e, file=sys.stderr)
        return [smov(cnt, n_iter), label(lbl)] + body
    out = fix_hazards(parts['pro'] + [comment("period 0")] + P(0), "pro")
    S_CNT = S(4)
    if getattr(o, 'noloop', False):
        allp = []
        for j in range(1, 33): allp += [comment(f"period {j}")] + P(j)
        out += fix_hazards(allp + parts['EPI'], "all")
        out += [raw("s_branch L_k3_end", 'branch')] + slow
        out.append(label("L_k3_end"))
        return emit(out)
    if o.side and o.g2_tail:
        out += loop(1, 5, "L_k3_loopA", S_CNT)
        mid = []
        for j in range(16, 19): mid += [comment(f"period {j}")] + P(j)
        out += fix_hazards(mid, "mid")
        out += loop(19, 3, "L_k3_loopB", S_CNT)
        tail = []
        for j in range(28, 33): tail += [comment(f"period {j}")] + P(j)
    elif o.side:
        out += loop(1, 5, "L_k3_loopA", S_CNT)
        mid = []
        for j in range(16, 22): mid += [comment(f"period {j}")] + P(j)
        out += fix_hazards(P(15)[-30:] + mid, "mid")[len(P(15)[-30:]):] if False else fix_hazards(mid, "mid")
        out += loop(22, 2, "L_k3_loopB", S_CNT)
        tail = []
        for j in range(28, 33): tail += [comment(f"period {j}")] + P(j)
    else:
        out += loop(1, 9, "L_k3_loopA", S_CNT)
        tail = []
        for j in range(28, 33): tail += [comment(f"period {j}")] + P(j)
    tm = []
    out += fix_hazards(tail + parts['EPI'], "tail")
    out += [raw("s_branch L_k3_end", 'branch')] + slow
    out.append(label("L_k3_end"))
    if getattr(o, 'verbose', False):
        for j in (2, 16, 17, 18, 21, 23, 29, 30):
            tot = 0; gap = None
            for i in P(j):
                if i.kind == 'mfma':
                    if gap is not None: tot += max(16, gap)
                    gap = 8
                elif gap is not None: gap += cost(i)
            print(f"; period {j}: est {tot + max(16, gap or 0)} cycles, {len(P(j))} instrs", file=sys.stderr)
    return emit(out)
if __name__ == "__main__":
    o = Opt(); o.verbose = True
    for kv in sys.argv[1:]:
        k, v = kv.split("="); setattr(o, k, eval(v))
    t = build(o); print(len(t.splitlines()))
```

```python
from k_common import *
from k3_attn import (NST, KBASE, VBASE, XBASE, SRD_K, SRD_V, SRD_W, SRD_WQ, SRD_WO, S_TILE, S_WOFF, S_WAVE, S_G, S_QB, QSCALE,
                     O, Q, Kf, Vf, Sb, Sx, NM, LA, Pb, ONES, KA, VA, DK, DV, addr_tr256, dma_off_256, proj_gemm)
from k2_gemm1 import tr_addr_128, dma_off_128, gelu, LOG2E
WS_GATE = 6 << 20
HMOD = 'sc1'

class Opt:
    barrier = True
    minfill = 8; maxfill = 8; early = 1.5
    sm_rel = 4; p_lead = 2; k_span = 1.0; k_lead = 6; bar_lead = 5
    timing = False; prefetch = True; side = True; fuse_ln = True; fuse_comb = True
    stamp_after = (0, 16, 17, 21, 28, 30, 32)
    def __init__(self, **kw): self.__dict__.update(kw)

SRD_W1 = S(48, 4); SRD_W2 = S(52, 4); SRD_DBG = S(56, 4); SRD_US = S(60, 4)
S_T64 = S(46); S_DT = S(47); S_SR = S(40); S_SKIP = S(37); S_N = S(38); S_SA = S(39); S_SB = S(36); S_XB = S(27); S_KVSKIP = S(23); S_TMP = S(43)
TA = [V(14 + i) for i in range(4)]; DA = [V(18 + i) for i in range(4)]; DB = [V(22 + i) for i in range(4)]
def sacc(i, j): return A(128 + (i*4+j)*4, 4)
def sfa(h, t): return A(192 + 16*h + 4*t, 4)
def sfb(h, t): return A(224 + 16*h + 4*t, 4) if h else A(208 + 4*t, 4)
def g2a(h, t): return A(192 + 16*h + 4*t, 4)
def g2b(h, t): return A(224 + 16*h + 4*t, 4)

class Attn:
    def __init__(self, opt): self.o = opt
    def qk_slot(self, j, kh, c):
        out = []
        for q2 in range(2):
            for t in range(2):
                for i in range(4):
                    qt = 2*c + q2; sx = Sx(c, t, q2)
                    m = mfma16(sx, Kf(t*4+i), Q(i, qt), NM[qt] if i == 0 else sx)
                    tag(m, wt=('S', j, kh, c), rt=[(Kf(t*4+i), ('K', j, kh))] + ([(sx, ('S', j, kh, c))] if i else []))
                    out.append(m)
        return out
    def pv_slot(self, j, kh, c):
        out = []
        z = (j == 0 and kh == 0 and not getattr(self, 'nozero', False))
        for q2 in range(2):
            p = Pb[c][4*q2:4*q2+4]; qt = 2*c + q2
            for dt in range(8):
                m = mfma16(O(dt, qt), Vf(dt), p, 0 if z else O(dt, qt))
                tag(m, rt=[(Vf(dt), ('V', j, kh)), (p, ('P', j, kh, c))]); out.append(m)
            m = mfma16(LA[qt], ONES, p, 0 if z else LA[qt]); tag(m, rt=[(p, ('P', j, kh, c))]); out.append(m)
        return out
    def sm_list(self, j, kh, c):
        regs = []
        for q2 in range(2):
            for t in range(2):
                for r in range(4): regs.append((Sx(c, t, q2)[r], Pb[c][4*q2 + 2*t + (r >> 1)]))
        ops = []
        for n, (s, p) in enumerate(regs):
            ops.append((n, tag(valu('v_exp_f32', s, s), wt=('E', j, kh, c), rt=[(s, ('S', j, kh, c))])))
            if n & 1:
                sp = regs[n-1][0]
                ops.append((n + 1.04, tag(valu('v_cvt_pk_bf16_f32', p, sp, s), wt=('P', j, kh, c), rt=[(s, ('E', j, kh, c)), (sp, ('E', j, kh, c))])))
        return [i for (t, i) in sorted(ops, key=lambda x: x[0])]
    def k_reads(self, j, kh):
        st = j % NST
        return [tag(ds_read_b128(Kf(n), KA[n & 3], KBASE + st*16384 + kh*8192 + (n >> 2)*4096), wt=('K', j, kh)) for n in range(8)]
    def v_reads(self, j, kh):
        st = j % NST
        return [tag(ds_read_tr(Vf(dt)[2*u:2*u+2], VA[dt], st*16384 + kh*8192 + u*4096), wt=('V', j, kh)) for dt in range(8) for u in range(2)]
    def kv_dma(self, st, skip=False):
        ops = []
        for n in range(8):
            if n in (0, 4):
                base = (KBASE if n == 0 else VBASE) + st*16384
                ops.append(sop('s_add_u32', 'm0', S_WOFF, base))
                if skip: ops.append(sop('s_max_u32', 'm0', 'm0', S_KVSKIP))
                ops.append(nop(0))
            if n < 4: ops.append(dma(DK[n], SRD_K, S_TILE, off=n*1024))
            else: ops.append(dma(DV[n & 1], SRD_V, S_TILE, off=(n-4)*1024))
        ops.append(sop('s_add_u32', S_TILE, S_TILE, 16384))
        return ops

    def period(self, j, first=False, last_drain=False, kv=True, kvskip=False, side_groups=(), streams=(), pre=(), post=(), vm_end=None, side_dma_list=None):
        o = self.o
        hp, hc = not first, not last_drain
        base = [self.pv_slot(j-1, 1, 0) if hp else None, self.qk_slot(j, 0, 0) if hc else None,
                self.pv_slot(j-1, 1, 1) if hp else None, self.qk_slot(j, 0, 1) if hc else None,
                self.pv_slot(j, 0, 0) if hc else None, self.qk_slot(j, 1, 0) if hc else None,
                self.pv_slot(j, 0, 1) if hc else None, self.qk_slot(j, 1, 1) if hc else None]
        lens = [18, 16]*4
        mf = []; starts = []; ends = []; side_pos = []
        for s in range(8):
            starts.append(len(mf))
            mf += base[s] if base[s] is not None else [None]*lens[s]
            ends.append(len(mf))
            for (aft, g) in side_groups:
                if aft == s:
                    side_pos.append(len(mf)); mf += g
        T = len(mf)
        self.T = T
        ops = []
        CUT0 = o.cut0; CUT1 = o.cut1
        def sm_stream(jj, kh, c, t_lo, t_hi, tpv, i0=0, i1=None, release=None):
            raw_ops = self.sm_list(jj, kh, c); n = len(raw_ops); i1 = n if i1 is None else i1
            pv = self.pv_slot(jj, kh, c); res = []
            for idx in range(i0, i1):
                ins = raw_ops[idx]
                t = t_lo + (t_hi - t_lo) * (idx - i0) / max(1, (i1 - i0)); dl = 1e9
                if ins.op == 'v_cvt_pk_bf16_f32' and tpv is not None:
                    preg = list(ins.writes)[0]
                    dl = tpv + min(q for q, m in enumerate(pv) if preg in m.reads) - o.p_lead
                res.append([t, dl, ins])
            for idx in range(len(res) - 2, -1, -1): res[idx][1] = min(res[idx][1], res[idx+1][1])
            return [Op(ins, t, release=(t_lo if release is None else release), deadline=min(dl, T - 1), stream='sm') for (t, dl, ins) in res]
        rel = o.sm_rel
        if hp:
            ops += sm_stream(j-1, 1, 0, 0, rel, starts[0], i0=CUT0, release=0)
            ops += sm_stream(j-1, 1, 1, rel, ends[1] + rel, starts[2], i0=CUT1)
        if hc:
            ops += sm_stream(j, 0, 0, ends[1] + rel, ends[3] + rel, starts[4])
            ops += sm_stream(j, 0, 1, ends[3] + rel, ends[5] + rel, starts[6])
            ops += sm_stream(j, 1, 0, ends[5] + rel, T, None, i1=CUT0)
            if CUT1: ops += sm_stream(j, 1, 1, T - 1, T, None, i1=CUT1)
        if hc:
            for (kh, ks_slot, vs_slot) in ((0, 0, 2), (1, 4, 6)):
                qk = self.qk_slot(j, kh, 0)
                for n, ins in enumerate(self.k_reads(j, kh)):
                    fu = min(q for q, m in enumerate(qk) if ins.writes & m.reads)
                    t = starts[ks_slot] + (o.k0_off if ks_slot == 0 else 0) + n * (18 - (o.k0_off if ks_slot == 0 else 0)) * o.k_span / 8
                    rl = (ends[ks_slot-1] if ks_slot else -1)
                    ops.append(Op(ins, max(t, rl), release=rl - 1 if ks_slot else -1, deadline=starts[ks_slot+1] + fu - o.k_lead, stream='k'))
                pv = self.pv_slot(j, kh, 0); pvo = self.pv_slot(j, kh, 1); info = []
                for ins in self.v_reads(j, kh):
                    lu = max(q for q, m in enumerate(pvo) if ins.writes & m.reads)
                    fu = min(q for q, m in enumerate(pv) if ins.writes & m.reads)
                    nxt = starts[vs_slot+2] if vs_slot + 2 < 8 else T + 18
                    dl = nxt + fu - o.k_lead
                    if kh == 1: dl = min(dl, T - 1 - o.bar_lead)
                    info.append((starts[vs_slot] + lu + 1, dl, ins))
                info.sort(key=lambda x: x[0])
                w0 = info[0][0]; w1 = min(x[1] for x in info)
                for n, (r, dl, ins) in enumerate(info):
                    ops.append(Op(ins, max(r, w0 + (w1 - w0) * n / len(info)), release=r, deadline=dl, stream='v'))
        dstream = []
        if kv and hc:
            lst = dma_ops_with_setup(self.kv_dma((j + 2) % NST, skip=kvskip))
            pos = o.kv_pos if not side_dma_list else o.kv_pos2; n = 0
            for (ins, st) in lst:
                if ins.kind == 'dma':
                    t = pos[n]; n += 1
                else: t = pos[min(n, 7)] if n < 8 else pos[7]
                dstream.append((t, 0.0, ins, st))
        if side_dma_list:
            (lst, f0, f1, fr) = side_dma_list
            lst = dma_ops_with_setup(lst)
            nd = sum(1 for (i, _) in lst if i.kind == 'dma'); n = 0
            for (ins, st) in lst:
                dstream.append((f0 + (f1 - f0) * n / max(1, nd), fr, ins, st))
                if ins.kind == 'dma': n += 1
        for (t, fr, ins, st) in dstream:
            op = Op(ins, t * T, release=fr * T, stream='dma'); op.setup = st
            ops.append(op)
        for (name, lst) in streams:
            for (ft, fr, ins) in lst:
                ops.append(Op(ins, ft * T, release=fr * T, stream=name))
        seq, fills = list_schedule2(mf, ops, o.minfill, o.maxfill, ahead=o.early)
        self.fills = fills
        seq = list(pre) + expand(seq) + list(post)
        if getattr(o, 'diag_period', None) == j:
            marks = sorted(set(starts + side_pos + [e for e in ends] + [T - 1]))
            marks = [m for m in marks if m < T]
            new = []; k = 0
            for ins in seq:
                if ins.kind == 'mfma':
                    kk = mf.index(ins)
                    if kk in marks:
                        r = S(o.diag_base + 2*len(o.diag_marks), 2); o.diag_marks.append(kk)
                        new.append(raw(f"s_memtime {r}", 'salu', writes=[r]))
                new.append(ins)
            seq = new
        if hc:
            nvm = sum(1 for i in seq if i.kind in ('dma', 'vload', 'vstore', 'vatomic')) if vm_end is None else vm_end
            seq.append(waitcnt(vm=nvm, lgkm=0))
            if o.barrier: seq.append(barrier())
        return seq
Opt.g1_rd = (0.03, 0.3); Opt.g1_dm = (0.62, 0.95)
Opt.pf_w1_at = 8; Opt.pf_w1 = False; Opt.pf_w2 = True
Opt.prescale = False; Opt.pf_kv = True; Opt.tog_early = False; Opt.k0_off = 0; Opt.tlb_early = True; Opt.tlb_warm = True; Opt.defer_addr = False; Opt.fast_tail = True; Opt.out_mods = ''; Opt.wq_early = False; Opt.arrive_at = 6; Opt.hpoll_at = 12; Opt.ln2_rate = 2; Opt.late2 = False; Opt.ps_from = 10; Opt.g2_tail = False; Opt.wot = False; Opt.wo_early = True; Opt.fm64 = False; Opt.g1_pos = 1; Opt.moff = 100
Opt.cut0 = 21; Opt.cut1 = 0
Opt.kv_pos = [0.147, 0.184, 0.22, 0.25, 0.647, 0.684, 0.72, 0.75]
Opt.kv_pos2 = [0.08, 0.12, 0.16, 0.20, 0.26, 0.30, 0.34, 0.38]

def side_dma(srdA, soA, strideA, srdB, soB, strideB, offsA, offsB, stage_tag, skip, modsB=""):
    o = []
    src = S_SR
    if skip:
        o.append(sop('s_max_u32', S(5), S_SR, S_SKIP)); src = S(5)
    o.append(smov('m0', src)); o.append(nop(0))
    for i in range(4): o.append(lds_dep(dma(offsA[i], srdA, soA, off=i*1024), need={f'sR{stage_tag}'}, mark={f'sL{stage_tag}'}))
    o.append(sop('s_add_u32', soA, soA, strideA))
    o.append(sop('s_add_u32', 'm0', src, 4096)); o.append(nop(0))
    for i in range(4): o.append(lds_dep(dma(offsB[i], srdB, soB, off=i*1024, mods=modsB), need={f'sR{stage_tag}'}, mark={f'sL{stage_tag}'}))
    o.append(sop('s_add_u32', soB, soB, strideB))
    return o
def spread(lst, f0, f1, rel=None):
    n = sum(1 for i in lst if cost(i) > 0) or 1
    out = []; k = 0
    for ins in lst:
        t = f0 + (f1 - f0) * k / n
        out.append((t, f0 if rel is None else rel, ins))
        if cost(ins) > 0: k += 1
    return out
def toggle_side():
    return [valu('v_xor_b32', TA[t], 8192, TA[t]) for t in range(4)] + [sop('s_xor_b32', S_SR, S_SR, 8192)]

def g1_parts(n, in_loop):
    st = n & 1
    rd = []
    for t in range(4):
        for u in range(2): rd.append(lds_dep(ds_read_tr(sfa(0, t)[2*u:2*u+2], TA[t], u*2048), need={f'sL{st}'}, mark={f'sR{st}'}))
    for t in range(4):
        for u in range(2): rd.append(lds_dep(ds_read_tr(sfb(0, t)[2*u:2*u+2], TA[t], 4096 + u*2048), need={f'sL{st}'}, mark={f'sR{st}'}))
    mf = [mfma16(sacc(ft, dt), sfa(0, ft), sfb(0, dt), sacc(ft, dt) if n else 0) for ft in range(4) for dt in range(4)]
    dm = []
    if in_loop:
        dm = [scmp('s_cmp_gt_u32', S_N, 13), I(f"s_cselect_b32 {S_SKIP}, 0x30000, 0", 'salu', reads=['scc'], writes=[S_SKIP]), sop('s_add_u32', S_N, S_N, 1)]
        dm += side_dma(SRD_W1, S_SA, 32*3584, SRD_W, S_SB, 32*1024, DA, DB, st, True, modsB=HMOD)
    elif n + 2 <= 15:
        dm = [sop('s_add_u32', S_N, S_N, 1)] + side_dma(SRD_W1, S_SA, 32*3584, SRD_W, S_SB, 32*1024, DA, DB, st, False, modsB=HMOD)
    return rd, mf, dm
def g2_parts(i):
    st = i & 1
    rd = []
    for h in range(2):
        for t in range(4):
            for u in range(2): rd.append(lds_dep(ds_read_tr(g2b(h, t)[2*u:2*u+2], TA[t], h*4096 + u*2048), need={f'sL{st}'}, mark={f'sR{st}'}))
    mfs = [[mfma16(sacc(mt, s_), g2a(h, mt), g2b(h, s_), sacc(mt, s_) if (i or h) else 0) for mt in range(4) for s_ in range(4)] for h in range(2)]
    return rd, mfs
def g2_dma(st, skip):
    return side_dma(SRD_W2, S_SA, 32*4096, SRD_W2, S_SA, 32*4096, DA, DA, st, skip)
def g2_uloads():
    o = []
    for h in range(2):
        for t in range(4): o.append(bload(4, g2a(h, t), DB[t], SRD_W, S_SB, mods="sc1"))
        o.append(sop('s_add_u32', S_SB, S_SB, 1024))
    return o

def proj_gemm2(a, s, TA_, DW, srd, SOFF, stride, S_RING, bread, uoff, name, last_pre=None, last_fill=None, dma_gap0=3, fb_base=0, hooks=None, fill=None, stage_map=None, extra_vm=None, fill_rate=2):
    NS = 3; NK = 16
    def fa(p, mt): return A(64 + 32*p + 4*mt, 4)
    def fb(p, qt): return A(fb_base + 16*p + 4*qt, 4)
    if stage_map is None: stage_map = [(TA_, st*8192, S_RING, st*8192) for st in range(NS)]
    def dma_step(n):
        o = []; st = n % NS
        (_, _, sb, madd) = stage_map[st]
        for h in range(2):
            o.append(sop('s_add_u32', 'm0', sb, madd + h*4096))
            for i in range(4):
                o.append(lds_dep(dma(DW[i], srd, SOFF, off=i*1024), need={f'{name}R{st}'}, mark={f'{name}L{st}'}))
            o.append(sop('s_add_u32', SOFF, SOFF, 16*stride))
        return o
    def reads(n):
        o = []; st = n % NS; p = n & 1
        (ta, imm, _, _) = stage_map[st]
        for qt in range(4): o.append(bread(n, qt, fb(p, qt)))
        for mt in range(8):
            for u in range(2):
                o.append(lds_dep(ds_read_tr(fa(p, mt)[2*u:2*u+2], ta[mt], imm + u*uoff), need={f'{name}L{st}'}, mark={f'{name}R{st}'}))
        return o
    s.extend(reads(0))
    for n in range(NK):
        rd = reads(n + 1) if n + 1 < NK else []
        dm = dma_step(n + 3) if n + 3 < NK else []
        if n == NK - 1:
            if last_pre: s.extend(last_pre)
            dm = list(last_fill or [])
        if extra_vm and n in extra_vm: dm = dm + extra_vm[n]
        if hooks and n in hooks: s.extend(hooks[n])
        mf = [mfma16(O(mt, qt), fa(n & 1, mt), fb(n & 1, qt), O(mt, qt) if n else 0) for mt in range(8) for qt in range(4)]
        gaps = [[] for _ in range(32)]
        g = dma_gap0
        for (ins, st_) in dma_ops_with_setup(dm):
            if ins.kind in ('dma', 'vload'):
                gaps[g - 1] += st_; gaps[g].append(ins); g = min(31, g + 2) if g + 2 <= 31 else 31
            else: gaps[min(31, g - 1)].append(ins) if g > dma_gap0 else gaps[0].append(ins)
        ev = [k for k in range(32) if not any(i.kind in ('dma', 'vload') for i in gaps[k])]
        for k, ins in enumerate(rd): gaps[ev[min(len(ev) - 1, k // 2)]].append(ins)
        for k, m in enumerate(mf):
            a(m); s.extend(sort_gap(gaps[k]))
            if fill:
                take = 0
                lim = fill_rate if not any(i.kind in ('dma', 'vload') for i in gaps[k]) else 0
                while fill and take < lim:
                    ins = fill.pop(0); a(ins)
                    if cost(ins) > 0: take += 1
    assert not fill

def proj_gemm3(a, s, srd, SOFF, VL, bread, abase, bbase, mid_fill=None, mods="sc1"):
    NK = 16; NT = 2*NK
    def fa(t, m): return A(abase + 16*(t % P3_SETS) + 4*m, 4)
    def fb(p, qt): return A(bbase + 16*p + 4*qt, 4)
    rdB = lambda t: [bread(t % NK, qt, fb(t & 1, qt)) for qt in range(4)]
    s.extend(rdB(0))
    fill = list(mid_fill or [])
    for t in range(NT):
        h, n = t // NK, t % NK
        rd = rdB(t + 1) if t + 1 < NT else []
        ld = proj3_loads(srd, SOFF, VL, t + P3_DEPTH, abase, mods) if t + P3_DEPTH < NT else []
        mf = [mfma16(O(4*h + m, qt), fa(t, m), fb(t & 1, qt), O(4*h + m, qt) if n else 0) for m in range(4) for qt in range(4)]
        gaps = [[] for _ in range(16)]
        g = 3
        for ins in ld:
            if ins.kind == 'vload':
                gaps[min(15, g)].append(ins); g += 3
            else: gaps[min(15, max(0, g - 1))].append(ins)
        for k, ins in enumerate(rd): gaps[1 + 3*k].append(ins)
        for k, m in enumerate(mf):
            a(m); s.extend(sort_gap(gaps[k]))
            if t >= NT - P3_DEPTH and fill:
                for _ in range(1 if gaps[k] else 2):
                    if fill: a(fill.pop(0))
                while fill and cost(fill[0]) == 0: a(fill.pop(0))
    s.extend(fill)
P3_SETS = 8; P3_DEPTH = 7
def proj3_loads(srd, SOFF, VL, t, abase, mods="sc1"):
    o = []
    for m in range(4): o.append(bload(4, A(abase + 16*(t % P3_SETS) + 4*m, 4), VL, srd, SOFF, off=m*1024, mods=mods))
    o.append(sop('s_add_u32', SOFF, SOFF, 32768) if (t % 16) != 15 else sop('s_sub_u32', SOFF, SOFF, 15*32768 - 4096))
    return o

def build(opt=None):
    o = opt or Opt()
    at = Attn(o)
    STP = Stamps(o.timing, 3); STP.cyc = getattr(o, 'cyc', False)
    s = []; a = s.append
    l = V(0)
    s.extend(STP())
    if getattr(o, 'dbgtime', False): a(raw('s_memrealtime s[94:95]', 'smem', writes=[S(94, 2)]))
    a(sload(S(4, 2), ARG_K)); a(sload(S(6, 2), ARG_V)); a(sload(S(22, 2), ARG_WS))
    a(sload(S(36, 2), ARG_WQ)); a(sload(S(56, 2), ARG_WO))
    a(sload(S(62, 2), ARG_W1)); a(sload(S(60, 2), ARG_W2)); a(sload(S(58, 2), ARG_DBG))
    if o.fuse_ln: a(sload(S(100, 2), ARG_X))
    a(raw("s_cmp_ge_u32 s2, 256")); a(raw("s_cbranch_scc1 L_k3_end", 'branch'))
    a(valu('v_lshrrev_b32', V(1), 6, V(0)))
    a(readfirstlane(S_WAVE, V(1)))
    a(valu('v_and_b32', l, 63, l))
    a(waitcnt(lgkm=0))
    a(raw("s_and_b32 s25, s2, 7", writes=[S_G])); a(raw("s_lshr_b32 s26, s2, 3", writes=[S_QB]))
    S_RING = S(41); S_SO = S(42); S_T = S(43)
    SRD_X = S(96, 4)
    XP = V(48, 64)
    if o.fuse_ln:
        s.extend(make_srd(SRD_X, S(100, 2), 2 << 20))
        a(valu('v_and_b32', V(1), 15, l)); a(valu('v_lshlrev_b32', V(1), 10, V(1)))
        a(valu('v_lshrrev_b32', V(2), 4, l)); a(valu('v_lshl_add_u32', V(1), V(2), 4, V(1)))
        a(raw("s_lshl_b32 s42, s26, 6", writes=[S_SO])); a(raw("s_lshl_b32 s43, s24, 4", writes=[S_T]))
        a(raw("s_add_u32 s42, s42, s43", writes=[S_SO])); a(raw("s_lshl_b32 s42, s42, 10", writes=[S_SO]))
        if getattr(o, 'fine2', False): s.extend(STP())
        for i in range(16): a(bload(4, XP[4*i:4*i+4], V(1), SRD_X, S_SO, off=64*i))
        if getattr(o, 'fine2', False): s.extend(STP())
    s.extend(make_srd(SRD_WQ, S(36, 2), 512*4096*2))
    a(valu('v_lshlrev_b32', V(7), 4, l))
    if o.prefetch:
        a(raw("s_lshl_b32 s42, s26, 4", writes=[S_SO])); a(raw("s_lshl_b32 s43, s24, 2", writes=[S_T]))
        a(raw("s_add_u32 s42, s42, s43", writes=[S_SO])); a(raw("s_lshl_b32 s42, s42, 13", writes=[S_SO]))
        a(raw("s_lshl_b32 s43, s25, 10", writes=[S_T])); a(raw("s_add_u32 s42, s42, s43", writes=[S_SO]))
        for n in range(4):
            a(bload(4, A(192 + 4*n, 4), V(7), SRD_WQ, S_SO)); a(sop('s_add_u32', S_SO, S_SO, 8192))
    a(raw("s_lshl_b32 s27, s25, 19", writes=[S(27)]))
    a(raw("s_sub_u32 s40, 0x400000, s27", writes=[S(40)]))
    s.extend(make_srd(SRD_K, S(4, 2), S(40), add=S(27))); s.extend(make_srd(SRD_V, S(6, 2), S(40), add=S(27)))
    s.extend(make_srd(SRD_W, S(22, 2), WS_END))
    s.extend(make_srd(SRD_WO, S(56, 2), 4096*512*2))
    a(raw("s_lshr_b32 s46, s26, 3", writes=[S_T64])); a(raw("s_lshl_b32 s46, s46, 3", writes=[S_T64])); a(raw("s_add_u32 s46, s46, s25", writes=[S_T64]))
    a(raw("s_and_b32 s47, s26, 7", writes=[S_DT]))
    a(raw("s_cmp_lt_u32 s46, 28"))
    a(raw(f"s_cselect_b32 s44, {2048*1792*2}, 0", writes=[S(44)]))
    a(raw(f"s_cselect_b32 s45, {WS_END}, 0", writes=[S(45)]))
    s.extend(make_srd(SRD_W1, S(62, 2), S(44)))
    s.extend(make_srd(SRD_W2, S(60, 2), 1792*2048*2))
    s.extend(make_srd(SRD_DBG, S(58, 2), 256))
    s.extend(make_srd(SRD_US, S(22, 2), S(45)))
    if o.tlb_early:
        a(valu('v_lshlrev_b32', V(2), 25, l)); a(raw("s_lshl_b32 s44, s24, 9", writes=[S(44)])); a(raw("s_mul_i32 s44, s44, 3584", writes=[S(44)]))
        a(bload(1, A(211), V(2), SRD_W1, S(44)))
        a(bload(1, A(212), V(2), SRD_WO, S(27)))
    if o.pf_kv:
        a(valu('v_and_b32', V(2), 15, l)); a(raw("s_lshl_b32 s44, s26, 4", writes=[S(44)])); a(valu('v_add_u32', V(2), S(44), V(2))); a(valu('v_lshlrev_b32', V(2), 7, V(2)))
        a(I("v_cmp_gt_u32 vcc, 16, v0", 'valu', reads=[V(0)], writes=['vcc'])); a(nop(1))
        a(I(f"v_cndmask_b32 v2, -1, v2, vcc", 'valu', reads=[V(2), 'vcc'], writes=[V(2)]))
        a(bload(1, A(209), V(2), SRD_K, 0)); a(bload(1, A(210), V(2), SRD_V, 0))
    a(raw("s_lshl_b32 s21, s24, 12", writes=[S_WOFF]))
    a(raw("s_mul_i32 s41, s24, 24576", writes=[S_RING]))
    for r in range(4): a(valu('v_mov_b32', ONES[r], 0x3F803F80))
    if not o.fuse_ln:
        a(raw("s_lshl_b32 s42, s26, 6", writes=[S_SO])); a(raw("s_lshl_b32 s43, s24, 4", writes=[S_T]))
        a(raw("s_add_u32 s42, s42, s43", writes=[S_SO])); a(raw("s_lshl_b32 s42, s42, 10", writes=[S_SO]))
        a(raw("s_lshl_b32 s43, s24, 14", writes=[S_T])); a(raw(f"s_add_u32 s43, s43, {XBASE}", writes=[S_T]))
        for n in range(16):
            if n % 4 == 0: a(smov('m0', S_T))
            a(valu('v_xor_b32', V(14 + (n & 3)), n << 4, V(7)))
            a(lds_dep(dma(V(14 + (n & 3)), SRD_W, S_SO, off=(n & 3)*1024), mark={'XN'}))
            if n % 4 == 3:
                a(sop('s_add_u32', S_SO, S_SO, 4096)); a(sop('s_add_u32', S_T, S_T, 4096))
    PTA = [V(32 + i) for i in range(8)]; XA = [V(40 + i) for i in range(4)]; DW = [V(44 + i) for i in range(4)]
    dma_off_256(a, l, DW, 8192, 'q', S_T)
    a(raw("s_lshl_b32 s42, s25, 2", writes=[S_SO])); a(raw("s_add_u32 s42, s42, s24", writes=[S_SO]))
    a(raw("s_lshl_b32 s42, s42, 8", writes=[S_SO]))
    def wq_stage(n):
        o_ = []
        for h in range(2):
            o_ += [sop('s_add_u32', 'm0', S_RING, n*8192 + h*4096), nop(0)]
            for i in range(4): o_.append(lds_dep(dma(DW[i], SRD_WQ, S_SO, off=i*1024), need={f'qR{n}'}, mark={f'qL{n}'}))
            o_.append(sop('s_add_u32', S_SO, S_SO, 16*8192))
        return o_
    a(valu('v_mov_b32', V(6), S_RING))
    addr_tr256(a, l, PTA, V(6), 8)
    a(valu('v_and_b32', V(1), 15, l)); a(valu('v_lshrrev_b32', V(2), 4, l))
    a(valu('v_lshlrev_b32', V(3), 10, V(1))); a(valu('v_add_u32', V(3), XBASE, V(3)))
    for k in range(4):
        a(valu('v_add_u32', V(4), 4*k, V(2))); a(valu('v_xor_b32', V(4), V(4), V(1)))
        a(valu('v_lshl_add_u32', XA[k], V(4), 4, V(3)))
    TV = (lambda k: V(96 + k)) if o.defer_addr else (lambda k: V(k) if k < 8 else V(26))
    s_main0, a_main0 = s, a
    deferred = []
    if o.defer_addr:
        s = deferred; a = deferred.append
    a(valu('v_lshrrev_b32', TV(2), 4, l)); a(valu('v_and_b32', TV(3), 15, l))
    for i in range(4):
        a(valu('v_add_u32', TV(4), 4*i, TV(2))); a(valu('v_xor_b32', TV(4), TV(4), TV(3)))
        a(valu('v_lshlrev_b32', TV(4), 4, TV(4))); a(valu('v_lshl_add_u32', KA[i], TV(3), 8, TV(4)))
    a(valu('v_lshrrev_b32', TV(4), 2, TV(3))); a(valu('v_and_b32', TV(5), 3, l))
    a(valu('v_lshl_add_u32', TV(7), TV(2), 2, TV(4)))
    a(valu('v_and_b32', TV(1), 7, TV(7))); a(valu('v_lshlrev_b32', TV(1), 1, TV(1)))
    a(valu('v_lshlrev_b32', TV(7), 8, TV(7)))
    a(valu('v_and_b32', TV(6), 1, TV(5))); a(valu('v_lshl_add_u32', TV(7), TV(6), 3, TV(7)))
    a(valu('v_add_u32', TV(7), VBASE, TV(7)))
    a(valu('v_lshrrev_b32', TV(6), 1, TV(5)))
    for dt in range(8):
        a(valu('v_add_u32', TV(5), 2*dt, TV(6))); a(valu('v_xor_b32', TV(5), TV(5), TV(1)))
        a(valu('v_lshl_add_u32', VA[dt], TV(5), 4, TV(7)))
    a(valu('v_lshlrev_b32', TV(5), 8, TV(2))); a(valu('v_add_u32', TV(5), S_WOFF, TV(5)))
    for n in range(4):
        a(valu('v_add_u32', TV(6), 4*n, TV(2))); a(valu('v_xor_b32', TV(6), TV(6), TV(3)))
        a(valu('v_lshl_add_u32', DK[n], TV(6), 4, TV(5)))
    for n in range(2):
        a(valu('v_add_u32', TV(6), 4*n, TV(2))); a(valu('v_lshlrev_b32', TV(6), 1, TV(6)))
        a(valu('v_xor_b32', TV(6), TV(6), TV(3))); a(valu('v_lshl_add_u32', DV[n], TV(6), 4, TV(5)))
    a(raw("s_lshl_b32 s27, s24, 14", writes=[S_XB])); a(raw(f"s_add_u32 s27, s27, {XBASE}", writes=[S_XB]))
    a(smov(S_SR, S_XB))
    a(valu('v_mov_b32', TV(8), S_XB))
    tr_addr_128(a, l, TA, TV(8), TV(1), TV(2), TV(3), TV(4))
    dma_off_128(a, l, DA, 3584, TV(1), TV(2), TV(3), s_tmp=S_T)
    dma_off_128(a, l, DB, 1024, TV(1), TV(2), TV(3), s_tmp=S_T)
    a(raw("s_lshl_b32 s44, s24, 9", writes=[S(44)]))
    a(raw("s_mul_i32 s39, s44, 3584", writes=[S_SA])); a(raw("s_lshl_b32 s45, s46, 7", writes=[S(45)])); a(raw("s_add_u32 s39, s39, s45", writes=[S_SA]))
    a(raw("s_lshl_b32 s36, s44, 10", writes=[S_SB])); a(raw("s_lshl_b32 s45, s47, 7", writes=[S(45)])); a(raw("s_add_u32 s36, s36, s45", writes=[S_SB]))
    a(raw(f"s_add_u32 s36, s36, {WS_H}", writes=[S_SB]))
    s, a = s_main0, a_main0
    a(smov(S_N, 0)); a(smov(S_SKIP, 0))
    if getattr(o, 'fine', False): s.extend(STP())
    s.extend(wq_stage(0))
    if getattr(o, 'fine', False):
        a(lds_dep(nop(0), need=set(XP.regs()))); s.extend(STP())
    def pk(op, d, x, y, z=None, mods=""):
        srcs = [x, y] + ([z] if z is not None else [])
        return I(f"{op} {d}, " + ", ".join(str(t) for t in srcs) + (" " + mods if mods else ""), 'valu', reads=srcs, writes=[d], op=op)
    if o.fuse_ln:
        F = lambda i, e: V(128 + 8*i + e)
        D1 = V(28, 4); D2 = V(4, 4)
        for i in range(16):
            a(mfma16(D1, ONES, XP[4*i:4*i+4], D1 if i else 0)); a(mfma16(D2, XP[4*i:4*i+4], XP[4*i:4*i+4], D2 if i else 0))
            for q in range(4):
                a(valu('v_lshlrev_b32', F(i, 2*q), 16, XP[4*i+q])); a(valu('v_and_b32', F(i, 2*q+1), 0xffff0000, XP[4*i+q]))
        if o.wq_early: s.extend(wq_stage(1)); s.extend(wq_stage(2))
        a(valu('v_and_b32', V(1), 3, l))
        for r in (2, 1, 0):
            a(I(f"v_cmp_eq_u32 vcc, {r}, v1", 'valu', reads=[V(1)], writes=['vcc']))
            a(I(f"v_cndmask_b32 v7, v7, {D2[r]}, vcc", 'valu', reads=[V(7), D2[r], 'vcc'], writes=[V(7)]))
        a(valu('v_and_b32', V(1), 15, l)); a(valu('v_lshrrev_b32', V(2), 2, V(1)))
        a(valu('v_lshl_add_u32', V(2), V(2), 4, V(1))); a(valu('v_lshlrev_b32', V(2), 2, V(2)))
        a(I("ds_bpermute_b32 v3, v2, v7", 'ds_read', reads=[V(2), V(7)], writes=[V(3)]))
        MEAN = V(28); RS = V(2); NB = V(3)
        a(valu('v_mul_f32', MEAN, 1.0/512, MEAN))
        a(valu('v_mul_f32', V(3), 1.0/512, V(3)))
        a(valu('v_fma_f32', V(3), '-v28', MEAN, V(3)))
        a(valu('v_max_f32', V(3), 0, V(3)))
        a(valu('v_add_f32', V(3), 1e-5, V(3)))
        a(valu('v_rsq_f32', RS, V(3)))
        if o.prescale: a(valu('v_mul_f32', RS, QSCALE, RS))
        a(valu('v_mul_f32', NB, MEAN, RS)); a(valu('v_sub_f32', NB, 0, NB))
        for i in range(16):
            for e in range(8): a(valu('v_fma_f32', F(i, e), F(i, e), RS, NB))
        a(valu('v_and_b32', V(4), 15, l)); a(valu('v_lshrrev_b32', V(5), 4, l))
        a(raw("s_lshl_b32 s43, s24, 14", writes=[S_T])); a(raw(f"s_add_u32 s43, s43, {XBASE}", writes=[S_T]))
        a(valu('v_lshlrev_b32', V(6), 10, V(4))); a(valu('v_add_u32', V(6), S_T, V(6)))
        WA = [V(28 + k) for k in range(4)]
        for k in range(4):
            a(valu('v_add_u32', V(7), 4*k, V(5))); a(valu('v_xor_b32', V(7), V(7), V(4))); a(valu('v_lshl_add_u32', WA[k], V(7), 4, V(6)))
        for i in range(16):
            for q in range(4): a(valu('v_cvt_pk_bf16_f32', XP[4*i+q], F(i, 2*q), F(i, 2*q+1)))
            a(ds_write(4, WA[i & 3], XP[4*i:4*i+4], off=(i >> 2)*256))
        if getattr(o, 'fine', False): s.extend(STP())
        a(waitcnt(lgkm=0)); a(barrier())
        if getattr(o, 'fine', False): s.extend(STP())
    else:
        a(waitcnt(vm=8)); a(barrier())
    if not (o.fuse_ln and o.wq_early): s.extend(wq_stage(1)); s.extend(wq_stage(2))
    if o.fuse_ln:
        s_main, a_main = s, a
        ln2 = []; s = ln2; a = ln2.append
        R0 = [V(64 + i) for i in range(8)]; R1 = [V(72 + i) for i in range(8)]
        PK = [V(80, 4), V(84, 4)]
        a(raw("s_lshl_b32 s44, s25, 3", writes=[S(44)])); a(raw("s_lshl_b32 s45, s24, 1", writes=[S(45)])); a(raw("s_add_u32 s44, s44, s45", writes=[S(44)]))
        for k in range(2):
            a(sop('s_add_u32', S(45), S(44), k)); a(sop('s_and_b32', S(5), S(45), 15)); a(raw("s_lshl_b32 s5, s5, 4", writes=[S(5)]))
            a(raw("s_lshl_b32 s45, s45, 10", writes=[S(45)])); a(raw(f"s_add_u32 s45, s45, {XBASE}", writes=[S(45)]))
            a(valu('v_lshlrev_b32', V(94), 4, l)); a(valu('v_xor_b32', V(94), S(5), V(94))); a(valu('v_add_u32', V(94), S(45), V(94)))
            a(ds_read_b128(PK[k], V(94)))
        RR = [R0, R1]; SM = [V(88), V(90)]; TT = [V(89), V(91)]; QQ = [V(92), V(93)]
        for k in range(2):
            for q in range(4):
                a(valu('v_lshlrev_b32', RR[k][2*q], 16, PK[k][q])); a(valu('v_and_b32', RR[k][2*q+1], 0xffff0000, PK[k][q]))
        def both(f):
            x0, x1 = f(0), f(1)
            for u, v_ in zip(x0, x1): a(u); a(v_)
        both(lambda k: [valu('v_add_f32', SM[k], RR[k][0], RR[k][1])] + [valu('v_add_f32', SM[k], SM[k], RR[k][e]) for e in range(2, 8)])
        both(lambda k: wave_sum(SM[k], TT[k]))
        both(lambda k: [valu('v_mul_f32', SM[k], 1.0/512, SM[k])] + [valu('v_sub_f32', RR[k][e], RR[k][e], SM[k]) for e in range(8)])
        both(lambda k: [valu('v_mul_f32', QQ[k], RR[k][0], RR[k][0])] + [valu('v_fmac_f32', QQ[k], RR[k][e], RR[k][e], dst_read=True) for e in range(1, 8)])
        both(lambda k: wave_sum(QQ[k], TT[k]))
        both(lambda k: [valu('v_mov_b32', TT[k], 1e-5 * (QSCALE*QSCALE if o.prescale else 1.0)), valu('v_fmac_f32', TT[k], 1.0/512, QQ[k], dst_read=True), valu('v_rsq_f32', TT[k], TT[k])] +
                       [valu('v_mul_f32', RR[k][e], RR[k][e], TT[k]) for e in range(8)] + [valu('v_cvt_pk_bf16_f32', PK[k][q], RR[k][2*q], RR[k][2*q+1]) for q in range(4)])
        a(raw("s_lshl_b32 s45, s26, 6", writes=[S(45)])); a(raw("s_add_u32 s45, s45, s44", writes=[S(45)])); a(raw("s_lshl_b32 s45, s45, 10", writes=[S(45)]))
        a(raw(f"s_add_u32 s45, s45, {WS_H}", writes=[S(45)]))
        a(valu('v_lshlrev_b32', V(94), 4, l))
        a(lds_dep(bstore(4, PK[0], V(94), SRD_W, S(45), mods="sc1"), mark={'HS'}))
        a(lds_dep(bstore(4, PK[1], V(94), SRD_W, S(45), off=1024, mods="sc1"), mark={'HS'}))
        a(valu('v_lshlrev_b32', V(95), 25, l)); a(valu('v_mov_b32', V(96), 0))
        a(raw("s_and_b32 s45, s2, 127", writes=[S(45)])); a(raw("s_lshl_b32 s45, s45, 8", writes=[S(45)])); a(raw(f"s_add_u32 s45, s45, {WS_CNT}", writes=[S(45)]))
        a(lds_dep(bstore(1, V(96), V(95), SRD_W, S(45), mods="sc1"), mark={'HS'}))
        s, a = s_main, a_main
    s.extend(STP())
    def xread(n, qt, dst): return ds_read_b128(dst, XA[n & 3], (n >> 2)*256 + qt*16384)
    kv0 = [smov(S_TILE, 0)] + at.kv_dma(0)
    later = []; later2 = []
    if o.side: later += side_dma(SRD_W1, S_SA, 32*3584, SRD_W, S_SB, 32*1024, DA, DB, 0, False, modsB=HMOD) + [sop('s_xor_b32', S_SR, S_SR, 8192)]
    later2 += at.kv_dma(1)
    if o.side: later2 += side_dma(SRD_W1, S_SA, 32*3584, SRD_W, S_SB, 32*1024, DA, DB, 1, False, modsB=HMOD) + [sop('s_xor_b32', S_SR, S_SR, 8192)]
    if not o.late2: later += later2; later2 = []
    hooks = {}
    last_pre = [waitcnt(lgkm=0)]
    if o.fuse_ln:
        arrive = [lds_dep(nop(0), need={'HS'}), barrier(),
                  valu('v_mov_b32', V(4), 1), valu('v_lshlrev_b32', V(5), 25, l),
                  raw("s_and_b32 s44, s2, 3", writes=[S(44)]), raw("s_lshl_b32 s44, s44, 6", writes=[S(44)]),
                  raw("s_cmp_eq_u32 s24, 0"), raw("s_cselect_b32 s44, s44, 0x1000", reads=['scc'], writes=[S(44)]),
                  I(f"buffer_atomic_add v4, v5, {SRD_DBG}, s44 offen sc1", 'vatomic', reads=[V(4), V(5), SRD_DBG, S(44)], writes=[])]
        hooks[o.arrive_at] = arrive
        if o.prefetch and o.side and o.pf_w1:
            hooks[o.pf_w1_at] = [raw("s_lshl_b32 s44, s47, 2", writes=[S(44)]), raw("s_add_u32 s44, s44, s24", writes=[S(44)]), raw("s_lshl_b32 s44, s44, 6", writes=[S(44)]),
                        valu('v_add_u32', V(2), S(44), l), smov(S(44), 3584), valu('v_mul_lo_u32', V(2), V(2), S(44)),
                        raw("s_lshl_b32 s44, s46, 7", writes=[S(44)]), bload(1, A(208), V(2), SRD_W1, S(44))]
        hooks[o.hpoll_at] = [valu('v_and_b32', V(1), 3, l), valu('v_lshlrev_b32', V(1), 6, V(1)), bload(1, V(6), V(1), SRD_DBG, 0, mods="sc1")]
        chk = lambda: [I("v_cmp_le_u32 vcc, 64, v6", 'valu', reads=[V(6)], writes=['vcc']), nop(3), raw("s_cmp_eq_u64 vcc, -1", reads=['vcc'])]
        last_pre += [smov(S(45), 0), label("L_k3_hpoll")] + chk() + [raw("s_cbranch_scc1 L_k3_hpollok", 'branch'),
                     raw("s_sleep 4"), bload(1, V(6), V(1), SRD_DBG, 0, mods="sc1"), waitcnt(vm=0),
                     sop('s_add_u32', S(45), S(45), 1), scmp('s_cmp_lt_u32', S(45), 0x40000), raw("s_cbranch_scc1 L_k3_hpoll", 'branch'), label("L_k3_hpollok")]
    if getattr(o, 'qdiag', False):
        for n_ in (2, 4, 6, 8, 10, 12, 14): hooks[n_] = STP() + hooks.get(n_, [])
    last_pre += [barrier()]
    proj_gemm2(a, s, PTA, DW, SRD_WQ, S_SO, 8192, S_RING, xread, 1024, 'q', last_pre=last_pre, last_fill=kv0, hooks=hooks, fill=((ln2 + deferred) if o.fuse_ln else None), fill_rate=o.ln2_rate)
    s.extend(STP())
    a(sload(S(96, 2), ARG_B1)); a(sload(S(98, 2), ARG_B2)); a(sload(S(100, 2), ARG_OUT))
    a(smov(S(44), QSCALE))
    qpost = []
    for i in range(4):
        for qt in range(4):
            x, y = O(2*i, qt), O(2*i+1, qt)
            b_ = qpost.append
            if not (o.prescale and o.fuse_ln):
                for r in range(4):
                    b_(valu('v_mul_f32', x[r], S(44), x[r])); b_(valu('v_mul_f32', y[r], S(44), y[r]))
            T4 = V(48 + 4*((i*4+qt) & 1), 4)
            X0, X1, Y0, Y1 = T4[0], T4[1], T4[2], T4[3]
            b_(valu('v_cvt_pk_bf16_f32', X0, x[0], x[1])); b_(valu('v_cvt_pk_bf16_f32', X1, x[2], x[3]))
            b_(valu('v_cvt_pk_bf16_f32', Y0, y[0], y[1])); b_(valu('v_cvt_pk_bf16_f32', Y1, y[2], y[3]))
            b_(permlane32_swap(X0, Y0)); b_(permlane32_swap(X1, Y1))
            b_(permlane16_swap(X0, Y0)); b_(permlane16_swap(X1, Y1))
            q = Q(i, qt)
            b_(valu('v_accvgpr_write_b32', q[0], X0)); b_(valu('v_accvgpr_write_b32', q[1], X1))
            b_(valu('v_accvgpr_write_b32', q[2], Y0)); b_(valu('v_accvgpr_write_b32', q[3], Y1))
    grp = group_dma(later)
    step = max(1, len(qpost) // (len(grp) + 1)); gi = 0
    for k, ins in enumerate(qpost):
        a(ins)
        if k % step == step - 1 and gi < len(grp):
            s.extend(expand([grp[gi]])); gi += 1
            while gi < len(grp) and not isinstance(grp[gi], Grp):
                a(grp[gi]); gi += 1
    for g_ in grp[gi:]: s.extend(expand([g_]))
    s.extend(STP())
    a(waitcnt(vm=((8 if o.side else 0) if o.late2 else (24 if o.side else 8)))); a(barrier())
    MX = [V(18 + 0), V(19), V(20), V(21)] if False else [V(28), V(29), V(30), V(31)]
    g2l = group_dma(later2)
    for kh in range(2 if o.fm64 else 1):
        s.extend(at.k_reads(0, kh))
        for c in range(2):
            for q2 in range(2):
                for t in range(2):
                    for i in range(4):
                        a(mfma16(Sx(c, t, q2), Kf(t*4+i), Q(i, 2*c+q2), 0 if i == 0 else Sx(c, t, q2)))
                        if g2l and (i & 1):
                            s.extend(expand([g2l.pop(0)]))
                            while g2l and not isinstance(g2l[0], Grp): a(g2l.pop(0))
        for qt in range(4):
            c, q2 = qt >> 1, qt & 1
            s0, s1 = Sx(c, 0, q2), Sx(c, 1, q2); m = MX[qt]
            if kh == 0: a(valu('v_max3_f32', m, s0[0], s0[1], s0[2]))
            else: a(valu('v_max3_f32', m, s0[0], s0[1], m)); a(valu('v_max_f32', m, m, s0[2]))
            a(valu('v_max3_f32', m, m, s0[3], s1[0])); a(valu('v_max3_f32', m, m, s1[1], s1[2])); a(valu('v_max_f32', m, m, s1[3]))
    s.extend(expand(g2l))
    for qt in range(4):
        m = MX[qt]; t = V(5)
        a(valu('v_mov_b32', t, m)); a(permlane16_swap(m, t)); a(valu('v_max_f32', m, m, t))
        a(valu('v_mov_b32', t, m)); a(permlane32_swap(m, t)); a(valu('v_max_f32', m, m, t))
        for r in range(4): a(valu('v_sub_f32', NM[qt][r], float(-o.moff), m))
    s.extend(STP())
    if o.fuse_ln:
        i_st = max(i for i, x in enumerate(s) if 'HS' in getattr(x, 'mark', set()))
        i_ar = min(i for i, x in enumerate(s) if 'HS' in getattr(x, 'need', set()))
        assert i_st < i_ar, 'h stores must be issued before the arrival'
    pro = s
    B1 = S(28, 4); B2 = S(32 - 4, 4)
    def scratch_write():
        o_ = [valu('v_lshlrev_b32', V(27), 4, l), valu('v_add_u32', V(26), S_XB, V(27))]
        for i in range(4):
            for j in range(4): o_.append(ds_write(4, V(26), sacc(i, j), off=(i*4+j)*1024))
        o_ += [raw("s_lshl_b32 s43, s24, 10", writes=[S_TMP]), raw(f"s_add_u32 s43, s43, {XBASE}", writes=[S_TMP]), valu('v_add_u32', V(27), S_TMP, V(27))]
        return o_
    PS = [[V(18, 2), V(20, 2), V(22, 2), V(24, 2)], [V(28, 2), V(30, 2), V(2, 2), V(4, 2)]]
    def unit_reads(u):
        i, h = u >> 1, u & 1
        return [ds_read_b64(PS[u & 1][w], V(27), w*16384 + i*4096 + 8*h) for w in range(4)]
    def unit_sum(u, e):
        P_ = PS[u & 1]; x = P_[3][e]
        return [valu('v_add_f32', P_[0][e], P_[0][e], P_[1][e]), valu('v_add_f32', x, x, P_[2][e]), valu('v_add_f32', x, x, P_[0][e])], x
    per = {}
    def side_spec(j):
        kw = dict(first=(j == 0), last_drain=(j == 32), kv=(j <= 29))
        if not o.side: return kw
        if j <= 15:
            rd, mf, dm = g1_parts(j, in_loop=(j >= 1))
            kw['side_groups'] = [(5, mf)] if o.g1_pos == 0 else ([(3, mf[:8]), (5, mf[8:])] if o.g1_pos == 1 else [(7, mf)] if o.g1_pos == 2 else [(1, mf[:4]), (3, mf[4:8]), (5, mf[8:12]), (6, mf[12:])])
            if getattr(o, 'x_noread', False): rd = []
            if getattr(o, 'x_nodma', False): dm = [i for i in dm if i.kind != 'dma' and 'm0' not in i.writes]
            kw['streams'] = [('srd', spread(rd, o.g1_rd[0], o.g1_rd[1]))]
            if dm: kw['side_dma_list'] = (dm, o.g1_dm[0], o.g1_dm[1], 0.5)
            if o.tog_early:
                tg = toggle_side()
                kw['streams'][0] = ('srd', kw['streams'][0][1] + [(0.5, 0.45, i) for i in tg[:4]])
                kw['post'] = tg[4:]
            else: kw['post'] = toggle_side()
        elif j == 16:
            pre = make_srd(B1, S(96, 2), 1792*2)
            bl = [valu('v_lshrrev_b32', V(1), 4, l), valu('v_lshlrev_b32', V(1), 3, V(1)), raw("s_lshl_b32 s44, s46, 7", writes=[S(44)])]
            bl += [bload(2, A(192 + 2*ft, 2), V(1), B1, S(44), off=32*ft) for ft in range(4)]
            kw['pre'] = pre
            pf = []
            if o.prefetch and o.pf_w2 and not o.g2_tail:
                pf = [raw("s_mul_i32 s44, s47, 224", writes=[S(44)]), raw("s_mul_i32 s45, s24, 56", writes=[S(45)]), raw("s_add_u32 s44, s44, s45", writes=[S(44)]),
                      valu('v_add_u32', V(2), S(44), l), valu('v_lshlrev_b32', V(2), 12, V(2)), raw("s_lshl_b32 s45, s46, 7", writes=[S(45)]),
                      bload(1, A(200), V(2), SRD_W2, S(45))]
            if o.wot:
                pf += [raw("s_lshl_b32 s3, s25, 4", writes=[S(3)]), raw("s_lshr_b32 s5, s26, 1", writes=[S(5)]), raw("s_add_u32 s3, s3, s5", writes=[S(3)]),
                       raw("s_lshl_b32 s3, s3, 15", writes=[S(3)]), raw("s_and_b32 s5, s26, 1", writes=[S(5)]), raw("s_lshl_b32 s5, s5, 9", writes=[S(5)]),
                       raw("s_add_u32 s3, s3, s5", writes=[S(3)]), raw("s_lshl_b32 s5, s24, 7", writes=[S(5)]), raw("s_add_u32 s3, s3, s5", writes=[S(3)]),
                       valu('v_and_b32', V(3), 31, l), valu('v_lshlrev_b32', V(3), 10, V(3)), bload(1, A(201), V(3), SRD_WO, S(3))]
            kw['streams'] = [('sw', spread(scratch_write(), 0.1, 0.7)), ('sb', spread(bl, 0.05, 0.1)), ('spf', [(0.15, 0.12, i) for i in pf])]
        elif j == 17:
            comp = [smov(S(45), -2.0*0.7978845608028654*LOG2E*0.044715), valu('v_mov_b32', V(1), -2.0*0.7978845608028654*LOG2E)]
            comp += [raw("s_lshl_b32 s43, s47, 2", writes=[S_TMP]), raw("s_add_u32 s43, s43, s24", writes=[S_TMP]), raw("s_mul_i32 s43, s43, 56", writes=[S_TMP]),
                     raw("s_lshl_b32 s39, s46, 1", writes=[S_SA]), raw("s_add_u32 s43, s43, s39", writes=[S_TMP]), raw("s_lshl_b32 s43, s43, 10", writes=[S_TMP]),
                     raw(f"s_add_u32 s43, s43, {WS_U}", writes=[S_TMP]), valu('v_lshlrev_b32', V(26), 4, l)]
            OUTA = A(240, 8)
            comp += unit_reads(0)
            for u in range(8):
                ft, h = u >> 1, u & 1
                if u + 1 < 8: comp += unit_reads(u + 1)
                comp.append(valu('v_accvgpr_read_b32', V(6), A(192 + 2*ft + h)))
                xs = []
                for e in range(2):
                    sm_, x = unit_sum(u, e); comp += sm_; xs.append(x)
                    comp.append(valu('v_and_b32', V(7), 0xffff0000, V(6)) if e else valu('v_lshlrev_b32', V(7), 16, V(6)))
                    comp.append(valu('v_add_f32', x, x, V(7)))
                    comp += [valu('v_mul_f32', V(7), x, x), valu('v_fma_f32', V(7), V(7), S(45), V(1)), valu('v_mul_f32', V(7), V(7), x), valu('v_exp_f32', V(7), V(7)),
                             valu('v_add_f32', V(7), 1.0, V(7)), valu('v_rcp_f32', V(7), V(7)), valu('v_mul_f32', x, x, V(7))]
                comp += [valu('v_cvt_pk_bf16_f32', V(6), xs[0], xs[1]), valu('v_accvgpr_write_b32', OUTA[u], V(6))]
                if u in (3, 7): comp.append(lds_dep(bstore(4, OUTA[u-3:u+1], V(26), SRD_US, S_TMP, off=(u >> 2)*1024, mods="sc1"), mark={'US'}))
            kw['streams'] = [('scomp', spread(comp, 0.0, 0.98))]
        elif o.g2_tail and j >= 18:
            if j == 18:
                sig = [valu('v_mov_b32', V(4), 1), valu('v_lshlrev_b32', V(5), 25, l),
                       raw("s_lshl_b32 s44, s47, 2", writes=[S(44)]), raw("s_add_u32 s44, s44, s24", writes=[S(44)]), raw("s_lshl_b32 s44, s44, 8", writes=[S(44)]),
                       raw(f"s_add_u32 s44, s44, {WS_CNT}", writes=[S(44)]),
                       lds_dep(I(f"buffer_atomic_add v4, v5, {SRD_US}, s44 offen sc1", 'vatomic', reads=[V(4), V(5), SRD_US, S(44)], writes=[]), need={'US'})]
                kw['streams'] = [('ssig', [(0.6, 0.5, i) for i in sig])]
            elif j == 28:
                pl = [valu('v_and_b32', V(1), 3, l), valu('v_lshlrev_b32', V(1), 8, V(1)), raw("s_lshl_b32 s43, s47, 10", writes=[S_TMP]),
                      raw(f"s_add_u32 s43, s43, {WS_CNT}", writes=[S_TMP]), bload(1, V(6), V(1), SRD_W, S_TMP, mods="sc1")]
                pf = []
                if o.prefetch and o.pf_w2:
                    pf = [raw("s_mul_i32 s44, s47, 224", writes=[S(44)]), raw("s_mul_i32 s45, s24, 56", writes=[S(45)]), raw("s_add_u32 s44, s44, s45", writes=[S(44)]),
                          valu('v_add_u32', V(2), S(44), l), valu('v_lshlrev_b32', V(2), 12, V(2)), raw("s_lshl_b32 s45, s46, 7", writes=[S(45)]),
                          bload(1, A(200), V(2), SRD_W2, S(45))]
                if o.prefetch:
                    pf += [raw("s_lshl_b32 s44, s25, 5", writes=[S(44)]), raw("s_add_u32 s44, s44, s26", writes=[S(44)]), raw("s_lshl_b32 s44, s44, 2", writes=[S(44)]),
                           raw("s_add_u32 s44, s44, s24", writes=[S(44)]), raw("s_lshl_b32 s44, s44, 12", writes=[S(44)]), valu('v_lshlrev_b32', V(3), 4, l)]
                    pf += [bload(4, A(240 + 4*n, 4), V(3), SRD_WO, S(44), off=n*1024) for n in range(4)]
                kw['streams'] = [('spoll', [(0.05, 0.0, i) for i in pl]), ('spf', spread(pf, 0.45, 0.9, rel=0.42))]
                chk = lambda: [I("v_cmp_le_u32 vcc, 28, v6", 'valu', reads=[V(6)], writes=['vcc']), nop(3), raw("s_cmp_eq_u64 vcc, -1", reads=['vcc'])]
                kw['post'] = [smov(S(45), 0), label("L_k3_poll")] + chk() + [raw("s_cbranch_scc1 L_k3_pollok", 'branch'),
                              raw("s_sleep 4"), bload(1, V(6), V(1), SRD_W, S_TMP, mods="sc1"), waitcnt(vm=0),
                              sop('s_add_u32', S(45), S(45), 1), scmp('s_cmp_lt_u32', S(45), 0x40000), raw("s_cbranch_scc1 L_k3_poll", 'branch'), label("L_k3_pollok")]
        elif j == 18:
            su = []
            dma_off_128(su.append, l, DA, 4096, V(1), V(2), V(3), s_tmp=S_TMP)
            su += [valu('v_lshlrev_b32', DB[0], 4, l)] + [valu('v_add_u32', DB[t], 56*1024, DB[t-1]) for t in range(1, 4)]
            su += [raw("s_mul_i32 s39, s24, 448*4096", writes=[S_SA]), raw("s_lshl_b32 s43, s46, 7", writes=[S_TMP]), raw("s_add_u32 s39, s39, s43", writes=[S_SA]),
                   raw("s_mul_i32 s36, s47, 4*56", writes=[S_SB]), raw("s_mul_i32 s43, s24, 14", writes=[S_TMP]), raw("s_add_u32 s36, s36, s43", writes=[S_SB]),
                   raw("s_lshl_b32 s36, s36, 10", writes=[S_SB]), raw(f"s_add_u32 s36, s36, {WS_U}", writes=[S_SB]), smov(S_N, 0), smov(S_SKIP, 0)]
            sig = [valu('v_mov_b32', V(4), 1), valu('v_lshlrev_b32', V(5), 25, l),
                   raw("s_lshl_b32 s44, s47, 2", writes=[S(44)]), raw("s_add_u32 s44, s44, s24", writes=[S(44)]), raw("s_lshl_b32 s44, s44, 8", writes=[S(44)]),
                   raw(f"s_add_u32 s44, s44, {WS_CNT}", writes=[S(44)]),
                   lds_dep(I(f"buffer_atomic_add v4, v5, {SRD_US}, s44 offen sc1", 'vatomic', reads=[V(4), V(5), SRD_US, S(44)], writes=[]), need={'US'})]
            kw['streams'] = [('ssu', spread(su, 0.05, 0.55)), ('ssig', [(0.6, 0.5, i) for i in sig])]
            if o.wot:
                WD = [V(28 + i) for i in range(4)]
                wsu = []
                dma_off_128(wsu.append, l, WD, 1024, V(6), V(7), V(26), s_tmp=S(5))
                wsu += [raw("s_lshl_b32 s3, s25, 4", writes=[S(3)]), raw("s_lshr_b32 s5, s26, 1", writes=[S(5)]), raw("s_add_u32 s3, s3, s5", writes=[S(3)]),
                        raw("s_lshl_b32 s3, s3, 15", writes=[S(3)]), raw("s_and_b32 s5, s26, 1", writes=[S(5)]), raw("s_lshl_b32 s5, s5, 9", writes=[S(5)]),
                        raw("s_add_u32 s3, s3, s5", writes=[S(3)]), raw("s_lshl_b32 s5, s24, 7", writes=[S(5)]), raw("s_add_u32 s3, s3, s5", writes=[S(3)])]
                kw['streams'].append(('swsu', spread(wsu, 0.0, 0.12)))
                dl = [sop('s_add_u32', 'm0', S_SR, 8192), nop(0)] + [lds_dep(dma(WD[i], SRD_WO, S(3), off=i*1024), need={'sR1'}, mark={'sL1'}) for i in range(4)]
                kw['side_dma_list'] = (dl, 0.42, 0.55, 0.2)
        elif j == 19:
            st = g2_dma(0, False) + [sop('s_xor_b32', S_SR, S_SR, 8192)] + g2_dma(1, False) + [sop('s_xor_b32', S_SR, S_SR, 8192)]
            kw['side_dma_list'] = (st, 0.42, 0.95, 0.0)
            if o.wot:
                rd = [lds_dep(ds_read_tr(A(192 + 4*t + 2*u, 2), TA[t], 8192 + u*2048), need={'sL1'}, mark={'sR1'}) for t in range(4) for u in range(2)]
                ad = [raw("s_lshl_b32 s3, s25, 4", writes=[S(3)]), raw("s_lshr_b32 s5, s26, 1", writes=[S(5)]), raw("s_add_u32 s3, s3, s5", writes=[S(3)]),
                      raw("s_lshl_b32 s3, s3, 5", writes=[S(3)]), raw("s_and_b32 s5, s26, 1", writes=[S(5)]), raw("s_lshl_b32 s5, s5, 4", writes=[S(5)]),
                      raw("s_add_u32 s3, s3, s5", writes=[S(3)]), raw("s_lshl_b32 s5, s24, 2", writes=[S(5)]), raw("s_add_u32 s3, s3, s5", writes=[S(3)]),
                      raw("s_lshl_b32 s3, s3, 10", writes=[S(3)]), raw(f"s_add_u32 s3, s3, {WS_WOT}", writes=[S(3)]), valu('v_lshlrev_b32', V(26), 4, l)]
                stw = [bstore(4, A(192 + 4*t, 4), V(26), SRD_W, S(3), off=t*1024, mods="sc1") for t in range(4)]
                kw['streams'] = [('swr', spread(rd, 0.50, 0.60, rel=0.48) + [(0.61, 0.0, i) for i in ad] + spread(stw, 0.64, 0.8, rel=0.62))]
                kw['side_dma_list'] = (st, 0.42, 0.97, 0.0)
        elif j == 20:
            pl = [valu('v_and_b32', V(1), 3, l), valu('v_lshlrev_b32', V(1), 8, V(1)), raw("s_lshl_b32 s43, s47, 10", writes=[S_TMP]),
                  raw(f"s_add_u32 s43, s43, {WS_CNT}", writes=[S_TMP]), bload(1, V(6), V(1), SRD_W, S_TMP, mods="sc1")]
            kw['streams'] = [('spoll', [(0.80, 0.7, i) for i in pl])]
            if o.prefetch and not o.wot:
                extra = [raw("s_lshl_b32 s44, s25, 5", writes=[S(44)]), raw("s_add_u32 s44, s44, s26", writes=[S(44)]), raw("s_lshl_b32 s44, s44, 2", writes=[S(44)]),
                         raw("s_add_u32 s44, s44, s24", writes=[S(44)]), raw("s_lshl_b32 s44, s44, 12", writes=[S(44)])]
                extra += [bload(4, A(240 + 4*n, 4), DB[0], SRD_WO, S(44), off=n*1024) for n in range(4)]
                kw['streams'].append(('spf', spread(extra, 0.42, 0.55)))
            chk = lambda: [I("v_cmp_le_u32 vcc, 28, v6", 'valu', reads=[V(6)], writes=['vcc']), nop(3), raw("s_cmp_eq_u64 vcc, -1", reads=['vcc'])]
            dg = (STP() if getattr(o, 'polldiag', False) else [])
            kw['post'] = dg + [smov(S(45), 0), label("L_k3_poll")] + chk() + [raw("s_cbranch_scc1 L_k3_pollok", 'branch'),
                          raw("s_sleep 4"), bload(1, V(6), V(1), SRD_W, S_TMP, mods="sc1"), waitcnt(vm=0),
                          sop('s_add_u32', S(45), S(45), 1), scmp('s_cmp_lt_u32', S(45), 0x40000), raw("s_cbranch_scc1 L_k3_poll", 'branch'), label("L_k3_pollok")] + ([smov(S(94), S(45))] if getattr(o, 'polldiag', False) else [])
            kw['vm_end'] = 0
        elif j == 21:
            if o.wot:
                kw['pre'] = [valu('v_mov_b32', V(4), 1), valu('v_lshlrev_b32', V(5), 25, l), sop('s_add_u32', S(44), S_G, 64), raw("s_lshl_b32 s44, s44, 8", writes=[S(44)]),
                             raw(f"s_add_u32 s44, s44, {WS_CNT}", writes=[S(44)]), raw("s_cmp_eq_u32 s24, 0"), raw(f"s_cselect_b32 s44, s44, {WS_END}", reads=['scc'], writes=[S(44)]),
                             I(f"buffer_atomic_add v4, v5, {SRD_W}, s44 offen sc1", 'vatomic', reads=[V(4), V(5), SRD_W, S(44)], writes=[])]
            z = [valu('v_accvgpr_write_b32', A(128 + r), 0) for r in range(64)]
            kw['streams'] = [('sul', spread(g2_uloads(), 0.05, 0.3)), ('sz', spread(z, 0.1, 0.95))]
        elif 22 <= j <= 28:
            i = j - 22
            rd, mfs = g2_parts(i if i else 1)
            rd, _ = g2_parts(i)
            kw['side_groups'] = [(3, mfs[0]), (5, mfs[1])]
            stl = [('srd', spread(rd, 0.02, 0.36))]
            if j <= 27:
                dm = [scmp('s_cmp_gt_u32', S_N, 4), I(f"s_cselect_b32 {S_SKIP}, 0x30000, 0", 'salu', reads=['scc'], writes=[S_SKIP]), sop('s_add_u32', S_N, S_N, 1)]
                dm += g2_dma(i & 1, True)
                kw['side_dma_list'] = (dm, 0.45, 0.78, 0.42)
                stl += [('sul', spread(g2_uloads(), 0.82, 0.98, rel=0.80))]
            if o.tog_early:
                tg = toggle_side()
                stl[0] = ('srd', stl[0][1] + [(0.45, 0.42, i) for i in tg[:4]])
                kw['post'] = tg[4:]
            else: kw['post'] = toggle_side()
            kw['streams'] = stl
        elif j == 29:
            pre = make_srd(B1, S(98, 2), 2048*2)
            bl = [valu('v_and_b32', V(1), 15, l), raw("s_lshl_b32 s44, s46, 6", writes=[S(44)]), raw("s_lshl_b32 s45, s24, 4", writes=[S(45)]),
                  raw("s_add_u32 s44, s44, s45", writes=[S(44)]), valu('v_add_u32', V(1), S(44), V(1)), valu('v_lshlrev_b32', V(1), 1, V(1)), bload_ushort(V(1), V(1), B1)]
            kw['pre'] = pre
            kw['streams'] = [('sw', spread(scratch_write(), 0.1, 0.7)), ('sb', spread(bl, 0.05, 0.1))]
        elif j == 30:
            comp = [smov(S(44), -LOG2E), valu('v_lshlrev_b32', V(1), 16, V(1))]
            comp += [raw("s_lshr_b32 s43, s47, 1", writes=[S_TMP]), raw("s_lshl_b32 s45, s46, 2", writes=[S(45)]), raw("s_add_u32 s43, s43, s45", writes=[S_TMP]),
                     raw("s_lshl_b32 s43, s43, 2", writes=[S_TMP]), raw("s_and_b32 s45, s47, 1", writes=[S(45)]), raw("s_lshl_b32 s45, s45, 1", writes=[S(45)]),
                     raw("s_add_u32 s43, s43, s45", writes=[S_TMP]), raw("s_lshl_b32 s43, s43, 2", writes=[S_TMP]), raw("s_add_u32 s43, s43, s24", writes=[S_TMP]),
                     raw("s_lshl_b32 s43, s43, 10", writes=[S_TMP]), raw(f"s_add_u32 s43, s43, {WS_GATE}", writes=[S_TMP]), valu('v_lshlrev_b32', V(26), 4, l)]
            OUTA = A(240, 8)
            comp += unit_reads(0)
            for u in range(8):
                if u + 1 < 8: comp += unit_reads(u + 1)
                xs = []
                for e in range(2):
                    sm_, y = unit_sum(u, e); comp += sm_; xs.append(y)
                    comp += [valu('v_add_f32', y, y, V(1)), valu('v_mul_f32', V(7), S(44), y), valu('v_exp_f32', V(7), V(7)), valu('v_add_f32', V(7), 1.0, V(7)),
                             valu('v_rcp_f32', V(7), V(7)), valu('v_mul_f32', y, y, V(7))]
                comp += [valu('v_cvt_pk_bf16_f32', V(6), xs[0], xs[1]), valu('v_accvgpr_write_b32', OUTA[u], V(6))]
                if u in (3, 7):
                    comp.append(bstore(4, OUTA[u-3:u+1], V(26), SRD_W, S_TMP, mods=("sc1" if o.fuse_comb else "")))
                    comp.append(sop('s_add_u32', S_TMP, S_TMP, 4096))
            kw['streams'] = [('scomp', spread(comp, 0.0, 0.98))]
        return kw
    DO = [V(14 + i) for i in range(4)]
    TO = [V(64 + i) for i in range(8)]; TO2 = [V(72 + i) for i in range(8)]
    S_SLOW = S(6); S_R2 = S(7)
    def wo_setup():
        s_ = []; a_ = s_.append
        dma_off_256(a_, l, DO, 1024, 'o', S_T)
        a_(raw("s_lshl_b32 s42, s25, 19", writes=[S_SO])); a_(raw("s_lshl_b32 s43, s24, 8", writes=[S_T]))
        a_(raw("s_add_u32 s42, s42, s43", writes=[S_SO]))
        a_(raw("s_lshl_b32 s7, s24, 13", writes=[S_R2])); a_(raw("s_add_u32 s7, s7, 65536", writes=[S_R2]))
        return s_
    def wo_stage(n):
        s_ = []
        sb, madd = (S_XB, n*8192) if n < 2 else (S_R2, 0)
        for h in range(2):
            s_ += [sop('s_add_u32', 'm0', sb, madd + h*4096), nop(0)]
            for i in range(4): s_.append(lds_dep(dma(DO[i], SRD_WO, S_SO, off=i*1024), need={f'oR{n}'}, mark={f'oL{n}'}))
            s_.append(sop('s_add_u32', S_SO, S_SO, 16*1024))
        return s_
    def wo_first_lds(): return wo_setup() + wo_stage(0) + wo_stage(1) + wo_stage(2)
    VLW = V(14)
    def wot_setup():
        return [valu('v_lshlrev_b32', VLW, 4, l), raw("s_lshl_b32 s42, s25, 19", writes=[S_SO]), raw("s_lshl_b32 s43, s24, 13", writes=[S_T]),
                raw("s_add_u32 s42, s42, s43", writes=[S_SO]), raw(f"s_add_u32 s42, s42, {WS_WOT}", writes=[S_SO])]
    def wot_loads(n): return proj3_loads(SRD_W, S_SO, VLW, n, 128)
    def wot_first(): return [i for n in range(P3_DEPTH) for i in wot_loads(n)]
    def wo_first(): return (wot_setup() + wot_first()) if o.wot else wo_first_lds()
    seqs = [('pro', pro)]
    for j in range(33):
        kw_ = side_spec(j)
        if j == 31 and o.wot:
            kw_['streams'] = list(kw_.get('streams', [])) + [('swo', spread(wot_setup(), 0.0, 0.05) + spread(wot_first(), 0.08, 0.95, rel=0.06))]
        elif j == 31 and o.wo_early:
            kw_['streams'] = list(kw_.get('streams', [])) + [('swo', spread(wo_setup(), 0.02, 0.2))]
            kw_['side_dma_list'] = (wo_stage(0) + wo_stage(1), 0.25, 0.95, 0.22)
        if j == 31 and o.tlb_warm and o.fuse_comb:
            tw = [valu('v_and_b32', V(2), 7, l), valu('v_lshlrev_b32', V(2), 21, V(2)),
                  raw("s_lshl_b32 s3, s26, 16", writes=[S(3)]), raw(f"s_add_u32 s3, s3, {WS_PART}", writes=[S(3)]),
                  bload(1, A(201), V(2), SRD_W, S(3), mods="sc1"),
                  valu('v_mov_b32', V(3), 0), raw("s_lshl_b32 s3, s26, 16", writes=[S(3)]), raw(f"s_add_u32 s3, s3, {WS_GATE}", writes=[S(3)]),
                  bload(1, A(202), V(3), SRD_W, S(3), mods="sc1")]
            tw += make_srd(S(48, 4), S(100, 2), 2 << 20) + [raw("s_lshl_b32 s3, s26, 16", writes=[S(3)]), bload(1, A(203), V(3), S(48, 4), S(3))]
            kw_['streams'] = list(kw_.get('streams', [])) + [('stw', [(0.02, 0.0, i) for i in tw])]
        if j == 30 and o.wot:
            pl = [valu('v_mov_b32', V(16), 0), sop('s_add_u32', S(3), S_G, 64), raw("s_lshl_b32 s3, s3, 8", writes=[S(3)]), raw(f"s_add_u32 s3, s3, {WS_CNT}", writes=[S(3)]),
                  bload(1, V(17), V(16), SRD_W, S(3), mods="sc1")]
            kw_['streams'] = list(kw_.get('streams', [])) + [('swp', [(0.3, 0.25, i) for i in pl])]
            kw_['post'] = list(kw_.get('post', [])) + [smov(S(5), 0), label("L_k3_wpoll"), readfirstlane(S(4), V(17)), nop(3), scmp('s_cmp_ge_u32', S(4), 32),
                          raw("s_cbranch_scc1 L_k3_wpollok", 'branch'), raw("s_sleep 4"), bload(1, V(17), V(16), SRD_W, S(3), mods="sc1"), waitcnt(vm=0),
                          sop('s_add_u32', S(5), S(5), 1), scmp('s_cmp_lt_u32', S(5), 0x40000), raw("s_cbranch_scc1 L_k3_wpoll", 'branch'), label("L_k3_wpollok")]
        p = at.period(j, **kw_)
        if o.timing and j in o.stamp_after: p = p + STP()
        seqs.append((j, [label(f"@@P{j}")] + p))
    def arrive2(idx_s):
        return [valu('v_mov_b32', V(4), 1), valu('v_lshlrev_b32', V(5), 25, l),
                sop('s_add_u32', S(44), idx_s, 32), raw("s_lshl_b32 s44, s44, 8", writes=[S(44)]), raw(f"s_add_u32 s44, s44, {WS_CNT}", writes=[S(44)]),
                raw("s_cmp_eq_u32 s24, 0"), raw(f"s_cselect_b32 s44, s44, {WS_END}", reads=['scc'], writes=[S(44)]),
                I(f"buffer_atomic_add v4, v5, {SRD_W}, s44 offen sc1", 'vatomic', reads=[V(4), V(5), SRD_W, S(44)], writes=[])]
    pre_epi = [smov(S_SLOW, 0)]
    if o.fuse_comb: pre_epi += ([] if o.g2_tail else arrive2(S_T64)) + [sload(S(96, 2), ARG_X)] + ([sload(S(100, 2), ARG_OUT)] if o.g2_tail else [sload(S(98, 2), ARG_OUT)])
    if not o.wot: pre_epi += (wo_stage(2) if o.wo_early else wo_first())
    s = []; a = s.append
    a(label("@@EPI"))
    a(label("L_k3_norm"))
    a(nop(7))
    if not o.wot:
        a(valu('v_mov_b32', V(6), S_XB))
        addr_tr256(a, l, TO, V(6), 4)
        a(valu('v_mov_b32', V(6), S_R2))
        addr_tr256(a, l, TO2, V(6), 4)
    LI = [V(24 + i) for i in range(4)]
    for qt in range(4): a(valu('v_rcp_f32', LI[qt], LA[qt][0]))
    a(valu('v_lshlrev_b32', V(7), 4, l))
    a(raw("s_lshl_b32 s43, s24, 14", writes=[S_T]))
    a(valu('v_add_u32', V(22), S_T, V(7))); a(valu('v_mov_b32', V(23), V(7)))
    for kk in range(4):
        for qt in range(4):
            x, y = O(2*kk, qt), O(2*kk+1, qt)
            for r in range(4):
                a(valu('v_mul_f32', x[r], x[r], LI[qt])); a(valu('v_mul_f32', y[r], y[r], LI[qt]))
            if o.moff:
                mx = V(28 + qt)
                ab = lambda r_: f"|{r_}|"
                if kk == 0: a(valu('v_max3_f32', mx, ab(x[0]), ab(x[1]), ab(x[2])))
                else: a(valu('v_max3_f32', mx, ab(x[0]), ab(x[1]), mx)); a(valu('v_max_f32', mx, ab(x[2]), mx, mods=""))
                a(valu('v_max3_f32', mx, ab(x[3]), ab(y[0]), mx)); a(valu('v_max3_f32', mx, ab(y[1]), ab(y[2]), mx)); a(valu('v_max_f32', mx, ab(y[3]), mx))
            F = V(48 + 4*((kk*4+qt) & 3), 4)
            a(valu('v_cvt_pk_bf16_f32', F[0], x[0], x[1])); a(valu('v_cvt_pk_bf16_f32', F[1], x[2], x[3]))
            a(valu('v_cvt_pk_bf16_f32', F[2], y[0], y[1])); a(valu('v_cvt_pk_bf16_f32', F[3], y[2], y[3]))
            a(ds_write(4, V(22), F, off=(kk*4+qt)*1024))
    a(waitcnt(lgkm=0)); a(barrier())
    s.extend(STP())
    def oread(n, qt, dst): return ds_read_b128(dst, V(23), (n*4+qt)*1024)
    S_PS = S(3)
    def pstore(prange):
        o_ = []
        for p in prange:
            for qt in range(4):
                x, y = O(2*p, qt), O(2*p+1, qt)
                F = V(48 + 4*((p*4+qt) & 3), 4)
                o_ += [valu('v_cvt_pk_bf16_f32', F[0], x[0], x[1]), valu('v_cvt_pk_bf16_f32', F[1], x[2], x[3]),
                       valu('v_cvt_pk_bf16_f32', F[2], y[0], y[1]), valu('v_cvt_pk_bf16_f32', F[3], y[2], y[3]),
                       bstore(4, F, V(7), SRD_W, S_PS, off=qt*1024, mods=("sc1" if o.fuse_comb else ""))]
            o_.append(sop('s_add_u32', S_PS, S_PS, 4096))
        return o_
    a(raw("s_lshl_b32 s3, s25, 5", writes=[S_PS])); a(raw("s_add_u32 s3, s3, s26", writes=[S_PS]))
    a(raw("s_lshl_b32 s3, s3, 2", writes=[S_PS])); a(raw("s_add_u32 s3, s3, s24", writes=[S_PS]))
    a(raw("s_lshl_b32 s3, s3, 14", writes=[S_PS])); a(raw(f"s_add_u32 s3, s3, {WS_PART}", writes=[S_PS]))
    g2pre = {}
    if o.g2_tail:
        GTA = [[V(96 + t) for t in range(4)], [V(100 + t) for t in range(4)]]
        GDA = [V(104 + t) for t in range(4)]; GUL = [V(108 + t) for t in range(4)]
        a(valu('v_mov_b32', V(6), S_XB)); tr_addr_128(a, l, GTA[0], V(6), V(1), V(2), V(3), V(4))
        a(valu('v_mov_b32', V(6), S_R2)); tr_addr_128(a, l, GTA[1], V(6), V(1), V(2), V(3), V(4))
        dma_off_128(a, l, GDA, 4096, V(1), V(2), V(3), s_tmp=S(5))
        a(valu('v_lshlrev_b32', GUL[0], 4, l))
        for t in range(1, 4): a(valu('v_add_u32', GUL[t], 56*1024, GUL[t-1]))
        a(raw("s_mul_i32 s39, s24, 448*4096", writes=[S_SA])); a(raw("s_lshl_b32 s5, s46, 7", writes=[S(5)])); a(raw("s_add_u32 s39, s39, s5", writes=[S_SA]))
        a(raw("s_mul_i32 s36, s47, 4*56", writes=[S_SB])); a(raw("s_mul_i32 s5, s24, 14", writes=[S(5)])); a(raw("s_add_u32 s36, s36, s5", writes=[S_SB]))
        a(raw("s_lshl_b32 s36, s36, 10", writes=[S_SB])); a(raw(f"s_add_u32 s36, s36, {WS_U}", writes=[S_SB]))
        s.extend(make_srd(S(28, 4), S(98, 2), 2048*2))
        a(valu('v_and_b32', V(1), 15, l)); a(raw("s_lshl_b32 s44, s46, 6", writes=[S(44)])); a(raw("s_lshl_b32 s45, s24, 4", writes=[S(45)]))
        a(raw("s_add_u32 s44, s44, s45", writes=[S(44)])); a(valu('v_add_u32', V(1), S(44), V(1))); a(valu('v_lshlrev_b32', V(1), 1, V(1)))
        a(bload_ushort(V(18), V(1), S(28, 4)))
        gmap = [(0, 8192, S_XB, 8192), (0, 12288, S_XB, 12288), (1, 0, S_R2, 0), (1, 4096, S_R2, 4096)]
        wneed = ['oR1', 'oR1', 'oR2', 'oR2']
        def g2_w(n, first=False):
            st = n % 4; (_, _, sb, madd) = gmap[st]
            o_ = [sop('s_add_u32', 'm0', sb, madd)]
            for i in range(4): o_.append(lds_dep(dma(GDA[i], SRD_W2, S_SA, off=i*1024), need={f'gR{st}'} | ({wneed[st]} if first else set()), mark={f'gL{st}'}))
            o_.append(sop('s_add_u32', S_SA, S_SA, 32*4096))
            return o_
        gfa = lambda n, t: A(192 + 16*(n % 4) + 4*t, 4)
        gfb = lambda p, t: A(128 + 16*p + 4*t, 4)
        def g2_u(n):
            return [bload(4, gfa(n, t), GUL[t], SRD_W, S_SB, mods="sc1") for t in range(4)] + [sop('s_add_u32', S_SB, S_SB, 1024)]
        def g2_r(n):
            st = n % 4; (ti, imm, _, _) = gmap[st]
            return [lds_dep(ds_read_tr(gfb(n & 1, t)[2*u:2*u+2], GTA[ti][t], imm + u*2048), need={f'gL{st}'}, mark={f'gR{st}'}) for t in range(4) for u in range(2)]
        g2pre = {13: g2_w(0, True) + g2_w(1, True) + g2_u(0), 14: g2_w(2, True) + g2_w(3, True) + g2_u(1), 15: g2_u(2) + g2_u(3)}
    if o.wot:
        proj_gemm3(a, s, SRD_W, S_SO, VLW, oread, 128, 64, mid_fill=pstore(range(2)))
    else:
        proj_gemm2(a, s, TO, DO, SRD_WO, S_SO, 1024, S_RING, oread, 4096, 'o', fb_base=(160 if o.g2_tail else 128),
                   stage_map=[(TO, 0, S_XB, 0), (TO, 8192, S_XB, 8192), (TO2, 0, S_R2, 0)], extra_vm=g2pre)
    if o.fast_tail and o.fuse_comb and not o.g2_tail and not o.wot: s.extend(pstore(range(4)))
    a(smov(S(44), float(2.0**100)))
    for qt in range(4):
        a(I(f"v_cmp_gt_f32 vcc, s44, {LA[qt][0]}", 'valu', reads=[S(44), LA[qt][0]], writes=['vcc']))
        a(nop(3))
        a(I("s_mov_b64 s[56:57], vcc" if qt == 0 else "s_and_b64 s[56:57], s[56:57], vcc", 'salu', reads=['vcc'], writes=[S(56, 2), 'scc']))
    if o.moff:
        a(smov(S(44), float(2.0**(o.moff - 108))))
        for qt in range(4):
            a(I(f"v_cmp_le_f32 vcc, s44, {V(28 + qt)}", 'valu', reads=[S(44), V(28 + qt)], writes=['vcc']))
            a(nop(3))
            a(I("s_and_b64 s[56:57], s[56:57], vcc", 'salu', reads=['vcc'], writes=[S(56, 2), 'scc']))
    a(nop(7))
    a(valu('v_mov_b32', V(1), 0x1F8))
    for qt in range(4):
        a(I(f"v_cmp_class_f32 vcc, {O(0, qt)[0]}, v1", 'valu', reads=[O(0, qt)[0], V(1)], writes=['vcc']))
        a(nop(3))
        a(I("s_and_b64 s[56:57], s[56:57], vcc", 'salu', reads=['vcc'], writes=[S(56, 2), 'scc']))
    a(raw("s_cmp_eq_u64 s[56:57], -1"))
    a(raw("s_cselect_b32 s44, 0, 1", reads=['scc'], writes=[S(44)]))
    a(valu('v_mov_b32', V(2), S(44))); a(valu('v_mov_b32', V(1), S_XB))
    a(ds_write(1, V(1), V(2)))
    def flag_decide():
        a(valu('v_mov_b32', V(1), XBASE))
        a(ds_read_b32(V(2), V(1))); a(ds_read_b32(V(3), V(1), 16384)); a(ds_read_b32(V(4), V(1), 32768)); a(ds_read_b32(V(5), V(1), 49152))
        a(valu('v_or_b32', V(2), V(2), V(3))); a(valu('v_or_b32', V(4), V(4), V(5))); a(valu('v_or_b32', V(2), V(2), V(4)))
        a(readfirstlane(S(44), V(2)))
        a(nop(3))
        a(I("s_andn2_b32 s44, s44, s6", 'salu', reads=[S(44), S_SLOW], writes=[S(44), 'scc']))
        a(raw("s_cbranch_scc1 L_k3_slow", 'branch'))
    FT = o.fast_tail and o.fuse_comb and not o.g2_tail and not o.wot
    if not FT:
        a(waitcnt(lgkm=0)); a(barrier())
        flag_decide()
        a(label("L_k3_store"))
        s.extend(STP())
        if not o.g2_tail: s.extend(pstore(range(2, 4) if o.wot else range(4)))
    else:
        s.extend(STP())
    if o.g2_tail:
        gacc = lambda mt, st_: A(64 + (mt*4+st_)*4, 4)
        pfill = pstore(range(4))
        s.extend(g2_r(0))
        for n in range(14):
            rd = g2_r(n + 1) if n + 1 < 14 else []
            vm = (g2_w(n + 4) + g2_u(n + 4)) if n + 4 < 14 else []
            mf = [mfma16(gacc(mt, st_), gfa(n, mt), gfb(n & 1, st_), gacc(mt, st_) if n else 0) for mt in range(4) for st_ in range(4)]
            gaps = [[] for _ in range(16)]
            for k, ins in enumerate(rd): gaps[k].append(ins)
            g = 8
            for (ins, st_) in dma_ops_with_setup(vm):
                if ins.kind == 'dma':
                    gaps[g - 1] += st_; gaps[g].append(ins); g = min(15, g + 2)
            late = [i for i in vm if i.kind == 'vload' or (i.kind == 'salu' and 'm0' not in i.writes)]
            for k, m in enumerate(mf):
                a(m); s.extend(sort_gap(gaps[k]))
                if n >= o.ps_from and pfill:
                    for _ in range(2 if gaps[k] else 3):
                        if pfill: a(pfill.pop(0))
            s.extend(late)
        s.extend(pfill)
        a(raw("s_lshl_b32 s44, s24, 14", writes=[S(44)])); a(valu('v_add_u32', V(26), S(44), V(7)))
        for mt in range(4):
            for st_ in range(4): a(ds_write(4, V(26), gacc(mt, st_), off=(mt*4+st_)*1024))
        a(waitcnt(lgkm=0)); a(barrier())
        a(raw("s_lshl_b32 s44, s24, 10", writes=[S(44)])); a(valu('v_add_u32', V(27), S(44), V(7)))
        for mt in range(4):
            for w in range(4): a(ds_read_b128(V(192 + (mt*4+w)*4, 4), V(27), w*16384 + mt*4096))
        a(smov(S(44), -LOG2E)); a(valu("v_lshlrev_b32", V(18), 16, V(18)))
        a(raw("s_lshr_b32 s43, s47, 1", writes=[S_T])); a(raw("s_lshl_b32 s45, s46, 2", writes=[S(45)])); a(raw("s_add_u32 s43, s43, s45", writes=[S_T]))
        a(raw("s_lshl_b32 s43, s43, 2", writes=[S_T])); a(raw("s_and_b32 s45, s47, 1", writes=[S(45)])); a(raw("s_lshl_b32 s45, s45, 1", writes=[S(45)]))
        a(raw("s_add_u32 s43, s43, s45", writes=[S_T])); a(raw("s_lshl_b32 s43, s43, 2", writes=[S_T])); a(raw("s_add_u32 s43, s43, s24", writes=[S_T]))
        a(raw("s_lshl_b32 s43, s43, 10", writes=[S_T])); a(raw(f"s_add_u32 s43, s43, {WS_GATE}", writes=[S_T]))
        for mt in range(4):
            for r in range(4):
                P_ = [V(192 + (mt*4+w)*4 + r) for w in range(4)]; y = P_[0]; tt = V(2 + (r & 1))
                a(valu('v_add_f32', y, y, P_[1])); a(valu('v_add_f32', P_[2], P_[2], P_[3])); a(valu('v_add_f32', y, y, P_[2])); a(valu("v_add_f32", y, y, V(18)))
                a(valu('v_mul_f32', tt, S(44), y)); a(valu('v_exp_f32', tt, tt)); a(valu('v_add_f32', tt, 1.0, tt)); a(valu('v_rcp_f32', tt, tt)); a(valu('v_mul_f32', y, y, tt))
            q = V(40 + 4*(mt >> 1) + 2*(mt & 1), 2)
            a(valu('v_cvt_pk_bf16_f32', q[0], V(192 + mt*16), V(192 + mt*16 + 1))); a(valu('v_cvt_pk_bf16_f32', q[1], V(192 + mt*16 + 2), V(192 + mt*16 + 3)))
            if mt & 1:
                a(bstore(4, V(40 + 4*(mt >> 1), 4), V(7), SRD_W, S_T, mods="sc1")); a(sop('s_add_u32', S_T, S_T, 4096))
    if o.fuse_comb:
        SRD_X2 = S(28, 4); SRD_O = S(48, 4)
        s.extend(make_srd(SRD_X2, S(96, 2), 2 << 20)); s.extend(make_srd(SRD_O, S(100, 2) if o.g2_tail else S(98, 2), 2 << 20))
        a(valu('v_and_b32', V(1), 15, l)); a(raw("s_lshl_b32 s44, s26, 6", writes=[S(44)])); a(raw("s_lshl_b32 s45, s24, 4", writes=[S(45)]))
        a(raw("s_add_u32 s44, s44, s45", writes=[S(44)])); a(valu('v_add_u32', V(1), S(44), V(1))); a(valu('v_lshlrev_b32', V(1), 10, V(1)))
        a(valu('v_lshrrev_b32', V(2), 4, l)); a(valu('v_lshl_add_u32', V(1), V(2), 3, V(1)))
        a(raw("s_lshl_b32 s44, s25, 7", writes=[S(44)])); a(valu('v_add_u32', V(22), S(44), V(1)))
        XR = V(32, 8)
        for j in range(2):
            for t in range(2): a(bload(2, XR[4*j+2*t:4*j+2*t+2], V(22), SRD_X2, 0, off=64*j + 32*t))
        a(waitcnt(vm=4, lgkm=0))
        a(barrier())
        if FT: flag_decide()
        if o.g2_tail: s.extend(arrive2(S_T64)); a(nop(1))
        if FT:
            a(raw("s_cmp_eq_u32 s24, 0")); a(raw("s_cbranch_scc0 L_k3_cpollok", 'branch'))
            a(sop('s_add_u32', S(44), S_QB, 32)); a(raw("s_lshl_b32 s44, s44, 8", writes=[S(44)])); a(raw(f"s_add_u32 s44, s44, {WS_CNT}", writes=[S(44)]))
            a(valu('v_mov_b32', V(6), 1)); a(valu('v_lshlrev_b32', V(5), 25, l)); a(valu('v_mov_b32', V(1), 0)); a(smov(S(45), 0))
            a(I(f"buffer_atomic_add v6, v5, {SRD_W}, s44 offen sc0 sc1", 'vload', reads=[V(6), V(5), SRD_W, S(44)], writes=[V(6)]))
            a(waitcnt(vm=0)); a(readfirstlane(S(43), V(6))); a(nop(3)); a(sop('s_add_u32', S(43), S(43), 1))
            a(label("L_k3_cpoll"))
            a(scmp('s_cmp_ge_u32', S(43), 16)); a(raw("s_cbranch_scc1 L_k3_cpollok", 'branch'))
            a(raw("s_sleep 1"))
            a(bload(1, V(6), V(1), SRD_W, S(44), mods="sc1")); a(waitcnt(vm=0))
            a(readfirstlane(S(43), V(6))); a(nop(3))
            a(sop('s_add_u32', S(45), S(45), 1)); a(scmp('s_cmp_lt_u32', S(45), 0x80000)); a(raw("s_cbranch_scc1 L_k3_cpoll", 'branch'))
            a(label("L_k3_cpollok"))
            a(barrier())
            s.extend(STP())
        else:
            s.extend(arrive2(S_QB))
            s.extend(STP())
            a(sop('s_add_u32', S(44), S_QB, 32)); a(raw("s_lshl_b32 s44, s44, 8", writes=[S(44)])); a(raw(f"s_add_u32 s44, s44, {WS_CNT}", writes=[S(44)]))
            a(valu('v_mov_b32', V(1), 0)); a(smov(S(45), 0))
            a(label("L_k3_cpoll"))
            a(bload(1, V(6), V(1), SRD_W, S(44), mods="sc1")); a(waitcnt(vm=0))
            a(readfirstlane(S(43), V(6))); a(nop(3))
            a(scmp('s_cmp_ge_u32', S(43), 16)); a(raw("s_cbranch_scc1 L_k3_cpollok", 'branch'))
            a(raw("s_sleep 2")); a(sop('s_add_u32', S(45), S(45), 1)); a(scmp('s_cmp_lt_u32', S(45), 0x80000)); a(raw("s_cbranch_scc1 L_k3_cpoll", 'branch'))
            a(label("L_k3_cpollok"))
        a(raw("s_lshl_b32 s42, s26, 2", writes=[S_SO])); a(raw("s_lshr_b32 s43, s25, 1", writes=[S_T])); a(raw("s_add_u32 s42, s42, s43", writes=[S_SO]))
        a(raw("s_lshl_b32 s42, s42, 2", writes=[S_SO])); a(raw("s_and_b32 s43, s25, 1", writes=[S_T])); a(raw("s_lshl_b32 s43, s43, 1", writes=[S_T]))
        a(raw("s_add_u32 s42, s42, s43", writes=[S_SO])); a(raw("s_lshl_b32 s42, s42, 2", writes=[S_SO])); a(raw("s_add_u32 s42, s42, s24", writes=[S_SO]))
        a(raw("s_lshl_b32 s42, s42, 10", writes=[S_SO]))
        a(raw(f"s_add_u32 s43, s42, {WS_GATE}", writes=[S_T])); a(raw(f"s_add_u32 s42, s42, {WS_PART}", writes=[S_SO]))
        PPj = lambda j, g: V(128 + (j*8 + g)*4, 4)
        GG = [V(192, 4), V(196, 4)]
        for j in range(2):
            a(bload(4, GG[j], V(7), SRD_W, S_T, mods="sc1")); a(sop('s_add_u32', S_T, S_T, 4096))
        for g in range(8):
            a(bload(4, PPj(0, g), V(7), SRD_W, S_SO, mods="sc1"))
            a(sop('s_add_u32', S(44), S_SO, 4096))
            a(bload(4, PPj(1, g), V(7), SRD_W, S(44), mods="sc1"))
            if g < 7: a(sop('s_add_u32', S_SO, S_SO, 32*64*1024))
        for j in range(2):
            R = [V(200 + 8*j + i) for i in range(8)]
            for k in range(8):
                q = k >> 1; hi = k & 1
                unp = lambda dst, src: valu('v_and_b32', dst, 0xffff0000, src) if hi else valu('v_lshlrev_b32', dst, 16, src)
                a(unp(R[k], PPj(j, 0)[q]))
                for g in range(1, 8):
                    tt = V(2 + (g & 1))
                    a(unp(tt, PPj(j, g)[q])); a(valu('v_add_f32', R[k], R[k], tt))
                a(unp(V(4), GG[j][q])); a(unp(V(5), XR[4*j+q]))
                a(valu('v_fma_f32', R[k], R[k], V(4), V(5)))
            OUTR = V(216 + 4*j, 4)
            for q in range(4): a(valu('v_cvt_pk_bf16_f32', OUTR[q], R[2*q], R[2*q+1]))
            a(bstore(2, OUTR[0:2], V(22), SRD_O, 0, off=64*j, mods=o.out_mods)); a(bstore(2, OUTR[2:4], V(22), SRD_O, 0, off=64*j + 32, mods=o.out_mods))
    if o.timing or not o.fuse_comb: a(waitcnt(vm=0))
    s.extend(STP())
    if getattr(o, 'dbgtime', False):
        a(raw('s_memrealtime s[92:93]', 'smem', writes=[S(92, 2)])); a(sload(S(90, 2), ARG_DBG)); a(waitcnt(lgkm=0))
        s.extend(make_srd(S(84, 4), S(90, 2), 256))
        a(raw("s_sub_u32 s92, s92, s94", writes=[S(92)]))
        a(raw("s_add_u32 s93, s2, 4", writes=[S(93)])); a(raw("s_lshl_b32 s93, s93, 2", writes=[S(93)]))
        a(raw("s_cmp_lt_u32 s2, 8")); a(raw("s_cselect_b32 s93, s93, 0x1000", writes=[S(93)]))
        a(raw("s_cmp_eq_u32 s24, 0")); a(raw("s_cselect_b32 s93, s93, 0x1000", writes=[S(93)]))
        a(valu('v_mov_b32', V(2), S(92))); a(valu('v_lshlrev_b32', V(3), 25, l)); a(nop(3))
        a(bstore(1, V(2), V(3), S(84, 4), S(93))); a(waitcnt(vm=0))
    if getattr(o, 'diag_period', None) is not None: STP.force(len(o.diag_marks))
    if getattr(o, 'polldiag', False): STP.n = 16
    s.extend(STP.flush_dbg(S_WAVE, o.dbgwg) if getattr(o, 'dbgwg', None) is not None else STP.flush(S_WAVE))
    epi = s
    s = []; a = s.append
    M = [V(72 + i) for i in range(4)]
    a(label("L_k3_slow"))
    at.nozero = True
    a(smov(S_SLOW, 1))
    for r in range(128): a(valu('v_mov_b32', V(128 + r), 0))
    for qt in range(4):
        for r in range(4): a(valu('v_mov_b32', LA[qt][r], 0))
        a(valu('v_mov_b32', M[qt], 0xff800000))
    a(smov(S_TILE, 0)); a(smov(S(45), 32))
    a(label("L_k3_slowloop"))
    a(barrier())
    s.extend(at.kv_dma(0))
    a(waitcnt(vm=0)); a(barrier())
    for kh in range(2):
        s.extend(at.k_reads(0, kh)); s.extend(at.v_reads(0, kh))
        for c in range(2):
            for q2 in range(2):
                for t in range(2):
                    for i in range(4): a(mfma16(Sx(c, t, q2), Kf(t*4+i), Q(i, 2*c+q2), 0 if i == 0 else Sx(c, t, q2)))
            for q2 in range(2):
                qt = 2*c + q2; s0, s1 = Sx(c, 0, q2), Sx(c, 1, q2); m = V(4); t_ = V(5)
                a(valu('v_max3_f32', m, s0[0], s0[1], s0[2])); a(valu('v_max3_f32', m, m, s0[3], s1[0]))
                a(valu('v_max3_f32', m, m, s1[1], s1[2])); a(valu('v_max3_f32', m, m, s1[3], M[qt]))
                a(valu('v_mov_b32', t_, m)); a(permlane16_swap(m, t_)); a(valu('v_max_f32', m, m, t_))
                a(valu('v_mov_b32', t_, m)); a(permlane32_swap(m, t_)); a(valu('v_max_f32', m, m, t_))
                a(valu('v_sub_f32', t_, M[qt], m)); a(valu('v_exp_f32', t_, t_)); a(valu('v_mov_b32', M[qt], m))
                for dt in range(8):
                    for r in range(4): a(valu('v_mul_f32', O(dt, qt)[r], O(dt, qt)[r], t_))
                for r in range(4): a(valu('v_mul_f32', LA[qt][r], LA[qt][r], t_))
                for t in range(2):
                    sx = Sx(c, t, q2)
                    for r in range(4):
                        a(valu('v_sub_f32', sx[r], sx[r], m)); a(valu('v_exp_f32', sx[r], sx[r]))
                    a(valu('v_cvt_pk_bf16_f32', Pb[c][4*q2 + 2*t], sx[0], sx[1])); a(valu('v_cvt_pk_bf16_f32', Pb[c][4*q2 + 2*t + 1], sx[2], sx[3]))
            for m_ in at.pv_slot(0, kh, c):
                m_.rt = {}; a(m_)
    a(waitcnt(lgkm=0))
    a(sop('s_sub_u32', S(45), S(45), 1)); a(scmp('s_cmp_lg_u32', S(45), 0)); a(raw("s_cbranch_scc1 L_k3_slowloop", 'branch'))
    a(nop(15)); a(barrier())
    s.extend(wo_first())
    a(raw("s_branch L_k3_norm", 'branch'))
    for i_ in s:
        if hasattr(i_, 'rt'): i_.rt = {}
    slow, _, _ = auto_waits(s)
    slow = fix_hazards(slow, "slow")
    full = []
    for (name, seq) in seqs:
        if name == 32: full += pre_epi
        full += seq
    full += epi
    full, _, _ = auto_waits(full)
    errs = validate_tags(full)
    for e in errs[:10]: print("DATAFLOW", e, file=sys.stderr)
    parts = {}; cur = 'pro'; parts[cur] = []
    for ins in full:
        if ins.kind == 'label' and ins.text.startswith('@@'):
            cur = ins.text[2:-1]; parts[cur] = []
        else: parts[cur].append(ins)
    P = lambda j: parts[f'P{j}']
    txt = lambda j: [i.text for i in P(j)]
    def loop(first_j, n_iter, lbl, cnt):
        body = []
        for k in range(3):
            base = list(P(first_j + k))
            for it in range(1, n_iter):
                other = P(first_j + 3*it + k)
                assert len(other) == len(base), f"loop {lbl}: period {first_j+k} vs {first_j+3*it+k} length {len(base)} {len(other)}"
                for idx, (x, y) in enumerate(zip(base, other)):
                    if x.text != y.text:
                        assert x.kind == 'wait' and y.kind == 'wait' and (x.vm is None) == (y.vm is None) and (x.lgkm is None) == (y.lgkm is None), (lbl, x.text, y.text)
                        base[idx] = waitcnt(vm=None if x.vm is None else min(x.vm, y.vm), lgkm=None if x.lgkm is None else min(x.lgkm, y.lgkm))
            body += [comment(f"period {first_j+k} (+3n)")] + base
        body += [sop('s_sub_u32', cnt, cnt, 1), scmp('s_cmp_lg_u32', cnt, 0), raw(f"s_cbranch_scc1 {lbl}", 'branch')]
        errs = check_hazards(body, loop=True, name=lbl)
        for e in errs[:20]: print("HAZARD", e, file=sys.stderr)
        return [smov(cnt, n_iter), label(lbl)] + body
    out = fix_hazards(parts['pro'] + [comment("period 0")] + P(0), "pro")
    S_CNT = S(4)
    if getattr(o, 'noloop', False):
        allp = []
        for j in range(1, 33): allp += [comment(f"period {j}")] + P(j)
        out += fix_hazards(allp + parts['EPI'], "all")
        out += [raw("s_branch L_k3_end", 'branch')] + slow
        out.append(label("L_k3_end"))
        return emit(out)
    if o.side and o.g2_tail:
        out += loop(1, 5, "L_k3_loopA", S_CNT)
        mid = []
        for j in range(16, 19): mid += [comment(f"period {j}")] + P(j)
        out += fix_hazards(mid, "mid")
        out += loop(19, 3, "L_k3_loopB", S_CNT)
        tail = []
        for j in range(28, 33): tail += [comment(f"period {j}")] + P(j)
    elif o.side:
        out += loop(1, 5, "L_k3_loopA", S_CNT)
        mid = []
        for j in range(16, 22): mid += [comment(f"period {j}")] + P(j)
        out += fix_hazards(P(15)[-30:] + mid, "mid")[len(P(15)[-30:]):] if False else fix_hazards(mid, "mid")
        out += loop(22, 2, "L_k3_loopB", S_CNT)
        tail = []
        for j in range(28, 33): tail += [comment(f"period {j}")] + P(j)
    else:
        out += loop(1, 9, "L_k3_loopA", S_CNT)
        tail = []
        for j in range(28, 33): tail += [comment(f"period {j}")] + P(j)
    tm = []
    out += fix_hazards(tail + parts['EPI'], "tail")
    out += [raw("s_branch L_k3_end", 'branch')] + slow
    out.append(label("L_k3_end"))
    lin = []; i = 0
    idx = {x.text[:-1]: k for k, x in enumerate(out) if x.kind == 'label' and x.text.endswith(':')}
    k = 0
    while k < len(out):
        x = out[k]
        if x.kind == 'branch' and x.text.startswith('s_cbranch_scc1 L_k3_loop'):
            tgt = idx[x.text.split()[1]]
            lin += out[tgt:k + 1]
        lin.append(x)
        if x.kind == 'branch' and x.text == 's_branch L_k3_end': break
        k += 1
    errs = check_hazards(lin, loop=False, name="linear")
    for e in errs[:20]: print("HAZARD(seam)", e, file=sys.stderr)
    if getattr(o, 'verbose', False):
        for j in (2, 16, 17, 18, 21, 23, 29, 30):
            tot = 0; gap = None
            for i in P(j):
                if i.kind == 'mfma':
                    if gap is not None: tot += max(16, gap)
                    gap = 8
                elif gap is not None: gap += cost(i)
            print(f"; period {j}: est {tot + max(16, gap or 0)} cycles, {len(P(j))} instrs", file=sys.stderr)
    return emit(out)
if __name__ == "__main__":
    o = Opt(); o.verbose = True
    for kv in sys.argv[1:]:
        k, v = kv.split("="); setattr(o, k, eval(v))
    t = build(o); print(len(t.splitlines()))
```

```python
from k_common import *
from k3_attn import (NST, KBASE, VBASE, XBASE, SRD_K, SRD_V, SRD_W, SRD_WQ, SRD_WO, S_TILE, S_WOFF, S_WAVE, S_G, S_QB, QSCALE,
                     O, Q, Kf, Vf, Sb, Sx, NM, LA, Pb, ONES, KA, VA, DK, DV, addr_tr256, dma_off_256, proj_gemm)
from k2_gemm1 import tr_addr_128, dma_off_128, gelu, LOG2E
WS_GATE = 6 << 20
HMOD = 'sc1'

class Opt:
    barrier = True
    minfill = 8; maxfill = 8; early = 1.5
    sm_rel = 4; p_lead = 2; k_span = 1.0; k_lead = 6; bar_lead = 5
    timing = False; prefetch = True; side = True; fuse_ln = True; fuse_comb = True
    stamp_after = (0, 16, 17, 21, 28, 30, 32)
    def __init__(self, **kw): self.__dict__.update(kw)

SRD_W1 = S(48, 4); SRD_W2 = S(52, 4); SRD_DBG = S(56, 4); SRD_US = S(60, 4)
S_T64 = S(46); S_DT = S(47); S_SR = S(40); S_SKIP = S(37); S_N = S(38); S_SA = S(39); S_SB = S(36); S_XB = S(27); S_KVSKIP = S(23); S_TMP = S(43)
TA = [V(14 + i) for i in range(4)]; DA = [V(18 + i) for i in range(4)]; DB = [V(22 + i) for i in range(4)]
def sacc(i, j): return A(128 + (i*4+j)*4, 4)
def sfa(h, t): return A(192 + 16*h + 4*t, 4)
def sfb(h, t): return A(224 + 16*h + 4*t, 4) if h else A(208 + 4*t, 4)
def g2a(h, t): return A(192 + 16*h + 4*t, 4)
def g2b(h, t): return A(224 + 16*h + 4*t, 4)

class Attn:
    def __init__(self, opt): self.o = opt
    def qk_slot(self, j, kh, c):
        out = []
        for q2 in range(2):
            for t in range(2):
                for i in range(4):
                    qt = 2*c + q2; sx = Sx(c, t, q2)
                    m = mfma16(sx, Kf(t*4+i), Q(i, qt), NM[qt] if i == 0 else sx)
                    tag(m, wt=('S', j, kh, c), rt=[(Kf(t*4+i), ('K', j, kh))] + ([(sx, ('S', j, kh, c))] if i else []))
                    out.append(m)
        return out
    def pv_slot(self, j, kh, c):
        out = []
        z = (j == 0 and kh == 0 and not getattr(self, 'nozero', False))
        for q2 in range(2):
            p = Pb[c][4*q2:4*q2+4]; qt = 2*c + q2
            for dt in range(8):
                m = mfma16(O(dt, qt), Vf(dt), p, 0 if z else O(dt, qt))
                tag(m, rt=[(Vf(dt), ('V', j, kh)), (p, ('P', j, kh, c))]); out.append(m)
            m = mfma16(LA[qt], ONES, p, 0 if z else LA[qt]); tag(m, rt=[(p, ('P', j, kh, c))]); out.append(m)
        return out
    def sm_list(self, j, kh, c):
        regs = []
        for q2 in range(2):
            for t in range(2):
                for r in range(4): regs.append((Sx(c, t, q2)[r], Pb[c][4*q2 + 2*t + (r >> 1)]))
        ops = []
        for n, (s, p) in enumerate(regs):
            ops.append((n, tag(valu('v_exp_f32', s, s), wt=('E', j, kh, c), rt=[(s, ('S', j, kh, c))])))
            if n & 1:
                sp = regs[n-1][0]
                ops.append((n + 1.04, tag(valu('v_cvt_pk_bf16_f32', p, sp, s), wt=('P', j, kh, c), rt=[(s, ('E', j, kh, c)), (sp, ('E', j, kh, c))])))
        return [i for (t, i) in sorted(ops, key=lambda x: x[0])]
    def k_reads(self, j, kh):
        st = j % NST
        return [tag(ds_read_b128(Kf(n), KA[n & 3], KBASE + st*16384 + kh*8192 + (n >> 2)*4096), wt=('K', j, kh)) for n in range(8)]
    def v_reads(self, j, kh):
        st = j % NST
        return [tag(ds_read_tr(Vf(dt)[2*u:2*u+2], VA[dt], st*16384 + kh*8192 + u*4096), wt=('V', j, kh)) for dt in range(8) for u in range(2)]
    def kv_dma(self, st, skip=False):
        ops = []
        for n in range(8):
            if n in (0, 4):
                base = (KBASE if n == 0 else VBASE) + st*16384
                ops.append(sop('s_add_u32', 'm0', S_WOFF, base))
                if skip: ops.append(sop('s_max_u32', 'm0', 'm0', S_KVSKIP))
                ops.append(nop(0))
            if n < 4: ops.append(dma(DK[n], SRD_K, S_TILE, off=n*1024))
            else: ops.append(dma(DV[n & 1], SRD_V, S_TILE, off=(n-4)*1024))
        ops.append(sop('s_add_u32', S_TILE, S_TILE, 16384))
        return ops

    def period(self, j, first=False, last_drain=False, kv=True, kvskip=False, side_groups=(), streams=(), pre=(), post=(), vm_end=None, side_dma_list=None):
        o = self.o
        hp, hc = not first, not last_drain
        base = [self.pv_slot(j-1, 1, 0) if hp else None, self.qk_slot(j, 0, 0) if hc else None,
                self.pv_slot(j-1, 1, 1) if hp else None, self.qk_slot(j, 0, 1) if hc else None,
                self.pv_slot(j, 0, 0) if hc else None, self.qk_slot(j, 1, 0) if hc else None,
                self.pv_slot(j, 0, 1) if hc else None, self.qk_slot(j, 1, 1) if hc else None]
        if first and o.reuse0:
            base[1] = None; base[3] = None
        lens = [18, 16]*4
        mf = []; starts = []; ends = []; side_pos = []
        for s in range(8):
            starts.append(len(mf))
            mf += base[s] if base[s] is not None else [None]*lens[s]
            ends.append(len(mf))
            for (aft, g) in side_groups:
                if aft == s:
                    side_pos.append(len(mf)); mf += g
        T = len(mf)
        self.T = T
        ops = []
        CUT0 = o.cut0; CUT1 = o.cut1
        def sm_stream(jj, kh, c, t_lo, t_hi, tpv, i0=0, i1=None, release=None):
            raw_ops = self.sm_list(jj, kh, c); n = len(raw_ops); i1 = n if i1 is None else i1
            pv = self.pv_slot(jj, kh, c); res = []
            for idx in range(i0, i1):
                ins = raw_ops[idx]
                t = t_lo + (t_hi - t_lo) * (idx - i0) / max(1, (i1 - i0)); dl = 1e9
                if ins.op == 'v_cvt_pk_bf16_f32' and tpv is not None:
                    preg = list(ins.writes)[0]
                    dl = tpv + min(q for q, m in enumerate(pv) if preg in m.reads) - o.p_lead
                res.append([t, dl, ins])
            for idx in range(len(res) - 2, -1, -1): res[idx][1] = min(res[idx][1], res[idx+1][1])
            return [Op(ins, t, release=(t_lo if release is None else release), deadline=min(dl, T - 1), stream='sm') for (t, dl, ins) in res]
        rel = o.sm_rel
        if hp:
            ops += sm_stream(j-1, 1, 0, 0, rel, starts[0], i0=CUT0, release=0)
            ops += sm_stream(j-1, 1, 1, rel, ends[1] + rel, starts[2], i0=CUT1)
        if hc:
            ops += sm_stream(j, 0, 0, ends[1] + rel, ends[3] + rel, starts[4])
            ops += sm_stream(j, 0, 1, ends[3] + rel, ends[5] + rel, starts[6])
            ops += sm_stream(j, 1, 0, ends[5] + rel, T, None, i1=CUT0)
            if CUT1: ops += sm_stream(j, 1, 1, T - 1, T, None, i1=CUT1)
        if hc:
            for (kh, ks_slot, vs_slot) in ((0, 0, 2), (1, 4, 6)):
                qk = self.qk_slot(j, kh, 0)
                for n, ins in enumerate(self.k_reads(j, kh) if not (first and o.reuse0 and kh == 0) else []):
                    fu = min(q for q, m in enumerate(qk) if ins.writes & m.reads)
                    t = starts[ks_slot] + (o.k0_off if ks_slot == 0 else 0) + n * (18 - (o.k0_off if ks_slot == 0 else 0)) * o.k_span / 8
                    rl = (ends[ks_slot-1] if ks_slot else -1)
                    ops.append(Op(ins, max(t, rl), release=rl - 1 if ks_slot else -1, deadline=starts[ks_slot+1] + fu - o.k_lead, stream='k'))
                pv = self.pv_slot(j, kh, 0); pvo = self.pv_slot(j, kh, 1); info = []
                for ins in self.v_reads(j, kh):
                    lu = max(q for q, m in enumerate(pvo) if ins.writes & m.reads)
                    fu = min(q for q, m in enumerate(pv) if ins.writes & m.reads)
                    nxt = starts[vs_slot+2] if vs_slot + 2 < 8 else T + 18
                    dl = nxt + fu - o.k_lead
                    if kh == 1: dl = min(dl, T - 1 - o.bar_lead)
                    info.append((starts[vs_slot] + lu + 1, dl, ins))
                info.sort(key=lambda x: x[0])
                w0 = info[0][0]; w1 = min(x[1] for x in info)
                for n, (r, dl, ins) in enumerate(info):
                    ops.append(Op(ins, max(r, w0 + (w1 - w0) * n / len(info)), release=r, deadline=dl, stream='v'))
        dstream = []
        if kv and hc:
            lst = dma_ops_with_setup(self.kv_dma((j + 2) % NST, skip=kvskip))
            pos = o.kv_pos if not side_dma_list else o.kv_pos2; n = 0
            for (ins, st) in lst:
                if ins.kind == 'dma':
                    t = pos[n]; n += 1
                else: t = pos[min(n, 7)] if n < 8 else pos[7]
                dstream.append((t, 0.0, ins, st))
        if side_dma_list:
            (lst, f0, f1, fr) = side_dma_list
            lst = dma_ops_with_setup(lst)
            nd = sum(1 for (i, _) in lst if i.kind == 'dma'); n = 0
            for (ins, st) in lst:
                dstream.append((f0 + (f1 - f0) * n / max(1, nd), fr, ins, st))
                if ins.kind == 'dma': n += 1
        for (t, fr, ins, st) in dstream:
            op = Op(ins, t * T, release=fr * T, stream='dma'); op.setup = st
            ops.append(op)
        for (name, lst) in streams:
            for (ft, fr, ins) in lst:
                ops.append(Op(ins, ft * T, release=fr * T, stream=name))
        seq, fills = list_schedule2(mf, ops, o.minfill, o.maxfill, ahead=o.early)
        self.fills = fills
        seq = list(pre) + expand(seq) + list(post)
        if getattr(o, 'diag_period', None) == j:
            marks = sorted(set(starts + side_pos + [e for e in ends] + [T - 1]))
            marks = [m for m in marks if m < T]
            new = []; k = 0
            for ins in seq:
                if ins.kind == 'mfma':
                    kk = mf.index(ins)
                    if kk in marks:
                        r = S(o.diag_base + 2*len(o.diag_marks), 2); o.diag_marks.append(kk)
                        new.append(raw(f"s_memtime {r}", 'salu', writes=[r]))
                new.append(ins)
            seq = new
        if hc:
            nvm = sum(1 for i in seq if i.kind in ('dma', 'vload', 'vstore', 'vatomic')) if vm_end is None else vm_end
            seq.append(waitcnt(vm=nvm, lgkm=0))
            if o.barrier: seq.append(barrier())
        return seq
Opt.g1_rd = (0.03, 0.3); Opt.g1_dm = (0.62, 0.95)
Opt.pf_w1_at = 8; Opt.pf_w1 = False; Opt.pf_w2 = True
Opt.prescale = False; Opt.pf_kv = True; Opt.peel22 = False; Opt.mfma_sum = True; Opt.reuse0 = True; Opt.tog_early = True; Opt.k0_off = 0; Opt.tlb_early = True; Opt.tlb_warm = True; Opt.defer_addr = False; Opt.fast_tail = True; Opt.out_mods = ''; Opt.wq_early = False; Opt.arrive_at = 6; Opt.hpoll_at = 12; Opt.ln2_rate = 2; Opt.late2 = False; Opt.ps_from = 10; Opt.g2_tail = False; Opt.wot = False; Opt.wo_early = True; Opt.fm64 = False; Opt.g1_pos = 1; Opt.moff = 100
Opt.cut0 = 21; Opt.cut1 = 0
Opt.kv_pos = [0.147, 0.184, 0.22, 0.25, 0.647, 0.684, 0.72, 0.75]
Opt.kv_pos2 = [0.08, 0.12, 0.16, 0.20, 0.26, 0.30, 0.34, 0.38]

def side_dma(srdA, soA, strideA, srdB, soB, strideB, offsA, offsB, stage_tag, skip, modsB=""):
    o = []
    src = S_SR
    if skip:
        o.append(sop('s_max_u32', S(5), S_SR, S_SKIP)); src = S(5)
    o.append(smov('m0', src)); o.append(nop(0))
    for i in range(4): o.append(lds_dep(dma(offsA[i], srdA, soA, off=i*1024), need={f'sR{stage_tag}'}, mark={f'sL{stage_tag}'}))
    o.append(sop('s_add_u32', soA, soA, strideA))
    o.append(sop('s_add_u32', 'm0', src, 4096)); o.append(nop(0))
    for i in range(4): o.append(lds_dep(dma(offsB[i], srdB, soB, off=i*1024, mods=modsB), need={f'sR{stage_tag}'}, mark={f'sL{stage_tag}'}))
    o.append(sop('s_add_u32', soB, soB, strideB))
    return o
def spread(lst, f0, f1, rel=None):
    n = sum(1 for i in lst if cost(i) > 0) or 1
    out = []; k = 0
    for ins in lst:
        t = f0 + (f1 - f0) * k / n
        out.append((t, f0 if rel is None else rel, ins))
        if cost(ins) > 0: k += 1
    return out
def toggle_side():
    return [valu('v_xor_b32', TA[t], 8192, TA[t]) for t in range(4)] + [sop('s_xor_b32', S_SR, S_SR, 8192)]

def g1_parts(n, in_loop):
    st = n & 1
    rd = []
    for t in range(4):
        for u in range(2): rd.append(lds_dep(ds_read_tr(sfa(0, t)[2*u:2*u+2], TA[t], u*2048), need={f'sL{st}'}, mark={f'sR{st}'}))
    for t in range(4):
        for u in range(2): rd.append(lds_dep(ds_read_tr(sfb(0, t)[2*u:2*u+2], TA[t], 4096 + u*2048), need={f'sL{st}'}, mark={f'sR{st}'}))
    for r_ in rd: tag(r_, wt=('G1', n))
    mf = [tag(mfma16(sacc(ft, dt), sfa(0, ft), sfb(0, dt), sacc(ft, dt) if n else 0), rt=[(sfa(0, ft), ('G1', n)), (sfb(0, dt), ('G1', n))]) for ft in range(4) for dt in range(4)]
    dm = []
    if in_loop:
        dm = [scmp('s_cmp_gt_u32', S_N, 13), I(f"s_cselect_b32 {S_SKIP}, 0x30000, 0", 'salu', reads=['scc'], writes=[S_SKIP]), sop('s_add_u32', S_N, S_N, 1)]
        dm += side_dma(SRD_W1, S_SA, 32*3584, SRD_W, S_SB, 32*1024, DA, DB, st, True, modsB=HMOD)
    elif n + 2 <= 15:
        dm = [sop('s_add_u32', S_N, S_N, 1)] + side_dma(SRD_W1, S_SA, 32*3584, SRD_W, S_SB, 32*1024, DA, DB, st, False, modsB=HMOD)
    return rd, mf, dm
def g2_parts(i):
    st = i & 1
    rd = []
    for h in range(2):
        for t in range(4):
            for u in range(2): rd.append(lds_dep(ds_read_tr(g2b(h, t)[2*u:2*u+2], TA[t], h*4096 + u*2048), need={f'sL{st}'}, mark={f'sR{st}'}))
    for r_ in rd: tag(r_, wt=('G2b', i))
    mfs = [[tag(mfma16(sacc(mt, s_), g2a(h, mt), g2b(h, s_), sacc(mt, s_) if (i or h) else 0), rt=[(g2b(h, s_), ('G2b', i)), (g2a(h, mt), ('G2a', i))]) for mt in range(4) for s_ in range(4)] for h in range(2)]
    return rd, mfs
def g2_dma(st, skip):
    return side_dma(SRD_W2, S_SA, 32*4096, SRD_W2, S_SA, 32*4096, DA, DA, st, skip)
def g2_uloads(i=None):
    o = []
    for h in range(2):
        for t in range(4): o.append(tag(bload(4, g2a(h, t), DB[t], SRD_W, S_SB, mods="sc1"), wt=('G2a', i)))
        o.append(sop('s_add_u32', S_SB, S_SB, 1024))
    return o

def proj_gemm2(a, s, TA_, DW, srd, SOFF, stride, S_RING, bread, uoff, name, last_pre=None, last_fill=None, dma_gap0=3, fb_base=0, hooks=None, fill=None, stage_map=None, extra_vm=None, fill_rate=2):
    NS = 3; NK = 16
    def fa(p, mt): return A(64 + 32*p + 4*mt, 4)
    def fb(p, qt): return A(fb_base + 16*p + 4*qt, 4)
    if stage_map is None: stage_map = [(TA_, st*8192, S_RING, st*8192) for st in range(NS)]
    def dma_step(n):
        o = []; st = n % NS
        (_, _, sb, madd) = stage_map[st]
        for h in range(2):
            o.append(sop('s_add_u32', 'm0', sb, madd + h*4096))
            for i in range(4):
                o.append(lds_dep(dma(DW[i], srd, SOFF, off=i*1024), need={f'{name}R{st}'}, mark={f'{name}L{st}'}))
            o.append(sop('s_add_u32', SOFF, SOFF, 16*stride))
        return o
    def reads(n):
        o = []; st = n % NS; p = n & 1
        (ta, imm, _, _) = stage_map[st]
        for qt in range(4): o.append(bread(n, qt, fb(p, qt)))
        for mt in range(8):
            for u in range(2):
                o.append(lds_dep(ds_read_tr(fa(p, mt)[2*u:2*u+2], ta[mt], imm + u*uoff), need={f'{name}L{st}'}, mark={f'{name}R{st}'}))
        return o
    s.extend(reads(0))
    for n in range(NK):
        rd = reads(n + 1) if n + 1 < NK else []
        dm = dma_step(n + 3) if n + 3 < NK else []
        if n == NK - 1:
            if last_pre: s.extend(last_pre)
            dm = list(last_fill or [])
        if extra_vm and n in extra_vm: dm = dm + extra_vm[n]
        if hooks and n in hooks: s.extend(hooks[n])
        mf = [mfma16(O(mt, qt), fa(n & 1, mt), fb(n & 1, qt), O(mt, qt) if n else 0) for mt in range(8) for qt in range(4)]
        gaps = [[] for _ in range(32)]
        g = dma_gap0
        for (ins, st_) in dma_ops_with_setup(dm):
            if ins.kind in ('dma', 'vload'):
                gaps[g - 1] += st_; gaps[g].append(ins); g = min(31, g + 2) if g + 2 <= 31 else 31
            else: gaps[min(31, g - 1)].append(ins) if g > dma_gap0 else gaps[0].append(ins)
        ev = [k for k in range(32) if not any(i.kind in ('dma', 'vload') for i in gaps[k])]
        for k, ins in enumerate(rd): gaps[ev[min(len(ev) - 1, k // 2)]].append(ins)
        for k, m in enumerate(mf):
            a(m); s.extend(sort_gap(gaps[k]))
            if fill:
                take = 0
                lim = fill_rate if not any(i.kind in ('dma', 'vload') for i in gaps[k]) else 0
                while fill and take < lim:
                    ins = fill.pop(0); a(ins)
                    if cost(ins) > 0: take += 1
    assert not fill

def proj_gemm3(a, s, srd, SOFF, VL, bread, abase, bbase, mid_fill=None, mods="sc1"):
    NK = 16; NT = 2*NK
    def fa(t, m): return A(abase + 16*(t % P3_SETS) + 4*m, 4)
    def fb(p, qt): return A(bbase + 16*p + 4*qt, 4)
    rdB = lambda t: [bread(t % NK, qt, fb(t & 1, qt)) for qt in range(4)]
    s.extend(rdB(0))
    fill = list(mid_fill or [])
    for t in range(NT):
        h, n = t // NK, t % NK
        rd = rdB(t + 1) if t + 1 < NT else []
        ld = proj3_loads(srd, SOFF, VL, t + P3_DEPTH, abase, mods) if t + P3_DEPTH < NT else []
        mf = [mfma16(O(4*h + m, qt), fa(t, m), fb(t & 1, qt), O(4*h + m, qt) if n else 0) for m in range(4) for qt in range(4)]
        gaps = [[] for _ in range(16)]
        g = 3
        for ins in ld:
            if ins.kind == 'vload':
                gaps[min(15, g)].append(ins); g += 3
            else: gaps[min(15, max(0, g - 1))].append(ins)
        for k, ins in enumerate(rd): gaps[1 + 3*k].append(ins)
        for k, m in enumerate(mf):
            a(m); s.extend(sort_gap(gaps[k]))
            if t >= NT - P3_DEPTH and fill:
                for _ in range(1 if gaps[k] else 2):
                    if fill: a(fill.pop(0))
                while fill and cost(fill[0]) == 0: a(fill.pop(0))
    s.extend(fill)
P3_SETS = 8; P3_DEPTH = 7
def proj3_loads(srd, SOFF, VL, t, abase, mods="sc1"):
    o = []
    for m in range(4): o.append(bload(4, A(abase + 16*(t % P3_SETS) + 4*m, 4), VL, srd, SOFF, off=m*1024, mods=mods))
    o.append(sop('s_add_u32', SOFF, SOFF, 32768) if (t % 16) != 15 else sop('s_sub_u32', SOFF, SOFF, 15*32768 - 4096))
    return o

def build(opt=None):
    o = opt or Opt()
    at = Attn(o)
    STP = Stamps(o.timing, 3); STP.cyc = getattr(o, 'cyc', False)
    s = []; a = s.append
    l = V(0)
    s.extend(STP())
    if getattr(o, 'dbgtime', False): a(raw('s_memrealtime s[94:95]', 'smem', writes=[S(94, 2)]))
    a(sload(S(4, 2), ARG_K)); a(sload(S(6, 2), ARG_V)); a(sload(S(22, 2), ARG_WS))
    a(sload(S(36, 2), ARG_WQ)); a(sload(S(56, 2), ARG_WO))
    a(sload(S(62, 2), ARG_W1)); a(sload(S(60, 2), ARG_W2)); a(sload(S(58, 2), ARG_DBG))
    if o.fuse_ln: a(sload(S(100, 2), ARG_X))
    a(raw("s_cmp_ge_u32 s2, 256")); a(raw("s_cbranch_scc1 L_k3_end", 'branch'))
    a(valu('v_lshrrev_b32', V(1), 6, V(0)))
    a(readfirstlane(S_WAVE, V(1)))
    a(valu('v_and_b32', l, 63, l))
    a(waitcnt(lgkm=0))
    a(raw("s_and_b32 s25, s2, 7", writes=[S_G])); a(raw("s_lshr_b32 s26, s2, 3", writes=[S_QB]))
    S_RING = S(41); S_SO = S(42); S_T = S(43)
    SRD_X = S(96, 4)
    XP = V(48, 64)
    if o.fuse_ln:
        s.extend(make_srd(SRD_X, S(100, 2), 2 << 20))
        a(valu('v_and_b32', V(1), 15, l)); a(valu('v_lshlrev_b32', V(1), 10, V(1)))
        a(valu('v_lshrrev_b32', V(2), 4, l)); a(valu('v_lshl_add_u32', V(1), V(2), 4, V(1)))
        a(raw("s_lshl_b32 s42, s26, 6", writes=[S_SO])); a(raw("s_lshl_b32 s43, s24, 4", writes=[S_T]))
        a(raw("s_add_u32 s42, s42, s43", writes=[S_SO])); a(raw("s_lshl_b32 s42, s42, 10", writes=[S_SO]))
        if getattr(o, 'fine2', False): s.extend(STP())
        for i in range(16): a(bload(4, XP[4*i:4*i+4], V(1), SRD_X, S_SO, off=64*i))
        if getattr(o, 'fine2', False): s.extend(STP())
    s.extend(make_srd(SRD_WQ, S(36, 2), 512*4096*2))
    a(valu('v_lshlrev_b32', V(7), 4, l))
    if o.prefetch:
        a(raw("s_lshl_b32 s42, s26, 4", writes=[S_SO])); a(raw("s_lshl_b32 s43, s24, 2", writes=[S_T]))
        a(raw("s_add_u32 s42, s42, s43", writes=[S_SO])); a(raw("s_lshl_b32 s42, s42, 13", writes=[S_SO]))
        a(raw("s_lshl_b32 s43, s25, 10", writes=[S_T])); a(raw("s_add_u32 s42, s42, s43", writes=[S_SO]))
        for n in range(4):
            a(bload(4, A(192 + 4*n, 4), V(7), SRD_WQ, S_SO)); a(sop('s_add_u32', S_SO, S_SO, 8192))
    a(raw("s_lshl_b32 s27, s25, 19", writes=[S(27)]))
    a(raw("s_sub_u32 s40, 0x400000, s27", writes=[S(40)]))
    s.extend(make_srd(SRD_K, S(4, 2), S(40), add=S(27))); s.extend(make_srd(SRD_V, S(6, 2), S(40), add=S(27)))
    s.extend(make_srd(SRD_W, S(22, 2), WS_END))
    s.extend(make_srd(SRD_WO, S(56, 2), 4096*512*2))
    a(raw("s_lshr_b32 s46, s26, 3", writes=[S_T64])); a(raw("s_lshl_b32 s46, s46, 3", writes=[S_T64])); a(raw("s_add_u32 s46, s46, s25", writes=[S_T64]))
    a(raw("s_and_b32 s47, s26, 7", writes=[S_DT]))
    a(raw("s_cmp_lt_u32 s46, 28"))
    a(raw(f"s_cselect_b32 s44, {2048*1792*2}, 0", writes=[S(44)]))
    a(raw(f"s_cselect_b32 s45, {WS_END}, 0", writes=[S(45)]))
    s.extend(make_srd(SRD_W1, S(62, 2), S(44)))
    s.extend(make_srd(SRD_W2, S(60, 2), 1792*2048*2))
    s.extend(make_srd(SRD_DBG, S(58, 2), 256))
    s.extend(make_srd(SRD_US, S(22, 2), S(45)))
    if o.tlb_early:
        a(valu('v_lshlrev_b32', V(2), 25, l)); a(raw("s_lshl_b32 s44, s24, 9", writes=[S(44)])); a(raw("s_mul_i32 s44, s44, 3584", writes=[S(44)]))
        a(bload(1, A(211), V(2), SRD_W1, S(44)))
        a(bload(1, A(212), V(2), SRD_WO, S(27)))
    if o.pf_kv:
        a(valu('v_and_b32', V(2), 15, l)); a(raw("s_lshl_b32 s44, s26, 4", writes=[S(44)])); a(valu('v_add_u32', V(2), S(44), V(2))); a(valu('v_lshlrev_b32', V(2), 7, V(2)))
        a(I("v_cmp_gt_u32 vcc, 16, v0", 'valu', reads=[V(0)], writes=['vcc'])); a(nop(1))
        a(I(f"v_cndmask_b32 v2, -1, v2, vcc", 'valu', reads=[V(2), 'vcc'], writes=[V(2)]))
        a(bload(1, A(209), V(2), SRD_K, 0)); a(bload(1, A(210), V(2), SRD_V, 0))
    a(raw("s_lshl_b32 s21, s24, 12", writes=[S_WOFF]))
    a(raw("s_mul_i32 s41, s24, 24576", writes=[S_RING]))
    for r in range(4): a(valu('v_mov_b32', ONES[r], 0x3F803F80))
    if not o.fuse_ln:
        a(raw("s_lshl_b32 s42, s26, 6", writes=[S_SO])); a(raw("s_lshl_b32 s43, s24, 4", writes=[S_T]))
        a(raw("s_add_u32 s42, s42, s43", writes=[S_SO])); a(raw("s_lshl_b32 s42, s42, 10", writes=[S_SO]))
        a(raw("s_lshl_b32 s43, s24, 14", writes=[S_T])); a(raw(f"s_add_u32 s43, s43, {XBASE}", writes=[S_T]))
        for n in range(16):
            if n % 4 == 0: a(smov('m0', S_T))
            a(valu('v_xor_b32', V(14 + (n & 3)), n << 4, V(7)))
            a(lds_dep(dma(V(14 + (n & 3)), SRD_W, S_SO, off=(n & 3)*1024), mark={'XN'}))
            if n % 4 == 3:
                a(sop('s_add_u32', S_SO, S_SO, 4096)); a(sop('s_add_u32', S_T, S_T, 4096))
    PTA = [V(32 + i) for i in range(8)]; XA = [V(40 + i) for i in range(4)]; DW = [V(44 + i) for i in range(4)]
    dma_off_256(a, l, DW, 8192, 'q', S_T)
    a(raw("s_lshl_b32 s42, s25, 2", writes=[S_SO])); a(raw("s_add_u32 s42, s42, s24", writes=[S_SO]))
    a(raw("s_lshl_b32 s42, s42, 8", writes=[S_SO]))
    def wq_stage(n):
        o_ = []
        for h in range(2):
            o_ += [sop('s_add_u32', 'm0', S_RING, n*8192 + h*4096), nop(0)]
            for i in range(4): o_.append(lds_dep(dma(DW[i], SRD_WQ, S_SO, off=i*1024), need={f'qR{n}'}, mark={f'qL{n}'}))
            o_.append(sop('s_add_u32', S_SO, S_SO, 16*8192))
        return o_
    a(valu('v_mov_b32', V(6), S_RING))
    addr_tr256(a, l, PTA, V(6), 8)
    a(valu('v_and_b32', V(1), 15, l)); a(valu('v_lshrrev_b32', V(2), 4, l))
    a(valu('v_lshlrev_b32', V(3), 10, V(1))); a(valu('v_add_u32', V(3), XBASE, V(3)))
    for k in range(4):
        a(valu('v_add_u32', V(4), 4*k, V(2))); a(valu('v_xor_b32', V(4), V(4), V(1)))
        a(valu('v_lshl_add_u32', XA[k], V(4), 4, V(3)))
    TV = (lambda k: V(96 + k)) if o.defer_addr else (lambda k: V(k) if k < 8 else V(26))
    s_main0, a_main0 = s, a
    deferred = []
    if o.defer_addr:
        s = deferred; a = deferred.append
    a(valu('v_lshrrev_b32', TV(2), 4, l)); a(valu('v_and_b32', TV(3), 15, l))
    for i in range(4):
        a(valu('v_add_u32', TV(4), 4*i, TV(2))); a(valu('v_xor_b32', TV(4), TV(4), TV(3)))
        a(valu('v_lshlrev_b32', TV(4), 4, TV(4))); a(valu('v_lshl_add_u32', KA[i], TV(3), 8, TV(4)))
    a(valu('v_lshrrev_b32', TV(4), 2, TV(3))); a(valu('v_and_b32', TV(5), 3, l))
    a(valu('v_lshl_add_u32', TV(7), TV(2), 2, TV(4)))
    a(valu('v_and_b32', TV(1), 7, TV(7))); a(valu('v_lshlrev_b32', TV(1), 1, TV(1)))
    a(valu('v_lshlrev_b32', TV(7), 8, TV(7)))
    a(valu('v_and_b32', TV(6), 1, TV(5))); a(valu('v_lshl_add_u32', TV(7), TV(6), 3, TV(7)))
    a(valu('v_add_u32', TV(7), VBASE, TV(7)))
    a(valu('v_lshrrev_b32', TV(6), 1, TV(5)))
    for dt in range(8):
        a(valu('v_add_u32', TV(5), 2*dt, TV(6))); a(valu('v_xor_b32', TV(5), TV(5), TV(1)))
        a(valu('v_lshl_add_u32', VA[dt], TV(5), 4, TV(7)))
    a(valu('v_lshlrev_b32', TV(5), 8, TV(2))); a(valu('v_add_u32', TV(5), S_WOFF, TV(5)))
    for n in range(4):
        a(valu('v_add_u32', TV(6), 4*n, TV(2))); a(valu('v_xor_b32', TV(6), TV(6), TV(3)))
        a(valu('v_lshl_add_u32', DK[n], TV(6), 4, TV(5)))
    for n in range(2):
        a(valu('v_add_u32', TV(6), 4*n, TV(2))); a(valu('v_lshlrev_b32', TV(6), 1, TV(6)))
        a(valu('v_xor_b32', TV(6), TV(6), TV(3))); a(valu('v_lshl_add_u32', DV[n], TV(6), 4, TV(5)))
    a(raw("s_lshl_b32 s27, s24, 14", writes=[S_XB])); a(raw(f"s_add_u32 s27, s27, {XBASE}", writes=[S_XB]))
    a(smov(S_SR, S_XB))
    a(valu('v_mov_b32', TV(8), S_XB))
    tr_addr_128(a, l, TA, TV(8), TV(1), TV(2), TV(3), TV(4))
    dma_off_128(a, l, DA, 3584, TV(1), TV(2), TV(3), s_tmp=S_T)
    dma_off_128(a, l, DB, 1024, TV(1), TV(2), TV(3), s_tmp=S_T)
    a(raw("s_lshl_b32 s44, s24, 9", writes=[S(44)]))
    a(raw("s_mul_i32 s39, s44, 3584", writes=[S_SA])); a(raw("s_lshl_b32 s45, s46, 7", writes=[S(45)])); a(raw("s_add_u32 s39, s39, s45", writes=[S_SA]))
    a(raw("s_lshl_b32 s36, s44, 10", writes=[S_SB])); a(raw("s_lshl_b32 s45, s47, 7", writes=[S(45)])); a(raw("s_add_u32 s36, s36, s45", writes=[S_SB]))
    a(raw(f"s_add_u32 s36, s36, {WS_H}", writes=[S_SB]))
    s, a = s_main0, a_main0
    a(smov(S_N, 0)); a(smov(S_SKIP, 0))
    if getattr(o, 'fine', False): s.extend(STP())
    s.extend(wq_stage(0))
    if getattr(o, 'fine', False):
        a(lds_dep(nop(0), need=set(XP.regs()))); s.extend(STP())
    def pk(op, d, x, y, z=None, mods=""):
        srcs = [x, y] + ([z] if z is not None else [])
        return I(f"{op} {d}, " + ", ".join(str(t) for t in srcs) + (" " + mods if mods else ""), 'valu', reads=srcs, writes=[d], op=op)
    if o.fuse_ln:
        F = lambda i, e: V(128 + 8*i + e)
        D1 = V(28, 4); D2 = V(4, 4)
        for i in range(16):
            a(mfma16(D1, ONES, XP[4*i:4*i+4], D1 if i else 0)); a(mfma16(D2, XP[4*i:4*i+4], XP[4*i:4*i+4], D2 if i else 0))
            for q in range(4):
                a(valu('v_lshlrev_b32', F(i, 2*q), 16, XP[4*i+q])); a(valu('v_and_b32', F(i, 2*q+1), 0xffff0000, XP[4*i+q]))
        if o.wq_early: s.extend(wq_stage(1)); s.extend(wq_stage(2))
        a(valu('v_and_b32', V(1), 3, l))
        for r in (2, 1, 0):
            a(I(f"v_cmp_eq_u32 vcc, {r}, v1", 'valu', reads=[V(1)], writes=['vcc']))
            a(I(f"v_cndmask_b32 v7, v7, {D2[r]}, vcc", 'valu', reads=[V(7), D2[r], 'vcc'], writes=[V(7)]))
        a(valu('v_and_b32', V(1), 15, l)); a(valu('v_lshrrev_b32', V(2), 2, V(1)))
        a(valu('v_lshl_add_u32', V(2), V(2), 4, V(1))); a(valu('v_lshlrev_b32', V(2), 2, V(2)))
        a(I("ds_bpermute_b32 v3, v2, v7", 'ds_read', reads=[V(2), V(7)], writes=[V(3)]))
        MEAN = V(28); RS = V(2); NB = V(3)
        a(valu('v_mul_f32', MEAN, 1.0/512, MEAN))
        a(valu('v_mul_f32', V(3), 1.0/512, V(3)))
        a(valu('v_fma_f32', V(3), '-v28', MEAN, V(3)))
        a(valu('v_max_f32', V(3), 0, V(3)))
        a(valu('v_add_f32', V(3), 1e-5, V(3)))
        a(valu('v_rsq_f32', RS, V(3)))
        if o.prescale: a(valu('v_mul_f32', RS, QSCALE, RS))
        a(valu('v_mul_f32', NB, MEAN, RS)); a(valu('v_sub_f32', NB, 0, NB))
        for i in range(16):
            for e in range(8): a(valu('v_fma_f32', F(i, e), F(i, e), RS, NB))
        a(valu('v_and_b32', V(4), 15, l)); a(valu('v_lshrrev_b32', V(5), 4, l))
        a(raw("s_lshl_b32 s43, s24, 14", writes=[S_T])); a(raw(f"s_add_u32 s43, s43, {XBASE}", writes=[S_T]))
        a(valu('v_lshlrev_b32', V(6), 10, V(4))); a(valu('v_add_u32', V(6), S_T, V(6)))
        WA = [V(28 + k) for k in range(4)]
        for k in range(4):
            a(valu('v_add_u32', V(7), 4*k, V(5))); a(valu('v_xor_b32', V(7), V(7), V(4))); a(valu('v_lshl_add_u32', WA[k], V(7), 4, V(6)))
        for i in range(16):
            for q in range(4): a(valu('v_cvt_pk_bf16_f32', XP[4*i+q], F(i, 2*q), F(i, 2*q+1)))
            a(ds_write(4, WA[i & 3], XP[4*i:4*i+4], off=(i >> 2)*256))
        if getattr(o, 'fine', False): s.extend(STP())
        a(waitcnt(lgkm=0)); a(barrier())
        if getattr(o, 'fine', False): s.extend(STP())
    else:
        a(waitcnt(vm=8)); a(barrier())
    if not (o.fuse_ln and o.wq_early): s.extend(wq_stage(1)); s.extend(wq_stage(2))
    if o.fuse_ln:
        s_main, a_main = s, a
        ln2 = []; s = ln2; a = ln2.append
        R0 = [V(64 + i) for i in range(8)]; R1 = [V(72 + i) for i in range(8)]
        PK = [V(80, 4), V(84, 4)]
        a(raw("s_lshl_b32 s44, s25, 3", writes=[S(44)])); a(raw("s_lshl_b32 s45, s24, 1", writes=[S(45)])); a(raw("s_add_u32 s44, s44, s45", writes=[S(44)]))
        for k in range(2):
            a(sop('s_add_u32', S(45), S(44), k)); a(sop('s_and_b32', S(5), S(45), 15)); a(raw("s_lshl_b32 s5, s5, 4", writes=[S(5)]))
            a(raw("s_lshl_b32 s45, s45, 10", writes=[S(45)])); a(raw(f"s_add_u32 s45, s45, {XBASE}", writes=[S(45)]))
            a(valu('v_lshlrev_b32', V(94), 4, l)); a(valu('v_xor_b32', V(94), S(5), V(94))); a(valu('v_add_u32', V(94), S(45), V(94)))
            a(ds_read_b128(PK[k], V(94)))
        RR = [R0, R1]; SM = [V(88), V(90)]; TT = [V(89), V(91)]; QQ = [V(92), V(93)]
        for k in range(2):
            for q in range(4):
                a(valu('v_lshlrev_b32', RR[k][2*q], 16, PK[k][q])); a(valu('v_and_b32', RR[k][2*q+1], 0xffff0000, PK[k][q]))
        def both(f):
            x0, x1 = f(0), f(1)
            for u, v_ in zip(x0, x1): a(u); a(v_)
        both(lambda k: [valu('v_add_f32', SM[k], RR[k][0], RR[k][1])] + [valu('v_add_f32', SM[k], SM[k], RR[k][e]) for e in range(2, 8)])
        both(lambda k: wave_sum(SM[k], TT[k]))
        both(lambda k: [valu('v_mul_f32', SM[k], 1.0/512, SM[k])] + [valu('v_sub_f32', RR[k][e], RR[k][e], SM[k]) for e in range(8)])
        both(lambda k: [valu('v_mul_f32', QQ[k], RR[k][0], RR[k][0])] + [valu('v_fmac_f32', QQ[k], RR[k][e], RR[k][e], dst_read=True) for e in range(1, 8)])
        both(lambda k: wave_sum(QQ[k], TT[k]))
        both(lambda k: [valu('v_mov_b32', TT[k], 1e-5 * (QSCALE*QSCALE if o.prescale else 1.0)), valu('v_fmac_f32', TT[k], 1.0/512, QQ[k], dst_read=True), valu('v_rsq_f32', TT[k], TT[k])] +
                       [valu('v_mul_f32', RR[k][e], RR[k][e], TT[k]) for e in range(8)] + [valu('v_cvt_pk_bf16_f32', PK[k][q], RR[k][2*q], RR[k][2*q+1]) for q in range(4)])
        a(raw("s_lshl_b32 s45, s26, 6", writes=[S(45)])); a(raw("s_add_u32 s45, s45, s44", writes=[S(45)])); a(raw("s_lshl_b32 s45, s45, 10", writes=[S(45)]))
        a(raw(f"s_add_u32 s45, s45, {WS_H}", writes=[S(45)]))
        a(valu('v_lshlrev_b32', V(94), 4, l))
        a(lds_dep(bstore(4, PK[0], V(94), SRD_W, S(45), mods="sc1"), mark={'HS'}))
        a(lds_dep(bstore(4, PK[1], V(94), SRD_W, S(45), off=1024, mods="sc1"), mark={'HS'}))
        a(valu('v_lshlrev_b32', V(95), 25, l)); a(valu('v_mov_b32', V(96), 0))
        a(raw("s_and_b32 s45, s2, 127", writes=[S(45)])); a(raw("s_lshl_b32 s45, s45, 8", writes=[S(45)])); a(raw(f"s_add_u32 s45, s45, {WS_CNT}", writes=[S(45)]))
        a(lds_dep(bstore(1, V(96), V(95), SRD_W, S(45), mods="sc1"), mark={'HS'}))
        s, a = s_main, a_main
    s.extend(STP())
    def xread(n, qt, dst): return ds_read_b128(dst, XA[n & 3], (n >> 2)*256 + qt*16384)
    kv0 = [smov(S_TILE, 0)] + at.kv_dma(0)
    later = []; later2 = []
    if o.side: later += side_dma(SRD_W1, S_SA, 32*3584, SRD_W, S_SB, 32*1024, DA, DB, 0, False, modsB=HMOD) + [sop('s_xor_b32', S_SR, S_SR, 8192)]
    later2 += at.kv_dma(1)
    if o.side: later2 += side_dma(SRD_W1, S_SA, 32*3584, SRD_W, S_SB, 32*1024, DA, DB, 1, False, modsB=HMOD) + [sop('s_xor_b32', S_SR, S_SR, 8192)]
    if not o.late2: later += later2; later2 = []
    hooks = {}
    last_pre = [waitcnt(lgkm=0)]
    if o.fuse_ln:
        arrive = [lds_dep(nop(0), need={'HS'}), barrier(),
                  valu('v_mov_b32', V(4), 1), valu('v_lshlrev_b32', V(5), 25, l),
                  raw("s_and_b32 s44, s2, 3", writes=[S(44)]), raw("s_lshl_b32 s44, s44, 6", writes=[S(44)]),
                  raw("s_cmp_eq_u32 s24, 0"), raw("s_cselect_b32 s44, s44, 0x1000", reads=['scc'], writes=[S(44)]),
                  I(f"buffer_atomic_add v4, v5, {SRD_DBG}, s44 offen sc1", 'vatomic', reads=[V(4), V(5), SRD_DBG, S(44)], writes=[])]
        hooks[o.arrive_at] = arrive
        if o.prefetch and o.side and o.pf_w1:
            hooks[o.pf_w1_at] = [raw("s_lshl_b32 s44, s47, 2", writes=[S(44)]), raw("s_add_u32 s44, s44, s24", writes=[S(44)]), raw("s_lshl_b32 s44, s44, 6", writes=[S(44)]),
                        valu('v_add_u32', V(2), S(44), l), smov(S(44), 3584), valu('v_mul_lo_u32', V(2), V(2), S(44)),
                        raw("s_lshl_b32 s44, s46, 7", writes=[S(44)]), bload(1, A(208), V(2), SRD_W1, S(44))]
        hooks[o.hpoll_at] = [valu('v_and_b32', V(1), 3, l), valu('v_lshlrev_b32', V(1), 6, V(1)), bload(1, V(6), V(1), SRD_DBG, 0, mods="sc1")]
        chk = lambda: [I("v_cmp_le_u32 vcc, 64, v6", 'valu', reads=[V(6)], writes=['vcc']), nop(3), raw("s_cmp_eq_u64 vcc, -1", reads=['vcc'])]
        last_pre += [smov(S(45), 0), label("L_k3_hpoll")] + chk() + [raw("s_cbranch_scc1 L_k3_hpollok", 'branch'),
                     raw("s_sleep 4"), bload(1, V(6), V(1), SRD_DBG, 0, mods="sc1"), waitcnt(vm=0),
                     sop('s_add_u32', S(45), S(45), 1), scmp('s_cmp_lt_u32', S(45), 0x40000), raw("s_cbranch_scc1 L_k3_hpoll", 'branch'), label("L_k3_hpollok")]
    if getattr(o, 'qdiag', False):
        for n_ in (2, 4, 6, 8, 10, 12, 14): hooks[n_] = STP() + hooks.get(n_, [])
    last_pre += [barrier()]
    proj_gemm2(a, s, PTA, DW, SRD_WQ, S_SO, 8192, S_RING, xread, 1024, 'q', last_pre=last_pre, last_fill=kv0, hooks=hooks, fill=((ln2 + deferred) if o.fuse_ln else None), fill_rate=o.ln2_rate)
    s.extend(STP())
    a(sload(S(96, 2), ARG_B1)); a(sload(S(98, 2), ARG_B2)); a(sload(S(100, 2), ARG_OUT))
    a(smov(S(44), QSCALE))
    qpost = []
    for i in range(4):
        for qt in range(4):
            x, y = O(2*i, qt), O(2*i+1, qt)
            b_ = qpost.append
            if not (o.prescale and o.fuse_ln):
                for r in range(4):
                    b_(valu('v_mul_f32', x[r], S(44), x[r])); b_(valu('v_mul_f32', y[r], S(44), y[r]))
            T4 = V(48 + 4*((i*4+qt) & 1), 4)
            X0, X1, Y0, Y1 = T4[0], T4[1], T4[2], T4[3]
            b_(valu('v_cvt_pk_bf16_f32', X0, x[0], x[1])); b_(valu('v_cvt_pk_bf16_f32', X1, x[2], x[3]))
            b_(valu('v_cvt_pk_bf16_f32', Y0, y[0], y[1])); b_(valu('v_cvt_pk_bf16_f32', Y1, y[2], y[3]))
            b_(permlane32_swap(X0, Y0)); b_(permlane32_swap(X1, Y1))
            b_(permlane16_swap(X0, Y0)); b_(permlane16_swap(X1, Y1))
            q = Q(i, qt)
            b_(valu('v_accvgpr_write_b32', q[0], X0)); b_(valu('v_accvgpr_write_b32', q[1], X1))
            b_(valu('v_accvgpr_write_b32', q[2], Y0)); b_(valu('v_accvgpr_write_b32', q[3], Y1))
    grp = group_dma(later)
    step = max(1, len(qpost) // (len(grp) + 1)); gi = 0
    for k, ins in enumerate(qpost):
        a(ins)
        if k % step == step - 1 and gi < len(grp):
            s.extend(expand([grp[gi]])); gi += 1
            while gi < len(grp) and not isinstance(grp[gi], Grp):
                a(grp[gi]); gi += 1
    for g_ in grp[gi:]: s.extend(expand([g_]))
    s.extend(STP())
    a(waitcnt(vm=((8 if o.side else 0) if o.late2 else (24 if o.side else 8)))); a(barrier())
    MX = [V(18 + 0), V(19), V(20), V(21)] if False else [V(28), V(29), V(30), V(31)]
    g2l = group_dma(later2)
    for kh in range(2 if o.fm64 else 1):
        s.extend(at.k_reads(0, kh))
        for c in range(2):
            for q2 in range(2):
                for t in range(2):
                    for i in range(4):
                        a(mfma16(Sx(c, t, q2), Kf(t*4+i), Q(i, 2*c+q2), 0 if i == 0 else Sx(c, t, q2)))
                        if g2l and (i & 1):
                            s.extend(expand([g2l.pop(0)]))
                            while g2l and not isinstance(g2l[0], Grp): a(g2l.pop(0))
        for qt in range(4):
            c, q2 = qt >> 1, qt & 1
            s0, s1 = Sx(c, 0, q2), Sx(c, 1, q2); m = MX[qt]
            if kh == 0: a(valu('v_max3_f32', m, s0[0], s0[1], s0[2]))
            else: a(valu('v_max3_f32', m, s0[0], s0[1], m)); a(valu('v_max_f32', m, m, s0[2]))
            a(valu('v_max3_f32', m, m, s0[3], s1[0])); a(valu('v_max3_f32', m, m, s1[1], s1[2])); a(valu('v_max_f32', m, m, s1[3]))
    s.extend(expand(g2l))
    for qt in range(4):
        m = MX[qt]; t = V(5)
        a(valu('v_mov_b32', t, m)); a(permlane16_swap(m, t)); a(valu('v_max_f32', m, m, t))
        a(valu('v_mov_b32', t, m)); a(permlane32_swap(m, t)); a(valu('v_max_f32', m, m, t))
        for r in range(4): a(valu('v_sub_f32', NM[qt][r], float(-o.moff), m))
        if o.reuse0:
            c_, q2_ = qt >> 1, qt & 1
            for t_ in range(2):
                for r in range(4): a(tag(valu('v_add_f32', Sx(c_, t_, q2_)[r], Sx(c_, t_, q2_)[r], NM[qt][0]), wt=('S', 0, 0, c_)))
    s.extend(STP())
    if o.fuse_ln:
        i_st = max(i for i, x in enumerate(s) if 'HS' in getattr(x, 'mark', set()))
        i_ar = min(i for i, x in enumerate(s) if 'HS' in getattr(x, 'need', set()))
        assert i_st < i_ar, 'h stores must be issued before the arrival'
    pro = s
    B1 = S(28, 4); B2 = S(32 - 4, 4)
    def scratch_write():
        o_ = [valu('v_lshlrev_b32', V(27), 4, l), valu('v_add_u32', V(26), S_XB, V(27))]
        for i in range(4):
            for j in range(4): o_.append(ds_write(4, V(26), sacc(i, j), off=(i*4+j)*1024))
        o_ += [raw("s_lshl_b32 s43, s24, 10", writes=[S_TMP]), raw(f"s_add_u32 s43, s43, {XBASE}", writes=[S_TMP]), valu('v_add_u32', V(27), S_TMP, V(27))]
        return o_
    PS = [[V(18, 2), V(20, 2), V(22, 2), V(24, 2)], [V(28, 2), V(30, 2), V(2, 2), V(4, 2)]]
    def unit_reads(u):
        i, h = u >> 1, u & 1
        return [ds_read_b64(PS[u & 1][w], V(27), w*16384 + i*4096 + 8*h) for w in range(4)]
    def unit_sum(u, e):
        P_ = PS[u & 1]; x = P_[3][e]
        return [valu('v_add_f32', P_[0][e], P_[0][e], P_[1][e]), valu('v_add_f32', x, x, P_[2][e]), valu('v_add_f32', x, x, P_[0][e])], x
    per = {}
    def side_spec(j):
        kw = dict(first=(j == 0), last_drain=(j == 32), kv=(j <= 29))
        if not o.side: return kw
        if j <= 15:
            rd, mf, dm = g1_parts(j, in_loop=(j >= 1))
            kw['side_groups'] = [(5, mf)] if o.g1_pos == 0 else ([(3, mf[:8]), (5, mf[8:])] if o.g1_pos == 1 else [(7, mf)] if o.g1_pos == 2 else [(1, mf[:4]), (3, mf[4:8]), (5, mf[8:12]), (6, mf[12:])])
            if getattr(o, 'x_noread', False): rd = []
            if getattr(o, 'x_nodma', False): dm = [i for i in dm if i.kind != 'dma' and 'm0' not in i.writes]
            kw['streams'] = [('srd', spread(rd, o.g1_rd[0], o.g1_rd[1]))]
            if dm: kw['side_dma_list'] = (dm, o.g1_dm[0], o.g1_dm[1], 0.5)
            if o.tog_early:
                tg = toggle_side()
                kw['streams'][0] = ('srd', kw['streams'][0][1] + [(0.5, 0.45, i) for i in tg[:4]])
                kw['post'] = tg[4:]
            else: kw['post'] = toggle_side()
        elif j == 16:
            pre = make_srd(B1, S(96, 2), 1792*2)
            bl = [valu('v_lshrrev_b32', V(1), 4, l), valu('v_lshlrev_b32', V(1), 3, V(1)), raw("s_lshl_b32 s44, s46, 7", writes=[S(44)])]
            bl += [bload(2, A(192 + 2*ft, 2), V(1), B1, S(44), off=32*ft) for ft in range(4)]
            kw['pre'] = pre
            pf = []
            if o.prefetch and o.pf_w2 and not o.g2_tail:
                pf = [raw("s_mul_i32 s44, s47, 224", writes=[S(44)]), raw("s_mul_i32 s45, s24, 56", writes=[S(45)]), raw("s_add_u32 s44, s44, s45", writes=[S(44)]),
                      valu('v_add_u32', V(2), S(44), l), valu('v_lshlrev_b32', V(2), 12, V(2)), raw("s_lshl_b32 s45, s46, 7", writes=[S(45)]),
                      bload(1, A(200), V(2), SRD_W2, S(45))]
            if o.wot:
                pf += [raw("s_lshl_b32 s3, s25, 4", writes=[S(3)]), raw("s_lshr_b32 s5, s26, 1", writes=[S(5)]), raw("s_add_u32 s3, s3, s5", writes=[S(3)]),
                       raw("s_lshl_b32 s3, s3, 15", writes=[S(3)]), raw("s_and_b32 s5, s26, 1", writes=[S(5)]), raw("s_lshl_b32 s5, s5, 9", writes=[S(5)]),
                       raw("s_add_u32 s3, s3, s5", writes=[S(3)]), raw("s_lshl_b32 s5, s24, 7", writes=[S(5)]), raw("s_add_u32 s3, s3, s5", writes=[S(3)]),
                       valu('v_and_b32', V(3), 31, l), valu('v_lshlrev_b32', V(3), 10, V(3)), bload(1, A(201), V(3), SRD_WO, S(3))]
            kw['streams'] = [('sw', spread(scratch_write(), 0.1, 0.7)), ('sb', spread(bl, 0.05, 0.1)), ('spf', [(0.15, 0.12, i) for i in pf])]
        elif j == 17:
            comp = [smov(S(45), -2.0*0.7978845608028654*LOG2E*0.044715), valu('v_mov_b32', V(1), -2.0*0.7978845608028654*LOG2E)]
            comp += [raw("s_lshl_b32 s43, s47, 2", writes=[S_TMP]), raw("s_add_u32 s43, s43, s24", writes=[S_TMP]), raw("s_mul_i32 s43, s43, 56", writes=[S_TMP]),
                     raw("s_lshl_b32 s39, s46, 1", writes=[S_SA]), raw("s_add_u32 s43, s43, s39", writes=[S_TMP]), raw("s_lshl_b32 s43, s43, 10", writes=[S_TMP]),
                     raw(f"s_add_u32 s43, s43, {WS_U}", writes=[S_TMP]), valu('v_lshlrev_b32', V(26), 4, l)]
            OUTA = A(240, 8)
            comp += unit_reads(0)
            for u in range(8):
                ft, h = u >> 1, u & 1
                if u + 1 < 8: comp += unit_reads(u + 1)
                comp.append(valu('v_accvgpr_read_b32', V(6), A(192 + 2*ft + h)))
                xs = []
                for e in range(2):
                    sm_, x = unit_sum(u, e); comp += sm_; xs.append(x)
                    comp.append(valu('v_and_b32', V(7), 0xffff0000, V(6)) if e else valu('v_lshlrev_b32', V(7), 16, V(6)))
                    comp.append(valu('v_add_f32', x, x, V(7)))
                    comp += [valu('v_mul_f32', V(7), x, x), valu('v_fma_f32', V(7), V(7), S(45), V(1)), valu('v_mul_f32', V(7), V(7), x), valu('v_exp_f32', V(7), V(7)),
                             valu('v_add_f32', V(7), 1.0, V(7)), valu('v_rcp_f32', V(7), V(7)), valu('v_mul_f32', x, x, V(7))]
                comp += [valu('v_cvt_pk_bf16_f32', V(6), xs[0], xs[1]), valu('v_accvgpr_write_b32', OUTA[u], V(6))]
                if u in (3, 7): comp.append(lds_dep(bstore(4, OUTA[u-3:u+1], V(26), SRD_US, S_TMP, off=(u >> 2)*1024, mods="sc1"), mark={'US'}))
            kw['streams'] = [('scomp', spread(comp, 0.0, 0.98))]
        elif o.g2_tail and j >= 18:
            if j == 18:
                sig = [valu('v_mov_b32', V(4), 1), valu('v_lshlrev_b32', V(5), 25, l),
                       raw("s_lshl_b32 s44, s47, 2", writes=[S(44)]), raw("s_add_u32 s44, s44, s24", writes=[S(44)]), raw("s_lshl_b32 s44, s44, 8", writes=[S(44)]),
                       raw(f"s_add_u32 s44, s44, {WS_CNT}", writes=[S(44)]),
                       lds_dep(I(f"buffer_atomic_add v4, v5, {SRD_US}, s44 offen sc1", 'vatomic', reads=[V(4), V(5), SRD_US, S(44)], writes=[]), need={'US'})]
                kw['streams'] = [('ssig', [(0.6, 0.5, i) for i in sig])]
            elif j == 28:
                pl = [valu('v_and_b32', V(1), 3, l), valu('v_lshlrev_b32', V(1), 8, V(1)), raw("s_lshl_b32 s43, s47, 10", writes=[S_TMP]),
                      raw(f"s_add_u32 s43, s43, {WS_CNT}", writes=[S_TMP]), bload(1, V(6), V(1), SRD_W, S_TMP, mods="sc1")]
                pf = []
                if o.prefetch and o.pf_w2:
                    pf = [raw("s_mul_i32 s44, s47, 224", writes=[S(44)]), raw("s_mul_i32 s45, s24, 56", writes=[S(45)]), raw("s_add_u32 s44, s44, s45", writes=[S(44)]),
                          valu('v_add_u32', V(2), S(44), l), valu('v_lshlrev_b32', V(2), 12, V(2)), raw("s_lshl_b32 s45, s46, 7", writes=[S(45)]),
                          bload(1, A(200), V(2), SRD_W2, S(45))]
                if o.prefetch:
                    pf += [raw("s_lshl_b32 s44, s25, 5", writes=[S(44)]), raw("s_add_u32 s44, s44, s26", writes=[S(44)]), raw("s_lshl_b32 s44, s44, 2", writes=[S(44)]),
                           raw("s_add_u32 s44, s44, s24", writes=[S(44)]), raw("s_lshl_b32 s44, s44, 12", writes=[S(44)]), valu('v_lshlrev_b32', V(3), 4, l)]
                    pf += [bload(4, A(240 + 4*n, 4), V(3), SRD_WO, S(44), off=n*1024) for n in range(4)]
                kw['streams'] = [('spoll', [(0.05, 0.0, i) for i in pl]), ('spf', spread(pf, 0.45, 0.9, rel=0.42))]
                chk = lambda: [I("v_cmp_le_u32 vcc, 28, v6", 'valu', reads=[V(6)], writes=['vcc']), nop(3), raw("s_cmp_eq_u64 vcc, -1", reads=['vcc'])]
                kw['post'] = [smov(S(45), 0), label("L_k3_poll")] + chk() + [raw("s_cbranch_scc1 L_k3_pollok", 'branch'),
                              raw("s_sleep 4"), bload(1, V(6), V(1), SRD_W, S_TMP, mods="sc1"), waitcnt(vm=0),
                              sop('s_add_u32', S(45), S(45), 1), scmp('s_cmp_lt_u32', S(45), 0x40000), raw("s_cbranch_scc1 L_k3_poll", 'branch'), label("L_k3_pollok")]
        elif j == 18:
            su = []
            dma_off_128(su.append, l, DA, 4096, V(1), V(2), V(3), s_tmp=S_TMP)
            su += [valu('v_lshlrev_b32', DB[0], 4, l)] + [valu('v_add_u32', DB[t], 56*1024, DB[t-1]) for t in range(1, 4)]
            su += [raw("s_mul_i32 s39, s24, 448*4096", writes=[S_SA]), raw("s_lshl_b32 s43, s46, 7", writes=[S_TMP]), raw("s_add_u32 s39, s39, s43", writes=[S_SA]),
                   raw("s_mul_i32 s36, s47, 4*56", writes=[S_SB]), raw("s_mul_i32 s43, s24, 14", writes=[S_TMP]), raw("s_add_u32 s36, s36, s43", writes=[S_SB]),
                   raw("s_lshl_b32 s36, s36, 10", writes=[S_SB]), raw(f"s_add_u32 s36, s36, {WS_U}", writes=[S_SB]), smov(S_N, 0), smov(S_SKIP, 0)]
            sig = [valu('v_mov_b32', V(4), 1), valu('v_lshlrev_b32', V(5), 25, l),
                   raw("s_lshl_b32 s44, s47, 2", writes=[S(44)]), raw("s_add_u32 s44, s44, s24", writes=[S(44)]), raw("s_lshl_b32 s44, s44, 8", writes=[S(44)]),
                   raw(f"s_add_u32 s44, s44, {WS_CNT}", writes=[S(44)]),
                   lds_dep(I(f"buffer_atomic_add v4, v5, {SRD_US}, s44 offen sc1", 'vatomic', reads=[V(4), V(5), SRD_US, S(44)], writes=[]), need={'US'})]
            kw['streams'] = [('ssu', spread(su, 0.05, 0.55)), ('ssig', [(0.6, 0.5, i) for i in sig])]
            if o.wot:
                WD = [V(28 + i) for i in range(4)]
                wsu = []
                dma_off_128(wsu.append, l, WD, 1024, V(6), V(7), V(26), s_tmp=S(5))
                wsu += [raw("s_lshl_b32 s3, s25, 4", writes=[S(3)]), raw("s_lshr_b32 s5, s26, 1", writes=[S(5)]), raw("s_add_u32 s3, s3, s5", writes=[S(3)]),
                        raw("s_lshl_b32 s3, s3, 15", writes=[S(3)]), raw("s_and_b32 s5, s26, 1", writes=[S(5)]), raw("s_lshl_b32 s5, s5, 9", writes=[S(5)]),
                        raw("s_add_u32 s3, s3, s5", writes=[S(3)]), raw("s_lshl_b32 s5, s24, 7", writes=[S(5)]), raw("s_add_u32 s3, s3, s5", writes=[S(3)])]
                kw['streams'].append(('swsu', spread(wsu, 0.0, 0.12)))
                dl = [sop('s_add_u32', 'm0', S_SR, 8192), nop(0)] + [lds_dep(dma(WD[i], SRD_WO, S(3), off=i*1024), need={'sR1'}, mark={'sL1'}) for i in range(4)]
                kw['side_dma_list'] = (dl, 0.42, 0.55, 0.2)
        elif j == 19:
            st = g2_dma(0, False) + [sop('s_xor_b32', S_SR, S_SR, 8192)] + g2_dma(1, False) + [sop('s_xor_b32', S_SR, S_SR, 8192)]
            kw['side_dma_list'] = (st, 0.42, 0.95, 0.0)
            if o.wot:
                rd = [lds_dep(ds_read_tr(A(192 + 4*t + 2*u, 2), TA[t], 8192 + u*2048), need={'sL1'}, mark={'sR1'}) for t in range(4) for u in range(2)]
                ad = [raw("s_lshl_b32 s3, s25, 4", writes=[S(3)]), raw("s_lshr_b32 s5, s26, 1", writes=[S(5)]), raw("s_add_u32 s3, s3, s5", writes=[S(3)]),
                      raw("s_lshl_b32 s3, s3, 5", writes=[S(3)]), raw("s_and_b32 s5, s26, 1", writes=[S(5)]), raw("s_lshl_b32 s5, s5, 4", writes=[S(5)]),
                      raw("s_add_u32 s3, s3, s5", writes=[S(3)]), raw("s_lshl_b32 s5, s24, 2", writes=[S(5)]), raw("s_add_u32 s3, s3, s5", writes=[S(3)]),
                      raw("s_lshl_b32 s3, s3, 10", writes=[S(3)]), raw(f"s_add_u32 s3, s3, {WS_WOT}", writes=[S(3)]), valu('v_lshlrev_b32', V(26), 4, l)]
                stw = [bstore(4, A(192 + 4*t, 4), V(26), SRD_W, S(3), off=t*1024, mods="sc1") for t in range(4)]
                kw['streams'] = [('swr', spread(rd, 0.50, 0.60, rel=0.48) + [(0.61, 0.0, i) for i in ad] + spread(stw, 0.64, 0.8, rel=0.62))]
                kw['side_dma_list'] = (st, 0.42, 0.97, 0.0)
        elif j == 20:
            pl = [valu('v_and_b32', V(1), 3, l), valu('v_lshlrev_b32', V(1), 8, V(1)), raw("s_lshl_b32 s43, s47, 10", writes=[S_TMP]),
                  raw(f"s_add_u32 s43, s43, {WS_CNT}", writes=[S_TMP]), bload(1, V(6), V(1), SRD_W, S_TMP, mods="sc1")]
            kw['streams'] = [('spoll', [(0.80, 0.7, i) for i in pl])]
            if o.prefetch and not o.wot:
                extra = [raw("s_lshl_b32 s44, s25, 5", writes=[S(44)]), raw("s_add_u32 s44, s44, s26", writes=[S(44)]), raw("s_lshl_b32 s44, s44, 2", writes=[S(44)]),
                         raw("s_add_u32 s44, s44, s24", writes=[S(44)]), raw("s_lshl_b32 s44, s44, 12", writes=[S(44)])]
                extra += [bload(4, A(240 + 4*n, 4), DB[0], SRD_WO, S(44), off=n*1024) for n in range(4)]
                kw['streams'].append(('spf', spread(extra, 0.42, 0.55)))
            chk = lambda: [I("v_cmp_le_u32 vcc, 28, v6", 'valu', reads=[V(6)], writes=['vcc']), nop(3), raw("s_cmp_eq_u64 vcc, -1", reads=['vcc'])]
            dg = (STP() if getattr(o, 'polldiag', False) else [])
            kw['post'] = dg + [smov(S(45), 0), label("L_k3_poll")] + chk() + [raw("s_cbranch_scc1 L_k3_pollok", 'branch'),
                          raw("s_sleep 4"), bload(1, V(6), V(1), SRD_W, S_TMP, mods="sc1"), waitcnt(vm=0),
                          sop('s_add_u32', S(45), S(45), 1), scmp('s_cmp_lt_u32', S(45), 0x40000), raw("s_cbranch_scc1 L_k3_poll", 'branch'), label("L_k3_pollok")] + ([smov(S(94), S(45))] if getattr(o, 'polldiag', False) else [])
            kw['vm_end'] = 0
        elif j == 21:
            if o.wot:
                kw['pre'] = [valu('v_mov_b32', V(4), 1), valu('v_lshlrev_b32', V(5), 25, l), sop('s_add_u32', S(44), S_G, 64), raw("s_lshl_b32 s44, s44, 8", writes=[S(44)]),
                             raw(f"s_add_u32 s44, s44, {WS_CNT}", writes=[S(44)]), raw("s_cmp_eq_u32 s24, 0"), raw(f"s_cselect_b32 s44, s44, {WS_END}", reads=['scc'], writes=[S(44)]),
                             I(f"buffer_atomic_add v4, v5, {SRD_W}, s44 offen sc1", 'vatomic', reads=[V(4), V(5), SRD_W, S(44)], writes=[])]
            z = [valu('v_accvgpr_write_b32', A(128 + r), 0) for r in range(64)]
            kw['streams'] = [('sul', spread(g2_uloads(0), 0.05, 0.3))] + ([] if o.peel22 else [('sz', spread(z, 0.1, 0.95))])
        elif 22 <= j <= 28:
            i = j - 22
            rd, mfs = g2_parts(i)
            for g_ in mfs:
                for m_ in g_:
                    if m_.C == 0 and not o.peel22: m_.C = m_.D; m_.text = f"v_mfma_f32_16x16x32_bf16 {m_.D}, {m_.A}, {m_.B}, {m_.D}"; m_.reads |= set(m_.D.regs())
            kw['side_groups'] = [(3, mfs[0]), (5, mfs[1])]
            stl = [('srd', spread(rd, 0.02, 0.36))]
            if j <= (28 if o.peel22 else 27):
                dm = [scmp('s_cmp_gt_u32', S_N, 4), I(f"s_cselect_b32 {S_SKIP}, 0x30000, 0", 'salu', reads=['scc'], writes=[S_SKIP]), sop('s_add_u32', S_N, S_N, 1)]
                dm += g2_dma(i & 1, True)
                kw['side_dma_list'] = (dm, 0.45, 0.78, 0.42)
                stl += [('sul', spread(g2_uloads(i + 1), 0.82, 0.98, rel=0.80))]
            if o.tog_early:
                tg = toggle_side()
                stl[0] = ('srd', stl[0][1] + [(0.45, 0.42, i) for i in tg[:4]])
                kw['post'] = tg[4:]
            else: kw['post'] = toggle_side()
            kw['streams'] = stl
        elif j == 29:
            pre = make_srd(B1, S(98, 2), 2048*2)
            bl = [valu('v_and_b32', V(1), 15, l), raw("s_lshl_b32 s44, s46, 6", writes=[S(44)]), raw("s_lshl_b32 s45, s24, 4", writes=[S(45)]),
                  raw("s_add_u32 s44, s44, s45", writes=[S(44)]), valu('v_add_u32', V(1), S(44), V(1)), valu('v_lshlrev_b32', V(1), 1, V(1)), bload_ushort(V(1), V(1), B1)]
            kw['pre'] = pre
            kw['streams'] = [('sw', spread(scratch_write(), 0.1, 0.7)), ('sb', spread(bl, 0.05, 0.1))]
        elif j == 30:
            comp = [smov(S(44), -LOG2E), valu('v_lshlrev_b32', V(1), 16, V(1))]
            comp += [raw("s_lshr_b32 s43, s47, 1", writes=[S_TMP]), raw("s_lshl_b32 s45, s46, 2", writes=[S(45)]), raw("s_add_u32 s43, s43, s45", writes=[S_TMP]),
                     raw("s_lshl_b32 s43, s43, 2", writes=[S_TMP]), raw("s_and_b32 s45, s47, 1", writes=[S(45)]), raw("s_lshl_b32 s45, s45, 1", writes=[S(45)]),
                     raw("s_add_u32 s43, s43, s45", writes=[S_TMP]), raw("s_lshl_b32 s43, s43, 2", writes=[S_TMP]), raw("s_add_u32 s43, s43, s24", writes=[S_TMP]),
                     raw("s_lshl_b32 s43, s43, 10", writes=[S_TMP]), raw(f"s_add_u32 s43, s43, {WS_GATE}", writes=[S_TMP]), valu('v_lshlrev_b32', V(26), 4, l)]
            OUTA = A(240, 8)
            comp += unit_reads(0)
            for u in range(8):
                if u + 1 < 8: comp += unit_reads(u + 1)
                xs = []
                for e in range(2):
                    sm_, y = unit_sum(u, e); comp += sm_; xs.append(y)
                    comp += [valu('v_add_f32', y, y, V(1)), valu('v_mul_f32', V(7), S(44), y), valu('v_exp_f32', V(7), V(7)), valu('v_add_f32', V(7), 1.0, V(7)),
                             valu('v_rcp_f32', V(7), V(7)), valu('v_mul_f32', y, y, V(7))]
                comp += [valu('v_cvt_pk_bf16_f32', V(6), xs[0], xs[1]), valu('v_accvgpr_write_b32', OUTA[u], V(6))]
                if u in (3, 7):
                    comp.append(bstore(4, OUTA[u-3:u+1], V(26), SRD_W, S_TMP, mods=("sc1" if o.fuse_comb else "")))
                    comp.append(sop('s_add_u32', S_TMP, S_TMP, 4096))
            kw['streams'] = [('scomp', spread(comp, 0.0, 0.98))]
        return kw
    DO = [V(14 + i) for i in range(4)]
    TO = [V(64 + i) for i in range(8)]; TO2 = [V(72 + i) for i in range(8)]
    S_SLOW = S(6); S_R2 = S(7)
    def wo_setup():
        s_ = []; a_ = s_.append
        dma_off_256(a_, l, DO, 1024, 'o', S_T)
        a_(raw("s_lshl_b32 s42, s25, 19", writes=[S_SO])); a_(raw("s_lshl_b32 s43, s24, 8", writes=[S_T]))
        a_(raw("s_add_u32 s42, s42, s43", writes=[S_SO]))
        a_(raw("s_lshl_b32 s7, s24, 13", writes=[S_R2])); a_(raw("s_add_u32 s7, s7, 65536", writes=[S_R2]))
        return s_
    def wo_stage(n):
        s_ = []
        sb, madd = (S_XB, n*8192) if n < 2 else (S_R2, 0)
        for h in range(2):
            s_ += [sop('s_add_u32', 'm0', sb, madd + h*4096), nop(0)]
            for i in range(4): s_.append(lds_dep(dma(DO[i], SRD_WO, S_SO, off=i*1024), need={f'oR{n}'}, mark={f'oL{n}'}))
            s_.append(sop('s_add_u32', S_SO, S_SO, 16*1024))
        return s_
    def wo_first_lds(): return wo_setup() + wo_stage(0) + wo_stage(1) + wo_stage(2)
    VLW = V(14)
    def wot_setup():
        return [valu('v_lshlrev_b32', VLW, 4, l), raw("s_lshl_b32 s42, s25, 19", writes=[S_SO]), raw("s_lshl_b32 s43, s24, 13", writes=[S_T]),
                raw("s_add_u32 s42, s42, s43", writes=[S_SO]), raw(f"s_add_u32 s42, s42, {WS_WOT}", writes=[S_SO])]
    def wot_loads(n): return proj3_loads(SRD_W, S_SO, VLW, n, 128)
    def wot_first(): return [i for n in range(P3_DEPTH) for i in wot_loads(n)]
    def wo_first(): return (wot_setup() + wot_first()) if o.wot else wo_first_lds()
    seqs = [('pro', pro)]
    for j in range(33):
        kw_ = side_spec(j)
        if j == 31 and o.wot:
            kw_['streams'] = list(kw_.get('streams', [])) + [('swo', spread(wot_setup(), 0.0, 0.05) + spread(wot_first(), 0.08, 0.95, rel=0.06))]
        elif j == 31 and o.wo_early:
            kw_['streams'] = list(kw_.get('streams', [])) + [('swo', spread(wo_setup(), 0.02, 0.2))]
            kw_['side_dma_list'] = (wo_stage(0) + wo_stage(1), 0.25, 0.95, 0.22)
        if j == 31 and o.tlb_warm and o.fuse_comb:
            tw = [valu('v_and_b32', V(2), 7, l), valu('v_lshlrev_b32', V(2), 21, V(2)),
                  raw("s_lshl_b32 s3, s26, 16", writes=[S(3)]), raw(f"s_add_u32 s3, s3, {WS_PART}", writes=[S(3)]),
                  bload(1, A(201), V(2), SRD_W, S(3), mods="sc1"),
                  valu('v_mov_b32', V(3), 0), raw("s_lshl_b32 s3, s26, 16", writes=[S(3)]), raw(f"s_add_u32 s3, s3, {WS_GATE}", writes=[S(3)]),
                  bload(1, A(202), V(3), SRD_W, S(3), mods="sc1")]
            tw += make_srd(S(48, 4), S(100, 2), 2 << 20) + [raw("s_lshl_b32 s3, s26, 16", writes=[S(3)]), bload(1, A(203), V(3), S(48, 4), S(3))]
            kw_['streams'] = list(kw_.get('streams', [])) + [('stw', [(0.02, 0.0, i) for i in tw])]
        if j == 30 and o.wot:
            pl = [valu('v_mov_b32', V(16), 0), sop('s_add_u32', S(3), S_G, 64), raw("s_lshl_b32 s3, s3, 8", writes=[S(3)]), raw(f"s_add_u32 s3, s3, {WS_CNT}", writes=[S(3)]),
                  bload(1, V(17), V(16), SRD_W, S(3), mods="sc1")]
            kw_['streams'] = list(kw_.get('streams', [])) + [('swp', [(0.3, 0.25, i) for i in pl])]
            kw_['post'] = list(kw_.get('post', [])) + [smov(S(5), 0), label("L_k3_wpoll"), readfirstlane(S(4), V(17)), nop(3), scmp('s_cmp_ge_u32', S(4), 32),
                          raw("s_cbranch_scc1 L_k3_wpollok", 'branch'), raw("s_sleep 4"), bload(1, V(17), V(16), SRD_W, S(3), mods="sc1"), waitcnt(vm=0),
                          sop('s_add_u32', S(5), S(5), 1), scmp('s_cmp_lt_u32', S(5), 0x40000), raw("s_cbranch_scc1 L_k3_wpoll", 'branch'), label("L_k3_wpollok")]
        p = at.period(j, **kw_)
        if o.timing and j in o.stamp_after: p = p + STP()
        seqs.append((j, [label(f"@@P{j}")] + p))
    def arrive2(idx_s):
        return [valu('v_mov_b32', V(4), 1), valu('v_lshlrev_b32', V(5), 25, l),
                sop('s_add_u32', S(44), idx_s, 32), raw("s_lshl_b32 s44, s44, 8", writes=[S(44)]), raw(f"s_add_u32 s44, s44, {WS_CNT}", writes=[S(44)]),
                raw("s_cmp_eq_u32 s24, 0"), raw(f"s_cselect_b32 s44, s44, {WS_END}", reads=['scc'], writes=[S(44)]),
                I(f"buffer_atomic_add v4, v5, {SRD_W}, s44 offen sc1", 'vatomic', reads=[V(4), V(5), SRD_W, S(44)], writes=[])]
    pre_epi = [smov(S_SLOW, 0)]
    if o.fuse_comb: pre_epi += ([] if o.g2_tail else arrive2(S_T64)) + [sload(S(96, 2), ARG_X)] + ([sload(S(100, 2), ARG_OUT)] if o.g2_tail else [sload(S(98, 2), ARG_OUT)])
    if not o.wot: pre_epi += (wo_stage(2) if o.wo_early else wo_first())
    s = []; a = s.append
    a(label("@@EPI"))
    a(label("L_k3_norm"))
    a(nop(7))
    if not o.wot:
        a(valu('v_mov_b32', V(6), S_XB))
        addr_tr256(a, l, TO, V(6), 4)
        a(valu('v_mov_b32', V(6), S_R2))
        addr_tr256(a, l, TO2, V(6), 4)
    LI = [V(24 + i) for i in range(4)]
    for qt in range(4): a(valu('v_rcp_f32', LI[qt], LA[qt][0]))
    a(valu('v_lshlrev_b32', V(7), 4, l))
    a(raw("s_lshl_b32 s43, s24, 14", writes=[S_T]))
    a(valu('v_add_u32', V(22), S_T, V(7))); a(valu('v_mov_b32', V(23), V(7)))
    for kk in range(4):
        for qt in range(4):
            x, y = O(2*kk, qt), O(2*kk+1, qt)
            for r in range(4):
                a(valu('v_mul_f32', x[r], x[r], LI[qt])); a(valu('v_mul_f32', y[r], y[r], LI[qt]))
            if o.moff:
                mx = V(28 + qt)
                ab = lambda r_: f"|{r_}|"
                if kk == 0: a(valu('v_max3_f32', mx, ab(x[0]), ab(x[1]), ab(x[2])))
                else: a(valu('v_max3_f32', mx, ab(x[0]), ab(x[1]), mx)); a(valu('v_max_f32', mx, ab(x[2]), mx, mods=""))
                a(valu('v_max3_f32', mx, ab(x[3]), ab(y[0]), mx)); a(valu('v_max3_f32', mx, ab(y[1]), ab(y[2]), mx)); a(valu('v_max_f32', mx, ab(y[3]), mx))
            F = V(48 + 4*((kk*4+qt) & 3), 4)
            a(valu('v_cvt_pk_bf16_f32', F[0], x[0], x[1])); a(valu('v_cvt_pk_bf16_f32', F[1], x[2], x[3]))
            a(valu('v_cvt_pk_bf16_f32', F[2], y[0], y[1])); a(valu('v_cvt_pk_bf16_f32', F[3], y[2], y[3]))
            a(ds_write(4, V(22), F, off=(kk*4+qt)*1024))
    a(waitcnt(lgkm=0)); a(barrier())
    s.extend(STP())
    def oread(n, qt, dst): return ds_read_b128(dst, V(23), (n*4+qt)*1024)
    S_PS = S(3)
    def pstore(prange):
        o_ = []
        for p in prange:
            for qt in range(4):
                x, y = O(2*p, qt), O(2*p+1, qt)
                F = V(48 + 4*((p*4+qt) & 3), 4)
                o_ += [valu('v_cvt_pk_bf16_f32', F[0], x[0], x[1]), valu('v_cvt_pk_bf16_f32', F[1], x[2], x[3]),
                       valu('v_cvt_pk_bf16_f32', F[2], y[0], y[1]), valu('v_cvt_pk_bf16_f32', F[3], y[2], y[3]),
                       bstore(4, F, V(7), SRD_W, S_PS, off=qt*1024, mods=("sc1" if o.fuse_comb else ""))]
            o_.append(sop('s_add_u32', S_PS, S_PS, 4096))
        return o_
    a(raw("s_lshl_b32 s3, s25, 5", writes=[S_PS])); a(raw("s_add_u32 s3, s3, s26", writes=[S_PS]))
    a(raw("s_lshl_b32 s3, s3, 2", writes=[S_PS])); a(raw("s_add_u32 s3, s3, s24", writes=[S_PS]))
    a(raw("s_lshl_b32 s3, s3, 14", writes=[S_PS])); a(raw(f"s_add_u32 s3, s3, {WS_PART}", writes=[S_PS]))
    g2pre = {}
    if o.g2_tail:
        GTA = [[V(96 + t) for t in range(4)], [V(100 + t) for t in range(4)]]
        GDA = [V(104 + t) for t in range(4)]; GUL = [V(108 + t) for t in range(4)]
        a(valu('v_mov_b32', V(6), S_XB)); tr_addr_128(a, l, GTA[0], V(6), V(1), V(2), V(3), V(4))
        a(valu('v_mov_b32', V(6), S_R2)); tr_addr_128(a, l, GTA[1], V(6), V(1), V(2), V(3), V(4))
        dma_off_128(a, l, GDA, 4096, V(1), V(2), V(3), s_tmp=S(5))
        a(valu('v_lshlrev_b32', GUL[0], 4, l))
        for t in range(1, 4): a(valu('v_add_u32', GUL[t], 56*1024, GUL[t-1]))
        a(raw("s_mul_i32 s39, s24, 448*4096", writes=[S_SA])); a(raw("s_lshl_b32 s5, s46, 7", writes=[S(5)])); a(raw("s_add_u32 s39, s39, s5", writes=[S_SA]))
        a(raw("s_mul_i32 s36, s47, 4*56", writes=[S_SB])); a(raw("s_mul_i32 s5, s24, 14", writes=[S(5)])); a(raw("s_add_u32 s36, s36, s5", writes=[S_SB]))
        a(raw("s_lshl_b32 s36, s36, 10", writes=[S_SB])); a(raw(f"s_add_u32 s36, s36, {WS_U}", writes=[S_SB]))
        s.extend(make_srd(S(28, 4), S(98, 2), 2048*2))
        a(valu('v_and_b32', V(1), 15, l)); a(raw("s_lshl_b32 s44, s46, 6", writes=[S(44)])); a(raw("s_lshl_b32 s45, s24, 4", writes=[S(45)]))
        a(raw("s_add_u32 s44, s44, s45", writes=[S(44)])); a(valu('v_add_u32', V(1), S(44), V(1))); a(valu('v_lshlrev_b32', V(1), 1, V(1)))
        a(bload_ushort(V(18), V(1), S(28, 4)))
        gmap = [(0, 8192, S_XB, 8192), (0, 12288, S_XB, 12288), (1, 0, S_R2, 0), (1, 4096, S_R2, 4096)]
        wneed = ['oR1', 'oR1', 'oR2', 'oR2']
        def g2_w(n, first=False):
            st = n % 4; (_, _, sb, madd) = gmap[st]
            o_ = [sop('s_add_u32', 'm0', sb, madd)]
            for i in range(4): o_.append(lds_dep(dma(GDA[i], SRD_W2, S_SA, off=i*1024), need={f'gR{st}'} | ({wneed[st]} if first else set()), mark={f'gL{st}'}))
            o_.append(sop('s_add_u32', S_SA, S_SA, 32*4096))
            return o_
        gfa = lambda n, t: A(192 + 16*(n % 4) + 4*t, 4)
        gfb = lambda p, t: A(128 + 16*p + 4*t, 4)
        def g2_u(n):
            return [bload(4, gfa(n, t), GUL[t], SRD_W, S_SB, mods="sc1") for t in range(4)] + [sop('s_add_u32', S_SB, S_SB, 1024)]
        def g2_r(n):
            st = n % 4; (ti, imm, _, _) = gmap[st]
            return [lds_dep(ds_read_tr(gfb(n & 1, t)[2*u:2*u+2], GTA[ti][t], imm + u*2048), need={f'gL{st}'}, mark={f'gR{st}'}) for t in range(4) for u in range(2)]
        g2pre = {13: g2_w(0, True) + g2_w(1, True) + g2_u(0), 14: g2_w(2, True) + g2_w(3, True) + g2_u(1), 15: g2_u(2) + g2_u(3)}
    if o.wot:
        proj_gemm3(a, s, SRD_W, S_SO, VLW, oread, 128, 64, mid_fill=pstore(range(2)))
    else:
        proj_gemm2(a, s, TO, DO, SRD_WO, S_SO, 1024, S_RING, oread, 4096, 'o', fb_base=(160 if o.g2_tail else 128),
                   stage_map=[(TO, 0, S_XB, 0), (TO, 8192, S_XB, 8192), (TO2, 0, S_R2, 0)], extra_vm=g2pre)
    if o.fast_tail and o.fuse_comb and not o.g2_tail: s.extend(pstore(range(2, 4) if o.wot else range(4)))
    a(smov(S(44), float(2.0**100)))
    for qt in range(4):
        a(I(f"v_cmp_gt_f32 vcc, s44, {LA[qt][0]}", 'valu', reads=[S(44), LA[qt][0]], writes=['vcc']))
        a(nop(3))
        a(I("s_mov_b64 s[56:57], vcc" if qt == 0 else "s_and_b64 s[56:57], s[56:57], vcc", 'salu', reads=['vcc'], writes=[S(56, 2), 'scc']))
    if o.moff:
        a(smov(S(44), float(2.0**(o.moff - 108))))
        for qt in range(4):
            a(I(f"v_cmp_le_f32 vcc, s44, {V(28 + qt)}", 'valu', reads=[S(44), V(28 + qt)], writes=['vcc']))
            a(nop(3))
            a(I("s_and_b64 s[56:57], s[56:57], vcc", 'salu', reads=['vcc'], writes=[S(56, 2), 'scc']))
    a(nop(7))
    a(valu('v_mov_b32', V(1), 0x1F8))
    for qt in range(4):
        a(I(f"v_cmp_class_f32 vcc, {O(0, qt)[0]}, v1", 'valu', reads=[O(0, qt)[0], V(1)], writes=['vcc']))
        a(nop(3))
        a(I("s_and_b64 s[56:57], s[56:57], vcc", 'salu', reads=['vcc'], writes=[S(56, 2), 'scc']))
    a(raw("s_cmp_eq_u64 s[56:57], -1"))
    a(raw("s_cselect_b32 s44, 0, 1", reads=['scc'], writes=[S(44)]))
    a(valu('v_mov_b32', V(2), S(44))); a(valu('v_mov_b32', V(1), S_XB))
    a(ds_write(1, V(1), V(2)))
    def flag_decide():
        a(valu('v_mov_b32', V(1), XBASE))
        a(ds_read_b32(V(2), V(1))); a(ds_read_b32(V(3), V(1), 16384)); a(ds_read_b32(V(4), V(1), 32768)); a(ds_read_b32(V(5), V(1), 49152))
        a(valu('v_or_b32', V(2), V(2), V(3))); a(valu('v_or_b32', V(4), V(4), V(5))); a(valu('v_or_b32', V(2), V(2), V(4)))
        a(readfirstlane(S(44), V(2)))
        a(nop(3))
        a(I("s_andn2_b32 s44, s44, s6", 'salu', reads=[S(44), S_SLOW], writes=[S(44), 'scc']))
        a(raw("s_cbranch_scc1 L_k3_slow", 'branch'))
    FT = o.fast_tail and o.fuse_comb and not o.g2_tail
    if not FT:
        a(waitcnt(lgkm=0)); a(barrier())
        flag_decide()
        a(label("L_k3_store"))
        s.extend(STP())
        if not o.g2_tail: s.extend(pstore(range(2, 4) if o.wot else range(4)))
    else:
        s.extend(STP())
    if o.g2_tail:
        gacc = lambda mt, st_: A(64 + (mt*4+st_)*4, 4)
        pfill = pstore(range(4))
        s.extend(g2_r(0))
        for n in range(14):
            rd = g2_r(n + 1) if n + 1 < 14 else []
            vm = (g2_w(n + 4) + g2_u(n + 4)) if n + 4 < 14 else []
            mf = [mfma16(gacc(mt, st_), gfa(n, mt), gfb(n & 1, st_), gacc(mt, st_) if n else 0) for mt in range(4) for st_ in range(4)]
            gaps = [[] for _ in range(16)]
            for k, ins in enumerate(rd): gaps[k].append(ins)
            g = 8
            for (ins, st_) in dma_ops_with_setup(vm):
                if ins.kind == 'dma':
                    gaps[g - 1] += st_; gaps[g].append(ins); g = min(15, g + 2)
            late = [i for i in vm if i.kind == 'vload' or (i.kind == 'salu' and 'm0' not in i.writes)]
            for k, m in enumerate(mf):
                a(m); s.extend(sort_gap(gaps[k]))
                if n >= o.ps_from and pfill:
                    for _ in range(2 if gaps[k] else 3):
                        if pfill: a(pfill.pop(0))
            s.extend(late)
        s.extend(pfill)
        a(raw("s_lshl_b32 s44, s24, 14", writes=[S(44)])); a(valu('v_add_u32', V(26), S(44), V(7)))
        for mt in range(4):
            for st_ in range(4): a(ds_write(4, V(26), gacc(mt, st_), off=(mt*4+st_)*1024))
        a(waitcnt(lgkm=0)); a(barrier())
        a(raw("s_lshl_b32 s44, s24, 10", writes=[S(44)])); a(valu('v_add_u32', V(27), S(44), V(7)))
        for mt in range(4):
            for w in range(4): a(ds_read_b128(V(192 + (mt*4+w)*4, 4), V(27), w*16384 + mt*4096))
        a(smov(S(44), -LOG2E)); a(valu("v_lshlrev_b32", V(18), 16, V(18)))
        a(raw("s_lshr_b32 s43, s47, 1", writes=[S_T])); a(raw("s_lshl_b32 s45, s46, 2", writes=[S(45)])); a(raw("s_add_u32 s43, s43, s45", writes=[S_T]))
        a(raw("s_lshl_b32 s43, s43, 2", writes=[S_T])); a(raw("s_and_b32 s45, s47, 1", writes=[S(45)])); a(raw("s_lshl_b32 s45, s45, 1", writes=[S(45)]))
        a(raw("s_add_u32 s43, s43, s45", writes=[S_T])); a(raw("s_lshl_b32 s43, s43, 2", writes=[S_T])); a(raw("s_add_u32 s43, s43, s24", writes=[S_T]))
        a(raw("s_lshl_b32 s43, s43, 10", writes=[S_T])); a(raw(f"s_add_u32 s43, s43, {WS_GATE}", writes=[S_T]))
        for mt in range(4):
            for r in range(4):
                P_ = [V(192 + (mt*4+w)*4 + r) for w in range(4)]; y = P_[0]; tt = V(2 + (r & 1))
                a(valu('v_add_f32', y, y, P_[1])); a(valu('v_add_f32', P_[2], P_[2], P_[3])); a(valu('v_add_f32', y, y, P_[2])); a(valu("v_add_f32", y, y, V(18)))
                a(valu('v_mul_f32', tt, S(44), y)); a(valu('v_exp_f32', tt, tt)); a(valu('v_add_f32', tt, 1.0, tt)); a(valu('v_rcp_f32', tt, tt)); a(valu('v_mul_f32', y, y, tt))
            q = V(40 + 4*(mt >> 1) + 2*(mt & 1), 2)
            a(valu('v_cvt_pk_bf16_f32', q[0], V(192 + mt*16), V(192 + mt*16 + 1))); a(valu('v_cvt_pk_bf16_f32', q[1], V(192 + mt*16 + 2), V(192 + mt*16 + 3)))
            if mt & 1:
                a(bstore(4, V(40 + 4*(mt >> 1), 4), V(7), SRD_W, S_T, mods="sc1")); a(sop('s_add_u32', S_T, S_T, 4096))
    if o.fuse_comb:
        SRD_X2 = S(28, 4); SRD_O = S(48, 4)
        s.extend(make_srd(SRD_X2, S(96, 2), 2 << 20)); s.extend(make_srd(SRD_O, S(100, 2) if o.g2_tail else S(98, 2), 2 << 20))
        a(valu('v_and_b32', V(1), 15, l)); a(raw("s_lshl_b32 s44, s26, 6", writes=[S(44)])); a(raw("s_lshl_b32 s45, s24, 4", writes=[S(45)]))
        a(raw("s_add_u32 s44, s44, s45", writes=[S(44)])); a(valu('v_add_u32', V(1), S(44), V(1))); a(valu('v_lshlrev_b32', V(1), 10, V(1)))
        a(valu('v_lshrrev_b32', V(2), 4, l)); a(valu('v_lshl_add_u32', V(1), V(2), 3, V(1)))
        a(raw("s_lshl_b32 s44, s25, 7", writes=[S(44)])); a(valu('v_add_u32', V(22), S(44), V(1)))
        XR = V(32, 8)
        for j in range(2):
            for t in range(2): a(bload(2, XR[4*j+2*t:4*j+2*t+2], V(22), SRD_X2, 0, off=64*j + 32*t))
        a(waitcnt(vm=4, lgkm=0))
        a(barrier())
        if FT: flag_decide()
        if o.g2_tail: s.extend(arrive2(S_T64)); a(nop(1))
        if FT:
            a(raw("s_cmp_eq_u32 s24, 0")); a(raw("s_cbranch_scc0 L_k3_cpollok", 'branch'))
            a(sop('s_add_u32', S(44), S_QB, 32)); a(raw("s_lshl_b32 s44, s44, 8", writes=[S(44)])); a(raw(f"s_add_u32 s44, s44, {WS_CNT}", writes=[S(44)]))
            a(valu('v_mov_b32', V(6), 1)); a(valu('v_lshlrev_b32', V(5), 25, l)); a(valu('v_mov_b32', V(1), 0)); a(smov(S(45), 0))
            a(I(f"buffer_atomic_add v6, v5, {SRD_W}, s44 offen sc0 sc1", 'vload', reads=[V(6), V(5), SRD_W, S(44)], writes=[V(6)]))
            a(waitcnt(vm=0)); a(readfirstlane(S(43), V(6))); a(nop(3)); a(sop('s_add_u32', S(43), S(43), 1))
            a(label("L_k3_cpoll"))
            a(scmp('s_cmp_ge_u32', S(43), 16)); a(raw("s_cbranch_scc1 L_k3_cpollok", 'branch'))
            a(raw("s_sleep 1"))
            a(bload(1, V(6), V(1), SRD_W, S(44), mods="sc1")); a(waitcnt(vm=0))
            a(readfirstlane(S(43), V(6))); a(nop(3))
            a(sop('s_add_u32', S(45), S(45), 1)); a(scmp('s_cmp_lt_u32', S(45), 0x80000)); a(raw("s_cbranch_scc1 L_k3_cpoll", 'branch'))
            a(label("L_k3_cpollok"))
            a(barrier())
            s.extend(STP())
        else:
            s.extend(arrive2(S_QB))
            s.extend(STP())
            a(sop('s_add_u32', S(44), S_QB, 32)); a(raw("s_lshl_b32 s44, s44, 8", writes=[S(44)])); a(raw(f"s_add_u32 s44, s44, {WS_CNT}", writes=[S(44)]))
            a(valu('v_mov_b32', V(1), 0)); a(smov(S(45), 0))
            a(label("L_k3_cpoll"))
            a(bload(1, V(6), V(1), SRD_W, S(44), mods="sc1")); a(waitcnt(vm=0))
            a(readfirstlane(S(43), V(6))); a(nop(3))
            a(scmp('s_cmp_ge_u32', S(43), 16)); a(raw("s_cbranch_scc1 L_k3_cpollok", 'branch'))
            a(raw("s_sleep 2")); a(sop('s_add_u32', S(45), S(45), 1)); a(scmp('s_cmp_lt_u32', S(45), 0x80000)); a(raw("s_cbranch_scc1 L_k3_cpoll", 'branch'))
            a(label("L_k3_cpollok"))
        a(raw("s_lshl_b32 s42, s26, 2", writes=[S_SO])); a(raw("s_lshr_b32 s43, s25, 1", writes=[S_T])); a(raw("s_add_u32 s42, s42, s43", writes=[S_SO]))
        a(raw("s_lshl_b32 s42, s42, 2", writes=[S_SO])); a(raw("s_and_b32 s43, s25, 1", writes=[S_T])); a(raw("s_lshl_b32 s43, s43, 1", writes=[S_T]))
        a(raw("s_add_u32 s42, s42, s43", writes=[S_SO])); a(raw("s_lshl_b32 s42, s42, 2", writes=[S_SO])); a(raw("s_add_u32 s42, s42, s24", writes=[S_SO]))
        a(raw("s_lshl_b32 s42, s42, 10", writes=[S_SO]))
        a(raw(f"s_add_u32 s43, s42, {WS_GATE}", writes=[S_T])); a(raw(f"s_add_u32 s42, s42, {WS_PART}", writes=[S_SO]))
        PPj = lambda j, g: V(128 + (j*8 + g)*4, 4)
        GG = [V(192, 4), V(196, 4)]
        for j in range(2):
            a(bload(4, GG[j], V(7), SRD_W, S_T, mods="sc1")); a(sop('s_add_u32', S_T, S_T, 4096))
        for g in range(8):
            a(bload(4, PPj(0, g), V(7), SRD_W, S_SO, mods="sc1"))
            a(sop('s_add_u32', S(44), S_SO, 4096))
            a(bload(4, PPj(1, g), V(7), SRD_W, S(44), mods="sc1"))
            if g < 7: a(sop('s_add_u32', S_SO, S_SO, 32*64*1024))
        if o.mfma_sum:
            SEL = [V(224, 4), V(228, 4)]
            a(valu('v_and_b32', V(2), 15, l)); a(valu('v_lshrrev_b32', V(3), 2, V(2))); a(valu('v_lshrrev_b32', V(4), 4, l))
            a(valu('v_and_b32', V(5), 1, V(2))); a(valu('v_lshlrev_b32', V(5), 4, V(5))); a(valu('v_mov_b32', V(6), 0x3F80)); a(valu('v_lshlrev_b32', V(5), V(5), V(6)))
            a(I("v_cmp_eq_u32 vcc, v3, v4", 'valu', reads=[V(3), V(4)], writes=['vcc'])); a(I("v_cndmask_b32 v5, 0, v5, vcc", 'valu', reads=[V(5), 'vcc'], writes=[V(5)]))
            a(valu('v_bfe_u32', V(3), V(2), 1, 1))
            a(I("v_cmp_eq_u32 vcc, 0, v3", 'valu', reads=[V(3)], writes=['vcc']))
            a(I(f"v_cndmask_b32 {SEL[0][0]}, 0, v5, vcc", 'valu', reads=[V(5), 'vcc'], writes=[SEL[0][0]]))
            a(valu('v_sub_u32', SEL[0][1], V(5), SEL[0][0]))
            a(valu('v_mov_b32', SEL[0][2], 0)); a(valu('v_mov_b32', SEL[0][3], 0)); a(valu('v_mov_b32', SEL[1][0], 0)); a(valu('v_mov_b32', SEL[1][1], 0))
            a(valu('v_mov_b32', SEL[1][2], SEL[0][0])); a(valu('v_mov_b32', SEL[1][3], SEL[0][1]))
            ACC = lambda j, t: V(200 + 8*j + 4*t, 4)
            for g in range(8):
                for j in range(2):
                    for t in range(2): a(mfma16(ACC(j, t), SEL[t], PPj(j, g), ACC(j, t) if g else 0))
        for j in range(2):
            R = [V(200 + 8*j + i) for i in range(8)]
            for k in range(8):
                q = k >> 1; hi = k & 1
                unp = lambda dst, src: valu('v_and_b32', dst, 0xffff0000, src) if hi else valu('v_lshlrev_b32', dst, 16, src)
                if not o.mfma_sum:
                    a(unp(R[k], PPj(j, 0)[q]))
                    for g in range(1, 8):
                        tt = V(2 + (g & 1))
                        a(unp(tt, PPj(j, g)[q])); a(valu('v_add_f32', R[k], R[k], tt))
                a(unp(V(4), GG[j][q])); a(unp(V(5), XR[4*j+q]))
                a(valu('v_fma_f32', R[k], R[k], V(4), V(5)))
            OUTR = V(216 + 4*j, 4)
            for q in range(4): a(valu('v_cvt_pk_bf16_f32', OUTR[q], R[2*q], R[2*q+1]))
            a(bstore(2, OUTR[0:2], V(22), SRD_O, 0, off=64*j, mods=o.out_mods)); a(bstore(2, OUTR[2:4], V(22), SRD_O, 0, off=64*j + 32, mods=o.out_mods))
    if o.timing or not o.fuse_comb: a(waitcnt(vm=0))
    s.extend(STP())
    if getattr(o, 'dbgtime', False):
        a(raw('s_memrealtime s[92:93]', 'smem', writes=[S(92, 2)])); a(sload(S(90, 2), ARG_DBG)); a(waitcnt(lgkm=0))
        s.extend(make_srd(S(84, 4), S(90, 2), 256))
        a(raw("s_sub_u32 s92, s92, s94", writes=[S(92)]))
        a(raw("s_add_u32 s93, s2, 4", writes=[S(93)])); a(raw("s_lshl_b32 s93, s93, 2", writes=[S(93)]))
        a(raw("s_cmp_lt_u32 s2, 8")); a(raw("s_cselect_b32 s93, s93, 0x1000", writes=[S(93)]))
        a(raw("s_cmp_eq_u32 s24, 0")); a(raw("s_cselect_b32 s93, s93, 0x1000", writes=[S(93)]))
        a(valu('v_mov_b32', V(2), S(92))); a(valu('v_lshlrev_b32', V(3), 25, l)); a(nop(3))
        a(bstore(1, V(2), V(3), S(84, 4), S(93))); a(waitcnt(vm=0))
    if getattr(o, 'diag_period', None) is not None: STP.force(len(o.diag_marks))
    if getattr(o, 'polldiag', False): STP.n = 16
    s.extend(STP.flush_dbg(S_WAVE, o.dbgwg) if getattr(o, 'dbgwg', None) is not None else STP.flush(S_WAVE))
    epi = s
    s = []; a = s.append
    M = [V(72 + i) for i in range(4)]
    a(label("L_k3_slow"))
    at.nozero = True
    a(smov(S_SLOW, 1))
    for r in range(128): a(valu('v_mov_b32', V(128 + r), 0))
    for qt in range(4):
        for r in range(4): a(valu('v_mov_b32', LA[qt][r], 0))
        a(valu('v_mov_b32', M[qt], 0xff800000))
    a(smov(S_TILE, 0)); a(smov(S(45), 32))
    a(label("L_k3_slowloop"))
    a(barrier())
    s.extend(at.kv_dma(0))
    a(waitcnt(vm=0)); a(barrier())
    for kh in range(2):
        s.extend(at.k_reads(0, kh)); s.extend(at.v_reads(0, kh))
        for c in range(2):
            for q2 in range(2):
                for t in range(2):
                    for i in range(4): a(mfma16(Sx(c, t, q2), Kf(t*4+i), Q(i, 2*c+q2), 0 if i == 0 else Sx(c, t, q2)))
            for q2 in range(2):
                qt = 2*c + q2; s0, s1 = Sx(c, 0, q2), Sx(c, 1, q2); m = V(4); t_ = V(5)
                a(valu('v_max3_f32', m, s0[0], s0[1], s0[2])); a(valu('v_max3_f32', m, m, s0[3], s1[0]))
                a(valu('v_max3_f32', m, m, s1[1], s1[2])); a(valu('v_max3_f32', m, m, s1[3], M[qt]))
                a(valu('v_mov_b32', t_, m)); a(permlane16_swap(m, t_)); a(valu('v_max_f32', m, m, t_))
                a(valu('v_mov_b32', t_, m)); a(permlane32_swap(m, t_)); a(valu('v_max_f32', m, m, t_))
                a(valu('v_sub_f32', t_, M[qt], m)); a(valu('v_exp_f32', t_, t_)); a(valu('v_mov_b32', M[qt], m))
                for dt in range(8):
                    for r in range(4): a(valu('v_mul_f32', O(dt, qt)[r], O(dt, qt)[r], t_))
                for r in range(4): a(valu('v_mul_f32', LA[qt][r], LA[qt][r], t_))
                for t in range(2):
                    sx = Sx(c, t, q2)
                    for r in range(4):
                        a(valu('v_sub_f32', sx[r], sx[r], m)); a(valu('v_exp_f32', sx[r], sx[r]))
                    a(valu('v_cvt_pk_bf16_f32', Pb[c][4*q2 + 2*t], sx[0], sx[1])); a(valu('v_cvt_pk_bf16_f32', Pb[c][4*q2 + 2*t + 1], sx[2], sx[3]))
            for m_ in at.pv_slot(0, kh, c):
                m_.rt = {}; a(m_)
    a(waitcnt(lgkm=0))
    a(sop('s_sub_u32', S(45), S(45), 1)); a(scmp('s_cmp_lg_u32', S(45), 0)); a(raw("s_cbranch_scc1 L_k3_slowloop", 'branch'))
    a(nop(15)); a(barrier())
    s.extend(wo_first())
    a(raw("s_branch L_k3_norm", 'branch'))
    for i_ in s:
        if hasattr(i_, 'rt'): i_.rt = {}
    slow, _, _ = auto_waits(s)
    slow = fix_hazards(slow, "slow")
    full = []
    for (name, seq) in seqs:
        if name == 32: full += pre_epi
        full += seq
    full += epi
    full, _, _ = auto_waits(full)
    errs = validate_tags(full)
    for e in errs[:10]: print("DATAFLOW", e, file=sys.stderr)
    parts = {}; cur = 'pro'; parts[cur] = []
    for ins in full:
        if ins.kind == 'label' and ins.text.startswith('@@'):
            cur = ins.text[2:-1]; parts[cur] = []
        else: parts[cur].append(ins)
    P = lambda j: parts[f'P{j}']
    txt = lambda j: [i.text for i in P(j)]
    def loop(first_j, n_iter, lbl, cnt):
        body = []
        for k in range(3):
            base = list(P(first_j + k))
            for it in range(1, n_iter):
                other = P(first_j + 3*it + k)
                assert len(other) == len(base), f"loop {lbl}: period {first_j+k} vs {first_j+3*it+k} length {len(base)} {len(other)}"
                for idx, (x, y) in enumerate(zip(base, other)):
                    if x.text != y.text:
                        assert x.kind == 'wait' and y.kind == 'wait' and (x.vm is None) == (y.vm is None) and (x.lgkm is None) == (y.lgkm is None), (lbl, x.text, y.text)
                        base[idx] = waitcnt(vm=None if x.vm is None else min(x.vm, y.vm), lgkm=None if x.lgkm is None else min(x.lgkm, y.lgkm))
            body += [comment(f"period {first_j+k} (+3n)")] + base
        body += [sop('s_sub_u32', cnt, cnt, 1), scmp('s_cmp_lg_u32', cnt, 0), raw(f"s_cbranch_scc1 {lbl}", 'branch')]
        errs = check_hazards(body, loop=True, name=lbl)
        for e in errs[:20]: print("HAZARD", e, file=sys.stderr)
        return [smov(cnt, n_iter), label(lbl)] + body
    out = fix_hazards(parts['pro'] + [comment("period 0")] + P(0), "pro")
    S_CNT = S(4)
    if getattr(o, 'noloop', False):
        allp = []
        for j in range(1, 33): allp += [comment(f"period {j}")] + P(j)
        out += fix_hazards(allp + parts['EPI'], "all")
        out += [raw("s_branch L_k3_end", 'branch')] + slow
        out.append(label("L_k3_end"))
        return emit(out)
    if o.side and o.g2_tail:
        out += loop(1, 5, "L_k3_loopA", S_CNT)
        mid = []
        for j in range(16, 19): mid += [comment(f"period {j}")] + P(j)
        out += fix_hazards(mid, "mid")
        out += loop(19, 3, "L_k3_loopB", S_CNT)
        tail = []
        for j in range(28, 33): tail += [comment(f"period {j}")] + P(j)
    elif o.side:
        out += loop(1, 5, "L_k3_loopA", S_CNT)
        mid = []
        for j in range(16, 23 if o.peel22 else 22): mid += [comment(f"period {j}")] + P(j)
        out += fix_hazards(mid, "mid")
        out += loop(23 if o.peel22 else 22, 2, "L_k3_loopB", S_CNT)
        tail = []
        for j in range(29 if o.peel22 else 28, 33): tail += [comment(f"period {j}")] + P(j)
    else:
        out += loop(1, 9, "L_k3_loopA", S_CNT)
        tail = []
        for j in range(28, 33): tail += [comment(f"period {j}")] + P(j)
    tm = []
    out += fix_hazards(tail + parts['EPI'], "tail")
    out += [raw("s_branch L_k3_end", 'branch')] + slow
    out.append(label("L_k3_end"))
    lin = []; i = 0
    idx = {x.text[:-1]: k for k, x in enumerate(out) if x.kind == 'label' and x.text.endswith(':')}
    k = 0
    while k < len(out):
        x = out[k]
        if x.kind == 'branch' and x.text.startswith('s_cbranch_scc1 L_k3_loop'):
            tgt = idx[x.text.split()[1]]
            lin += out[tgt:k + 1]
        lin.append(x)
        if x.kind == 'branch' and x.text == 's_branch L_k3_end': break
        k += 1
    errs = check_hazards(lin, loop=False, name="linear")
    for e in errs[:20]: print("HAZARD(seam)", e, file=sys.stderr)
    if getattr(o, 'verbose', False):
        for j in (2, 16, 17, 18, 21, 23, 29, 30):
            tot = 0; gap = None
            for i in P(j):
                if i.kind == 'mfma':
                    if gap is not None: tot += max(16, gap)
                    gap = 8
                elif gap is not None: gap += cost(i)
            print(f"; period {j}: est {tot + max(16, gap or 0)} cycles, {len(P(j))} instrs", file=sys.stderr)
    return emit(out)
if __name__ == "__main__":
    o = Opt(); o.verbose = True
    for kv in sys.argv[1:]:
        k, v = kv.split("="); setattr(o, k, eval(v))
    t = build(o); print(len(t.splitlines()))
```
